```python
import torch

def _softmax(x, axis=-1):
    return torch.softmax(x, dim=axis)
def _gelu(x):
    return torch.nn.functional.gelu(x, approximate="tanh")
def _silu(x):
    return torch.nn.functional.silu(x)
def _sigmoid(x):
    return torch.sigmoid(x)
def _layernorm(x, axis=-1, eps=1e-5):
    m = x.mean(dim=axis, keepdim=True)
    v = x.var(dim=axis, keepdim=True, unbiased=False)
    return (x - m) / torch.sqrt(v + eps)
def _scatter_add(tgt, idx, src, axis=0):
    return tgt.clone().index_add_(axis, idx, src)
def _segment_sum(src, seg, n):
    out = torch.zeros((n,) + src.shape[1:], dtype=src.dtype)
    return out.index_add_(0, seg, src)
def _pad(x, pw):
    flat = tuple(v for pair in reversed(pw) for v in pair)
    return torch.nn.functional.pad(x, flat)

kernel_name = 'recurrent_scan__linear_attn_block__glu_gated_geglu__prompt'

def setup_inputs():

    _w = (lambda a: (lambda t: t.to(torch.bfloat16) if t.is_floating_point() else t)(torch.as_tensor(a)))
    def _A_setup():
        B, S, D = 1, 2048, 512
        return {
            "x": _w((lambda *s: torch.randn(*s, dtype=torch.bfloat16) * 0.05)(B, S, D)),
            "wqkv": _w((lambda *s: torch.randn(*s, dtype=torch.bfloat16) * 0.8)(D, 3 * D)),
            "wo": _w((lambda *s: torch.randn(*s, dtype=torch.bfloat16) * 0.8)(D, D)),
        }
    _A_in = _A_setup()

    def _B_setup():
        B, S, Dm, Df = 1, 2048, 512, 1376
        return {
            "x": _w((lambda *s: torch.randn(*s, dtype=torch.bfloat16) * 0.05)(B, S, Dm)),
            "w_gate": _w((lambda *s: torch.randn(*s, dtype=torch.bfloat16) * 0.2)(Dm, Df) * (Dm ** -0.5)),
            "w_up": _w((lambda *s: torch.randn(*s, dtype=torch.bfloat16) * 0.2)(Dm, Df) * (Dm ** -0.5)),
            "w_down": _w((lambda *s: torch.randn(*s, dtype=torch.bfloat16) * 0.2)(Df, Dm) * (Df ** -0.5)),
        }
    _B_in = _B_setup()

    return {
        "A_x": _A_in["x"],
        "A_wqkv": _A_in["wqkv"],
        "A_wo": _A_in["wo"],
        "B_x": _B_in["x"],
        "B_w_gate": _B_in["w_gate"],
        "B_w_up": _B_in["w_up"],
        "B_w_down": _B_in["w_down"],
    }

def reference(A_x, A_wqkv, A_wo, B_x, B_w_gate, B_w_up, B_w_down):
    def _A_ref(x, wqkv, wo):
        B, S, D = x.shape
        H = 32; Dh = D // H
        qkv = (lambda x, *d: x.permute(*d))((x @ wqkv).reshape(B, S, 3, H, Dh), 2, 0, 3, 1, 4)
        q, k, v = qkv[0], qkv[1], qkv[2]
        phi = lambda t: torch.where(t > 0, t + 1, torch.exp(t)) + 1e-6
        pq, pk = phi(q), phi(k)
        kv = torch.einsum("bhsd,bhse->bhde", pk, v)
        z = torch.einsum("bhsd->bhd", pk)
        num = torch.einsum("bhqd,bhde->bhqe", pq, kv)
        den = torch.einsum("bhqd,bhd->bhq", pq, z)[..., None] + 1e-6
        o = num / den
        return (lambda x, *d: x.permute(*d))(o, 0, 2, 1, 3).reshape(B, S, D) @ wo

    def _B_ref(x, w_gate, w_up, w_down):
        g = torch.einsum("bsd,df->bsf", x, w_gate)
        u = torch.einsum("bsd,df->bsf", x, w_up)
        h = _gelu(g) * u
        return torch.einsum("bsf,fd->bsd", h, w_down)

    x = A_x
    xn = _layernorm(x, axis=-1)
    s = _A_ref(xn, A_wqkv, A_wo)
    g = _silu(_B_ref(xn, B_w_gate, B_w_up, B_w_down))
    return x + s * g
```

```python
import re
class Asm:
    def __init__(s):
        s.lines = []
    def i(s, t):
        for x in t.strip().split("\n"):
            x = x.strip()
            if not x: continue
            if x.startswith(";"): s.lines.append(('c', x))
            elif re.match(r"^[\w.$]+:$", x): s.lines.append(('l', x[:-1]))
            elif x.startswith("."): s.lines.append(('c', x))
            else: s.lines.append(('i', x.split(";")[0].strip()))
    __call__ = i
    def label(s, n): s.lines.append(('l', n))
    def extend(s, o): s.lines += o.lines

def regs(tok):
    tok = tok.strip()
    tok = re.sub(r"^-|^abs\(|\)$|^\||\|$", "", tok)
    m = re.match(r"^([vsa])(\d+)$", tok)
    if m: return {(m.group(1), int(m.group(2)))}
    m = re.match(r"^([vsa])\[(\d+):(\d+)\]$", tok)
    if m: return {(m.group(1), k) for k in range(int(m.group(2)), int(m.group(3))+1)}
    if tok == "vcc": return {('s', 106), ('s', 107)}
    if tok == "vcc_lo": return {('s', 106)}
    if tok == "vcc_hi": return {('s', 107)}
    if tok == "exec": return {('s', 126), ('s', 127)}
    if tok == "exec_hi": return {('s', 127)}
    if tok == "exec_lo": return {('s', 126)}
    if tok == "m0": return {('s', 124)}
    return set()

TRANS = ("v_exp_f32","v_log_f32","v_rcp_f32","v_rsq_f32","v_sqrt_f32","v_sin_f32","v_cos_f32")
class I:
    def __init__(s, t):
        s.t = t
        p = t.split(None, 1)
        s.mn = p[0]
        rest = p[1] if len(p) > 1 else ""
        ops = [o.strip() for o in re.split(r",(?![^\[]*\])", rest)] if rest else []
        s.mods = ""
        if ops:
            q = ops[-1].split(None, 1)
            ops[-1] = q[0]
            s.mods = q[1] if len(q) > 1 else ""
        s.ops = ops
        mn = s.mn
        s.mfma = mn.startswith("v_mfma")
        s.valu = mn.startswith("v_") and not s.mfma
        s.trans = any(mn.startswith(x) for x in TRANS)
        s.ds = mn.startswith("ds_")
        s.vmem = mn.startswith("buffer_") or mn.startswith("global_")
        s.salu = mn.startswith("s_")
        s.dpp = ("row_" in s.mods or "quad_perm" in s.mods or mn.endswith("_dpp"))
        s.perml = mn.startswith("v_permlane")
        s.rdl = mn.startswith("v_readlane") or mn.startswith("v_readfirstlane")
        R = [regs(o) for o in ops]
        U = lambda L: set().union(*L) if L else set()
        s.w = set(); s.r = set(); s.A = s.B = s.C = set(); s.sdata = set()
        s.ws = 1
        if mn == "s_nop": s.ws = int(ops[0], 0) + 1
        if s.mfma:
            s.w = R[0]; s.A = R[1]; s.B = R[2]; s.C = R[3]; s.r = s.A | s.B | s.C
            s.passes = 8 if "32x32x16" in mn else 4
        elif s.valu:
            if s.perml: s.w = R[0] | R[1]; s.r = s.w
            elif mn.startswith("v_cmp"): s.w = R[0]; s.r = U(R[1:])
            elif "_co_" in mn: s.w = R[0] | R[1]; s.r = U(R[2:])
            else:
                s.w = R[0]; s.r = U(R[1:])
                if mn.startswith("v_fmac") or mn.startswith("v_dot2c") or s.dpp or mn.startswith("v_writelane"): s.r |= R[0]
        elif s.ds:
            if mn.startswith("ds_read") or "rtn" in mn or "permute" in mn: s.w = R[0]; s.r = U(R[1:])
            else: s.r = U(R)
        elif s.vmem:
            lds = " lds" in (" " + s.mods) or "_lds_" in mn
            s.lds = lds
            if mn in ("buffer_wbl2", "buffer_inv"): pass
            elif "load" in mn and not lds: s.w = R[0]; s.r = U(R[1:])
            elif "store" in mn:
                s.r = U(R)
                if "x4" in mn or "x3" in mn: s.sdata = R[0] if mn.startswith("buffer") else R[1]
            else: s.r = U(R)
            if lds: s.r |= {('s',124)}
        elif s.salu:
            if mn.startswith("s_cmp") or mn.startswith("s_cbranch") or mn.startswith("s_bitcmp") or mn in ("s_waitcnt","s_barrier","s_nop","s_sleep","s_branch","s_endpgm","s_setprio"):
                s.r = U(R)
            else:
                s.w = R[0] if R else set(); s.r = U(R[1:])
                if "saveexec" in mn: s.w |= {('s',126),('s',127)}

def vg(S): return {x for x in S if x[0] in 'va'}
def sg(S): return {x for x in S if x[0] == 's'}
def need(p, c):
    n = 0
    if p.mfma:
        big = {8: 12, 4: 8}[p.passes]
        if c.mfma:
            if p.w & (c.A | c.B): n = max(n, big)
            if p.w & c.C and not (p.w == c.C and p.passes == c.passes): n = max(n, big - 2)
            if p.w & c.w and not (p.w == c.w): n = max(n, big)
        elif (c.valu or c.ds or c.vmem) and (p.w & (c.r | c.w)): n = max(n, big)
        if c.valu and (p.C & c.w): n = max(n, {8: 7, 4: 3}[p.passes])
    if p.valu:
        pv = vg(p.w); ps = sg(p.w)
        if c.mfma and pv & c.r: n = max(n, 2)
        if p.trans and c.valu and not c.trans and pv & c.r: n = max(n, 1)
        if p.trans and (c.vmem or c.ds) and pv & c.r: n = max(n, 1)
        if c.valu and c.dpp and pv & c.r: n = max(n, 2)
        if c.perml and pv & c.r: n = max(n, 2)
        if c.rdl and pv & c.r: n = max(n, 1)
        if ps:
            if c.valu and ps & c.r: n = max(n, 4 if (c.rdl or c.mn.startswith("v_writelane")) else 2)
            if c.vmem and ps & c.r: n = max(n, 5)
            if c.salu and ps & c.r: n = max(n, 1)
            if c.mn.startswith("s_cbranch_vcc") and (('s',106) in ps): n = max(n, 1)
        if "op_sel" in p.mods and not p.mn.startswith("v_pk") and c.valu and pv & (c.r|c.w): n = max(n, 1)
        if "sdwa" in p.mn and c.valu and pv & (c.r|c.w): n = max(n, 1)
    if p.salu and ('s',124) in p.w and c.vmem and getattr(c, 'lds', False): n = max(n, 1)
    if p.vmem and p.sdata and (p.sdata & c.w): n = max(n, 2)
    return n

def pad(lines):
    out = []; hist = []
    for k, t in lines:
        if k != 'i':
            out.append((k, t)); continue
        c = I(t)
        d = 0; req = 0
        for p in reversed(hist[-24:]):
            req = max(req, need(p, c) - d)
            d += p.ws
            if d > 20: break
        if req > 0:
            nop = I(f"s_nop {req-1}")
            out.append(('i', nop.t)); hist.append(nop)
        out.append((k, t)); hist.append(c)
        if c.mn in ("s_branch", "s_endpgm"): hist = []
    lab = {t: n for n, (k, t) in enumerate(out) if k == 'l'}
    errs = []
    for n, (k, t) in enumerate(out):
        if k == 'i' and (t.startswith("s_cbranch") or t.startswith("s_branch")):
            tgt = t.split()[1]
            if tgt not in lab: errs.append("unknown label " + tgt); continue
            pre = []
            j = n
            while j >= 0 and len(pre) < 24:
                if out[j][0] == 'i':
                    x = I(out[j][1])
                    if j != n and x.mn in ("s_branch", "s_endpgm"): break
                    pre.insert(0, x)
                j -= 1
            post = [I(x[1]) for x in out[lab[tgt]:lab[tgt]+40] if x[0] == 'i'][:24]
            for ci, c in enumerate(post):
                d = sum(x.ws for x in post[:ci])
                for p in reversed(pre):
                    if need(p, c) > d: errs.append(f"hazard across branch '{t}': {p.t} -> {c.t} (dist {d})")
                    d += p.ws
                    if d > 20: break
                if c.mn in ("s_branch", "s_endpgm"): break
    return out, errs

def render(lines):
    o = []
    for k, t in lines:
        o.append(t + ":" if k == 'l' else ("    " + t))
    return "\n".join(o) + "\n"

def interleave(main, fill, per=None, start=0):
    out = []; f = list(fill)
    n = len(main)
    if per is None: per = -(-len(f) // max(1, n - start))
    for i, m in enumerate(main):
        out.append(m)
        if i >= start:
            for _ in range(per):
                if f: out.append(f.pop(0))
    return out + f
```

```python
import sys, struct
from asmlib import *
NAME = "recurrent_scan__linear_attn_block__glu_gated_geglu__prompt"
OPT = dict(stamps=0, rot=2, prio=0, pfw2=1, pfcode=1, spin=1<<17)
for a in sys.argv[2:]:
    k, v = a.split("="); OPT[k] = int(v, 0)
def f2u(x): return struct.unpack("<I", struct.pack("<f", x))[0]
def hx(x): return "0x%08x" % f2u(x)

SLOT = 49408; XW = 24576; UPOFF = 12320; MISC = 3*SLOT; LDS = 163840
RS = MISC; RR = MISC+3072; CF = MISC+3840; LF = MISC+5376; EX = MISC+5504
Q = 12288
WS_FLAG = 0x1000; WS_RS = 0x10000; WS_CS = 0x20000; WS_KV = 0x80000; WS_DBG = 0x120000
WS_H = 0x200000; WS_O = 0x800000
X="s[36:39]"; W="s[40:43]"; WS="s[44:47]"; H="s[48:51]"; O="s[52:55]"; WD="s[56:59]"; WO="s[60:63]"; OUT="s[64:67]"
TAG="s10"
def v(b, n=1): return f"v{b}" if n == 1 else f"v[{b}:{b+n-1}]"
def mfma(d, a, b, c=None):
    return f"v_mfma_f32_32x32x16_bf16 {v(d,16)}, {v(a,4)}, {v(b,4)}, " + ("0" if c == 0 else v(d,16))
def bc(r):
    return v(r & ~1, 2), r & 1
_lab = [0]
def L(p="L"):
    _lab[0] += 1; return f"{p}_{_lab[0]}"

A = Asm()
def stamp(i):
    if OPT["stamps"]:
        A(f"s_memtime s[68:69]\ns_waitcnt lgkmcnt(0)\ns_mov_b32 s{92+i}, s68")
def srd(name, lo, size, add=0):
    b = int(name[2:4])
    if add:
        A(f"s_add_u32 s{b}, s{lo}, {add}\ns_addc_u32 s{b+1}, s{lo+1}, 0")
    else:
        A(f"s_mov_b32 s{b}, s{lo}\ns_mov_b32 s{b+1}, s{lo+1}")
    A(f"s_mov_b32 s{b+2}, {size}\ns_mov_b32 s{b+3}, 0x20000")

def spin_global(vaddr, vt):
    l1, l2 = L("POLL"), L("POLLD")
    A(f"""s_mov_b32 s86, 0
{l1}:
buffer_load_dword {v(vt)}, {v(vaddr)}, {WS}, 0 offen sc1
s_add_u32 s86, s86, 1
s_waitcnt vmcnt(0)
v_cmp_ne_u32 vcc, {TAG}, {v(vt)}
s_cmp_gt_u32 s86, {OPT['spin']}
s_cbranch_scc1 {l2}
s_cbranch_vccz {l2}
s_sleep 1
s_branch {l1}
{l2}:""")
def spin_lds(vaddr, vt, off):
    l1, l2 = L("LP"), L("LPD")
    A(f"""s_mov_b32 s86, 0
{l1}:
ds_read_b32 {v(vt)}, {v(vaddr)} offset:{off}
s_add_u32 s86, s86, 1
s_waitcnt lgkmcnt(0)
v_cmp_eq_u32 vcc, 0, {v(vt)}
s_cmp_gt_u32 s86, {OPT['spin']*16}
s_cbranch_scc1 {l2}
s_cbranch_vccz {l2}
s_branch {l1}
{l2}:""")

A(f"""s_cmp_ge_u32 s2, 256
s_cbranch_scc1 L_END
s_load_dwordx16 s[16:31], s[0:1], 0
s_load_dwordx2 s[32:33], s[0:1], 72""")
if OPT["stamps"]:
    A("s_memrealtime s[34:35]\ns_memtime s[68:69]")
A(f"""v_lshrrev_b32 v1, 6, v0
v_and_b32 v0, 63, v0
v_readfirstlane_b32 s3, v1
s_and_b32 s5, s2, 7
s_lshr_b32 s86, s2, 3
s_lshl_b32 s84, s5, 2
s_lshr_b32 s87, s86, 3
s_add_u32 s84, s84, s87
s_and_b32 s85, s86, 7
s_lshl_b32 s5, s5, 5
s_add_u32 s5, s5, s86
s_and_b32 s4, s3, 3
s_mov_b32 s12, 0
s_cmp_lt_u32 s5, 138
s_cbranch_scc0 L_BOT
s_mul_i32 s7, s5, 171
s_lshr_b32 s7, s7, 10
s_mul_i32 s86, s7, 6
s_sub_u32 s6, s5, s86
s_branch L_IDS
L_BOT:
s_cmp_ge_u32 s5, 253
s_cselect_b32 s12, 1, 0
s_cselect_b32 s86, 5, 0
s_sub_u32 s86, s5, s86
s_sub_u32 s86, s86, 138
s_mul_i32 s87, s86, 205
s_lshr_b32 s87, s87, 10
s_sub_u32 s7, 22, s87
s_mul_i32 s87, s87, 5
s_sub_u32 s6, s86, s87
s_add_u32 s6, s6, 6
L_IDS:
s_mul_i32 s8, s6, 192
s_min_u32 s8, s8, 1856
s_mul_i32 s9, s7, 96
s_min_u32 s9, s9, 1280
s_waitcnt lgkmcnt(0)
s_load_dword s10, s[32:33], 0""")
if OPT["stamps"]:
    A("s_mov_b32 s92, s68")
srd(X, 16, 2097152); srd(WS, 32, 0x200000)
A(f"""s_cmp_ge_u32 s3, 4
s_cbranch_scc1 L_COMPUTE""")

if OPT["rot"] == 2:
    A("""s_add_u32 s13, s6, s7
s_and_b32 s13, s13, 1
s_lshl_b32 s13, s13, 2
s_lshr_b32 s14, s6, 1
s_add_u32 s15, s13, s14""")
elif OPT["rot"] == 8:
    A("""s_add_u32 s13, s6, s7
s_and_b32 s13, s13, 7
s_mov_b32 s14, 0
s_mov_b32 s15, s13""")
elif OPT["rot"] == 4:
    A("""s_add_u32 s13, s6, s7
s_and_b32 s13, s13, 3
s_lshl_b32 s13, s13, 1
s_lshr_b32 s14, s6, 2
s_add_u32 s15, s13, s14""")
A(f"""s_cmp_ge_u32 s6, 8
s_cselect_b32 s14, 99, s14
s_cmp_eq_u32 s12, 1
s_cselect_b32 s14, 99, s14
; x voffsets v2,v3
v_lshrrev_b32 v8, 3, v0
v_lshlrev_b32 v8, 10, v8
v_and_b32 v9, 7, v0
v_lshrrev_b32 v10, 4, v0
v_xor_b32 v11, v9, v10
s_mul_i32 s86, s4, 48
s_add_u32 s86, s86, s8
s_lshl_b32 s86, s86, 10
v_lshl_add_u32 v2, v11, 4, v8
v_add_u32 v2, s86, v2
v_xor_b32 v3, 64, v2
s_mul_i32 s76, s4, 6144
s_cmp_ge_u32 s7, 15
s_cbranch_scc1 L_LQKV
s_cmp_ge_u32 s4, 2
s_cselect_b32 s40, s26, s24
s_cselect_b32 s41, s27, s25
s_cselect_b32 s77, {UPOFF}, 0
s_add_u32 s77, s77, {XW}
s_mov_b32 s42, {512*2752}
s_and_b32 s86, s4, 1
s_mul_i32 s87, s86, 6144
s_add_u32 s77, s77, s87
s_mul_i32 s86, s86, {32*2752}
s_lshl_b32 s87, s9, 1
s_add_u32 s70, s86, s87
s_mov_b32 s71, s70
s_mov_b32 s72, s70
s_add_u32 s73, s70, {16*2752}
s_mov_b32 s74, s73
s_mov_b32 s75, s73
s_mov_b32 s82, {64*2752}
s_movk_i32 s86, 0x1556
s_movk_i32 s87, {2752-192}""")
for i in range(3):
    A(f"""v_add_u32 v8, {64*i}, v0
v_mul_u32_u24 v9, s86, v8
v_lshrrev_b32 v9, 16, v9
v_mul_u32_u24 v9, s87, v9
v_lshl_add_u32 v{4+i}, v8, 4, v9""")
A(f"""s_branch L_LGO
L_LQKV:
s_mov_b32 s40, s18
s_mov_b32 s41, s19
s_mov_b32 s42, {512*3072}
s_add_u32 s77, s76, {XW}
s_mov_b32 s82, {64*3072}
s_sub_u32 s87, s7, 15
s_lshl_b32 s87, s87, 7
s_mul_i32 s88, s4, 6""")
for i in range(6):
    A(f"""s_add_u32 s86, s88, {i}
s_lshr_b32 s89, s86, 3
s_lshl_b32 s89, s89, 10
s_and_b32 s86, s86, 7
s_mul_i32 s86, s86, {8*3072}
s_add_u32 s86, s86, s89
s_add_u32 s{70+i}, s86, s87""")
A(f"""v_lshrrev_b32 v8, 3, v0
v_mul_u32_u24 v8, 3072, v8
v_and_b32 v10, 1, v10
v_lshlrev_b32 v10, 2, v10
v_xor_b32 v9, v9, v10
v_lshl_add_u32 v4, v9, 4, v8
v_mov_b32 v5, v4
v_mov_b32 v6, v4
L_LGO:
s_mov_b32 s43, 0x20000
s_mov_b32 s78, 0
s_mov_b32 s79, s13
s_mov_b32 s83, -2""")
A(f"""L_LLOOP:
s_lshl_b32 s80, s79, 7
s_mul_i32 s81, s79, s82
s_add_u32 s88, s78, s76
s_add_u32 s89, s78, s77""")
for i in range(6):
    A(f"""s_add_u32 m0, s88, {1024*i}
s_add_u32 s86, s80, {8192*i}
buffer_load_dwordx4 v{2+(i&1)}, {X}, s86 offen lds
s_add_u32 m0, s89, {1024*i}
s_add_u32 s87, s81, s{70+i}
buffer_load_dwordx4 v{4+i%3}, {W}, s87 offen lds""")
A(f"""s_add_u32 s79, s79, 1
s_and_b32 s79, s79, 7
s_add_u32 s78, s78, {SLOT}
s_cmp_eq_u32 s78, {3*SLOT}
s_cselect_b32 s78, 0, s78
s_add_i32 s83, s83, 1
s_cmp_lt_i32 s83, 1
s_cbranch_scc1 L_LLOOP
s_cmp_eq_u32 s83, 1
s_cbranch_scc0 L_LNOB0""")
A(f"""s_waitcnt lgkmcnt(0)
s_add_u32 {TAG}, {TAG}, 0x9E3779B9
s_waitcnt vmcnt(24)""")
stamp(1)
A(f"""s_barrier
L_LNOB0:
s_sub_u32 s86, s83, 1
s_cmp_eq_u32 s86, s14
s_cbranch_scc0 L_LNOCS""")
A(f"""v_and_b32 v8, 3, v0
v_bfe_u32 v9, v0, 2, 2
v_bfe_u32 v10, v0, 4, 1
v_lshrrev_b32 v11, 5, v0
v_lshl_add_u32 v11, v11, 3, v9
s_lshr_b32 s86, s4, 1
s_lshl_b32 s86, s86, 5
v_add_u32 v11, s86, v11
s_and_b32 s87, s4, 1
s_add_u32 s88, s78, {XW}
v_mov_b32 v40, 0x3f803f80
v_mov_b32 v41, 0x3f803f80
v_mov_b32 v42, 0x3f803f80
v_mov_b32 v43, 0x3f803f80
s_cmp_ge_u32 s7, 15
s_cbranch_scc1 L_CSQ
v_mul_u32_u24 v11, 192, v11
v_mul_u32_u24 v10, {UPOFF}, v10
v_lshl_add_u32 v8, v8, 3, v11
s_mul_i32 s87, s87, 96
s_add_u32 s88, s88, s87
v_add3_u32 v8, v8, v10, s88""")
for t in range(2):
    for u in range(3):
        for sec in range(2):
            A(f"ds_read_b64_tr_b16 {v(16+12*t+4*u+2*sec,2)}, v8 offset:{t*3072+sec*768+u*32}")
A(f"""s_branch L_CSM
L_CSQ:
v_lshlrev_b32 v11, 7, v11
v_lshrrev_b32 v12, 1, v8
v_lshl_add_u32 v12, v10, 1, v12
v_lshrrev_b32 v9, 1, v9
v_xor_b32 v9, s87, v9
v_lshl_add_u32 v12, v9, 2, v12
v_lshl_add_u32 v11, v12, 4, v11
v_and_b32 v8, 1, v8
v_lshl_add_u32 v8, v8, 3, v11
v_add_u32 v8, s88, v8""")
for t in range(2):
    for u in range(3):
        for sec in range(2):
            A(f"ds_read_b64_tr_b16 {v(16+12*t+4*u+2*sec,2)}, v8 offset:{u*8192+t*2048+sec*512}")
A(f"""L_CSM:
s_lshl_b32 s86, s7, 4
s_lshl_b32 s87, s15, 1
s_add_u32 s86, s86, s87
s_lshl_b32 s86, s86, 1
s_add_u32 s86, s86, s4
s_lshl_b32 s86, s86, 9
s_add_u32 s86, s86, {WS_CS}
v_and_b32 v9, 31, v0
v_lshlrev_b32 v9, 4, v9
s_waitcnt lgkmcnt(0)""")
for t in range(2):
    for u in range(3):
        A(mfma(48+16*u, 40, 16+12*t+4*u, 0 if t == 0 else None))
A(f"""v_mov_b32 v47, {TAG}
v_mov_b32 v44, v48
v_mov_b32 v45, v64
v_mov_b32 v46, v80
buffer_store_dwordx4 v[44:47], v9, {WS}, s86 offen sc1
L_LNOCS:
s_waitcnt vmcnt(12)
s_barrier
s_cmp_lt_u32 s83, 6
s_cbranch_scc1 L_LLOOP""")
stamp(2)
srd(H, 32, 86*65536, WS_H); srd(WD, 28, 1376*1024); srd(WO, 20, 512*1024); srd(OUT, 30, 2097152)
A(f"""v_lshrrev_b32 v8, 3, v0
v_lshlrev_b32 v8, 10, v8
v_and_b32 v9, 7, v0
v_bfe_u32 v10, v0, 4, 1
v_lshlrev_b32 v11, 2, v10
v_xor_b32 v9, v9, v11
v_lshl_add_u32 v8, v9, 4, v8
s_lshl_b32 s86, s85, 7
v_add_u32 v4, s86, v8
s_mul_i32 s87, s4, {22*16384}
v_add_u32 v2, s87, v4
v_add_u32 v3, {20*16384}, v2
s_lshl_b32 s87, s4, 17
v_add_u32 v4, s87, v4
s_mul_i32 s76, s4, {Q}""")
A(f"""s_cmp_ge_u32 s4, 2
s_cbranch_scc1 L_SF1
s_lshl_b32 s86, s7, 14
s_lshl_b32 s87, s4, 9
s_add_u32 s86, s86, s87
s_add_u32 s86, s86, {WS_CS}
v_and_b32 v5, 31, v0
v_lshlrev_b32 v5, 4, v5
v_lshrrev_b32 v8, 5, v0
v_lshl_add_u32 v5, v8, 13, v5
v_add_u32 v5, s86, v5
v_add_u32 v6, 4096, v5""")
def cs_loads():
    for p in range(8):
        A(f"buffer_load_dwordx4 {v(16+4*p,4)}, v{5+p//4}, {WS}, 0 offen offset:{1024*(p%4)} sc1")
def rs_loads():
    A(f"buffer_load_dwordx4 v[16:19], v5, {WS}, 0 offen sc1\nbuffer_load_dwordx4 v[20:23], v6, {WS}, 0 offen sc1")
cs_loads()
A(f"""s_branch L_SF2
L_SF1:
s_sub_u32 s87, s4, 2
s_mul_i32 s87, s87, 96
v_add_u32 v7, s87, v0
v_and_b32 v8, 31, v0
v_add3_u32 v8, v8, s87, 64
s_lshl_b32 s86, s8, 4
s_add_u32 s86, s86, {WS_RS}
v_lshl_add_u32 v5, v7, 4, s86
v_lshl_add_u32 v6, v8, 4, s86""")
rs_loads()
A("L_SF2:")
def w2dma(kind, k, slot, blk):
    for h in range(2):
        A(f"s_add_u32 m0, s76, {slot*SLOT + blk*2048 + h*1024}")
        if kind == 'd':
            va, kk = (2, k) if k < 20 else (3, k-20)
            A(f"s_mov_b32 s86, {kk*16384 + h*8192}\nbuffer_load_dwordx4 v{va}, {WD}, s86 offen lds")
        else:
            A(f"s_mov_b32 s86, {k*16384 + h*8192}\nbuffer_load_dwordx4 v4, {WO}, s86 offen lds")
for k in range(6): w2dma('d', k, 2, k)
A("s_waitcnt vmcnt(12)\ns_barrier")
for k in range(6): w2dma('d', 6+k, 0, k)
A(f"""s_mov_b32 s88, 0
s_cmp_ge_u32 s4, 2
s_cbranch_scc1 L_SP1
L_SPC:
v_xor_b32 v8, {TAG}, v19""")
for p in range(1, 8):
    A(f"v_xor_b32 v9, {TAG}, v{19+4*p}\nv_or_b32 v8, v8, v9")
A(f"""v_cmp_ne_u32 vcc, 0, v8
s_add_u32 s88, s88, 1
s_cmp_gt_u32 s88, {OPT['spin']}
s_cbranch_scc1 L_SPCD
s_cbranch_vccz L_SPCD""")
cs_loads()
A(f"""s_waitcnt vmcnt(0)
s_branch L_SPC
L_SPCD:""")
for u in range(3):
    for p in range(1, 8):
        A(f"v_add_f32 v{16+u}, v{16+u}, v{16+4*p+u}")
for u in range(3):
    A(f"v_mov_b32 v{20+u}, v{16+u}")
for u in range(3):
    A(f"v_permlane32_swap_b32 v{16+u}, v{20+u}")
A(f"""v_and_b32 v8, 31, v0
s_mul_i32 s86, s4, 768
s_add_u32 s86, s86, {CF}
v_lshl_add_u32 v8, v8, 3, s86""")
for u in range(3):
    A(f"""v_add_f32 v16, v{16+u}, v{20+u}
v_and_b32 v24, 0xffff0000, v16
v_sub_f32 v25, v16, v24
v_and_b32 v26, 0xffff0000, v25
v_sub_f32 v25, v25, v26
v_lshrrev_b32 v24, 16, v24
v_or_b32 v{28+2*u}, v24, v26
v_lshrrev_b32 v{29+2*u}, 16, v25
ds_write_b64 v8, {v(28+2*u,2)} offset:{256*u}""")
A(f"""s_branch L_SP2
L_SP1:
v_xor_b32 v9, {TAG}, v19
v_xor_b32 v10, {TAG}, v23
v_or_b32 v9, v9, v10
v_cmp_ne_u32 vcc, 0, v9
s_add_u32 s88, s88, 1
s_cmp_gt_u32 s88, {OPT['spin']}
s_cbranch_scc1 L_SP1D
s_cbranch_vccz L_SP1D""")
rs_loads()
A(f"""s_waitcnt vmcnt(0)
s_branch L_SP1
L_SP1D:
s_mov_b32 s86, {RS}
s_mov_b32 s87, {RR}
v_lshl_add_u32 v9, v7, 4, s86
v_lshl_add_u32 v10, v8, 4, s86
v_lshl_add_u32 v7, v7, 2, s87
v_lshl_add_u32 v8, v8, 2, s87
ds_write_b128 v9, v[16:19]
ds_write_b128 v10, v[20:23]
ds_write_b32 v7, v17
ds_write_b32 v8, v21
L_SP2:
s_waitcnt lgkmcnt(0)
s_barrier""")
stamp(3)
for k in range(6): w2dma('d', 12+k, 1, k)

def w2addr(base):
    A(f"""v_and_b32 v8, 3, v0
v_bfe_u32 v9, v0, 2, 2
v_bfe_u32 v10, v0, 4, 1
v_lshrrev_b32 v11, 5, v0
v_lshl_add_u32 v11, v11, 2, v9
v_lshlrev_b32 v11, 7, v11
v_lshrrev_b32 v9, 1, v9
v_lshl_add_u32 v10, v9, 2, v10
v_and_b32 v9, 1, v8
v_lshl_add_u32 v10, v9, 1, v10
v_lshl_add_u32 v11, v10, 4, v11
v_lshrrev_b32 v8, 1, v8
v_lshl_add_u32 v11, v8, 3, v11
v_add_u32 v{base}, s76, v11
v_xor_b32 v11, 64, v11
v_add_u32 v{base+1}, s76, v11
v_add_u32 v{base+2}, {2*SLOT}, v{base}
v_add_u32 v{base+3}, {2*SLOT}, v{base+1}""")
def w2read(dst, slot, blk, ab):
    o = []
    for c in range(2):
        for sec in range(2):
            ar = ab + c + (2 if slot == 2 else 0)
            off = (SLOT if slot == 1 else 0) + blk*2048 + sec*1024
            o.append(f"ds_read_b64_tr_b16 {v(dst+4*c+2*sec,2)}, v{ar} offset:{off}")
    return o
def xres(half):
    A(f"""s_lshr_b32 s86, s4, 1
s_lshl_b32 s86, s86, 5
s_lshl_b32 s87, s84, 6
s_add_u32 s86, s86, s87
s_lshl_b32 s86, s86, 10
s_lshl_b32 s87, s85, 7
s_add_u32 s86, s86, s87
s_and_b32 s87, s4, 1
s_lshl_b32 s87, s87, 6
s_add_u32 s86, s86, s87
s_add_u32 s86, s86, {16*half}
v_and_b32 v8, 31, v0
v_lshlrev_b32 v8, 10, v8
v_lshrrev_b32 v9, 5, v0
v_lshl_add_u32 v8, v9, 5, v8
v_add_u32 v1, s86, v8
buffer_load_dwordx4 v[12:15], v1, {X}, 0 offen""")
AB = 80
w2addr(16)
xres(0)
A("v_mov_b32 v8, v16\nv_mov_b32 v9, v17\nv_mov_b32 v10, v18\nv_mov_b32 v11, v19")
AB = 8
A("s_waitcnt vmcnt(25)")
for k in range(6):
    for t in w2read(96+8*k, 2, k, AB): A(t)
    if k % 3 == 2: A("s_waitcnt lgkmcnt(0)")
for k in range(4): w2dma('d', 18+k, 2, k)
for k in range(2): w2dma('o', k, 2, 4+k)
A("s_waitcnt vmcnt(25)")
for k in range(6):
    for t in w2read(96+48+8*k, 0, k, AB): A(t)
    if k % 3 == 2: A("s_waitcnt lgkmcnt(0)")
for k in range(6): w2dma('o', 2+k, 0, k)
A(f"""s_mul_i32 s86, s4, {22*64}
s_lshl_b32 s87, s84, 1
s_add_u32 s86, s86, s87
s_lshl_b32 s86, s86, 10
v_lshl_add_u32 v2, v0, 4, s86
v_add_u32 v3, {20*65536}, v2
s_mul_i32 s86, s4, {22*43}
s_add_u32 s87, s86, {21*43}
s_lshr_b32 s86, s86, 8
s_lshr_b32 s87, s87, 8
v_bfe_u32 v5, v0, 2, 3
v_add_u32 v5, s86, v5
v_min_u32 v5, s87, v5
s_mul_i32 s88, s84, 43
s_lshr_b32 s88, s88, 7
s_mul_i32 s88, s88, {23*128}
s_add_u32 s88, s88, {WS_FLAG}
v_lshl_add_u32 v5, v5, 7, s88
v_and_b32 v6, 3, v0
v_lshl_add_u32 v5, v6, 2, v5
s_lshl_b32 s86, s4, 2
s_add_u32 s86, s86, {LF+32}
v_mov_b32 v6, s86
v_mov_b32 v7, 1
s_waitcnt vmcnt(0)
ds_write_b32 v6, v7""")
stamp(4)
spin_global(5, 6)
stamp(5)
def hload(kd):
    va, kk = (2, kd) if kd < 20 else (3, kd-20)
    b = 16 + 8*(kd % 8)
    return [f"s_mov_b32 s86, {kk*65536}",
            f"buffer_load_dwordx4 {v(b,4)}, v{va}, {H}, s86 offen sc1",
            f"buffer_load_dwordx4 {v(b+4,4)}, v{va}, {H}, s86 offen offset:1024 sc1"]
def res_loc(kd):
    return (1, kd-12) if kd < 18 else (2, kd-18)
for kd in range(8):
    for t in hload(kd): A(t)
for kd in range(22):
    wf = 96+8*kd if kd < 12 else 80+8*(kd & 1)
    hb = 16 + 8*(kd % 8)
    A(f"s_waitcnt vmcnt({2*min(7, 21-kd)})" + (" lgkmcnt(0)" if kd >= 12 else ""))
    ms = [mfma(192+32*r+16*c, wf+4*c, hb+4*r, 0 if kd == 0 else None) for r in range(2) for c in range(2)]
    fill = []
    if 12 <= kd+1 < 22:
        fill = w2read(80+8*((kd+1) & 1), *res_loc(kd+1), AB)
    for t in interleave(ms, fill, 2): A(t)
    if kd+8 < 22:
        for t in hload(kd+8): A(t)
stamp(6)
def final(isy):
    A(f"""v_lshlrev_b32 v2, 4, v0
v_add_u32 v3, s76, v2
v_add_u32 v4, {2*SLOT + (0 if isy else 8192)}, v3""")
    for q in range(4):
        for jq in range(4):
            if q < 3: A(f"ds_write_b128 v3, {v(192+16*q+4*jq,4)} offset:{(SLOT if isy else 0) + q*4096 + jq*1024}")
            else: A(f"ds_write_b128 v4, {v(192+16*q+4*jq,4)} offset:{jq*1024}")
    A(f"""s_lshl_b32 s86, s4, 12
s_add_u32 s87, s86, {SLOT}
s_cmp_eq_u32 s4, 3
s_cselect_b32 s86, {2*SLOT+8192}, s86
s_cselect_b32 s87, {2*SLOT}, s87
s_add_u32 s86, s86, {0 if isy else 2048}
s_add_u32 s87, s87, {0 if isy else 2048}
v_add_u32 v3, s87, v2
v_add_u32 v4, s86, v2
s_waitcnt lgkmcnt(0)""")
final(True)
A("s_branch L_FINAL")

A("L_COMPUTE:")
if OPT["prio"]: A(f"s_setprio {OPT['prio']}")
srd(WD, 28, 1376*1024); srd(WO, 20, 512*1024)
A(f"""s_lshl_b32 s86, s5, 3
s_lshl_b32 s87, s4, 1
s_add_u32 s86, s86, s87
v_lshrrev_b32 v7, 5, v0
v_add_u32 v7, s86, v7
v_and_b32 v2, 31, v0
v_lshlrev_b32 v2, 4, v2
v_lshl_add_u32 v2, v7, 10, v2
buffer_load_dwordx4 v[8:11], v2, {X}, 0 offen
buffer_load_dwordx4 v[12:15], v2, {X}, 0 offen offset:512""")
npf = 0
if OPT["pfw2"]:
    A(f"""s_lshl_b32 s86, s86, 10
v_lshl_add_u32 v3, v0, 4, s86
v_subrev_u32 v4, {1376*1024}, v3
buffer_load_dwordx4 v[48:51], v3, {WD}, 0 offen
buffer_load_dwordx4 v[52:55], v3, {WD}, 0 offen offset:1024
buffer_load_dwordx4 v[56:59], v4, {WO}, 0 offen
buffer_load_dwordx4 v[60:63], v4, {WO}, 0 offen offset:1024""")
    npf += 4
if OPT["pfcode"]:
    A(f"""s_getpc_b64 s[88:89]
L_PC:
s_sub_u32 s88, s88, L_PC-{NAME}_kernel
s_subb_u32 s89, s89, 0
s_lshr_b32 s86, s2, 3
s_lshl_b32 s86, s86, 3
s_lshl_b32 s87, s4, 1
s_add_u32 s86, s86, s87
v_and_b32 v3, 1, v0
v_add_u32 v3, s86, v3
v_lshlrev_b32 v3, 7, v3
v_min_u32 v3, L_END-{NAME}_kernel, v3
global_load_dword v47, v3, s[88:89]""")
    npf += 1
srd(H, 32, 86*65536, WS_H); srd(O, 32, 32*65536, WS_O); srd(OUT, 30, 2097152)
ACC = 112
for r in range(ACC, 256): A(f"v_mov_b32 v{r}, 0")
A(f"""v_lshlrev_b32 v16, 2, v0
v_add_u32 v16, {LF}, v16
v_mov_b32 v17, 0
v_cmp_gt_u32 vcc, 16, v0
s_and_saveexec_b64 s[90:91], vcc
ds_write_b32 v16, v17
s_mov_b64 exec, s[90:91]
s_lshr_b32 s13, s4, 1
s_and_b32 s14, s4, 1
s_movk_i32 s11, 0x1ff
s_lshl_b32 s86, s13, 4
s_add_u32 s86, s86, s6
s_cmp_eq_u32 s86, 10
s_cselect_b32 s11, 0x1c0, s11
s_mul_i32 s86, s14, 0x1b6
s_cmp_eq_u32 s7, 14
s_cselect_b32 s86, s86, 0x1ff
s_and_b32 s11, s11, s86
s_cmp_eq_u32 s12, 1
s_cselect_b32 s11, 0, s11
s_mul_i32 s86, s6, 23
s_add_u32 s86, s86, s7
s_cmp_eq_u32 s12, 1
s_cselect_b32 s86, 255, s86
s_lshl_b32 s86, s86, 7
s_lshl_b32 s87, s4, 2
s_add_u32 s86, s86, s87
s_add_u32 s15, s86, {WS_FLAG}
s_mul_i32 s76, s4, {Q}
v_and_b32 v16, 31, v0
v_lshrrev_b32 v17, 5, v0
v_bfe_u32 v18, v0, 1, 3
v_xor_b32 v18, v18, v17
s_mul_i32 s86, s13, {96*128}
v_lshl_add_u32 v16, v16, 7, s86
v_lshl_add_u32 v2, v18, 4, v16
v_xor_b32 v3, 32, v2
v_xor_b32 v4, 64, v2
v_xor_b32 v5, 96, v2
v_and_b32 v18, 3, v0
v_bfe_u32 v19, v0, 2, 2
v_bfe_u32 v20, v0, 4, 1
v_lshl_add_u32 v21, v17, 3, v19
s_cmp_ge_u32 s7, 15
s_cbranch_scc1 L_CAQ
v_mul_u32_u24 v21, 192, v21
v_mul_u32_u24 v20, {UPOFF}, v20
v_lshl_add_u32 v18, v18, 3, v21
s_mul_i32 s87, s14, 96
s_add_u32 s87, s87, {XW}
v_add3_u32 v6, v18, v20, s87
s_branch L_CAD
L_CAQ:
v_lshlrev_b32 v21, 7, v21
v_lshrrev_b32 v22, 1, v18
v_lshl_add_u32 v22, v20, 1, v22
v_lshrrev_b32 v19, 1, v19
v_xor_b32 v19, s14, v19
v_lshl_add_u32 v22, v19, 2, v22
v_lshl_add_u32 v21, v22, 4, v21
v_and_b32 v18, 1, v18
v_lshl_add_u32 v18, v18, 3, v21
v_add_u32 v6, {XW}, v18
L_CAD:
s_waitcnt vmcnt({npf})""")
for j in range(8):
    A(f"v_lshlrev_b32 v{16+2*j}, 16, v{8+j}\nv_and_b32 v{17+2*j}, 0xffff0000, v{8+j}")
def red32(r, t):
    for sh in (8, 4, 2, 1):
        A(f"v_add_f32_dpp v{r}, v{r}, v{r} row_ror:{sh} row_mask:0xf bank_mask:0xf")
    A(f"v_mov_b32 v{t}, v{r}\nv_permlane16_swap_b32 v{r}, v{t}\nv_add_f32 v{r}, v{r}, v{t}")
A("v_add_f32 v8, v16, v17")
for j in range(2, 16): A(f"v_add_f32 v8, v8, v{16+j}")
red32(8, 9)
A(f"v_mul_f32 v8, {hx(1/512)}, v8")
for j in range(16): A(f"v_sub_f32 v{16+j}, v{16+j}, v8")
A("v_mul_f32 v10, v16, v16")
for j in range(1, 16): A(f"v_fmac_f32 v10, v{16+j}, v{16+j}")
red32(10, 9)
A(f"""v_mul_f32 v10, {hx(1/512)}, v10
v_cvt_pk_bf16_f32 v10, v10, v10
v_and_b32 v10, 0xffff0000, v10
v_add_f32 v10, {hx(1e-5)}, v10
v_cvt_pk_bf16_f32 v10, v10, v10
v_and_b32 v10, 0xffff0000, v10
v_sqrt_f32 v10, v10
v_cvt_pk_bf16_f32 v40, -v8, -v8
v_cvt_pk_bf16_f32 v10, v10, v10
v_and_b32 v10, 0xffff0000, v10
v_rcp_f32 v41, v10
v_mul_f32 v42, v10, v10
v_lshlrev_b32 v7, 4, v7
v_add_u32 v7, {WS_RS}, v7
s_waitcnt lgkmcnt(0)
s_add_u32 {TAG}, {TAG}, 0x9E3779B9
v_mov_b32 v43, {TAG}
v_and_b32 v9, 31, v0
v_cmp_eq_u32 vcc, 0, v9""")
stamp(1)
A(f"""s_barrier
s_and_saveexec_b64 s[90:91], vcc
buffer_store_dwordx4 v[40:43], v7, {WS}, 0 offen sc1
s_mov_b64 exec, s[90:91]""")
stamp(2)
A(f"""s_mov_b32 s78, 0
s_mov_b32 s79, {SLOT}
s_mov_b32 s83, 0
s_cmp_ge_u32 s7, 15
s_cbranch_scc1 L_QKV""")

XF = lambda buf, a: 64 + 24*buf + 4*a
WF = lambda buf, u: 64 + 24*buf + 12 + 4*u
acc = lambda a, u: ACC + 16*(3*a+u)
def reads(role, t, buf):
    o = []
    for u in range(3):
        o.append(f"ds_read_b128 {v(XF(buf,u),4)}, v{2+t} offset:{4096*u}")
        for sec in range(2):
            off = (t*3072+sec*768+u*32) if role == 'G' else (u*8192+t*2048+sec*512)
            o.append(f"ds_read_b64_tr_b16 {v(WF(buf,u)+2*sec,2)}, v6 offset:{off}")
    return o
def mms(role, buf):
    o = []
    for a in range(3):
        for u in range(3):
            if role == 'G' or u == 0: o.append(mfma(acc(a,u), WF(buf,u), XF(buf,a)))
            else: o.append(mfma(acc(a,u), XF(buf,a), WF(buf,u)))
    return o
def mainloop(role):
    lp, ex = f"L_ML{role}", f"L_MX{role}"
    for t in reads(role, 0, 0): A(t)
    A.label(lp)
    for t in range(3):
        A("s_waitcnt lgkmcnt(0)")
        for x in interleave(mms(role, t & 1), reads(role, t+1, (t+1) & 1), 2): A(x)
    A(f"""s_add_u32 s78, s78, 1
s_cmp_eq_u32 s78, 3
s_cselect_b32 s86, {-2*SLOT & 0xffffffff}, s79
s_cselect_b32 s78, 0, s78
s_add_u32 s83, s83, 1
s_cmp_eq_u32 s83, 8
s_waitcnt lgkmcnt(0)
s_barrier
s_cbranch_scc1 {ex}""")
    upd = [f"v_add_u32 v{r}, s86, v{r}" for r in (2, 6)]
    upd2 = [f"v_add_u32 v{r}, s86, v{r}" for r in (3, 4, 5)]
    for x in interleave(mms(role, 1), upd + reads(role, 0, 0) + upd2, 2): A(x)
    A(f"s_branch {lp}")
    A.label(ex)
    pre = [f"v_and_b32 v2, 31, v0",
           f"s_mul_i32 s86, s13, {96*16}", f"s_add_u32 s86, s86, {RS}",
           f"v_lshl_add_u32 v3, v2, 4, s86",
           f"s_mul_i32 s86, s14, 768", f"s_add_u32 s86, s86, {CF}",
           f"v_lshl_add_u32 v4, v2, 3, s86",
           f"v_cmp_gt_u32 vcc, 32, v0"]
    rd = [f"ds_read_b128 {v(8+4*a,4)}, v3 offset:{512*a}" for a in range(3)]
    rd += [f"ds_read_b64 {v(WF(0,u),2)}, v4 offset:{256*u}" for u in range(3)]
    z = []
    for k in range(3):
        z += [f"v_mov_b32 v{WF(0,k)+2}, 0", f"v_mov_b32 v{WF(0,k)+3}, 0", f"v_mov_b32 v{XF(0,k)+2}, 0", f"v_mov_b32 v{XF(0,k)+3}, 0"]
    for x in interleave(mms(role, 1), pre + rd + z, 4): A(x)
    A("s_waitcnt vmcnt(0) lgkmcnt(0)")
    for a in range(3):
        A(f"v_cndmask_b32 v{XF(0,a)}, 0, v{8+4*a}, vcc\nv_and_b32 v{XF(0,a)+1}, 0xffff, v{XF(0,a)}")
    for x in mms(role, 0): A(x)

def publish():
    A(f"""s_waitcnt vmcnt(0)
v_mov_b32 v2, s15
v_mov_b32 v3, {TAG}
v_cmp_eq_u32 vcc, 0, v0
s_and_saveexec_b64 s[90:91], vcc
buffer_store_dword v3, v2, {WS}, 0 offen sc1
s_mov_b64 exec, s[90:91]""")

mainloop('G')
stamp(3)
C1 = -2.0*0.7978845608028654*1.4426950408889634
A(f"""s_lshr_b32 s86, s9, 4
s_mul_i32 s87, s14, 3
s_add_u32 s86, s86, s87
s_lshl_b32 s86, s86, 6
s_lshr_b32 s87, s8, 5
s_add_u32 s86, s86, s87
s_mul_i32 s87, s13, 3
s_add_u32 s86, s86, s87
s_lshl_b32 s86, s86, 10
v_lshl_add_u32 v2, v0, 4, s86
s_mov_b32 s70, 0
s_mov_b32 s71, 65536
s_mov_b32 s72, 131072""")
for a in range(3):
    b = 8+4*a
    A(f"""v_mul_f32 v{b}, {hx(C1)}, v{b+1}
v_mul_f32 v{b+3}, v{b+1}, v{b+1}
v_mul_f32 v{b+3}, {hx(0.044715)}, v{b+3}
v_mul_f32 v{b+1}, v{b}, v{b+3}""")
for a in range(3):
    (pA1, sA1), (pA3, sA3), (pI, sI) = bc(8+4*a), bc(9+4*a), bc(10+4*a)
    for u in range(3):
        sk = L("GS")
        A(f"s_bitcmp1_b32 s11, {3*a+u}\ns_cbranch_scc0 {sk}")
        g = acc(a, u); T = 24 + 8*((3*a+u) & 1); P = 40 + 4*((3*a+u) & 1)
        for j in range(4): A(f"v_pk_mul_f32 {v(T+2*j,2)}, {v(g+2*j,2)}, {v(g+2*j,2)}")
        for j in range(4): A(f"v_pk_fma_f32 {v(T+2*j,2)}, {v(T+2*j,2)}, {pA3}, {pA1} op_sel:[0,{sA3},{sA1}] op_sel_hi:[1,{sA3},{sA1}]")
        for j in range(4): A(f"v_pk_mul_f32 {v(T+2*j,2)}, {v(T+2*j,2)}, {v(g+2*j,2)}")
        for j in range(8): A(f"v_exp_f32 v{T+j}, v{T+j}")
        for j in range(4): A(f"v_pk_mul_f32 {v(g+2*j,2)}, {v(g+2*j,2)}, {v(g+8+2*j,2)}")
        for j in range(4): A(f"v_pk_fma_f32 {v(T+2*j,2)}, {v(T+2*j,2)}, {pI}, {pI} op_sel:[0,{sI},{sI}] op_sel_hi:[1,{sI},{sI}]")
        for j in range(8): A(f"v_rcp_f32 v{T+j}, v{T+j}")
        for j in range(4): A(f"v_pk_mul_f32 {v(T+2*j,2)}, {v(T+2*j,2)}, {v(g+2*j,2)}")
        for j in range(4): A(f"v_cvt_pk_bf16_f32 v{P+j}, v{T+2*j}, v{T+2*j+1}")
        A(f"buffer_store_dwordx4 {v(P,4)}, v2, {H}, s{70+u} offen offset:{1024*a} sc1")
        A.label(sk)
stamp(4)
publish()
A("s_branch L_SPART")

A("L_QKV:")
mainloop('Q')
stamp(3)
KV, Z, ONE, PK, PV = 64, 80, 96, 100, 56
A(f"""s_mov_b32 s70, {hx(1.4426950408889634)}
s_mov_b32 s71, {hx(1.4426950408889634)}
s_mov_b32 s72, {hx(1e-6)}
s_mov_b32 s73, {hx(1e-6)}
v_lshrrev_b32 v2, 5, v0
s_mul_i32 s86, s13, {96*4}
s_add_u32 s86, s86, {RR}
v_lshl_add_u32 v2, v2, 4, s86
s_nop 7""")
for r in range(KV, KV+32): A(f"v_mov_b32 v{r}, 0")
for r in range(ONE, ONE+4): A(f"v_mov_b32 v{r}, 0x3f803f80")
def phi(g, T, dst, rop):
    for j in range(8):
        o, lo, hi = rop(j)
        A(f"v_pk_fma_f32 {v(g+2*j,2)}, {v(g+2*j,2)}, {o}, s[72:73] op_sel:[0,{lo},0] op_sel_hi:[1,{hi},1]")
    for j in range(8): A(f"v_pk_mul_f32 {v(T+2*j,2)}, {v(g+2*j,2)}, s[70:71]")
    for j in range(16): A(f"v_exp_f32 v{T+j}, v{T+j} clamp\nv_max_f32 v{g+j}, s72, v{g+j}")
    for j in range(8): A(f"v_pk_add_f32 {v(T+2*j,2)}, {v(T+2*j,2)}, {v(g+2*j,2)}")
    for j in range(8): A(f"v_cvt_pk_bf16_f32 v{dst+j}, v{T+2*j}, v{T+2*j+1}")
for a in range(3):
    sk = L("KS")
    A(f"s_bitcmp1_b32 s11, {3*a}\ns_cbranch_scc0 {sk}")
    for q in range(4): A(f"ds_read_b128 {v(24+4*q,4)}, v2 offset:{128*a+32*q}")
    A("s_waitcnt lgkmcnt(0)")
    g = acc(a, 2)
    for j in range(8): A(f"v_pk_mul_f32 {v(g+2*j,2)}, {v(g+2*j,2)}, {v(24+2*j,2)}")
    for j in range(8): A(f"v_cvt_pk_bf16_f32 v{PV+j}, v{g+2*j}, v{g+2*j+1}")
    phi(acc(a, 1), 40, PK, lambda j: (v(24+2*j,2), 0, 1))
    A(mfma(KV, PK, PV)); A(mfma(Z, ONE, PK)); A(mfma(KV, PK+4, PV+4)); A(mfma(Z, ONE, PK+4))
    A.label(sk)
A(f"""v_and_b32 v3, 16, v0
v_cmp_ne_u32 s[74:75], 0, v3
s_mul_i32 s86, s14, {2*2304}
s_add_u32 s86, s86, {EX}
v_lshl_add_u32 v3, v0, 4, s86
v_lshl_add_u32 v4, v0, 2, s86
s_lshl_b32 s87, s14, 2
s_add_u32 s87, s87, {LF}
v_mov_b32 v5, s87
v_mov_b32 v6, 1
s_sub_u32 s87, s7, 15
s_lshl_b32 s87, s87, 1
s_add_u32 s87, s87, s14
s_mul_i32 s87, s87, {12*3072}
s_add_u32 s77, s87, {WS_KV}
s_nop 7""")
for j in range(8): A(f"v_cndmask_b32 v{24+j}, v{KV+j}, v{KV+8+j}, s[74:75]")
A(f"""v_mov_b32 v32, v{Z}
s_cmp_eq_u32 s13, 0
s_cbranch_scc1 L_KV0
ds_write_b128 v3, v[24:27]
ds_write_b128 v3, v[28:31] offset:1024
ds_write_b32 v4, v32 offset:2048
s_waitcnt lgkmcnt(0)
ds_write_b32 v5, v6
s_branch L_KV1
L_KV0:""")
spin_lds(5, 7, 0)
A(f"""ds_read_b128 v[36:39], v3
ds_read_b128 v[40:43], v3 offset:1024
ds_read_b32 v44, v4 offset:2048
s_mul_i32 s86, s6, 3072
s_add_u32 s86, s86, s77
v_lshlrev_b32 v7, 4, v0
v_mov_b32 v51, {TAG}
v_mov_b32 v55, {TAG}
v_mov_b32 v59, {TAG}
s_waitcnt lgkmcnt(0)""")
for j in range(9): A(f"v_add_f32 v{48+4*(j//3)+j%3}, v{24+j}, v{36+j}")
for g_ in range(3): A(f"buffer_store_dwordx4 {v(48+4*g_,4)}, v7, {WS}, s86 offen offset:{1024*g_} sc1")
A("L_KV1:")
stamp(4)
PQ = 64
for a in range(3):
    o, sel = bc(9+4*a)
    phi(acc(a, 0), 24, PQ+8*a, lambda j: (o, sel, sel))
CT = 128
A(f"""s_mul_i32 s86, s13, {6*3072}
s_add_u32 s86, s86, s77
v_lshl_add_u32 v7, v0, 4, s86
s_mov_b32 s88, 0""")
for j in range(12): A(f"v_mov_b32 v{CT+60+j}, " + (TAG if j % 4 == 3 else "0"))
A("L_KVC:")
for p in range(6):
    if p == 5: A("s_cmp_eq_u32 s13, 1\ns_cbranch_scc1 L_KVC5")
    A(f"s_mov_b32 s86, {3072*p}")
    for g_ in range(3): A(f"buffer_load_dwordx4 {v(CT+12*p+4*g_,4)}, v7, {WS}, s86 offen offset:{1024*g_} sc1")
A(f"""L_KVC5:
s_waitcnt vmcnt(0)
v_xor_b32 v8, {TAG}, v{CT+3}""")
for n in range(1, 18): A(f"v_xor_b32 v24, {TAG}, v{CT+4*n+3}\nv_or_b32 v8, v8, v24")
A(f"""v_cmp_ne_u32 vcc, 0, v8
s_add_u32 s88, s88, 1
s_cmp_gt_u32 s88, {OPT['spin']}
s_cbranch_scc1 L_KVD
s_cbranch_vccnz L_KVC
L_KVD:""")
for j in range(9):
    r = lambda p: CT + 12*p + 4*(j//3) + j % 3
    A(f"v_add_f32 v{24+j}, v{r(0)}, v{r(1)}")
    for p in range(2, 6): A(f"v_add_f32 v{24+j}, v{24+j}, v{r(p)}")
A(f"""s_mul_i32 s86, s13, 2304
v_add_u32 v8, s86, v3
v_add_u32 v9, s86, v4
ds_write_b128 v8, v[24:27]
ds_write_b128 v8, v[28:31] offset:1024
ds_write_b32 v9, v32 offset:2048
s_lshl_b32 s87, s4, 2
s_add_u32 s87, s87, {LF+16}
v_mov_b32 v10, s87
s_xor_b32 s87, s4, 2
s_lshl_b32 s87, s87, 2
s_add_u32 s87, s87, {LF+16}
v_mov_b32 v11, s87
s_sub_u32 s86, 2304, s86
v_add_u32 v8, s86, v3
v_lshrrev_b32 v9, 5, v0
v_lshlrev_b32 v9, 4, v9
v_and_b32 v12, 16, v0
v_xor_b32 v12, 16, v12
v_lshl_add_u32 v9, v12, 2, v9
s_mul_i32 s86, s14, {2*2304}
s_add_u32 s86, s86, {EX+2048}
v_add_u32 v9, s86, v9
s_waitcnt lgkmcnt(0)
ds_write_b32 v10, v6""")
spin_lds(11, 12, 0)
A(f"""ds_read_b128 v[36:39], v8
ds_read_b128 v[40:43], v8 offset:1024
ds_read_b128 v[44:47], v9
ds_read_b128 v[48:51], v9 offset:32
ds_read_b128 v[52:55], v9 offset:2304
ds_read_b128 v[56:59], v9 offset:2336
s_sub_u32 s86, s7, 15
s_lshl_b32 s86, s86, 1
s_add_u32 s86, s86, s14
s_lshl_b32 s86, s86, 7
s_lshr_b32 s87, s8, 5
s_add_u32 s86, s86, s87
s_mul_i32 s87, s13, 3
s_add_u32 s86, s86, s87
s_lshl_b32 s86, s86, 10
v_lshl_add_u32 v2, v0, 4, s86
s_mov_b32 s71, 65536
s_waitcnt lgkmcnt(0)""")
for j in range(8): A(f"v_add_f32 v{24+j}, v{24+j}, v{36+j}\nv_add_f32 v{44+j}, v{44+j}, v{52+j}")
for j in range(4): A(f"v_cvt_pk_bf16_f32 v{36+j}, v{24+2*j}, v{25+2*j}\nv_cvt_pk_bf16_f32 v{40+j}, v{44+2*j}, v{45+2*j}")
for j in range(4): A(f"v_cndmask_b32 v{24+j}, v{36+j}, v{40+j}, s[74:75]\nv_cndmask_b32 v{28+j}, v{40+j}, v{36+j}, s[74:75]")
for a in range(3):
    A(mfma(128+32*a, 24, PQ+8*a, 0)); A(mfma(144+32*a, 28, PQ+8*a+4, 0))
A("s_nop 7")
for a in range(3):
    sk = L("OS")
    A(f"s_bitcmp1_b32 s11, {3*a}\ns_cbranch_scc0 {sk}")
    for hd in range(2):
        d = 128+32*a+16*hd
        num, den = (d, d+8) if hd == 0 else (d+8, d)
        A(f"v_add_f32 v{den}, s72, v{den}\nv_rcp_f32 v{den}, v{den}")
        for j in range(4): A(f"v_pk_mul_f32 {v(num+2*j,2)}, {v(num+2*j,2)}, {v(den,2)} op_sel_hi:[1,0]")
        P = 32 + 4*hd + 8*(a & 1)
        for j in range(4): A(f"v_cvt_pk_bf16_f32 v{P+j}, v{num+2*j}, v{num+2*j+1}")
        A(f"buffer_store_dwordx4 {v(P,4)}, v2, {O}, " + ("0" if hd == 0 else "s71") + f" offen offset:{1024*a} sc1")
    A.label(sk)
publish()

A("L_SPART:")
stamp(5)
w2addr(4)
xres(1)
A(f"""s_lshl_b32 s86, s4, 9
s_lshl_b32 s87, s84, 1
s_add_u32 s86, s86, s87
s_lshl_b32 s86, s86, 10
v_lshl_add_u32 v2, v0, 4, s86
s_mul_i32 s88, s84, 43
s_lshr_b32 s88, s88, 7
s_mul_i32 s88, s88, 23
s_lshl_b32 s87, s4, 1
s_add_u32 s88, s88, s87
s_add_u32 s88, s88, 15
s_lshl_b32 s88, s88, 7
s_add_u32 s88, s88, {WS_FLAG}
v_bfe_u32 v3, v0, 2, 1
v_lshl_add_u32 v3, v3, 7, s88
v_and_b32 v8, 3, v0
v_lshl_add_u32 v3, v8, 2, v3
s_lshl_b32 s86, s4, 2
s_add_u32 s86, s86, {LF+32}
v_mov_b32 v8, s86""")
spin_lds(8, 9, 0)
for k in range(8):
    loc = (2, 4+k) if k < 2 else (0, k-2)
    for t in w2read(96+8*k, *loc, 4): A(t)
    if k % 3 == 2: A("s_waitcnt lgkmcnt(0)")
spin_global(3, 9)
stamp(6)
for k in range(8):
    A(f"""s_mov_b32 s86, {k*65536}
buffer_load_dwordx4 {v(16+8*k,4)}, v2, {O}, s86 offen sc1
buffer_load_dwordx4 {v(20+8*k,4)}, v2, {O}, s86 offen offset:1024 sc1""")
A("s_waitcnt lgkmcnt(0)")
for k in range(8):
    A(f"s_waitcnt vmcnt({14-2*k})")
    for r in range(2):
        for c in range(2): A(mfma(192+32*r+16*c, 96+8*k+4*c, 16+8*k+4*r, 0 if k == 0 else None))
stamp(7)
final(False)

A("L_FINAL:\ns_barrier")
for src in range(4):
    for jq in range(2):
        A(f"ds_read_b128 {v(16+8*src+4*jq,4)}, v3 offset:{Q*src+1024*jq}")
for src in range(4):
    for jq in range(2):
        A(f"ds_read_b128 {v(48+8*src+4*jq,4)}, v4 offset:{Q*src+1024*jq}")
        if src == 2 and jq == 1: pass
A(f"s_mov_b32 s70, {hx(-1.4426950408889634)}\ns_mov_b32 s71, s70")
for j in range(4): A(f"v_lshlrev_b32 v{80+2*j}, 16, v{12+j}\nv_and_b32 v{81+2*j}, 0xffff0000, v{12+j}")
A("s_waitcnt lgkmcnt(8)")
for src in range(1, 4):
    for j in range(4): A(f"v_pk_add_f32 {v(16+2*j,2)}, {v(16+2*j,2)}, {v(16+8*src+2*j,2)}")
for j in range(4): A(f"v_pk_mul_f32 {v(24+2*j,2)}, {v(16+2*j,2)}, s[70:71]")
for j in range(8): A(f"v_exp_f32 v{24+j}, v{24+j}")
for j in range(4): A(f"v_pk_add_f32 {v(24+2*j,2)}, {v(24+2*j,2)}, 1.0 op_sel_hi:[1,0]")
for j in range(8): A(f"v_rcp_f32 v{24+j}, v{24+j}")
A("s_waitcnt lgkmcnt(0)")
for src in range(1, 4):
    for j in range(4): A(f"v_pk_add_f32 {v(48+2*j,2)}, {v(48+2*j,2)}, {v(48+8*src+2*j,2)}")
for j in range(4): A(f"v_pk_mul_f32 {v(16+2*j,2)}, {v(16+2*j,2)}, {v(24+2*j,2)}")
for j in range(4): A(f"v_pk_fma_f32 {v(16+2*j,2)}, {v(16+2*j,2)}, {v(48+2*j,2)}, {v(80+2*j,2)}")
for j in range(4): A(f"v_cvt_pk_bf16_f32 v{24+j}, v{16+2*j}, v{17+2*j}")
A(f"""buffer_store_dwordx4 v[24:27], v1, {OUT}, 0 offen
s_add_u32 s86, s2, s3
s_cmp_eq_u32 s86, 0
s_cbranch_scc0 L_NOBUMP
v_mov_b32 v2, 0
v_mov_b32 v3, {TAG}
buffer_store_dword v3, v2, {WS}, 0 offen sc1
L_NOBUMP:""")
if OPT["stamps"]:
    A("s_waitcnt vmcnt(0)")
    stamp(8)
    A(f"""s_memrealtime s[68:69]
s_waitcnt lgkmcnt(0)
s_mov_b32 s101, s68
s_lshl_b32 s86, s2, 3
s_add_u32 s86, s86, s3
s_lshl_b32 s86, s86, 6
s_add_u32 s86, s86, {WS_DBG}
v_mov_b32 v2, s86""")
    for i in range(10): A(f"v_mov_b32 v3, s{92+i}\nbuffer_store_dword v3, v2, {WS}, 0 offen offset:{4*i}")
    A(f"v_mov_b32 v3, s34\nbuffer_store_dword v3, v2, {WS}, 0 offen offset:40")
A("L_END:\ns_endpgm")

lines, errs = pad(A.lines)
for e in errs: print("HAZARD:", e, file=sys.stderr)
hdr = open("cdna_kernels/%s.s.ref" % NAME).read().split("; Override launch")[0]
out = hdr + f"""; Fused single-launch kernel (generated by my own generator script gen/gen.py).
; @launch grid=(256,1,1) block=(512,1,1) lds={LDS}
.amdgcn_target "amdgcn-amd-amdhsa--gfx950"
.text
.globl {NAME}_kernel
.p2align 8
.type {NAME}_kernel,@function
{NAME}_kernel:
""" + render(lines) + f""".section .rodata,"a"
.p2align 6
.amdhsa_kernel {NAME}_kernel
  .amdhsa_next_free_vgpr 256
  .amdhsa_next_free_sgpr 102
  .amdhsa_accum_offset 256
  .amdhsa_group_segment_fixed_size 0
  .amdhsa_kernarg_size 80
  .amdhsa_user_sgpr_count 2
  .amdhsa_user_sgpr_kernarg_segment_ptr 1
  .amdhsa_system_sgpr_workgroup_id_x 1
.end_amdhsa_kernel
"""
open(sys.argv[1], "w").write(out)
```

```python
import sys, struct
from asmlib import *
NAME = "recurrent_scan__linear_attn_block__glu_gated_geglu__prompt"
OPT = dict(stamps=0, rot=2, prio=1, pfw2=1, pfcode=1, spin=1<<17, nodma=0, nomfma=0, thr=4, nopk=0, latestore=0, n7=4, n8=8, ca=14, cb=22, pfw1=0, h=4, mix=1, sub=1, l2pf=2)
for a in sys.argv[2:]:
    k, v = a.split("="); OPT[k] = int(v, 0)
def f2u(x): return struct.unpack("<I", struct.pack("<f", x))[0]
def hx(x): return "0x%08x" % f2u(x)

SLOT = 49408; XW = 24576; UPOFF = 12320; MISC = 3*SLOT; LDS = 163840
RS = MISC; RR = MISC+3072; CF = MISC+3840; LF = MISC+5376; EX = MISC+5504
Q = 12288
WS_FLAG = 0x1000; WS_RS = 0x10000; WS_CS = 0x20000; WS_KV = 0x100000; WS_DBG = 0x80000; WS_F = 0xC0000
WS_H = 0x400000; WS_O = 0xA00000
X="s[36:39]"; W="s[40:43]"; WS="s[44:47]"; H="s[48:51]"; O="s[52:55]"; WD="s[56:59]"; WO="s[60:63]"; OUT="s[64:67]"
TAG="s10"
def v(b, n=1): return f"v{b}" if n == 1 else f"v[{b}:{b+n-1}]"
def mfma(d, a, b, c=None):
    return f"v_mfma_f32_32x32x16_bf16 {v(d,16)}, {v(a,4)}, {v(b,4)}, " + ("0" if c == 0 else v(d,16))
def bc(r):
    return v(r & ~1, 2), r & 1
_lab = [0]
def L(p="L"):
    _lab[0] += 1; return f"{p}_{_lab[0]}"

A = Asm()
def stamp(i, st=1):
    if OPT["stamps"] == st or (OPT["stamps"] and st == 0):
        A(f"s_memtime s[68:69]\ns_waitcnt lgkmcnt(0)\ns_mov_b32 s{92+i}, s68")
def srd(name, lo, size, add=0):
    b = int(name[2:4])
    if add:
        A(f"s_add_u32 s{b}, s{lo}, {add}\ns_addc_u32 s{b+1}, s{lo+1}, 0")
    else:
        A(f"s_mov_b32 s{b}, s{lo}\ns_mov_b32 s{b+1}, s{lo+1}")
    A(f"s_mov_b32 s{b+2}, {size}\ns_mov_b32 s{b+3}, 0x20000")

def spin_global(vaddr, vt):
    l1, l2 = L("POLL"), L("POLLD")
    A(f"""s_mov_b32 s86, 0
{l1}:
buffer_load_dword {v(vt)}, {v(vaddr)}, {WS}, 0 offen sc1
s_add_u32 s86, s86, 1
s_waitcnt vmcnt(0)
v_cmp_ne_u32 vcc, {TAG}, {v(vt)}
s_cmp_gt_u32 s86, {OPT['spin']}
s_cbranch_scc1 {l2}
s_cbranch_vccz {l2}
s_sleep 1
s_branch {l1}
{l2}:""")
def spin_lds(vaddr, vt, off):
    l1, l2 = L("LP"), L("LPD")
    A(f"""s_mov_b32 s86, 0
{l1}:
ds_read_b32 {v(vt)}, {v(vaddr)} offset:{off}
s_add_u32 s86, s86, 1
s_waitcnt lgkmcnt(0)
v_cmp_eq_u32 vcc, 0, {v(vt)}
s_cmp_gt_u32 s86, {OPT['spin']*16}
s_cbranch_scc1 {l2}
s_cbranch_vccz {l2}
s_branch {l1}
{l2}:""")

A(f"""s_cmp_ge_u32 s2, 256
s_cbranch_scc1 L_END
s_load_dwordx16 s[16:31], s[0:1], 0
s_load_dwordx2 s[32:33], s[0:1], 72""")
if OPT["stamps"]:
    A("s_memrealtime s[34:35]\ns_memtime s[68:69]")
A(f"""v_lshrrev_b32 v1, 6, v0
v_and_b32 v0, 63, v0
v_readfirstlane_b32 s3, v1
s_and_b32 s5, s2, 7
s_lshr_b32 s86, s2, 3
s_lshl_b32 s84, s5, 2
s_lshr_b32 s87, s86, 3
s_add_u32 s84, s84, s87
s_and_b32 s85, s86, 7
s_lshl_b32 s5, s5, 5
s_add_u32 s5, s5, s86
s_and_b32 s4, s3, 3
s_mov_b32 s12, 0
s_cmp_lt_u32 s5, 138
s_cbranch_scc0 L_BOT
s_mul_i32 s7, s5, 171
s_lshr_b32 s7, s7, 10
s_mul_i32 s86, s7, 6
s_sub_u32 s6, s5, s86
s_branch L_IDS
L_BOT:
s_cmp_ge_u32 s5, 253
s_cselect_b32 s12, 1, 0
s_cselect_b32 s86, 5, 0
s_sub_u32 s86, s5, s86
s_sub_u32 s86, s86, 138
s_mul_i32 s87, s86, 205
s_lshr_b32 s87, s87, 10
s_sub_u32 s7, 22, s87
s_mul_i32 s87, s87, 5
s_sub_u32 s6, s86, s87
s_add_u32 s6, s6, 6
L_IDS:
s_add_u32 s13, s6, s7
s_mov_b32 s90, s7""")
if OPT["mix"]:
    A("""s_mul_i32 s86, s7, 43
s_lshr_b32 s86, s86, 7
s_sub_u32 s87, s7, s86
s_lshl_b32 s88, s86, 1
s_sub_u32 s88, s87, s88
s_add_u32 s86, s86, 15
s_cmp_eq_u32 s7, 22
s_cselect_b32 s7, s86, s87
s_cmp_eq_u32 s88, 2
s_cselect_b32 s7, s86, s7""")
A(f"""s_mul_i32 s8, s6, 192
s_min_u32 s8, s8, 1856
s_mul_i32 s9, s7, 96
s_min_u32 s9, s9, 1280""")
def kwait():
    A("s_waitcnt lgkmcnt(0)\ns_load_dword s10, s[32:33], 0")
    if OPT["stamps"]: A("s_mov_b32 s92, s68")
    srd(X, 16, 2097152)
A(f"""s_cmp_lt_u32 s3, 4
s_cbranch_scc1 L_LOADER""")
if OPT["prio"]: A(f"s_setprio {OPT['prio']}")
if OPT["pfcode"]:
    A(f"""s_getpc_b64 s[88:89]
L_PC:
s_sub_u32 s88, s88, L_PC-{NAME}_kernel
s_subb_u32 s89, s89, 0
s_lshr_b32 s86, s2, 3
s_lshl_b32 s86, s86, 3
s_lshl_b32 s87, s4, 1
s_add_u32 s86, s86, s87
v_and_b32 v3, 1, v0
v_add_u32 v3, s86, v3
v_lshlrev_b32 v3, 7, v3
v_min_u32 v3, L_END-{NAME}_kernel, v3
global_load_dword v47, v3, s[88:89]""")
A(f"""s_lshl_b32 s86, s5, 3
s_lshl_b32 s87, s4, 1
s_add_u32 s86, s86, s87
v_lshrrev_b32 v7, 5, v0
v_add_u32 v7, s86, v7
v_and_b32 v2, 31, v0
v_lshlrev_b32 v2, 4, v2
v_lshl_add_u32 v2, v7, 10, v2
s_lshl_b32 s86, s86, 10
v_lshl_add_u32 v3, v0, 4, s86
v_subrev_u32 v4, {1376*1024}, v3""")
kwait()
A(f"""buffer_load_dwordx4 v[8:11], v2, {X}, 0 offen
buffer_load_dwordx4 v[12:15], v2, {X}, 0 offen offset:512""")
stamp(1, 2)
A("s_branch L_COMPUTE\nL_LOADER:")

def rot_setup():
    if OPT["rot"] == 2:
        A("s_and_b32 s13, s13, 1\ns_lshl_b32 s13, s13, 2\ns_lshr_b32 s14, s6, 1")
    elif OPT["rot"] == 8:
        A("s_and_b32 s13, s13, 7\ns_mov_b32 s14, 0")
    elif OPT["rot"] == 4:
        A("s_and_b32 s13, s13, 3\ns_lshl_b32 s13, s13, 1\ns_lshr_b32 s14, s6, 2")
def w2addr(base, T=24):
    a_, b_, c_, d_ = T, T+1, T+2, T+3
    A(f"""v_and_b32 v{a_}, 3, v0
v_bfe_u32 v{b_}, v0, 2, 2
v_bfe_u32 v{c_}, v0, 4, 1
v_lshrrev_b32 v{d_}, 5, v0
v_lshl_add_u32 v{d_}, v{d_}, 2, v{b_}
v_lshlrev_b32 v{d_}, 7, v{d_}
v_lshrrev_b32 v{b_}, 1, v{b_}
v_lshl_add_u32 v{c_}, v{b_}, 2, v{c_}
v_and_b32 v{b_}, 1, v{a_}
v_lshl_add_u32 v{c_}, v{b_}, 1, v{c_}
v_lshl_add_u32 v{d_}, v{c_}, 4, v{d_}
v_lshrrev_b32 v{a_}, 1, v{a_}
v_lshl_add_u32 v{d_}, v{a_}, 3, v{d_}
v_add_u32 v{base}, s76, v{d_}
v_xor_b32 v{d_}, 64, v{d_}
v_add_u32 v{base+1}, s76, v{d_}
v_add_u32 v{base+2}, {2*SLOT}, v{base}
v_add_u32 v{base+3}, {2*SLOT}, v{base+1}""")
def w2read(dst, slot, blk, ab):
    o = []
    for c in range(2):
        for sec in range(2):
            ar = ab + c + (2 if slot == 2 else 0)
            off = (SLOT if slot == 1 else 0) + blk*2048 + sec*1024
            o.append(f"ds_read_b64_tr_b16 {v(dst+4*c+2*sec,2)}, v{ar} offset:{off}")
    return o
def xres_addr(half, T=24):
    A(f"""s_lshr_b32 s86, s4, 1
s_lshl_b32 s86, s86, 5
s_lshl_b32 s87, s84, 6
s_add_u32 s86, s86, s87
s_lshl_b32 s86, s86, 10
s_lshl_b32 s87, s85, 7
s_add_u32 s86, s86, s87
s_and_b32 s87, s4, 1
s_lshl_b32 s87, s87, 6
s_add_u32 s86, s86, s87
s_add_u32 s86, s86, {16*half}
v_and_b32 v{T}, 31, v0
v_lshlrev_b32 v{T}, 10, v{T}
v_lshrrev_b32 v{T+1}, 5, v0
v_lshl_add_u32 v{T}, v{T+1}, 5, v{T}
v_add_u32 v1, s86, v{T}""")
def xres_load(): A(f"buffer_load_dwordx4 v[12:15], v1, {X}, 0 offen")
def p2setup():
    srd(WS, 32, 0x400000); srd(H, 32, 86*65536, WS_H); srd(WD, 28, 1376*1024); srd(WO, 20, 512*1024); srd(OUT, 30, 2097152)
    A(f"""v_lshrrev_b32 v24, 3, v0
v_lshlrev_b32 v24, 10, v24
v_and_b32 v25, 7, v0
v_bfe_u32 v26, v0, 4, 1
v_lshlrev_b32 v26, 2, v26
v_xor_b32 v25, v25, v26
v_lshl_add_u32 v24, v25, 4, v24
s_lshl_b32 s86, s85, 7
v_add_u32 v4, s86, v24
s_mul_i32 s87, s4, {22*16384}
v_add_u32 v2, s87, v4
v_add_u32 v3, {20*16384}, v2
s_lshl_b32 s87, s4, 17
v_add_u32 v4, s87, v4
s_mul_i32 s76, s4, {Q}
s_mul_i32 s86, s4, {22*64}
s_lshl_b32 s87, s84, 1
s_add_u32 s86, s86, s87
s_lshl_b32 s86, s86, 10
v_lshl_add_u32 v6, v0, 4, s86
v_add_u32 v7, {20*65536}, v6
s_mul_i32 s86, s4, {22*43}
s_add_u32 s87, s86, {21*43}
s_lshr_b32 s86, s86, 8
s_lshr_b32 s87, s87, 8
v_bfe_u32 v5, v0, 2, 3
v_add_u32 v5, s86, v5
v_min_u32 v5, s87, v5
s_mul_i32 s86, s84, 43
s_lshr_b32 s86, s86, 7
s_mul_i32 s86, s86, {23*128}
s_add_u32 s86, s86, {WS_FLAG}
v_lshl_add_u32 v5, v5, 7, s86
v_and_b32 v24, 3, v0
v_lshl_add_u32 v5, v24, 2, v5""")
    w2addr(8); xres_addr(0)
    A(f"s_waitcnt lgkmcnt(0)\ns_add_u32 {TAG}, {TAG}, 0x9E3779B9")
def wfrag_addr(dst, swc, T, lab):
    A(f"""v_and_b32 v{T}, 3, v0
v_bfe_u32 v{T+1}, v0, 2, 2
v_bfe_u32 v{T+2}, v0, 4, 1
v_lshrrev_b32 v{T+3}, 5, v0
s_cmp_ge_u32 s7, 15
s_cbranch_scc1 {lab}Q
v_lshl_add_u32 v{T+3}, v{T+3}, 3, v{T+1}
v_mul_u32_u24 v{T+3}, 192, v{T+3}
v_mul_u32_u24 v{T+2}, {UPOFF}, v{T+2}
v_lshl_add_u32 v{T}, v{T}, 3, v{T+3}
s_mul_i32 s87, {swc}, 96
s_add_u32 s87, s87, {XW}
v_add3_u32 v{dst}, v{T}, v{T+2}, s87
s_branch {lab}D
{lab}Q:
v_mul_u32_u24 v{T+3}, {UPOFF}, v{T+3}
v_lshl_add_u32 v{T+3}, v{T+1}, 7, v{T+3}
v_lshrrev_b32 v{T+4}, 1, v{T}
v_lshl_add_u32 v{T+4}, v{T+2}, 1, v{T+4}
v_lshrrev_b32 v{T+1}, 1, v{T+1}
v_xor_b32 v{T+1}, {swc}, v{T+1}
v_lshl_add_u32 v{T+4}, v{T+1}, 2, v{T+4}
v_lshl_add_u32 v{T+3}, v{T+4}, 4, v{T+3}
v_and_b32 v{T}, 1, v{T}
v_lshl_add_u32 v{T}, v{T}, 3, v{T+3}
v_add_u32 v{dst}, {XW}, v{T}
{lab}D:""")
def woff(role, t, u, sec):
    return (t*3072+sec*768+u*32) if role == 'G' else (t*3072+u*1024+sec*512)

rot_setup()
A(f"""s_cmp_ge_u32 s3, 2
s_cbranch_scc1 L_SIDE
v_lshrrev_b32 v24, 3, v0
v_and_b32 v25, 7, v0
v_lshrrev_b32 v26, 4, v0
v_xor_b32 v27, v25, v26
s_mul_i32 s86, s4, 96
s_add_u32 s86, s86, s8
s_lshl_b32 s86, s86, 10
v_lshl_add_u32 v16, v24, 10, s86
v_lshl_add_u32 v16, v27, 4, v16
v_xor_b32 v17, 64, v16
v_add_u32 v18, {2*7168}, v16
v_add_u32 v19, {3*7168}, v17
v_add_u32 v17, 7168, v17
s_mul_i32 s74, s4, 12288
s_mul_i32 s75, s4, {UPOFF}
s_add_u32 s75, s75, {XW}
s_mov_b32 s43, 0x20000
s_mov_b32 s78, 0
s_mov_b32 s79, s13
s_cmp_ge_u32 s7, 15
s_cbranch_scc1 L_LQKV
s_mov_b32 s42, {512*2752}
s_mov_b32 s82, {16*2752}
s_movk_i32 s86, 0x1556
s_movk_i32 s87, {2752-192}
s_lshl_b32 s88, s9, 1""")
for i in range(3):
    A(f"""v_add_u32 v24, {64*i}, v0
v_mul_u32_u24 v24, s86, v24
v_lshrrev_b32 v24, 16, v24
v_mad_u32_u24 v24, v24, s87, v0
v_mad_u32_u24 v24, v0, 15, v24
v_add_u32 v{20+i}, s88, v24""")
A(f"""s_branch L_LGO
L_LQKV:
s_mov_b32 s42, {512*3072}
s_mov_b32 s82, {16*3072}
s_sub_u32 s87, s7, 15
s_lshl_b32 s87, s87, 7
s_mul_i32 s88, s4, {8*3072}
s_add_u32 s87, s87, s88
v_mul_u32_u24 v24, 3072, v24
v_and_b32 v26, 1, v26
v_lshlrev_b32 v26, 2, v26
v_xor_b32 v25, v25, v26
v_lshl_add_u32 v20, v25, 4, v24
v_add_u32 v20, s87, v20
v_mov_b32 v21, v20
v_mov_b32 v22, v20
L_LGO:""")
sh = {2: 1, 4: 2, 8: 0, 1: 0}[OPT["rot"]]
if OPT["sub"]:
    A(f"""s_lshr_b32 s86, s90, {sh}
s_mul_i32 s87, s86, 43
s_lshr_b32 s87, s87, 7
s_mul_i32 s87, s87, 3
s_sub_u32 s86, s86, s87
s_lshr_b32 s87, s6, {sh}""")
else:
    A("s_mov_b32 s86, 0\ns_mov_b32 s87, 0")
A("""s_lshl_b32 s70, s86, 12
s_add_u32 s71, s70, 4096
s_cmp_eq_u32 s71, 12288
s_cselect_b32 s71, 0, s71
s_add_u32 s72, s70, s71
s_sub_u32 s72, 12288, s72""")
for g, (l_, g_) in enumerate(zip(["s52", "s53", "s54", "s55"], ["s73", "s77", "s14", "s15"])):
    A(f"s_add_u32 s86, s87, {g}\ns_and_b32 s86, s86, 3\ns_mul_i32 {l_}, s86, 3072\ns_mul_i32 {g_}, s86, s82")
kwait()
A(f"""s_cmp_eq_u32 s4, 1
s_cselect_b32 s40, s26, s24
s_cselect_b32 s41, s27, s25
s_cmp_ge_u32 s7, 15
s_cselect_b32 s40, s18, s40
s_cselect_b32 s41, s19, s41""")
stamp(1, 2)
XG = ["s70", "s71", "s72"]; WL = ["s52", "s53", "s54", "s55"]; WG = ["s73", "s77", "s14", "s15"]
def issue_head():
    A(f"""s_lshl_b32 s80, s79, 7
s_mul_i32 s81, s79, s82
s_lshl_b32 s81, s81, 2
s_add_u32 s88, s78, s74
s_add_u32 s89, s78, s75""")
ORDER = ["x0", "w0", "x1", "w1", "x2", "w2", "w3"]
def issue_part(lo, hi):
    n = 0
    for it in ORDER[lo:hi]:
        g = int(it[1])
        if it[0] == 'x':
            A(f"s_add_u32 m0, s88, {XG[g]}\ns_lshl3_add_u32 s86, {XG[g]}, s80")
            for q in range(4): A(f"buffer_load_dwordx4 v{16+q}, {X}, s86 offen offset:{1024*q} lds")
            n += 4
        else:
            A(f"s_add_u32 m0, s89, {WL[g]}\ns_add_u32 s87, s81, {WG[g]}")
            for j in range(3): A(f"buffer_load_dwordx4 v{20+j}, {W}, s87 offen offset:{1024*j} lds")
            n += 3
    return n
def issue_tail():
    A(f"""s_add_u32 s79, s79, 1
s_and_b32 s79, s79, 7
s_add_u32 s78, s78, {SLOT}
s_cmp_eq_u32 s78, {3*SLOT}
s_cselect_b32 s78, 0, s78""")
issue_head(); issue_part(0, 7); issue_tail()
stamp(2, 2)
HH = OPT["h"]
issue_head(); n_ = issue_part(0, HH)
p2setup()
A(f"s_waitcnt vmcnt({n_})")
stamp(1); stamp(3, 2)
A("s_barrier\ns_mov_b32 s83, 0\nL_LLOOP:")
if not OPT["nodma"]: issue_part(HH, 7)
issue_tail(); issue_head()
if not OPT["nodma"]: issue_part(0, HH)
A(f"""s_add_u32 s83, s83, 1
s_waitcnt vmcnt({n_})
s_barrier
s_cmp_lt_u32 s83, 6
s_cbranch_scc1 L_LLOOP""")
issue_part(HH, 7)
A("s_branch L_W2")

A(f"""L_SIDE:
s_add_u32 s15, s13, s14
s_cmp_ge_u32 s6, 8
s_cselect_b32 s14, 99, s14
s_cmp_eq_u32 s12, 1
s_cselect_b32 s14, 99, s14
s_and_b32 s77, s4, 1""")
wfrag_addr(16, "s77", 24, "L_SA")
A(f"""s_lshl_b32 s86, s7, 13
s_lshl_b32 s87, s77, 9
s_add_u32 s86, s86, s87
s_add_u32 s86, s86, {WS_CS}
s_lshl_b32 s87, s15, 10
s_add_u32 s74, s86, s87
v_and_b32 v24, 31, v0
v_lshlrev_b32 v17, 4, v24
v_lshrrev_b32 v25, 5, v0
v_lshl_add_u32 v18, v25, 12, v17
v_add_u32 v18, s86, v18
s_mul_i32 s87, s77, 96
v_add_u32 v21, s87, v0
v_add3_u32 v22, v24, s87, 64
s_lshl_b32 s86, s8, 4
s_add_u32 s86, s86, {WS_RS}
v_lshl_add_u32 v19, v21, 4, s86
v_lshl_add_u32 v20, v22, 4, s86
s_cmp_eq_u32 s14, 1
s_cselect_b32 s86, {SLOT}, 0
s_cmp_eq_u32 s14, 2
s_cselect_b32 s86, {2*SLOT}, s86
v_add_u32 v16, s86, v16""")
for r in range(92, 96): A(f"v_mov_b32 v{r}, 0x3f803f80")
kwait()
p2setup()
def f_addr(dst):
    A(f"""s_sub_u32 s86, s7, 15
s_lshl_b32 s86, s86, 12
s_and_b32 s87, s6, 1
s_lshl_b32 s87, s87, 11
s_add_u32 s86, s86, s87
s_and_b32 s87, s6, 2
s_lshl_b32 s87, s87, 9
s_add_u32 s86, s86, s87
s_lshr_b32 s87, s6, 2
s_lshl_b32 s87, s87, 9
s_add_u32 s86, s86, s87
s_add_u32 s86, s86, {WS_F}
v_and_b32 v{dst}, 31, v0
v_lshl_add_u32 v{dst}, v{dst}, 4, s86""")
A(f"""s_cmp_lt_u32 s7, 15
s_cbranch_scc1 L_NOCLR
s_cmp_ge_u32 s6, 8
s_cbranch_scc1 L_NOCLR""")
f_addr(24)
A(f"""v_mov_b32 v28, -1
v_mov_b32 v29, -1
v_mov_b32 v30, -1
v_mov_b32 v31, -1
buffer_store_dwordx4 v[28:31], v24, {WS}, 0 offen sc1
L_NOCLR:
s_lshr_b32 s86, s2, 3
s_lshl_b32 s86, s86, 1
s_add_u32 s86, s86, s77
s_lshl_b32 s86, s86, 15
v_lshl_add_u32 v23, v0, 7, s86
s_mov_b32 s83, 0
s_waitcnt vmcnt(0)
L_SLOOP:
s_barrier""")
if OPT["l2pf"] >= 0:
    A(f"""s_sub_u32 s86, s83, {OPT['l2pf']}
s_cmp_lt_u32 s86, 4
s_cbranch_scc0 L_NOPF
v_subrev_u32 v26, {1376*1024}, v23
buffer_load_dword v27, v23, {WD}, 0 offen
buffer_load_dword v28, v26, {WO}, 0 offen
v_add_u32 v23, 8192, v23
L_NOPF:""")
A(f"""s_cmp_eq_u32 s83, s14
s_cbranch_scc0 L_LNOCS
s_cmp_ge_u32 s7, 15
s_cbranch_scc1 L_CSQ""")
for role in "GQ":
    if role == 'Q': A("s_branch L_CSM\nL_CSQ:")
    for t in range(4):
        if t == 2: A("s_waitcnt lgkmcnt(0)")
        for u in range(3):
            for sec in range(2):
                A(f"ds_read_b64_tr_b16 {v(96+12*t+4*u+2*sec,2)}, v16 offset:{woff(role,t,u,sec)}")
A("L_CSM:")
for t in range(4):
    if t == 2: A("s_waitcnt lgkmcnt(0)")
    for u in range(3):
        A(mfma(144+16*u, 92, 96+12*t+4*u, 0 if t == 0 else None))
A(f"""v_mov_b32 v91, {TAG}
v_mov_b32 v88, v144
v_mov_b32 v89, v160
v_mov_b32 v90, v176
buffer_store_dwordx4 v[88:91], v17, {WS}, s74 offen sc1
L_LNOCS:
s_add_u32 s83, s83, 1
s_cmp_lt_u32 s83, 6
s_cbranch_scc1 L_SLOOP""")
def st_loads():
    for p in range(4):
        A(f"buffer_load_dwordx4 {v(32+4*p,4)}, v18, {WS}, 0 offen offset:{1024*p} sc1")
    A(f"buffer_load_dwordx4 v[48:51], v19, {WS}, 0 offen sc1\nbuffer_load_dwordx4 v[52:55], v20, {WS}, 0 offen sc1")
st_loads()
A(f"""s_mov_b32 s88, 0
s_barrier
L_SPC:
s_waitcnt vmcnt(0)
v_xor_b32 v24, {TAG}, v35""")
for p in range(1, 6):
    A(f"v_xor_b32 v25, {TAG}, v{35+4*p}\nv_or_b32 v24, v24, v25")
A(f"""v_cmp_ne_u32 vcc, 0, v24
s_add_u32 s88, s88, 1
s_cmp_gt_u32 s88, {OPT['spin']}
s_cbranch_scc1 L_SPCD
s_cbranch_vccz L_SPCD""")
st_loads()
A(f"""s_branch L_SPC
L_SPCD:
s_mov_b32 s86, {RS}
s_mov_b32 s87, {RR}
v_lshl_add_u32 v24, v21, 4, s86
v_lshl_add_u32 v25, v22, 4, s86
v_lshl_add_u32 v21, v21, 2, s87
v_lshl_add_u32 v22, v22, 2, s87
ds_write_b128 v24, v[48:51]
ds_write_b128 v25, v[52:55]
ds_write_b32 v21, v49
ds_write_b32 v22, v53""")
if OPT["stamps"] == 2: A("s_mov_b32 s35, s88")
for p in range(1, 4):
    for u in range(3):
        A(f"v_add_f32 v{32+u}, v{32+u}, v{32+4*p+u}")
for u in range(3): A(f"v_mov_b32 v{36+u}, v{32+u}")
for u in range(3): A(f"v_permlane32_swap_b32 v{32+u}, v{36+u}")
A(f"""s_mul_i32 s86, s77, 768
s_add_u32 s86, s86, {CF}
v_lshrrev_b32 v24, 1, v17
v_add_u32 v24, s86, v24""")
for u in range(3): A(f"v_add_f32 v{32+u}, v{32+u}, v{36+u}")
for u in range(3): A(f"v_and_b32 v{36+u}, 0xffff0000, v{32+u}")
for u in range(3): A(f"v_sub_f32 v{32+u}, v{32+u}, v{36+u}")
for u in range(3): A(f"v_and_b32 v{40+u}, 0xffff0000, v{32+u}")
for u in range(3): A(f"v_sub_f32 v{32+u}, v{32+u}, v{40+u}")
for u in range(3): A(f"v_lshrrev_b32 v{36+u}, 16, v{36+u}")
for u in range(3): A(f"v_or_b32 v{56+2*u}, v{36+u}, v{40+u}\nv_lshrrev_b32 v{57+2*u}, 16, v{32+u}")
for u in range(3): A(f"ds_write_b64 v24, {v(56+2*u,2)} offset:{256*u}")
A("s_waitcnt lgkmcnt(0)")

A("L_W2:")
stamp(2); stamp(4, 2)
AB = 8
items = [('d',k,2,k) for k in range(6)] + [('d',6+k,0,k) for k in range(6)] + [('d',12+k,1,k) for k in range(6)] \
      + [('d',18+k,2,k) for k in range(4)] + [('o',k,2,4+k) for k in range(2)] + [('o',2+k,0,k) for k in range(6)]
assert OPT["n7"] <= 6 and OPT["n7"] <= OPT["n8"] <= 12 and 6 <= OPT["ca"] <= 18 and 12 <= OPT["cb"] <= 24
for n, (kind, k, slot, blk) in enumerate(items + [(None,)*4]):
    if n == OPT["n7"]:
        A(f"s_waitcnt vmcnt({2*n})\ns_barrier"); stamp(5, 2)
    if n == OPT["n8"]:
        A("s_barrier"); stamp(3); stamp(6, 2)
    for (pos, base, sl, last) in ((OPT["ca"], 96, 2, 6), (OPT["cb"], 144, 0, 12)):
        if n == pos:
            A(f"s_waitcnt vmcnt({2*(n-last)})")
            for kk in range(6):
                for t in w2read(base+8*kk, sl, kk, AB): A(t)
                if kk % 3 == 2: A("s_waitcnt lgkmcnt(0)")
    if kind is None: break
    if OPT["thr"] and n >= OPT["n8"]: A(f"s_waitcnt vmcnt({OPT['thr']})")
    A(f"s_add_u32 m0, s76, {slot*SLOT + blk*2048}")
    va, kk, S_ = ((2, k, WD) if k < 20 else (3, k-20, WD)) if kind == 'd' else (4, k, WO)
    A(f"""s_mov_b32 s86, {kk*16384}
s_mov_b32 s87, {kk*16384 + 7168}
buffer_load_dwordx4 v{va}, {S_}, s86 offen lds
buffer_load_dwordx4 v{va}, {S_}, s87 offen offset:1024 lds""")
xres_load()
A(f"""s_lshl_b32 s86, s4, 2
s_add_u32 s86, s86, {LF+32}
v_mov_b32 v16, s86
v_mov_b32 v17, 1
s_waitcnt vmcnt(1)
ds_write_b32 v16, v17""")
stamp(4); stamp(1, 3)
spin_global(5, 16)
stamp(5); stamp(2, 3)
def hload(kd):
    va, kk = (6, kd) if kd < 20 else (7, kd-20)
    b = 16 + 8*(kd % 8)
    return [f"s_mov_b32 s86, {kk*65536}",
            f"buffer_load_dwordx4 {v(b,4)}, v{va}, {H}, s86 offen sc1",
            f"buffer_load_dwordx4 {v(b+4,4)}, v{va}, {H}, s86 offen offset:1024 sc1"]
def res_loc(kd):
    return (1, kd-12) if kd < 18 else (2, kd-18)
for kd in range(8):
    for t in hload(kd): A(t)
for kd in range(22):
    wf = 96+8*kd if kd < 12 else 80+8*(kd & 1)
    hb = 16 + 8*(kd % 8)
    A(f"s_waitcnt vmcnt({2*min(7, 21-kd)})" + (" lgkmcnt(0)" if kd >= 12 else ""))
    ms = [mfma(192+32*r+16*c, wf+4*c, hb+4*r, 0 if kd == 0 else None) for r in range(2) for c in range(2)]
    fill = []
    if 12 <= kd+1 < 22:
        fill = w2read(80+8*((kd+1) & 1), *res_loc(kd+1), AB)
    for t in interleave(ms, fill, 2): A(t)
    if kd+8 < 22:
        for t in hload(kd+8): A(t)
stamp(6); stamp(3, 3)
def final(isy):
    A(f"""v_lshlrev_b32 v2, 4, v0
v_add_u32 v3, s76, v2
v_add_u32 v4, {2*SLOT + (0 if isy else 8192)}, v3""")
    for q in range(4):
        for jq in range(4):
            if q < 3: A(f"ds_write_b128 v3, {v(192+16*q+4*jq,4)} offset:{(SLOT if isy else 0) + q*4096 + jq*1024}")
            else: A(f"ds_write_b128 v4, {v(192+16*q+4*jq,4)} offset:{jq*1024}")
    A(f"""s_lshl_b32 s86, s4, 12
s_add_u32 s87, s86, {SLOT}
s_cmp_eq_u32 s4, 3
s_cselect_b32 s86, {2*SLOT+8192}, s86
s_cselect_b32 s87, {2*SLOT}, s87
s_add_u32 s86, s86, {0 if isy else 2048}
s_add_u32 s87, s87, {0 if isy else 2048}
v_add_u32 v3, s87, v2
v_add_u32 v4, s86, v2
s_waitcnt lgkmcnt(0)""")
final(True)
A("s_branch L_FINAL")

A("L_COMPUTE:")
npf = 0
srd(WD, 28, 1376*1024); srd(WO, 20, 512*1024)
if OPT["pfw2"]:
    A(f"""buffer_load_dwordx4 v[48:51], v3, {WD}, 0 offen
buffer_load_dwordx4 v[52:55], v3, {WD}, 0 offen offset:1024
buffer_load_dwordx4 v[56:59], v4, {WO}, 0 offen
buffer_load_dwordx4 v[60:63], v4, {WO}, 0 offen offset:1024""")
    npf += 4
srd(WS, 32, 0x400000); srd(H, 32, 86*65536, WS_H); srd(O, 32, 32*65536, WS_O); srd(OUT, 30, 2097152)
stamp(2, 2)
ACC = 112
for r in range(ACC, 256): A(f"v_mov_b32 v{r}, 0")
A(f"""v_lshlrev_b32 v16, 2, v0
v_add_u32 v16, {LF}, v16
v_mov_b32 v17, 0
v_cmp_gt_u32 vcc, 16, v0
s_and_saveexec_b64 s[90:91], vcc
ds_write_b32 v16, v17
s_mov_b64 exec, s[90:91]
s_lshr_b32 s13, s4, 1
s_and_b32 s14, s4, 1
s_movk_i32 s11, 0x1ff
s_lshl_b32 s86, s13, 4
s_add_u32 s86, s86, s6
s_cmp_eq_u32 s86, 10
s_cselect_b32 s11, 0x1c0, s11
s_mul_i32 s86, s14, 0x1b6
s_cmp_eq_u32 s7, 14
s_cselect_b32 s86, s86, 0x1ff
s_and_b32 s11, s11, s86
s_cmp_eq_u32 s12, 1
s_cselect_b32 s11, 0, s11
s_mul_i32 s86, s6, 23
s_add_u32 s86, s86, s7
s_cmp_eq_u32 s12, 1
s_cselect_b32 s86, 255, s86
s_lshl_b32 s86, s86, 7
s_lshl_b32 s87, s4, 2
s_add_u32 s86, s86, s87
s_add_u32 s15, s86, {WS_FLAG}
s_mul_i32 s76, s4, {Q}
v_and_b32 v16, 31, v0
v_lshrrev_b32 v17, 5, v0
v_bfe_u32 v18, v0, 1, 3
v_xor_b32 v18, v18, v17
s_mul_i32 s86, s13, {96*128}
v_lshl_add_u32 v16, v16, 7, s86
v_lshl_add_u32 v2, v18, 4, v16
v_xor_b32 v3, 32, v2
v_xor_b32 v4, 64, v2
v_xor_b32 v5, 96, v2
""")
wfrag_addr(6, "s14", 16, "L_CA")
A(f"s_waitcnt vmcnt({npf})")
stamp(5, 2)
for j in range(8):
    A(f"v_lshlrev_b32 v{16+2*j}, 16, v{8+j}\nv_and_b32 v{17+2*j}, 0xffff0000, v{8+j}")
def red32(r, t):
    for sh in (8, 4, 2, 1):
        A(f"v_add_f32_dpp v{r}, v{r}, v{r} row_ror:{sh} row_mask:0xf bank_mask:0xf")
    A(f"v_mov_b32 v{t}, v{r}\nv_permlane16_swap_b32 v{r}, v{t}\nv_add_f32 v{r}, v{r}, v{t}")
for j in range(4): A(f"v_pk_add_f32 {v(8+2*j,2)}, {v(16+2*j,2)}, {v(24+2*j,2)}")
A("v_pk_add_f32 v[8:9], v[8:9], v[12:13]\nv_pk_add_f32 v[10:11], v[10:11], v[14:15]\nv_pk_add_f32 v[8:9], v[8:9], v[10:11]\nv_add_f32 v8, v8, v9")
red32(8, 9)
A(f"v_mul_f32 v8, {hx(-1/512)}, v8")
for j in range(8): A(f"v_pk_add_f32 {v(16+2*j,2)}, {v(16+2*j,2)}, v[8:9] op_sel_hi:[1,0]")
A("v_pk_mul_f32 v[10:11], v[16:17], v[16:17]\nv_pk_mul_f32 v[12:13], v[18:19], v[18:19]")
for j in range(2, 8): A(f"v_pk_fma_f32 {v(10+2*(j&1),2)}, {v(16+2*j,2)}, {v(16+2*j,2)}, {v(10+2*(j&1),2)}")
A("v_pk_add_f32 v[10:11], v[10:11], v[12:13]\nv_add_f32 v10, v10, v11")
red32(10, 9)
A(f"""v_mul_f32 v10, {hx(1/512)}, v10
v_cvt_pk_bf16_f32 v10, v10, v10
v_and_b32 v10, 0xffff0000, v10
v_add_f32 v10, {hx(1e-5)}, v10
v_cvt_pk_bf16_f32 v10, v10, v10
v_and_b32 v10, 0xffff0000, v10
v_sqrt_f32 v10, v10
v_cvt_pk_bf16_f32 v40, v8, v8
v_cvt_pk_bf16_f32 v10, v10, v10
v_and_b32 v10, 0xffff0000, v10
v_rcp_f32 v41, v10
v_mul_f32 v42, v10, v10
v_lshlrev_b32 v7, 4, v7
v_add_u32 v7, {WS_RS}, v7
s_waitcnt lgkmcnt(0)
s_add_u32 {TAG}, {TAG}, 0x9E3779B9
v_mov_b32 v43, {TAG}
v_and_b32 v9, 31, v0
v_mov_b32 v20, 0x3f803f80
v_mov_b32 v21, 0x3f803f80
v_mov_b32 v22, 0x3f803f80
v_mov_b32 v23, 0x3f803f80
v_cmp_eq_u32 vcc, 0, v9""")
stamp(1); stamp(3, 2)
A(f"""s_barrier
s_and_saveexec_b64 s[90:91], vcc
buffer_store_dwordx4 v[40:43], v7, {WS}, 0 offen sc1
s_mov_b64 exec, s[90:91]""")
stamp(2); stamp(4, 2)
A(f"""s_mov_b32 s78, 0
s_mov_b32 s79, {SLOT}
s_mov_b32 s83, 0
s_cmp_ge_u32 s7, 15
s_cbranch_scc1 L_QKV""")

XF = lambda buf, a: 64 + 24*buf + 4*a
WF = lambda buf, u: 64 + 24*buf + 12 + 4*u
acc = lambda a, u: ACC + 16*(3*a+u)
def reads(role, t, buf):
    o = []
    for u in range(3):
        o.append(f"ds_read_b128 {v(XF(buf,u),4)}, v{2+t} offset:{4096*u}")
        for sec in range(2):
            off = woff(role, t, u, sec)
            o.append(f"ds_read_b64_tr_b16 {v(WF(buf,u)+2*sec,2)}, v6 offset:{off}")
    return o
def mms(role, buf):
    o = []
    if OPT['nomfma']: return ['s_nop 0']*9
    for a in range(3):
        for u in range(3):
            if role == 'G' or u == 0: o.append(mfma(acc(a,u), WF(buf,u), XF(buf,a)))
            else: o.append(mfma(acc(a,u), XF(buf,a), WF(buf,u)))
    return o
def mainloop(role):
    lp, ex = f"L_ML{role}", f"L_MX{role}"
    for t in reads(role, 0, 0): A(t)
    A.label(lp)
    for t in range(3):
        A("s_waitcnt lgkmcnt(0)")
        for x in interleave(mms(role, t & 1), reads(role, t+1, (t+1) & 1), 2): A(x)
    A(f"""s_add_u32 s78, s78, 1
s_cmp_eq_u32 s78, 3
s_cselect_b32 s86, {-2*SLOT & 0xffffffff}, s79
s_cselect_b32 s78, 0, s78
s_add_u32 s83, s83, 1
s_cmp_eq_u32 s83, 8
s_waitcnt lgkmcnt(0)
s_barrier
s_cbranch_scc1 {ex}""")
    upd = [f"v_add_u32 v{r}, s86, v{r}" for r in (2, 6)]
    upd2 = [f"v_add_u32 v{r}, s86, v{r}" for r in (3, 4, 5)]
    for x in interleave(mms(role, 1), upd + reads(role, 0, 0) + upd2, 2): A(x)
    A(f"s_branch {lp}")
    A.label(ex)
    pre = [f"s_waitcnt vmcnt(0)", f"v_and_b32 v2, 31, v0",
           f"s_mul_i32 s86, s13, {96*16}", f"s_add_u32 s86, s86, {RS}",
           f"v_lshl_add_u32 v3, v2, 4, s86",
           f"s_mul_i32 s86, s14, 768", f"s_add_u32 s86, s86, {CF}",
           f"v_lshl_add_u32 v4, v2, 3, s86",
           f"v_cmp_gt_u32 vcc, 32, v0"]
    rd = [f"ds_read_b128 {v(8+4*a,4)}, v3 offset:{512*a}" for a in range(3)]
    rd += [f"ds_read_b64 {v(WF(0,u),2)}, v4 offset:{256*u}" for u in range(3)]
    z = []
    if role == 'Q':
        z += ["v_lshrrev_b32 v5, 5, v0", f"s_mul_i32 s86, s13, {96*4}", f"s_add_u32 s86, s86, {RR}", "v_lshl_add_u32 v5, v5, 4, s86"]
        z += [f"ds_read_b128 {v(24+16*(2-a)+4*q,4)}, v5 offset:{128*a+32*q}" for a in (2, 1) for q in range(4)]
    for k in range(3):
        z += [f"v_mov_b32 v{WF(0,k)+2}, 0", f"v_mov_b32 v{WF(0,k)+3}, 0", f"v_mov_b32 v{XF(0,k)+2}, 0", f"v_mov_b32 v{XF(0,k)+3}, 0"]
    for x in interleave(mms(role, 1), pre + rd + z, 5): A(x)
    A("s_waitcnt lgkmcnt(0)")
    for a in range(3):
        A(f"v_cndmask_b32 v{XF(0,a)}, 0, v{8+4*a}, vcc\nv_and_b32 v{XF(0,a)+1}, 0xffff, v{XF(0,a)}")
    for x in (mms(role, 0) if role == 'G' else mms(role, 0)[::-1]): A(x)

def publish():
    A(f"""s_waitcnt vmcnt(0)
v_mov_b32 v2, s15
v_mov_b32 v3, {TAG}
v_cmp_eq_u32 vcc, 0, v0
s_and_saveexec_b64 s[90:91], vcc
buffer_store_dword v3, v2, {WS}, 0 offen sc1
s_mov_b64 exec, s[90:91]""")

mainloop('G')
stamp(3); stamp(1, 3)
C1 = -2.0*0.7978845608028654*1.4426950408889634
A(f"""s_lshr_b32 s86, s9, 4
s_mul_i32 s87, s14, 3
s_add_u32 s86, s86, s87
s_lshl_b32 s86, s86, 6
s_lshr_b32 s87, s8, 5
s_add_u32 s86, s86, s87
s_mul_i32 s87, s13, 3
s_add_u32 s86, s86, s87
s_lshl_b32 s86, s86, 10
v_lshl_add_u32 v2, v0, 4, s86
s_mov_b32 s70, 0
s_mov_b32 s71, 65536
s_mov_b32 s72, 131072""")
for a in range(3):
    b = 8+4*a
    A(f"""v_mul_f32 v{b}, {hx(C1)}, v{b+1}
v_mul_f32 v{b+3}, v{b+1}, v{b+1}
v_mul_f32 v{b+3}, {hx(0.044715)}, v{b+3}
v_mul_f32 v{b+1}, v{b}, v{b+3}""")
for a in range(3):
    (pA1, sA1), (pA3, sA3), (pI, sI) = bc(8+4*a), bc(9+4*a), bc(10+4*a)
    for u in range(3):
        sk = L("GS")
        A(f"s_bitcmp1_b32 s11, {3*a+u}\ns_cbranch_scc0 {sk}")
        g = acc(a, u); T = 24 + 8*((3*a+u) & 1); P = 40 + 4*((3*a+u) & 1)
        if OPT["latestore"]: P = 64 + 4*(3*a+u)
        if OPT["nopk"]:
            b_ = 8+4*a
            for j in range(8): A(f"v_mul_f32 v{T+j}, v{g+j}, v{g+j}")
            for j in range(8): A(f"v_fma_f32 v{T+j}, v{T+j}, v{b_+1}, v{b_}")
            for j in range(8): A(f"v_mul_f32 v{T+j}, v{T+j}, v{g+j}")
            for j in range(8): A(f"v_exp_f32 v{T+j}, v{T+j}\nv_mul_f32 v{g+j}, v{g+j}, v{g+8+j}")
            for j in range(8): A(f"v_fma_f32 v{T+j}, v{T+j}, v{b_+2}, v{b_+2}")
            for j in range(8): A(f"v_rcp_f32 v{T+j}, v{T+j}")
            for j in range(8): A(f"v_mul_f32 v{T+j}, v{T+j}, v{g+j}")
        else:
            for j in range(4): A(f"v_pk_mul_f32 {v(T+2*j,2)}, {v(g+2*j,2)}, {v(g+2*j,2)}")
            for j in range(4): A(f"v_pk_fma_f32 {v(T+2*j,2)}, {v(T+2*j,2)}, {pA3}, {pA1} op_sel:[0,{sA3},{sA1}] op_sel_hi:[1,{sA3},{sA1}]")
            for j in range(4): A(f"v_pk_mul_f32 {v(T+2*j,2)}, {v(T+2*j,2)}, {v(g+2*j,2)}")
            for j in range(8): A(f"v_exp_f32 v{T+j}, v{T+j}")
            for j in range(4): A(f"v_pk_mul_f32 {v(g+2*j,2)}, {v(g+2*j,2)}, {v(g+8+2*j,2)}")
            for j in range(4): A(f"v_pk_fma_f32 {v(T+2*j,2)}, {v(T+2*j,2)}, {pI}, {pI} op_sel:[0,{sI},{sI}] op_sel_hi:[1,{sI},{sI}]")
            for j in range(8): A(f"v_rcp_f32 v{T+j}, v{T+j}")
            for j in range(4): A(f"v_pk_mul_f32 {v(T+2*j,2)}, {v(T+2*j,2)}, {v(g+2*j,2)}")
        for j in range(4): A(f"v_cvt_pk_bf16_f32 v{P+j}, v{T+2*j}, v{T+2*j+1}")
        if not OPT["latestore"]:
            A(f"buffer_store_dwordx4 {v(P,4)}, v2, {H}, s{70+u} offen offset:{1024*a} sc1")
        A.label(sk)
if OPT["latestore"]:
    stamp(2, 3)
    for a in range(3):
        for u in range(3):
            sk = L("GT")
            A(f"s_bitcmp1_b32 s11, {3*a+u}\ns_cbranch_scc0 {sk}")
            A(f"buffer_store_dwordx4 {v(64+4*(3*a+u),4)}, v2, {H}, s{70+u} offen offset:{1024*a} sc1")
            A.label(sk)
stamp(4); stamp(4, 3)
publish()
A("s_branch L_SPART")

A("L_QKV:")
mainloop('Q')
stamp(3)
KV, Z, ONE, PK, PV, G = 224, 240, 20, 80, 88, 96
A(f"""s_mov_b32 s70, {hx(1.4426950408889634)}
s_mov_b32 s71, {hx(1.4426950408889634)}
s_mov_b32 s72, {hx(1e-6)}
s_mov_b32 s73, {hx(1e-6)}
v_and_b32 v3, 16, v0
v_cmp_ne_u32 s[74:75], 0, v3
s_sub_u32 s87, s7, 15
s_lshl_b32 s87, s87, 1
s_add_u32 s87, s87, s14
s_mul_i32 s77, s87, {24*3072}
s_add_u32 s77, s77, {WS_KV}
s_lshl_b32 s86, s87, 7
s_lshr_b32 s87, s8, 5
s_add_u32 s86, s86, s87
s_mul_i32 s87, s13, 3
s_add_u32 s86, s86, s87
s_lshl_b32 s86, s86, 10
v_lshl_add_u32 v2, v0, 4, s86
s_lshl_b32 s86, s6, 1
s_add_u32 s86, s86, s13
s_mul_i32 s86, s86, 3072
s_add_u32 s86, s86, s77
v_lshl_add_u32 v7, v0, 4, s86
s_mov_b32 s78, 65536
v_mov_b32 v{G+3}, {TAG}
v_mov_b32 v{G+7}, {TAG}
v_mov_b32 v{G+11}, {TAG}""")
def phi(g, T, dst, rop):
    for j in range(8):
        o, lo, hi = rop(j)
        A(f"v_pk_fma_f32 {v(g+2*j,2)}, {v(g+2*j,2)}, {o}, s[72:73] op_sel:[0,{lo},0] op_sel_hi:[1,{hi},1]")
    for j in range(8): A(f"v_pk_mul_f32 {v(T+2*j,2)}, {v(g+2*j,2)}, s[70:71]")
    for j in range(16): A(f"v_exp_f32 v{T+j}, v{T+j} clamp\nv_max_f32 v{g+j}, s72, v{g+j}")
    for j in range(8): A(f"v_pk_add_f32 {v(T+2*j,2)}, {v(T+2*j,2)}, {v(g+2*j,2)}")
    for j in range(8): A(f"v_cvt_pk_bf16_f32 v{dst+j}, v{T+2*j}, v{T+2*j+1}")
for a in (2, 1, 0):
    R_ = {2: 24, 1: 40, 0: 24}[a]
    if a == 1:
        A("s_bitcmp1_b32 s11, 0\ns_cbranch_scc0 L_KVS")
        for q in range(4): A(f"ds_read_b128 {v(24+4*q,4)}, v5 offset:{32*q}")
    if a == 0: A("s_waitcnt lgkmcnt(0)")
    g = acc(a, 2)
    for j in range(8): A(f"v_pk_mul_f32 {v(g+2*j,2)}, {v(g+2*j,2)}, {v(R_+2*j,2)}")
    for j in range(8): A(f"v_cvt_pk_bf16_f32 v{PV+j}, v{g+2*j}, v{g+2*j+1}")
    phi(acc(a, 1), 64, PK, lambda j: (v(R_+2*j,2), 0, 1))
    c0 = 0 if a == 2 else None
    A(mfma(KV, PK, PV, c0)); A(mfma(Z, ONE, PK, c0)); A(mfma(KV, PK+4, PV+4)); A(mfma(Z, ONE, PK+4))
A("L_KVS:\ns_nop 9")
for j in range(8): A(f"v_cndmask_b32 v{G+4*(j//3)+j%3}, v{KV+j}, v{KV+8+j}, s[74:75]")
A(f"v_mov_b32 v{G+10}, v{Z}")
for g_ in range(3): A(f"buffer_store_dwordx4 {v(G+4*g_,4)}, v7, {WS}, 0 offen offset:{1024*g_} sc1")
stamp(4); stamp(1, 3)
for a in (2, 1, 0):
    if a == 1: A("s_bitcmp1_b32 s11, 0\ns_cbranch_scc0 L_PQS")
    o, sel = bc(9+4*a)
    phi(acc(a, 0), 24, 64+8*a, lambda j: (o, sel, sel))
    A(f"buffer_store_dwordx4 {v(64+8*a,4)}, v2, {O}, 0 offen offset:{1024*a} sc1")
    A(f"buffer_store_dwordx4 {v(68+8*a,4)}, v2, {O}, s78 offen offset:{1024*a} sc1")
A("L_PQS:")
stamp(2, 3)
CT = 128
A(f"""s_and_b32 s86, s6, 9
s_add_u32 s86, s86, 2
s_cmp_eq_u32 s86, s4
s_cbranch_scc0 L_PUB
s_lshr_b32 s79, s6, 1
s_lshl_b32 s86, s79, 8
s_add_u32 s86, s86, s77
v_lshrrev_b32 v7, 4, v0
v_mul_u32_u24 v7, 3072, v7
v_and_b32 v8, 15, v0
v_lshl_add_u32 v7, v8, 4, v7
v_add_u32 v7, s86, v7""")
for j in range(12): A(f"v_mov_b32 v{CT+60+j}, " + (TAG if j % 4 == 3 else "0"))
def red_loads():
    for p in range(6):
        A(f"s_mov_b32 s86, {12288*p}")
        if p == 5: A("s_mov_b32 exec_hi, 0")
        for g_ in range(3): A(f"buffer_load_dwordx4 {v(CT+12*p+4*g_,4)}, v7, {WS}, s86 offen offset:{1024*g_} sc1")
    A("s_mov_b32 exec_hi, -1")
red_loads()
f_addr(9)
publish()
A(f"""s_mov_b32 s88, 0
L_KVC:
v_xor_b32 v8, {TAG}, v{CT+3}""")
for n in range(1, 18): A(f"v_xor_b32 v{24+n}, {TAG}, v{CT+4*n+3}")
for n in range(1, 18, 2):
    A(f"v_or3_b32 v8, v8, v{24+n}, v{25+n}" if n < 17 else f"v_or_b32 v8, v8, v{24+n}")
A(f"""v_cmp_ne_u32 vcc, 0, v8
s_add_u32 s88, s88, 1
s_cmp_gt_u32 s88, {OPT['spin']}
s_cbranch_scc1 L_KVD
s_cbranch_vccz L_KVD""")
red_loads()
A("""s_waitcnt vmcnt(0)
s_branch L_KVC
L_KVD:""")
stamp(3, 3)
if OPT["stamps"] == 3: A("s_mov_b32 s35, s88")
rr = lambda p, j: CT + 12*p + 4*(j//3) + j % 3
for j in range(9): A(f"v_add_f32 v{24+j}, v{rr(0,j)}, v{rr(1,j)}")
for p in range(2, 6):
    for j in range(9): A(f"v_add_f32 v{24+j}, v{24+j}, v{rr(p,j)}")
for sw in (16, 32):
    for j in range(9): A(f"v_mov_b32 v{36+j}, v{24+j}")
    for j in range(9): A(f"v_permlane{sw}_swap_b32 v{24+j}, v{36+j}")
    for j in range(9): A(f"v_add_f32 v{24+j}, v{24+j}, v{36+j}")
A(f"""s_lshr_b32 s86, s79, 1
s_lshl_b32 s86, s86, 2
s_add_u32 s87, s86, 2
s_add_u32 s88, s86, 8
s_add_u32 s89, s86, 10
v_mov_b32_dpp v33, v32 row_shl:1 row_mask:0xf bank_mask:0xf""")
for j in range(4): A(f"v_cvt_pk_bf16_f32 v{36+j}, v{24+2*j}, v{25+2*j}")
A(f"""v_cvt_pk_bf16_f32 v33, v32, v33
s_bitcmp1_b32 s79, 0
s_cselect_b64 s[80:81], -1, 0
s_xor_b64 s[80:81], s[80:81], s[74:75]""")
for j in range(4): A(f"v_readlane_b32 s{70+j}, v33, s{86+j}")
for j in range(4): A(f"v_mov_b32 v{40+j}, s{70+j}")
for j in range(4): A(f"v_cndmask_b32 v{44+j}, v{36+j}, v{40+j}, s[80:81]")
A(f"""s_mov_b32 exec_hi, 0
buffer_store_dwordx4 v[44:47], v9, {WS}, 0 offen sc1
s_mov_b32 exec_hi, -1""")
stamp(4, 3)
A("s_branch L_SPART\nL_PUB:")
publish()

A("L_SPART:")
stamp(5); stamp(5, 3)
w2addr(4, 8)
xres_addr(1, 8); xres_load()
A(f"""s_lshl_b32 s86, s4, 9
s_lshl_b32 s87, s84, 1
s_add_u32 s86, s86, s87
s_lshl_b32 s86, s86, 10
v_lshl_add_u32 v2, v0, 4, s86
s_mul_i32 s88, s84, 43
s_lshr_b32 s88, s88, 7
s_mul_i32 s88, s88, 23
s_lshl_b32 s87, s4, 1
s_add_u32 s88, s88, s87
s_add_u32 s88, s88, 15
s_lshl_b32 s88, s88, 7
s_add_u32 s88, s88, {WS_FLAG}
v_bfe_u32 v3, v0, 2, 1
v_lshl_add_u32 v3, v3, 7, s88
v_and_b32 v8, 3, v0
v_lshl_add_u32 v3, v8, 2, v3
s_lshl_b32 s86, s4, 13
s_add_u32 s86, s86, {WS_F}
v_lshl_add_u32 v8, v0, 4, s86
s_lshl_b32 s86, s4, 2
s_add_u32 s86, s86, {LF+32}
v_mov_b32 v10, s86
s_mov_b32 s72, {hx(1e-6)}
s_movk_i32 s73, 4096""")
spin_global(3, 9)
stamp(6)
def f_loads():
    for k in range(8):
        A(f"buffer_load_dwordx4 {v(80+4*k,4)}, v8, {WS}, " + ("0" if k < 4 else "s73") + f" offen offset:{1024*(k%4)} sc1")
for k in range(8):
    A(f"""s_mov_b32 s86, {k*65536}
buffer_load_dwordx4 {v(16+8*k,4)}, v2, {O}, s86 offen sc1
buffer_load_dwordx4 {v(20+8*k,4)}, v2, {O}, s86 offen offset:1024 sc1""")
A("s_mov_b32 s88, 0\nL_FP:")
f_loads()
A(f"""s_waitcnt vmcnt(0)
v_max3_u32 v9, v80, v84, v88
v_max3_u32 v11, v92, v96, v100
v_max3_u32 v9, v9, v104, v108
v_max_u32 v9, v9, v11
v_cmp_eq_u32 vcc, -1, v9
s_cmp_gt_u32 s88, {OPT['spin']}
s_cbranch_scc1 L_FPD
s_cbranch_vccz L_FPD
v_and_b32 v9, 15, v0
v_lshlrev_b32 v9, 9, v9
s_lshl_b32 s86, s4, 13
s_add_u32 s86, s86, {WS_F}
L_FQ:
buffer_load_dword v11, v9, {WS}, s86 offen sc1
s_add_u32 s88, s88, 1
s_waitcnt vmcnt(0)
v_cmp_eq_u32 vcc, -1, v11
s_cmp_gt_u32 s88, {OPT['spin']}
s_cbranch_scc1 L_FP
s_cbranch_vccz L_FP
s_sleep 1
s_branch L_FQ
L_FPD:""")
if OPT["stamps"] == 1: A("s_mov_b32 s35, s88")
spin_lds(10, 9, 0)
stamp(6, 3)
woloc = lambda k: (2, 4+k) if k < 2 else (0, k-2)
def Om(k): return [mfma(128+32*(k&1)+16*r, 80+4*k, 16+8*k+4*r, 0) for r in range(2)]
def Vv(k):
    o = []
    D = [128+32*(k&1)+16*r for r in range(2)]
    nd = [((d, d+8) if k % 2 == 0 else (d+8, d)) for d in D]
    for num, den in nd: o.append(f"v_add_f32 v{den}, s72, v{den}")
    for num, den in nd: o.append(f"v_rcp_f32 v{den}, v{den}")
    for r, (num, den) in enumerate(nd):
        for j in range(4): o.append(f"v_pk_mul_f32 {v(num+2*j,2)}, {v(num+2*j,2)}, {v(den,2)} op_sel_hi:[1,0]")
        for j in range(4): o.append(f"v_cvt_pk_bf16_f32 v{16+8*k+4*r+j}, v{num+2*j}, v{num+2*j+1}")
    return o
def Sm(k): return [mfma(192+32*r+16*c, 112+8*(k&1)+4*c, 16+8*k+4*r, 0 if k == 0 else None) for r in range(2) for c in range(2)]
for t in w2read(112, *woloc(0), 4): A(t)
for t in Om(0) + Om(1) + Vv(0): A(t)
for k in range(8):
    A("s_waitcnt lgkmcnt(0)")
    ms = Sm(k) + (Om(k+2) if k+2 < 8 else [])
    fill = (w2read(112+8*((k+1)&1), *woloc(k+1), 4) + Vv(k+1)) if k+1 < 8 else []
    for t in interleave(ms, fill, 4): A(t)
stamp(7)
final(False)

A("L_FINAL:")
A("s_barrier")
stamp(7, 3)
for src in range(4):
    for jq in range(2):
        A(f"ds_read_b128 {v(16+8*src+4*jq,4)}, v3 offset:{Q*src+1024*jq}")
for src in range(4):
    for jq in range(2):
        A(f"ds_read_b128 {v(48+8*src+4*jq,4)}, v4 offset:{Q*src+1024*jq}")
        if src == 2 and jq == 1: pass
A(f"s_mov_b32 s70, {hx(-1.4426950408889634)}\ns_mov_b32 s71, s70")
for j in range(4): A(f"v_lshlrev_b32 v{80+2*j}, 16, v{12+j}\nv_and_b32 v{81+2*j}, 0xffff0000, v{12+j}")
A("s_waitcnt lgkmcnt(8)")
for src in range(1, 4):
    for j in range(4): A(f"v_pk_add_f32 {v(16+2*j,2)}, {v(16+2*j,2)}, {v(16+8*src+2*j,2)}")
for j in range(4): A(f"v_pk_mul_f32 {v(24+2*j,2)}, {v(16+2*j,2)}, s[70:71]")
for j in range(8): A(f"v_exp_f32 v{24+j}, v{24+j}")
for j in range(4): A(f"v_pk_add_f32 {v(24+2*j,2)}, {v(24+2*j,2)}, 1.0 op_sel_hi:[1,0]")
for j in range(8): A(f"v_rcp_f32 v{24+j}, v{24+j}")
A("s_waitcnt lgkmcnt(0)")
for src in range(1, 4):
    for j in range(4): A(f"v_pk_add_f32 {v(48+2*j,2)}, {v(48+2*j,2)}, {v(48+8*src+2*j,2)}")
for j in range(4): A(f"v_pk_mul_f32 {v(16+2*j,2)}, {v(16+2*j,2)}, {v(24+2*j,2)}")
for j in range(4): A(f"v_pk_fma_f32 {v(16+2*j,2)}, {v(16+2*j,2)}, {v(48+2*j,2)}, {v(80+2*j,2)}")
for j in range(4): A(f"v_cvt_pk_bf16_f32 v{24+j}, v{16+2*j}, v{17+2*j}")
A(f"""buffer_store_dwordx4 v[24:27], v1, {OUT}, 0 offen
s_add_u32 s86, s2, s3
s_cmp_eq_u32 s86, 0
s_cbranch_scc0 L_NOBUMP
v_mov_b32 v2, 0
v_mov_b32 v3, {TAG}
buffer_store_dword v3, v2, {WS}, 0 offen sc1
L_NOBUMP:""")
if OPT["stamps"]:
    A("s_waitcnt vmcnt(0)")
    stamp(8, 0)
    A(f"""s_memrealtime s[68:69]
s_waitcnt lgkmcnt(0)
s_mov_b32 s101, s68
s_lshl_b32 s86, s2, 3
s_add_u32 s86, s86, s3
s_lshl_b32 s86, s86, 6
s_add_u32 s86, s86, {WS_DBG}
v_mov_b32 v2, s86""")
    for i in range(10): A(f"v_mov_b32 v3, s{92+i}\nbuffer_store_dword v3, v2, {WS}, 0 offen offset:{4*i}")
    A(f"v_mov_b32 v3, s34\nbuffer_store_dword v3, v2, {WS}, 0 offen offset:40")
    A(f"v_mov_b32 v3, s35\nbuffer_store_dword v3, v2, {WS}, 0 offen offset:44")
A("L_END:\ns_endpgm")

lines, errs = pad(A.lines)
for e in errs: print("HAZARD:", e, file=sys.stderr)
hdr = open("cdna_kernels/%s.s.ref" % NAME).read().split("; Override launch")[0]
out = hdr + f"""; Fused single-launch kernel (generated by my own generator script gen/gen.py).
; @launch grid=(256,1,1) block=(512,1,1) lds={LDS}
.amdgcn_target "amdgcn-amd-amdhsa--gfx950"
.text
.globl {NAME}_kernel
.p2align 8
.type {NAME}_kernel,@function
{NAME}_kernel:
""" + render(lines) + f""".section .rodata,"a"
.p2align 6
.amdhsa_kernel {NAME}_kernel
  .amdhsa_next_free_vgpr 256
  .amdhsa_next_free_sgpr 102
  .amdhsa_accum_offset 256
  .amdhsa_group_segment_fixed_size 0
  .amdhsa_kernarg_size 80
  .amdhsa_user_sgpr_count 2
  .amdhsa_user_sgpr_kernarg_segment_ptr 1
  .amdhsa_system_sgpr_workgroup_id_x 1
.end_amdhsa_kernel
"""
open(sys.argv[1], "w").write(out)
```

```python
import re
class Asm:
    def __init__(s):
        s.lines = []
    def i(s, t):
        for x in t.strip().split("\n"):
            x = x.strip()
            if not x: continue
            if x.startswith(";"): s.lines.append(('c', x))
            elif re.match(r"^[\w.$]+:$", x): s.lines.append(('l', x[:-1]))
            elif x.startswith("."): s.lines.append(('c', x))
            else: s.lines.append(('i', x.split(";")[0].strip()))
    __call__ = i
    def label(s, n): s.lines.append(('l', n))
    def extend(s, o): s.lines += o.lines

def regs(tok):
    tok = tok.strip()
    tok = re.sub(r"^-|^abs\(|\)$|^\||\|$", "", tok)
    m = re.match(r"^([vsa])(\d+)$", tok)
    if m: return {(m.group(1), int(m.group(2)))}
    m = re.match(r"^([vsa])\[(\d+):(\d+)\]$", tok)
    if m: return {(m.group(1), k) for k in range(int(m.group(2)), int(m.group(3))+1)}
    if tok == "vcc": return {('s', 106), ('s', 107)}
    if tok == "vcc_lo": return {('s', 106)}
    if tok == "vcc_hi": return {('s', 107)}
    if tok == "exec": return {('s', 126), ('s', 127)}
    if tok == "exec_hi": return {('s', 127)}
    if tok == "exec_lo": return {('s', 126)}
    if tok == "m0": return {('s', 124)}
    return set()

TRANS = ("v_exp_f32","v_log_f32","v_rcp_f32","v_rsq_f32","v_sqrt_f32","v_sin_f32","v_cos_f32")
class I:
    def __init__(s, t):
        s.t = t
        p = t.split(None, 1)
        s.mn = p[0]
        rest = p[1] if len(p) > 1 else ""
        ops = [o.strip() for o in re.split(r",(?![^\[]*\])", rest)] if rest else []
        s.mods = ""
        if ops:
            q = ops[-1].split(None, 1)
            ops[-1] = q[0]
            s.mods = q[1] if len(q) > 1 else ""
        s.ops = ops
        mn = s.mn
        s.mfma = mn.startswith("v_mfma")
        s.valu = mn.startswith("v_") and not s.mfma
        s.trans = any(mn.startswith(x) for x in TRANS)
        s.ds = mn.startswith("ds_")
        s.vmem = mn.startswith("buffer_") or mn.startswith("global_")
        s.salu = mn.startswith("s_")
        s.dpp = ("row_" in s.mods or "quad_perm" in s.mods or mn.endswith("_dpp"))
        s.perml = mn.startswith("v_permlane")
        s.rdl = mn.startswith("v_readlane") or mn.startswith("v_readfirstlane")
        R = [regs(o) for o in ops]
        U = lambda L: set().union(*L) if L else set()
        s.w = set(); s.r = set(); s.A = s.B = s.C = set(); s.sdata = set()
        s.ws = 1
        if mn == "s_nop": s.ws = int(ops[0], 0) + 1
        if s.mfma:
            s.w = R[0]; s.A = R[1]; s.B = R[2]; s.C = R[3]; s.r = s.A | s.B | s.C
            s.passes = 8 if "32x32x16" in mn else 4
        elif s.valu:
            if s.perml: s.w = R[0] | R[1]; s.r = s.w
            elif mn.startswith("v_cmp"): s.w = R[0]; s.r = U(R[1:])
            elif "_co_" in mn: s.w = R[0] | R[1]; s.r = U(R[2:])
            else:
                s.w = R[0]; s.r = U(R[1:])
                if mn.startswith("v_fmac") or mn.startswith("v_dot2c") or s.dpp or mn.startswith("v_writelane"): s.r |= R[0]
        elif s.ds:
            if mn.startswith("ds_read") or "rtn" in mn or "permute" in mn: s.w = R[0]; s.r = U(R[1:])
            else: s.r = U(R)
        elif s.vmem:
            lds = " lds" in (" " + s.mods) or "_lds_" in mn
            s.lds = lds
            if mn in ("buffer_wbl2", "buffer_inv"): pass
            elif "load" in mn and not lds: s.w = R[0]; s.r = U(R[1:])
            elif "store" in mn:
                s.r = U(R)
                if "x4" in mn or "x3" in mn: s.sdata = R[0] if mn.startswith("buffer") else R[1]
            else:
                s.r = U(R)
                if "atomic" in mn and "sc0" in s.mods: s.w = R[0]
            if lds: s.r |= {('s',124)}
        elif s.salu:
            if mn.startswith("s_cmp") or mn.startswith("s_cbranch") or mn.startswith("s_bitcmp") or mn in ("s_waitcnt","s_barrier","s_nop","s_sleep","s_branch","s_endpgm","s_setprio"):
                s.r = U(R)
            else:
                s.w = R[0] if R else set(); s.r = U(R[1:])
                if "saveexec" in mn: s.w |= {('s',126),('s',127)}

def vg(S): return {x for x in S if x[0] in 'va'}
def sg(S): return {x for x in S if x[0] == 's'}
def need(p, c):
    n = 0
    if p.mfma:
        big = {8: 12, 4: 8}[p.passes]
        if c.mfma:
            if p.w & (c.A | c.B): n = max(n, big)
            if p.w & c.C and not (p.w == c.C and p.passes == c.passes): n = max(n, big - 2)
            if p.w & c.w and not (p.w == c.w): n = max(n, big)
        elif (c.valu or c.ds or c.vmem) and (p.w & (c.r | c.w)): n = max(n, big)
        if c.valu and (p.C & c.w): n = max(n, {8: 7, 4: 3}[p.passes])
    if p.valu:
        pv = vg(p.w); ps = sg(p.w)
        if c.mfma and pv & c.r: n = max(n, 2)
        if p.trans and c.valu and not c.trans and pv & c.r: n = max(n, 1)
        if p.trans and (c.vmem or c.ds) and pv & c.r: n = max(n, 1)
        if c.valu and c.dpp and pv & c.r: n = max(n, 2)
        if c.perml and pv & c.r: n = max(n, 2)
        if c.rdl and pv & c.r: n = max(n, 1)
        if p.mn.startswith("v_dot") and c.mn != p.mn and pv & (c.r | c.w): n = max(n, 3)
        if ps:
            if c.valu and ps & c.r: n = max(n, 4 if (c.rdl or c.mn.startswith("v_writelane")) else 2)
            if c.vmem and ps & c.r: n = max(n, 5)
            if c.salu and ps & c.r: n = max(n, 1)
            if c.mn.startswith("s_cbranch_vcc") and (('s',106) in ps): n = max(n, 1)
        if "op_sel" in p.mods and not p.mn.startswith("v_pk") and c.valu and pv & (c.r|c.w): n = max(n, 1)
        if "sdwa" in p.mn and c.valu and pv & (c.r|c.w): n = max(n, 1)
    if p.salu and ('s',124) in p.w and c.vmem and getattr(c, 'lds', False): n = max(n, 1)
    if p.vmem and p.sdata and (p.sdata & c.w): n = max(n, 2)
    return n

def pad(lines):
    out = []; hist = []
    for k, t in lines:
        if k != 'i':
            out.append((k, t)); continue
        c = I(t)
        d = 0; req = 0
        for p in reversed(hist[-24:]):
            req = max(req, need(p, c) - d)
            d += p.ws
            if d > 20: break
        if req > 0:
            nop = I(f"s_nop {req-1}")
            out.append(('i', nop.t)); hist.append(nop)
        out.append((k, t)); hist.append(c)
        if c.mn in ("s_branch", "s_endpgm"): hist = []
    lab = {t: n for n, (k, t) in enumerate(out) if k == 'l'}
    errs = []
    for n, (k, t) in enumerate(out):
        if k == 'i' and (t.startswith("s_cbranch") or t.startswith("s_branch")):
            tgt = t.split()[1]
            if tgt not in lab: errs.append("unknown label " + tgt); continue
            pre = []
            j = n
            while j >= 0 and len(pre) < 24:
                if out[j][0] == 'i':
                    x = I(out[j][1])
                    if j != n and x.mn in ("s_branch", "s_endpgm"): break
                    pre.insert(0, x)
                j -= 1
            post = [I(x[1]) for x in out[lab[tgt]:lab[tgt]+40] if x[0] == 'i'][:24]
            for ci, c in enumerate(post):
                d = sum(x.ws for x in post[:ci])
                for p in reversed(pre):
                    if need(p, c) > d: errs.append(f"hazard across branch '{t}': {p.t} -> {c.t} (dist {d})")
                    d += p.ws
                    if d > 20: break
                if c.mn in ("s_branch", "s_endpgm"): break
    return out, errs

def render(lines):
    o = []
    for k, t in lines:
        o.append(t + ":" if k == 'l' else ("    " + t))
    return "\n".join(o) + "\n"

def interleave(main, fill, per=None, start=0):
    out = []; f = list(fill)
    n = len(main)
    if per is None: per = -(-len(f) // max(1, n - start))
    for i, m in enumerate(main):
        out.append(m)
        if i >= start:
            for _ in range(per):
                if f: out.append(f.pop(0))
    return out + f
```

```python
import sys, struct
from asmlib import *
NAME = "recurrent_scan__linear_attn_block__glu_gated_geglu__prompt"
OPT = dict(stamps=0, rot=2, prio=1, pfcode=1, spin=1<<17, thr=3, unthr=31, n7=5, n8=10, ca=14, cb=22, h=4, mix=1, sub=1,
           psleep=2, ydep=5, sdep=0, w2late=4, p2map=0, stage=0, sprio=1, ydelay=-1, sdelay=0, fdelay=0, rdelay=0, xlate=0, now2=0, sd=3, apoll=0, fgate=1, rt=1, zf=1, nr=0, r0=3, lred=0, prew=0, hints=0, comb=1, fafter=0, h16=0, gate=0, ffirst=0, warm=0, nodma=0, redearly=1, xz=1, gmix=0, qmix=0, qnop=0, bpos=0, rgap=3, spk=1)
for a in sys.argv[2:]:
    k, v_ = a.split("="); assert k in OPT, k; OPT[k] = int(v_, 0)
def f2u(x): return struct.unpack("<I", struct.pack("<f", x))[0]
def hx(x): return "0x%08x" % f2u(x)

SLOT = 49152; XW = 24576; UPOFF = 12288; MISC = 3*SLOT; LDS = 163840
RS = MISC; RR = MISC+3072; CF = MISC+3840; LF = MISC+5376
Q = 12288
WS_RS = 0x10000; WS_CS = 0x20000; WS_FLAG = 0x300000; WS_FF = 0x60000; WS_DBG = 0x80000; WS_F = 0xC0000; WS_KV = 0x100000; WS_H = 0x800000
X="s[36:39]"; W="s[40:43]"; WS="s[44:47]"; H="s[48:51]"; WD="s[56:59]"; WO="s[60:63]"; OUT="s[64:67]"
TAG="s10"
def v(b, n=1): return f"v{b}" if n == 1 else f"v[{b}:{b+n-1}]"
def mfma(d, a, b, c=None):
    return f"v_mfma_f32_32x32x16_bf16 {v(d,16)}, {v(a,4)}, {v(b,4)}, " + ("0" if c == 0 else v(d,16))
def mfmaH(d, a, b, c, alt):
    if not OPT["h16"]: return mfma(d, a, b, c)
    return mf16(d+8*alt, a, b, c) + "\n" + mf16(d+8*alt+4, a ^ 4, b, c)
def mf16(d, a, b, c=None):
    return f"v_mfma_f32_16x16x32_bf16 {v(d,4)}, {v(a,4)}, {v(b,4)}, " + ("0" if c == 0 else v(d,4))
def bc(r): return v(r & ~1, 2), r & 1
_lab = [0]
def L(p="L"):
    _lab[0] += 1; return f"{p}_{_lab[0]}"
A = Asm()
def E(lst):
    for t in lst: A(t)
def stamp(*pairs):
    for i, st in pairs:
        if OPT["stamps"] == st or (OPT["stamps"] and st == 0):
            A(f"{'s_memrealtime' if (OPT['rt'] and i != 8) else 's_memtime'} s[68:69]\ns_waitcnt lgkmcnt(0)\ns_mov_b32 s{92+i}, s68")
def note(reg, st):
    if OPT["stamps"] == st: A(f"s_mov_b32 s35, {reg}")
def srd(name, lo, size, add=0):
    b = int(name[2:4])
    if add: A(f"s_add_u32 s{b}, s{lo}, {add}\ns_addc_u32 s{b+1}, s{lo+1}, 0")
    else: A(f"s_mov_b32 s{b}, s{lo}\ns_mov_b32 s{b+1}, s{lo+1}")
    A(f"s_mov_b32 s{b+2}, {size}\ns_mov_b32 s{b+3}, 0x20000")
def spin_flag(vaddr, vt, nl, kind=None):
    l1, l2 = L("POLL"), L("POLLD")
    A(f"""s_mov_b32 s88, 0
s_mov_b64 exec, {hex((1<<nl)-1)}
{l1}:
s_and_b32 s87, s88, 7
s_lshl_b32 s87, s87, 7""")
    if kind: A(f"s_add_u32 s87, s87, {kind << 20}")
    A(f"""buffer_load_dword {v(vt)}, {v(vaddr)}, {WS}, s87 offen sc1
s_add_u32 s88, s88, 1
s_waitcnt vmcnt(0)
v_cmp_ne_u32 vcc, {TAG}, {v(vt)}
s_cmp_gt_u32 s88, {OPT['spin']}
s_cbranch_scc1 {l2}
s_cbranch_vccz {l2}
s_sleep {OPT['psleep']}
s_branch {l1}
{l2}:
s_mov_b64 exec, -1""")
def spin_lds(vaddr, vt, need=1):
    l1, l2 = L("LP"), L("LPD")
    A(f"""s_mov_b32 s86, 0
{l1}:
ds_read_b32 {v(vt)}, {v(vaddr)}
s_add_u32 s86, s86, 1
s_waitcnt lgkmcnt(0)
v_cmp_gt_u32 vcc, {need}, {v(vt)}
s_cmp_gt_u32 s86, {OPT['spin']*8}
s_cbranch_scc1 {l2}
s_cbranch_vccz {l2}
s_sleep 1
s_branch {l1}
{l2}:""")
def vmax(dst, regs_):
    o = []; r = list(regs_)
    if len(r) == 2: return [f"v_max_u32 v{dst}, v{r[0]}, v{r[1]}"]
    o.append(f"v_max3_u32 v{dst}, v{r[0]}, v{r[1]}, v{r[2]}"); r = r[3:]
    while r:
        if len(r) >= 2: o.append(f"v_max3_u32 v{dst}, v{dst}, v{r[0]}, v{r[1]}"); r = r[2:]
        else: o.append(f"v_max_u32 v{dst}, v{dst}, v{r[0]}"); r = r[1:]
    return o
def tagcheck(dst, tmp, regs_):
    for n, r in enumerate(regs_): A(f"v_xor_b32 v{dst if n == 0 else tmp+n}, {TAG}, v{r}")
    n = 1
    while n < len(regs_):
        if n+1 < len(regs_): A(f"v_or3_b32 v{dst}, v{dst}, v{tmp+n}, v{tmp+n+1}"); n += 2
        else: A(f"v_or_b32 v{dst}, v{dst}, v{tmp+n}"); n += 1

A(f"""s_cmp_ge_u32 s2, 256
s_cbranch_scc1 L_END
s_load_dwordx16 s[16:31], s[0:1], 0
s_load_dwordx2 s[32:33], s[0:1], 72""")
if OPT["stamps"]: A("s_memrealtime s[34:35]\ns_memtime s[68:69]")
A(f"""v_lshrrev_b32 v1, 6, v0
v_and_b32 v0, 63, v0
v_readfirstlane_b32 s3, v1
s_and_b32 s5, s2, 7
s_lshr_b32 s86, s2, 3""")
if OPT["p2map"] == 0:
    A("s_lshl_b32 s84, s5, 2\ns_lshr_b32 s87, s86, 3\ns_add_u32 s84, s84, s87\ns_and_b32 s85, s86, 7")
else:
    A("""s_lshr_b32 s84, s5, 1
s_lshl_b32 s84, s84, 3
s_lshr_b32 s87, s86, 2
s_add_u32 s84, s84, s87
s_and_b32 s85, s5, 1
s_lshl_b32 s85, s85, 2
s_and_b32 s87, s86, 3
s_add_u32 s85, s85, s87""")
A(f"""s_lshl_b32 s5, s5, 5
s_add_u32 s5, s5, s86
s_and_b32 s4, s3, 3
s_mov_b32 s12, 0
s_cmp_lt_u32 s5, 138
s_cbranch_scc0 L_BOT
s_mul_i32 s7, s5, 171
s_lshr_b32 s7, s7, 10
s_mul_i32 s86, s7, 6
s_sub_u32 s6, s5, s86
s_branch L_IDS
L_BOT:
s_cmp_ge_u32 s5, 253
s_cselect_b32 s12, 1, 0
s_cselect_b32 s86, 5, 0
s_sub_u32 s86, s5, s86
s_sub_u32 s86, s86, 138
s_mul_i32 s87, s86, 205
s_lshr_b32 s87, s87, 10
s_sub_u32 s7, 22, s87
s_mul_i32 s87, s87, 5
s_sub_u32 s6, s86, s87
s_add_u32 s6, s6, 6
L_IDS:
s_mov_b32 s90, s7""")
if OPT["mix"]:
    A("""s_mul_i32 s86, s7, 43
s_lshr_b32 s86, s86, 7
s_sub_u32 s87, s7, s86
s_lshl_b32 s88, s86, 1
s_sub_u32 s88, s87, s88
s_add_u32 s86, s86, 15
s_cmp_eq_u32 s7, 22
s_cselect_b32 s7, s86, s87
s_cmp_eq_u32 s88, 2
s_cselect_b32 s7, s86, s7""")
A(f"""s_mul_i32 s8, s6, 192
s_min_u32 s8, s8, 1856
s_mul_i32 s9, s7, 96
s_min_u32 s9, s9, 1280
s_cmp_lt_u32 s3, 4
s_cbranch_scc1 L_LOADER""")
def kwait():
    A("s_waitcnt lgkmcnt(0)\ns_load_dword s10, s[32:33], 0")
    if OPT["stamps"]: A("s_mov_b32 s92, s68")
    srd(X, 16, 2097152)
if OPT["prio"]: A(f"s_setprio {OPT['prio']}")
if OPT["pfcode"]:
    A(f"""s_getpc_b64 s[88:89]
L_PC:
s_sub_u32 s88, s88, L_PC-{NAME}_kernel
s_subb_u32 s89, s89, 0
s_lshr_b32 s86, s2, 3
s_lshl_b32 s86, s86, 3
s_lshl_b32 s87, s4, 1
s_add_u32 s86, s86, s87
v_and_b32 v3, 1, v0
v_add_u32 v3, s86, v3
v_lshlrev_b32 v3, 7, v3
v_min_u32 v3, L_END-{NAME}_kernel, v3
global_load_dword v47, v3, s[88:89]""")
A(f"""s_lshl_b32 s86, s5, 3
s_lshl_b32 s87, s4, 1
s_add_u32 s86, s86, s87
v_lshrrev_b32 v7, 5, v0
v_add_u32 v7, s86, v7
v_and_b32 v2, 31, v0
v_lshlrev_b32 v2, 4, v2
v_lshl_add_u32 v2, v7, 10, v2""")
kwait()
A(f"""buffer_load_dwordx4 v[8:11], v2, {X}, 0 offen
buffer_load_dwordx4 v[12:15], v2, {X}, 0 offen offset:512""")
stamp((1, 2))
A("s_branch L_COMPUTE\nL_LOADER:")

def w2addr(base, T, nat):
    a_, b_, c_, d_ = T, T+1, T+2, T+3
    A(f"""v_and_b32 v{a_}, 3, v0
v_bfe_u32 v{b_}, v0, 2, 2
v_bfe_u32 v{c_}, v0, 4, 1
v_lshrrev_b32 v{d_}, 5, v0
v_lshl_add_u32 v{d_}, v{d_}, {3 if nat else 2}, v{b_}
v_lshlrev_b32 v{d_}, 7, v{d_}
v_lshrrev_b32 v{b_}, 1, v{b_}
v_lshl_add_u32 v{c_}, v{b_}, 2, v{c_}
v_and_b32 v{b_}, 1, v{a_}
v_lshl_add_u32 v{c_}, v{b_}, 1, v{c_}
v_lshl_add_u32 v{d_}, v{c_}, 4, v{d_}
v_lshrrev_b32 v{a_}, 1, v{a_}
v_lshl_add_u32 v{d_}, v{a_}, 3, v{d_}
v_add_u32 v{base}, s76, v{d_}
v_xor_b32 v{d_}, 64, v{d_}
v_add_u32 v{base+1}, s76, v{d_}
v_add_u32 v{base+2}, {2*SLOT}, v{base}
v_add_u32 v{base+3}, {2*SLOT}, v{base+1}""")
def w2read(dst, slot, blk, ab, nat=True):
    o = []
    for c in range(2):
        for sec in range(2):
            ar = ab + c + (2 if slot == 2 else 0)
            off = (SLOT if slot == 1 else 0) + blk*2048 + sec*(512 if nat else 1024)
            o.append(f"ds_read_b64_tr_b16 {v(dst+4*c+2*sec,2)}, v{ar} offset:{off}")
    return o
def xres_addr(half, T):
    A(f"""s_lshr_b32 s86, s4, 1
s_lshl_b32 s86, s86, 5
s_lshl_b32 s87, s84, 6
s_add_u32 s86, s86, s87
s_lshl_b32 s86, s86, 10
s_lshl_b32 s87, s85, 7
s_add_u32 s86, s86, s87
s_and_b32 s87, s4, 1
s_lshl_b32 s87, s87, 6
s_add_u32 s86, s86, s87
s_add_u32 s86, s86, {16*half}
v_and_b32 v{T}, 31, v0
v_lshlrev_b32 v{T}, 10, v{T}
v_lshrrev_b32 v{T+1}, 5, v0
v_lshl_add_u32 v{T}, v{T+1}, 5, v{T}
v_add_u32 v1, s86, v{T}""")
def xres_load(late=0):
    if OPT["xlate"] == late: A(f"buffer_load_dwordx4 v[12:15], v1, {X}, 0 offen")
def p2setup():
    srd(WS, 32, 0x800000); srd(H, 32, 118*65536, WS_H); srd(WD, 28, 1376*1024); srd(WO, 20, 512*1024); srd(OUT, 30, 2097152)
    A(f"""v_lshrrev_b32 v24, 3, v0
v_lshlrev_b32 v24, 10, v24
v_and_b32 v25, 7, v0
v_bfe_u32 v26, v0, 4, 1
v_lshlrev_b32 v26, 2, v26
v_xor_b32 v25, v25, v26
v_lshl_add_u32 v24, v25, 4, v24
s_lshl_b32 s86, s85, 7
v_add_u32 v4, s86, v24
s_mul_i32 s87, s4, {3*16384}
v_add_u32 v2, s87, v4
s_add_u32 s87, s4, 84
s_lshl_b32 s87, s87, 14
v_add_u32 v3, s87, v4
s_lshl_b32 s87, s4, 17
v_add_u32 v4, s87, v4
s_mul_i32 s76, s4, {Q}
s_lshl_b32 s87, s84, 11
s_mul_i32 s86, s4, {3*65536}
s_add_u32 s86, s86, s87
v_lshl_add_u32 v6, v0, 4, s86
v_bfe_u32 v24, v0, 1, 3
v_lshlrev_b32 v24, 3, v24
s_lshr_b32 s86, s4, 1
s_lshl_b32 s86, s86, 2
s_and_b32 s90, s4, 1
s_add_u32 s86, s86, s90
v_add_u32 v24, s86, v24
v_min_u32 v24, 57, v24
v_cmp_eq_u32 vcc, 56, v24
v_cndmask_b32 v24, v24, 57, vcc
v_and_b32 v25, 1, v0
v_lshl_add_u32 v24, v25, 1, v24
s_lshl_b32 s86, s4, 3
s_add_u32 s86, s86, 44
v_add_u32 v25, s86, v0
v_cmp_lt_u32 vcc, 15, v0
v_cndmask_b32 v24, v24, v25, vcc
s_mul_i32 s86, s84, 43
s_lshr_b32 s86, s86, 7
s_mul_i32 s86, s86, {23*4096}
s_add_u32 s86, s86, {WS_FLAG}
v_lshl_add_u32 v5, v24, 10, s86
s_add_u32 s86, s4, 84
s_lshl_b32 s86, s86, 16
s_add_u32 s86, s86, s87
s_cmp_lt_u32 s4, 2
s_cselect_b32 s86, s86, 0x80000000
v_lshl_add_u32 v7, v0, 4, s86""")
    w2addr(8, 24, True); xres_addr(0, 24)
    A(f"s_waitcnt lgkmcnt(0)\ns_add_u32 {TAG}, {TAG}, 0x9E3779B9")
def wfrag_addr(dst, swc, T, lab):
    A(f"""v_and_b32 v{T}, 3, v0
v_bfe_u32 v{T+1}, v0, 2, 2
v_bfe_u32 v{T+2}, v0, 4, 1
s_cmp_ge_u32 s7, 15
s_cbranch_scc1 {lab}Q
v_lshrrev_b32 v{T+3}, 4, v0
v_lshl_add_u32 v{T+3}, v{T+3}, 3, v{T+1}
v_mul_u32_u24 v{T+3}, 192, v{T+3}
v_lshl_add_u32 v{T}, v{T}, 3, v{T+3}
v_add_u32 v{T}, {XW}, v{T}
s_mul_i32 s87, {swc}, 3
v_xor_b32 v{T+3}, s87, v{T+2}
v_lshl_add_u32 v{dst}, v{T+3}, 5, v{T}
s_add_u32 s87, s87, 1
v_xor_b32 v{T+3}, s87, v{T+2}
v_lshl_add_u32 v{dst+1}, v{T+3}, 5, v{T}
s_branch {lab}D
{lab}Q:
v_lshrrev_b32 v{T+3}, 5, v0
v_mul_u32_u24 v{T+3}, 3072, v{T+3}
v_lshl_add_u32 v{T+3}, v{T+1}, 7, v{T+3}
v_mul_u32_u24 v{T+4}, {UPOFF+32}, v{T+2}
v_lshrrev_b32 v{T+1}, 1, v{T+1}
v_xor_b32 v{T+1}, {swc}, v{T+1}
v_lshl_add_u32 v{T+4}, v{T+1}, 6, v{T+4}
v_lshl_add_u32 v{T}, v{T}, 3, v{T+3}
v_add_u32 v{T}, {XW}, v{T}
v_add_u32 v{dst}, v{T}, v{T+4}
v_xor_b32 v{dst+1}, 32, v{dst}
{lab}D:""")
def woff(role, s_, j, sec):
    if role == 'G':
        jj = j % 3
        return jj & 1, s_*6144 + sec*768 + (j//3)*UPOFF + (64 if jj == 2 else 0)
    return j & 1, s_*6144 + (j//2)*1024 + sec*512
def ksoff(kd): return 12*(kd % 7) + kd//7
NR = OPT["nr"]
S2R = [('o',6+k,2,4+k) for k in range(2)] + [('d',12+k,2,k) for k in range(4)]
S0R = [('d',16+k,0,k) for k in range(6)]; S1R = [('o',k,1,k) for k in range(6)]
rawA = [('d', k, 96+8*k) for k in range(6)]; rawB = [('d', 6+k, 144+8*k) for k in range(6)]
if NR == 18:
    rawitems = [('o', k, 192+8*k) for k in range(6)] + rawA + rawB; items = S2R + S0R
    post = ["bA", "bB", "wO", ("fwo", 2)]
elif NR == 12:
    rawitems = rawA + rawB; items = S2R + S0R + S1R
    post = ["bA", "bB"] + list(range(12, 18)) + [("fwo", 18)]
elif NR == 6:
    rawitems = rawB; items = [('d',k,2,k) for k in range(6)] + S0R + S1R + S2R
    post = ["bB", 12, 13, ("cp", 96, 2, 6), 14, 15, 16, 17, 18, 19, 20, 21, 22, ("fwo", 20), 23]
else:
    rawitems = []; items = [('d',k,2,k) for k in range(6)] + [('d',6+k,0,k) for k in range(6)] + S1R + S2R + S0R
    post = [12, 13, ("cp", 96, 2, 6)] + list(range(14, 22)) + [("cp", 144, 0, 12), 22, ("fwo", 20)] + list(range(23, 30))
N7, N8 = OPT["n7"], OPT["n8"]
def rawload(it):
    kind, k, reg = it
    va, kk, S_ = ((2, ksoff(k), WD) if k < 21 else (3, 0, WD)) if kind == 'd' else (4, k, WO)
    A(f"""s_mov_b32 s86, {kk*16384}
s_mov_b32 s87, {kk*16384 + 8192}
buffer_load_dwordx4 {v(reg,4)}, v{va}, {S_}, s86 offen
buffer_load_dwordx4 {v(reg+4,4)}, v{va}, {S_}, s87 offen""")
def rawblocks():
    if not NR: return
    steps = list(range(OPT["r0"], 6)); n = len(steps)
    for i, st in enumerate(steps):
        sk = L("RW")
        A(f"s_cmp_eq_u32 s83, {st}\ns_cbranch_scc0 {sk}")
        for it in rawitems[NR*i//n : NR*(i+1)//n]: rawload(it)
        A.label(sk)
def w2item(n, thr=None):
    if OPT["now2"]: return
    kind, k, slot, blk = items[n]
    tw = f"s_waitcnt vmcnt({thr})\n" if thr is not None else ""
    A(f"s_add_u32 m0, s76, {slot*SLOT + blk*2048}")
    va, kk, S_ = ((2, ksoff(k), WD) if k < 21 else (3, 0, WD)) if kind == 'd' else (4, k, WO)
    A(f"""s_mov_b32 s86, {kk*16384}
s_mov_b32 s87, {kk*16384 + 7168}
{tw}buffer_load_dwordx4 v{va}, {S_}, s86 offen lds
{tw}buffer_load_dwordx4 v{va}, {S_}, s87 offen offset:1024 lds""")

A(f"""s_cmp_ge_u32 s3, 2
s_cbranch_scc1 L_SIDE
s_add_u32 s79, s6, s90""")
R_ = OPT["rot"]
A(f"s_and_b32 s79, s79, {R_-1}\ns_lshl_b32 s79, s79, { {1:0, 2:2, 4:1, 8:0}[R_] }")
A(f"""v_lshrrev_b32 v24, 3, v0
v_and_b32 v25, 7, v0
v_lshrrev_b32 v26, 4, v0
v_xor_b32 v27, v25, v26
s_mul_i32 s86, s4, 96
s_add_u32 s86, s86, s8
s_lshl_b32 s86, s86, 10
v_lshl_add_u32 v16, v24, 10, s86
v_lshl_add_u32 v16, v27, 4, v16
v_xor_b32 v17, 64, v16
v_add_u32 v18, {2*7168}, v16
v_add_u32 v19, {3*7168}, v17
v_add_u32 v17, 7168, v17
s_mul_i32 s74, s4, 12288
s_mul_i32 s75, s4, {UPOFF}
s_add_u32 s75, s75, {XW}
s_mov_b32 s43, 0x20000
s_mov_b32 s78, 0
s_cmp_ge_u32 s7, 15
s_cbranch_scc1 L_LQKV
s_mov_b32 s42, {512*2752}
s_mov_b32 s82, {16*2752}
s_movk_i32 s86, 0x1556
s_movk_i32 s87, 2752
s_lshl_b32 s88, s9, 1
s_cmp_eq_u32 s7, 14
s_cselect_b32 s89, {8 if OPT['zf'] else 0}, 0
s_cmp_eq_u32 s12, 1
s_cselect_b32 s89, {12 if OPT['zf'] else 0}, s89
v_mov_b32 v28, 0x80000000""")
for i in range(3):
    A(f"""v_add_u32 v24, {64*i}, v0
v_mul_u32_u24 v25, s86, v24
v_lshrrev_b32 v25, 16, v25
v_mul_u32_u24 v26, 12, v25
v_sub_u32 v24, v24, v26
v_lshrrev_b32 v26, 2, v25
v_and_b32 v26, 2, v26
v_xor_b32 v24, v24, v26
v_cmp_gt_u32 vcc, s89, v24
v_mul_u32_u24 v25, s87, v25
v_lshl_add_u32 v24, v24, 4, v25
v_add_u32 v24, s88, v24
v_subrev_u32 v24, {1024*i}, v24
v_cndmask_b32 v{20+i}, v24, v28, vcc""")
A(f"""s_branch L_LGO
L_LQKV:
s_mov_b32 s42, {512*3072}
s_mov_b32 s82, {16*3072}
s_sub_u32 s87, s7, 15
s_lshl_b32 s87, s87, 7
s_mul_i32 s88, s4, {8*3072}
s_add_u32 s87, s87, s88
v_mul_u32_u24 v24, 3072, v24
v_and_b32 v26, 1, v26
v_lshlrev_b32 v26, 2, v26
v_xor_b32 v25, v25, v26
s_lshl_b32 s88, s4, 1
v_xor_b32 v25, s88, v25
v_lshl_add_u32 v20, v25, 4, v24
v_add_u32 v20, s87, v20
v_mov_b32 v21, v20
v_mov_b32 v22, v20
L_LGO:""")
XG = ["s70", "s71", "s72"]; WL = ["s52", "s53", "s54", "s55"]; WG = ["s73", "s77", "s14", "s15"]
sh = {2: 1, 4: 2, 8: 0, 1: 0}[R_]
if OPT["sub"]:
    A(f"""s_lshr_b32 s86, s90, {sh}
s_mul_i32 s87, s86, 43
s_lshr_b32 s87, s87, 7
s_mul_i32 s87, s87, 3
s_sub_u32 s86, s86, s87
s_lshr_b32 s87, s6, {sh}""")
else:
    A("s_mov_b32 s86, 0\ns_mov_b32 s87, 0")
A("""s_lshl_b32 s70, s86, 12
s_add_u32 s71, s70, 4096
s_cmp_eq_u32 s71, 12288
s_cselect_b32 s71, 0, s71
s_add_u32 s72, s70, s71
s_sub_u32 s72, 12288, s72""")
XN = ["s11", "s13", "s91"]
A(f"s_lshl_b32 s86, s4, 4\ns_add_u32 s86, s86, s6\ns_cmp_eq_u32 s86, 10\ns_cselect_b32 s88, {8192 if OPT['xz'] else 0}, 0\ns_cmp_eq_u32 s12, 1\ns_cselect_b32 s88, {65536 if OPT['xz'] else 0}, s88")
for g in range(3): A(f"s_cmp_lt_u32 {XG[g]}, s88\ns_cselect_b32 {XN[g]}, 0, 2097152")
for g in range(4):
    A(f"s_add_u32 s86, s87, {g}\ns_and_b32 s86, s86, 3\ns_mul_i32 {WL[g]}, s86, 3072\ns_mul_i32 {WG[g]}, s86, s82")
kwait()
A(f"""s_cmp_eq_u32 s4, 1
s_cselect_b32 s40, s26, s24
s_cselect_b32 s41, s27, s25
s_cmp_ge_u32 s7, 15
s_cselect_b32 s40, s18, s40
s_cselect_b32 s41, s19, s41""")
stamp((1, 2))
def issue_head():
    A(f"""s_lshl_b32 s80, s79, 7
s_mul_i32 s81, s79, s82
s_lshl_b32 s81, s81, 2
s_add_u32 s88, s78, s74
s_add_u32 s89, s78, s75""")
ORDER = ["x0", "w0", "x1", "w1", "x2", "w2", "w3"]
def issue_part(lo, hi):
    n = 0
    for it in ORDER[lo:hi]:
        g = int(it[1])
        if it[0] == 'x':
            A(f"s_add_u32 m0, s88, {XG[g]}\ns_lshl3_add_u32 s86, {XG[g]}, s80\ns_mov_b32 s38, {XN[g]}")
            for q in range(4): A(f"buffer_load_dwordx4 v{16+q}, {X}, s86 offen offset:{1024*q} lds")
            n += 4
        else:
            A(f"s_add_u32 m0, s89, {WL[g]}\ns_add_u32 s87, s81, {WG[g]}")
            for j in range(3): A(f"buffer_load_dwordx4 v{20+j}, {W}, s87 offen offset:{1024*j} lds")
            n += 3
    return n
def issue_tail():
    A(f"""s_add_u32 s79, s79, 1
s_and_b32 s79, s79, 7
s_add_u32 s78, s78, {SLOT}
s_cmp_eq_u32 s78, {3*SLOT}
s_cselect_b32 s78, 0, s78""")
HH = OPT["h"]
issue_head(); issue_part(0, 7); issue_tail()
stamp((2, 2))
issue_head(); n_ = issue_part(0, HH)
p2setup()
A(f"s_waitcnt vmcnt({n_})")
stamp((1, 1), (3, 2))
A("s_barrier\ns_mov_b32 s83, 0\nL_LLOOP:")
rawblocks()
if OPT['nodma']: issue_tail(); issue_head()
else: issue_part(HH, 7); issue_tail(); issue_head(); issue_part(0, HH)
A(f"""s_add_u32 s83, s83, 1
s_waitcnt vmcnt({n_})
s_barrier
s_cmp_lt_u32 s83, 6
s_cbranch_scc1 L_LLOOP""")
stamp((2, 1), (4, 2))
issue_part(HH, 7)
A("s_mov_b32 s38, 2097152")
for n in range(N7): w2item(n)
A(f"s_waitcnt vmcnt({2*N7})\ns_barrier")
stamp((5, 2))
for n in range(N7, N8): w2item(n)
A("s_barrier\ns_branch L_W2")

def f_addr(dst):
    A(f"""s_sub_u32 s86, s7, 15
s_lshl_b32 s86, s86, 12
s_and_b32 s87, s6, 1
s_lshl_b32 s87, s87, 11
s_add_u32 s86, s86, s87
s_and_b32 s87, s6, 2
s_lshl_b32 s87, s87, 9
s_add_u32 s86, s86, s87
s_lshr_b32 s87, s6, 2
s_lshl_b32 s87, s87, 9
s_add_u32 s86, s86, s87
s_lshl1_add_u32 s91, s86, {WS_FF}
s_add_u32 s86, s86, {WS_F}
v_lshl_add_u32 v{dst}, v0, 4, s86""")
assert OPT["rot"] in (2, 4, 8)
A(f"""L_SIDE:
s_add_u32 s13, s6, s90
s_and_b32 s13, s13, {OPT['rot']-1}
s_lshl_b32 s13, s13, { {2:2, 4:1, 8:0}[OPT['rot']] }
s_lshr_b32 s14, s6, { {2:1, 4:2, 8:3}[OPT['rot']] }
s_add_u32 s15, s13, s14
s_cmp_ge_u32 s6, 8
s_cselect_b32 s14, 99, s14
s_cmp_eq_u32 s12, 1
s_cselect_b32 s14, 99, s14
s_and_b32 s77, s4, 1""")
wfrag_addr(62, "s77", 24, "L_SA")
A(f"""s_cmp_eq_u32 s14, 1
s_cselect_b32 s86, {SLOT}, 0
s_cmp_eq_u32 s14, 2
s_cselect_b32 s86, {2*SLOT}, s86
v_add_u32 v62, s86, v62
v_add_u32 v63, s86, v63
v_and_b32 v24, 16, v0
v_cmp_ne_u32 s[72:73], 0, v24
v_and_b32 v24, 31, v0
s_mul_i32 s86, s77, 768
s_add_u32 s86, s86, {CF}
v_lshl_add_u32 v17, v24, 3, s86
s_mul_i32 s87, s77, 96
v_add_u32 v21, s87, v0
v_add3_u32 v22, v24, s87, 64
s_lshl_b32 s86, s8, 4
s_add_u32 s86, s86, {WS_RS}
v_lshl_add_u32 v19, v21, 4, s86
v_lshl_add_u32 v20, v22, 4, s86
s_lshl_b32 s86, s7, 13
s_lshl_b32 s87, s77, 9
s_add_u32 s86, s86, s87
s_add_u32 s86, s86, {WS_CS}
s_lshl_b32 s87, s15, 10
s_add_u32 s74, s86, s87
v_lshlrev_b32 v23, 4, v24
v_lshrrev_b32 v25, 5, v0
v_lshl_add_u32 v18, v25, 12, v23
v_add_u32 v18, s86, v18""")
for r in range(52, 56): A(f"v_mov_b32 v{r}, 0x3f803f80")
kwait()
p2setup()
A(f"""s_cmp_lt_u32 s7, 15
s_cbranch_scc1 L_NOCLR
s_cmp_ge_u32 s6, 8
s_cbranch_scc1 L_NOCLR""")
f_addr(24)
A(f"""v_mov_b32 v28, -1
v_mov_b32 v29, -1
v_mov_b32 v30, -1
v_mov_b32 v31, -1
s_mov_b32 exec_hi, 0
buffer_store_dwordx4 v[28:31], v24, {WS}, 0 offen sc1
s_mov_b32 exec_hi, -1""")
if OPT["prew"]: A(f"s_sub_u32 s86, {TAG}, 1\nv_mov_b32 v32, s86\nv_lshlrev_b32 v24, 4, v0\nbuffer_store_dwordx4 v[32:35], v24, {WS}, s91 offen sc1")
A(f"""L_NOCLR:
s_mov_b32 s83, 0
s_waitcnt vmcnt(0)
L_SLOOP:
s_barrier""")
if OPT["w2late"] >= 0:
    A(f"""s_cmp_eq_u32 s83, {OPT['w2late']}
s_cbranch_scc0 L_NOPF2
s_mul_i32 s86, s5, 59
s_mul_i32 s87, s77, 30
s_add_u32 s86, s86, s87
v_min_u32 v16, 29, v0
v_add_u32 v16, s86, v16
v_lshlrev_b32 v16, 7, v16
buffer_load_dword v60, v16, {WD}, 0 offen
v_subrev_u32 v16, {1376*1024}, v16
buffer_load_dword v61, v16, {WO}, 0 offen
L_NOPF2:""")
A("s_cmp_eq_u32 s83, s14\ns_cbranch_scc0 L_LNOCS")
for t in range(2):
    A(f"s_cmp_ge_u32 s7, 15\ns_cbranch_scc1 L_CSQ{t}")
    for role in "GQ":
        if role == 'Q': A(f"s_branch L_CSM{t}\nL_CSQ{t}:")
        for j in range(6):
            for sec in range(2):
                par, off = woff(role, t, j, sec)
                A(f"ds_read_b64_tr_b16 {v(24+4*j+2*sec,2)}, v{62+par} offset:{off}")
    A(f"L_CSM{t}:\ns_waitcnt lgkmcnt(0)")
    for j in range(6): A(mf16(72+4*j, 52, 24+4*j, 0 if t == 0 else None))
A(f"v_mov_b32 v51, {TAG}")
for u in range(3): A(f"v_cndmask_b32 v{48+u}, v{72+4*u}, v{84+4*u}, s[72:73]")
A(f"""s_mov_b32 exec_hi, 0
buffer_store_dwordx4 v[48:51], v23, {WS}, s74 offen sc1
s_mov_b32 exec_hi, -1
L_LNOCS:""")
rawblocks()
A(f"""s_add_u32 s83, s83, 1
s_cmp_lt_u32 s83, 6
s_cbranch_scc1 L_SLOOP""")
def st_loads():
    for p in range(4): A(f"buffer_load_dwordx4 {v(32+4*p,4)}, v18, {WS}, 0 offen offset:{1024*p} sc1")
    A(f"buffer_load_dwordx4 v[48:51], v19, {WS}, 0 offen sc1\nbuffer_load_dwordx4 v[52:55], v20, {WS}, 0 offen sc1")
st_loads()
A("s_barrier")
stamp((2, 1), (4, 2))
for n in range(N7): w2item(n)
A(f"s_mov_b32 s88, 0\ns_waitcnt vmcnt({2*N7})\ns_barrier")
stamp((5, 2))
A("L_SPC:")
tagcheck(24, 24, [35+4*p for p in range(6)])
A(f"""v_cmp_ne_u32 vcc, 0, v24
s_add_u32 s88, s88, 1
s_cmp_gt_u32 s88, {OPT['spin']}
s_cbranch_scc1 L_SPCD
s_cbranch_vccz L_SPCD""")
st_loads()
A(f"""s_waitcnt vmcnt(0)
s_branch L_SPC
L_SPCD:
s_mov_b32 s86, {RS}
s_mov_b32 s87, {RR}
v_lshl_add_u32 v24, v21, 4, s86
v_lshl_add_u32 v25, v22, 4, s86
v_lshl_add_u32 v21, v21, 2, s87
v_lshl_add_u32 v22, v22, 2, s87
ds_write_b128 v24, v[48:51]
ds_write_b128 v25, v[52:55]
ds_write_b32 v21, v49
ds_write_b32 v22, v53""")
note("s88", 2)
for p in range(1, 4):
    for u in range(3): A(f"v_add_f32 v{32+u}, v{32+u}, v{32+4*p+u}")
for u in range(3): A(f"v_mov_b32 v{36+u}, v{32+u}")
for u in range(3): A(f"v_permlane32_swap_b32 v{32+u}, v{36+u}")
for u in range(3): A(f"v_add_f32 v{32+u}, v{32+u}, v{36+u}")
for u in range(3): A(f"v_and_b32 v{36+u}, 0xffff0000, v{32+u}")
for u in range(3): A(f"v_sub_f32 v{32+u}, v{32+u}, v{36+u}")
for u in range(3): A(f"v_and_b32 v{40+u}, 0xffff0000, v{32+u}")
for u in range(3): A(f"v_sub_f32 v{32+u}, v{32+u}, v{40+u}")
for u in range(3): A(f"v_lshrrev_b32 v{36+u}, 16, v{36+u}")
for u in range(3): A(f"v_or_b32 v{56+2*u}, v{36+u}, v{40+u}\nv_lshrrev_b32 v{57+2*u}, 16, v{32+u}")
for u in range(3): A(f"ds_write_b64 v17, {v(56+2*u,2)} offset:{256*u}")
A("s_waitcnt lgkmcnt(0)\ns_barrier")
for n in range(N7, N8): w2item(n)

A("L_W2:")
stamp((3, 1), (6, 2))
AB = 8
A(f"v_lshlrev_b32 v16, 4, v0\nv_add_u32 v16, s76, v16")
def wr(reg, slot, blk):
    off = slot*SLOT + blk*2048
    A(f"ds_write_b128 v16, {v(reg,4)} offset:{off}\nds_write_b128 v16, {v(reg+4,4)} offset:{off+1024}")
def rd6(base, sl):
    for kk in range(6):
        E(w2read(base+8*kk, sl, kk, AB))
        if kk % 3 == 2: A("s_waitcnt lgkmcnt(0)")
nis = N8
for op in list(range(N8, 12)) + post:
    if isinstance(op, int):
        assert op == nis; nis += 1
        w2item(op, OPT["thr"] if (OPT["thr"] and op < OPT["unthr"]) else None)
    elif op in ("bA", "bB"):
        base = 96 if op == "bA" else 144
        for kk in range(6): wr(base+8*kk, 1, kk)
        A("s_waitcnt lgkmcnt(0)"); rd6(base, 1)
    elif op == "wO":
        for kk in range(6): wr(192+8*kk, 1, kk)
    elif op[0] == "cp":
        A(f"s_waitcnt vmcnt({2*(nis-op[3])})"); rd6(op[1], op[2])
    elif op[0] == "fwo":
        A(f"""s_lshl_b32 s86, s4, 2
s_add_u32 s86, s86, {LF}
v_mov_b32 v18, s86
v_mov_b32 v17, 1
s_waitcnt vmcnt({2*(nis-op[1])}) lgkmcnt(0)
ds_write_b32 v18, v17""")
def reducer(CTr, va, vf, vc, msk, sz, pairbase):
    A(f"""s_lshr_b32 s79, s6, 1
s_lshl_b32 s86, s79, 8
s_add_u32 s86, s86, {pairbase}
v_lshrrev_b32 v{va}, 4, v0
v_mul_u32_u24 v{va}, 3072, v{va}
v_and_b32 v{vc}, 15, v0
v_lshl_add_u32 v{va}, v{vc}, 4, v{va}
v_add_u32 v{va}, s86, v{va}""")
    for j in range(12): A(f"v_mov_b32 v{CTr(5)+j}, " + (TAG if j % 4 == 3 else "0"))
    f_addr(vf)
    A(f"""v_lshrrev_b32 v24, 1, v0
v_mul_u32_u24 v24, 92, v24
v_and_b32 v25, 1, v0
v_lshl_add_u32 v24, v25, 1, v24
s_lshl_b32 s86, s7, 2
s_and_b32 s87, s6, 1
s_add_u32 s86, s86, s87
s_lshl_b32 s86, s86, 10
s_add_u32 s86, s86, {WS_FLAG}
v_lshl_add_u32 v24, v24, 10, s86""")
    if OPT["hints"]: spin_flag(24, 25, 22, 0)
    stamp((4, 3))
    A("s_mov_b32 s88, 0\nL_KVC:")
    for p in range(6):
        A(f"s_mov_b32 s86, {12288*p}")
        if p == 5: A("s_mov_b32 exec_hi, 0")
        for g_ in range(3): A(f"buffer_load_dwordx4 {v(CTr(p)+4*g_,4)}, v{va}, {WS}, s86 offen offset:{1024*g_} sc1")
    A("s_mov_b32 exec_hi, -1\ns_waitcnt vmcnt(0)")
    if OPT["redearly"] and not OPT["lred"]:
        A("s_cmp_lg_u32 s88, 0\ns_cbranch_scc1 L_NOFL"); flagstore(2); A("L_NOFL:")
    tagcheck(vc, 60, [CTr(n//3)+4*(n%3)+3 for n in range(18)])
    A(f"""v_cmp_ne_u32 vcc, 0, v{vc}
s_add_u32 s88, s88, 1
s_cmp_gt_u32 s88, {OPT['spin']}
s_cbranch_scc1 L_KVD
s_cbranch_vccnz L_KVC
L_KVD:""")
    note("s88", 3)
    rr = lambda p, j: CTr(p) + 4*(j//3) + j % 3
    for j in range(9): A(f"v_add_f32 v{24+j}, v{rr(0,j)}, v{rr(1,j)}")
    for p in range(2, 6):
        for j in range(9): A(f"v_add_f32 v{24+j}, v{24+j}, v{rr(p,j)}")
    for sw in (16, 32):
        for j in range(9): A(f"v_mov_b32 v{36+j}, v{24+j}")
        for j in range(9): A(f"v_permlane{sw}_swap_b32 v{24+j}, v{36+j}")
        for j in range(9): A(f"v_add_f32 v{24+j}, v{24+j}, v{36+j}")
    A(f"""s_lshr_b32 s86, s79, 1
s_lshl_b32 s86, s86, 3
s_add_u32 s87, s86, 2
s_add_u32 s88, s86, 4
s_add_u32 s89, s86, 6
v_mov_b32_dpp v33, v32 row_shl:1 row_mask:0xf bank_mask:0xf""")
    for j in range(4): A(f"v_cvt_pk_bf16_f32 v{36+j}, v{24+2*j}, v{25+2*j}")
    A(f"""v_cvt_pk_bf16_f32 v33, v32, v33
s_bitcmp1_b32 s79, 0
s_cselect_b64 s[80:81], -1, 0
s_xor_b64 s[80:81], s[80:81], {msk}""")
    for j in range(4): A(f"v_readlane_b32 s{sz+j}, v33, s{86+j}")
    for j in range(4): A(f"v_mov_b32 v{40+j}, s{sz+j}")
    for j in range(4): A(f"v_cndmask_b32 v{44+j}, v{36+j}, v{40+j}, s[80:81]")
    A(f"""s_mov_b32 exec_hi, 0
buffer_store_dwordx4 v[44:47], v{vf}, {WS}, 0 offen sc1
s_mov_b32 exec_hi, -1""")
    for j in range(4): A(f"v_mov_b32 v{24+j}, {TAG}")
    if OPT["hints"]: A(f"v_lshlrev_b32 v28, 4, v0\nbuffer_store_dwordx4 v[24:27], v28, {WS}, s91 offen sc1")
    stamp((5, 3))
if OPT["lred"]:
    A(f"""s_cmp_lg_u32 s3, 3
s_cbranch_scc1 L_NORED
s_cmp_lt_u32 s7, 15
s_cbranch_scc1 L_NORED
s_cmp_ge_u32 s6, 8
s_cbranch_scc1 L_NORED
s_setprio 2
s_sub_u32 s87, s7, 15
s_lshl_b32 s87, s87, 1
s_and_b32 s86, s6, 1
s_add_u32 s87, s87, s86
s_mul_i32 s77, s87, {24*3072}
s_add_u32 s77, s77, {WS_KV}""")
    reducer(lambda p: 192+12*p if p < 5 else 80, 19, 20, 21, "s[72:73]", 52, "s77")
    A("s_setprio 0\nL_NORED:")
xres_load()
stamp((4, 1), (1, 3), (1, 4))
STG = OPT["stage"]
if OPT["gate"]:
    A(f"v_mov_b32 v16, {LF+32}"); spin_lds(16, 17, OPT["gate"])
if OPT["ydelay"] >= 0:
    A(f"s_lshl_b32 s86, s4, 2\ns_add_u32 s86, s86, {LF+16}\nv_mov_b32 v16, s86")
    spin_lds(16, 17)
    if OPT["ydelay"]: A(f"s_sleep {OPT['ydelay']}")
spin_flag(5, 3, 24 if OPT["comb"] else 16, 0 if STG else 2)
if OPT["comb"]:
    assert not STG
    A(f"s_lshl_b32 s86, s4, 2\ns_add_u32 s86, s86, {LF+48}\nv_mov_b32 v2, s86\nv_mov_b32 v3, 1\nds_write_b32 v2, v3")
note("s88", 4)
stamp((5, 1), (2, 3), (2, 4))
def hload(kd):
    va, kk = (6, ksoff(kd)) if kd < 21 else (7, 0)
    b = 16 + 8*(kd % 8)
    return [f"s_mov_b32 s86, {kk*65536}",
            f"buffer_load_dwordx4 {v(b,4)}, v{va}, {H}, s86 offen sc1",
            f"buffer_load_dwordx4 {v(b+4,4)}, v{va}, {H}, s86 offen offset:1024 sc1"]
res_loc = lambda kd: (2, kd-12) if kd < 16 else (0, kd-16)
YD = OPT["ydep"]; assert YD <= 7
for kd in range(YD): E(hload(kd))
for kd in range(22):
    wf = 96+8*kd if kd < 12 else 80+8*(kd & 1)
    hb = 16 + 8*(kd % 8)
    if STG and kd+YD in (7, 14):
        c = (kd+YD)//7
        spin_flag(5, 3, 16, c)
    A(f"s_waitcnt vmcnt({2*(min(kd+YD-1, 21)-kd)})" + (" lgkmcnt(0)" if kd >= 12 else ""))
    ms = [mfmaH(192+32*r+16*c, wf+4*c, hb+4*r, 0 if kd <= OPT['h16'] else None, kd & 1) for r in range(2) for c in range(2)]
    fill = []
    if kd+YD < 22: fill += hload(kd+YD)
    if 12 <= kd+1 < 22: fill += w2read(80+8*((kd+1) & 1), *res_loc(kd+1), AB)
    E(interleave(ms, fill, 3))
    if kd == 0: stamp((3, 4))
    if kd == 10: stamp((4, 4))
stamp((6, 1), (3, 3), (5, 4))
def final(isy):
    xres_load(1)
    A(f"""v_lshlrev_b32 v2, 4, v0
v_add_u32 v3, s76, v2
v_add_u32 v4, {2*SLOT + (0 if isy else 8192)}, v3""")
    for q in range(4):
        for jq in range(4):
            if q < 3: A(f"ds_write_b128 v3, {v(192+16*q+4*jq,4)} offset:{(0 if isy else SLOT) + q*4096 + jq*1024}")
            else: A(f"ds_write_b128 v4, {v(192+16*q+4*jq,4)} offset:{jq*1024}")
    A(f"""s_lshl_b32 s87, s4, 12
s_add_u32 s86, s87, {SLOT}
s_cmp_eq_u32 s4, 3
s_cselect_b32 s86, {2*SLOT+8192}, s86
s_cselect_b32 s87, {2*SLOT}, s87
s_add_u32 s86, s86, {0 if isy else 2048}
s_add_u32 s87, s87, {0 if isy else 2048}
v_add_u32 v3, s87, v2
v_add_u32 v4, s86, v2
s_waitcnt lgkmcnt(0)""")
final(True)
A("s_branch L_FINAL")
A("L_COMPUTE:")
srd(WS, 32, 0x800000); srd(H, 32, 118*65536, WS_H); srd(OUT, 30, 2097152)
ACC = 112
for r in range(ACC, 256): A(f"v_mov_b32 v{r}, 0")
A(f"""v_lshlrev_b32 v16, 2, v0
v_add_u32 v16, {LF}, v16
v_mov_b32 v17, 0
s_mov_b64 exec, 0xffff
ds_write_b32 v16, v17
s_mov_b64 exec, -1
s_lshr_b32 s13, s4, 1
s_and_b32 s14, s4, 1
s_movk_i32 s11, 0x1ff
s_lshl_b32 s86, s13, 4
s_add_u32 s86, s86, s6
s_cmp_eq_u32 s86, 10
s_cselect_b32 s11, 0x1c0, s11
s_mul_i32 s86, s14, 0x1b6
s_cmp_eq_u32 s7, 14
s_cselect_b32 s86, s86, 0x1ff
s_and_b32 s11, s11, s86
s_cmp_eq_u32 s12, 1
s_cselect_b32 s11, 0, s11
s_mul_i32 s76, s4, {Q}
s_lshr_b32 s86, s9, 4
s_mul_i32 s87, s14, 3
s_add_u32 s86, s86, s87
s_lshl_b32 s87, s7, 1
s_add_u32 s87, s87, s14
s_lshl1_add_u32 s87, s87, 26
s_and_b32 s88, s11, 0xdb
s_cmp_ge_u32 s7, 15
s_cselect_b32 s86, s87, s86
s_cselect_b32 s11, s88, s11
s_lshl_b32 s86, s86, 6
s_lshr_b32 s87, s8, 5
s_add_u32 s86, s86, s87
s_mul_i32 s87, s13, 3
s_add_u32 s86, s86, s87
s_lshl_b32 s86, s86, 10
v_lshl_add_u32 v1, v0, 4, s86
s_mov_b32 s80, 0
s_mov_b32 s81, 65536
s_mov_b32 s82, 131072
v_and_b32 v16, 15, v0
v_lshrrev_b32 v17, 4, v0
v_bfe_u32 v18, v0, 1, 3
v_xor_b32 v18, v18, v17
s_mul_i32 s86, s13, {96*128}
v_lshl_add_u32 v16, v16, 7, s86
v_lshl_add_u32 v2, v18, 4, v16
v_xor_b32 v3, 64, v2""")
wfrag_addr(4, "s14", 16, "L_CA")
A(f"""s_mul_i32 s86, s6, 23
s_add_u32 s86, s86, s7
s_cmp_eq_u32 s12, 1
s_cselect_b32 s86, 255, s86
s_lshl_b32 s86, s86, 2
s_add_u32 s86, s86, s4
s_lshl_b32 s86, s86, 10
s_add_u32 s15, s86, {WS_FLAG}""")
stamp((2, 2))
A("s_waitcnt vmcnt(0)")
stamp((5, 2))
for j in range(8):
    A(f"v_lshlrev_b32 v{16+2*j}, 16, v{8+j}\nv_and_b32 v{17+2*j}, 0xffff0000, v{8+j}")
def red32(r, t):
    for sh_ in (8, 4, 2, 1):
        A(f"v_add_f32_dpp v{r}, v{r}, v{r} row_ror:{sh_} row_mask:0xf bank_mask:0xf")
    A(f"v_mov_b32 v{t}, v{r}\nv_permlane16_swap_b32 v{r}, v{t}\nv_add_f32 v{r}, v{r}, v{t}")
for j in range(4): A(f"v_pk_add_f32 {v(8+2*j,2)}, {v(16+2*j,2)}, {v(24+2*j,2)}")
A("v_pk_add_f32 v[8:9], v[8:9], v[12:13]\nv_pk_add_f32 v[10:11], v[10:11], v[14:15]\nv_pk_add_f32 v[8:9], v[8:9], v[10:11]\nv_add_f32 v8, v8, v9")
red32(8, 9)
A(f"v_mul_f32 v8, {hx(-1/512)}, v8")
for j in range(8): A(f"v_pk_add_f32 {v(16+2*j,2)}, {v(16+2*j,2)}, v[8:9] op_sel_hi:[1,0]")
A("v_pk_mul_f32 v[10:11], v[16:17], v[16:17]\nv_pk_mul_f32 v[12:13], v[18:19], v[18:19]")
for j in range(2, 8): A(f"v_pk_fma_f32 {v(10+2*(j&1),2)}, {v(16+2*j,2)}, {v(16+2*j,2)}, {v(10+2*(j&1),2)}")
A("v_pk_add_f32 v[10:11], v[10:11], v[12:13]\nv_add_f32 v10, v10, v11")
red32(10, 9)
A(f"""v_mul_f32 v10, {hx(1/512)}, v10
v_cvt_pk_bf16_f32 v10, v10, v10
v_and_b32 v10, 0xffff0000, v10
v_add_f32 v10, {hx(1e-5)}, v10
v_cvt_pk_bf16_f32 v10, v10, v10
v_and_b32 v10, 0xffff0000, v10
v_sqrt_f32 v10, v10
v_cvt_pk_bf16_f32 v32, v8, v8
v_cvt_pk_bf16_f32 v10, v10, v10
v_and_b32 v10, 0xffff0000, v10
v_rcp_f32 v33, v10
v_mul_f32 v34, v10, v10
v_lshlrev_b32 v7, 4, v7
v_add_u32 v7, {WS_RS}, v7
s_waitcnt lgkmcnt(0)
s_add_u32 {TAG}, {TAG}, 0x9E3779B9
v_mov_b32 v35, {TAG}
v_mov_b32 v36, {TAG}
v_mov_b32 v37, {TAG}
v_mov_b32 v38, {TAG}
v_mov_b32 v39, {TAG}
v_lshlrev_b32 v6, 4, v0
s_mov_b32 s78, 0
s_mov_b32 s79, {SLOT}
s_mov_b32 s83, 0""")
stamp((1, 1), (3, 2))
A(f"""s_barrier
s_mov_b32 exec_lo, 1
s_mov_b32 exec_hi, 1
buffer_store_dwordx4 v[32:35], v7, {WS}, 0 offen sc1
s_mov_b64 exec, -1""")
if OPT["prew"]:
    for kind in ((0, 1, 2) if OPT["stage"] else (0, 2)):
        sk = L("PW")
        if kind == 0 and not OPT["stage"]: A(f"s_cmp_lt_u32 s7, 15\ns_cbranch_scc1 {sk}")
        A(f"s_add_u32 s86, s15, {kind << 20}\nbuffer_store_dwordx4 v[28:31], v6, {WS}, s86 offen sc1")
        A.label(sk)
stamp((2, 1), (4, 2))
A("s_cmp_ge_u32 s7, 15\ns_cbranch_scc1 L_QKV")

XB = lambda buf, a: (40 if buf == 0 else 8) + 4*a
WF = lambda buf, j: 64 + 24*buf + 4*j
acc = lambda a, j: ACC + 4*(6*a+j)
CB = 40
def reads(role, s_):
    w_ = []
    for j in range(6):
        for sec in range(2):
            par, off = woff(role, s_, j, sec)
            w_.append(f"ds_read_b64_tr_b16 {v(WF(s_,j)+2*sec,2)}, v{4+par} offset:{off}")
    o = []
    for a in range(6): o += [f"ds_read_b128 {v(XB(s_,a),4)}, v{2+s_} offset:{2048*a}"] + w_[2*a:2*a+2]
    return o
def mm(role, wb, a, j, xb=1):
    return mf16(acc(a,j), WF(wb,j), XB(xb,a)) if (role == 'G' or j < 2) else mf16(acc(a,j), XB(xb,a), WF(wb,j))
def grp(role, buf, a): return [mm(role, buf, a, j, buf) for j in range(6)]
def spread(ms, fill, num, den):
    o = []; f = list(fill); nr = 0
    for i, m in enumerate(ms):
        o.append(m)
        k = ((i+1)*num)//den - (i*num)//den
        for _ in range(k):
            if f:
                x = f.pop(0)
                if x.startswith("ds_read"):
                    nr += 1
                    if nr == 13: o.append("s_waitcnt lgkmcnt(6)")
                o.append(x)
    assert not f
    return o
def mainloop(role):
    lp, ex = f"L_ML{role}", f"L_MX{role}"
    BP = OPT["bpos"]
    allm = lambda buf: [m for a in range(6) for m in grp(role, buf, a)]
    r0 = reads(role, 0); E(r0[:12]); A("s_waitcnt lgkmcnt(6)"); E(r0[12:])
    A.label(lp)
    A("s_waitcnt lgkmcnt(0)")
    sal = f"""s_add_u32 s78, s78, 1
s_cmp_eq_u32 s78, 3
s_cselect_b32 s86, {-2*SLOT & 0xffffffff}, s79
s_cselect_b32 s78, 0, s78
s_add_u32 s83, s83, 1
s_cmp_eq_u32 s83, 8""".split("\n") + [f"v_add_u32 v{r}, s86, v{r}" for r in (2, 4, 5, 3)]
    E(spread(allm(0), reads(role, 1) + sal, OPT["rgap"]+2, OPT["rgap"]+3))
    A("s_waitcnt lgkmcnt(0)")
    E(allm(1)[:BP])
    A(f"s_barrier\ns_cbranch_scc1 {ex}")
    E(spread(allm(1)[BP:], reads(role, 0), OPT["rgap"], 4))
    A(f"s_branch {lp}")
    A.label(ex)
    pre = ["s_waitcnt vmcnt(0)", f"v_and_b32 v2, 15, v0",
           f"s_mul_i32 s86, s13, {96*16}", f"s_add_u32 s86, s86, {RS}",
           f"v_lshl_add_u32 v3, v2, 4, s86",
           f"s_mul_i32 s86, s14, 768", f"s_add_u32 s86, s86, {CF}",
           f"v_lshl_add_u32 v4, v2, 3, s86",
           f"v_cmp_gt_u32 vcc, 16, v0"]
    rd = [f"ds_read_b128 {v(CB+4*a,4)}, v3 offset:{256*a}" for a in range(6)]
    rd += [f"ds_read_b64 {v(WF(0,j),2)}, v4 offset:{256*(j%3)+128*(j//3)}" for j in range(6)]
    z = []
    for j in range(6): z += [f"v_mov_b32 v{WF(0,j)+2}, 0", f"v_mov_b32 v{WF(0,j)+3}, 0"]
    if role == 'Q':
        z += ["v_lshrrev_b32 v5, 4, v0", f"s_mul_i32 s86, s13, {96*4}", f"s_add_u32 s86, s86, {RR}", "v_lshl_add_u32 v5, v5, 4, s86"]
    xs = lambda a: [f"v_cndmask_b32 v{XB(1,a)}, 0, v{CB+4*a}, vcc", f"v_and_b32 v{XB(1,a)+1}, 0xffff, v{XB(1,a)}", f"v_mov_b32 v{XB(1,a)+2}, 0", f"v_mov_b32 v{XB(1,a)+3}, 0"]
    E(interleave(allm(1)[BP:24], pre + rd + z, 2))
    A("s_waitcnt lgkmcnt(0)")
    E(interleave(grp(role,1,4), xs(0) + xs(1) + xs(2), 2))
    E(interleave(grp(role,1,5), xs(3) + xs(4), 2))
    A("s_nop 3"); E(xs(5))

def flagstore(kind):
    A(f"s_add_u32 s86, s15, {kind << 20}\nbuffer_store_dwordx4 v[36:39], v6, {WS}, s86 offen sc1")
def publish(staged):
    if staged:
        A("s_cmp_eq_u32 s11, 0x1ff\ns_cbranch_scc1 L_PFULL\ns_waitcnt vmcnt(0)\nL_PFULL:")
        for c, w_ in enumerate((6, 4, 2)):
            A(f"s_waitcnt vmcnt({w_})"); flagstore(c)
    else:
        A("s_waitcnt vmcnt(0)"); flagstore(2)
    if OPT["ydelay"] >= 0:
        A(f"s_lshl_b32 s86, s4, 2\ns_add_u32 s86, s86, {LF+16}\nv_mov_b32 v2, s86\nv_mov_b32 v3, 1\nds_write_b32 v2, v3")
mainloop('G')
C1 = -2.0*0.7978845608028654*1.4426950408889634
cst = []
for a in range(6):
    b = CB+4*a
    cst += [f"v_mul_f32 v{b}, {hx(C1)}, v{b+1}", f"v_mul_f32 v{b+3}, v{b+1}, v{b+1}",
            f"v_mul_f32 v{b+3}, {hx(0.044715)}, v{b+3}", f"v_mul_f32 v{b+1}, v{b}, v{b+3}"]
corr = lambda u: [mm('G', 0, a, j) for a in range(6) for j in (u, u+3)]
E(interleave(corr(0), cst, 2))
A('s_nop 3')
stamp((3, 1), (1, 3))
n = 0
ELSE = []
A0 = A
class MixG:
    def __init__(s_, pend, every): s_.p = list(pend); s_.e = every; s_.n = 0
    def __call__(s_, t):
        for x in t.split("\n"):
            A0(x); s_.n += 1
            if s_.p and s_.n % s_.e == 0: A0(s_.p.pop(0))
for u in range(3):
    for a in range(3):
        sk = L("GS")
        pend = corr(u+1)[4*a:4*a+4] if u < 2 else []
        A0(f"s_bitcmp1_b32 s11, {3*a+u}\ns_cbranch_scc0 {sk + ('E' if pend else '')}")
        if pend: ELSE.append((sk, pend))
        if not OPT['gmix']: E(pend); pend = []
        A = MixG(pend, 3)
        T = 88 + 8*(n & 1); P = 104 + 4*(n & 1); n += 1
        gp = [acc(2*a + j//2, u) + 2*(j & 1) for j in range(4)]
        up = [acc(2*a + j//2, u+3) + 2*(j & 1) for j in range(4)]
        cb = [CB+4*(2*a + j//2) for j in range(4)]
        for j in range(4): A(f"v_pk_mul_f32 {v(T+2*j,2)}, {v(gp[j],2)}, {v(gp[j],2)}")
        for j in range(4): A(f"v_pk_fma_f32 {v(T+2*j,2)}, {v(T+2*j,2)}, {v(cb[j],2)}, {v(cb[j],2)} op_sel:[0,1,0] op_sel_hi:[1,1,0]")
        for j in range(4): A(f"v_pk_mul_f32 {v(T+2*j,2)}, {v(T+2*j,2)}, {v(gp[j],2)}")
        for j in range(8): A(f"v_exp_f32 v{T+j}, v{T+j}")
        for j in range(4): A(f"v_pk_mul_f32 {v(gp[j],2)}, {v(gp[j],2)}, {v(up[j],2)}")
        for j in range(4): A(f"v_pk_fma_f32 {v(T+2*j,2)}, {v(T+2*j,2)}, {v(cb[j]+2,2)}, {v(cb[j]+2,2)} op_sel_hi:[1,0,0]")
        for j in range(8): A(f"v_rcp_f32 v{T+j}, v{T+j}")
        for j in range(4): A(f"v_pk_mul_f32 {v(T+2*j,2)}, {v(T+2*j,2)}, {v(gp[j],2)}")
        for j in (0, 2, 1, 3): A(f"v_cvt_pk_bf16_f32 v{P+j}, v{T+2*j}, v{T+2*j+1}")
        A(f"v_permlane16_swap_b32 v{P}, v{P+2}\nv_permlane16_swap_b32 v{P+1}, v{P+3}")
        A = A0
        A(f"buffer_store_dwordx4 {v(P,4)}, v1, {H}, s{80+u} offen offset:{1024*a} sc1")
        A.label(sk)
    if u == 0: stamp((2, 3))
stamp((4, 1), (4, 3))
publish(STG)
A("s_branch L_SPART")
for sk, pend in ELSE:
    A.label(sk + "E"); E(pend); A(f"s_nop 7\ns_branch {sk}")

A("L_QKV:")
mainloop('Q')
RV, ONE, G = 88, 32, 8
cst = [f"ds_read_b128 {v(RV+4*a,4)}, v5 offset:{64*a}" for a in range(6)] + f"""s_mov_b32 s70, {hx(1.4426950408889634)}
s_mov_b32 s71, {hx(1.4426950408889634)}
s_mov_b32 s72, {hx(1e-6)}
s_mov_b32 s73, {hx(1e-6)}
v_and_b32 v3, 16, v0
v_cmp_ne_u32 s[74:75], 0, v3
s_sub_u32 s87, s7, 15
s_lshl_b32 s87, s87, 1
s_add_u32 s87, s87, s14
s_mul_i32 s77, s87, {24*3072}
s_add_u32 s77, s77, {WS_KV}
s_lshl_b32 s86, s6, 1
s_add_u32 s86, s86, s13
s_mul_i32 s86, s86, 3072
s_add_u32 s86, s86, s77
v_lshl_add_u32 v7, v0, 4, s86""".split("\n") + [f"v_mov_b32 v{ONE+j}, 0x3f803f80" for j in range(4)]
E(interleave([mm('Q', 0, a, j) for a in (5, 4) for j in (4, 5, 2, 3)], cst, 4))
A("s_waitcnt lgkmcnt(0)")
stamp((3, 1))
PEND = [mm('Q', 0, a, j) for a in (3, 2, 1, 0) for j in (4, 5, 2, 3)] + [mm('Q', 0, a, j) for a in (5, 4, 3, 2, 1, 0) for j in (0, 1)]
class Mix:
    def __init__(s_, pend, every): s_.p = pend; s_.e = every; s_.n = 0
    def __call__(s_, t):
        for x in t.split("\n"):
            A(x); s_.n += 1
            if s_.p and s_.n % s_.e == 0: A(s_.p.pop(0))
def phi(pairs, T, dst, rop, A=A):
    for j in range(8 if rop else 0):
        o, lo, hi = rop(j)
        A(f"v_pk_fma_f32 {v(pairs[j],2)}, {v(pairs[j],2)}, {o}, s[72:73] op_sel:[0,{lo},0] op_sel_hi:[1,{hi},1]")
    for j in range(8): A(f"v_pk_mul_f32 {v(T+2*j,2)}, {v(pairs[j],2)}, s[70:71]")
    for j in range(16):
        r = pairs[j//2] + (j & 1)
        A(f"v_exp_f32 v{T+j}, v{T+j} clamp\nv_max_f32 v{r}, s72, v{r}")
    for j in range(8): A(f"v_pk_add_f32 {v(T+2*j,2)}, {v(T+2*j,2)}, {v(pairs[j],2)}")
    for j in range(8): A(f"v_cvt_pk_bf16_f32 v{dst[j]}, v{T+2*j}, v{T+2*j+1}")
prs = lambda a, j0: [acc(2*a + (j % 4)//2, j0 + j//4) + 2*(j & 1) for j in range(8)]
KVa, KVb, Za, Zb = acc(5,2), acc(5,3), acc(5,4), acc(5,5)
for a in (2, 1, 0):
    if a == 1: A("s_bitcmp1_b32 s11, 0\ns_cbranch_scc0 L_KVS")
    rv = lambda j: RV + 4*(2*a + (j % 4)//2) + 2*(j & 1)
    pv = prs(a, 4); pk = prs(a, 2)
    PK, PV, TT = 24, 80, 64
    if not OPT['qmix']: E(PEND); del PEND[:]
    M = Mix(PEND, 1) if a == 2 else A
    for j in range(8): M(f"v_pk_mul_f32 {v(pv[j],2)}, {v(pv[j],2)}, {v(rv(j),2)}")
    if a == 2:
        for j in range(8): M(f"v_pk_fma_f32 {v(pk[j],2)}, {v(pk[j],2)}, {v(rv(j),2)}, s[72:73] op_sel:[0,0,0] op_sel_hi:[1,1,1]")
        PV = acc(4, 4)
        M(f"v_cvt_pk_bf16_f32 v{PV}, v{pv[0]}, v{pv[0]+1}\nv_cvt_pk_bf16_f32 v{PV+1}, v{pv[1]}, v{pv[1]+1}")
        M(f"v_cvt_pk_bf16_f32 v{PV+2}, v{pv[2]}, v{pv[2]+1}\nv_cvt_pk_bf16_f32 v{PV+3}, v{pv[3]}, v{pv[3]+1}")
        for j in range(4, 8): M(f"v_cvt_pk_bf16_f32 v{PV+j}, v{pv[j]}, v{pv[j]+1}")
        E(PEND); del PEND[:]
        if OPT['qnop']: A('s_nop 7')
        phi(pk, TT, [PK+j for j in range(8)], None)
    else:
        for j in range(8): A(f"v_cvt_pk_bf16_f32 v{PV+j}, v{pv[j]}, v{pv[j]+1}")
        phi(pk, TT, [PK+j for j in range(8)], lambda j: (v(rv(j),2), 0, 1))
    c0 = 0 if a == 2 else None
    A(mf16(KVa, PK, PV, c0)); A(mf16(KVb, PK+4, PV+4, c0)); A(mf16(Za, ONE, PK, c0)); A(mf16(Zb, ONE, PK+4, c0))
A("L_KVS:")
for j in (3, 7, 11): A(f"v_mov_b32 v{G+j}, {TAG}")
A("s_nop 4")
for j in range(4): A(f"v_permlane16_swap_b32 v{KVa+j}, v{KVb+j}")
for j in range(8): A(f"v_mov_b32 v{G+4*(j//3)+j%3}, v{KVa+j}")
A(f"v_cndmask_b32 v{G+10}, v{Za}, v{Zb}, s[74:75]")
for g_ in range(3): A(f"buffer_store_dwordx4 {v(G+4*g_,4)}, v7, {WS}, 0 offen offset:{1024*g_} sc1")
if OPT["hints"]: flagstore(0)
stamp((4, 1), (1, 3))
for a in (2, 1, 0):
    if a == 1: A("s_bitcmp1_b32 s11, 0\ns_cbranch_scc0 L_PQS")
    D_ = 88 + 8*a
    phi(prs(a, 0), TT, [D_+j for j in range(8)], lambda j: (v(CB+4*(2*a + (j % 4)//2), 2), 1, 1))
    for hd in range(2):
        A(f"v_permlane16_swap_b32 v{D_+4*hd}, v{D_+4*hd+2}\nv_permlane16_swap_b32 v{D_+4*hd+1}, v{D_+4*hd+3}")
    A(f"buffer_store_dwordx4 {v(D_,4)}, v1, {H}, 0 offen offset:{1024*a} sc1")
    A(f"buffer_store_dwordx4 {v(D_+4,4)}, v1, {H}, s81 offen offset:{1024*a} sc1")
A("L_PQS:")
stamp((2, 3))
if not OPT["redearly"]: publish(False)
if not OPT["lred"]:
    A("s_and_b32 s86, s6, 9\ns_add_u32 s86, s86, 2\ns_cmp_eq_u32 s86, s4\ns_cbranch_scc0 " + ("L_QPUB" if OPT["redearly"] else "L_SPART"))
    reducer(lambda p: 128+12*p, 7, 9, 8, "s[74:75]", 70, "s77")
    if OPT["redearly"]:
        A("s_branch L_SPART\nL_QPUB:"); publish(False)

A("L_SPART:")
if OPT["sprio"] != OPT["prio"]: A(f"s_setprio {OPT['sprio']}")
stamp((5, 1), (3, 3))
xres_addr(1, 8); xres_load()
w2addr(4, 8, False)
A(f"""s_lshl_b32 s86, s4, 3
s_add_u32 s86, s86, 86
s_lshl_b32 s86, s86, 16
s_lshl_b32 s87, s84, 11
s_add_u32 s86, s86, s87
v_lshl_add_u32 v2, v0, 4, s86
s_mul_i32 s88, s84, 43
s_lshr_b32 s88, s88, 7
s_mul_i32 s88, s88, 23
s_lshl_b32 s87, s4, 1
s_add_u32 s88, s88, s87
s_add_u32 s88, s88, 15
s_lshl_b32 s88, s88, 12
s_add_u32 s88, s88, {WS_FLAG}
v_and_b32 v3, 7, v0
v_lshl_add_u32 v3, v3, 10, s88
s_lshl_b32 s74, s4, 13
s_add_u32 s74, s74, {WS_F}
v_lshl_add_u32 v8, v0, 4, s74
s_lshl_b32 s86, s4, 2
s_add_u32 s86, s86, {LF}
v_mov_b32 v10, s86
s_mov_b32 s72, {hx(1e-6)}
s_movk_i32 s73, 4096
s_mov_b32 s89, 0""")
if OPT["warm"]:
    assert OPT["sd"] == 8
    A("s_mov_b32 s75, 1\ns_mov_b64 exec, 0\ns_branch L_PIPE\nL_WBACK:\ns_mov_b32 s75, 0\ns_mov_b64 exec, -1")
if OPT["gate"]:
    A(f"v_mov_b32 v9, {LF+32}\nv_mov_b32 v11, 1\ns_mov_b64 exec, 1\ns_waitcnt vmcnt(0)\nds_add_u32 v9, v11\ns_mov_b64 exec, -1")
stamp((1, 4))
if OPT['sdelay']: A(f"s_sleep {OPT['sdelay']}")
if OPT["comb"]:
    A("v_add_u32 v3, 48, v10"); spin_lds(3, 9)
else: spin_flag(3, 9, 8, 2)
note("s88", 4)
stamp((6, 1), (2, 4))
SD = OPT["sd"]
def pqload(k):
    return [f"s_mov_b32 s86, {k*65536}",
            f"buffer_load_dwordx4 {v(16+8*k,4)}, v2, {H}, s86 offen sc1",
            f"buffer_load_dwordx4 {v(20+8*k,4)}, v2, {H}, s86 offen offset:1024 sc1"]
def floads():
    for k in range(8):
        A(f"buffer_load_dwordx4 {v(80+4*k,4)}, v8, {WS}, " + ("0" if k < 4 else "s73") + f" offen offset:{1024*(k%4)} sc1")
if OPT["ffirst"]: floads()
for k in range(SD):
    if OPT["sdep"]: A(f"s_waitcnt vmcnt({OPT['sdep']-2})")
    E(pqload(k))
if OPT["ffirst"]: A(f"s_waitcnt vmcnt({2*SD})\ns_branch L_FC")
if OPT["hints"]:
    A(f"s_lshl_b32 s86, s4, 14\ns_add_u32 s86, s86, {WS_FF}\nv_lshl_add_u32 v9, v0, 10, s86")
    spin_flag(9, 11, 16)
else: A(f"s_waitcnt vmcnt({OPT['fafter']})")
A("s_branch L_FL\nL_FQ:\ns_sleep 8\nL_FL:")
floads()
A("s_waitcnt vmcnt(0)\nL_FC:\ns_add_u32 s89, s89, 1")
E(vmax(112, [80+4*k for k in range(8)]))
A(f"""v_cmp_eq_u32 vcc, -1, v112
s_cmp_gt_u32 s89, {OPT['spin']}
s_cbranch_scc1 L_FPD
s_cbranch_vccnz L_FQ
L_FPD:""")
note("s89", 4); note("s89", 1)
spin_lds(10, 9)
stamp((6, 3), (3, 4))
woloc = lambda k: (1, k) if k < 6 else (2, k-2)
def Om(k): return [mfma(128+32*(k&1)+16*r, 80+4*k, 16+8*k+4*r, 0) for r in range(2)]
def Vv(k):
    o = []
    D = [128+32*(k&1)+16*r for r in range(2)]
    nd = [((d, d+8) if k % 2 == 0 else (d+8, d)) for d in D]
    for num, den in nd: o.append(f"v_add_f32 v{den}, s72, v{den}")
    for num, den in nd: o.append(f"v_rcp_f32 v{den}, v{den}")
    for r, (num, den) in enumerate(nd):
        if OPT["spk"]:
            for j in range(4): o.append(f"v_pk_mul_f32 {v(num+2*j,2)}, {v(num+2*j,2)}, {v(den,2)} op_sel_hi:[1,0]")
        else:
            for j in range(8): o.append(f"v_mul_f32 v{num+j}, v{num+j}, v{den}")
        for j in range(4): o.append(f"v_cvt_pk_bf16_f32 v{16+8*k+4*r+j}, v{num+2*j}, v{num+2*j+1}")
    return o
def Sm(k): return [mfmaH(192+32*r+16*c, 112+8*(k&1)+4*c, 16+8*k+4*r, 0 if k <= OPT['h16'] else None, k & 1) for r in range(2) for c in range(2)]
issued = [SD]
def need(k):
    o = [f"s_waitcnt vmcnt({2*(issued[0]-1-k)})"]
    more = []
    if issued[0] < 8: more = pqload(issued[0]); issued[0] += 1
    return o, more
A('L_PIPE:')
E(w2read(112, *woloc(0), 4, False))
for k in (0, 1):
    w_, m_ = need(k); E(w_ + Om(k) + m_)
E(Vv(0))
for k in range(8):
    A("s_waitcnt lgkmcnt(0)")
    fill = (w2read(112+8*((k+1)&1), *woloc(k+1), 4, False) + Vv(k+1)) if k+1 < 8 else []
    NF = 16 if OPT['spk'] else 20
    E(interleave(Sm(k), fill[:NF], NF//4))
    if k+2 < 8:
        w_, m_ = need(k+2); E(w_); E(interleave(Om(k+2), fill[NF:] + m_, 6))
    else: E(fill[NF:])
    if k == 3: stamp((4, 4))
if OPT["warm"] == 1: A("s_cmp_eq_u32 s75, 1\ns_cbranch_scc1 L_WBACK")
stamp((7, 1), (5, 4))
final(False)
if OPT["warm"] == 2: A("s_cmp_eq_u32 s75, 1\ns_cbranch_scc1 L_FIN2")

A("L_FINAL:")
stamp((6, 4))
A("s_barrier")
stamp((7, 3), (7, 4))
A("L_FIN2:")
for src in range(4):
    for jq in range(2): A(f"ds_read_b128 {v(16+8*src+4*jq,4)}, v3 offset:{Q*src+1024*jq}")
for src in range(4):
    for jq in range(2):
        if src == 3 and jq == 1: A("s_waitcnt lgkmcnt(14)")
        A(f"ds_read_b128 {v(48+8*src+4*jq,4)}, v4 offset:{Q*src+1024*jq}")
A(f"s_mov_b32 s70, {hx(-1.4426950408889634)}\ns_mov_b32 s71, s70\ns_waitcnt vmcnt(0)")
for j in range(4): A(f"v_lshlrev_b32 v{80+2*j}, 16, v{12+j}\nv_and_b32 v{81+2*j}, 0xffff0000, v{12+j}")
A("s_waitcnt lgkmcnt(8)")
for src in range(1, 4):
    for j in range(4): A(f"v_pk_add_f32 {v(16+2*j,2)}, {v(16+2*j,2)}, {v(16+8*src+2*j,2)}")
for j in range(4): A(f"v_pk_mul_f32 {v(24+2*j,2)}, {v(16+2*j,2)}, s[70:71]")
for j in range(8): A(f"v_exp_f32 v{24+j}, v{24+j}")
for j in range(4): A(f"v_pk_add_f32 {v(24+2*j,2)}, {v(24+2*j,2)}, 1.0 op_sel_hi:[1,0]")
for j in range(8): A(f"v_rcp_f32 v{24+j}, v{24+j}")
A("s_waitcnt lgkmcnt(0)")
for src in range(1, 4):
    for j in range(4): A(f"v_pk_add_f32 {v(48+2*j,2)}, {v(48+2*j,2)}, {v(48+8*src+2*j,2)}")
for j in range(4): A(f"v_pk_mul_f32 {v(16+2*j,2)}, {v(16+2*j,2)}, {v(24+2*j,2)}")
for j in range(4): A(f"v_pk_fma_f32 {v(16+2*j,2)}, {v(16+2*j,2)}, {v(48+2*j,2)}, {v(80+2*j,2)}")
for j in range(4): A(f"v_cvt_pk_bf16_f32 v{24+j}, v{16+2*j}, v{17+2*j}")
if OPT["warm"] == 2: A("s_cbranch_execz L_WBACK")
A(f"""buffer_store_dwordx4 v[24:27], v1, {OUT}, 0 offen
s_add_u32 s86, s2, s3
s_cmp_eq_u32 s86, 0
s_cbranch_scc0 L_NOBUMP
v_mov_b32 v2, 0
v_mov_b32 v3, {TAG}
buffer_store_dword v3, v2, {WS}, 0 offen sc1
L_NOBUMP:""")
if OPT["stamps"]:
    A("s_waitcnt vmcnt(0)")
    stamp((8, 0))
    A(f"""s_memrealtime s[68:69]
s_waitcnt lgkmcnt(0)
s_mov_b32 s101, s68
s_lshl_b32 s86, s2, 3
s_add_u32 s86, s86, s3
s_lshl_b32 s86, s86, 6
s_add_u32 s86, s86, {WS_DBG}
v_mov_b32 v2, s86""")
    for i in range(10): A(f"v_mov_b32 v3, s{92+i}\nbuffer_store_dword v3, v2, {WS}, 0 offen offset:{4*i}")
    A(f"v_mov_b32 v3, s34\nbuffer_store_dword v3, v2, {WS}, 0 offen offset:40")
    A(f"v_mov_b32 v3, s35\nbuffer_store_dword v3, v2, {WS}, 0 offen offset:44")
A("L_END:\ns_endpgm")

lines, errs = pad(A.lines)
for e in errs: print("HAZARD:", e, file=sys.stderr)
hdr = open("cdna_kernels/%s.s.ref" % NAME).read().split("; Override launch")[0]
out = hdr + f"""; Fused single-launch kernel (generated by my own generator script gen/gen.py).
; @launch grid=(256,1,1) block=(512,1,1) lds={LDS}
.amdgcn_target "amdgcn-amd-amdhsa--gfx950"
.text
.globl {NAME}_kernel
.p2align 8
.type {NAME}_kernel,@function
{NAME}_kernel:
""" + render(lines) + f""".section .rodata,"a"
.p2align 6
.amdhsa_kernel {NAME}_kernel
  .amdhsa_next_free_vgpr 256
  .amdhsa_next_free_sgpr 102
  .amdhsa_accum_offset 256
  .amdhsa_group_segment_fixed_size 0
  .amdhsa_kernarg_size 80
  .amdhsa_user_sgpr_count 2
  .amdhsa_user_sgpr_kernarg_segment_ptr 1
  .amdhsa_system_sgpr_workgroup_id_x 1
.end_amdhsa_kernel
"""
open(sys.argv[1], "w").write(out)
```

```python
import sys, struct
from asmlib import *
NAME = "recurrent_scan__linear_attn_block__glu_gated_geglu__prompt"
OPT = dict(stamps=0, rot=2, prio=1, pfcode=1, spin=1<<17, thr=3, unthr=31, n7=5, n8=10, ca=14, cb=22, h=4, mix=1, sub=1,
           psleep=2, ydep=5, sdep=0, w2late=4, p2map=0, stage=0, sprio=1, ydelay=-1, sdelay=0, fdelay=0, rdelay=0, xlate=0, now2=0, sd=3, apoll=0, fgate=1, rt=1, zf=1, nr=0, r0=3, lred=0, prew=0, hints=0, comb=1, fafter=0, h16=0, gate=0, ffirst=0, warm=0, nodma=0, redearly=1, xz=1, gmix=0, qmix=0, qnop=0, bpos=0, rgap=3, spk=0, diag=0, dwave=4)
for a in sys.argv[2:]:
    k, v_ = a.split("="); assert k in OPT, k; OPT[k] = int(v_, 0)
def f2u(x): return struct.unpack("<I", struct.pack("<f", x))[0]
def hx(x): return "0x%08x" % f2u(x)

SLOT = 49152; XW = 24576; UPOFF = 12288; MISC = 3*SLOT; LDS = 163840
RS = MISC; RR = MISC+3072; CF = MISC+3840; LF = MISC+5376
Q = 12288
WS_RS = 0x10000; WS_CS = 0x20000; WS_FLAG = 0x300000; WS_FF = 0x60000; WS_DBG = 0x80000; WS_F = 0xC0000; WS_KV = 0x100000; WS_H = 0x800000
X="s[36:39]"; W="s[40:43]"; WS="s[44:47]"; H="s[48:51]"; WD="s[56:59]"; WO="s[60:63]"; OUT="s[64:67]"
TAG="s10"
def v(b, n=1): return f"v{b}" if n == 1 else f"v[{b}:{b+n-1}]"
def mfma(d, a, b, c=None):
    return f"v_mfma_f32_32x32x16_bf16 {v(d,16)}, {v(a,4)}, {v(b,4)}, " + ("0" if c == 0 else v(d,16))
def mfmaH(d, a, b, c, alt):
    if not OPT["h16"]: return mfma(d, a, b, c)
    return mf16(d+8*alt, a, b, c) + "\n" + mf16(d+8*alt+4, a ^ 4, b, c)
def mf16(d, a, b, c=None):
    return f"v_mfma_f32_16x16x32_bf16 {v(d,4)}, {v(a,4)}, {v(b,4)}, " + ("0" if c == 0 else v(d,4))
def bc(r): return v(r & ~1, 2), r & 1
_lab = [0]
def L(p="L"):
    _lab[0] += 1; return f"{p}_{_lab[0]}"
A = Asm()
def E(lst):
    for t in lst: A(t)
def stamp(*pairs):
    for i, st in pairs:
        if OPT["stamps"] == st or (OPT["stamps"] and st == 0):
            A(f"{'s_memrealtime' if (OPT['rt'] and i != 8) else 's_memtime'} s[68:69]\ns_waitcnt lgkmcnt(0)\ns_mov_b32 s{92+i}, s68")
def note(reg, st):
    if OPT["stamps"] == st: A(f"s_mov_b32 s35, {reg}")
def srd(name, lo, size, add=0):
    b = int(name[2:4])
    if add: A(f"s_add_u32 s{b}, s{lo}, {add}\ns_addc_u32 s{b+1}, s{lo+1}, 0")
    else: A(f"s_mov_b32 s{b}, s{lo}\ns_mov_b32 s{b+1}, s{lo+1}")
    A(f"s_mov_b32 s{b+2}, {size}\ns_mov_b32 s{b+3}, 0x20000")
def spin_flag(vaddr, vt, nl, kind=None):
    l1, l2 = L("POLL"), L("POLLD")
    A(f"""s_mov_b32 s88, 0
s_mov_b64 exec, {hex((1<<nl)-1)}
{l1}:
s_and_b32 s87, s88, 7
s_lshl_b32 s87, s87, 7""")
    if kind: A(f"s_add_u32 s87, s87, {kind << 20}")
    A(f"""buffer_load_dword {v(vt)}, {v(vaddr)}, {WS}, s87 offen sc1
s_add_u32 s88, s88, 1
s_waitcnt vmcnt(0)
v_cmp_ne_u32 vcc, {TAG}, {v(vt)}
s_cmp_gt_u32 s88, {OPT['spin']}
s_cbranch_scc1 {l2}
s_cbranch_vccz {l2}
s_sleep {OPT['psleep']}
s_branch {l1}
{l2}:
s_mov_b64 exec, -1""")
def spin_lds(vaddr, vt, need=1):
    l1, l2 = L("LP"), L("LPD")
    A(f"""s_mov_b32 s86, 0
{l1}:
ds_read_b32 {v(vt)}, {v(vaddr)}
s_add_u32 s86, s86, 1
s_waitcnt lgkmcnt(0)
v_cmp_gt_u32 vcc, {need}, {v(vt)}
s_cmp_gt_u32 s86, {OPT['spin']*8}
s_cbranch_scc1 {l2}
s_cbranch_vccz {l2}
s_sleep 1
s_branch {l1}
{l2}:""")
def vmax(dst, regs_):
    o = []; r = list(regs_)
    if len(r) == 2: return [f"v_max_u32 v{dst}, v{r[0]}, v{r[1]}"]
    o.append(f"v_max3_u32 v{dst}, v{r[0]}, v{r[1]}, v{r[2]}"); r = r[3:]
    while r:
        if len(r) >= 2: o.append(f"v_max3_u32 v{dst}, v{dst}, v{r[0]}, v{r[1]}"); r = r[2:]
        else: o.append(f"v_max_u32 v{dst}, v{dst}, v{r[0]}"); r = r[1:]
    return o
def tagcheck(dst, tmp, regs_):
    for n, r in enumerate(regs_): A(f"v_xor_b32 v{dst if n == 0 else tmp+n}, {TAG}, v{r}")
    n = 1
    while n < len(regs_):
        if n+1 < len(regs_): A(f"v_or3_b32 v{dst}, v{dst}, v{tmp+n}, v{tmp+n+1}"); n += 2
        else: A(f"v_or_b32 v{dst}, v{dst}, v{tmp+n}"); n += 1

A(f"""s_cmp_ge_u32 s2, 256
s_cbranch_scc1 L_END
s_load_dwordx16 s[16:31], s[0:1], 0
s_load_dwordx2 s[32:33], s[0:1], 72""")
if OPT["stamps"]: A("s_memrealtime s[34:35]\ns_memtime s[68:69]")
A(f"""v_lshrrev_b32 v1, 6, v0
v_and_b32 v0, 63, v0
v_readfirstlane_b32 s3, v1
s_and_b32 s5, s2, 7
s_lshr_b32 s86, s2, 3""")
if OPT["p2map"] == 0:
    A("s_lshl_b32 s84, s5, 2\ns_lshr_b32 s87, s86, 3\ns_add_u32 s84, s84, s87\ns_and_b32 s85, s86, 7")
else:
    A("""s_lshr_b32 s84, s5, 1
s_lshl_b32 s84, s84, 3
s_lshr_b32 s87, s86, 2
s_add_u32 s84, s84, s87
s_and_b32 s85, s5, 1
s_lshl_b32 s85, s85, 2
s_and_b32 s87, s86, 3
s_add_u32 s85, s85, s87""")
A(f"""s_lshl_b32 s5, s5, 5
s_add_u32 s5, s5, s86
s_and_b32 s4, s3, 3
s_mov_b32 s12, 0
s_cmp_lt_u32 s5, 138
s_cbranch_scc0 L_BOT
s_mul_i32 s7, s5, 171
s_lshr_b32 s7, s7, 10
s_mul_i32 s86, s7, 6
s_sub_u32 s6, s5, s86
s_branch L_IDS
L_BOT:
s_cmp_ge_u32 s5, 253
s_cselect_b32 s12, 1, 0
s_cselect_b32 s86, 5, 0
s_sub_u32 s86, s5, s86
s_sub_u32 s86, s86, 138
s_mul_i32 s87, s86, 205
s_lshr_b32 s87, s87, 10
s_sub_u32 s7, 22, s87
s_mul_i32 s87, s87, 5
s_sub_u32 s6, s86, s87
s_add_u32 s6, s6, 6
L_IDS:
s_mov_b32 s90, s7""")
if OPT["mix"]:
    A("""s_mul_i32 s86, s7, 43
s_lshr_b32 s86, s86, 7
s_sub_u32 s87, s7, s86
s_lshl_b32 s88, s86, 1
s_sub_u32 s88, s87, s88
s_add_u32 s86, s86, 15
s_cmp_eq_u32 s7, 22
s_cselect_b32 s7, s86, s87
s_cmp_eq_u32 s88, 2
s_cselect_b32 s7, s86, s7""")
A(f"""s_mul_i32 s8, s6, 192
s_min_u32 s8, s8, 1856
s_mul_i32 s9, s7, 96
s_min_u32 s9, s9, 1280
s_cmp_lt_u32 s3, 4
s_cbranch_scc1 L_LOADER""")
def kwait():
    A("s_waitcnt lgkmcnt(0)\ns_load_dword s10, s[32:33], 0")
    if OPT["stamps"]: A("s_mov_b32 s92, s68")
    srd(X, 16, 2097152)
if OPT["prio"]: A(f"s_setprio {OPT['prio']}")
if OPT["pfcode"]:
    A(f"""s_getpc_b64 s[88:89]
L_PC:
s_sub_u32 s88, s88, L_PC-{NAME}_kernel
s_subb_u32 s89, s89, 0
s_lshr_b32 s86, s2, 3
s_lshl_b32 s86, s86, 3
s_lshl_b32 s87, s4, 1
s_add_u32 s86, s86, s87
v_and_b32 v3, 1, v0
v_add_u32 v3, s86, v3
v_lshlrev_b32 v3, 7, v3
v_min_u32 v3, L_END-{NAME}_kernel, v3
global_load_dword v47, v3, s[88:89]""")
A(f"""s_lshl_b32 s86, s5, 3
s_lshl_b32 s87, s4, 1
s_add_u32 s86, s86, s87
v_lshrrev_b32 v7, 5, v0
v_add_u32 v7, s86, v7
v_and_b32 v2, 31, v0
v_lshlrev_b32 v2, 4, v2
v_lshl_add_u32 v2, v7, 10, v2""")
kwait()
A(f"""buffer_load_dwordx4 v[8:11], v2, {X}, 0 offen
buffer_load_dwordx4 v[12:15], v2, {X}, 0 offen offset:512""")
stamp((1, 2))
A("s_branch L_COMPUTE\nL_LOADER:")

def w2addr(base, T, nat):
    a_, b_, c_, d_ = T, T+1, T+2, T+3
    A(f"""v_and_b32 v{a_}, 3, v0
v_bfe_u32 v{b_}, v0, 2, 2
v_bfe_u32 v{c_}, v0, 4, 1
v_lshrrev_b32 v{d_}, 5, v0
v_lshl_add_u32 v{d_}, v{d_}, {3 if nat else 2}, v{b_}
v_lshlrev_b32 v{d_}, 7, v{d_}
v_lshrrev_b32 v{b_}, 1, v{b_}
v_lshl_add_u32 v{c_}, v{b_}, 2, v{c_}
v_and_b32 v{b_}, 1, v{a_}
v_lshl_add_u32 v{c_}, v{b_}, 1, v{c_}
v_lshl_add_u32 v{d_}, v{c_}, 4, v{d_}
v_lshrrev_b32 v{a_}, 1, v{a_}
v_lshl_add_u32 v{d_}, v{a_}, 3, v{d_}
v_add_u32 v{base}, s76, v{d_}
v_xor_b32 v{d_}, 64, v{d_}
v_add_u32 v{base+1}, s76, v{d_}
v_add_u32 v{base+2}, {2*SLOT}, v{base}
v_add_u32 v{base+3}, {2*SLOT}, v{base+1}""")
def w2read(dst, slot, blk, ab, nat=True):
    o = []
    for c in range(2):
        for sec in range(2):
            ar = ab + c + (2 if slot == 2 else 0)
            off = (SLOT if slot == 1 else 0) + blk*2048 + sec*(512 if nat else 1024)
            o.append(f"ds_read_b64_tr_b16 {v(dst+4*c+2*sec,2)}, v{ar} offset:{off}")
    return o
def xres_addr(half, T):
    A(f"""s_lshr_b32 s86, s4, 1
s_lshl_b32 s86, s86, 5
s_lshl_b32 s87, s84, 6
s_add_u32 s86, s86, s87
s_lshl_b32 s86, s86, 10
s_lshl_b32 s87, s85, 7
s_add_u32 s86, s86, s87
s_and_b32 s87, s4, 1
s_lshl_b32 s87, s87, 6
s_add_u32 s86, s86, s87
s_add_u32 s86, s86, {16*half}
v_and_b32 v{T}, 31, v0
v_lshlrev_b32 v{T}, 10, v{T}
v_lshrrev_b32 v{T+1}, 5, v0
v_lshl_add_u32 v{T}, v{T+1}, 5, v{T}
v_add_u32 v1, s86, v{T}""")
def xres_load(late=0):
    if OPT["xlate"] == late: A(f"buffer_load_dwordx4 v[12:15], v1, {X}, 0 offen")
def p2setup():
    srd(WS, 32, 0x800000); srd(H, 32, 118*65536, WS_H); srd(WD, 28, 1376*1024); srd(WO, 20, 512*1024); srd(OUT, 30, 2097152)
    A(f"""v_lshrrev_b32 v24, 3, v0
v_lshlrev_b32 v24, 10, v24
v_and_b32 v25, 7, v0
v_bfe_u32 v26, v0, 4, 1
v_lshlrev_b32 v26, 2, v26
v_xor_b32 v25, v25, v26
v_lshl_add_u32 v24, v25, 4, v24
s_lshl_b32 s86, s85, 7
v_add_u32 v4, s86, v24
s_mul_i32 s87, s4, {3*16384}
v_add_u32 v2, s87, v4
s_add_u32 s87, s4, 84
s_lshl_b32 s87, s87, 14
v_add_u32 v3, s87, v4
s_lshl_b32 s87, s4, 17
v_add_u32 v4, s87, v4
s_mul_i32 s76, s4, {Q}
s_lshl_b32 s87, s84, 11
s_mul_i32 s86, s4, {3*65536}
s_add_u32 s86, s86, s87
v_lshl_add_u32 v6, v0, 4, s86
v_bfe_u32 v24, v0, 1, 3
v_lshlrev_b32 v24, 3, v24
s_lshr_b32 s86, s4, 1
s_lshl_b32 s86, s86, 2
s_and_b32 s90, s4, 1
s_add_u32 s86, s86, s90
v_add_u32 v24, s86, v24
v_min_u32 v24, 57, v24
v_cmp_eq_u32 vcc, 56, v24
v_cndmask_b32 v24, v24, 57, vcc
v_and_b32 v25, 1, v0
v_lshl_add_u32 v24, v25, 1, v24
s_lshl_b32 s86, s4, 3
s_add_u32 s86, s86, 44
v_add_u32 v25, s86, v0
v_cmp_lt_u32 vcc, 15, v0
v_cndmask_b32 v24, v24, v25, vcc
s_mul_i32 s86, s84, 43
s_lshr_b32 s86, s86, 7
s_mul_i32 s86, s86, {23*4096}
s_add_u32 s86, s86, {WS_FLAG}
v_lshl_add_u32 v5, v24, 10, s86
s_add_u32 s86, s4, 84
s_lshl_b32 s86, s86, 16
s_add_u32 s86, s86, s87
s_cmp_lt_u32 s4, 2
s_cselect_b32 s86, s86, 0x80000000
v_lshl_add_u32 v7, v0, 4, s86""")
    w2addr(8, 24, True); xres_addr(0, 24)
    A(f"s_waitcnt lgkmcnt(0)\ns_add_u32 {TAG}, {TAG}, 0x9E3779B9")
def wfrag_addr(dst, swc, T, lab):
    A(f"""v_and_b32 v{T}, 3, v0
v_bfe_u32 v{T+1}, v0, 2, 2
v_bfe_u32 v{T+2}, v0, 4, 1
s_cmp_ge_u32 s7, 15
s_cbranch_scc1 {lab}Q
v_lshrrev_b32 v{T+3}, 4, v0
v_lshl_add_u32 v{T+3}, v{T+3}, 3, v{T+1}
v_mul_u32_u24 v{T+3}, 192, v{T+3}
v_lshl_add_u32 v{T}, v{T}, 3, v{T+3}
v_add_u32 v{T}, {XW}, v{T}
s_mul_i32 s87, {swc}, 3
v_xor_b32 v{T+3}, s87, v{T+2}
v_lshl_add_u32 v{dst}, v{T+3}, 5, v{T}
s_add_u32 s87, s87, 1
v_xor_b32 v{T+3}, s87, v{T+2}
v_lshl_add_u32 v{dst+1}, v{T+3}, 5, v{T}
s_branch {lab}D
{lab}Q:
v_lshrrev_b32 v{T+3}, 5, v0
v_mul_u32_u24 v{T+3}, 3072, v{T+3}
v_lshl_add_u32 v{T+3}, v{T+1}, 7, v{T+3}
v_mul_u32_u24 v{T+4}, {UPOFF+32}, v{T+2}
v_lshrrev_b32 v{T+1}, 1, v{T+1}
v_xor_b32 v{T+1}, {swc}, v{T+1}
v_lshl_add_u32 v{T+4}, v{T+1}, 6, v{T+4}
v_lshl_add_u32 v{T}, v{T}, 3, v{T+3}
v_add_u32 v{T}, {XW}, v{T}
v_add_u32 v{dst}, v{T}, v{T+4}
v_xor_b32 v{dst+1}, 32, v{dst}
{lab}D:""")
def woff(role, s_, j, sec):
    if role == 'G':
        jj = j % 3
        return jj & 1, s_*6144 + sec*768 + (j//3)*UPOFF + (64 if jj == 2 else 0)
    return j & 1, s_*6144 + (j//2)*1024 + sec*512
def ksoff(kd): return 12*(kd % 7) + kd//7
NR = OPT["nr"]
S2R = [('o',6+k,2,4+k) for k in range(2)] + [('d',12+k,2,k) for k in range(4)]
S0R = [('d',16+k,0,k) for k in range(6)]; S1R = [('o',k,1,k) for k in range(6)]
rawA = [('d', k, 96+8*k) for k in range(6)]; rawB = [('d', 6+k, 144+8*k) for k in range(6)]
if NR == 18:
    rawitems = [('o', k, 192+8*k) for k in range(6)] + rawA + rawB; items = S2R + S0R
    post = ["bA", "bB", "wO", ("fwo", 2)]
elif NR == 12:
    rawitems = rawA + rawB; items = S2R + S0R + S1R
    post = ["bA", "bB"] + list(range(12, 18)) + [("fwo", 18)]
elif NR == 6:
    rawitems = rawB; items = [('d',k,2,k) for k in range(6)] + S0R + S1R + S2R
    post = ["bB", 12, 13, ("cp", 96, 2, 6), 14, 15, 16, 17, 18, 19, 20, 21, 22, ("fwo", 20), 23]
else:
    rawitems = []; items = [('d',k,2,k) for k in range(6)] + [('d',6+k,0,k) for k in range(6)] + S1R + S2R + S0R
    post = [12, 13, ("cp", 96, 2, 6)] + list(range(14, 22)) + [("cp", 144, 0, 12), 22, ("fwo", 20)] + list(range(23, 30))
N7, N8 = OPT["n7"], OPT["n8"]
def rawload(it):
    kind, k, reg = it
    va, kk, S_ = ((2, ksoff(k), WD) if k < 21 else (3, 0, WD)) if kind == 'd' else (4, k, WO)
    A(f"""s_mov_b32 s86, {kk*16384}
s_mov_b32 s87, {kk*16384 + 8192}
buffer_load_dwordx4 {v(reg,4)}, v{va}, {S_}, s86 offen
buffer_load_dwordx4 {v(reg+4,4)}, v{va}, {S_}, s87 offen""")
def rawblocks():
    if not NR: return
    steps = list(range(OPT["r0"], 6)); n = len(steps)
    for i, st in enumerate(steps):
        sk = L("RW")
        A(f"s_cmp_eq_u32 s83, {st}\ns_cbranch_scc0 {sk}")
        for it in rawitems[NR*i//n : NR*(i+1)//n]: rawload(it)
        A.label(sk)
def w2item(n, thr=None):
    if OPT["now2"]: return
    kind, k, slot, blk = items[n]
    tw = f"s_waitcnt vmcnt({thr})\n" if thr is not None else ""
    A(f"s_add_u32 m0, s76, {slot*SLOT + blk*2048}")
    va, kk, S_ = ((2, ksoff(k), WD) if k < 21 else (3, 0, WD)) if kind == 'd' else (4, k, WO)
    A(f"""s_mov_b32 s86, {kk*16384}
s_mov_b32 s87, {kk*16384 + 7168}
{tw}buffer_load_dwordx4 v{va}, {S_}, s86 offen lds
{tw}buffer_load_dwordx4 v{va}, {S_}, s87 offen offset:1024 lds""")

A(f"""s_cmp_ge_u32 s3, 2
s_cbranch_scc1 L_SIDE
s_add_u32 s79, s6, s90""")
R_ = OPT["rot"]
A(f"s_and_b32 s79, s79, {R_-1}\ns_lshl_b32 s79, s79, { {1:0, 2:2, 4:1, 8:0}[R_] }")
A(f"""v_lshrrev_b32 v24, 3, v0
v_and_b32 v25, 7, v0
v_lshrrev_b32 v26, 4, v0
v_xor_b32 v27, v25, v26
s_mul_i32 s86, s4, 96
s_add_u32 s86, s86, s8
s_lshl_b32 s86, s86, 10
v_lshl_add_u32 v16, v24, 10, s86
v_lshl_add_u32 v16, v27, 4, v16
v_xor_b32 v17, 64, v16
v_add_u32 v18, {2*7168}, v16
v_add_u32 v19, {3*7168}, v17
v_add_u32 v17, 7168, v17
s_mul_i32 s74, s4, 12288
s_mul_i32 s75, s4, {UPOFF}
s_add_u32 s75, s75, {XW}
s_mov_b32 s43, 0x20000
s_mov_b32 s78, 0
s_cmp_ge_u32 s7, 15
s_cbranch_scc1 L_LQKV
s_mov_b32 s42, {512*2752}
s_mov_b32 s82, {16*2752}
s_movk_i32 s86, 0x1556
s_movk_i32 s87, 2752
s_lshl_b32 s88, s9, 1
s_cmp_eq_u32 s7, 14
s_cselect_b32 s89, {8 if OPT['zf'] else 0}, 0
s_cmp_eq_u32 s12, 1
s_cselect_b32 s89, {12 if OPT['zf'] else 0}, s89
v_mov_b32 v28, 0x80000000""")
for i in range(3):
    A(f"""v_add_u32 v24, {64*i}, v0
v_mul_u32_u24 v25, s86, v24
v_lshrrev_b32 v25, 16, v25
v_mul_u32_u24 v26, 12, v25
v_sub_u32 v24, v24, v26
v_lshrrev_b32 v26, 2, v25
v_and_b32 v26, 2, v26
v_xor_b32 v24, v24, v26
v_cmp_gt_u32 vcc, s89, v24
v_mul_u32_u24 v25, s87, v25
v_lshl_add_u32 v24, v24, 4, v25
v_add_u32 v24, s88, v24
v_subrev_u32 v24, {1024*i}, v24
v_cndmask_b32 v{20+i}, v24, v28, vcc""")
A(f"""s_branch L_LGO
L_LQKV:
s_mov_b32 s42, {512*3072}
s_mov_b32 s82, {16*3072}
s_sub_u32 s87, s7, 15
s_lshl_b32 s87, s87, 7
s_mul_i32 s88, s4, {8*3072}
s_add_u32 s87, s87, s88
v_mul_u32_u24 v24, 3072, v24
v_and_b32 v26, 1, v26
v_lshlrev_b32 v26, 2, v26
v_xor_b32 v25, v25, v26
s_lshl_b32 s88, s4, 1
v_xor_b32 v25, s88, v25
v_lshl_add_u32 v20, v25, 4, v24
v_add_u32 v20, s87, v20
v_mov_b32 v21, v20
v_mov_b32 v22, v20
L_LGO:""")
XG = ["s70", "s71", "s72"]; WL = ["s52", "s53", "s54", "s55"]; WG = ["s73", "s77", "s14", "s15"]
sh = {2: 1, 4: 2, 8: 0, 1: 0}[R_]
if OPT["sub"]:
    A(f"""s_lshr_b32 s86, s90, {sh}
s_mul_i32 s87, s86, 43
s_lshr_b32 s87, s87, 7
s_mul_i32 s87, s87, 3
s_sub_u32 s86, s86, s87
s_lshr_b32 s87, s6, {sh}""")
else:
    A("s_mov_b32 s86, 0\ns_mov_b32 s87, 0")
A("""s_lshl_b32 s70, s86, 12
s_add_u32 s71, s70, 4096
s_cmp_eq_u32 s71, 12288
s_cselect_b32 s71, 0, s71
s_add_u32 s72, s70, s71
s_sub_u32 s72, 12288, s72""")
XN = ["s11", "s13", "s91"]
A(f"s_lshl_b32 s86, s4, 4\ns_add_u32 s86, s86, s6\ns_cmp_eq_u32 s86, 10\ns_cselect_b32 s88, {8192 if OPT['xz'] else 0}, 0\ns_cmp_eq_u32 s12, 1\ns_cselect_b32 s88, {65536 if OPT['xz'] else 0}, s88")
for g in range(3): A(f"s_cmp_lt_u32 {XG[g]}, s88\ns_cselect_b32 {XN[g]}, 0, 2097152")
for g in range(4):
    A(f"s_add_u32 s86, s87, {g}\ns_and_b32 s86, s86, 3\ns_mul_i32 {WL[g]}, s86, 3072\ns_mul_i32 {WG[g]}, s86, s82")
kwait()
A(f"""s_cmp_eq_u32 s4, 1
s_cselect_b32 s40, s26, s24
s_cselect_b32 s41, s27, s25
s_cmp_ge_u32 s7, 15
s_cselect_b32 s40, s18, s40
s_cselect_b32 s41, s19, s41""")
stamp((1, 2))
def issue_head():
    A(f"""s_lshl_b32 s80, s79, 7
s_mul_i32 s81, s79, s82
s_lshl_b32 s81, s81, 2
s_add_u32 s88, s78, s74
s_add_u32 s89, s78, s75""")
ORDER = ["x0", "w0", "x1", "w1", "x2", "w2", "w3"]
def issue_part(lo, hi):
    n = 0
    for it in ORDER[lo:hi]:
        g = int(it[1])
        if it[0] == 'x':
            A(f"s_add_u32 m0, s88, {XG[g]}\ns_lshl3_add_u32 s86, {XG[g]}, s80\ns_mov_b32 s38, {XN[g]}")
            for q in range(4): A(f"buffer_load_dwordx4 v{16+q}, {X}, s86 offen offset:{1024*q} lds")
            n += 4
        else:
            A(f"s_add_u32 m0, s89, {WL[g]}\ns_add_u32 s87, s81, {WG[g]}")
            for j in range(3): A(f"buffer_load_dwordx4 v{20+j}, {W}, s87 offen offset:{1024*j} lds")
            n += 3
    return n
def issue_tail():
    A(f"""s_add_u32 s79, s79, 1
s_and_b32 s79, s79, 7
s_add_u32 s78, s78, {SLOT}
s_cmp_eq_u32 s78, {3*SLOT}
s_cselect_b32 s78, 0, s78""")
HH = OPT["h"]
issue_head(); issue_part(0, 7); issue_tail()
stamp((2, 2))
issue_head(); n_ = issue_part(0, HH)
p2setup()
A(f"s_waitcnt vmcnt({n_})")
stamp((1, 1), (3, 2))
A("s_barrier\ns_mov_b32 s83, 0\nL_LLOOP:")
rawblocks()
if OPT['nodma']: issue_tail(); issue_head()
else: issue_part(HH, 7); issue_tail(); issue_head(); issue_part(0, HH)
A(f"""s_add_u32 s83, s83, 1
s_waitcnt vmcnt({n_})
s_barrier
s_cmp_lt_u32 s83, 6
s_cbranch_scc1 L_LLOOP""")
stamp((2, 1), (4, 2))
issue_part(HH, 7)
A("s_mov_b32 s38, 2097152")
for n in range(N7): w2item(n)
A(f"s_waitcnt vmcnt({2*N7})\ns_barrier")
stamp((5, 2))
for n in range(N7, N8): w2item(n)
A("s_barrier\ns_branch L_W2")

def f_addr(dst):
    A(f"""s_sub_u32 s86, s7, 15
s_lshl_b32 s86, s86, 12
s_and_b32 s87, s6, 1
s_lshl_b32 s87, s87, 11
s_add_u32 s86, s86, s87
s_and_b32 s87, s6, 2
s_lshl_b32 s87, s87, 9
s_add_u32 s86, s86, s87
s_lshr_b32 s87, s6, 2
s_lshl_b32 s87, s87, 9
s_add_u32 s86, s86, s87
s_lshl1_add_u32 s91, s86, {WS_FF}
s_add_u32 s86, s86, {WS_F}
v_lshl_add_u32 v{dst}, v0, 4, s86""")
assert OPT["rot"] in (2, 4, 8)
A(f"""L_SIDE:
s_add_u32 s13, s6, s90
s_and_b32 s13, s13, {OPT['rot']-1}
s_lshl_b32 s13, s13, { {2:2, 4:1, 8:0}[OPT['rot']] }
s_lshr_b32 s14, s6, { {2:1, 4:2, 8:3}[OPT['rot']] }
s_add_u32 s15, s13, s14
s_cmp_ge_u32 s6, 8
s_cselect_b32 s14, 99, s14
s_cmp_eq_u32 s12, 1
s_cselect_b32 s14, 99, s14
s_and_b32 s77, s4, 1""")
wfrag_addr(62, "s77", 24, "L_SA")
A(f"""s_cmp_eq_u32 s14, 1
s_cselect_b32 s86, {SLOT}, 0
s_cmp_eq_u32 s14, 2
s_cselect_b32 s86, {2*SLOT}, s86
v_add_u32 v62, s86, v62
v_add_u32 v63, s86, v63
v_and_b32 v24, 16, v0
v_cmp_ne_u32 s[72:73], 0, v24
v_and_b32 v24, 31, v0
s_mul_i32 s86, s77, 768
s_add_u32 s86, s86, {CF}
v_lshl_add_u32 v17, v24, 3, s86
s_mul_i32 s87, s77, 96
v_add_u32 v21, s87, v0
v_add3_u32 v22, v24, s87, 64
s_lshl_b32 s86, s8, 4
s_add_u32 s86, s86, {WS_RS}
v_lshl_add_u32 v19, v21, 4, s86
v_lshl_add_u32 v20, v22, 4, s86
s_lshl_b32 s86, s7, 13
s_lshl_b32 s87, s77, 9
s_add_u32 s86, s86, s87
s_add_u32 s86, s86, {WS_CS}
s_lshl_b32 s87, s15, 10
s_add_u32 s74, s86, s87
v_lshlrev_b32 v23, 4, v24
v_lshrrev_b32 v25, 5, v0
v_lshl_add_u32 v18, v25, 12, v23
v_add_u32 v18, s86, v18""")
for r in range(52, 56): A(f"v_mov_b32 v{r}, 0x3f803f80")
kwait()
p2setup()
A(f"""s_cmp_lt_u32 s7, 15
s_cbranch_scc1 L_NOCLR
s_cmp_ge_u32 s6, 8
s_cbranch_scc1 L_NOCLR""")
f_addr(24)
A(f"""v_mov_b32 v28, -1
v_mov_b32 v29, -1
v_mov_b32 v30, -1
v_mov_b32 v31, -1
s_mov_b32 exec_hi, 0
buffer_store_dwordx4 v[28:31], v24, {WS}, 0 offen sc1
s_mov_b32 exec_hi, -1""")
if OPT["prew"]: A(f"s_sub_u32 s86, {TAG}, 1\nv_mov_b32 v32, s86\nv_lshlrev_b32 v24, 4, v0\nbuffer_store_dwordx4 v[32:35], v24, {WS}, s91 offen sc1")
A(f"""L_NOCLR:
s_mov_b32 s83, 0
s_waitcnt vmcnt(0)
L_SLOOP:
s_barrier""")
if OPT["w2late"] >= 0:
    A(f"""s_cmp_eq_u32 s83, {OPT['w2late']}
s_cbranch_scc0 L_NOPF2
s_mul_i32 s86, s5, 59
s_mul_i32 s87, s77, 30
s_add_u32 s86, s86, s87
v_min_u32 v16, 29, v0
v_add_u32 v16, s86, v16
v_lshlrev_b32 v16, 7, v16
buffer_load_dword v60, v16, {WD}, 0 offen
v_subrev_u32 v16, {1376*1024}, v16
buffer_load_dword v61, v16, {WO}, 0 offen
L_NOPF2:""")
A("s_cmp_eq_u32 s83, s14\ns_cbranch_scc0 L_LNOCS")
for t in range(2):
    A(f"s_cmp_ge_u32 s7, 15\ns_cbranch_scc1 L_CSQ{t}")
    for role in "GQ":
        if role == 'Q': A(f"s_branch L_CSM{t}\nL_CSQ{t}:")
        for j in range(6):
            for sec in range(2):
                par, off = woff(role, t, j, sec)
                A(f"ds_read_b64_tr_b16 {v(24+4*j+2*sec,2)}, v{62+par} offset:{off}")
    A(f"L_CSM{t}:\ns_waitcnt lgkmcnt(0)")
    for j in range(6): A(mf16(72+4*j, 52, 24+4*j, 0 if t == 0 else None))
A(f"v_mov_b32 v51, {TAG}")
for u in range(3): A(f"v_cndmask_b32 v{48+u}, v{72+4*u}, v{84+4*u}, s[72:73]")
A(f"""s_mov_b32 exec_hi, 0
buffer_store_dwordx4 v[48:51], v23, {WS}, s74 offen sc1
s_mov_b32 exec_hi, -1
L_LNOCS:""")
rawblocks()
A(f"""s_add_u32 s83, s83, 1
s_cmp_lt_u32 s83, 6
s_cbranch_scc1 L_SLOOP""")
def st_loads():
    for p in range(4): A(f"buffer_load_dwordx4 {v(32+4*p,4)}, v18, {WS}, 0 offen offset:{1024*p} sc1")
    A(f"buffer_load_dwordx4 v[48:51], v19, {WS}, 0 offen sc1\nbuffer_load_dwordx4 v[52:55], v20, {WS}, 0 offen sc1")
st_loads()
A("s_barrier")
stamp((2, 1), (4, 2))
for n in range(N7): w2item(n)
A(f"s_mov_b32 s88, 0\ns_waitcnt vmcnt({2*N7})\ns_barrier")
stamp((5, 2))
A("L_SPC:")
tagcheck(24, 24, [35+4*p for p in range(6)])
A(f"""v_cmp_ne_u32 vcc, 0, v24
s_add_u32 s88, s88, 1
s_cmp_gt_u32 s88, {OPT['spin']}
s_cbranch_scc1 L_SPCD
s_cbranch_vccz L_SPCD""")
st_loads()
A(f"""s_waitcnt vmcnt(0)
s_branch L_SPC
L_SPCD:
s_mov_b32 s86, {RS}
s_mov_b32 s87, {RR}
v_lshl_add_u32 v24, v21, 4, s86
v_lshl_add_u32 v25, v22, 4, s86
v_lshl_add_u32 v21, v21, 2, s87
v_lshl_add_u32 v22, v22, 2, s87
ds_write_b128 v24, v[48:51]
ds_write_b128 v25, v[52:55]
ds_write_b32 v21, v49
ds_write_b32 v22, v53""")
note("s88", 2)
for p in range(1, 4):
    for u in range(3): A(f"v_add_f32 v{32+u}, v{32+u}, v{32+4*p+u}")
for u in range(3): A(f"v_mov_b32 v{36+u}, v{32+u}")
for u in range(3): A(f"v_permlane32_swap_b32 v{32+u}, v{36+u}")
for u in range(3): A(f"v_add_f32 v{32+u}, v{32+u}, v{36+u}")
for u in range(3): A(f"v_and_b32 v{36+u}, 0xffff0000, v{32+u}")
for u in range(3): A(f"v_sub_f32 v{32+u}, v{32+u}, v{36+u}")
for u in range(3): A(f"v_and_b32 v{40+u}, 0xffff0000, v{32+u}")
for u in range(3): A(f"v_sub_f32 v{32+u}, v{32+u}, v{40+u}")
for u in range(3): A(f"v_lshrrev_b32 v{36+u}, 16, v{36+u}")
for u in range(3): A(f"v_or_b32 v{56+2*u}, v{36+u}, v{40+u}\nv_lshrrev_b32 v{57+2*u}, 16, v{32+u}")
for u in range(3): A(f"ds_write_b64 v17, {v(56+2*u,2)} offset:{256*u}")
A("s_waitcnt lgkmcnt(0)\ns_barrier")
for n in range(N7, N8): w2item(n)

A("L_W2:")
stamp((3, 1), (6, 2))
AB = 8
A(f"v_lshlrev_b32 v16, 4, v0\nv_add_u32 v16, s76, v16")
def wr(reg, slot, blk):
    off = slot*SLOT + blk*2048
    A(f"ds_write_b128 v16, {v(reg,4)} offset:{off}\nds_write_b128 v16, {v(reg+4,4)} offset:{off+1024}")
def rd6(base, sl):
    for kk in range(6):
        E(w2read(base+8*kk, sl, kk, AB))
        if kk % 3 == 2: A("s_waitcnt lgkmcnt(0)")
nis = N8
for op in list(range(N8, 12)) + post:
    if isinstance(op, int):
        assert op == nis; nis += 1
        w2item(op, OPT["thr"] if (OPT["thr"] and op < OPT["unthr"]) else None)
    elif op in ("bA", "bB"):
        base = 96 if op == "bA" else 144
        for kk in range(6): wr(base+8*kk, 1, kk)
        A("s_waitcnt lgkmcnt(0)"); rd6(base, 1)
    elif op == "wO":
        for kk in range(6): wr(192+8*kk, 1, kk)
    elif op[0] == "cp":
        A(f"s_waitcnt vmcnt({2*(nis-op[3])})"); rd6(op[1], op[2])
    elif op[0] == "fwo":
        A(f"""s_lshl_b32 s86, s4, 2
s_add_u32 s86, s86, {LF}
v_mov_b32 v18, s86
v_mov_b32 v17, 1
s_waitcnt vmcnt({2*(nis-op[1])}) lgkmcnt(0)
ds_write_b32 v18, v17""")
def reducer(CTr, va, vf, vc, msk, sz, pairbase):
    A(f"""s_lshr_b32 s79, s6, 1
s_lshl_b32 s86, s79, 8
s_add_u32 s86, s86, {pairbase}
v_lshrrev_b32 v{va}, 4, v0
v_mul_u32_u24 v{va}, 3072, v{va}
v_and_b32 v{vc}, 15, v0
v_lshl_add_u32 v{va}, v{vc}, 4, v{va}
v_add_u32 v{va}, s86, v{va}""")
    for j in range(12): A(f"v_mov_b32 v{CTr(5)+j}, " + (TAG if j % 4 == 3 else "0"))
    f_addr(vf)
    A(f"""v_lshrrev_b32 v24, 1, v0
v_mul_u32_u24 v24, 92, v24
v_and_b32 v25, 1, v0
v_lshl_add_u32 v24, v25, 1, v24
s_lshl_b32 s86, s7, 2
s_and_b32 s87, s6, 1
s_add_u32 s86, s86, s87
s_lshl_b32 s86, s86, 10
s_add_u32 s86, s86, {WS_FLAG}
v_lshl_add_u32 v24, v24, 10, s86""")
    if OPT["hints"]: spin_flag(24, 25, 22, 0)
    stamp((4, 3))
    A("s_mov_b32 s88, 0\nL_KVC:")
    for p in range(6):
        A(f"s_mov_b32 s86, {12288*p}")
        if p == 5: A("s_mov_b32 exec_hi, 0")
        for g_ in range(3): A(f"buffer_load_dwordx4 {v(CTr(p)+4*g_,4)}, v{va}, {WS}, s86 offen offset:{1024*g_} sc1")
    A("s_mov_b32 exec_hi, -1\ns_waitcnt vmcnt(0)")
    if OPT["redearly"] and not OPT["lred"]:
        A("s_cmp_lg_u32 s88, 0\ns_cbranch_scc1 L_NOFL"); flagstore(2); A("L_NOFL:")
    tagcheck(vc, 60, [CTr(n//3)+4*(n%3)+3 for n in range(18)])
    A(f"""v_cmp_ne_u32 vcc, 0, v{vc}
s_add_u32 s88, s88, 1
s_cmp_gt_u32 s88, {OPT['spin']}
s_cbranch_scc1 L_KVD
s_cbranch_vccnz L_KVC
L_KVD:""")
    note("s88", 3)
    rr = lambda p, j: CTr(p) + 4*(j//3) + j % 3
    for j in range(9): A(f"v_add_f32 v{24+j}, v{rr(0,j)}, v{rr(1,j)}")
    for p in range(2, 6):
        for j in range(9): A(f"v_add_f32 v{24+j}, v{24+j}, v{rr(p,j)}")
    for sw in (16, 32):
        for j in range(9): A(f"v_mov_b32 v{36+j}, v{24+j}")
        for j in range(9): A(f"v_permlane{sw}_swap_b32 v{24+j}, v{36+j}")
        for j in range(9): A(f"v_add_f32 v{24+j}, v{24+j}, v{36+j}")
    A(f"""s_lshr_b32 s86, s79, 1
s_lshl_b32 s86, s86, 3
s_add_u32 s87, s86, 2
s_add_u32 s88, s86, 4
s_add_u32 s89, s86, 6
v_mov_b32_dpp v33, v32 row_shl:1 row_mask:0xf bank_mask:0xf""")
    for j in range(4): A(f"v_cvt_pk_bf16_f32 v{36+j}, v{24+2*j}, v{25+2*j}")
    A(f"""v_cvt_pk_bf16_f32 v33, v32, v33
s_bitcmp1_b32 s79, 0
s_cselect_b64 s[80:81], -1, 0
s_xor_b64 s[80:81], s[80:81], {msk}""")
    for j in range(4): A(f"v_readlane_b32 s{sz+j}, v33, s{86+j}")
    for j in range(4): A(f"v_mov_b32 v{40+j}, s{sz+j}")
    for j in range(4): A(f"v_cndmask_b32 v{44+j}, v{36+j}, v{40+j}, s[80:81]")
    A(f"""s_mov_b32 exec_hi, 0
buffer_store_dwordx4 v[44:47], v{vf}, {WS}, 0 offen sc1
s_mov_b32 exec_hi, -1""")
    for j in range(4): A(f"v_mov_b32 v{24+j}, {TAG}")
    if OPT["hints"]: A(f"v_lshlrev_b32 v28, 4, v0\nbuffer_store_dwordx4 v[24:27], v28, {WS}, s91 offen sc1")
    stamp((5, 3))
if OPT["lred"]:
    A(f"""s_cmp_lg_u32 s3, 3
s_cbranch_scc1 L_NORED
s_cmp_lt_u32 s7, 15
s_cbranch_scc1 L_NORED
s_cmp_ge_u32 s6, 8
s_cbranch_scc1 L_NORED
s_setprio 2
s_sub_u32 s87, s7, 15
s_lshl_b32 s87, s87, 1
s_and_b32 s86, s6, 1
s_add_u32 s87, s87, s86
s_mul_i32 s77, s87, {24*3072}
s_add_u32 s77, s77, {WS_KV}""")
    reducer(lambda p: 192+12*p if p < 5 else 80, 19, 20, 21, "s[72:73]", 52, "s77")
    A("s_setprio 0\nL_NORED:")
xres_load()
stamp((4, 1), (1, 3), (1, 4))
STG = OPT["stage"]
if OPT["gate"]:
    A(f"v_mov_b32 v16, {LF+32}"); spin_lds(16, 17, OPT["gate"])
if OPT["ydelay"] >= 0:
    A(f"s_lshl_b32 s86, s4, 2\ns_add_u32 s86, s86, {LF+16}\nv_mov_b32 v16, s86")
    spin_lds(16, 17)
    if OPT["ydelay"]: A(f"s_sleep {OPT['ydelay']}")
spin_flag(5, 3, 24 if OPT["comb"] else 16, 0 if STG else 2)
if OPT["comb"]:
    assert not STG
    A(f"s_lshl_b32 s86, s4, 2\ns_add_u32 s86, s86, {LF+48}\nv_mov_b32 v2, s86\nv_mov_b32 v3, 1\nds_write_b32 v2, v3")
note("s88", 4)
stamp((5, 1), (2, 3), (2, 4))
def hload(kd):
    va, kk = (6, ksoff(kd)) if kd < 21 else (7, 0)
    b = 16 + 8*(kd % 8)
    return [f"s_mov_b32 s86, {kk*65536}",
            f"buffer_load_dwordx4 {v(b,4)}, v{va}, {H}, s86 offen sc1",
            f"buffer_load_dwordx4 {v(b+4,4)}, v{va}, {H}, s86 offen offset:1024 sc1"]
res_loc = lambda kd: (2, kd-12) if kd < 16 else (0, kd-16)
YD = OPT["ydep"]; assert YD <= 7
for kd in range(YD): E(hload(kd))
for kd in range(22):
    wf = 96+8*kd if kd < 12 else 80+8*(kd & 1)
    hb = 16 + 8*(kd % 8)
    if STG and kd+YD in (7, 14):
        c = (kd+YD)//7
        spin_flag(5, 3, 16, c)
    A(f"s_waitcnt vmcnt({2*(min(kd+YD-1, 21)-kd)})" + (" lgkmcnt(0)" if kd >= 12 else ""))
    ms = [mfmaH(192+32*r+16*c, wf+4*c, hb+4*r, 0 if kd <= OPT['h16'] else None, kd & 1) for r in range(2) for c in range(2)]
    fill = []
    if kd+YD < 22: fill += hload(kd+YD)
    if 12 <= kd+1 < 22: fill += w2read(80+8*((kd+1) & 1), *res_loc(kd+1), AB)
    E(interleave(ms, fill, 3))
    if kd == 0: stamp((3, 4))
    if kd == 10: stamp((4, 4))
stamp((6, 1), (3, 3), (5, 4))
def final(isy):
    xres_load(1)
    A(f"""v_lshlrev_b32 v2, 4, v0
v_add_u32 v3, s76, v2
v_add_u32 v4, {2*SLOT + (0 if isy else 8192)}, v3""")
    for q in range(4):
        for jq in range(4):
            if q < 3: A(f"ds_write_b128 v3, {v(192+16*q+4*jq,4)} offset:{(0 if isy else SLOT) + q*4096 + jq*1024}")
            else: A(f"ds_write_b128 v4, {v(192+16*q+4*jq,4)} offset:{jq*1024}")
    A(f"""s_lshl_b32 s87, s4, 12
s_add_u32 s86, s87, {SLOT}
s_cmp_eq_u32 s4, 3
s_cselect_b32 s86, {2*SLOT+8192}, s86
s_cselect_b32 s87, {2*SLOT}, s87
s_add_u32 s86, s86, {0 if isy else 2048}
s_add_u32 s87, s87, {0 if isy else 2048}
v_add_u32 v3, s87, v2
v_add_u32 v4, s86, v2
s_waitcnt lgkmcnt(0)""")
final(True)
A("s_branch L_FINAL")
A("L_COMPUTE:")
srd(WS, 32, 0x800000); srd(H, 32, 118*65536, WS_H); srd(OUT, 30, 2097152)
ACC = 112
for r in range(ACC, 256): A(f"v_mov_b32 v{r}, 0")
A(f"""v_lshlrev_b32 v16, 2, v0
v_add_u32 v16, {LF}, v16
v_mov_b32 v17, 0
s_mov_b64 exec, 0xffff
ds_write_b32 v16, v17
s_mov_b64 exec, -1
s_lshr_b32 s13, s4, 1
s_and_b32 s14, s4, 1
s_movk_i32 s11, 0x1ff
s_lshl_b32 s86, s13, 4
s_add_u32 s86, s86, s6
s_cmp_eq_u32 s86, 10
s_cselect_b32 s11, 0x1c0, s11
s_mul_i32 s86, s14, 0x1b6
s_cmp_eq_u32 s7, 14
s_cselect_b32 s86, s86, 0x1ff
s_and_b32 s11, s11, s86
s_cmp_eq_u32 s12, 1
s_cselect_b32 s11, 0, s11
s_mul_i32 s76, s4, {Q}
s_lshr_b32 s86, s9, 4
s_mul_i32 s87, s14, 3
s_add_u32 s86, s86, s87
s_lshl_b32 s87, s7, 1
s_add_u32 s87, s87, s14
s_lshl1_add_u32 s87, s87, 26
s_and_b32 s88, s11, 0xdb
s_cmp_ge_u32 s7, 15
s_cselect_b32 s86, s87, s86
s_cselect_b32 s11, s88, s11
s_lshl_b32 s86, s86, 6
s_lshr_b32 s87, s8, 5
s_add_u32 s86, s86, s87
s_mul_i32 s87, s13, 3
s_add_u32 s86, s86, s87
s_lshl_b32 s86, s86, 10
v_lshl_add_u32 v1, v0, 4, s86
s_mov_b32 s80, 0
s_mov_b32 s81, 65536
s_mov_b32 s82, 131072
v_and_b32 v16, 15, v0
v_lshrrev_b32 v17, 4, v0
v_bfe_u32 v18, v0, 1, 3
v_xor_b32 v18, v18, v17
s_mul_i32 s86, s13, {96*128}
v_lshl_add_u32 v16, v16, 7, s86
v_lshl_add_u32 v2, v18, 4, v16
v_xor_b32 v3, 64, v2""")
wfrag_addr(4, "s14", 16, "L_CA")
A(f"""s_mul_i32 s86, s6, 23
s_add_u32 s86, s86, s7
s_cmp_eq_u32 s12, 1
s_cselect_b32 s86, 255, s86
s_lshl_b32 s86, s86, 2
s_add_u32 s86, s86, s4
s_lshl_b32 s86, s86, 10
s_add_u32 s15, s86, {WS_FLAG}""")
stamp((2, 2))
A("s_waitcnt vmcnt(0)")
stamp((5, 2))
for j in range(8):
    A(f"v_lshlrev_b32 v{16+2*j}, 16, v{8+j}\nv_and_b32 v{17+2*j}, 0xffff0000, v{8+j}")
def red32(r, t):
    for sh_ in (8, 4, 2, 1):
        A(f"v_add_f32_dpp v{r}, v{r}, v{r} row_ror:{sh_} row_mask:0xf bank_mask:0xf")
    A(f"v_mov_b32 v{t}, v{r}\nv_permlane16_swap_b32 v{r}, v{t}\nv_add_f32 v{r}, v{r}, v{t}")
for j in range(4): A(f"v_pk_add_f32 {v(8+2*j,2)}, {v(16+2*j,2)}, {v(24+2*j,2)}")
A("v_pk_add_f32 v[8:9], v[8:9], v[12:13]\nv_pk_add_f32 v[10:11], v[10:11], v[14:15]\nv_pk_add_f32 v[8:9], v[8:9], v[10:11]\nv_add_f32 v8, v8, v9")
red32(8, 9)
A(f"v_mul_f32 v8, {hx(-1/512)}, v8")
for j in range(8): A(f"v_pk_add_f32 {v(16+2*j,2)}, {v(16+2*j,2)}, v[8:9] op_sel_hi:[1,0]")
A("v_pk_mul_f32 v[10:11], v[16:17], v[16:17]\nv_pk_mul_f32 v[12:13], v[18:19], v[18:19]")
for j in range(2, 8): A(f"v_pk_fma_f32 {v(10+2*(j&1),2)}, {v(16+2*j,2)}, {v(16+2*j,2)}, {v(10+2*(j&1),2)}")
A("v_pk_add_f32 v[10:11], v[10:11], v[12:13]\nv_add_f32 v10, v10, v11")
red32(10, 9)
A(f"""v_mul_f32 v10, {hx(1/512)}, v10
v_cvt_pk_bf16_f32 v10, v10, v10
v_and_b32 v10, 0xffff0000, v10
v_add_f32 v10, {hx(1e-5)}, v10
v_cvt_pk_bf16_f32 v10, v10, v10
v_and_b32 v10, 0xffff0000, v10
v_sqrt_f32 v10, v10
v_cvt_pk_bf16_f32 v32, v8, v8
v_cvt_pk_bf16_f32 v10, v10, v10
v_and_b32 v10, 0xffff0000, v10
v_rcp_f32 v33, v10
v_mul_f32 v34, v10, v10
v_lshlrev_b32 v7, 4, v7
v_add_u32 v7, {WS_RS}, v7
s_waitcnt lgkmcnt(0)
s_add_u32 {TAG}, {TAG}, 0x9E3779B9
v_mov_b32 v35, {TAG}
v_mov_b32 v36, {TAG}
v_mov_b32 v37, {TAG}
v_mov_b32 v38, {TAG}
v_mov_b32 v39, {TAG}
v_lshlrev_b32 v6, 4, v0
s_mov_b32 s78, 0
s_mov_b32 s79, {SLOT}
s_mov_b32 s83, 0""")
stamp((1, 1), (3, 2))
A(f"""s_barrier
s_mov_b32 exec_lo, 1
s_mov_b32 exec_hi, 1
buffer_store_dwordx4 v[32:35], v7, {WS}, 0 offen sc1
s_mov_b64 exec, -1""")
if OPT["prew"]:
    for kind in ((0, 1, 2) if OPT["stage"] else (0, 2)):
        sk = L("PW")
        if kind == 0 and not OPT["stage"]: A(f"s_cmp_lt_u32 s7, 15\ns_cbranch_scc1 {sk}")
        A(f"s_add_u32 s86, s15, {kind << 20}\nbuffer_store_dwordx4 v[28:31], v6, {WS}, s86 offen sc1")
        A.label(sk)
stamp((2, 1), (4, 2))
A("s_cmp_ge_u32 s7, 15\ns_cbranch_scc1 L_QKV")

XB = lambda buf, a: (40 if buf == 0 else 8) + 4*a
WF = lambda buf, j: 64 + 24*buf + 4*j
acc = lambda a, j: ACC + 4*(6*a+j)
CB = 40
def reads(role, s_):
    w_ = []
    for j in range(6):
        for sec in range(2):
            par, off = woff(role, s_, j, sec)
            w_.append(f"ds_read_b64_tr_b16 {v(WF(s_,j)+2*sec,2)}, v{4+par} offset:{off}")
    o = []
    for a in range(6): o += [f"ds_read_b128 {v(XB(s_,a),4)}, v{2+s_} offset:{2048*a}"] + w_[2*a:2*a+2]
    return o
def mm(role, wb, a, j, xb=1):
    return mf16(acc(a,j), WF(wb,j), XB(xb,a)) if (role == 'G' or j < 2) else mf16(acc(a,j), XB(xb,a), WF(wb,j))
def grp(role, buf, a): return [mm(role, buf, a, j, buf) for j in range(6)]
def spread(ms, fill, num, den):
    o = []; f = list(fill); nr = 0
    for i, m in enumerate(ms):
        o.append(m)
        k = ((i+1)*num)//den - (i*num)//den
        for _ in range(k):
            if f:
                x = f.pop(0)
                if x.startswith("ds_read"):
                    nr += 1
                    if nr == 13: o.append("s_waitcnt lgkmcnt(6)")
                o.append(x)
    assert not f
    return o
def mainloop(role):
    lp, ex = f"L_ML{role}", f"L_MX{role}"
    BP = OPT["bpos"]
    allm = lambda buf: [m for a in range(6) for m in grp(role, buf, a)]
    r0 = reads(role, 0); E(r0[:12]); A("s_waitcnt lgkmcnt(6)"); E(r0[12:])
    A.label(lp)
    A("s_waitcnt lgkmcnt(0)")
    sal = f"""s_add_u32 s78, s78, 1
s_cmp_eq_u32 s78, 3
s_cselect_b32 s86, {-2*SLOT & 0xffffffff}, s79
s_cselect_b32 s78, 0, s78
s_add_u32 s83, s83, 1
s_cmp_eq_u32 s83, 8""".split("\n") + [f"v_add_u32 v{r}, s86, v{r}" for r in (2, 4, 5, 3)]
    E(spread(allm(0), reads(role, 1) + sal, OPT["rgap"]+2, OPT["rgap"]+3))
    A("s_waitcnt lgkmcnt(0)")
    E(allm(1)[:BP])
    A(f"s_barrier\ns_cbranch_scc1 {ex}")
    E(spread(allm(1)[BP:], reads(role, 0), OPT["rgap"], 4))
    A(f"s_branch {lp}")
    A.label(ex)
    pre = ["s_waitcnt vmcnt(0)", f"v_and_b32 v2, 15, v0",
           f"s_mul_i32 s86, s13, {96*16}", f"s_add_u32 s86, s86, {RS}",
           f"v_lshl_add_u32 v3, v2, 4, s86",
           f"s_mul_i32 s86, s14, 768", f"s_add_u32 s86, s86, {CF}",
           f"v_lshl_add_u32 v4, v2, 3, s86",
           f"v_cmp_gt_u32 vcc, 16, v0"]
    rd = [f"ds_read_b128 {v(CB+4*a,4)}, v3 offset:{256*a}" for a in range(6)]
    rd += [f"ds_read_b64 {v(WF(0,j),2)}, v4 offset:{256*(j%3)+128*(j//3)}" for j in range(6)]
    z = []
    for j in range(6): z += [f"v_mov_b32 v{WF(0,j)+2}, 0", f"v_mov_b32 v{WF(0,j)+3}, 0"]
    if role == 'Q':
        z += ["v_lshrrev_b32 v5, 4, v0", f"s_mul_i32 s86, s13, {96*4}", f"s_add_u32 s86, s86, {RR}", "v_lshl_add_u32 v5, v5, 4, s86"]
    xs = lambda a: [f"v_cndmask_b32 v{XB(1,a)}, 0, v{CB+4*a}, vcc", f"v_and_b32 v{XB(1,a)+1}, 0xffff, v{XB(1,a)}", f"v_mov_b32 v{XB(1,a)+2}, 0", f"v_mov_b32 v{XB(1,a)+3}, 0"]
    E(interleave(allm(1)[BP:24], pre + rd + z, 2))
    A("s_waitcnt lgkmcnt(0)")
    E(interleave(grp(role,1,4), xs(0) + xs(1) + xs(2), 2))
    E(interleave(grp(role,1,5), xs(3) + xs(4), 2))
    A("s_nop 3"); E(xs(5))

def flagstore(kind):
    A(f"s_add_u32 s86, s15, {kind << 20}\nbuffer_store_dwordx4 v[36:39], v6, {WS}, s86 offen sc1")
def publish(staged):
    if staged:
        A("s_cmp_eq_u32 s11, 0x1ff\ns_cbranch_scc1 L_PFULL\ns_waitcnt vmcnt(0)\nL_PFULL:")
        for c, w_ in enumerate((6, 4, 2)):
            A(f"s_waitcnt vmcnt({w_})"); flagstore(c)
    else:
        A("s_waitcnt vmcnt(0)"); flagstore(2)
    if OPT["ydelay"] >= 0:
        A(f"s_lshl_b32 s86, s4, 2\ns_add_u32 s86, s86, {LF+16}\nv_mov_b32 v2, s86\nv_mov_b32 v3, 1\nds_write_b32 v2, v3")
mainloop('G')
C1 = -2.0*0.7978845608028654*1.4426950408889634
cst = []
for a in range(6):
    b = CB+4*a
    cst += [f"v_mul_f32 v{b}, {hx(C1)}, v{b+1}", f"v_mul_f32 v{b+3}, v{b+1}, v{b+1}",
            f"v_mul_f32 v{b+3}, {hx(0.044715)}, v{b+3}", f"v_mul_f32 v{b+1}, v{b}, v{b+3}"]
corr = lambda u: [mm('G', 0, a, j) for a in range(6) for j in (u, u+3)]
E(interleave(corr(0), cst, 2))
A('s_nop 3')
stamp((3, 1), (1, 3))
n = 0
ELSE = []
A0 = A
class MixG:
    def __init__(s_, pend, every): s_.p = list(pend); s_.e = every; s_.n = 0
    def __call__(s_, t):
        for x in t.split("\n"):
            A0(x); s_.n += 1
            if s_.p and s_.n % s_.e == 0: A0(s_.p.pop(0))
for u in range(3):
    for a in range(3):
        sk = L("GS")
        pend = corr(u+1)[4*a:4*a+4] if u < 2 else []
        A0(f"s_bitcmp1_b32 s11, {3*a+u}\ns_cbranch_scc0 {sk + ('E' if pend else '')}")
        if pend: ELSE.append((sk, pend))
        if not OPT['gmix']: E(pend); pend = []
        A = MixG(pend, 3)
        T = 88 + 8*(n & 1); P = 104 + 4*(n & 1); n += 1
        gp = [acc(2*a + j//2, u) + 2*(j & 1) for j in range(4)]
        up = [acc(2*a + j//2, u+3) + 2*(j & 1) for j in range(4)]
        cb = [CB+4*(2*a + j//2) for j in range(4)]
        for j in range(4): A(f"v_pk_mul_f32 {v(T+2*j,2)}, {v(gp[j],2)}, {v(gp[j],2)}")
        for j in range(4): A(f"v_pk_fma_f32 {v(T+2*j,2)}, {v(T+2*j,2)}, {v(cb[j],2)}, {v(cb[j],2)} op_sel:[0,1,0] op_sel_hi:[1,1,0]")
        for j in range(4): A(f"v_pk_mul_f32 {v(T+2*j,2)}, {v(T+2*j,2)}, {v(gp[j],2)}")
        for j in range(8): A(f"v_exp_f32 v{T+j}, v{T+j}")
        for j in range(4): A(f"v_pk_mul_f32 {v(gp[j],2)}, {v(gp[j],2)}, {v(up[j],2)}")
        for j in range(4): A(f"v_pk_fma_f32 {v(T+2*j,2)}, {v(T+2*j,2)}, {v(cb[j]+2,2)}, {v(cb[j]+2,2)} op_sel_hi:[1,0,0]")
        for j in range(8): A(f"v_rcp_f32 v{T+j}, v{T+j}")
        for j in range(4): A(f"v_pk_mul_f32 {v(T+2*j,2)}, {v(T+2*j,2)}, {v(gp[j],2)}")
        for j in (0, 2, 1, 3): A(f"v_cvt_pk_bf16_f32 v{P+j}, v{T+2*j}, v{T+2*j+1}")
        A(f"v_permlane16_swap_b32 v{P}, v{P+2}\nv_permlane16_swap_b32 v{P+1}, v{P+3}")
        A = A0
        A(f"buffer_store_dwordx4 {v(P,4)}, v1, {H}, s{80+u} offen offset:{1024*a} sc1")
        A.label(sk)
    if u == 0: stamp((2, 3))
stamp((4, 1), (4, 3))
publish(STG)
A("s_branch L_SPART")
for sk, pend in ELSE:
    A.label(sk + "E"); E(pend); A(f"s_nop 7\ns_branch {sk}")

A("L_QKV:")
mainloop('Q')
RV, ONE, G = 88, 32, 8
cst = [f"ds_read_b128 {v(RV+4*a,4)}, v5 offset:{64*a}" for a in range(6)] + f"""s_mov_b32 s70, {hx(1.4426950408889634)}
s_mov_b32 s71, {hx(1.4426950408889634)}
s_mov_b32 s72, {hx(1e-6)}
s_mov_b32 s73, {hx(1e-6)}
v_and_b32 v3, 16, v0
v_cmp_ne_u32 s[74:75], 0, v3
s_sub_u32 s87, s7, 15
s_lshl_b32 s87, s87, 1
s_add_u32 s87, s87, s14
s_mul_i32 s77, s87, {24*3072}
s_add_u32 s77, s77, {WS_KV}
s_lshl_b32 s86, s6, 1
s_add_u32 s86, s86, s13
s_mul_i32 s86, s86, 3072
s_add_u32 s86, s86, s77
v_lshl_add_u32 v7, v0, 4, s86""".split("\n") + [f"v_mov_b32 v{ONE+j}, 0x3f803f80" for j in range(4)]
E(interleave([mm('Q', 0, a, j) for a in (5, 4) for j in (4, 5, 2, 3)], cst, 4))
A("s_waitcnt lgkmcnt(0)")
stamp((3, 1))
PEND = [mm('Q', 0, a, j) for a in (3, 2, 1, 0) for j in (4, 5, 2, 3)] + [mm('Q', 0, a, j) for a in (5, 4, 3, 2, 1, 0) for j in (0, 1)]
class Mix:
    def __init__(s_, pend, every): s_.p = pend; s_.e = every; s_.n = 0
    def __call__(s_, t):
        for x in t.split("\n"):
            A(x); s_.n += 1
            if s_.p and s_.n % s_.e == 0: A(s_.p.pop(0))
def phi(pairs, T, dst, rop, A=A):
    for j in range(8 if rop else 0):
        o, lo, hi = rop(j)
        A(f"v_pk_fma_f32 {v(pairs[j],2)}, {v(pairs[j],2)}, {o}, s[72:73] op_sel:[0,{lo},0] op_sel_hi:[1,{hi},1]")
    for j in range(8): A(f"v_pk_mul_f32 {v(T+2*j,2)}, {v(pairs[j],2)}, s[70:71]")
    for j in range(16):
        r = pairs[j//2] + (j & 1)
        A(f"v_exp_f32 v{T+j}, v{T+j} clamp\nv_max_f32 v{r}, s72, v{r}")
    for j in range(8): A(f"v_pk_add_f32 {v(T+2*j,2)}, {v(T+2*j,2)}, {v(pairs[j],2)}")
    for j in range(8): A(f"v_cvt_pk_bf16_f32 v{dst[j]}, v{T+2*j}, v{T+2*j+1}")
prs = lambda a, j0: [acc(2*a + (j % 4)//2, j0 + j//4) + 2*(j & 1) for j in range(8)]
KVa, KVb, Za, Zb = acc(5,2), acc(5,3), acc(5,4), acc(5,5)
for a in (2, 1, 0):
    if a == 1: A("s_bitcmp1_b32 s11, 0\ns_cbranch_scc0 L_KVS")
    rv = lambda j: RV + 4*(2*a + (j % 4)//2) + 2*(j & 1)
    pv = prs(a, 4); pk = prs(a, 2)
    PK, PV, TT = 24, 80, 64
    if not OPT['qmix']: E(PEND); del PEND[:]
    M = Mix(PEND, 1) if a == 2 else A
    for j in range(8): M(f"v_pk_mul_f32 {v(pv[j],2)}, {v(pv[j],2)}, {v(rv(j),2)}")
    if a == 2:
        for j in range(8): M(f"v_pk_fma_f32 {v(pk[j],2)}, {v(pk[j],2)}, {v(rv(j),2)}, s[72:73] op_sel:[0,0,0] op_sel_hi:[1,1,1]")
        PV = acc(4, 4)
        M(f"v_cvt_pk_bf16_f32 v{PV}, v{pv[0]}, v{pv[0]+1}\nv_cvt_pk_bf16_f32 v{PV+1}, v{pv[1]}, v{pv[1]+1}")
        M(f"v_cvt_pk_bf16_f32 v{PV+2}, v{pv[2]}, v{pv[2]+1}\nv_cvt_pk_bf16_f32 v{PV+3}, v{pv[3]}, v{pv[3]+1}")
        for j in range(4, 8): M(f"v_cvt_pk_bf16_f32 v{PV+j}, v{pv[j]}, v{pv[j]+1}")
        E(PEND); del PEND[:]
        if OPT['qnop']: A('s_nop 7')
        phi(pk, TT, [PK+j for j in range(8)], None)
    else:
        for j in range(8): A(f"v_cvt_pk_bf16_f32 v{PV+j}, v{pv[j]}, v{pv[j]+1}")
        phi(pk, TT, [PK+j for j in range(8)], lambda j: (v(rv(j),2), 0, 1))
    c0 = 0 if a == 2 else None
    A(mf16(KVa, PK, PV, c0)); A(mf16(KVb, PK+4, PV+4, c0)); A(mf16(Za, ONE, PK, c0)); A(mf16(Zb, ONE, PK+4, c0))
A("L_KVS:")
for j in (3, 7, 11): A(f"v_mov_b32 v{G+j}, {TAG}")
A("s_nop 4")
for j in range(4): A(f"v_permlane16_swap_b32 v{KVa+j}, v{KVb+j}")
for j in range(8): A(f"v_mov_b32 v{G+4*(j//3)+j%3}, v{KVa+j}")
A(f"v_cndmask_b32 v{G+10}, v{Za}, v{Zb}, s[74:75]")
for g_ in range(3): A(f"buffer_store_dwordx4 {v(G+4*g_,4)}, v7, {WS}, 0 offen offset:{1024*g_} sc1")
if OPT["hints"]: flagstore(0)
stamp((4, 1), (1, 3))
for a in (2, 1, 0):
    if a == 1: A("s_bitcmp1_b32 s11, 0\ns_cbranch_scc0 L_PQS")
    D_ = 88 + 8*a
    phi(prs(a, 0), TT, [D_+j for j in range(8)], lambda j: (v(CB+4*(2*a + (j % 4)//2), 2), 1, 1))
    for hd in range(2):
        A(f"v_permlane16_swap_b32 v{D_+4*hd}, v{D_+4*hd+2}\nv_permlane16_swap_b32 v{D_+4*hd+1}, v{D_+4*hd+3}")
    A(f"buffer_store_dwordx4 {v(D_,4)}, v1, {H}, 0 offen offset:{1024*a} sc1")
    A(f"buffer_store_dwordx4 {v(D_+4,4)}, v1, {H}, s81 offen offset:{1024*a} sc1")
A("L_PQS:")
stamp((2, 3))
if not OPT["redearly"]: publish(False)
if not OPT["lred"]:
    A("s_and_b32 s86, s6, 9\ns_add_u32 s86, s86, 2\ns_cmp_eq_u32 s86, s4\ns_cbranch_scc0 " + ("L_QPUB" if OPT["redearly"] else "L_SPART"))
    reducer(lambda p: 128+12*p, 7, 9, 8, "s[74:75]", 70, "s77")
    if OPT["redearly"]:
        A("s_branch L_SPART\nL_QPUB:"); publish(False)

A("L_SPART:")
if OPT["sprio"] != OPT["prio"]: A(f"s_setprio {OPT['sprio']}")
stamp((5, 1), (3, 3))
xres_addr(1, 8); xres_load()
w2addr(4, 8, False)
A(f"""s_lshl_b32 s86, s4, 3
s_add_u32 s86, s86, 86
s_lshl_b32 s86, s86, 16
s_lshl_b32 s87, s84, 11
s_add_u32 s86, s86, s87
v_lshl_add_u32 v2, v0, 4, s86
s_mul_i32 s88, s84, 43
s_lshr_b32 s88, s88, 7
s_mul_i32 s88, s88, 23
s_lshl_b32 s87, s4, 1
s_add_u32 s88, s88, s87
s_add_u32 s88, s88, 15
s_lshl_b32 s88, s88, 12
s_add_u32 s88, s88, {WS_FLAG}
v_and_b32 v3, 7, v0
v_lshl_add_u32 v3, v3, 10, s88
s_lshl_b32 s74, s4, 13
s_add_u32 s74, s74, {WS_F}
v_lshl_add_u32 v8, v0, 4, s74
s_lshl_b32 s86, s4, 2
s_add_u32 s86, s86, {LF}
v_mov_b32 v10, s86
s_mov_b32 s72, {hx(1e-6)}
s_movk_i32 s73, 4096
s_mov_b32 s89, 0""")
if OPT["warm"]:
    assert OPT["sd"] == 8
    A("s_mov_b32 s75, 1\ns_mov_b64 exec, 0\ns_branch L_PIPE\nL_WBACK:\ns_mov_b32 s75, 0\ns_mov_b64 exec, -1")
if OPT["gate"]:
    A(f"v_mov_b32 v9, {LF+32}\nv_mov_b32 v11, 1\ns_mov_b64 exec, 1\ns_waitcnt vmcnt(0)\nds_add_u32 v9, v11\ns_mov_b64 exec, -1")
stamp((1, 4))
if OPT['sdelay']: A(f"s_sleep {OPT['sdelay']}")
if OPT["comb"]:
    A("v_add_u32 v3, 48, v10"); spin_lds(3, 9)
else: spin_flag(3, 9, 8, 2)
note("s88", 4)
stamp((6, 1), (2, 4))
SD = OPT["sd"]
def pqload(k):
    return [f"s_mov_b32 s86, {k*65536}",
            f"buffer_load_dwordx4 {v(16+8*k,4)}, v2, {H}, s86 offen sc1",
            f"buffer_load_dwordx4 {v(20+8*k,4)}, v2, {H}, s86 offen offset:1024 sc1"]
def floads():
    for k in range(8):
        A(f"buffer_load_dwordx4 {v(80+4*k,4)}, v8, {WS}, " + ("0" if k < 4 else "s73") + f" offen offset:{1024*(k%4)} sc1")
if OPT["ffirst"]: floads()
for k in range(SD):
    if OPT["sdep"]: A(f"s_waitcnt vmcnt({OPT['sdep']-2})")
    E(pqload(k))
if OPT["ffirst"]: A(f"s_waitcnt vmcnt({2*SD})\ns_branch L_FC")
if OPT["hints"]:
    A(f"s_lshl_b32 s86, s4, 14\ns_add_u32 s86, s86, {WS_FF}\nv_lshl_add_u32 v9, v0, 10, s86")
    spin_flag(9, 11, 16)
else: A(f"s_waitcnt vmcnt({OPT['fafter']})")
A("s_branch L_FL\nL_FQ:\ns_sleep 8\nL_FL:")
floads()
A("s_waitcnt vmcnt(0)\nL_FC:\ns_add_u32 s89, s89, 1")
E(vmax(112, [80+4*k for k in range(8)]))
A(f"""v_cmp_eq_u32 vcc, -1, v112
s_cmp_gt_u32 s89, {OPT['spin']}
s_cbranch_scc1 L_FPD
s_cbranch_vccnz L_FQ
L_FPD:""")
note("s89", 4); note("s89", 1)
spin_lds(10, 9)
stamp((6, 3), (3, 4))
woloc = lambda k: (1, k) if k < 6 else (2, k-2)
def Om(k): return [mfma(128+32*(k&1)+16*r, 80+4*k, 16+8*k+4*r, 0) for r in range(2)]
def Vv(k):
    o = []
    D = [128+32*(k&1)+16*r for r in range(2)]
    nd = [((d, d+8) if k % 2 == 0 else (d+8, d)) for d in D]
    for num, den in nd: o.append(f"v_add_f32 v{den}, s72, v{den}")
    for num, den in nd: o.append(f"v_rcp_f32 v{den}, v{den}")
    for r, (num, den) in enumerate(nd):
        if OPT["spk"]:
            for j in range(4): o.append(f"v_pk_mul_f32 {v(num+2*j,2)}, {v(num+2*j,2)}, {v(den,2)} op_sel_hi:[1,0]")
        else:
            for j in range(8): o.append(f"v_mul_f32 v{num+j}, v{num+j}, v{den}")
        for j in range(4): o.append(f"v_cvt_pk_bf16_f32 v{16+8*k+4*r+j}, v{num+2*j}, v{num+2*j+1}")
    return o
def Sm(k): return [mfmaH(192+32*r+16*c, 112+8*(k&1)+4*c, 16+8*k+4*r, 0 if k <= OPT['h16'] else None, k & 1) for r in range(2) for c in range(2)]
issued = [SD]
def need(k):
    o = [f"s_waitcnt vmcnt({2*(issued[0]-1-k)})"]
    more = []
    if issued[0] < 8: more = pqload(issued[0]); issued[0] += 1
    return o, more
A('L_PIPE:')
E(w2read(112, *woloc(0), 4, False))
for k in (0, 1):
    w_, m_ = need(k); E(w_ + Om(k) + m_)
E(Vv(0))
for k in range(8):
    A("s_waitcnt lgkmcnt(0)")
    fill = (w2read(112+8*((k+1)&1), *woloc(k+1), 4, False) + Vv(k+1)) if k+1 < 8 else []
    NF = 16 if OPT['spk'] else 20
    E(interleave(Sm(k), fill[:NF], NF//4))
    if k+2 < 8:
        w_, m_ = need(k+2); E(w_); E(interleave(Om(k+2), fill[NF:] + m_, 6))
    else: E(fill[NF:])
    if k == 3: stamp((4, 4))
if OPT["warm"] == 1: A("s_cmp_eq_u32 s75, 1\ns_cbranch_scc1 L_WBACK")
stamp((7, 1), (5, 4))
final(False)
if OPT["warm"] == 2: A("s_cmp_eq_u32 s75, 1\ns_cbranch_scc1 L_FIN2")

A("L_FINAL:")
stamp((6, 4))
A("s_barrier")
stamp((7, 3), (7, 4))
A("L_FIN2:")
for src in range(4):
    for jq in range(2): A(f"ds_read_b128 {v(16+8*src+4*jq,4)}, v3 offset:{Q*src+1024*jq}")
for src in range(4):
    for jq in range(2):
        if src == 3 and jq == 1: A("s_waitcnt lgkmcnt(14)")
        A(f"ds_read_b128 {v(48+8*src+4*jq,4)}, v4 offset:{Q*src+1024*jq}")
A(f"s_mov_b32 s70, {hx(-1.4426950408889634)}\ns_mov_b32 s71, s70\ns_waitcnt vmcnt(0)")
for j in range(4): A(f"v_lshlrev_b32 v{80+2*j}, 16, v{12+j}\nv_and_b32 v{81+2*j}, 0xffff0000, v{12+j}")
A("s_waitcnt lgkmcnt(8)")
for src in range(1, 4):
    for j in range(4): A(f"v_pk_add_f32 {v(16+2*j,2)}, {v(16+2*j,2)}, {v(16+8*src+2*j,2)}")
for j in range(4): A(f"v_pk_mul_f32 {v(24+2*j,2)}, {v(16+2*j,2)}, s[70:71]")
for j in range(8): A(f"v_exp_f32 v{24+j}, v{24+j}")
for j in range(4): A(f"v_pk_add_f32 {v(24+2*j,2)}, {v(24+2*j,2)}, 1.0 op_sel_hi:[1,0]")
for j in range(8): A(f"v_rcp_f32 v{24+j}, v{24+j}")
A("s_waitcnt lgkmcnt(0)")
for src in range(1, 4):
    for j in range(4): A(f"v_pk_add_f32 {v(48+2*j,2)}, {v(48+2*j,2)}, {v(48+8*src+2*j,2)}")
for j in range(4): A(f"v_pk_mul_f32 {v(16+2*j,2)}, {v(16+2*j,2)}, {v(24+2*j,2)}")
for j in range(4): A(f"v_pk_fma_f32 {v(16+2*j,2)}, {v(16+2*j,2)}, {v(48+2*j,2)}, {v(80+2*j,2)}")
for j in range(4): A(f"v_cvt_pk_bf16_f32 v{24+j}, v{16+2*j}, v{17+2*j}")
if OPT["warm"] == 2: A("s_cbranch_execz L_WBACK")
A(f"""buffer_store_dwordx4 v[24:27], v1, {OUT}, 0 offen
s_add_u32 s86, s2, s3
s_cmp_eq_u32 s86, 0
s_cbranch_scc0 L_NOBUMP
v_mov_b32 v2, 0
v_mov_b32 v3, {TAG}
buffer_store_dword v3, v2, {WS}, 0 offen sc1
L_NOBUMP:""")
if OPT["stamps"]:
    A("s_waitcnt vmcnt(0)")
    stamp((8, 0))
    A(f"""s_memrealtime s[68:69]
s_waitcnt lgkmcnt(0)
s_mov_b32 s101, s68""")
    if OPT["diag"]:
        A(f"""s_cmp_lg_u32 s2, 64
s_cbranch_scc1 L_END
s_cmp_lg_u32 s3, {OPT['dwave']}
s_cbranch_scc1 L_END
s_sub_u32 s86, s{92+OPT['diag']}, s34
s_lshl_b32 s86, s86, 2
s_min_u32 s86, s86, 20000
L_DSPIN:
s_memrealtime s[68:69]
s_waitcnt lgkmcnt(0)
s_sub_u32 s87, s68, s101
s_cmp_lt_u32 s87, s86
s_cbranch_scc1 L_DSPIN
s_endpgm""")
    A(f"""s_lshl_b32 s86, s2, 3
s_add_u32 s86, s86, s3
s_lshl_b32 s86, s86, 6
s_add_u32 s86, s86, {WS_DBG}
v_mov_b32 v2, s86""")
    for i in range(10): A(f"v_mov_b32 v3, s{92+i}\nbuffer_store_dword v3, v2, {WS}, 0 offen offset:{4*i}")
    A(f"v_mov_b32 v3, s34\nbuffer_store_dword v3, v2, {WS}, 0 offen offset:40")
    A(f"v_mov_b32 v3, s35\nbuffer_store_dword v3, v2, {WS}, 0 offen offset:44")
A("L_END:\ns_endpgm")

lines, errs = pad(A.lines)
for e in errs: print("HAZARD:", e, file=sys.stderr)
hdr = open("cdna_kernels/%s.s.ref" % NAME).read().split("; Override launch")[0]
out = hdr + f"""; Fused single-launch kernel (generated by my own generator script gen/gen.py).
; @launch grid=(256,1,1) block=(512,1,1) lds={LDS}
.amdgcn_target "amdgcn-amd-amdhsa--gfx950"
.text
.globl {NAME}_kernel
.p2align 8
.type {NAME}_kernel,@function
{NAME}_kernel:
""" + render(lines) + f""".section .rodata,"a"
.p2align 6
.amdhsa_kernel {NAME}_kernel
  .amdhsa_next_free_vgpr 256
  .amdhsa_next_free_sgpr 102
  .amdhsa_accum_offset 256
  .amdhsa_group_segment_fixed_size 0
  .amdhsa_kernarg_size 80
  .amdhsa_user_sgpr_count 2
  .amdhsa_user_sgpr_kernarg_segment_ptr 1
  .amdhsa_system_sgpr_workgroup_id_x 1
.end_amdhsa_kernel
"""
open(sys.argv[1], "w").write(out)
```

```python
import sys, struct
from asmlib import *
NAME = "recurrent_scan__linear_attn_block__glu_gated_geglu__prompt"
OPT = dict(stamps=0, rot=2, prio=1, pfcode=1, spin=1<<17, thr=3, unthr=31, n7=5, n8=10, ca=14, cb=22, h=4, mix=1, sub=1,
           psleep=2, ydep=4, sdep=0, w2late=4, p2map=0, stage=1, sprio=1, ydelay=-1, sdelay=0, fdelay=0, rdelay=0, xlate=0, now2=0, sd=3, apoll=0, fgate=1, rt=1, zf=1, nr=0, r0=3, lred=0, prew=0, hints=0, comb=1, fafter=0, h16=0, gate=0, ffirst=1, warm=0, nodma=0, redearly=1, xz=1, gmix=0, qmix=0, qnop=0, bpos=0, rgap=3, spk=0, diag=0, dwave=4, nrep=2, nl=3, p1=0, p2=7, osc=0, gpos=1, c2=10)
for a in sys.argv[2:]:
    k, v_ = a.split("="); assert k in OPT, k; OPT[k] = int(v_, 0)
def f2u(x): return struct.unpack("<I", struct.pack("<f", x))[0]
def hx(x): return "0x%08x" % f2u(x)

SLOT = 49152; XW = 24576; UPOFF = 12288; MISC = 3*SLOT; LDS = 163840
RS = MISC; RR = MISC+3072; CF = MISC+3840; LF = MISC+5376
Q = 12288
WS_RS = 0x10000; WS_CS = 0x20000; WS_FLAG = 0x300000; WS_FF = 0x60000; WS_DBG = 0x80000; WS_F = 0xC0000; WS_KV = 0x100000; WS_H = 0x800000
X="s[36:39]"; W="s[40:43]"; WS="s[44:47]"; H="s[48:51]"; WD="s[56:59]"; WO="s[60:63]"; OUT="s[64:67]"
TAG="s10"
def v(b, n=1): return f"v{b}" if n == 1 else f"v[{b}:{b+n-1}]"
def mfma(d, a, b, c=None):
    return f"v_mfma_f32_32x32x16_bf16 {v(d,16)}, {v(a,4)}, {v(b,4)}, " + ("0" if c == 0 else v(d,16))
def mfmaH(d, a, b, c, alt):
    if not OPT["h16"]: return mfma(d, a, b, c)
    return mf16(d+8*alt, a, b, c) + "\n" + mf16(d+8*alt+4, a ^ 4, b, c)
def mf16(d, a, b, c=None):
    return f"v_mfma_f32_16x16x32_bf16 {v(d,4)}, {v(a,4)}, {v(b,4)}, " + ("0" if c == 0 else v(d,4))
def bc(r): return v(r & ~1, 2), r & 1
_lab = [0]
def L(p="L"):
    _lab[0] += 1; return f"{p}_{_lab[0]}"
A = Asm()
def E(lst):
    for t in lst: A(t)
def stamp(*pairs):
    for i, st in pairs:
        if OPT["stamps"] == st or (OPT["stamps"] and st == 0):
            A(f"{'s_memrealtime' if (OPT['rt'] and i != 8) else 's_memtime'} s[68:69]\ns_waitcnt lgkmcnt(0)\ns_mov_b32 s{92+i}, s68")
def note(reg, st):
    if OPT["stamps"] == st: A(f"s_mov_b32 s35, {reg}")
def srd(name, lo, size, add=0):
    b = int(name[2:4])
    if add: A(f"s_add_u32 s{b}, s{lo}, {add}\ns_addc_u32 s{b+1}, s{lo+1}, 0")
    else: A(f"s_mov_b32 s{b}, s{lo}\ns_mov_b32 s{b+1}, s{lo+1}")
    A(f"s_mov_b32 s{b+2}, {size}\ns_mov_b32 s{b+3}, 0x20000")
def spin_flag(vaddr, vt, nl, kind=None, first=0):
    l1, l2 = L("POLL"), L("POLLD")
    A(f"""s_mov_b32 s88, {first}
s_mov_b64 exec, {hex((1<<nl)-1)}
{l1}:
s_and_b32 s87, s88, {OPT['nrep']-1}
s_lshl_b32 s87, s87, 7""")
    if kind: A(f"s_add_u32 s87, s87, {kind << 20}")
    A(f"""buffer_load_dword {v(vt)}, {v(vaddr)}, {WS}, s87 offen sc1
s_add_u32 s88, s88, 1
s_waitcnt vmcnt(0)
v_cmp_ne_u32 vcc, {TAG}, {v(vt)}
s_cmp_gt_u32 s88, {OPT['spin']}
s_cbranch_scc1 {l2}
s_cbranch_vccz {l2}
s_sleep {OPT['psleep']}
s_branch {l1}
{l2}:
s_mov_b64 exec, -1""")
def spin_lds(vaddr, vt, need=1):
    l1, l2 = L("LP"), L("LPD")
    A(f"""s_mov_b32 s86, 0
{l1}:
ds_read_b32 {v(vt)}, {v(vaddr)}
s_add_u32 s86, s86, 1
s_waitcnt lgkmcnt(0)
v_cmp_gt_u32 vcc, {need}, {v(vt)}
s_cmp_gt_u32 s86, {OPT['spin']*8}
s_cbranch_scc1 {l2}
s_cbranch_vccz {l2}
s_sleep 1
s_branch {l1}
{l2}:""")
def vmax(dst, regs_):
    o = []; r = list(regs_)
    if len(r) == 2: return [f"v_max_u32 v{dst}, v{r[0]}, v{r[1]}"]
    o.append(f"v_max3_u32 v{dst}, v{r[0]}, v{r[1]}, v{r[2]}"); r = r[3:]
    while r:
        if len(r) >= 2: o.append(f"v_max3_u32 v{dst}, v{dst}, v{r[0]}, v{r[1]}"); r = r[2:]
        else: o.append(f"v_max_u32 v{dst}, v{dst}, v{r[0]}"); r = r[1:]
    return o
def tagcheck(dst, tmp, regs_):
    for n, r in enumerate(regs_): A(f"v_xor_b32 v{dst if n == 0 else tmp+n}, {TAG}, v{r}")
    n = 1
    while n < len(regs_):
        if n+1 < len(regs_): A(f"v_or3_b32 v{dst}, v{dst}, v{tmp+n}, v{tmp+n+1}"); n += 2
        else: A(f"v_or_b32 v{dst}, v{dst}, v{tmp+n}"); n += 1

A(f"""s_cmp_ge_u32 s2, 256
s_cbranch_scc1 L_END
s_load_dwordx16 s[16:31], s[0:1], 0
s_load_dwordx2 s[32:33], s[0:1], 72""")
if OPT["stamps"]: A("s_memrealtime s[34:35]\ns_memtime s[68:69]")
A(f"""v_lshrrev_b32 v1, 6, v0
v_and_b32 v0, 63, v0
v_readfirstlane_b32 s3, v1
s_and_b32 s5, s2, 7
s_lshr_b32 s86, s2, 3""")
if OPT["p2map"] == 0:
    A("s_lshl_b32 s84, s5, 2\ns_lshr_b32 s87, s86, 3\ns_add_u32 s84, s84, s87\ns_and_b32 s85, s86, 7")
else:
    A("""s_lshr_b32 s84, s5, 1
s_lshl_b32 s84, s84, 3
s_lshr_b32 s87, s86, 2
s_add_u32 s84, s84, s87
s_and_b32 s85, s5, 1
s_lshl_b32 s85, s85, 2
s_and_b32 s87, s86, 3
s_add_u32 s85, s85, s87""")
A(f"""s_lshl_b32 s5, s5, 5
s_add_u32 s5, s5, s86
s_and_b32 s4, s3, 3
s_mov_b32 s12, 0
s_cmp_lt_u32 s5, 138
s_cbranch_scc0 L_BOT
s_mul_i32 s7, s5, 171
s_lshr_b32 s7, s7, 10
s_mul_i32 s86, s7, 6
s_sub_u32 s6, s5, s86
s_branch L_IDS
L_BOT:
s_cmp_ge_u32 s5, 253
s_cselect_b32 s12, 1, 0
s_cselect_b32 s86, 5, 0
s_sub_u32 s86, s5, s86
s_sub_u32 s86, s86, 138
s_mul_i32 s87, s86, 205
s_lshr_b32 s87, s87, 10
s_sub_u32 s7, 22, s87
s_mul_i32 s87, s87, 5
s_sub_u32 s6, s86, s87
s_add_u32 s6, s6, 6
L_IDS:
s_mov_b32 s90, s7""")
if OPT["mix"]:
    A("""s_mul_i32 s86, s7, 43
s_lshr_b32 s86, s86, 7
s_sub_u32 s87, s7, s86
s_lshl_b32 s88, s86, 1
s_sub_u32 s88, s87, s88
s_add_u32 s86, s86, 15
s_cmp_eq_u32 s7, 22
s_cselect_b32 s7, s86, s87
s_cmp_eq_u32 s88, 2
s_cselect_b32 s7, s86, s7""")
A(f"""s_mul_i32 s8, s6, 192
s_min_u32 s8, s8, 1856
s_mul_i32 s9, s7, 96
s_min_u32 s9, s9, 1280
s_cmp_lt_u32 s3, 4
s_cbranch_scc1 L_LOADER""")
def kwait():
    A("s_waitcnt lgkmcnt(0)\ns_load_dword s10, s[32:33], 0")
    if OPT["stamps"]: A("s_mov_b32 s92, s68")
    srd(X, 16, 2097152)
if OPT["prio"]: A(f"s_setprio {OPT['prio']}")
if OPT["pfcode"]:
    A(f"""s_getpc_b64 s[88:89]
L_PC:
s_sub_u32 s88, s88, L_PC-{NAME}_kernel
s_subb_u32 s89, s89, 0
s_lshr_b32 s86, s2, 3
s_lshl_b32 s86, s86, 3
s_lshl_b32 s87, s4, 1
s_add_u32 s86, s86, s87
v_and_b32 v3, 1, v0
v_add_u32 v3, s86, v3
v_lshlrev_b32 v3, 7, v3
v_min_u32 v3, L_END-{NAME}_kernel, v3
global_load_dword v47, v3, s[88:89]""")
A(f"""s_lshl_b32 s86, s5, 3
s_lshl_b32 s87, s4, 1
s_add_u32 s86, s86, s87
v_lshrrev_b32 v7, 5, v0
v_add_u32 v7, s86, v7
v_and_b32 v2, 31, v0
v_lshlrev_b32 v2, 4, v2
v_lshl_add_u32 v2, v7, 10, v2""")
kwait()
A(f"""buffer_load_dwordx4 v[8:11], v2, {X}, 0 offen
buffer_load_dwordx4 v[12:15], v2, {X}, 0 offen offset:512""")
stamp((1, 2))
A("s_branch L_COMPUTE\nL_LOADER:")

def w2addr(base, T, nat):
    a_, b_, c_, d_ = T, T+1, T+2, T+3
    A(f"""v_and_b32 v{a_}, 3, v0
v_bfe_u32 v{b_}, v0, 2, 2
v_bfe_u32 v{c_}, v0, 4, 1
v_lshrrev_b32 v{d_}, 5, v0
v_lshl_add_u32 v{d_}, v{d_}, {3 if nat else 2}, v{b_}
v_lshlrev_b32 v{d_}, 7, v{d_}
v_lshrrev_b32 v{b_}, 1, v{b_}
v_lshl_add_u32 v{c_}, v{b_}, 2, v{c_}
v_and_b32 v{b_}, 1, v{a_}
v_lshl_add_u32 v{c_}, v{b_}, 1, v{c_}
v_lshl_add_u32 v{d_}, v{c_}, 4, v{d_}
v_lshrrev_b32 v{a_}, 1, v{a_}
v_lshl_add_u32 v{d_}, v{a_}, 3, v{d_}
v_add_u32 v{base}, s76, v{d_}
v_xor_b32 v{d_}, 64, v{d_}
v_add_u32 v{base+1}, s76, v{d_}
v_add_u32 v{base+2}, {2*SLOT}, v{base}
v_add_u32 v{base+3}, {2*SLOT}, v{base+1}""")
def w2read(dst, slot, blk, ab, nat=True):
    o = []
    for c in range(2):
        for sec in range(2):
            ar = ab + c + (2 if slot == 2 else 0)
            off = (SLOT if slot == 1 else 0) + blk*2048 + sec*(512 if nat else 1024)
            o.append(f"ds_read_b64_tr_b16 {v(dst+4*c+2*sec,2)}, v{ar} offset:{off}")
    return o
def xres_addr(half, T):
    A(f"""s_lshr_b32 s86, s4, 1
s_lshl_b32 s86, s86, 5
s_lshl_b32 s87, s84, 6
s_add_u32 s86, s86, s87
s_lshl_b32 s86, s86, 10
s_lshl_b32 s87, s85, 7
s_add_u32 s86, s86, s87
s_and_b32 s87, s4, 1
s_lshl_b32 s87, s87, 6
s_add_u32 s86, s86, s87
s_add_u32 s86, s86, {16*half}
v_and_b32 v{T}, 31, v0
v_lshlrev_b32 v{T}, 10, v{T}
v_lshrrev_b32 v{T+1}, 5, v0
v_lshl_add_u32 v{T}, v{T+1}, 5, v{T}
v_add_u32 v1, s86, v{T}""")
def xres_load(late=0):
    if OPT["xlate"] == late: A(f"buffer_load_dwordx4 v[12:15], v1, {X}, 0 offen")
def p2setup():
    srd(WS, 32, 0x800000); srd(H, 32, 118*65536, WS_H); srd(WD, 28, 1376*1024); srd(WO, 20, 512*1024); srd(OUT, 30, 2097152)
    A(f"""v_lshrrev_b32 v24, 3, v0
v_lshlrev_b32 v24, 10, v24
v_and_b32 v25, 7, v0
v_bfe_u32 v26, v0, 4, 1
v_lshlrev_b32 v26, 2, v26
v_xor_b32 v25, v25, v26
v_lshl_add_u32 v24, v25, 4, v24
s_lshl_b32 s86, s85, 7
v_add_u32 v4, s86, v24
s_mul_i32 s87, s4, {3*16384}
v_add_u32 v2, s87, v4
s_add_u32 s87, s4, 84
s_lshl_b32 s87, s87, 14
v_add_u32 v3, s87, v4
s_lshl_b32 s87, s4, 17
v_add_u32 v4, s87, v4
s_mul_i32 s76, s4, {Q}
s_lshl_b32 s87, s84, 11
s_mul_i32 s86, s4, {3*65536}
s_add_u32 s86, s86, s87
v_lshl_add_u32 v6, v0, 4, s86
v_bfe_u32 v24, v0, 1, 3
v_lshlrev_b32 v24, 3, v24
s_lshr_b32 s86, s4, 1
s_lshl_b32 s86, s86, 2
s_and_b32 s90, s4, 1
s_add_u32 s86, s86, s90
v_add_u32 v24, s86, v24
v_min_u32 v24, 57, v24
v_cmp_eq_u32 vcc, 56, v24
v_cndmask_b32 v24, v24, 57, vcc
v_and_b32 v25, 1, v0
v_lshl_add_u32 v24, v25, 1, v24
s_lshl_b32 s86, s4, 3
s_add_u32 s86, s86, 44
v_add_u32 v25, s86, v0
v_cmp_lt_u32 vcc, 15, v0
v_cndmask_b32 v24, v24, v25, vcc
s_mul_i32 s86, s84, 43
s_lshr_b32 s86, s86, 7
s_mul_i32 s86, s86, {23*4096}
s_add_u32 s86, s86, {WS_FLAG}
v_lshl_add_u32 v5, v24, 10, s86
s_add_u32 s86, s4, 84
s_lshl_b32 s86, s86, 16
s_add_u32 s86, s86, s87
s_cmp_lt_u32 s4, 2
s_cselect_b32 s86, s86, 0x80000000
v_lshl_add_u32 v7, v0, 4, s86""")
    w2addr(8, 24, True); xres_addr(0, 24)
    A(f"s_waitcnt lgkmcnt(0)\ns_add_u32 {TAG}, {TAG}, 0x9E3779B9")
def wfrag_addr(dst, swc, T, lab):
    A(f"""v_and_b32 v{T}, 3, v0
v_bfe_u32 v{T+1}, v0, 2, 2
v_bfe_u32 v{T+2}, v0, 4, 1
s_cmp_ge_u32 s7, 15
s_cbranch_scc1 {lab}Q
v_lshrrev_b32 v{T+3}, 4, v0
v_lshl_add_u32 v{T+3}, v{T+3}, 3, v{T+1}
v_mul_u32_u24 v{T+3}, 192, v{T+3}
v_lshl_add_u32 v{T}, v{T}, 3, v{T+3}
v_add_u32 v{T}, {XW}, v{T}
s_mul_i32 s87, {swc}, 3
v_xor_b32 v{T+3}, s87, v{T+2}
v_lshl_add_u32 v{dst}, v{T+3}, 5, v{T}
s_add_u32 s87, s87, 1
v_xor_b32 v{T+3}, s87, v{T+2}
v_lshl_add_u32 v{dst+1}, v{T+3}, 5, v{T}
s_branch {lab}D
{lab}Q:
v_lshrrev_b32 v{T+3}, 5, v0
v_mul_u32_u24 v{T+3}, 3072, v{T+3}
v_lshl_add_u32 v{T+3}, v{T+1}, 7, v{T+3}
v_mul_u32_u24 v{T+4}, {UPOFF+32}, v{T+2}
v_lshrrev_b32 v{T+1}, 1, v{T+1}
v_xor_b32 v{T+1}, {swc}, v{T+1}
v_lshl_add_u32 v{T+4}, v{T+1}, 6, v{T+4}
v_lshl_add_u32 v{T}, v{T}, 3, v{T+3}
v_add_u32 v{T}, {XW}, v{T}
v_add_u32 v{dst}, v{T}, v{T+4}
v_xor_b32 v{dst+1}, 32, v{dst}
{lab}D:""")
def woff(role, s_, j, sec):
    if role == 'G':
        jj = j % 3
        return jj & 1, s_*6144 + sec*768 + (j//3)*UPOFF + (64 if jj == 2 else 0)
    return j & 1, s_*6144 + (j//2)*1024 + sec*512
def ksoff(kd): return 12*(kd % 7) + kd//7
NR = OPT["nr"]
S2R = [('o',6+k,2,4+k) for k in range(2)] + [('d',12+k,2,k) for k in range(4)]
S0R = [('d',16+k,0,k) for k in range(6)]; S1R = [('o',k,1,k) for k in range(6)]
rawA = [('d', k, 96+8*k) for k in range(6)]; rawB = [('d', 6+k, 144+8*k) for k in range(6)]
if NR == 18:
    rawitems = [('o', k, 192+8*k) for k in range(6)] + rawA + rawB; items = S2R + S0R
    post = ["bA", "bB", "wO", ("fwo", 2)]
elif NR == 12:
    rawitems = rawA + rawB; items = S2R + S0R + S1R
    post = ["bA", "bB"] + list(range(12, 18)) + [("fwo", 18)]
elif NR == 6:
    rawitems = rawB; items = [('d',k,2,k) for k in range(6)] + S0R + S1R + S2R
    post = ["bB", 12, 13, ("cp", 96, 2, 6), 14, 15, 16, 17, 18, 19, 20, 21, 22, ("fwo", 20), 23]
else:
    rawitems = []; items = [('d',k,2,k) for k in range(6)] + [('d',6+k,0,k) for k in range(6)] + S1R + S2R + S0R
    post = [12, 13, ("cp", 96, 2, 6)] + list(range(14, 22)) + [("cp", 144, 0, 12), 22, ("fwo", 20)] + list(range(23, 30))
N7, N8 = OPT["n7"], OPT["n8"]
def rawload(it):
    kind, k, reg = it
    va, kk, S_ = ((2, ksoff(k), WD) if k < 21 else (3, 0, WD)) if kind == 'd' else (4, k, WO)
    A(f"""s_mov_b32 s86, {kk*16384}
s_mov_b32 s87, {kk*16384 + 8192}
buffer_load_dwordx4 {v(reg,4)}, v{va}, {S_}, s86 offen
buffer_load_dwordx4 {v(reg+4,4)}, v{va}, {S_}, s87 offen""")
def rawblocks():
    if not NR: return
    steps = list(range(OPT["r0"], 6)); n = len(steps)
    for i, st in enumerate(steps):
        sk = L("RW")
        A(f"s_cmp_eq_u32 s83, {st}\ns_cbranch_scc0 {sk}")
        for it in rawitems[NR*i//n : NR*(i+1)//n]: rawload(it)
        A.label(sk)
def w2item(n, thr=None):
    if OPT["now2"]: return
    kind, k, slot, blk = items[n]
    tw = f"s_waitcnt vmcnt({thr})\n" if thr is not None else ""
    A(f"s_add_u32 m0, s76, {slot*SLOT + blk*2048}")
    va, kk, S_ = ((2, ksoff(k), WD) if k < 21 else (3, 0, WD)) if kind == 'd' else (4, k, WO)
    A(f"""s_mov_b32 s86, {kk*16384}
s_mov_b32 s87, {kk*16384 + 7168}
{tw}buffer_load_dwordx4 v{va}, {S_}, s86 offen lds
{tw}buffer_load_dwordx4 v{va}, {S_}, s87 offen offset:1024 lds""")

A(f"""s_cmp_ge_u32 s3, 2
s_cbranch_scc1 L_SIDE
s_add_u32 s79, s6, s90""")
R_ = OPT["rot"]
A(f"s_and_b32 s79, s79, {R_-1}\ns_lshl_b32 s79, s79, { {1:0, 2:2, 4:1, 8:0}[R_] }")
A(f"""v_lshrrev_b32 v24, 3, v0
v_and_b32 v25, 7, v0
v_lshrrev_b32 v26, 4, v0
v_xor_b32 v27, v25, v26
s_mul_i32 s86, s4, 96
s_add_u32 s86, s86, s8
s_lshl_b32 s86, s86, 10
v_lshl_add_u32 v16, v24, 10, s86
v_lshl_add_u32 v16, v27, 4, v16
v_xor_b32 v17, 64, v16
v_add_u32 v18, {2*7168}, v16
v_add_u32 v19, {3*7168}, v17
v_add_u32 v17, 7168, v17
s_mul_i32 s74, s4, 12288
s_mul_i32 s75, s4, {UPOFF}
s_add_u32 s75, s75, {XW}
s_mov_b32 s43, 0x20000
s_mov_b32 s78, 0
s_cmp_ge_u32 s7, 15
s_cbranch_scc1 L_LQKV
s_mov_b32 s42, {512*2752}
s_mov_b32 s82, {16*2752}
s_movk_i32 s86, 0x1556
s_movk_i32 s87, 2752
s_lshl_b32 s88, s9, 1
s_cmp_eq_u32 s7, 14
s_cselect_b32 s89, {8 if OPT['zf'] else 0}, 0
s_cmp_eq_u32 s12, 1
s_cselect_b32 s89, {12 if OPT['zf'] else 0}, s89
v_mov_b32 v28, 0x80000000""")
for i in range(3):
    A(f"""v_add_u32 v24, {64*i}, v0
v_mul_u32_u24 v25, s86, v24
v_lshrrev_b32 v25, 16, v25
v_mul_u32_u24 v26, 12, v25
v_sub_u32 v24, v24, v26
v_lshrrev_b32 v26, 2, v25
v_and_b32 v26, 2, v26
v_xor_b32 v24, v24, v26
v_cmp_gt_u32 vcc, s89, v24
v_mul_u32_u24 v25, s87, v25
v_lshl_add_u32 v24, v24, 4, v25
v_add_u32 v24, s88, v24
v_subrev_u32 v24, {1024*i}, v24
v_cndmask_b32 v{20+i}, v24, v28, vcc""")
A(f"""s_branch L_LGO
L_LQKV:
s_mov_b32 s42, {512*3072}
s_mov_b32 s82, {16*3072}
s_sub_u32 s87, s7, 15
s_lshl_b32 s87, s87, 7
s_mul_i32 s88, s4, {8*3072}
s_add_u32 s87, s87, s88
v_mul_u32_u24 v24, 3072, v24
v_and_b32 v26, 1, v26
v_lshlrev_b32 v26, 2, v26
v_xor_b32 v25, v25, v26
s_lshl_b32 s88, s4, 1
v_xor_b32 v25, s88, v25
v_lshl_add_u32 v20, v25, 4, v24
v_add_u32 v20, s87, v20
v_mov_b32 v21, v20
v_mov_b32 v22, v20
L_LGO:""")
XG = ["s70", "s71", "s72"]; WL = ["s52", "s53", "s54", "s55"]; WG = ["s73", "s77", "s14", "s15"]
sh = {2: 1, 4: 2, 8: 0, 1: 0}[R_]
if OPT["sub"]:
    A(f"""s_lshr_b32 s86, s90, {sh}
s_mul_i32 s87, s86, 43
s_lshr_b32 s87, s87, 7
s_mul_i32 s87, s87, 3
s_sub_u32 s86, s86, s87
s_lshr_b32 s87, s6, {sh}""")
else:
    A("s_mov_b32 s86, 0\ns_mov_b32 s87, 0")
A("""s_lshl_b32 s70, s86, 12
s_add_u32 s71, s70, 4096
s_cmp_eq_u32 s71, 12288
s_cselect_b32 s71, 0, s71
s_add_u32 s72, s70, s71
s_sub_u32 s72, 12288, s72""")
XN = ["s11", "s13", "s91"]
A(f"s_lshl_b32 s86, s4, 4\ns_add_u32 s86, s86, s6\ns_cmp_eq_u32 s86, 10\ns_cselect_b32 s88, {8192 if OPT['xz'] else 0}, 0\ns_cmp_eq_u32 s12, 1\ns_cselect_b32 s88, {65536 if OPT['xz'] else 0}, s88")
for g in range(3): A(f"s_cmp_lt_u32 {XG[g]}, s88\ns_cselect_b32 {XN[g]}, 0, 2097152")
for g in range(4):
    A(f"s_add_u32 s86, s87, {g}\ns_and_b32 s86, s86, 3\ns_mul_i32 {WL[g]}, s86, 3072\ns_mul_i32 {WG[g]}, s86, s82")
kwait()
A(f"""s_cmp_eq_u32 s4, 1
s_cselect_b32 s40, s26, s24
s_cselect_b32 s41, s27, s25
s_cmp_ge_u32 s7, 15
s_cselect_b32 s40, s18, s40
s_cselect_b32 s41, s19, s41""")
stamp((1, 2))
def issue_head():
    A(f"""s_lshl_b32 s80, s79, 7
s_mul_i32 s81, s79, s82
s_lshl_b32 s81, s81, 2
s_add_u32 s88, s78, s74
s_add_u32 s89, s78, s75""")
ORDER = ["x0", "w0", "x1", "w1", "x2", "w2", "w3"]
def issue_part(lo, hi):
    n = 0
    for it in ORDER[lo:hi]:
        g = int(it[1])
        if it[0] == 'x':
            A(f"s_add_u32 m0, s88, {XG[g]}\ns_lshl3_add_u32 s86, {XG[g]}, s80\ns_mov_b32 s38, {XN[g]}")
            for q in range(4): A(f"buffer_load_dwordx4 v{16+q}, {X}, s86 offen offset:{1024*q} lds")
            n += 4
        else:
            A(f"s_add_u32 m0, s89, {WL[g]}\ns_add_u32 s87, s81, {WG[g]}")
            for j in range(3): A(f"buffer_load_dwordx4 v{20+j}, {W}, s87 offen offset:{1024*j} lds")
            n += 3
    return n
def issue_tail():
    A(f"""s_add_u32 s79, s79, 1
s_and_b32 s79, s79, 7
s_add_u32 s78, s78, {SLOT}
s_cmp_eq_u32 s78, {3*SLOT}
s_cselect_b32 s78, 0, s78""")
HH = OPT["h"]
issue_head(); issue_part(0, 7); issue_tail()
stamp((2, 2))
issue_head(); n_ = issue_part(0, HH)
p2setup()
A(f"s_waitcnt vmcnt({n_})")
stamp((1, 1), (3, 2))
A("s_barrier\ns_mov_b32 s83, 0\nL_LLOOP:")
rawblocks()
if OPT['nodma']: issue_tail(); issue_head()
else: issue_part(HH, 7); issue_tail(); issue_head(); issue_part(0, HH)
A(f"""s_add_u32 s83, s83, 1
s_waitcnt vmcnt({n_})
s_barrier
s_cmp_lt_u32 s83, 6
s_cbranch_scc1 L_LLOOP""")
stamp((2, 1), (4, 2))
issue_part(HH, 7)
A("s_mov_b32 s38, 2097152")
for n in range(N7): w2item(n)
A(f"s_waitcnt vmcnt({2*N7})\ns_barrier")
stamp((5, 2))
for n in range(N7, N8): w2item(n)
A("s_barrier\ns_branch L_W2")

def f_addr(dst):
    A(f"""s_sub_u32 s86, s7, 15
s_lshl_b32 s86, s86, 12
s_and_b32 s87, s6, 1
s_lshl_b32 s87, s87, 11
s_add_u32 s86, s86, s87
s_and_b32 s87, s6, 2
s_lshl_b32 s87, s87, 9
s_add_u32 s86, s86, s87
s_lshr_b32 s87, s6, 2
s_lshl_b32 s87, s87, 9
s_add_u32 s86, s86, s87
s_lshl1_add_u32 s91, s86, {WS_FF}
s_add_u32 s86, s86, {WS_F}
v_lshl_add_u32 v{dst}, v0, 4, s86""")
assert OPT["rot"] in (2, 4, 8)
A(f"""L_SIDE:
s_add_u32 s13, s6, s90
s_and_b32 s13, s13, {OPT['rot']-1}
s_lshl_b32 s13, s13, { {2:2, 4:1, 8:0}[OPT['rot']] }
s_lshr_b32 s14, s6, { {2:1, 4:2, 8:3}[OPT['rot']] }
s_add_u32 s15, s13, s14
s_cmp_ge_u32 s6, 8
s_cselect_b32 s14, 99, s14
s_cmp_eq_u32 s12, 1
s_cselect_b32 s14, 99, s14
s_and_b32 s77, s4, 1""")
wfrag_addr(62, "s77", 24, "L_SA")
A(f"""s_cmp_eq_u32 s14, 1
s_cselect_b32 s86, {SLOT}, 0
s_cmp_eq_u32 s14, 2
s_cselect_b32 s86, {2*SLOT}, s86
v_add_u32 v62, s86, v62
v_add_u32 v63, s86, v63
v_and_b32 v24, 16, v0
v_cmp_ne_u32 s[72:73], 0, v24
v_and_b32 v24, 31, v0
s_mul_i32 s86, s77, 768
s_add_u32 s86, s86, {CF}
v_lshl_add_u32 v17, v24, 3, s86
s_mul_i32 s87, s77, 96
v_add_u32 v21, s87, v0
v_add3_u32 v22, v24, s87, 64
s_lshl_b32 s86, s8, 4
s_add_u32 s86, s86, {WS_RS}
v_lshl_add_u32 v19, v21, 4, s86
v_lshl_add_u32 v20, v22, 4, s86
s_lshl_b32 s86, s7, 13
s_lshl_b32 s87, s77, 9
s_add_u32 s86, s86, s87
s_add_u32 s86, s86, {WS_CS}
s_lshl_b32 s87, s15, 10
s_add_u32 s74, s86, s87
v_lshlrev_b32 v23, 4, v24
v_lshrrev_b32 v25, 5, v0
v_lshl_add_u32 v18, v25, 12, v23
v_add_u32 v18, s86, v18""")
for r in range(52, 56): A(f"v_mov_b32 v{r}, 0x3f803f80")
kwait()
p2setup()
A(f"""s_cmp_lt_u32 s7, 15
s_cbranch_scc1 L_NOCLR
s_cmp_ge_u32 s6, 8
s_cbranch_scc1 L_NOCLR""")
f_addr(24)
A(f"""v_mov_b32 v28, -1
v_mov_b32 v29, -1
v_mov_b32 v30, -1
v_mov_b32 v31, -1
s_mov_b32 exec_hi, 0
buffer_store_dwordx4 v[28:31], v24, {WS}, 0 offen sc1
s_mov_b32 exec_hi, -1""")
if OPT["prew"]: A(f"s_sub_u32 s86, {TAG}, 1\nv_mov_b32 v32, s86\nv_lshlrev_b32 v24, 4, v0\nbuffer_store_dwordx4 v[32:35], v24, {WS}, s91 offen sc1")
A(f"""L_NOCLR:
s_mov_b32 s83, 0
s_waitcnt vmcnt(0)
L_SLOOP:
s_barrier""")
if OPT["w2late"] >= 0:
    A(f"""s_cmp_eq_u32 s83, {OPT['w2late']}
s_cbranch_scc0 L_NOPF2
s_mul_i32 s86, s5, 59
s_mul_i32 s87, s77, 30
s_add_u32 s86, s86, s87
v_min_u32 v16, 29, v0
v_add_u32 v16, s86, v16
v_lshlrev_b32 v16, 7, v16
buffer_load_dword v60, v16, {WD}, 0 offen
v_subrev_u32 v16, {1376*1024}, v16
buffer_load_dword v61, v16, {WO}, 0 offen
L_NOPF2:""")
A("s_cmp_eq_u32 s83, s14\ns_cbranch_scc0 L_LNOCS")
for t in range(2):
    A(f"s_cmp_ge_u32 s7, 15\ns_cbranch_scc1 L_CSQ{t}")
    for role in "GQ":
        if role == 'Q': A(f"s_branch L_CSM{t}\nL_CSQ{t}:")
        for j in range(6):
            for sec in range(2):
                par, off = woff(role, t, j, sec)
                A(f"ds_read_b64_tr_b16 {v(24+4*j+2*sec,2)}, v{62+par} offset:{off}")
    A(f"L_CSM{t}:\ns_waitcnt lgkmcnt(0)")
    for j in range(6): A(mf16(72+4*j, 52, 24+4*j, 0 if t == 0 else None))
A(f"v_mov_b32 v51, {TAG}")
for u in range(3): A(f"v_cndmask_b32 v{48+u}, v{72+4*u}, v{84+4*u}, s[72:73]")
A(f"""s_mov_b32 exec_hi, 0
buffer_store_dwordx4 v[48:51], v23, {WS}, s74 offen sc1
s_mov_b32 exec_hi, -1
L_LNOCS:""")
rawblocks()
A(f"""s_add_u32 s83, s83, 1
s_cmp_lt_u32 s83, 6
s_cbranch_scc1 L_SLOOP""")
def st_loads():
    for p in range(4): A(f"buffer_load_dwordx4 {v(32+4*p,4)}, v18, {WS}, 0 offen offset:{1024*p} sc1")
    A(f"buffer_load_dwordx4 v[48:51], v19, {WS}, 0 offen sc1\nbuffer_load_dwordx4 v[52:55], v20, {WS}, 0 offen sc1")
st_loads()
A("s_barrier")
stamp((2, 1), (4, 2))
for n in range(N7): w2item(n)
A(f"s_mov_b32 s88, 0\ns_waitcnt vmcnt({2*N7})\ns_barrier")
stamp((5, 2))
A("L_SPC:")
tagcheck(24, 24, [35+4*p for p in range(6)])
A(f"""v_cmp_ne_u32 vcc, 0, v24
s_add_u32 s88, s88, 1
s_cmp_gt_u32 s88, {OPT['spin']}
s_cbranch_scc1 L_SPCD
s_cbranch_vccz L_SPCD""")
st_loads()
A(f"""s_waitcnt vmcnt(0)
s_branch L_SPC
L_SPCD:
s_mov_b32 s86, {RS}
s_mov_b32 s87, {RR}
v_lshl_add_u32 v24, v21, 4, s86
v_lshl_add_u32 v25, v22, 4, s86
v_lshl_add_u32 v21, v21, 2, s87
v_lshl_add_u32 v22, v22, 2, s87
ds_write_b128 v24, v[48:51]
ds_write_b128 v25, v[52:55]
ds_write_b32 v21, v49
ds_write_b32 v22, v53""")
note("s88", 2)
for p in range(1, 4):
    for u in range(3): A(f"v_add_f32 v{32+u}, v{32+u}, v{32+4*p+u}")
for u in range(3): A(f"v_mov_b32 v{36+u}, v{32+u}")
for u in range(3): A(f"v_permlane32_swap_b32 v{32+u}, v{36+u}")
for u in range(3): A(f"v_add_f32 v{32+u}, v{32+u}, v{36+u}")
for u in range(3): A(f"v_and_b32 v{36+u}, 0xffff0000, v{32+u}")
for u in range(3): A(f"v_sub_f32 v{32+u}, v{32+u}, v{36+u}")
for u in range(3): A(f"v_and_b32 v{40+u}, 0xffff0000, v{32+u}")
for u in range(3): A(f"v_sub_f32 v{32+u}, v{32+u}, v{40+u}")
for u in range(3): A(f"v_lshrrev_b32 v{36+u}, 16, v{36+u}")
for u in range(3): A(f"v_or_b32 v{56+2*u}, v{36+u}, v{40+u}\nv_lshrrev_b32 v{57+2*u}, 16, v{32+u}")
for u in range(3): A(f"ds_write_b64 v17, {v(56+2*u,2)} offset:{256*u}")
A("s_waitcnt lgkmcnt(0)\ns_barrier")
for n in range(N7, N8): w2item(n)

A("L_W2:")
stamp((3, 1), (6, 2))
AB = 8
A(f"v_lshlrev_b32 v16, 4, v0\nv_add_u32 v16, s76, v16")
def wr(reg, slot, blk):
    off = slot*SLOT + blk*2048
    A(f"ds_write_b128 v16, {v(reg,4)} offset:{off}\nds_write_b128 v16, {v(reg+4,4)} offset:{off+1024}")
def rd6(base, sl):
    for kk in range(6):
        E(w2read(base+8*kk, sl, kk, AB))
        if kk % 3 == 2: A("s_waitcnt lgkmcnt(0)")
nis = N8
NL = OPT['nl'] if OPT['stage'] else 0
assert NR == 0 and NL <= 6
for op in (list(range(N8, 12)) + post)[:len(range(N8, 12)) + len(post) - NL]:
    if isinstance(op, int):
        assert op == nis; nis += 1
        w2item(op, OPT["thr"] if (OPT["thr"] and op < OPT["unthr"]) else None)
    elif op in ("bA", "bB"):
        base = 96 if op == "bA" else 144
        for kk in range(6): wr(base+8*kk, 1, kk)
        A("s_waitcnt lgkmcnt(0)"); rd6(base, 1)
    elif op == "wO":
        for kk in range(6): wr(192+8*kk, 1, kk)
    elif op[0] == "cp":
        A(f"s_waitcnt vmcnt({2*(nis-op[3])})"); rd6(op[1], op[2])
    elif op[0] == "fwo":
        A(f"""s_lshl_b32 s86, s4, 2
s_add_u32 s86, s86, {LF}
v_mov_b32 v18, s86
v_mov_b32 v17, 1
s_waitcnt vmcnt({2*(nis-op[1])}) lgkmcnt(0)
ds_write_b32 v18, v17""")
def reducer(CTr, va, vf, vc, msk, sz, pairbase):
    A(f"""s_lshr_b32 s79, s6, 1
s_lshl_b32 s86, s79, 8
s_add_u32 s86, s86, {pairbase}
v_lshrrev_b32 v{va}, 4, v0
v_mul_u32_u24 v{va}, 3072, v{va}
v_and_b32 v{vc}, 15, v0
v_lshl_add_u32 v{va}, v{vc}, 4, v{va}
v_add_u32 v{va}, s86, v{va}""")
    for j in range(12): A(f"v_mov_b32 v{CTr(5)+j}, " + (TAG if j % 4 == 3 else "0"))
    f_addr(vf)
    A(f"""v_lshrrev_b32 v24, 1, v0
v_mul_u32_u24 v24, 92, v24
v_and_b32 v25, 1, v0
v_lshl_add_u32 v24, v25, 1, v24
s_lshl_b32 s86, s7, 2
s_and_b32 s87, s6, 1
s_add_u32 s86, s86, s87
s_lshl_b32 s86, s86, 10
s_add_u32 s86, s86, {WS_FLAG}
v_lshl_add_u32 v24, v24, 10, s86""")
    if OPT["hints"]: spin_flag(24, 25, 22, 0)
    stamp((4, 3))
    A("s_mov_b32 s88, 0\nL_KVC:")
    for p in range(6):
        A(f"s_mov_b32 s86, {12288*p}")
        if p == 5: A("s_mov_b32 exec_hi, 0")
        for g_ in range(3): A(f"buffer_load_dwordx4 {v(CTr(p)+4*g_,4)}, v{va}, {WS}, s86 offen offset:{1024*g_} sc1")
    A("s_mov_b32 exec_hi, -1\ns_waitcnt vmcnt(0)")
    if OPT["redearly"] and not OPT["lred"]:
        A("s_cmp_lg_u32 s88, 0\ns_cbranch_scc1 L_NOFL"); flagstore(2); A("L_NOFL:")
    tagcheck(vc, 60, [CTr(n//3)+4*(n%3)+3 for n in range(18)])
    A(f"""v_cmp_ne_u32 vcc, 0, v{vc}
s_add_u32 s88, s88, 1
s_cmp_gt_u32 s88, {OPT['spin']}
s_cbranch_scc1 L_KVD
s_cbranch_vccnz L_KVC
L_KVD:""")
    note("s88", 3)
    rr = lambda p, j: CTr(p) + 4*(j//3) + j % 3
    for j in range(9): A(f"v_add_f32 v{24+j}, v{rr(0,j)}, v{rr(1,j)}")
    for p in range(2, 6):
        for j in range(9): A(f"v_add_f32 v{24+j}, v{24+j}, v{rr(p,j)}")
    for sw in (16, 32):
        for j in range(9): A(f"v_mov_b32 v{36+j}, v{24+j}")
        for j in range(9): A(f"v_permlane{sw}_swap_b32 v{24+j}, v{36+j}")
        for j in range(9): A(f"v_add_f32 v{24+j}, v{24+j}, v{36+j}")
    A(f"""s_lshr_b32 s86, s79, 1
s_lshl_b32 s86, s86, 3
s_add_u32 s87, s86, 2
s_add_u32 s88, s86, 4
s_add_u32 s89, s86, 6
v_mov_b32_dpp v33, v32 row_shl:1 row_mask:0xf bank_mask:0xf""")
    for j in range(4): A(f"v_cvt_pk_bf16_f32 v{36+j}, v{24+2*j}, v{25+2*j}")
    A(f"""v_cvt_pk_bf16_f32 v33, v32, v33
s_bitcmp1_b32 s79, 0
s_cselect_b64 s[80:81], -1, 0
s_xor_b64 s[80:81], s[80:81], {msk}""")
    for j in range(4): A(f"v_readlane_b32 s{sz+j}, v33, s{86+j}")
    for j in range(4): A(f"v_mov_b32 v{40+j}, s{sz+j}")
    for j in range(4): A(f"v_cndmask_b32 v{44+j}, v{36+j}, v{40+j}, s[80:81]")
    A(f"""s_mov_b32 exec_hi, 0
buffer_store_dwordx4 v[44:47], v{vf}, {WS}, 0 offen sc1
s_mov_b32 exec_hi, -1""")
    for j in range(4): A(f"v_mov_b32 v{24+j}, {TAG}")
    if OPT["hints"]: A(f"v_lshlrev_b32 v28, 4, v0\nbuffer_store_dwordx4 v[24:27], v28, {WS}, s91 offen sc1")
    stamp((5, 3))
if OPT["lred"]:
    A(f"""s_cmp_lg_u32 s3, 3
s_cbranch_scc1 L_NORED
s_cmp_lt_u32 s7, 15
s_cbranch_scc1 L_NORED
s_cmp_ge_u32 s6, 8
s_cbranch_scc1 L_NORED
s_setprio 2
s_sub_u32 s87, s7, 15
s_lshl_b32 s87, s87, 1
s_and_b32 s86, s6, 1
s_add_u32 s87, s87, s86
s_mul_i32 s77, s87, {24*3072}
s_add_u32 s77, s77, {WS_KV}""")
    reducer(lambda p: 192+12*p if p < 5 else 80, 19, 20, 21, "s[72:73]", 52, "s77")
    A("s_setprio 0\nL_NORED:")
xres_load()
stamp((4, 1), (1, 3), (1, 4))
STG = OPT["stage"]
def sgo(va, vd): return f"s_lshl_b32 s86, s4, 2\ns_add_u32 s86, s86, {LF+48}\nv_mov_b32 v{va}, s86\nv_mov_b32 v{vd}, 1\nds_write_b32 v{va}, v{vd}"
if OPT["gate"]:
    A(f"v_mov_b32 v16, {LF+32}"); spin_lds(16, 17, OPT["gate"])
if STG: spin_flag(5, 4, 16, 0)
else:
    spin_flag(5, 4, 24, 2); A(sgo(5, 4))
note("s88", 4)
stamp((5, 1), (2, 3), (2, 4))
def hload(kd):
    va, kk = (6, ksoff(kd)) if kd < 21 else (7, 0)
    b = 16 + 8*(kd % 8)
    return [f"s_mov_b32 s86, {kk*65536}",
            f"VM h{kd}a|buffer_load_dwordx4 {v(b,4)}, v{va}, {H}, s86 offen sc1",
            f"VM h{kd}|buffer_load_dwordx4 {v(b+4,4)}, v{va}, {H}, s86 offen offset:1024 sc1"]
def w2late(n):
    kind, k, slot, blk = items[n]
    va, kk = (2, ksoff(k)) if k < 21 else (3, 0)
    return [f"s_add_u32 m0, s76, {slot*SLOT + blk*2048}\ns_mov_b32 s86, {kk*16384}\ns_mov_b32 s87, {kk*16384 + 7168}",
            f"VM w{k}a|buffer_load_dwordx4 v{va}, {WD}, s86 offen lds",
            f"VM w{k}|buffer_load_dwordx4 v{va}, {WD}, s87 offen offset:1024 lds"]
def ipoll(c):
    nl = 16 if c == 1 else 24
    return [f"VM p{c}|v_mov_b32 v4, {TAG}\ns_mov_b32 s87, {c << 20}\ns_mov_b64 exec, {hex((1<<nl)-1)}\nbuffer_load_dword v4, v5, {WS}, s87 offen sc1\ns_mov_b64 exec, -1"]
res_loc = lambda kd: (2, kd-12) if kd < 16 else (0, kd-16)
YD = OPT["ydep"]; assert YD <= 7
Y = []
for kd in range(YD): Y += hload(kd)
for kd in range(22):
    wf = 96+8*kd if kd < 12 else 80+8*(kd & 1)
    hb = 16 + 8*(kd % 8)
    need = [f"h{kd}"]
    chk = 0 if not STG else (1 if kd+YD == 7 else (2 if kd == OPT['c2'] else 0))
    if chk: need.append(f"p{chk}")
    if kd+1 >= 22-NL and kd+1 < 22: need.append(f"w{kd+1}")
    Y.append("WAIT " + ",".join(need) + ("|L" if kd >= 12 else "|"))
    if chk:
        Y.append(f"v_cmp_ne_u32 vcc, {TAG}, v4\ns_cbranch_vccnz L_YR{chk}\nL_YB{chk}:")
        if chk == 2: Y.append(sgo(5, 4))
    ms = [mfma(192+32*r+16*c, wf+4*c, hb+4*r, 0 if kd == 0 else None) for r in range(2) for c in range(2)]
    fill = []
    if STG and kd == OPT["p1"]: fill += ipoll(1)
    if STG and kd == OPT["p2"]: fill += ipoll(2)
    if kd+YD < 22: fill += hload(kd+YD)
    if 1 <= kd <= NL: fill += w2late(30-NL+kd-1)
    if 12 <= kd+1 < 22: fill += w2read(80+8*((kd+1) & 1), *res_loc(kd+1), AB)
    Y += interleave(ms, fill, 3)
    if kd == 0: Y.append("STAMP 3")
    if kd == 10: Y.append("STAMP 4")
assert not STG or (OPT["p1"] < 7-YD <= OPT["p2"] < OPT["c2"] <= 14-YD)
vm = []
for t in Y:
    if t.startswith("VM "):
        nm, ins = t[3:].split("|"); vm.append(nm); A(ins)
    elif t.startswith("WAIT "):
        nms, lg = t[5:].split("|")
        A(f"s_waitcnt vmcnt({len(vm)-1-max(vm.index(x) for x in nms.split(','))})" + (" lgkmcnt(0)" if lg else ""))
    elif t.startswith("STAMP "): stamp((int(t[6:]), 4))
    else: A(t)
stamp((6, 1), (3, 3), (5, 4))
def final(isy):
    xres_load(1)
    A(f"""v_lshlrev_b32 v2, 4, v0
v_add_u32 v3, s76, v2
v_add_u32 v4, {2*SLOT + (0 if isy else 8192)}, v3""")
    for q in range(4):
        for jq in range(4):
            if q < 3: A(f"ds_write_b128 v3, {v(192+16*q+4*jq,4)} offset:{(0 if isy else SLOT) + q*4096 + jq*1024}")
            else: A(f"ds_write_b128 v4, {v(192+16*q+4*jq,4)} offset:{jq*1024}")
    A(f"""s_lshl_b32 s87, s4, 12
s_add_u32 s86, s87, {SLOT}
s_cmp_eq_u32 s4, 3
s_cselect_b32 s86, {2*SLOT+8192}, s86
s_cselect_b32 s87, {2*SLOT}, s87
s_add_u32 s86, s86, {0 if isy else 2048}
s_add_u32 s87, s87, {0 if isy else 2048}
v_add_u32 v3, s87, v2
v_add_u32 v4, s86, v2
s_waitcnt lgkmcnt(0)""")
final(True)
A("s_branch L_FINAL")
if STG:
    for c in (1, 2):
        A(f"L_YR{c}:"); note(str(10+c), 4); spin_flag(5, 4, 16 if c == 1 else 24, c, 1); A(f"s_branch L_YB{c}")
A("L_COMPUTE:")
srd(WS, 32, 0x800000); srd(H, 32, 118*65536, WS_H); srd(OUT, 30, 2097152)
ACC = 112
for r in range(ACC, 256): A(f"v_mov_b32 v{r}, 0")
A(f"""v_lshlrev_b32 v16, 2, v0
v_add_u32 v16, {LF}, v16
v_mov_b32 v17, 0
s_mov_b64 exec, 0xffff
ds_write_b32 v16, v17
s_mov_b64 exec, -1
s_lshr_b32 s13, s4, 1
s_and_b32 s14, s4, 1
s_movk_i32 s11, 0x1ff
s_lshl_b32 s86, s13, 4
s_add_u32 s86, s86, s6
s_cmp_eq_u32 s86, 10
s_cselect_b32 s11, 0x1c0, s11
s_mul_i32 s86, s14, 0x1b6
s_cmp_eq_u32 s7, 14
s_cselect_b32 s86, s86, 0x1ff
s_and_b32 s11, s11, s86
s_cmp_eq_u32 s12, 1
s_cselect_b32 s11, 0, s11
s_mul_i32 s76, s4, {Q}
s_lshr_b32 s86, s9, 4
s_mul_i32 s87, s14, 3
s_add_u32 s86, s86, s87
s_lshl_b32 s87, s7, 1
s_add_u32 s87, s87, s14
s_lshl1_add_u32 s87, s87, 26
s_and_b32 s88, s11, 0xdb
s_cmp_ge_u32 s7, 15
s_cselect_b32 s86, s87, s86
s_cselect_b32 s11, s88, s11
s_lshl_b32 s86, s86, 6
s_lshr_b32 s87, s8, 5
s_add_u32 s86, s86, s87
s_mul_i32 s87, s13, 3
s_add_u32 s86, s86, s87
s_lshl_b32 s86, s86, 10
v_lshl_add_u32 v1, v0, 4, s86
s_mov_b32 s80, 0
s_mov_b32 s81, 65536
s_mov_b32 s82, 131072
v_and_b32 v16, 15, v0
v_lshrrev_b32 v17, 4, v0
v_bfe_u32 v18, v0, 1, 3
v_xor_b32 v18, v18, v17
s_mul_i32 s86, s13, {96*128}
v_lshl_add_u32 v16, v16, 7, s86
v_lshl_add_u32 v2, v18, 4, v16
v_xor_b32 v3, 64, v2""")
wfrag_addr(4, "s14", 16, "L_CA")
A(f"""s_mul_i32 s86, s6, 23
s_add_u32 s86, s86, s7
s_cmp_eq_u32 s12, 1
s_cselect_b32 s86, 255, s86
s_lshl_b32 s86, s86, 2
s_add_u32 s86, s86, s4
s_lshl_b32 s86, s86, 10
s_add_u32 s15, s86, {WS_FLAG}""")
stamp((2, 2))
A("s_waitcnt vmcnt(0)")
stamp((5, 2))
for j in range(8):
    A(f"v_lshlrev_b32 v{16+2*j}, 16, v{8+j}\nv_and_b32 v{17+2*j}, 0xffff0000, v{8+j}")
def red32(r, t):
    for sh_ in (8, 4, 2, 1):
        A(f"v_add_f32_dpp v{r}, v{r}, v{r} row_ror:{sh_} row_mask:0xf bank_mask:0xf")
    A(f"v_mov_b32 v{t}, v{r}\nv_permlane16_swap_b32 v{r}, v{t}\nv_add_f32 v{r}, v{r}, v{t}")
for j in range(4): A(f"v_pk_add_f32 {v(8+2*j,2)}, {v(16+2*j,2)}, {v(24+2*j,2)}")
A("v_pk_add_f32 v[8:9], v[8:9], v[12:13]\nv_pk_add_f32 v[10:11], v[10:11], v[14:15]\nv_pk_add_f32 v[8:9], v[8:9], v[10:11]\nv_add_f32 v8, v8, v9")
red32(8, 9)
A(f"v_mul_f32 v8, {hx(-1/512)}, v8")
for j in range(8): A(f"v_pk_add_f32 {v(16+2*j,2)}, {v(16+2*j,2)}, v[8:9] op_sel_hi:[1,0]")
A("v_pk_mul_f32 v[10:11], v[16:17], v[16:17]\nv_pk_mul_f32 v[12:13], v[18:19], v[18:19]")
for j in range(2, 8): A(f"v_pk_fma_f32 {v(10+2*(j&1),2)}, {v(16+2*j,2)}, {v(16+2*j,2)}, {v(10+2*(j&1),2)}")
A("v_pk_add_f32 v[10:11], v[10:11], v[12:13]\nv_add_f32 v10, v10, v11")
red32(10, 9)
A(f"""v_mul_f32 v10, {hx(1/512)}, v10
v_cvt_pk_bf16_f32 v10, v10, v10
v_and_b32 v10, 0xffff0000, v10
v_add_f32 v10, {hx(1e-5)}, v10
v_cvt_pk_bf16_f32 v10, v10, v10
v_and_b32 v10, 0xffff0000, v10
v_sqrt_f32 v10, v10
v_cvt_pk_bf16_f32 v32, v8, v8
v_cvt_pk_bf16_f32 v10, v10, v10
v_and_b32 v10, 0xffff0000, v10
v_rcp_f32 v33, v10
v_mul_f32 v34, v10, v10
v_lshlrev_b32 v7, 4, v7
v_add_u32 v7, {WS_RS}, v7
s_waitcnt lgkmcnt(0)
s_add_u32 {TAG}, {TAG}, 0x9E3779B9
v_mov_b32 v35, {TAG}
v_mov_b32 v36, {TAG}
v_mov_b32 v37, {TAG}
v_mov_b32 v38, {TAG}
v_mov_b32 v39, {TAG}
v_lshlrev_b32 v6, 4, v0
s_mov_b32 s78, 0
s_mov_b32 s79, {SLOT}
s_mov_b32 s83, 0""")
stamp((1, 1), (3, 2))
A(f"""s_barrier
s_mov_b32 exec_lo, 1
s_mov_b32 exec_hi, 1
buffer_store_dwordx4 v[32:35], v7, {WS}, 0 offen sc1
s_mov_b64 exec, -1""")
if OPT["prew"]:
    for kind in ((0, 1, 2) if OPT["stage"] else (0, 2)):
        sk = L("PW")
        if kind == 0 and not OPT["stage"]: A(f"s_cmp_lt_u32 s7, 15\ns_cbranch_scc1 {sk}")
        A(f"s_add_u32 s86, s15, {kind << 20}\nbuffer_store_dwordx4 v[28:31], v6, {WS}, s86 offen sc1")
        A.label(sk)
stamp((2, 1), (4, 2))
A("s_cmp_ge_u32 s7, 15\ns_cbranch_scc1 L_QKV")

XB = lambda buf, a: (40 if buf == 0 else 8) + 4*a
WF = lambda buf, j: 64 + 24*buf + 4*j
acc = lambda a, j: ACC + 4*(6*a+j)
CB = 40
def reads(role, s_):
    w_ = []
    for j in range(6):
        for sec in range(2):
            par, off = woff(role, s_, j, sec)
            w_.append(f"ds_read_b64_tr_b16 {v(WF(s_,j)+2*sec,2)}, v{4+par} offset:{off}")
    o = []
    for a in range(6): o += [f"ds_read_b128 {v(XB(s_,a),4)}, v{2+s_} offset:{2048*a}"] + w_[2*a:2*a+2]
    return o
def mm(role, wb, a, j, xb=1):
    return mf16(acc(a,j), WF(wb,j), XB(xb,a)) if (role == 'G' or j < 2) else mf16(acc(a,j), XB(xb,a), WF(wb,j))
def grp(role, buf, a): return [mm(role, buf, a, j, buf) for j in range(6)]
def spread(ms, fill, num, den):
    o = []; f = list(fill); nr = 0
    for i, m in enumerate(ms):
        o.append(m)
        k = ((i+1)*num)//den - (i*num)//den
        for _ in range(k):
            if f:
                x = f.pop(0)
                if x.startswith("ds_read"):
                    nr += 1
                    if nr == 13: o.append("s_waitcnt lgkmcnt(6)")
                o.append(x)
    assert not f
    return o
def mainloop(role):
    lp, ex = f"L_ML{role}", f"L_MX{role}"
    BP = OPT["bpos"]
    allm = lambda buf: [m for a in range(6) for m in grp(role, buf, a)]
    r0 = reads(role, 0); E(r0[:12]); A("s_waitcnt lgkmcnt(6)"); E(r0[12:])
    A.label(lp)
    A("s_waitcnt lgkmcnt(0)")
    sal = f"""s_add_u32 s78, s78, 1
s_cmp_eq_u32 s78, 3
s_cselect_b32 s86, {-2*SLOT & 0xffffffff}, s79
s_cselect_b32 s78, 0, s78
s_add_u32 s83, s83, 1
s_cmp_eq_u32 s83, 8""".split("\n") + [f"v_add_u32 v{r}, s86, v{r}" for r in (2, 4, 5, 3)]
    E(spread(allm(0), reads(role, 1) + sal, OPT["rgap"]+2, OPT["rgap"]+3))
    A("s_waitcnt lgkmcnt(0)")
    E(allm(1)[:BP])
    A(f"s_barrier\ns_cbranch_scc1 {ex}")
    E(spread(allm(1)[BP:], reads(role, 0), OPT["rgap"], 4))
    A(f"s_branch {lp}")
    A.label(ex)
    pre = ["s_waitcnt vmcnt(0)", f"v_and_b32 v2, 15, v0",
           f"s_mul_i32 s86, s13, {96*16}", f"s_add_u32 s86, s86, {RS}",
           f"v_lshl_add_u32 v3, v2, 4, s86",
           f"s_mul_i32 s86, s14, 768", f"s_add_u32 s86, s86, {CF}",
           f"v_lshl_add_u32 v4, v2, 3, s86",
           f"v_cmp_gt_u32 vcc, 16, v0"]
    rd = [f"ds_read_b128 {v(CB+4*a,4)}, v3 offset:{256*a}" for a in range(6)]
    rd += [f"ds_read_b64 {v(WF(0,j),2)}, v4 offset:{256*(j%3)+128*(j//3)}" for j in range(6)]
    z = []
    for j in range(6): z += [f"v_mov_b32 v{WF(0,j)+2}, 0", f"v_mov_b32 v{WF(0,j)+3}, 0"]
    if role == 'Q':
        z += ["v_lshrrev_b32 v5, 4, v0", f"s_mul_i32 s86, s13, {96*4}", f"s_add_u32 s86, s86, {RR}", "v_lshl_add_u32 v5, v5, 4, s86"]
    xs = lambda a: [f"v_cndmask_b32 v{XB(1,a)}, 0, v{CB+4*a}, vcc", f"v_and_b32 v{XB(1,a)+1}, 0xffff, v{XB(1,a)}", f"v_mov_b32 v{XB(1,a)+2}, 0", f"v_mov_b32 v{XB(1,a)+3}, 0"]
    E(interleave(allm(1)[BP:24], pre + rd + z, 2))
    A("s_waitcnt lgkmcnt(0)")
    E(interleave(grp(role,1,4), xs(0) + xs(1) + xs(2), 2))
    E(interleave(grp(role,1,5), xs(3) + xs(4), 2))
    A("s_nop 3"); E(xs(5))

def flagstore(kind):
    m = (1 << (8*OPT["nrep"])) - 1
    A(f"s_add_u32 s86, s15, {kind << 20}\ns_mov_b64 exec, {hex(m) if m < (1<<32) else -1}\nbuffer_store_dwordx4 v[36:39], v6, {WS}, s86 offen sc1\ns_mov_b64 exec, -1")
def gsig(pos):
    if OPT["gate"] and OPT["gpos"] == pos:
        A(f"v_mov_b32 v2, {LF+32}\nv_mov_b32 v3, 1\ns_mov_b64 exec, 1\nds_add_u32 v2, v3\ns_mov_b64 exec, -1")
def publish(staged):
    if staged:
        A("s_cmp_eq_u32 s11, 0x1ff\ns_cbranch_scc1 L_PFULL\ns_waitcnt vmcnt(0)"); flagstore(0); A("L_PFULL:")
        A("s_waitcnt vmcnt(3)"); flagstore(1); gsig(1)
        A("s_waitcnt vmcnt(1)"); flagstore(2); gsig(2)
    else:
        A("s_waitcnt vmcnt(0)"); flagstore(2)
    if OPT["ydelay"] >= 0:
        A(f"s_lshl_b32 s86, s4, 2\ns_add_u32 s86, s86, {LF+16}\nv_mov_b32 v2, s86\nv_mov_b32 v3, 1\nds_write_b32 v2, v3")
mainloop('G')
C1 = -2.0*0.7978845608028654*1.4426950408889634
cst = []
for a in range(6):
    b = CB+4*a
    cst += [f"v_mul_f32 v{b}, {hx(C1)}, v{b+1}", f"v_mul_f32 v{b+3}, v{b+1}, v{b+1}",
            f"v_mul_f32 v{b+3}, {hx(0.044715)}, v{b+3}", f"v_mul_f32 v{b+1}, v{b}, v{b+3}"]
corr = lambda u: [mm('G', 0, a, j) for a in range(6) for j in (u, u+3)]
E(interleave(corr(0), cst, 2))
A('s_nop 3')
stamp((3, 1), (1, 3))
n = 0
ELSE = []
A0 = A
class MixG:
    def __init__(s_, pend, every): s_.p = list(pend); s_.e = every; s_.n = 0
    def __call__(s_, t):
        for x in t.split("\n"):
            A0(x); s_.n += 1
            if s_.p and s_.n % s_.e == 0: A0(s_.p.pop(0))
for u in range(3):
    for a in range(3):
        sk = L("GS")
        pend = corr(u+1)[4*a:4*a+4] if u < 2 else []
        A0(f"s_bitcmp1_b32 s11, {3*a+u}\ns_cbranch_scc0 {sk + ('E' if pend else '')}")
        if pend: ELSE.append((sk, pend))
        if not OPT['gmix']: E(pend); pend = []
        A = MixG(pend, 3)
        T = 88 + 8*(n & 1); P = 104 + 4*(n & 1); n += 1
        gp = [acc(2*a + j//2, u) + 2*(j & 1) for j in range(4)]
        up = [acc(2*a + j//2, u+3) + 2*(j & 1) for j in range(4)]
        cb = [CB+4*(2*a + j//2) for j in range(4)]
        for j in range(4): A(f"v_pk_mul_f32 {v(T+2*j,2)}, {v(gp[j],2)}, {v(gp[j],2)}")
        for j in range(4): A(f"v_pk_fma_f32 {v(T+2*j,2)}, {v(T+2*j,2)}, {v(cb[j],2)}, {v(cb[j],2)} op_sel:[0,1,0] op_sel_hi:[1,1,0]")
        for j in range(4): A(f"v_pk_mul_f32 {v(T+2*j,2)}, {v(T+2*j,2)}, {v(gp[j],2)}")
        for j in range(8): A(f"v_exp_f32 v{T+j}, v{T+j}")
        for j in range(4): A(f"v_pk_mul_f32 {v(gp[j],2)}, {v(gp[j],2)}, {v(up[j],2)}")
        for j in range(4): A(f"v_pk_fma_f32 {v(T+2*j,2)}, {v(T+2*j,2)}, {v(cb[j]+2,2)}, {v(cb[j]+2,2)} op_sel_hi:[1,0,0]")
        for j in range(8): A(f"v_rcp_f32 v{T+j}, v{T+j}")
        for j in range(4): A(f"v_pk_mul_f32 {v(T+2*j,2)}, {v(T+2*j,2)}, {v(gp[j],2)}")
        for j in (0, 2, 1, 3): A(f"v_cvt_pk_bf16_f32 v{P+j}, v{T+2*j}, v{T+2*j+1}")
        A(f"v_permlane16_swap_b32 v{P}, v{P+2}\nv_permlane16_swap_b32 v{P+1}, v{P+3}")
        A = A0
        A(f"buffer_store_dwordx4 {v(P,4)}, v1, {H}, s{80+u} offen offset:{1024*a} sc1")
        A.label(sk)
    if u == 0: stamp((2, 3))
    if u == 1 and STG:
        A("s_cmp_eq_u32 s11, 0x1ff\ns_cbranch_scc0 L_NOF0\ns_waitcnt vmcnt(3)"); flagstore(0); A("L_NOF0:")
stamp((4, 1), (4, 3))
publish(STG)
A("s_branch L_SPART")
for sk, pend in ELSE:
    A.label(sk + "E"); E(pend); A(f"s_nop 7\ns_branch {sk}")

A("L_QKV:")
mainloop('Q')
RV, ONE, G = 88, 32, 8
cst = [f"ds_read_b128 {v(RV+4*a,4)}, v5 offset:{64*a}" for a in range(6)] + f"""s_mov_b32 s70, {hx(1.4426950408889634)}
s_mov_b32 s71, {hx(1.4426950408889634)}
s_mov_b32 s72, {hx(1e-6)}
s_mov_b32 s73, {hx(1e-6)}
v_and_b32 v3, 16, v0
v_cmp_ne_u32 s[74:75], 0, v3
s_sub_u32 s87, s7, 15
s_lshl_b32 s87, s87, 1
s_add_u32 s87, s87, s14
s_mul_i32 s77, s87, {24*3072}
s_add_u32 s77, s77, {WS_KV}
s_lshl_b32 s86, s6, 1
s_add_u32 s86, s86, s13
s_mul_i32 s86, s86, 3072
s_add_u32 s86, s86, s77
v_lshl_add_u32 v7, v0, 4, s86""".split("\n") + [f"v_mov_b32 v{ONE+j}, 0x3f803f80" for j in range(4)]
E(interleave([mm('Q', 0, a, j) for a in (5, 4) for j in (4, 5, 2, 3)], cst, 4))
A("s_waitcnt lgkmcnt(0)")
stamp((3, 1))
PEND = [mm('Q', 0, a, j) for a in (3, 2, 1, 0) for j in (4, 5, 2, 3)] + [mm('Q', 0, a, j) for a in (5, 4, 3, 2, 1, 0) for j in (0, 1)]
class Mix:
    def __init__(s_, pend, every): s_.p = pend; s_.e = every; s_.n = 0
    def __call__(s_, t):
        for x in t.split("\n"):
            A(x); s_.n += 1
            if s_.p and s_.n % s_.e == 0: A(s_.p.pop(0))
def phi(pairs, T, dst, rop, A=A):
    for j in range(8 if rop else 0):
        o, lo, hi = rop(j)
        A(f"v_pk_fma_f32 {v(pairs[j],2)}, {v(pairs[j],2)}, {o}, s[72:73] op_sel:[0,{lo},0] op_sel_hi:[1,{hi},1]")
    for j in range(8): A(f"v_pk_mul_f32 {v(T+2*j,2)}, {v(pairs[j],2)}, s[70:71]")
    for j in range(16):
        r = pairs[j//2] + (j & 1)
        A(f"v_exp_f32 v{T+j}, v{T+j} clamp\nv_max_f32 v{r}, s72, v{r}")
    for j in range(8): A(f"v_pk_add_f32 {v(T+2*j,2)}, {v(T+2*j,2)}, {v(pairs[j],2)}")
    for j in range(8): A(f"v_cvt_pk_bf16_f32 v{dst[j]}, v{T+2*j}, v{T+2*j+1}")
prs = lambda a, j0: [acc(2*a + (j % 4)//2, j0 + j//4) + 2*(j & 1) for j in range(8)]
KVa, KVb, Za, Zb = acc(5,2), acc(5,3), acc(5,4), acc(5,5)
for a in (2, 1, 0):
    if a == 1: A("s_bitcmp1_b32 s11, 0\ns_cbranch_scc0 L_KVS")
    rv = lambda j: RV + 4*(2*a + (j % 4)//2) + 2*(j & 1)
    pv = prs(a, 4); pk = prs(a, 2)
    PK, PV, TT = 24, 80, 64
    if not OPT['qmix']: E(PEND); del PEND[:]
    M = Mix(PEND, 1) if a == 2 else A
    for j in range(8): M(f"v_pk_mul_f32 {v(pv[j],2)}, {v(pv[j],2)}, {v(rv(j),2)}")
    if a == 2:
        for j in range(8): M(f"v_pk_fma_f32 {v(pk[j],2)}, {v(pk[j],2)}, {v(rv(j),2)}, s[72:73] op_sel:[0,0,0] op_sel_hi:[1,1,1]")
        PV = acc(4, 4)
        M(f"v_cvt_pk_bf16_f32 v{PV}, v{pv[0]}, v{pv[0]+1}\nv_cvt_pk_bf16_f32 v{PV+1}, v{pv[1]}, v{pv[1]+1}")
        M(f"v_cvt_pk_bf16_f32 v{PV+2}, v{pv[2]}, v{pv[2]+1}\nv_cvt_pk_bf16_f32 v{PV+3}, v{pv[3]}, v{pv[3]+1}")
        for j in range(4, 8): M(f"v_cvt_pk_bf16_f32 v{PV+j}, v{pv[j]}, v{pv[j]+1}")
        E(PEND); del PEND[:]
        if OPT['qnop']: A('s_nop 7')
        phi(pk, TT, [PK+j for j in range(8)], None)
    else:
        for j in range(8): A(f"v_cvt_pk_bf16_f32 v{PV+j}, v{pv[j]}, v{pv[j]+1}")
        phi(pk, TT, [PK+j for j in range(8)], lambda j: (v(rv(j),2), 0, 1))
    c0 = 0 if a == 2 else None
    A(mf16(KVa, PK, PV, c0)); A(mf16(KVb, PK+4, PV+4, c0)); A(mf16(Za, ONE, PK, c0)); A(mf16(Zb, ONE, PK+4, c0))
A("L_KVS:")
for j in (3, 7, 11): A(f"v_mov_b32 v{G+j}, {TAG}")
A("s_nop 4")
for j in range(4): A(f"v_permlane16_swap_b32 v{KVa+j}, v{KVb+j}")
for j in range(8): A(f"v_mov_b32 v{G+4*(j//3)+j%3}, v{KVa+j}")
A(f"v_cndmask_b32 v{G+10}, v{Za}, v{Zb}, s[74:75]")
for g_ in range(3): A(f"buffer_store_dwordx4 {v(G+4*g_,4)}, v7, {WS}, 0 offen offset:{1024*g_} sc1")
if OPT["hints"]: flagstore(0)
stamp((4, 1), (1, 3))
for a in (2, 1, 0):
    if a == 1: A("s_bitcmp1_b32 s11, 0\ns_cbranch_scc0 L_PQS")
    D_ = 88 + 8*a
    phi(prs(a, 0), TT, [D_+j for j in range(8)], lambda j: (v(CB+4*(2*a + (j % 4)//2), 2), 1, 1))
    for hd in range(2):
        A(f"v_permlane16_swap_b32 v{D_+4*hd}, v{D_+4*hd+2}\nv_permlane16_swap_b32 v{D_+4*hd+1}, v{D_+4*hd+3}")
    A(f"buffer_store_dwordx4 {v(D_,4)}, v1, {H}, 0 offen offset:{1024*a} sc1")
    A(f"buffer_store_dwordx4 {v(D_+4,4)}, v1, {H}, s81 offen offset:{1024*a} sc1")
A("L_PQS:")
stamp((2, 3))
gsig(1); gsig(2)
if not OPT["redearly"]: publish(False)
if not OPT["lred"]:
    A("s_and_b32 s86, s6, 9\ns_add_u32 s86, s86, 2\ns_cmp_eq_u32 s86, s4\ns_cbranch_scc0 " + ("L_QPUB" if OPT["redearly"] else "L_SPART"))
    reducer(lambda p: 128+12*p, 7, 9, 8, "s[74:75]", 70, "s77")
    if OPT["redearly"]:
        A("s_branch L_SPART\nL_QPUB:"); publish(False)

A("L_SPART:")
if OPT["sprio"] != OPT["prio"]: A(f"s_setprio {OPT['sprio']}")
stamp((5, 1), (3, 3))
xres_addr(1, 8); xres_load()
w2addr(4, 8, False)
A(f"""s_lshl_b32 s86, s4, 3
s_add_u32 s86, s86, 86
s_lshl_b32 s86, s86, 16
s_lshl_b32 s87, s84, 11
s_add_u32 s86, s86, s87
v_lshl_add_u32 v2, v0, 4, s86
s_mul_i32 s88, s84, 43
s_lshr_b32 s88, s88, 7
s_mul_i32 s88, s88, 23
s_lshl_b32 s87, s4, 1
s_add_u32 s88, s88, s87
s_add_u32 s88, s88, 15
s_lshl_b32 s88, s88, 12
s_add_u32 s88, s88, {WS_FLAG}
v_and_b32 v3, 7, v0
v_lshl_add_u32 v3, v3, 10, s88
s_lshl_b32 s74, s4, 13
s_add_u32 s74, s74, {WS_F}
v_lshl_add_u32 v8, v0, 4, s74
s_lshl_b32 s86, s4, 2
s_add_u32 s86, s86, {LF}
v_mov_b32 v10, s86
s_mov_b32 s72, {hx(1e-6)}
s_movk_i32 s73, 4096
s_mov_b32 s89, 0""")
if OPT["warm"]:
    assert OPT["sd"] == 8
    A("s_mov_b32 s75, 1\ns_mov_b64 exec, 0\ns_branch L_PIPE\nL_WBACK:\ns_mov_b32 s75, 0\ns_mov_b64 exec, -1")
stamp((1, 4))
if OPT['sdelay']: A(f"s_sleep {OPT['sdelay']}")
if OPT["comb"]:
    A("v_add_u32 v3, 48, v10"); spin_lds(3, 9)
else: spin_flag(3, 9, 8, 2)
note("s88", 4)
stamp((6, 1), (2, 4))
SD = OPT["sd"]
def pqload(k):
    return [f"s_mov_b32 s86, {k*65536}",
            f"buffer_load_dwordx4 {v(16+8*k,4)}, v2, {H}, s86 offen sc1",
            f"buffer_load_dwordx4 {v(20+8*k,4)}, v2, {H}, s86 offen offset:1024 sc1"]
def floads():
    for k in range(8):
        A(f"buffer_load_dwordx4 {v(80+4*k,4)}, v8, {WS}, " + ("0" if k < 4 else "s73") + f" offen offset:{1024*(k%4)} sc1")
if OPT["ffirst"]: floads()
for k in range(SD):
    if OPT["sdep"]: A(f"s_waitcnt vmcnt({OPT['sdep']-2})")
    E(pqload(k))
if OPT["ffirst"]: A(f"s_waitcnt vmcnt({2*SD})\ns_branch L_FC")
if OPT["hints"]:
    A(f"s_lshl_b32 s86, s4, 14\ns_add_u32 s86, s86, {WS_FF}\nv_lshl_add_u32 v9, v0, 10, s86")
    spin_flag(9, 11, 16)
else: A(f"s_waitcnt vmcnt({OPT['fafter']})")
A("s_branch L_FL\nL_FQ:\ns_sleep 8\nL_FL:")
floads()
A("s_waitcnt vmcnt(0)\nL_FC:\ns_add_u32 s89, s89, 1")
E(vmax(112, [80+4*k for k in range(8)]))
A(f"""v_cmp_eq_u32 vcc, -1, v112
s_cmp_gt_u32 s89, {OPT['spin']}
s_cbranch_scc1 L_FPD
s_cbranch_vccnz L_FQ
L_FPD:""")
note("s89", 4); note("s89", 1)
spin_lds(10, 9)
stamp((6, 3), (3, 4))
woloc = lambda k: (1, k) if k < 6 else (2, k-2)
def Om(k): return [mfma(128+32*(k&1)+16*r, 80+4*k, 16+8*k+4*r, 0) for r in range(2)]
def Vv(k):
    o = []
    D = [128+32*(k&1)+16*r for r in range(2)]
    nd = [((d, d+8) if k % 2 == 0 else (d+8, d)) for d in D]
    for num, den in nd: o.append(f"v_add_f32 v{den}, s72, v{den}")
    for num, den in nd: o.append(f"v_rcp_f32 v{den}, v{den}")
    for r, (num, den) in enumerate(nd):
        if OPT["spk"]:
            for j in range(4): o.append(f"v_pk_mul_f32 {v(num+2*j,2)}, {v(num+2*j,2)}, {v(den,2)} op_sel_hi:[1,0]")
        else:
            for j in range(8): o.append(f"v_mul_f32 v{num+j}, v{num+j}, v{den}")
        for j in range(4): o.append(f"v_cvt_pk_bf16_f32 v{16+8*k+4*r+j}, v{num+2*j}, v{num+2*j+1}")
    return o
def Sm(k): return [mfmaH(192+32*r+16*c, 112+8*(k&1)+4*c, 16+8*k+4*r, 0 if k <= OPT['h16'] else None, k & 1) for r in range(2) for c in range(2)]
issued = [SD]
def need(k):
    o = [f"s_waitcnt vmcnt({2*(issued[0]-1-k)})"]
    more = []
    if issued[0] < 8: more = pqload(issued[0]); issued[0] += 1
    return o, more
A('L_PIPE:')
E(w2read(112, *woloc(0), 4, False))
for k in (0, 1):
    w_, m_ = need(k); E(w_ + Om(k) + m_)
E(Vv(0))
for k in range(8):
    A("s_waitcnt lgkmcnt(0)")
    fill = (w2read(112+8*((k+1)&1), *woloc(k+1), 4, False) + Vv(k+1)) if k+1 < 8 else []
    NF = 16 if OPT['spk'] else 20
    E(interleave(Sm(k), fill[:NF], NF//4))
    if k+2 < 8:
        w_, m_ = need(k+2); E(w_); E(interleave(Om(k+2), fill[NF:] + m_, 6))
    else: E(fill[NF:])
    if k == 3: stamp((4, 4))
if OPT["warm"] == 1: A("s_cmp_eq_u32 s75, 1\ns_cbranch_scc1 L_WBACK")
stamp((7, 1), (5, 4))
final(False)
if OPT["warm"] == 2: A("s_cmp_eq_u32 s75, 1\ns_cbranch_scc1 L_FIN2")

A("L_FINAL:")
stamp((6, 4))
A("s_barrier")
stamp((7, 3), (7, 4))
A("L_FIN2:")
for src in range(4):
    for jq in range(2): A(f"ds_read_b128 {v(16+8*src+4*jq,4)}, v3 offset:{Q*src+1024*jq}")
for src in range(4):
    for jq in range(2):
        if src == 3 and jq == 1: A("s_waitcnt lgkmcnt(14)")
        A(f"ds_read_b128 {v(48+8*src+4*jq,4)}, v4 offset:{Q*src+1024*jq}")
A(f"s_mov_b32 s70, {hx(-1.4426950408889634)}\ns_mov_b32 s71, s70\ns_waitcnt vmcnt(0)")
for j in range(4): A(f"v_lshlrev_b32 v{80+2*j}, 16, v{12+j}\nv_and_b32 v{81+2*j}, 0xffff0000, v{12+j}")
A("s_waitcnt lgkmcnt(8)")
for src in range(1, 4):
    for j in range(4): A(f"v_pk_add_f32 {v(16+2*j,2)}, {v(16+2*j,2)}, {v(16+8*src+2*j,2)}")
for j in range(4): A(f"v_pk_mul_f32 {v(24+2*j,2)}, {v(16+2*j,2)}, s[70:71]")
for j in range(8): A(f"v_exp_f32 v{24+j}, v{24+j}")
for j in range(4): A(f"v_pk_add_f32 {v(24+2*j,2)}, {v(24+2*j,2)}, 1.0 op_sel_hi:[1,0]")
for j in range(8): A(f"v_rcp_f32 v{24+j}, v{24+j}")
A("s_waitcnt lgkmcnt(0)")
for src in range(1, 4):
    for j in range(4): A(f"v_pk_add_f32 {v(48+2*j,2)}, {v(48+2*j,2)}, {v(48+8*src+2*j,2)}")
for j in range(4): A(f"v_pk_mul_f32 {v(16+2*j,2)}, {v(16+2*j,2)}, {v(24+2*j,2)}")
for j in range(4): A(f"v_pk_fma_f32 {v(16+2*j,2)}, {v(16+2*j,2)}, {v(48+2*j,2)}, {v(80+2*j,2)}")
for j in range(4): A(f"v_cvt_pk_bf16_f32 v{24+j}, v{16+2*j}, v{17+2*j}")
if OPT["warm"] == 2: A("s_cbranch_execz L_WBACK")
A(f"""buffer_store_dwordx4 v[24:27], v1, {OUT}, 0 offen {['', 'sc1', 'nt', 'sc0 sc1'][OPT['osc']]}
s_add_u32 s86, s2, s3
s_cmp_eq_u32 s86, 0
s_cbranch_scc0 L_NOBUMP
v_mov_b32 v2, 0
v_mov_b32 v3, {TAG}
buffer_store_dword v3, v2, {WS}, 0 offen sc1
L_NOBUMP:""")
if OPT["stamps"]:
    A("s_waitcnt vmcnt(0)")
    stamp((8, 0))
    A(f"""s_memrealtime s[68:69]
s_waitcnt lgkmcnt(0)
s_mov_b32 s101, s68""")
    if OPT["diag"]:
        A(f"""s_cmp_lg_u32 s2, 64
s_cbranch_scc1 L_END
s_cmp_lg_u32 s3, {OPT['dwave']}
s_cbranch_scc1 L_END
s_sub_u32 s86, s{92+OPT['diag']}, s34
s_lshl_b32 s86, s86, 2
s_min_u32 s86, s86, 20000
L_DSPIN:
s_memrealtime s[68:69]
s_waitcnt lgkmcnt(0)
s_sub_u32 s87, s68, s101
s_cmp_lt_u32 s87, s86
s_cbranch_scc1 L_DSPIN
s_endpgm""")
    A(f"""s_lshl_b32 s86, s2, 3
s_add_u32 s86, s86, s3
s_lshl_b32 s86, s86, 6
s_add_u32 s86, s86, {WS_DBG}
v_mov_b32 v2, s86""")
    for i in range(10): A(f"v_mov_b32 v3, s{92+i}\nbuffer_store_dword v3, v2, {WS}, 0 offen offset:{4*i}")
    A(f"v_mov_b32 v3, s34\nbuffer_store_dword v3, v2, {WS}, 0 offen offset:40")
    A(f"v_mov_b32 v3, s35\nbuffer_store_dword v3, v2, {WS}, 0 offen offset:44")
A("L_END:\ns_endpgm")

lines, errs = pad(A.lines)
for e in errs: print("HAZARD:", e, file=sys.stderr)
hdr = open("cdna_kernels/%s.s.ref" % NAME).read().split("; Override launch")[0]
out = hdr + f"""; Fused single-launch kernel (generated by my own generator script gen/gen.py).
; @launch grid=(256,1,1) block=(512,1,1) lds={LDS}
.amdgcn_target "amdgcn-amd-amdhsa--gfx950"
.text
.globl {NAME}_kernel
.p2align 8
.type {NAME}_kernel,@function
{NAME}_kernel:
""" + render(lines) + f""".section .rodata,"a"
.p2align 6
.amdhsa_kernel {NAME}_kernel
  .amdhsa_next_free_vgpr 256
  .amdhsa_next_free_sgpr 102
  .amdhsa_accum_offset 256
  .amdhsa_group_segment_fixed_size 0
  .amdhsa_kernarg_size 80
  .amdhsa_user_sgpr_count 2
  .amdhsa_user_sgpr_kernarg_segment_ptr 1
  .amdhsa_system_sgpr_workgroup_id_x 1
.end_amdhsa_kernel
"""
open(sys.argv[1], "w").write(out)
```

```python
import sys, struct
from asmlib import *
NAME = "recurrent_scan__linear_attn_block__glu_gated_geglu__prompt"
OPT = dict(stamps=0, rot=2, prio=1, pfcode=1, spin=1<<17, thr=4, unthr=41, n7=5, n8=10, ca=14, cb=22, h=6, mix=1, sub=1,
           psleep=2, ydep=4, sdep=0, w2late=4, p2map=0, stage=1, sprio=1, ydelay=-1, sdelay=0, fdelay=0, rdelay=0, xlate=0, now2=0, sd=3, apoll=0, fgate=1, rt=1, zf=1, nr=0, r0=3, lred=0, prew=0, hints=0, comb=1, fafter=0, h16=0, gate=4, ffirst=1, warm=0, nodma=0, redearly=1, xz=1, gmix=0, qmix=0, qnop=0, bpos=0, rgap=3, spk=0, diag=0, dwave=4, nrep=2, nl=2, p1=0, p2=7, osc=0, gpos=1, c2=10, yprio=2, ydrop=22, ypost=0, mord=0, adapt=1, ypk=0, nb=0, pf2=-1, drot=0, xfirst=1, nostat=0, w1pf=-9)
for a in sys.argv[2:]:
    k, v_ = a.split("="); assert k in OPT, k; OPT[k] = int(v_, 0)
def f2u(x): return struct.unpack("<I", struct.pack("<f", x))[0]
def hx(x): return "0x%08x" % f2u(x)

SLOT = 49152; XW = 24576; UPOFF = 12288; MISC = 3*SLOT; LDS = 163840
RS = MISC; RR = MISC+3072; CF = MISC+3840; MR = MISC+4608; LF = MISC+5376; GB = MISC+5632
Q = 12288
WS_RS = 0x10000; WS_CS = 0x20000; WS_FLAG = 0x300000; WS_FF = 0x60000; WS_DBG = 0x80000; WS_F = 0xC0000; WS_KV = 0x100000; WS_H = 0x800000
X="s[36:39]"; W="s[40:43]"; WS="s[44:47]"; H="s[48:51]"; WD="s[56:59]"; WO="s[60:63]"; OUT="s[64:67]"
TAG="s10"
def v(b, n=1): return f"v{b}" if n == 1 else f"v[{b}:{b+n-1}]"
def mfma(d, a, b, c=None):
    return f"v_mfma_f32_32x32x16_bf16 {v(d,16)}, {v(a,4)}, {v(b,4)}, " + ("0" if c == 0 else v(d,16))
def mfmaH(d, a, b, c, alt):
    if not OPT["h16"]: return mfma(d, a, b, c)
    return mf16(d+8*alt, a, b, c) + "\n" + mf16(d+8*alt+4, a ^ 4, b, c)
def mf16(d, a, b, c=None):
    return f"v_mfma_f32_16x16x32_bf16 {v(d,4)}, {v(a,4)}, {v(b,4)}, " + ("0" if c == 0 else v(d,4))
def bc(r): return v(r & ~1, 2), r & 1
_lab = [0]
def L(p="L"):
    _lab[0] += 1; return f"{p}_{_lab[0]}"
A = Asm()
def E(lst):
    for t in lst: A(t)
def cap(fn):
    n = len(A.lines); fn(); o = [t for _, t in A.lines[n:]]; del A.lines[n:]; return o
def stamp(*pairs):
    for i, st in pairs:
        if OPT["stamps"] == st or (OPT["stamps"] and st == 0):
            A(f"{'s_memrealtime' if (OPT['rt'] and i != 8) else 's_memtime'} s[68:69]\ns_waitcnt lgkmcnt(0)\ns_mov_b32 s{92+i}, s68")
def note(reg, st):
    if OPT["stamps"] == st: A(f"s_mov_b32 s35, {reg}")
def srd(name, lo, size, add=0):
    b = int(name[2:4])
    if add: A(f"s_add_u32 s{b}, s{lo}, {add}\ns_addc_u32 s{b+1}, s{lo+1}, 0")
    else: A(f"s_mov_b32 s{b}, s{lo}\ns_mov_b32 s{b+1}, s{lo+1}")
    A(f"s_mov_b32 s{b+2}, {size}\ns_mov_b32 s{b+3}, 0x20000")
def spin_flag(vaddr, vt, nl, kind=None, first=0):
    l1, l2 = L("POLL"), L("POLLD")
    A(f"""s_mov_b32 s88, {first}
s_mov_b64 exec, {hex((1<<nl)-1)}
{l1}:
s_and_b32 s87, s88, {OPT['nrep']-1}
s_lshl_b32 s87, s87, 7""")
    if kind: A(f"s_add_u32 s87, s87, {kind << 20}")
    A(f"""buffer_load_dword {v(vt)}, {v(vaddr)}, {WS}, s87 offen sc1
s_add_u32 s88, s88, 1
s_waitcnt vmcnt(0)
v_cmp_ne_u32 vcc, {TAG}, {v(vt)}
s_cmp_gt_u32 s88, {OPT['spin']}
s_cbranch_scc1 {l2}
s_cbranch_vccz {l2}
s_sleep {OPT['psleep']}
s_branch {l1}
{l2}:
s_mov_b64 exec, -1""")
def spin_lds(vaddr, vt, need=1):
    l1, l2 = L("LP"), L("LPD")
    A(f"""s_mov_b32 s86, 0
{l1}:
ds_read_b32 {v(vt)}, {v(vaddr)}
s_add_u32 s86, s86, 1
s_waitcnt lgkmcnt(0)
v_cmp_gt_u32 vcc, {need}, {v(vt)}
s_cmp_gt_u32 s86, {OPT['spin']*8}
s_cbranch_scc1 {l2}
s_cbranch_vccz {l2}
s_sleep 1
s_branch {l1}
{l2}:""")
def vmax(dst, regs_):
    o = []; r = list(regs_)
    if len(r) == 2: return [f"v_max_u32 v{dst}, v{r[0]}, v{r[1]}"]
    o.append(f"v_max3_u32 v{dst}, v{r[0]}, v{r[1]}, v{r[2]}"); r = r[3:]
    while r:
        if len(r) >= 2: o.append(f"v_max3_u32 v{dst}, v{dst}, v{r[0]}, v{r[1]}"); r = r[2:]
        else: o.append(f"v_max_u32 v{dst}, v{dst}, v{r[0]}"); r = r[1:]
    return o
def tagcheck(dst, tmp, regs_):
    for n, r in enumerate(regs_): A(f"v_xor_b32 v{dst if n == 0 else tmp+n}, {TAG}, v{r}")
    n = 1
    while n < len(regs_):
        if n+1 < len(regs_): A(f"v_or3_b32 v{dst}, v{dst}, v{tmp+n}, v{tmp+n+1}"); n += 2
        else: A(f"v_or_b32 v{dst}, v{dst}, v{tmp+n}"); n += 1

A(f"""s_cmp_ge_u32 s2, 256
s_cbranch_scc1 L_END
s_load_dwordx16 s[16:31], s[0:1], 0
s_load_dwordx2 s[32:33], s[0:1], 72""")
if OPT["stamps"]: A("s_memrealtime s[34:35]\ns_memtime s[68:69]")
A(f"""v_lshrrev_b32 v1, 6, v0
v_and_b32 v0, 63, v0
v_readfirstlane_b32 s3, v1
s_and_b32 s5, s2, 7
s_lshr_b32 s86, s2, 3""")
if OPT["p2map"] == 0:
    A("s_lshl_b32 s84, s5, 2\ns_lshr_b32 s87, s86, 3\ns_add_u32 s84, s84, s87\ns_and_b32 s85, s86, 7")
else:
    A("""s_lshr_b32 s84, s5, 1
s_lshl_b32 s84, s84, 3
s_lshr_b32 s87, s86, 2
s_add_u32 s84, s84, s87
s_and_b32 s85, s5, 1
s_lshl_b32 s85, s85, 2
s_and_b32 s87, s86, 3
s_add_u32 s85, s85, s87""")
A(f"""s_lshl_b32 s5, s5, 5
s_add_u32 s5, s5, s86
s_and_b32 s4, s3, 3
s_mov_b32 s12, 0
s_cmp_lt_u32 s5, 138
s_cbranch_scc0 L_BOT
s_mul_i32 s7, s5, 171
s_lshr_b32 s7, s7, 10
s_mul_i32 s86, s7, 6
s_sub_u32 s6, s5, s86
s_branch L_IDS
L_BOT:
s_cmp_ge_u32 s5, 253
s_cselect_b32 s12, 1, 0
s_cselect_b32 s86, 5, 0
s_sub_u32 s86, s5, s86
s_sub_u32 s86, s86, 138
s_mul_i32 s87, s86, 205
s_lshr_b32 s87, s87, 10
s_sub_u32 s7, 22, s87
s_mul_i32 s87, s87, 5
s_sub_u32 s6, s86, s87
s_add_u32 s6, s6, 6
L_IDS:
s_mov_b32 s90, s7""")
if OPT["mix"]:
    A("""s_mul_i32 s86, s7, 43
s_lshr_b32 s86, s86, 7
s_sub_u32 s87, s7, s86
s_lshl_b32 s88, s86, 1
s_sub_u32 s88, s87, s88
s_add_u32 s86, s86, 15
s_cmp_eq_u32 s7, 22
s_cselect_b32 s7, s86, s87
s_cmp_eq_u32 s88, 2
s_cselect_b32 s7, s86, s7""")
A(f"""s_mul_i32 s8, s6, 192
s_min_u32 s8, s8, 1856
s_mul_i32 s9, s7, 96
s_min_u32 s9, s9, 1280
s_cmp_lt_u32 s3, 4
s_cbranch_scc1 L_LOADER""")
def kwait():
    A("s_waitcnt lgkmcnt(0)\ns_load_dword s10, s[32:33], 0")
    if OPT["stamps"]: A("s_mov_b32 s92, s68")
    srd(X, 16, 2097152)
if OPT["prio"]: A(f"s_setprio {OPT['prio']}")
if OPT["pfcode"]:
    A(f"""s_getpc_b64 s[88:89]
L_PC:
s_sub_u32 s88, s88, L_PC-{NAME}_kernel
s_subb_u32 s89, s89, 0
s_lshr_b32 s86, s2, 3
s_lshl_b32 s86, s86, 3
s_lshl_b32 s87, s4, 1
s_add_u32 s86, s86, s87
v_and_b32 v3, 1, v0
v_add_u32 v3, s86, v3
v_lshlrev_b32 v3, 7, v3
v_min_u32 v3, L_END-{NAME}_kernel, v3
global_load_dword v47, v3, s[88:89]""")
A(f"""s_lshl_b32 s86, s5, 3
s_lshl_b32 s87, s4, 1
s_add_u32 s86, s86, s87
v_lshrrev_b32 v7, 5, v0
v_add_u32 v7, s86, v7
v_and_b32 v2, 31, v0
v_lshlrev_b32 v2, 4, v2
v_lshl_add_u32 v2, v7, 10, v2""")
kwait()
if not OPT["nostat"]: A(f"""buffer_load_dwordx4 v[8:11], v2, {X}, 0 offen
buffer_load_dwordx4 v[12:15], v2, {X}, 0 offen offset:512""")
stamp((1, 2))
A("s_branch L_COMPUTE\nL_LOADER:")

def w2addr(base, T, nat):
    a_, b_, c_, d_ = T, T+1, T+2, T+3
    A(f"""v_and_b32 v{a_}, 3, v0
v_bfe_u32 v{b_}, v0, 2, 2
v_bfe_u32 v{c_}, v0, 4, 1
v_lshrrev_b32 v{d_}, 5, v0
v_lshl_add_u32 v{d_}, v{d_}, {3 if nat else 2}, v{b_}
v_lshlrev_b32 v{d_}, 7, v{d_}
v_lshrrev_b32 v{b_}, 1, v{b_}
v_lshl_add_u32 v{c_}, v{b_}, 2, v{c_}
v_and_b32 v{b_}, 1, v{a_}
v_lshl_add_u32 v{c_}, v{b_}, 1, v{c_}
v_lshl_add_u32 v{d_}, v{c_}, 4, v{d_}
v_lshrrev_b32 v{a_}, 1, v{a_}
v_lshl_add_u32 v{d_}, v{a_}, 3, v{d_}
v_add_u32 v{base}, s76, v{d_}
v_xor_b32 v{d_}, 64, v{d_}
v_add_u32 v{base+1}, s76, v{d_}
v_add_u32 v{base+2}, {2*SLOT}, v{base}
v_add_u32 v{base+3}, {2*SLOT}, v{base+1}""")
def w2read(dst, slot, blk, ab, nat=True):
    o = []
    for c in range(2):
        for sec in range(2):
            ar = ab + c + (2 if slot == 2 else 0)
            off = (SLOT if slot == 1 else 0) + blk*2048 + sec*(512 if nat else 1024)
            o.append(f"ds_read_b64_tr_b16 {v(dst+4*c+2*sec,2)}, v{ar} offset:{off}")
    return o
def xres_addr(half, T):
    A(f"""s_lshl_b32 s86, s4, 4
s_lshl_b32 s87, s84, 6
s_add_u32 s86, s86, s87
s_add_u32 s86, s86, {8*half}
s_lshl_b32 s86, s86, 10
s_lshl_b32 s87, s85, 7
s_add_u32 s86, s86, s87
v_lshrrev_b32 v{T}, 3, v0
v_lshlrev_b32 v{T}, 10, v{T}
v_and_b32 v{T+1}, 7, v0
v_lshl_add_u32 v{T}, v{T+1}, 4, v{T}
v_add_u32 v1, s86, v{T}""")
def xres_load(late=0):
    if OPT["xlate"] == late: A(f"buffer_load_dwordx4 v[12:15], v1, {X}, 0 offen")
def p2setup():
    srd(WS, 32, 0x800000); srd(H, 32, 118*65536, WS_H); srd(WD, 28, 1376*1024); srd(WO, 20, 512*1024); srd(OUT, 30, 2097152)
    A(f"""v_lshrrev_b32 v24, 3, v0
v_lshlrev_b32 v24, 10, v24
v_and_b32 v25, 7, v0
v_bfe_u32 v26, v0, 4, 1
v_lshlrev_b32 v26, 2, v26
v_xor_b32 v25, v25, v26
v_lshl_add_u32 v24, v25, 4, v24
s_lshl_b32 s86, s85, 7
v_add_u32 v4, s86, v24
s_mul_i32 s87, s4, {3*16384}
v_add_u32 v2, s87, v4
s_add_u32 s87, s4, 84
s_lshl_b32 s87, s87, 14
v_add_u32 v3, s87, v4
s_lshl_b32 s87, s4, 17
v_add_u32 v4, s87, v4
s_mul_i32 s76, s4, {Q}
s_lshl_b32 s87, s84, 11
s_mul_i32 s86, s4, {3*65536}
s_add_u32 s86, s86, s87
v_lshl_add_u32 v6, v0, 4, s86
v_bfe_u32 v24, v0, 1, 3
v_lshlrev_b32 v24, 3, v24
s_lshr_b32 s86, s4, 1
s_lshl_b32 s86, s86, 2
s_and_b32 s90, s4, 1
s_add_u32 s86, s86, s90
v_add_u32 v24, s86, v24
v_min_u32 v24, 57, v24
v_cmp_eq_u32 vcc, 56, v24
v_cndmask_b32 v24, v24, 57, vcc
v_and_b32 v25, 1, v0
v_lshl_add_u32 v24, v25, 1, v24
s_lshl_b32 s86, s4, 3
s_add_u32 s86, s86, 44
v_add_u32 v25, s86, v0
v_cmp_lt_u32 vcc, 15, v0
v_cndmask_b32 v24, v24, v25, vcc
s_mul_i32 s86, s84, 43
s_lshr_b32 s86, s86, 7
s_mul_i32 s86, s86, {23*4096}
s_add_u32 s86, s86, {WS_FLAG}
v_lshl_add_u32 v5, v24, 10, s86
s_add_u32 s86, s4, 84
s_lshl_b32 s86, s86, 16
s_add_u32 s86, s86, s87
s_cmp_lt_u32 s4, 2
s_cselect_b32 s86, s86, 0x80000000
v_lshl_add_u32 v7, v0, 4, s86""")
    w2addr(8, 24, True); xres_addr(0, 24)
    A(f"s_waitcnt lgkmcnt(0)\ns_add_u32 {TAG}, {TAG}, 0x9E3779B9")
def wfrag_addr(dst, swc, T, lab):
    A(f"""v_and_b32 v{T}, 3, v0
v_bfe_u32 v{T+1}, v0, 2, 2
v_bfe_u32 v{T+2}, v0, 4, 1
s_cmp_ge_u32 s7, 15
s_cbranch_scc1 {lab}Q
v_lshrrev_b32 v{T+3}, 4, v0
v_lshl_add_u32 v{T+3}, v{T+3}, 3, v{T+1}
v_mul_u32_u24 v{T+3}, 192, v{T+3}
v_lshl_add_u32 v{T}, v{T}, 3, v{T+3}
v_add_u32 v{T}, {XW}, v{T}
s_mul_i32 s87, {swc}, 3
v_xor_b32 v{T+3}, s87, v{T+2}
v_lshl_add_u32 v{dst}, v{T+3}, 5, v{T}
s_add_u32 s87, s87, 1
v_xor_b32 v{T+3}, s87, v{T+2}
v_lshl_add_u32 v{dst+1}, v{T+3}, 5, v{T}
s_branch {lab}D
{lab}Q:
v_lshrrev_b32 v{T+3}, 5, v0
v_mul_u32_u24 v{T+3}, 3072, v{T+3}
v_lshl_add_u32 v{T+3}, v{T+1}, 7, v{T+3}
v_mul_u32_u24 v{T+4}, {UPOFF+32}, v{T+2}
v_lshrrev_b32 v{T+1}, 1, v{T+1}
v_xor_b32 v{T+1}, {swc}, v{T+1}
v_lshl_add_u32 v{T+4}, v{T+1}, 6, v{T+4}
v_lshl_add_u32 v{T}, v{T}, 3, v{T+3}
v_add_u32 v{T}, {XW}, v{T}
v_add_u32 v{dst}, v{T}, v{T+4}
v_xor_b32 v{dst+1}, 32, v{dst}
{lab}D:""")
def woff(role, s_, j, sec):
    if role == 'G':
        jj = j % 3
        return jj & 1, s_*6144 + sec*768 + (j//3)*UPOFF + (64 if jj == 2 else 0)
    return j & 1, s_*6144 + (j//2)*1024 + sec*512
def ksoff(kd): return 12*(kd % 7) + kd//7
NR = OPT["nr"]
S2R = [('o',6+k,2,4+k) for k in range(2)] + [('d',12+k,2,k) for k in range(4)]
S0R = [('d',16+k,0,k) for k in range(6)]; S1R = [('o',k,1,k) for k in range(6)]
rawA = [('d', k, 96+8*k) for k in range(6)]; rawB = [('d', 6+k, 144+8*k) for k in range(6)]
if NR == 18:
    rawitems = [('o', k, 192+8*k) for k in range(6)] + rawA + rawB; items = S2R + S0R
    post = ["bA", "bB", "wO", ("fwo", 2)]
elif NR == 12:
    rawitems = rawA + rawB; items = S2R + S0R + S1R
    post = ["bA", "bB"] + list(range(12, 18)) + [("fwo", 18)]
elif NR == 6:
    rawitems = rawB; items = [('d',k,2,k) for k in range(6)] + S0R + S1R + S2R
    post = ["bB", 12, 13, ("cp", 96, 2, 6), 14, 15, 16, 17, 18, 19, 20, 21, 22, ("fwo", 20), 23]
else:
    rawitems = []; items = [('d',k,2,k) for k in range(6)] + [('d',6+k,0,k) for k in range(6)] + S1R + S2R + S0R
    post = [12, 13, ("cp", 96, 2, 6)] + list(range(14, 22)) + [("cp", 144, 0, 12), 22, ("fwo", 20)] + list(range(23, 30))
N7, N8 = OPT["n7"], OPT["n8"]
def rawload(it):
    kind, k, reg = it
    va, kk, S_ = ((2, ksoff(k), WD) if k < 21 else (3, 0, WD)) if kind == 'd' else (4, k, WO)
    A(f"""s_mov_b32 s86, {kk*16384}
s_mov_b32 s87, {kk*16384 + 8192}
buffer_load_dwordx4 {v(reg,4)}, v{va}, {S_}, s86 offen
buffer_load_dwordx4 {v(reg+4,4)}, v{va}, {S_}, s87 offen""")
def rawblocks():
    if not NR: return
    steps = list(range(OPT["r0"], 6)); n = len(steps)
    for i, st in enumerate(steps):
        sk = L("RW")
        A(f"s_cmp_eq_u32 s83, {st}\ns_cbranch_scc0 {sk}")
        for it in rawitems[NR*i//n : NR*(i+1)//n]: rawload(it)
        A.label(sk)
def w2item(n, thr=None):
    if OPT["now2"]: return
    kind, k, slot, blk = items[n]
    tw = f"s_waitcnt vmcnt({thr})\n" if thr is not None else ""
    if thr is not None and OPT["adapt"]:
        l1, l2 = L("TA"), L("TB")
        A(f"s_waitcnt lgkmcnt(0)\nv_readfirstlane_b32 s75, v20\nds_read_b32 v20, v19")
        kind, k, slot, blk = items[n]
        va, kk, S_ = ((2, ksoff(k), WD) if k < 21 else (3, 0, WD)) if kind == 'd' else (4, k, WO)
        A(f"""s_add_u32 m0, s76, {slot*SLOT + blk*2048}
s_mov_b32 s86, {kk*16384}
s_mov_b32 s87, {kk*16384 + 7168}
s_cmp_ge_u32 s75, {OPT['gate']}
s_cbranch_scc1 {l1}
s_waitcnt vmcnt({thr})
{l1}:
buffer_load_dwordx4 v{va}, {S_}, s86 offen lds
s_cbranch_scc1 {l2}
s_waitcnt vmcnt({thr})
{l2}:
buffer_load_dwordx4 v{va}, {S_}, s87 offen offset:1024 lds""")
        return
    A(f"s_add_u32 m0, s76, {slot*SLOT + blk*2048}")
    va, kk, S_ = ((2, ksoff(k), WD) if k < 21 else (3, 0, WD)) if kind == 'd' else (4, k, WO)
    A(f"""s_mov_b32 s86, {kk*16384}
s_mov_b32 s87, {kk*16384 + 7168}
{tw}buffer_load_dwordx4 v{va}, {S_}, s86 offen lds
{tw}buffer_load_dwordx4 v{va}, {S_}, s87 offen offset:1024 lds""")

A(f"""s_cmp_ge_u32 s3, 2
s_cbranch_scc1 L_SIDE
s_add_u32 s79, s6, s90""")
R_ = OPT["drot"] or OPT["rot"]
A(f"s_and_b32 s79, s79, {R_-1}\ns_lshl_b32 s79, s79, { {1:0, 2:2, 4:1, 8:0}[R_] }")
A(f"""v_lshrrev_b32 v24, 3, v0
v_and_b32 v25, 7, v0
v_lshrrev_b32 v26, 4, v0
v_xor_b32 v27, v25, v26
s_mul_i32 s86, s4, 96
s_add_u32 s86, s86, s8
s_lshl_b32 s86, s86, 10
v_lshl_add_u32 v16, v24, 10, s86
v_lshl_add_u32 v16, v27, 4, v16
v_xor_b32 v17, 64, v16
v_add_u32 v18, {2*7168}, v16
v_add_u32 v19, {3*7168}, v17
v_add_u32 v17, 7168, v17
s_mul_i32 s74, s4, 12288
""")
XG = ["s70", "s71", "s72"]; WL = ["s52", "s53", "s54", "s55"]; WG = ["s73", "s77", "s14", "s15"]
sh = {2: 1, 4: 2, 8: 0, 1: 0}[R_]
if OPT["sub"]:
    A(f"""s_lshr_b32 s86, s90, {sh}
s_mul_i32 s87, s86, 43
s_lshr_b32 s87, s87, 7
s_mul_i32 s87, s87, 3
s_sub_u32 s86, s86, s87
""")
else:
    A("s_mov_b32 s86, 0")
A("""s_lshl_b32 s70, s86, 12
s_add_u32 s71, s70, 4096
s_cmp_eq_u32 s71, 12288
s_cselect_b32 s71, 0, s71
s_add_u32 s72, s70, s71
s_sub_u32 s72, 12288, s72""")
XN = ["s11", "s13", "s91"]
A(f"s_lshl_b32 s86, s4, 4\ns_add_u32 s86, s86, s6\ns_cmp_eq_u32 s86, 10\ns_cselect_b32 s88, {8192 if OPT['xz'] else 0}, 0\ns_cmp_eq_u32 s12, 1\ns_cselect_b32 s88, {65536 if OPT['xz'] else 0}, s88")
for g in range(3): A(f"s_cmp_lt_u32 {XG[g]}, s88\ns_cselect_b32 {XN[g]}, 0, 2097152")
A("s_lshl_b32 s80, s79, 7\ns_mov_b32 s88, s74")
kwait()
stamp((1, 2))
def issue_head():
    A(f"""s_lshl_b32 s80, s79, 7
s_mul_i32 s81, s79, s82
s_lshl_b32 s81, s81, 2
s_add_u32 s88, s78, s74
s_add_u32 s89, s78, s75""")
ORDER = ["x0", "w0", "x1", "w1", "x2", "w2", "w3"]
def issue_part(lo, hi, order=None):
    n = 0
    for it in (order or ORDER[lo:hi]):
        g = int(it[1])
        if it[0] == 'x':
            A(f"s_add_u32 m0, s88, {XG[g]}\ns_lshl3_add_u32 s86, {XG[g]}, s80\ns_mov_b32 s38, {XN[g]}")
            for q in range(4): A(f"buffer_load_dwordx4 v{16+q}, {X}, s86 offen offset:{1024*q} lds")
            n += 4
        else:
            A(f"s_add_u32 m0, s89, {WL[g]}\ns_add_u32 s87, s81, {WG[g]}")
            for j in range(3): A(f"buffer_load_dwordx4 v{20+j}, {W}, s87 offen offset:{1024*j} lds")
            n += 3
    return n
def issue_tail():
    A(f"""s_add_u32 s79, s79, 1
s_and_b32 s79, s79, 7
s_add_u32 s78, s78, {SLOT}
s_cmp_eq_u32 s78, {3*SLOT}
s_cselect_b32 s78, 0, s78""")
HH = OPT["h"]
issue_part(0, 0, ["x0", "x1", "x2"][:3 if OPT["xfirst"] == 1 else 1])
A(f"""s_mul_i32 s75, s4, {UPOFF}
s_add_u32 s75, s75, {XW}
s_mov_b32 s43, 0x20000
s_mov_b32 s78, 0
s_cmp_ge_u32 s7, 15
s_cbranch_scc1 L_LQKV
s_mov_b32 s42, {512*2752}
s_mov_b32 s82, {16*2752}
s_movk_i32 s86, 0x1556
s_movk_i32 s87, 2752
s_lshl_b32 s88, s9, 1
s_cmp_eq_u32 s7, 14
s_cselect_b32 s89, {8 if OPT['zf'] else 0}, 0
s_cmp_eq_u32 s12, 1
s_cselect_b32 s89, {12 if OPT['zf'] else 0}, s89
v_mov_b32 v28, 0x80000000""")
for i in range(3):
    A(f"""v_add_u32 v24, {64*i}, v0
v_mul_u32_u24 v25, s86, v24
v_lshrrev_b32 v25, 16, v25
v_mul_u32_u24 v26, 12, v25
v_sub_u32 v24, v24, v26
v_lshrrev_b32 v26, 2, v25
v_and_b32 v26, 2, v26
v_xor_b32 v24, v24, v26
v_cmp_gt_u32 vcc, s89, v24
v_mul_u32_u24 v25, s87, v25
v_lshl_add_u32 v24, v24, 4, v25
v_add_u32 v24, s88, v24
v_subrev_u32 v24, {1024*i}, v24
v_cndmask_b32 v{20+i}, v24, v28, vcc""")
A(f"""s_branch L_LGO
L_LQKV:
s_mov_b32 s42, {512*3072}
s_mov_b32 s82, {16*3072}
s_sub_u32 s87, s7, 15
s_lshl_b32 s87, s87, 7
s_mul_i32 s88, s4, {8*3072}
s_add_u32 s87, s87, s88
v_mul_u32_u24 v24, 3072, v24
v_and_b32 v26, 1, v26
v_lshlrev_b32 v26, 2, v26
v_xor_b32 v25, v25, v26
s_lshl_b32 s88, s4, 1
v_xor_b32 v25, s88, v25
v_lshl_add_u32 v20, v25, 4, v24
v_add_u32 v20, s87, v20
v_mov_b32 v21, v20
v_mov_b32 v22, v20
L_LGO:""")
A(f"s_lshr_b32 s87, s6, {sh}" if OPT["sub"] else "s_mov_b32 s87, 0")
for g in range(4):
    A(f"s_add_u32 s86, s87, {g}\ns_and_b32 s86, s86, 3\ns_mul_i32 {WL[g]}, s86, 3072\ns_mul_i32 {WG[g]}, s86, s82")
A(f"""s_cmp_eq_u32 s4, 1
s_cselect_b32 s40, s26, s24
s_cselect_b32 s41, s27, s25
s_cmp_ge_u32 s7, 15
s_cselect_b32 s40, s18, s40
s_cselect_b32 s41, s19, s41""")
issue_head(); issue_part(0, 0, ["w0", "w1", "w2", "w3"] if OPT["xfirst"] == 1 else ["w0", "x1", "w1", "x2", "w2", "w3"]); issue_tail()
stamp((2, 2))
issue_head(); n_ = issue_part(0, HH)
p2setup()
A(f"s_waitcnt vmcnt({n_})")
stamp((1, 1), (3, 2))
A("s_barrier\ns_mov_b32 s83, 0\nL_LLOOP:")
rawblocks()
if OPT['nodma']: issue_tail(); issue_head()
else: issue_part(HH, 7); issue_tail(); issue_head(); issue_part(0, HH)
A(f"""s_add_u32 s83, s83, 1
s_waitcnt vmcnt({n_})
s_barrier
s_cmp_lt_u32 s83, 6
s_cbranch_scc1 L_LLOOP""")
stamp((2, 1), (4, 2))
issue_part(HH, 7)
A("s_mov_b32 s38, 2097152")
for n in range(N7): w2item(n)
A(f"s_waitcnt vmcnt({2*N7})\ns_barrier")
stamp((5, 2))
for n in range(N7, N8): w2item(n)
A("s_barrier\ns_branch L_W2")

def f_addr(dst):
    A(f"""s_sub_u32 s86, s7, 15
s_lshl_b32 s86, s86, 12
s_and_b32 s87, s6, 1
s_lshl_b32 s87, s87, 11
s_add_u32 s86, s86, s87
s_and_b32 s87, s6, 2
s_lshl_b32 s87, s87, 9
s_add_u32 s86, s86, s87
s_lshr_b32 s87, s6, 2
s_lshl_b32 s87, s87, 9
s_add_u32 s86, s86, s87
s_lshl1_add_u32 s91, s86, {WS_FF}
s_add_u32 s86, s86, {WS_F}
v_lshl_add_u32 v{dst}, v0, 4, s86""")
assert OPT["rot"] in (2, 4, 8)
A(f"""L_SIDE:
s_add_u32 s13, s6, s90
s_and_b32 s13, s13, {OPT['rot']-1}
s_lshl_b32 s13, s13, { {2:2, 4:1, 8:0}[OPT['rot']] }
s_lshr_b32 s14, s6, { {2:1, 4:2, 8:3}[OPT['rot']] }
s_add_u32 s15, s13, s14
s_cmp_ge_u32 s6, 8
s_cselect_b32 s14, 99, s14
s_cmp_eq_u32 s12, 1
s_cselect_b32 s14, 99, s14
s_and_b32 s77, s4, 1""")
wfrag_addr(62, "s77", 24, "L_SA")
A(f"""s_cmp_eq_u32 s14, 1
s_cselect_b32 s86, {SLOT}, 0
s_cmp_eq_u32 s14, 2
s_cselect_b32 s86, {2*SLOT}, s86
v_add_u32 v62, s86, v62
v_add_u32 v63, s86, v63
v_and_b32 v24, 16, v0
v_cmp_ne_u32 s[72:73], 0, v24
v_and_b32 v24, 31, v0
s_mul_i32 s86, s77, 384
s_add_u32 s86, s86, {CF}
v_lshrrev_b32 v25, 4, v24
v_mul_u32_u24 v25, 128, v25
v_lshl_add_u32 v17, v24, 2, v25
v_add_u32 v17, s86, v17
s_mul_i32 s87, s77, 96
v_add_u32 v21, s87, v0
v_add3_u32 v22, v24, s87, 64
s_lshl_b32 s86, s8, 4
s_add_u32 s86, s86, {WS_RS}
v_lshl_add_u32 v19, v21, 4, s86
v_lshl_add_u32 v20, v22, 4, s86
s_lshl_b32 s86, s7, 13
s_lshl_b32 s87, s77, 9
s_add_u32 s86, s86, s87
s_add_u32 s86, s86, {WS_CS}
s_lshl_b32 s87, s15, 10
s_add_u32 s74, s86, s87
v_lshlrev_b32 v23, 4, v24
v_lshrrev_b32 v25, 5, v0
v_lshl_add_u32 v18, v25, 12, v23
v_add_u32 v18, s86, v18""")
for r in range(52, 56): A(f"v_mov_b32 v{r}, 0x3f803f80")
def w1prefetch():
    A(f"""s_cmp_eq_u32 s77, 0
s_cselect_b32 s40, s24, s26
s_cselect_b32 s41, s25, s27
s_mov_b32 s42, {1376*1024}
s_mov_b32 s43, 0x20000
s_mul_i32 s86, s5, 43
v_min_u32 v16, 42, v0
v_add_u32 v16, s86, v16
v_lshlrev_b32 v16, 7, v16
buffer_load_dword v58, v16, {W}, 0 offen
s_mov_b32 s52, s18
s_mov_b32 s53, s19
s_mov_b32 s54, {512*3072}
s_mov_b32 s55, 0x20000
s_lshl_b32 s86, s5, 1
s_add_u32 s86, s86, s77
s_mul_i32 s86, s86, 24
v_min_u32 v16, 23, v0
v_add_u32 v16, s86, v16
v_lshlrev_b32 v16, 7, v16
buffer_load_dword v57, v16, s[52:55], 0 offen""")
kwait()
if OPT['w1pf'] == -2: w1prefetch()
p2setup()
A(f"""s_cmp_lt_u32 s7, 15
s_cbranch_scc1 L_NOCLR
s_cmp_ge_u32 s6, 8
s_cbranch_scc1 L_NOCLR""")
f_addr(24)
A(f"""v_mov_b32 v28, -1
v_mov_b32 v29, -1
v_mov_b32 v30, -1
v_mov_b32 v31, -1
s_mov_b32 exec_hi, 0
buffer_store_dwordx4 v[28:31], v24, {WS}, 0 offen sc1
s_mov_b32 exec_hi, -1""")
if OPT["prew"]: A(f"s_sub_u32 s86, {TAG}, 1\nv_mov_b32 v32, s86\nv_lshlrev_b32 v24, 4, v0\nbuffer_store_dwordx4 v[32:35], v24, {WS}, s91 offen sc1")
A(f"""L_NOCLR:
s_mov_b32 s83, 0
s_waitcnt vmcnt(0)""")
if OPT["w1pf"] == -1: w1prefetch()
A("L_SLOOP:\ns_barrier")
if OPT["w1pf"] >= 0:
    A(f"s_cmp_eq_u32 s83, {OPT['w1pf']}\ns_cbranch_scc0 L_NOPF1"); w1prefetch(); A("L_NOPF1:")
if OPT["w2late"] >= 0:
    A(f"""s_cmp_eq_u32 s83, {OPT['w2late']}
s_cbranch_scc0 L_NOPF2
s_mul_i32 s86, s5, 59
s_mul_i32 s87, s77, 30
s_add_u32 s86, s86, s87
v_min_u32 v16, 29, v0
v_add_u32 v16, s86, v16
v_lshlrev_b32 v16, 7, v16
buffer_load_dword v60, v16, {WD}, 0 offen
v_subrev_u32 v16, {1376*1024}, v16
buffer_load_dword v61, v16, {WO}, 0 offen
L_NOPF2:""")
if OPT["pf2"] >= 0:
    A(f"""s_cmp_eq_u32 s83, {OPT['pf2']}
s_cbranch_scc0 L_NOPF3
s_getpc_b64 s[88:89]
L_PC2:
s_sub_u32 s88, s88, L_PC2-{NAME}_kernel
s_subb_u32 s89, s89, 0
s_lshr_b32 s86, s2, 3
s_lshl_b32 s86, s86, 3
s_lshl_b32 s87, s77, 2
s_add_u32 s86, s86, s87
v_and_b32 v16, 3, v0
v_add_u32 v16, s86, v16
v_lshlrev_b32 v16, 7, v16
v_min_u32 v16, L_END-{NAME}_kernel, v16
global_load_dword v59, v16, s[88:89]
L_NOPF3:""")
A("s_cmp_eq_u32 s83, s14\ns_cbranch_scc0 L_LNOCS")
for t in range(2):
    A(f"s_cmp_ge_u32 s7, 15\ns_cbranch_scc1 L_CSQ{t}")
    for role in "GQ":
        if role == 'Q': A(f"s_branch L_CSM{t}\nL_CSQ{t}:")
        for j in range(6):
            for sec in range(2):
                par, off = woff(role, t, j, sec)
                A(f"ds_read_b64_tr_b16 {v(24+4*j+2*sec,2)}, v{62+par} offset:{off}")
    A(f"L_CSM{t}:\ns_waitcnt lgkmcnt(0)")
    for j in range(6): A(mf16(72+4*j, 52, 24+4*j, 0 if t == 0 else None))
A(f"v_mov_b32 v51, {TAG}")
for u in range(3): A(f"v_cndmask_b32 v{48+u}, v{72+4*u}, v{84+4*u}, s[72:73]")
A(f"""s_mov_b32 exec_hi, 0
buffer_store_dwordx4 v[48:51], v23, {WS}, s74 offen sc1
s_mov_b32 exec_hi, -1
L_LNOCS:""")
rawblocks()
A(f"""s_add_u32 s83, s83, 1
s_cmp_lt_u32 s83, 6
s_cbranch_scc1 L_SLOOP""")
def st_loads():
    for p in range(4): A(f"buffer_load_dwordx4 {v(32+4*p,4)}, v18, {WS}, 0 offen offset:{1024*p} sc1")
    A(f"buffer_load_dwordx4 v[48:51], v19, {WS}, 0 offen sc1\nbuffer_load_dwordx4 v[52:55], v20, {WS}, 0 offen sc1")
st_loads()
A("s_barrier")
stamp((2, 1), (4, 2))
for n in range(N7): w2item(n)
A(f"s_mov_b32 s88, 0\ns_waitcnt vmcnt({2*N7})\ns_barrier")
stamp((5, 2))
A("L_SPC:")
tagcheck(24, 24, [35+4*p for p in range(6)])
A(f"""v_cmp_ne_u32 vcc, 0, v24
s_add_u32 s88, s88, 1
s_cmp_gt_u32 s88, {OPT['spin']}
s_cbranch_scc1 L_SPCD
s_cbranch_vccz L_SPCD""")
st_loads()
A(f"""s_waitcnt vmcnt(0)
s_branch L_SPC
L_SPCD:
s_mov_b32 s86, {RS}
s_mov_b32 s87, {RR}
v_lshl_add_u32 v24, v21, 4, s86
v_lshl_add_u32 v25, v22, 4, s86
v_lshl_add_u32 v21, v21, 2, s87
v_lshl_add_u32 v22, v22, 2, s87
ds_write_b128 v24, v[48:51]
ds_write_b128 v25, v[52:55]
ds_write_b32 v21, v49
ds_write_b32 v22, v53
v_mul_f32 v24, v48, v49
v_mul_f32 v25, v52, v53
ds_write_b32 v21, v24 offset:{MR-RR}
ds_write_b32 v22, v25 offset:{MR-RR}""")
note("s88", 2)
for p in range(1, 4):
    for u in range(3): A(f"v_add_f32 v{32+u}, v{32+u}, v{32+4*p+u}")
for u in range(3): A(f"v_mov_b32 v{36+u}, v{32+u}")
for u in range(3): A(f"v_permlane32_swap_b32 v{32+u}, v{36+u}")
for u in range(3): A(f"v_add_f32 v{32+u}, v{32+u}, v{36+u}")
for u in range(3): A(f"ds_write_b32 v17, v{32+u} offset:{64*u}")
A("s_waitcnt lgkmcnt(0)\ns_barrier")
for n in range(N7, N8): w2item(n)

A("L_W2:")
stamp((3, 1), (6, 2))
AB = 8
A(f"v_lshlrev_b32 v16, 4, v0\nv_add_u32 v16, s76, v16\nv_mov_b32 v19, {LF+32}\nv_mov_b32 v20, 0")
def wr(reg, slot, blk):
    off = slot*SLOT + blk*2048
    A(f"ds_write_b128 v16, {v(reg,4)} offset:{off}\nds_write_b128 v16, {v(reg+4,4)} offset:{off+1024}")
def rd6(base, sl):
    for kk in range(6):
        E(w2read(base+8*kk, sl, kk, AB))
        if kk % 3 == 2: A("s_waitcnt lgkmcnt(0)")
nis = N8
NL = OPT['nl'] + OPT['nb'] if OPT['stage'] else 0
assert NR == 0 and NL <= 7
for op in (list(range(N8, 12)) + post)[:len(range(N8, 12)) + len(post) - NL]:
    if isinstance(op, int):
        assert op == nis; nis += 1
        w2item(op, OPT["thr"] if (OPT["thr"] and op < OPT["unthr"]) else None)
    elif op in ("bA", "bB"):
        base = 96 if op == "bA" else 144
        for kk in range(6): wr(base+8*kk, 1, kk)
        A("s_waitcnt lgkmcnt(0)"); rd6(base, 1)
    elif op == "wO":
        for kk in range(6): wr(192+8*kk, 1, kk)
    elif op[0] == "cp":
        A(f"s_waitcnt vmcnt({2*(nis-op[3])})"); rd6(op[1], op[2])
    elif op[0] == "fwo":
        A(f"""s_lshl_b32 s86, s4, 2
s_add_u32 s86, s86, {LF}
v_mov_b32 v18, s86
v_mov_b32 v17, 1
s_waitcnt vmcnt({2*(nis-op[1])}) lgkmcnt(0)
ds_write_b32 v18, v17""")
def reducer(CTr, va, vf, vc, msk, sz, pairbase):
    A(f"""s_lshr_b32 s79, s6, 1
s_lshl_b32 s86, s79, 8
s_add_u32 s86, s86, {pairbase}
v_lshrrev_b32 v{va}, 4, v0
v_mul_u32_u24 v{va}, 3072, v{va}
v_and_b32 v{vc}, 15, v0
v_lshl_add_u32 v{va}, v{vc}, 4, v{va}
v_add_u32 v{va}, s86, v{va}""")
    for j in range(12): A(f"v_mov_b32 v{CTr(5)+j}, " + (TAG if j % 4 == 3 else "0"))
    f_addr(vf)
    A(f"""v_lshrrev_b32 v24, 1, v0
v_mul_u32_u24 v24, 92, v24
v_and_b32 v25, 1, v0
v_lshl_add_u32 v24, v25, 1, v24
s_lshl_b32 s86, s7, 2
s_and_b32 s87, s6, 1
s_add_u32 s86, s86, s87
s_lshl_b32 s86, s86, 10
s_add_u32 s86, s86, {WS_FLAG}
v_lshl_add_u32 v24, v24, 10, s86""")
    if OPT["hints"]: spin_flag(24, 25, 22, 0)
    stamp((4, 3))
    A("s_mov_b32 s88, 0\nL_KVC:")
    for p in range(6):
        A(f"s_mov_b32 s86, {12288*p}")
        if p == 5: A("s_mov_b32 exec_hi, 0")
        for g_ in range(3): A(f"buffer_load_dwordx4 {v(CTr(p)+4*g_,4)}, v{va}, {WS}, s86 offen offset:{1024*g_} sc1")
    A("s_mov_b32 exec_hi, -1\ns_waitcnt vmcnt(0)")
    if OPT["redearly"] and not OPT["lred"]:
        A("s_cmp_lg_u32 s88, 0\ns_cbranch_scc1 L_NOFL"); flagstore(2); A("L_NOFL:")
    tagcheck(vc, 60, [CTr(n//3)+4*(n%3)+3 for n in range(18)])
    A(f"""v_cmp_ne_u32 vcc, 0, v{vc}
s_add_u32 s88, s88, 1
s_cmp_gt_u32 s88, {OPT['spin']}
s_cbranch_scc1 L_KVD
s_cbranch_vccnz L_KVC
L_KVD:""")
    note("s88", 3)
    rr = lambda p, j: CTr(p) + 4*(j//3) + j % 3
    for j in range(9): A(f"v_add_f32 v{24+j}, v{rr(0,j)}, v{rr(1,j)}")
    for p in range(2, 6):
        for j in range(9): A(f"v_add_f32 v{24+j}, v{24+j}, v{rr(p,j)}")
    for sw in (16, 32):
        for j in range(9): A(f"v_mov_b32 v{36+j}, v{24+j}")
        for j in range(9): A(f"v_permlane{sw}_swap_b32 v{24+j}, v{36+j}")
        for j in range(9): A(f"v_add_f32 v{24+j}, v{24+j}, v{36+j}")
    A(f"""s_lshr_b32 s86, s79, 1
s_lshl_b32 s86, s86, 3
s_add_u32 s87, s86, 2
s_add_u32 s88, s86, 4
s_add_u32 s89, s86, 6
v_mov_b32_dpp v33, v32 row_shl:1 row_mask:0xf bank_mask:0xf""")
    for j in range(4): A(f"v_cvt_pk_bf16_f32 v{36+j}, v{24+2*j}, v{25+2*j}")
    A(f"""v_cvt_pk_bf16_f32 v33, v32, v33
s_bitcmp1_b32 s79, 0
s_cselect_b64 s[80:81], -1, 0
s_xor_b64 s[80:81], s[80:81], {msk}""")
    for j in range(4): A(f"v_readlane_b32 s{sz+j}, v33, s{86+j}")
    for j in range(4): A(f"v_mov_b32 v{40+j}, s{sz+j}")
    for j in range(4): A(f"v_cndmask_b32 v{44+j}, v{36+j}, v{40+j}, s[80:81]")
    A(f"""s_mov_b32 exec_hi, 0
buffer_store_dwordx4 v[44:47], v{vf}, {WS}, 0 offen sc1
s_mov_b32 exec_hi, -1""")
    for j in range(4): A(f"v_mov_b32 v{24+j}, {TAG}")
    if OPT["hints"]: A(f"v_lshlrev_b32 v28, 4, v0\nbuffer_store_dwordx4 v[24:27], v28, {WS}, s91 offen sc1")
    stamp((5, 3))
if OPT["lred"]:
    A(f"""s_cmp_lg_u32 s3, 3
s_cbranch_scc1 L_NORED
s_cmp_lt_u32 s7, 15
s_cbranch_scc1 L_NORED
s_cmp_ge_u32 s6, 8
s_cbranch_scc1 L_NORED
s_setprio 2
s_sub_u32 s87, s7, 15
s_lshl_b32 s87, s87, 1
s_and_b32 s86, s6, 1
s_add_u32 s87, s87, s86
s_mul_i32 s77, s87, {24*3072}
s_add_u32 s77, s77, {WS_KV}""")
    reducer(lambda p: 192+12*p if p < 5 else 80, 19, 20, 21, "s[72:73]", 52, "s77")
    A("s_setprio 0\nL_NORED:")
xres_load()
stamp((4, 1), (1, 3), (1, 4))
def rdaddr(dst, isy_src, half, T):
    base = 0 if isy_src else SLOT
    t3 = 2*SLOT + (0 if isy_src else 8192)
    A(f"""s_and_b32 s70, s4, 2
s_lshl_b32 s70, s70, 12
s_add_u32 s70, s70, {base}
s_add_u32 s71, s70, 4096
s_cmp_ge_u32 s4, 2
s_cselect_b32 s71, {t3}, s71
v_mov_b32 v{T}, s70
v_mov_b32 v{T+1}, s71
v_and_b32 v{T+2}, 4, v0
v_cmp_ne_u32 vcc, 0, v{T+2}
v_and_b32 v{T+2}, 7, v0
v_lshrrev_b32 v{T+3}, 3, v0
v_cndmask_b32 v{T}, v{T}, v{T+1}, vcc
v_add_u32 v{T+3}, {8*half}, v{T+3}
v_lshlrev_b32 v{T+1}, 1, v{T+2}
v_xor_b32 v{T+3}, v{T+3}, v{T+1}
s_and_b32 s70, s4, 1
s_lshl_b32 s70, s70, 8
v_lshl_add_u32 v{T}, v{T+3}, 4, v{T}
v_and_b32 v{T+1}, 2, v0
v_lshl_add_u32 v{T}, v{T+1}, 8, v{T}
v_and_b32 v{T+1}, 1, v0
v_lshl_add_u32 v{T}, v{T+1}, 11, v{T}
v_add_u32 v{dst}, s70, v{T}""")
def wraddr(B_, isy):
    A(f"""v_lshrrev_b32 v{B_}, 3, v0
v_and_b32 v{B_}, 4, v{B_}
v_xor_b32 v{B_}, v{B_}, v0
v_lshlrev_b32 v{B_}, 4, v{B_}
v_xor_b32 v{B_+1}, 32, v{B_}
v_xor_b32 v{B_+2}, 0x80, v{B_}
v_xor_b32 v{B_+3}, 0xa0, v{B_}""")
    for j in range(4): A(f"v_add_u32 v{B_+j}, s76, v{B_+j}")
    t3 = 2*SLOT + (0 if isy else 8192)
    A(f"v_add_u32 v{B_+4}, {t3}, v{B_+2}\nv_add_u32 v{B_+5}, {t3}, v{B_+3}")
def wrpart(B_, isy):
    for q in range(4):
        for jq in range(4):
            if q < 3: A(f"ds_write_b128 v{B_ + 2*(q&1) + (jq>>1)}, {v(192+16*q+4*jq,4)} offset:{(0 if isy else SLOT) + q*4096 + jq*1024}")
            else: A(f"ds_write_b128 v{B_ + 4 + (jq>>1)}, {v(192+16*q+4*jq,4)} offset:{jq*1024}")
def rd4(dst, va):
    for src in range(4):
        for e in range(2): A(f"ds_read_b128 {v(dst+8*src+4*e,4)}, v{va} offset:{Q*src+1024*e}")
def sum4(d):
    for j in range(4): A(f"v_pk_add_f32 {v(d+2*j,2)}, {v(d+2*j,2)}, {v(d+8+2*j,2)}\nv_pk_add_f32 {v(d+16+2*j,2)}, {v(d+16+2*j,2)}, {v(d+24+2*j,2)}")
    for j in range(4): A(f"v_pk_add_f32 {v(d+2*j,2)}, {v(d+2*j,2)}, {v(d+16+2*j,2)}")
STG = OPT["stage"]
def sgo(va, vd): return f"s_lshl_b32 s86, s4, 2\ns_add_u32 s86, s86, {LF+48}\nv_mov_b32 v{va}, s86\nv_mov_b32 v{vd}, 1\nds_write_b32 v{va}, v{vd}"
if OPT["gate"]:
    A(f"v_mov_b32 v16, {LF+32}"); spin_lds(16, 17, OPT["gate"])
NB = OPT["nb"] if STG else 0
if STG:
    if not NB: spin_flag(5, 4, 16, 0)
else:
    spin_flag(5, 4, 24, 2); A(sgo(5, 4))
note("1" if NB else "s88", 4)
stamp((5, 1), (2, 3), (2, 4))
def hload(kd):
    va, kk = (6, ksoff(kd)) if kd < 21 else (7, 0)
    b = 16 + 8*(kd % 8)
    return [f"s_mov_b32 s86, {kk*65536}",
            f"VM h{kd}a|buffer_load_dwordx4 {v(b,4)}, v{va}, {H}, s86 offen sc1",
            f"VM h{kd}|buffer_load_dwordx4 {v(b+4,4)}, v{va}, {H}, s86 offen offset:1024 sc1"]
def w2late(n):
    kind, k, slot, blk = items[n]
    va, kk = (2, ksoff(k)) if k < 21 else (3, 0)
    return [f"s_add_u32 m0, s76, {slot*SLOT + blk*2048}\ns_mov_b32 s86, {kk*16384}\ns_mov_b32 s87, {kk*16384 + 7168}",
            f"VM w{k}a|buffer_load_dwordx4 v{va}, {WD}, s86 offen lds",
            f"VM w{k}|buffer_load_dwordx4 v{va}, {WD}, s87 offen offset:1024 lds"]
def ipoll(c):
    nl = 16 if c <= 1 else 24
    return [f"VM p{c}|v_mov_b32 v4, {TAG}\ns_mov_b32 s87, {c << 20}\ns_mov_b64 exec, {hex((1<<nl)-1)}\nbuffer_load_dword v4, v5, {WS}, s87 offen sc1\ns_mov_b64 exec, -1"]
res_loc = lambda kd: (2, kd-12) if kd < 16 else (0, kd-16)
YD = OPT["ydep"]; assert YD <= 7
PRE = cap(lambda: (wraddr(96, True), rdaddr(102, True, 0, 104), A("v_xor_b32 v103, 0x80, v102"), rdaddr(108, False, 0, 104),
    A(f"s_lshl_b32 s70, s4, 11\ns_add_u32 s70, s70, {GB}\nv_lshl_add_u32 v109, v0, 4, s70\nv_mov_b32 v110, {LF+36}\nv_mov_b32 v111, 1"),
    [A(f"v_lshlrev_b32 v{112+2*j}, 16, v{12+j}\nv_and_b32 v{113+2*j}, 0xffff0000, v{12+j}") for j in range(4)],
    A(f"s_mov_b32 s70, {hx(-1.4426950408889634)}\ns_mov_b32 s71, s70")))
Y = [f"s_setprio {OPT['yprio']}"]
if NB:
    Y += ipoll(0)
    for n in range(NB): Y += w2late(30-NL+n)
    Y += ["WAIT p0|", f"v_cmp_ne_u32 vcc, {TAG}, v4\ns_cbranch_vccnz L_YR0\nL_YB0:", "STAMP 2"]
for kd in range(YD): Y += hload(kd)
for kd in range(22):
    wf = 96+8*kd if kd < 12 else 80+8*(kd & 1)
    hb = 16 + 8*(kd % 8)
    need = [f"h{kd}"]
    chk = 0 if not STG else (1 if kd+YD == 7 else (2 if kd == OPT['c2'] else 0))
    if chk: need.append(f"p{chk}")
    if kd+1 >= 22-NL and kd+1 < 22: need.append(f"w{kd+1}")
    Y.append("WAIT " + ",".join(need) + ("|L" if kd >= 12 else "|"))
    if chk:
        Y.append(f"v_cmp_ne_u32 vcc, {TAG}, v4\ns_cbranch_vccnz L_YR{chk}\nL_YB{chk}:")
        if chk == 2: Y.append(sgo(5, 4))
    ms = [mfma(192+32*r+16*c, wf+4*c, hb+4*r, 0 if kd == 0 else None) for r in range(2) for c in range(2)]
    fill = []
    if STG and kd == OPT["p1"]: fill += ipoll(1)
    if STG and kd == OPT["p2"]: fill += ipoll(2)
    if kd+YD < 22: fill += hload(kd+YD)
    if 1 <= kd <= NL-NB: fill += w2late(30-NL+NB+kd-1)
    if 12 <= kd+1 < 22: fill += w2read(80+8*((kd+1) & 1), *res_loc(kd+1), AB)
    if kd in (11, 12, 13): fill = fill + PRE[(kd-11)*37:(kd-10)*37] if kd < 13 else fill + PRE[74:]
    Y += interleave(ms, fill, 3 if len(fill) <= 12 else 6)
    if kd+1 == OPT["ydrop"]: Y.append(f"s_setprio {OPT['ypost']}")
    if kd == 0: Y.append("STAMP 3")
    if kd == 10: Y.append("STAMP 4")
assert not STG or (OPT["p1"] < 7-YD <= OPT["p2"] < OPT["c2"] <= 14-YD)
vm = []
for t in Y:
    if t.startswith("VM "):
        nm, ins = t[3:].split("|"); vm.append(nm); A(ins)
    elif t.startswith("WAIT "):
        nms, lg = t[5:].split("|")
        A(f"s_waitcnt vmcnt({len(vm)-1-max(vm.index(x) for x in nms.split(','))})" + (" lgkmcnt(0)" if lg else ""))
    elif t.startswith("STAMP "): stamp((int(t[6:]), 4))
    else: A(t)
stamp((6, 1), (3, 3), (5, 4))
def final(isy):
    if isy:
        wrpart(96, True)
        A("""v_mov_b32 v4, v108
s_mov_b64 exec, 1
s_waitcnt lgkmcnt(0)
ds_add_u32 v110, v111
s_mov_b64 exec, -1""")
        spin_lds(110, 6, 4)
        rd4(16, 103); A("s_waitcnt lgkmcnt(4)"); rd4(48, 102)
        for d, w_ in ((16, 8), (48, 2)):
            A(f"s_waitcnt lgkmcnt({w_})")
            if OPT["ypk"]:
                sum4(d)
                for j in range(4): A(f"v_pk_mul_f32 {v(d+8+2*j,2)}, {v(d+2*j,2)}, s[70:71]")
            else:
                for j in range(8): A(f"v_add_f32 v{d+j}, v{d+j}, v{d+8+j}\nv_add_f32 v{d+16+j}, v{d+16+j}, v{d+24+j}")
                for j in range(8): A(f"v_add_f32 v{d+j}, v{d+j}, v{d+16+j}")
                for j in range(8): A(f"v_mul_f32 v{d+8+j}, s70, v{d+j}")
            for j in range(8): A(f"v_exp_f32 v{d+8+j}, v{d+8+j}")
            for j in range(8): A(f"v_add_f32 v{d+8+j}, 1.0, v{d+8+j}")
            for j in range(8): A(f"v_rcp_f32 v{d+8+j}, v{d+8+j}")
            for j in range(8): A(f"v_mul_f32 v{(d if d == 16 else 88)+j}, v{d+j}, v{d+8+j}")
            if d == 16:
                A("ds_write_b128 v109, v[16:19]\nds_write_b128 v109, v[20:23] offset:1024")
    else:
        wrpart(80, False)
    A("s_waitcnt lgkmcnt(0)")
final(True)
A("s_branch L_FINAL")
if STG:
    for c in ((0, 1, 2) if NB else (1, 2)):
        A(f"L_YR{c}:"); note(str(10+c), 4); spin_flag(5, 4, 16 if c <= 1 else 24, c, 1); A(f"s_branch L_YB{c}")
A("L_COMPUTE:")
srd(WS, 32, 0x800000); srd(H, 32, 118*65536, WS_H); srd(OUT, 30, 2097152)
ACC = 112
for r in range(ACC, 256): A(f"v_mov_b32 v{r}, 0")
A(f"""v_lshlrev_b32 v16, 2, v0
v_add_u32 v16, {LF}, v16
v_mov_b32 v17, 0
s_mov_b64 exec, 0xffff
ds_write_b32 v16, v17
s_mov_b64 exec, -1
s_lshr_b32 s13, s4, 1
s_and_b32 s14, s4, 1
s_movk_i32 s11, 0x1ff
s_lshl_b32 s86, s13, 4
s_add_u32 s86, s86, s6
s_cmp_eq_u32 s86, 10
s_cselect_b32 s11, 0x1c0, s11
s_mul_i32 s86, s14, 0x1b6
s_cmp_eq_u32 s7, 14
s_cselect_b32 s86, s86, 0x1ff
s_and_b32 s11, s11, s86
s_cmp_eq_u32 s12, 1
s_cselect_b32 s11, 0, s11
s_mul_i32 s76, s4, {Q}
s_lshr_b32 s86, s9, 4
s_mul_i32 s87, s14, 3
s_add_u32 s86, s86, s87
s_lshl_b32 s87, s7, 1
s_add_u32 s87, s87, s14
s_lshl1_add_u32 s87, s87, 26
s_and_b32 s88, s11, 0xdb
s_cmp_ge_u32 s7, 15
s_cselect_b32 s86, s87, s86
s_cselect_b32 s11, s88, s11
s_lshl_b32 s86, s86, 6
s_lshr_b32 s87, s8, 5
s_add_u32 s86, s86, s87
s_mul_i32 s87, s13, 3
s_add_u32 s86, s86, s87
s_lshl_b32 s86, s86, 10
v_lshl_add_u32 v1, v0, 4, s86
s_mov_b32 s80, 0
s_mov_b32 s81, 65536
s_mov_b32 s82, 131072
v_and_b32 v16, 15, v0
v_lshrrev_b32 v17, 4, v0
v_bfe_u32 v18, v0, 1, 3
v_xor_b32 v18, v18, v17
s_mul_i32 s86, s13, {96*128}
v_lshl_add_u32 v16, v16, 7, s86
v_lshl_add_u32 v2, v18, 4, v16
v_xor_b32 v3, 64, v2""")
wfrag_addr(4, "s14", 16, "L_CA")
A(f"""s_mul_i32 s86, s6, 23
s_add_u32 s86, s86, s7
s_cmp_eq_u32 s12, 1
s_cselect_b32 s86, 255, s86
s_lshl_b32 s86, s86, 2
s_add_u32 s86, s86, s4
s_lshl_b32 s86, s86, 10
s_add_u32 s15, s86, {WS_FLAG}""")
stamp((2, 2))
A("s_waitcnt vmcnt(0)")
stamp((5, 2))
for j in range(8):
    A(f"v_lshlrev_b32 v{16+2*j}, 16, v{8+j}\nv_and_b32 v{17+2*j}, 0xffff0000, v{8+j}")
def red32(r, t):
    for sh_ in (8, 4, 2, 1):
        A(f"v_add_f32_dpp v{r}, v{r}, v{r} row_ror:{sh_} row_mask:0xf bank_mask:0xf")
    A(f"v_mov_b32 v{t}, v{r}\nv_permlane16_swap_b32 v{r}, v{t}\nv_add_f32 v{r}, v{r}, v{t}")
for j in range(4): A(f"v_pk_add_f32 {v(8+2*j,2)}, {v(16+2*j,2)}, {v(24+2*j,2)}")
A("v_pk_add_f32 v[8:9], v[8:9], v[12:13]\nv_pk_add_f32 v[10:11], v[10:11], v[14:15]\nv_pk_add_f32 v[8:9], v[8:9], v[10:11]\nv_add_f32 v8, v8, v9")
red32(8, 9)
A(f"v_mul_f32 v8, {hx(-1/512)}, v8")
for j in range(8): A(f"v_pk_add_f32 {v(16+2*j,2)}, {v(16+2*j,2)}, v[8:9] op_sel_hi:[1,0]")
A("v_pk_mul_f32 v[10:11], v[16:17], v[16:17]\nv_pk_mul_f32 v[12:13], v[18:19], v[18:19]")
for j in range(2, 8): A(f"v_pk_fma_f32 {v(10+2*(j&1),2)}, {v(16+2*j,2)}, {v(16+2*j,2)}, {v(10+2*(j&1),2)}")
A("v_pk_add_f32 v[10:11], v[10:11], v[12:13]\nv_add_f32 v10, v10, v11")
red32(10, 9)
A(f"""v_mul_f32 v10, {hx(1/512)}, v10
v_cvt_pk_bf16_f32 v10, v10, v10
v_and_b32 v10, 0xffff0000, v10
v_add_f32 v10, {hx(1e-5)}, v10
v_cvt_pk_bf16_f32 v10, v10, v10
v_and_b32 v10, 0xffff0000, v10
v_sqrt_f32 v10, v10
v_cvt_pk_bf16_f32 v32, v8, v8
v_cvt_pk_bf16_f32 v10, v10, v10
v_and_b32 v10, 0xffff0000, v10
v_and_b32 v32, 0xffff0000, v32
v_rcp_f32 v33, v10
v_mul_f32 v34, v10, v10
v_lshlrev_b32 v7, 4, v7
v_add_u32 v7, {WS_RS}, v7
s_waitcnt lgkmcnt(0)
s_add_u32 {TAG}, {TAG}, 0x9E3779B9
v_mov_b32 v35, {TAG}
v_mov_b32 v36, {TAG}
v_mov_b32 v37, {TAG}
v_mov_b32 v38, {TAG}
v_mov_b32 v39, {TAG}
v_lshlrev_b32 v6, 4, v0
s_mov_b32 s78, 0
s_mov_b32 s79, {SLOT}
s_mov_b32 s83, 0""")
stamp((1, 1), (3, 2))
A(f"""s_barrier
s_mov_b32 exec_lo, 1
s_mov_b32 exec_hi, 1
buffer_store_dwordx4 v[32:35], v7, {WS}, 0 offen sc1
s_mov_b64 exec, -1""")
if OPT["prew"]:
    for kind in ((0, 1, 2) if OPT["stage"] else (0, 2)):
        sk = L("PW")
        if kind == 0 and not OPT["stage"]: A(f"s_cmp_lt_u32 s7, 15\ns_cbranch_scc1 {sk}")
        A(f"s_add_u32 s86, s15, {kind << 20}\nbuffer_store_dwordx4 v[28:31], v6, {WS}, s86 offen sc1")
        A.label(sk)
stamp((2, 1), (4, 2))
A("s_cmp_ge_u32 s7, 15\ns_cbranch_scc1 L_QKV")

XB = lambda buf, a: (40 if buf == 0 else 8) + 4*a
WF = lambda buf, j: 64 + 24*buf + 4*j
acc = lambda a, j: ACC + 4*(6*a+j)
CB = 40
def reads(role, s_):
    w_ = []
    for j in range(6):
        for sec in range(2):
            par, off = woff(role, s_, j, sec)
            w_.append(f"ds_read_b64_tr_b16 {v(WF(s_,j)+2*sec,2)}, v{4+par} offset:{off}")
    o = []
    for a in range(6): o += [f"ds_read_b128 {v(XB(s_,a),4)}, v{2+s_} offset:{2048*a}"] + w_[2*a:2*a+2]
    return o
def mm(role, wb, a, j, xb=1):
    return mf16(acc(a,j), WF(wb,j), XB(xb,a)) if (role == 'G' or j < 2) else mf16(acc(a,j), XB(xb,a), WF(wb,j))
def grp(role, buf, a): return [mm(role, buf, a, j, buf) for j in range(6)]
def spread(ms, fill, num, den):
    o = []; f = list(fill); nr = 0
    for i, m in enumerate(ms):
        o.append(m)
        k = ((i+1)*num)//den - (i*num)//den
        for _ in range(k):
            if f:
                x = f.pop(0)
                if x.startswith("ds_read"):
                    nr += 1
                    if nr == 13: o.append("s_waitcnt lgkmcnt(6)")
                o.append(x)
    assert not f
    return o
def mainloop(role, lastord, tailfill):
    lp, ex = f"L_ML{role}", f"L_MX{role}"
    BP = OPT["bpos"]
    allm = lambda buf: [m for a in range(6) for m in grp(role, buf, a)]
    def ordm(buf):
        o = OPT["mord"]
        if o == 0: idx = [(a, j) for a in range(6) for j in range(6)]
        elif o == 1: idx = [(a, j) for j in range(6) for a in range(6)]
        elif o == 2: idx = [(a, (j if a % 2 == 0 else 5-j)) for a in range(6) for j in range(6)]
        elif o == 3: idx = [((a if j % 2 == 0 else 5-a), j) for j in range(6) for a in range(6)]
        elif o == 4: idx = [(i, (i+d) % 6) for d in range(6) for i in range(6)]
        return [mm(role, buf, a, j, buf) for a, j in idx]
    r0 = reads(role, 0); E(r0[:12]); A("s_waitcnt lgkmcnt(6)"); E(r0[12:])
    A.label(lp)
    A("s_waitcnt lgkmcnt(0)")
    sal = f"""s_add_u32 s78, s78, 1
s_cmp_eq_u32 s78, 3
s_cselect_b32 s86, {-2*SLOT & 0xffffffff}, s79
s_cselect_b32 s78, 0, s78
s_add_u32 s83, s83, 1
s_cmp_eq_u32 s83, 8""".split("\n") + [f"v_add_u32 v{r}, s86, v{r}" for r in (2, 4, 5, 3)]
    E(spread(ordm(0), reads(role, 1) + sal, OPT["rgap"]+2, OPT["rgap"]+3))
    A("s_waitcnt lgkmcnt(0)")
    E(allm(1)[:BP])
    A(f"s_barrier\ns_cbranch_scc1 {ex}")
    assert BP == 0
    E(spread(ordm(1), reads(role, 0), OPT["rgap"], 4))
    A(f"s_branch {lp}")
    A.label(ex)
    pre = ["s_waitcnt vmcnt(0)", f"v_and_b32 v2, 15, v0",
           f"s_mul_i32 s86, s13, {96*16}", f"s_add_u32 s86, s86, {RS}",
           f"v_lshl_add_u32 v3, v2, 4, s86", "v_lshrrev_b32 v5, 4, v0",
           f"s_mul_i32 s86, s14, 384", f"s_add_u32 s86, s86, {CF}",
           f"v_lshl_add_u32 v4, v5, 4, s86", f"v_lshl_add_u32 v2, v2, 2, s86"]
    rd = [f"ds_read_b128 {v(CB+4*a,4)}, v3 offset:{256*a}" for a in range(6)]
    if role == 'G': rd += [f"ds_read_b128 {v(WF(0,j),4)}, v4 offset:{64*j}" for j in range(6)]
    else:
        rd += [f"ds_read_b128 {v(WF(0,j),4)}, v4 offset:{64*j}" for j in range(2)]
        rd += [f"ds_read_b32 v{72+j}, v2 offset:{128+64*j}" for j in range(4)]
        rd += [f"s_mul_i32 s86, s13, {96*4}", f"s_add_u32 s86, s86, {RR}", "v_lshl_add_u32 v5, v5, 4, s86"]
    last = [mm(role, 1, a, j, 1) for a, j in lastord]
    E(interleave(last[:18], pre + rd, 2))
    A("s_waitcnt lgkmcnt(0)")
    E(interleave(last[18:], tailfill, 2))

def flagstore(kind):
    m = (1 << (8*OPT["nrep"])) - 1
    A(f"s_add_u32 s86, s15, {kind << 20}\ns_mov_b64 exec, {hex(m) if m < (1<<32) else -1}\nbuffer_store_dwordx4 v[36:39], v6, {WS}, s86 offen sc1\ns_mov_b64 exec, -1")
def gsig(pos):
    if OPT["gate"] and OPT["gpos"] == pos:
        A(f"v_mov_b32 v2, {LF+32}\nv_mov_b32 v3, 1\ns_mov_b64 exec, 1\nds_add_u32 v2, v3\ns_mov_b64 exec, -1")
def publish(staged):
    if staged:
        A("s_cmp_eq_u32 s11, 0x1ff\ns_cbranch_scc1 L_PFULL\ns_waitcnt vmcnt(0)"); flagstore(0); A("L_PFULL:")
        A("s_waitcnt vmcnt(3)"); flagstore(1); gsig(1)
        A("s_waitcnt vmcnt(1)"); flagstore(2); gsig(2)
    else:
        A("s_waitcnt vmcnt(0)"); flagstore(2)
    if OPT["ydelay"] >= 0:
        A(f"s_lshl_b32 s86, s4, 2\ns_add_u32 s86, s86, {LF+16}\nv_mov_b32 v2, s86\nv_mov_b32 v3, 1\nds_write_b32 v2, v3")
C1 = -2.0*0.7978845608028654*1.4426950408889634
cst = []
for a in range(6):
    b = CB+4*a
    cst += [f"v_mul_f32 v{b+3}, {hx(C1)}, v{b+1}", f"v_mul_f32 v{b+1}, v{b+1}, v{b+1}",
            f"v_mul_f32 v{b+1}, {hx(0.044715)}, v{b+1}", f"v_mul_f32 v{b+1}, v{b+1}, v{b+3}"]
mainloop('G', [(a, j) for j in (0, 3, 1, 4, 2, 5) for a in range(6)], cst)
A("s_nop 3")
stamp((3, 1), (1, 3))
n = 0
for u in range(3):
    for a in range(3):
        sk = L("GS")
        A(f"s_bitcmp1_b32 s11, {3*a+u}\ns_cbranch_scc0 {sk}")
        T = 88 + 8*(n & 1); P = 104 + 4*(n & 1); n += 1
        gp = [acc(2*a + j//2, u) + 2*(j & 1) for j in range(4)]
        up = [acc(2*a + j//2, u+3) + 2*(j & 1) for j in range(4)]
        cb = [CB+4*(2*a + j//2) for j in range(4)]
        for j in range(4): A(f"v_pk_fma_f32 {v(gp[j],2)}, {v(WF(0,u)+2*(j&1),2)}, {v(cb[j],2)}, {v(gp[j],2)} op_sel_hi:[1,0,1]")
        for j in range(4): A(f"v_pk_fma_f32 {v(up[j],2)}, {v(WF(0,u+3)+2*(j&1),2)}, {v(cb[j],2)}, {v(up[j],2)} op_sel_hi:[1,0,1]")
        for j in range(4): A(f"v_pk_mul_f32 {v(T+2*j,2)}, {v(gp[j],2)}, {v(gp[j],2)}")
        for j in range(4): A(f"v_pk_fma_f32 {v(T+2*j,2)}, {v(T+2*j,2)}, {v(cb[j],2)}, {v(cb[j]+2,2)} op_sel:[0,1,1] op_sel_hi:[1,1,1]")
        for j in range(4): A(f"v_pk_mul_f32 {v(T+2*j,2)}, {v(T+2*j,2)}, {v(gp[j],2)}")
        for j in range(8): A(f"v_exp_f32 v{T+j}, v{T+j}")
        for j in range(4): A(f"v_pk_mul_f32 {v(gp[j],2)}, {v(gp[j],2)}, {v(up[j],2)}")
        for j in range(4): A(f"v_pk_fma_f32 {v(T+2*j,2)}, {v(T+2*j,2)}, {v(cb[j]+2,2)}, {v(cb[j]+2,2)} op_sel_hi:[1,0,0]")
        for j in range(8): A(f"v_rcp_f32 v{T+j}, v{T+j}")
        for j in range(4): A(f"v_pk_mul_f32 {v(T+2*j,2)}, {v(T+2*j,2)}, {v(gp[j],2)}")
        for j in (0, 2, 1, 3): A(f"v_cvt_pk_bf16_f32 v{P+j}, v{T+2*j}, v{T+2*j+1}")
        A(f"v_permlane16_swap_b32 v{P}, v{P+2}\nv_permlane16_swap_b32 v{P+1}, v{P+3}")
        A(f"buffer_store_dwordx4 {v(P,4)}, v1, {H}, s{80+u} offen offset:{1024*a} sc1")
        A.label(sk)
        if u == 2 and a < 2: gsig(3+a)
    if u == 0: stamp((2, 3))
    if u == 1 and STG:
        A("s_cmp_eq_u32 s11, 0x1ff\ns_cbranch_scc0 L_NOF0\ns_waitcnt vmcnt(3)"); flagstore(0); A("L_NOF0:"); gsig(0)
stamp((4, 1), (4, 3))
publish(STG)
A("s_branch L_SPART")

A("L_QKV:")
RV, MV, ONE, G = 88, 8, 32, 8
cst = f"""s_mov_b32 s70, {hx(1.4426950408889634)}
s_mov_b32 s71, {hx(1.4426950408889634)}
s_mov_b32 s72, {hx(1e-6)}
s_mov_b32 s73, {hx(1e-6)}
v_and_b32 v3, 16, v0
v_cmp_ne_u32 s[74:75], 0, v3
s_sub_u32 s87, s7, 15
s_lshl_b32 s87, s87, 1
s_add_u32 s87, s87, s14
s_mul_i32 s77, s87, {24*3072}
s_add_u32 s77, s77, {WS_KV}
s_lshl_b32 s86, s6, 1
s_add_u32 s86, s86, s13
s_mul_i32 s86, s86, 3072
s_add_u32 s86, s86, s77
v_lshl_add_u32 v7, v0, 4, s86""".split("\n") + [f"v_mov_b32 v{ONE+j}, 0x3f803f80" for j in range(4)]
lo = [(a, j) for j in (5, 4) for a in range(6)] + [(a, j) for a in (5, 4, 3, 2, 1, 0) for j in (3, 2, 1, 0)]
cst = cst[:6] + [f"ds_read_b128 {v(RV+4*a,4)}, v5 offset:{64*a}" for a in (4, 5)] + [f"ds_read_b128 {v(MV+4*a,4)}, v5 offset:{MR-RR+64*a}" for a in (4, 5)] + cst[6:]
mainloop('Q', lo, cst)
for a in (3, 2, 1, 0): A(f"ds_read_b128 {v(RV+4*a,4)}, v5 offset:{64*a}\nds_read_b128 {v(MV+4*a,4)}, v5 offset:{MR-RR+64*a}")
A("s_waitcnt lgkmcnt(8)")
stamp((3, 1))
def phi2(pairs, T, dst):
    for j in range(8): A(f"v_pk_mul_f32 {v(T[j],2)}, {v(pairs[j],2)}, s[70:71]")
    for j in range(16):
        r = pairs[j//2] + (j & 1); t_ = T[j//2] + (j & 1)
        A(f"v_exp_f32 v{t_}, v{t_} clamp\nv_max_f32 v{r}, s72, v{r}")
    for j in range(8): A(f"v_pk_add_f32 {v(T[j],2)}, {v(T[j],2)}, {v(pairs[j],2)}")
    for j in range(8): A(f"v_cvt_pk_bf16_f32 v{dst[j]}, v{T[j]}, v{T[j]+1}")
prs = lambda a, j0: [acc(2*a + (j % 4)//2, j0 + j//4) + 2*(j & 1) for j in range(8)]
KVa, KVb, Za, Zb = acc(5,2), acc(5,3), acc(5,4), acc(5,5)
for a in (2, 1, 0):
    if a == 1: A("s_bitcmp1_b32 s11, 0\ns_cbranch_scc0 L_KVS\ns_waitcnt lgkmcnt(0)")
    off = lambda j: 4*(2*a + (j % 4)//2) + 2*(j & 1)
    pv = prs(a, 4); pk = prs(a, 2)
    PV = acc(2*a, 4); PK = acc(2*a, 2)
    TL = [acc(2*a+1, 4) + 2*j for j in range(4)] + [80 + 2*j for j in range(4)]
    for j in range(8): A(f"v_pk_mul_f32 {v(pv[j],2)}, {v(pv[j],2)}, {v(RV+off(j),2)}")
    for j in range(8): A(f"v_pk_fma_f32 {v(pk[j],2)}, {v(pk[j],2)}, {v(RV+off(j),2)}, s[72:73]")
    for j in range(8): A(f"v_pk_fma_f32 {v(pv[j],2)}, {v(MV+off(j),2)}, v[74:75], {v(pv[j],2)} op_sel:[0,{j//4},0] op_sel_hi:[1,{j//4},1]")
    for j in range(8): A(f"v_pk_fma_f32 {v(pk[j],2)}, {v(MV+off(j),2)}, v[72:73], {v(pk[j],2)} op_sel:[0,{j//4},0] op_sel_hi:[1,{j//4},1]")
    for j in range(8): A(f"v_cvt_pk_bf16_f32 v{PV+j}, v{pv[j]}, v{pv[j]+1}")
    phi2(pk, TL, [PK+j for j in range(8)])
    c0 = 0 if a == 2 else None
    A(mf16(KVa, PK, PV, c0)); A(mf16(KVb, PK+4, PV+4, c0)); A(mf16(Za, ONE, PK, c0)); A(mf16(Zb, ONE, PK+4, c0))
    if a: A("s_nop 3")
A("L_KVS:\ns_waitcnt lgkmcnt(0)")
for j in (3, 7, 11): A(f"v_mov_b32 v{G+j}, {TAG}")
A("s_nop 4")
for j in range(4): A(f"v_permlane16_swap_b32 v{KVa+j}, v{KVb+j}")
for j in range(8): A(f"v_mov_b32 v{G+4*(j//3)+j%3}, v{KVa+j}")
A(f"v_cndmask_b32 v{G+10}, v{Za}, v{Zb}, s[74:75]")
for g_ in range(3): A(f"buffer_store_dwordx4 {v(G+4*g_,4)}, v7, {WS}, 0 offen offset:{1024*g_} sc1")
if OPT["hints"]: flagstore(0)
stamp((4, 1), (1, 3))
for a in (2, 1, 0):
    if a == 1: A("s_bitcmp1_b32 s11, 0\ns_cbranch_scc0 L_PQS")
    D_ = 88 + 8*a
    pq_ = prs(a, 0); cbq = lambda j: v(CB+4*(2*a + (j % 4)//2), 2)
    for j in range(8): A(f"v_pk_fma_f32 {v(pq_[j],2)}, {v(WF(0,j//4)+2*(j&1),2)}, {cbq(j)}, {v(pq_[j],2)} op_sel_hi:[1,0,1]")
    for j in range(8): A(f"v_pk_fma_f32 {v(pq_[j],2)}, {v(pq_[j],2)}, {cbq(j)}, s[72:73] op_sel:[0,1,0] op_sel_hi:[1,1,1]")
    phi2(pq_, [72+2*j for j in range(8)], [D_+j for j in range(8)])
    for hd in range(2):
        A(f"v_permlane16_swap_b32 v{D_+4*hd}, v{D_+4*hd+2}\nv_permlane16_swap_b32 v{D_+4*hd+1}, v{D_+4*hd+3}")
    A(f"buffer_store_dwordx4 {v(D_,4)}, v1, {H}, 0 offen offset:{1024*a} sc1")
    A(f"buffer_store_dwordx4 {v(D_+4,4)}, v1, {H}, s81 offen offset:{1024*a} sc1")
A("L_PQS:")
stamp((2, 3))
gsig(0); gsig(1); gsig(2); gsig(3); gsig(4)
if not OPT["redearly"]: publish(False)
if not OPT["lred"]:
    A("s_and_b32 s86, s6, 9\ns_add_u32 s86, s86, 2\ns_cmp_eq_u32 s86, s4\ns_cbranch_scc0 " + ("L_QPUB" if OPT["redearly"] else "L_SPART"))
    reducer(lambda p: 128+12*p, 7, 9, 8, "s[74:75]", 70, "s77")
    if OPT["redearly"]:
        A("s_branch L_SPART\nL_QPUB:"); publish(False)

A("L_SPART:")
if OPT["sprio"] != OPT["prio"]: A(f"s_setprio {OPT['sprio']}")
stamp((5, 1), (3, 3))
xres_addr(1, 8); xres_load()
w2addr(4, 8, False)
A(f"""s_lshl_b32 s86, s4, 3
s_add_u32 s86, s86, 86
s_lshl_b32 s86, s86, 16
s_lshl_b32 s87, s84, 11
s_add_u32 s86, s86, s87
v_lshl_add_u32 v2, v0, 4, s86
s_mul_i32 s88, s84, 43
s_lshr_b32 s88, s88, 7
s_mul_i32 s88, s88, 23
s_lshl_b32 s87, s4, 1
s_add_u32 s88, s88, s87
s_add_u32 s88, s88, 15
s_lshl_b32 s88, s88, 12
s_add_u32 s88, s88, {WS_FLAG}
v_and_b32 v3, 7, v0
v_lshl_add_u32 v3, v3, 10, s88
s_lshl_b32 s74, s4, 13
s_add_u32 s74, s74, {WS_F}
v_lshl_add_u32 v8, v0, 4, s74
s_lshl_b32 s86, s4, 2
s_add_u32 s86, s86, {LF}
v_mov_b32 v10, s86
s_mov_b32 s72, {hx(1e-6)}
s_movk_i32 s73, 4096
s_mov_b32 s89, 0""")
if OPT["warm"]:
    assert OPT["sd"] == 8
    A("s_mov_b32 s75, 1\ns_mov_b64 exec, 0\ns_branch L_PIPE\nL_WBACK:\ns_mov_b32 s75, 0\ns_mov_b64 exec, -1")
stamp((1, 4))
if OPT['sdelay']: A(f"s_sleep {OPT['sdelay']}")
if OPT["comb"]:
    A("v_add_u32 v3, 48, v10"); spin_lds(3, 9)
else: spin_flag(3, 9, 8, 2)
note("s88", 4)
stamp((6, 1), (2, 4))
SD = OPT["sd"]
def pqload(k):
    return [f"s_mov_b32 s86, {k*65536}",
            f"buffer_load_dwordx4 {v(16+8*k,4)}, v2, {H}, s86 offen sc1",
            f"buffer_load_dwordx4 {v(20+8*k,4)}, v2, {H}, s86 offen offset:1024 sc1"]
def floads():
    for k in range(8):
        A(f"buffer_load_dwordx4 {v(80+4*k,4)}, v8, {WS}, " + ("0" if k < 4 else "s73") + f" offen offset:{1024*(k%4)} sc1")
if OPT["ffirst"]: floads()
for k in range(SD):
    if OPT["sdep"]: A(f"s_waitcnt vmcnt({OPT['sdep']-2})")
    E(pqload(k))
if OPT["ffirst"]: A(f"s_waitcnt vmcnt({2*SD})\ns_branch L_FC")
if OPT["hints"]:
    A(f"s_lshl_b32 s86, s4, 14\ns_add_u32 s86, s86, {WS_FF}\nv_lshl_add_u32 v9, v0, 10, s86")
    spin_flag(9, 11, 16)
else: A(f"s_waitcnt vmcnt({OPT['fafter']})")
A("s_branch L_FL\nL_FQ:\ns_sleep 8\nL_FL:")
floads()
A("s_waitcnt vmcnt(0)\nL_FC:\ns_add_u32 s89, s89, 1")
E(vmax(112, [80+4*k for k in range(8)]))
A(f"""v_cmp_eq_u32 vcc, -1, v112
s_cmp_gt_u32 s89, {OPT['spin']}
s_cbranch_scc1 L_FPD
s_cbranch_vccnz L_FQ
L_FPD:""")
note("s89", 4); note("s89", 1)
spin_lds(10, 9)
stamp((6, 3), (3, 4))
woloc = lambda k: (1, k) if k < 6 else (2, k-2)
def Om(k): return [mfma(128+32*(k&1)+16*r, 80+4*k, 16+8*k+4*r, 0) for r in range(2)]
def Vv(k):
    o = []
    D = [128+32*(k&1)+16*r for r in range(2)]
    nd = [((d, d+8) if k % 2 == 0 else (d+8, d)) for d in D]
    for num, den in nd: o.append(f"v_add_f32 v{den}, s72, v{den}")
    for num, den in nd: o.append(f"v_rcp_f32 v{den}, v{den}")
    for r, (num, den) in enumerate(nd):
        if OPT["spk"]:
            for j in range(4): o.append(f"v_pk_mul_f32 {v(num+2*j,2)}, {v(num+2*j,2)}, {v(den,2)} op_sel_hi:[1,0]")
        else:
            for j in range(8): o.append(f"v_mul_f32 v{num+j}, v{num+j}, v{den}")
        for j in range(4): o.append(f"v_cvt_pk_bf16_f32 v{16+8*k+4*r+j}, v{num+2*j}, v{num+2*j+1}")
    return o
def Sm(k): return [mfmaH(192+32*r+16*c, 112+8*(k&1)+4*c, 16+8*k+4*r, 0 if k <= OPT['h16'] else None, k & 1) for r in range(2) for c in range(2)]
issued = [SD]
def need(k):
    o = [f"s_waitcnt vmcnt({2*(issued[0]-1-k)})"]
    more = []
    if issued[0] < 8: more = pqload(issued[0]); issued[0] += 1
    return o, more
A('L_PIPE:')
E(w2read(112, *woloc(0), 4, False))
for k in (0, 1):
    w_, m_ = need(k); E(w_ + Om(k) + m_)
E(Vv(0))
for k in range(8):
    A("s_waitcnt lgkmcnt(0)")
    fill = (w2read(112+8*((k+1)&1), *woloc(k+1), 4, False) + Vv(k+1)) if k+1 < 8 else []
    if k == 7:
        fill = cap(lambda: (wraddr(80, False), rdaddr(4, False, 1, 88), A(f"s_lshl_b32 s86, s4, 11\ns_add_u32 s86, s86, {GB}\nv_lshl_add_u32 v9, v0, 4, s86"),
            [A(f"v_lshlrev_b32 v{112+2*j}, 16, v{12+j}\nv_and_b32 v{113+2*j}, 0xffff0000, v{12+j}") for j in range(4)]))
    NF = 16 if OPT['spk'] else 20
    if k == 7: NF = 28
    E(interleave(Sm(k), fill[:NF], NF//4))
    if k+2 < 8:
        w_, m_ = need(k+2); E(w_); E(interleave(Om(k+2), fill[NF:] + m_, 6))
    else: E(fill[NF:])
    if k == 3: stamp((4, 4))
if OPT["warm"] == 1: A("s_cmp_eq_u32 s75, 1\ns_cbranch_scc1 L_WBACK")
stamp((7, 1), (5, 4))
final(False)
stamp((6, 4))
A("s_barrier\nds_read_b128 v[88:91], v9\nds_read_b128 v[92:95], v9 offset:1024\ns_branch L_FIN2")

A("L_FINAL:")
stamp((6, 4))
A("s_barrier")
A("L_FIN2:")
stamp((7, 3), (7, 4))
rd4(48, 4)
A("s_waitcnt lgkmcnt(0)")
sum4(48)
for j in range(4): A(f"v_pk_fma_f32 {v(48+2*j,2)}, {v(48+2*j,2)}, {v(88+2*j,2)}, {v(112+2*j,2)}")
for j in range(4): A(f"v_cvt_pk_bf16_f32 v{24+j}, v{48+2*j}, v{49+2*j}")
if OPT["warm"] == 2: A("s_cbranch_execz L_WBACK")
A(f"""buffer_store_dwordx4 v[24:27], v1, {OUT}, 0 offen {['', 'sc1', 'nt', 'sc0 sc1'][OPT['osc']]}
s_add_u32 s86, s2, s3
s_cmp_eq_u32 s86, 0
s_cbranch_scc0 L_NOBUMP
v_mov_b32 v2, 0
v_mov_b32 v3, {TAG}
buffer_store_dword v3, v2, {WS}, 0 offen sc1
L_NOBUMP:""")
if OPT["stamps"]:
    A("s_waitcnt vmcnt(0)")
    stamp((8, 0))
    A(f"""s_memrealtime s[68:69]
s_waitcnt lgkmcnt(0)
s_mov_b32 s101, s68""")
    if OPT["diag"]:
        A(f"""s_cmp_lg_u32 s2, 64
s_cbranch_scc1 L_END
s_cmp_lg_u32 s3, {OPT['dwave']}
s_cbranch_scc1 L_END
s_sub_u32 s86, s{92+OPT['diag']}, s34
s_lshl_b32 s86, s86, 2
s_min_u32 s86, s86, 20000
L_DSPIN:
s_memrealtime s[68:69]
s_waitcnt lgkmcnt(0)
s_sub_u32 s87, s68, s101
s_cmp_lt_u32 s87, s86
s_cbranch_scc1 L_DSPIN
s_endpgm""")
    A(f"""s_lshl_b32 s86, s2, 3
s_add_u32 s86, s86, s3
s_lshl_b32 s86, s86, 6
s_add_u32 s86, s86, {WS_DBG}
v_mov_b32 v2, s86""")
    for i in range(10): A(f"v_mov_b32 v3, s{92+i}\nbuffer_store_dword v3, v2, {WS}, 0 offen offset:{4*i}")
    A(f"v_mov_b32 v3, s34\nbuffer_store_dword v3, v2, {WS}, 0 offen offset:40")
    A(f"v_mov_b32 v3, s35\nbuffer_store_dword v3, v2, {WS}, 0 offen offset:44")
A("L_END:\ns_endpgm")

lines, errs = pad(A.lines)
for e in errs: print("HAZARD:", e, file=sys.stderr)
hdr = open("cdna_kernels/%s.s.ref" % NAME).read().split("; Override launch")[0]
out = hdr + f"""; Fused single-launch kernel (generated by my own generator script gen/gen.py).
; @launch grid=(256,1,1) block=(512,1,1) lds={LDS}
.amdgcn_target "amdgcn-amd-amdhsa--gfx950"
.text
.globl {NAME}_kernel
.p2align 8
.type {NAME}_kernel,@function
{NAME}_kernel:
""" + render(lines) + f""".section .rodata,"a"
.p2align 6
.amdhsa_kernel {NAME}_kernel
  .amdhsa_next_free_vgpr 256
  .amdhsa_next_free_sgpr 102
  .amdhsa_accum_offset 256
  .amdhsa_group_segment_fixed_size 0
  .amdhsa_kernarg_size 80
  .amdhsa_user_sgpr_count 2
  .amdhsa_user_sgpr_kernarg_segment_ptr 1
  .amdhsa_system_sgpr_workgroup_id_x 1
.end_amdhsa_kernel
"""
open(sys.argv[1], "w").write(out)
```

```python
import sys, struct
from asmlib import *
NAME = "recurrent_scan__linear_attn_block__glu_gated_geglu__prompt"
OPT = dict(stamps=0, rot=2, prio=1, pfcode=1, spin=1<<17, thr=4, unthr=41, n7=5, n8=10, ca=14, cb=22, h=6, mix=0, sub=1,
           psleep=2, ydep=4, sdep=0, w2late=4, p2map=1, stage=1, sprio=1, ydelay=-1, sdelay=0, fdelay=0, rdelay=0, xlate=0, now2=0, sd=3, apoll=0, fgate=1, rt=1, zf=1, nr=0, r0=3, lred=0, prew=0, hints=0, comb=1, fafter=0, h16=0, gate=4, ffirst=1, warm=0, nodma=0, redearly=1, xz=1, gmix=0, qmix=0, qnop=0, bpos=0, rgap=3, spk=0, diag=0, dwave=4, nrep=2, nl=2, p1=0, p2=7, osc=0, gpos=1, c2=10, yprio=2, ydrop=22, ypost=0, mord=0, adapt=1, ypk=0, nb=0, pf2=-1, drot=0, xfirst=1, nostat=0, w1pf=-9, slow=0, dead=1)
for a in sys.argv[2:]:
    k, v_ = a.split("="); assert k in OPT, k; OPT[k] = int(v_, 0)
def f2u(x): return struct.unpack("<I", struct.pack("<f", x))[0]
def hx(x): return "0x%08x" % f2u(x)

SLOT = 49152; XW = 24576; UPOFF = 12288; MISC = 3*SLOT; LDS = 163840
RS = MISC; RR = MISC+3072; CF = MISC+3840; MR = MISC+4608; LF = MISC+5376; GB = MISC+5632
Q = 12288
WS_RS = 0x10000; WS_CS = 0x20000; WS_FLAG = 0x300000; WS_FF = 0x60000; WS_DBG = 0x80000; WS_F = 0xC0000; WS_KV = 0x100000; WS_H = 0x800000
X="s[36:39]"; W="s[40:43]"; WS="s[44:47]"; H="s[48:51]"; WD="s[56:59]"; WO="s[60:63]"; OUT="s[64:67]"
TAG="s10"
def v(b, n=1): return f"v{b}" if n == 1 else f"v[{b}:{b+n-1}]"
def mfma(d, a, b, c=None):
    return f"v_mfma_f32_32x32x16_bf16 {v(d,16)}, {v(a,4)}, {v(b,4)}, " + ("0" if c == 0 else v(d,16))
def mfmaH(d, a, b, c, alt):
    if not OPT["h16"]: return mfma(d, a, b, c)
    return mf16(d+8*alt, a, b, c) + "\n" + mf16(d+8*alt+4, a ^ 4, b, c)
def mf16(d, a, b, c=None):
    return f"v_mfma_f32_16x16x32_bf16 {v(d,4)}, {v(a,4)}, {v(b,4)}, " + ("0" if c == 0 else v(d,4))
def bc(r): return v(r & ~1, 2), r & 1
_lab = [0]
def L(p="L"):
    _lab[0] += 1; return f"{p}_{_lab[0]}"
A = Asm()
def E(lst):
    for t in lst: A(t)
def cap(fn):
    n = len(A.lines); fn(); o = [t for _, t in A.lines[n:]]; del A.lines[n:]; return o
def stamp(*pairs):
    for i, st in pairs:
        if OPT["stamps"] == st or (OPT["stamps"] and st == 0):
            A(f"{'s_memrealtime' if (OPT['rt'] and i != 8) else 's_memtime'} s[68:69]\ns_waitcnt lgkmcnt(0)\ns_mov_b32 s{92+i}, s68")
def note(reg, st):
    if OPT["stamps"] == st: A(f"s_mov_b32 s35, {reg}")
def srd(name, lo, size, add=0):
    b = int(name[2:4])
    if add: A(f"s_add_u32 s{b}, s{lo}, {add}\ns_addc_u32 s{b+1}, s{lo+1}, 0")
    else: A(f"s_mov_b32 s{b}, s{lo}\ns_mov_b32 s{b+1}, s{lo+1}")
    A(f"s_mov_b32 s{b+2}, {size}\ns_mov_b32 s{b+3}, 0x20000")
def spin_flag(vaddr, vt, nl, kind=None, first=0):
    l1, l2 = L("POLL"), L("POLLD")
    A(f"""s_mov_b32 s88, {first}
s_mov_b64 exec, {hex((1<<nl)-1)}
{l1}:
s_and_b32 s87, s88, {OPT['nrep']-1}
s_lshl_b32 s87, s87, 7""")
    if kind: A(f"s_add_u32 s87, s87, {kind << 20}")
    A(f"""buffer_load_dword {v(vt)}, {v(vaddr)}, {WS}, s87 offen sc1
s_add_u32 s88, s88, 1
s_waitcnt vmcnt(0)
v_cmp_ne_u32 vcc, {TAG}, {v(vt)}
s_cmp_gt_u32 s88, {OPT['spin']}
s_cbranch_scc1 {l2}
s_cbranch_vccz {l2}
s_sleep {OPT['psleep']}
s_branch {l1}
{l2}:
s_mov_b64 exec, -1""")
def spin_lds(vaddr, vt, need=1):
    l1, l2 = L("LP"), L("LPD")
    A(f"""s_mov_b32 s86, 0
{l1}:
ds_read_b32 {v(vt)}, {v(vaddr)}
s_add_u32 s86, s86, 1
s_waitcnt lgkmcnt(0)
v_cmp_gt_u32 vcc, {need}, {v(vt)}
s_cmp_gt_u32 s86, {OPT['spin']*8}
s_cbranch_scc1 {l2}
s_cbranch_vccz {l2}
s_sleep 1
s_branch {l1}
{l2}:""")
def vmax(dst, regs_):
    o = []; r = list(regs_)
    if len(r) == 2: return [f"v_max_u32 v{dst}, v{r[0]}, v{r[1]}"]
    o.append(f"v_max3_u32 v{dst}, v{r[0]}, v{r[1]}, v{r[2]}"); r = r[3:]
    while r:
        if len(r) >= 2: o.append(f"v_max3_u32 v{dst}, v{dst}, v{r[0]}, v{r[1]}"); r = r[2:]
        else: o.append(f"v_max_u32 v{dst}, v{dst}, v{r[0]}"); r = r[1:]
    return o
def tagcheck(dst, tmp, regs_):
    for n, r in enumerate(regs_): A(f"v_xor_b32 v{dst if n == 0 else tmp+n}, {TAG}, v{r}")
    n = 1
    while n < len(regs_):
        if n+1 < len(regs_): A(f"v_or3_b32 v{dst}, v{dst}, v{tmp+n}, v{tmp+n+1}"); n += 2
        else: A(f"v_or_b32 v{dst}, v{dst}, v{tmp+n}"); n += 1

A(f"""s_cmp_ge_u32 s2, 256
s_cbranch_scc1 L_END
s_load_dwordx16 s[16:31], s[0:1], 0
s_load_dwordx2 s[32:33], s[0:1], 72""")
if OPT["stamps"]: A("s_memrealtime s[34:35]\ns_memtime s[68:69]")
A(f"""v_lshrrev_b32 v1, 6, v0
v_and_b32 v0, 63, v0
v_readfirstlane_b32 s3, v1
s_and_b32 s5, s2, 7
s_lshr_b32 s86, s2, 3""")
if OPT["p2map"] == 0:
    A("s_lshl_b32 s84, s5, 2\ns_lshr_b32 s87, s86, 3\ns_add_u32 s84, s84, s87\ns_and_b32 s85, s86, 7")
else:
    A("""s_lshr_b32 s84, s5, 1
s_lshl_b32 s84, s84, 3
s_lshr_b32 s87, s86, 2
s_add_u32 s84, s84, s87
s_and_b32 s85, s5, 1
s_lshl_b32 s85, s85, 2
s_and_b32 s87, s86, 3
s_add_u32 s85, s85, s87""")
A(f"""s_lshl_b32 s5, s5, 5
s_add_u32 s5, s5, s86
s_and_b32 s4, s3, 3
s_mov_b32 s12, 0
s_cmp_lt_u32 s5, 138
s_cbranch_scc0 L_BOT
s_mul_i32 s7, s5, 171
s_lshr_b32 s7, s7, 10
s_mul_i32 s86, s7, 6
s_sub_u32 s6, s5, s86
s_branch L_IDS
L_BOT:
s_cmp_ge_u32 s5, 253
s_cselect_b32 s12, 1, 0
s_cselect_b32 s86, 5, 0
s_sub_u32 s86, s5, s86
s_sub_u32 s86, s86, 138
s_mul_i32 s87, s86, 205
s_lshr_b32 s87, s87, 10
s_sub_u32 s7, 22, s87
s_mul_i32 s87, s87, 5
s_sub_u32 s6, s86, s87
s_add_u32 s6, s6, 6
L_IDS:
s_mov_b32 s90, s7""")
if OPT["mix"]:
    A("""s_mul_i32 s86, s7, 43
s_lshr_b32 s86, s86, 7
s_sub_u32 s87, s7, s86
s_lshl_b32 s88, s86, 1
s_sub_u32 s88, s87, s88
s_add_u32 s86, s86, 15
s_cmp_eq_u32 s7, 22
s_cselect_b32 s7, s86, s87
s_cmp_eq_u32 s88, 2
s_cselect_b32 s7, s86, s7""")
A(f"""s_mul_i32 s8, s6, 192
s_min_u32 s8, s8, 1856
s_mul_i32 s9, s7, 96
s_min_u32 s9, s9, 1280
s_cmp_lt_u32 s3, 4
s_cbranch_scc1 L_LOADER""")
def kwait():
    A("s_waitcnt lgkmcnt(0)\ns_load_dword s10, s[32:33], 0")
    if OPT["stamps"]: A("s_mov_b32 s92, s68")
    srd(X, 16, 2097152)
if OPT["prio"]: A(f"s_setprio {OPT['prio']}")
if OPT["pfcode"]:
    A(f"""s_getpc_b64 s[88:89]
L_PC:
s_sub_u32 s88, s88, L_PC-{NAME}_kernel
s_subb_u32 s89, s89, 0
s_lshr_b32 s86, s2, 3
s_lshl_b32 s86, s86, 3
s_lshl_b32 s87, s4, 1
s_add_u32 s86, s86, s87
v_and_b32 v3, 1, v0
v_add_u32 v3, s86, v3
v_lshlrev_b32 v3, 7, v3
v_min_u32 v3, L_END-{NAME}_kernel, v3
global_load_dword v47, v3, s[88:89]""")
A(f"""s_lshl_b32 s86, s5, 3
s_lshl_b32 s87, s4, 1
s_add_u32 s86, s86, s87
v_lshrrev_b32 v7, 5, v0
v_add_u32 v7, s86, v7
v_and_b32 v2, 31, v0
v_lshlrev_b32 v2, 4, v2
v_lshl_add_u32 v2, v7, 10, v2""")
kwait()
if not OPT["nostat"]: A(f"""buffer_load_dwordx4 v[8:11], v2, {X}, 0 offen
buffer_load_dwordx4 v[12:15], v2, {X}, 0 offen offset:512""")
stamp((1, 2))
A("s_branch L_COMPUTE\nL_LOADER:")

def w2addr(base, T, nat):
    a_, b_, c_, d_ = T, T+1, T+2, T+3
    A(f"""v_and_b32 v{a_}, 3, v0
v_bfe_u32 v{b_}, v0, 2, 2
v_bfe_u32 v{c_}, v0, 4, 1
v_lshrrev_b32 v{d_}, 5, v0
v_lshl_add_u32 v{d_}, v{d_}, {3 if nat else 2}, v{b_}
v_lshlrev_b32 v{d_}, 7, v{d_}
v_lshrrev_b32 v{b_}, 1, v{b_}
v_lshl_add_u32 v{c_}, v{b_}, 2, v{c_}
v_and_b32 v{b_}, 1, v{a_}
v_lshl_add_u32 v{c_}, v{b_}, 1, v{c_}
v_lshl_add_u32 v{d_}, v{c_}, 4, v{d_}
v_lshrrev_b32 v{a_}, 1, v{a_}
v_lshl_add_u32 v{d_}, v{a_}, 3, v{d_}
v_add_u32 v{base}, s76, v{d_}
v_xor_b32 v{d_}, 64, v{d_}
v_add_u32 v{base+1}, s76, v{d_}
v_add_u32 v{base+2}, {2*SLOT}, v{base}
v_add_u32 v{base+3}, {2*SLOT}, v{base+1}""")
def w2read(dst, slot, blk, ab, nat=True):
    o = []
    for c in range(2):
        for sec in range(2):
            ar = ab + c + (2 if slot == 2 else 0)
            off = (SLOT if slot == 1 else 0) + blk*2048 + sec*(512 if nat else 1024)
            o.append(f"ds_read_b64_tr_b16 {v(dst+4*c+2*sec,2)}, v{ar} offset:{off}")
    return o
def xres_addr(half, T):
    A(f"""s_lshl_b32 s86, s4, 4
s_lshl_b32 s87, s84, 6
s_add_u32 s86, s86, s87
s_add_u32 s86, s86, {8*half}
s_lshl_b32 s86, s86, 10
s_lshl_b32 s87, s85, 7
s_add_u32 s86, s86, s87
v_lshrrev_b32 v{T}, 3, v0
v_lshlrev_b32 v{T}, 10, v{T}
v_and_b32 v{T+1}, 7, v0
v_lshl_add_u32 v{T}, v{T+1}, 4, v{T}
v_add_u32 v1, s86, v{T}""")
def xres_load(late=0):
    if OPT["xlate"] == late: A(f"buffer_load_dwordx4 v[12:15], v1, {X}, 0 offen")
def p2setup():
    srd(WS, 32, 0x800000); srd(H, 32, 118*65536, WS_H); srd(WD, 28, 1376*1024); srd(WO, 20, 512*1024); srd(OUT, 30, 2097152)
    A(f"""v_lshrrev_b32 v24, 3, v0
v_lshlrev_b32 v24, 10, v24
v_and_b32 v25, 7, v0
v_bfe_u32 v26, v0, 4, 1
v_lshlrev_b32 v26, 2, v26
v_xor_b32 v25, v25, v26
v_lshl_add_u32 v24, v25, 4, v24
s_lshl_b32 s86, s85, 7
v_add_u32 v4, s86, v24
s_mul_i32 s87, s4, {3*16384}
v_add_u32 v2, s87, v4
s_add_u32 s87, s4, 84
s_lshl_b32 s87, s87, 14
v_add_u32 v3, s87, v4
s_lshl_b32 s87, s4, 17
v_add_u32 v4, s87, v4
s_mul_i32 s76, s4, {Q}
s_lshl_b32 s87, s84, 11
s_mul_i32 s86, s4, {3*65536}
s_add_u32 s86, s86, s87
v_lshl_add_u32 v6, v0, 4, s86
v_bfe_u32 v24, v0, 1, 3
v_lshlrev_b32 v24, 3, v24
s_lshr_b32 s86, s4, 1
s_lshl_b32 s86, s86, 2
s_and_b32 s90, s4, 1
s_add_u32 s86, s86, s90
v_add_u32 v24, s86, v24
v_min_u32 v24, 57, v24
v_cmp_eq_u32 vcc, 56, v24
v_cndmask_b32 v24, v24, 57, vcc
v_and_b32 v25, 1, v0
v_lshl_add_u32 v24, v25, 1, v24
s_lshl_b32 s86, s4, 3
s_add_u32 s86, s86, 44
v_add_u32 v25, s86, v0
v_cmp_lt_u32 vcc, 15, v0
v_cndmask_b32 v24, v24, v25, vcc
s_mul_i32 s86, s84, 43
s_lshr_b32 s86, s86, 7
s_mul_i32 s86, s86, {23*4096}
s_add_u32 s86, s86, {WS_FLAG}
v_lshl_add_u32 v5, v24, 10, s86
s_add_u32 s86, s4, 84
s_lshl_b32 s86, s86, 16
s_add_u32 s86, s86, s87
s_cmp_lt_u32 s4, 2
s_cselect_b32 s86, s86, 0x80000000
v_lshl_add_u32 v7, v0, 4, s86""")
    w2addr(8, 24, True); xres_addr(0, 24)
    A(f"s_waitcnt lgkmcnt(0)\ns_add_u32 {TAG}, {TAG}, 0x9E3779B9")
def wfrag_addr(dst, swc, T, lab):
    A(f"""v_and_b32 v{T}, 3, v0
v_bfe_u32 v{T+1}, v0, 2, 2
v_bfe_u32 v{T+2}, v0, 4, 1
s_cmp_ge_u32 s7, 15
s_cbranch_scc1 {lab}Q
v_lshrrev_b32 v{T+3}, 4, v0
v_lshl_add_u32 v{T+3}, v{T+3}, 3, v{T+1}
v_mul_u32_u24 v{T+3}, 192, v{T+3}
v_lshl_add_u32 v{T}, v{T}, 3, v{T+3}
v_add_u32 v{T}, {XW}, v{T}
s_mul_i32 s87, {swc}, 3
v_xor_b32 v{T+3}, s87, v{T+2}
v_lshl_add_u32 v{dst}, v{T+3}, 5, v{T}
s_add_u32 s87, s87, 1
v_xor_b32 v{T+3}, s87, v{T+2}
v_lshl_add_u32 v{dst+1}, v{T+3}, 5, v{T}
s_branch {lab}D
{lab}Q:
v_lshrrev_b32 v{T+3}, 5, v0
v_mul_u32_u24 v{T+3}, 3072, v{T+3}
v_lshl_add_u32 v{T+3}, v{T+1}, 7, v{T+3}
v_mul_u32_u24 v{T+4}, {UPOFF+32}, v{T+2}
v_lshrrev_b32 v{T+1}, 1, v{T+1}
v_xor_b32 v{T+1}, {swc}, v{T+1}
v_lshl_add_u32 v{T+4}, v{T+1}, 6, v{T+4}
v_lshl_add_u32 v{T}, v{T}, 3, v{T+3}
v_add_u32 v{T}, {XW}, v{T}
v_add_u32 v{dst}, v{T}, v{T+4}
v_xor_b32 v{dst+1}, 32, v{dst}
{lab}D:""")
def woff(role, s_, j, sec):
    if role == 'G':
        jj = j % 3
        return jj & 1, s_*6144 + sec*768 + (j//3)*UPOFF + (64 if jj == 2 else 0)
    return j & 1, s_*6144 + (j//2)*1024 + sec*512
def ksoff(kd): return 12*(kd % 7) + kd//7
NR = OPT["nr"]
S2R = [('o',6+k,2,4+k) for k in range(2)] + [('d',12+k,2,k) for k in range(4)]
S0R = [('d',16+k,0,k) for k in range(6)]; S1R = [('o',k,1,k) for k in range(6)]
rawA = [('d', k, 96+8*k) for k in range(6)]; rawB = [('d', 6+k, 144+8*k) for k in range(6)]
if NR == 18:
    rawitems = [('o', k, 192+8*k) for k in range(6)] + rawA + rawB; items = S2R + S0R
    post = ["bA", "bB", "wO", ("fwo", 2)]
elif NR == 12:
    rawitems = rawA + rawB; items = S2R + S0R + S1R
    post = ["bA", "bB"] + list(range(12, 18)) + [("fwo", 18)]
elif NR == 6:
    rawitems = rawB; items = [('d',k,2,k) for k in range(6)] + S0R + S1R + S2R
    post = ["bB", 12, 13, ("cp", 96, 2, 6), 14, 15, 16, 17, 18, 19, 20, 21, ("fwo", 20), 22, 23]
else:
    rawitems = []; items = [('d',k,2,k) for k in range(6)] + [('d',6+k,0,k) for k in range(6)] + S1R + S2R + S0R
    post = [12, 13, ("cp", 96, 2, 6)] + list(range(14, 22)) + [("cp", 144, 0, 12), 22, ("fwo", 20)] + list(range(23, 30))
N7, N8 = OPT["n7"], OPT["n8"]
def rawload(it):
    kind, k, reg = it
    va, kk, S_ = ((2, ksoff(k), WD) if k < 21 else (3, 0, WD)) if kind == 'd' else (4, k, WO)
    A(f"""s_mov_b32 s86, {kk*16384}
s_mov_b32 s87, {kk*16384 + 8192}
buffer_load_dwordx4 {v(reg,4)}, v{va}, {S_}, s86 offen
buffer_load_dwordx4 {v(reg+4,4)}, v{va}, {S_}, s87 offen""")
def rawblocks():
    if not NR: return
    steps = list(range(OPT["r0"], 6)); n = len(steps)
    for i, st in enumerate(steps):
        sk = L("RW")
        A(f"s_cmp_eq_u32 s83, {st}\ns_cbranch_scc0 {sk}")
        for it in rawitems[NR*i//n : NR*(i+1)//n]: rawload(it)
        A.label(sk)
def w2item(n, thr=None):
    if OPT["now2"]: return
    kind, k, slot, blk = items[n]
    tw = f"s_waitcnt vmcnt({thr})\n" if thr is not None else ""
    if thr is not None and OPT["adapt"]:
        l1, l2 = L("TA"), L("TB")
        A(f"s_waitcnt lgkmcnt(0)\nv_readfirstlane_b32 s75, v20\nds_read_b32 v20, v19")
        kind, k, slot, blk = items[n]
        va, kk, S_ = ((2, ksoff(k), WD) if k < 21 else (3, 0, WD)) if kind == 'd' else (4, k, WO)
        A(f"""s_add_u32 m0, s76, {slot*SLOT + blk*2048}
s_mov_b32 s86, {kk*16384}
s_mov_b32 s87, {kk*16384 + 7168}
s_cmp_ge_u32 s75, {OPT['gate']}
s_cbranch_scc1 {l1}
s_waitcnt vmcnt({thr})
{l1}:
buffer_load_dwordx4 v{va}, {S_}, s86 offen lds
s_cbranch_scc1 {l2}
s_waitcnt vmcnt({thr})
{l2}:
buffer_load_dwordx4 v{va}, {S_}, s87 offen offset:1024 lds""")
        return
    A(f"s_add_u32 m0, s76, {slot*SLOT + blk*2048}")
    va, kk, S_ = ((2, ksoff(k), WD) if k < 21 else (3, 0, WD)) if kind == 'd' else (4, k, WO)
    A(f"""s_mov_b32 s86, {kk*16384}
s_mov_b32 s87, {kk*16384 + 7168}
{tw}buffer_load_dwordx4 v{va}, {S_}, s86 offen lds
{tw}buffer_load_dwordx4 v{va}, {S_}, s87 offen offset:1024 lds""")

A(f"""s_cmp_ge_u32 s3, 2
s_cbranch_scc1 L_SIDE
s_add_u32 s79, s6, s90""")
R_ = OPT["drot"] or OPT["rot"]
A(f"s_and_b32 s79, s79, {R_-1}\ns_lshl_b32 s79, s79, { {1:0, 2:2, 4:1, 8:0}[R_] }")
A(f"""v_lshrrev_b32 v24, 3, v0
v_and_b32 v25, 7, v0
v_lshrrev_b32 v26, 4, v0
v_xor_b32 v27, v25, v26
s_mul_i32 s86, s4, 96
s_add_u32 s86, s86, s8
s_lshl_b32 s86, s86, 10
v_lshl_add_u32 v16, v24, 10, s86
v_lshl_add_u32 v16, v27, 4, v16
v_xor_b32 v17, 64, v16
v_add_u32 v18, {2*7168}, v16
v_add_u32 v19, {3*7168}, v17
v_add_u32 v17, 7168, v17
s_mul_i32 s74, s4, 12288
""")
XG = ["s70", "s71", "s72"]; WL = ["s52", "s53", "s54", "s55"]; WG = ["s73", "s77", "s14", "s15"]
sh = {2: 1, 4: 2, 8: 0, 1: 0}[R_]
if OPT["sub"]:
    A(f"""s_lshr_b32 s86, s90, {sh}
s_mul_i32 s87, s86, 43
s_lshr_b32 s87, s87, 7
s_mul_i32 s87, s87, 3
s_sub_u32 s86, s86, s87
""")
else:
    A("s_mov_b32 s86, 0")
A("""s_lshl_b32 s70, s86, 12
s_add_u32 s71, s70, 4096
s_cmp_eq_u32 s71, 12288
s_cselect_b32 s71, 0, s71
s_add_u32 s72, s70, s71
s_sub_u32 s72, 12288, s72""")
XN = ["s11", "s13", "s91"]
A(f"s_lshl_b32 s86, s4, 4\ns_add_u32 s86, s86, s6\ns_cmp_eq_u32 s86, 10\ns_cselect_b32 s88, {8192 if OPT['xz'] else 0}, 0\ns_cmp_eq_u32 s12, 1\ns_cselect_b32 s88, {65536 if OPT['xz'] else 0}, s88")
for g in range(3): A(f"s_cmp_lt_u32 {XG[g]}, s88\ns_cselect_b32 {XN[g]}, 0, 2097152")
A("s_lshl_b32 s80, s79, 7\ns_mov_b32 s88, s74")
kwait()
stamp((1, 2))
def issue_head():
    A(f"""s_lshl_b32 s80, s79, 7
s_mul_i32 s81, s79, s82
s_lshl_b32 s81, s81, 2
s_add_u32 s88, s78, s74
s_add_u32 s89, s78, s75""")
ORDER = ["x0", "w0", "x1", "w1", "x2", "w2", "w3"]
def issue_part(lo, hi, order=None):
    n = 0
    for it in (order or ORDER[lo:hi]):
        g = int(it[1])
        if it[0] == 'x':
            A(f"s_add_u32 m0, s88, {XG[g]}\ns_lshl3_add_u32 s86, {XG[g]}, s80\ns_mov_b32 s38, {XN[g]}")
            for q in range(4): A(f"buffer_load_dwordx4 v{16+q}, {X}, s86 offen offset:{1024*q} lds")
            n += 4
        else:
            A(f"s_add_u32 m0, s89, {WL[g]}\ns_add_u32 s87, s81, {WG[g]}")
            for j in range(3): A(f"buffer_load_dwordx4 v{20+j}, {W}, s87 offen offset:{1024*j} lds")
            n += 3
    return n
def issue_tail():
    A(f"""s_add_u32 s79, s79, 1
s_and_b32 s79, s79, 7
s_add_u32 s78, s78, {SLOT}
s_cmp_eq_u32 s78, {3*SLOT}
s_cselect_b32 s78, 0, s78""")
HH = OPT["h"]
issue_part(0, 0, ["x0", "x1", "x2"][:3 if OPT["xfirst"] == 1 else 1])
A(f"""s_mul_i32 s75, s4, {UPOFF}
s_add_u32 s75, s75, {XW}
s_mov_b32 s43, 0x20000
s_mov_b32 s78, 0
s_cmp_ge_u32 s7, 15
s_cbranch_scc1 L_LQKV
s_mov_b32 s42, {512*2752}
s_mov_b32 s82, {16*2752}
s_movk_i32 s86, 0x1556
s_movk_i32 s87, 2752
s_lshl_b32 s88, s9, 1
s_cmp_eq_u32 s7, 14
s_cselect_b32 s89, {8 if OPT['zf'] else 0}, 0
s_cmp_eq_u32 s12, 1
s_cselect_b32 s89, {12 if OPT['zf'] else 0}, s89
v_mov_b32 v28, 0x80000000""")
for i in range(3):
    A(f"""v_add_u32 v24, {64*i}, v0
v_mul_u32_u24 v25, s86, v24
v_lshrrev_b32 v25, 16, v25
v_mul_u32_u24 v26, 12, v25
v_sub_u32 v24, v24, v26
v_lshrrev_b32 v26, 2, v25
v_and_b32 v26, 2, v26
v_xor_b32 v24, v24, v26
v_cmp_gt_u32 vcc, s89, v24
v_mul_u32_u24 v25, s87, v25
v_lshl_add_u32 v24, v24, 4, v25
v_add_u32 v24, s88, v24
v_subrev_u32 v24, {1024*i}, v24
v_cndmask_b32 v{20+i}, v24, v28, vcc""")
A(f"""s_branch L_LGO
L_LQKV:
s_mov_b32 s42, {512*3072}
s_mov_b32 s82, {16*3072}
s_sub_u32 s87, s7, 15
s_lshl_b32 s87, s87, 7
s_mul_i32 s88, s4, {8*3072}
s_add_u32 s87, s87, s88
v_mul_u32_u24 v24, 3072, v24
v_and_b32 v26, 1, v26
v_lshlrev_b32 v26, 2, v26
v_xor_b32 v25, v25, v26
s_lshl_b32 s88, s4, 1
v_xor_b32 v25, s88, v25
v_lshl_add_u32 v20, v25, 4, v24
v_add_u32 v20, s87, v20
v_mov_b32 v21, v20
v_mov_b32 v22, v20
L_LGO:""")
A(f"s_lshr_b32 s87, s6, {sh}" if OPT["sub"] else "s_mov_b32 s87, 0")
for g in range(4):
    A(f"s_add_u32 s86, s87, {g}\ns_and_b32 s86, s86, 3\ns_mul_i32 {WL[g]}, s86, 3072\ns_mul_i32 {WG[g]}, s86, s82")
A(f"""s_cmp_eq_u32 s4, 1
s_cselect_b32 s40, s26, s24
s_cselect_b32 s41, s27, s25
s_cmp_ge_u32 s7, 15
s_cselect_b32 s40, s18, s40
s_cselect_b32 s41, s19, s41""")
issue_head(); issue_part(0, 0, ["w0", "w1", "w2", "w3"] if OPT["xfirst"] == 1 else ["w0", "x1", "w1", "x2", "w2", "w3"]); issue_tail()
stamp((2, 2))
issue_head(); n_ = issue_part(0, HH)
p2setup()
A(f"s_waitcnt vmcnt({n_})")
stamp((1, 1), (3, 2))
A("s_barrier\ns_mov_b32 s83, 0\nL_LLOOP:")
rawblocks()
if OPT['nodma']: issue_tail(); issue_head()
else: issue_part(HH, 7); issue_tail(); issue_head(); issue_part(0, HH)
A(f"""s_add_u32 s83, s83, 1
s_waitcnt vmcnt({n_})
s_barrier
s_cmp_lt_u32 s83, 6
s_cbranch_scc1 L_LLOOP""")
stamp((2, 1), (4, 2))
issue_part(HH, 7)
A("s_mov_b32 s38, 2097152")
for n in range(N7): w2item(n)
A(f"s_waitcnt vmcnt({2*N7})\ns_barrier")
stamp((5, 2))
for n in range(N7, N8): w2item(n)
A("s_barrier\ns_branch L_W2")

def f_addr(dst):
    A(f"""s_sub_u32 s86, s7, 15
s_lshl_b32 s86, s86, 12
s_and_b32 s87, s6, 1
s_lshl_b32 s87, s87, 11
s_add_u32 s86, s86, s87
s_and_b32 s87, s6, 2
s_lshl_b32 s87, s87, 9
s_add_u32 s86, s86, s87
s_lshr_b32 s87, s6, 2
s_lshl_b32 s87, s87, 9
s_add_u32 s86, s86, s87
s_lshl1_add_u32 s91, s86, {WS_FF}
s_add_u32 s86, s86, {WS_F}
v_lshl_add_u32 v{dst}, v0, 4, s86""")
assert OPT["rot"] in (2, 4, 8)
A(f"""L_SIDE:
s_add_u32 s13, s6, s90
s_and_b32 s13, s13, {OPT['rot']-1}
s_lshl_b32 s13, s13, { {2:2, 4:1, 8:0}[OPT['rot']] }
s_lshr_b32 s14, s6, { {2:1, 4:2, 8:3}[OPT['rot']] }
s_add_u32 s15, s13, s14
s_cmp_ge_u32 s6, 8
s_cselect_b32 s14, 99, s14
s_cmp_eq_u32 s12, 1
s_cselect_b32 s14, 99, s14
s_and_b32 s77, s4, 1""")
wfrag_addr(62, "s77", 24, "L_SA")
A(f"""s_cmp_eq_u32 s14, 1
s_cselect_b32 s86, {SLOT}, 0
s_cmp_eq_u32 s14, 2
s_cselect_b32 s86, {2*SLOT}, s86
v_add_u32 v62, s86, v62
v_add_u32 v63, s86, v63
v_and_b32 v24, 16, v0
v_cmp_ne_u32 s[72:73], 0, v24
v_and_b32 v24, 31, v0
s_mul_i32 s86, s77, 384
s_add_u32 s86, s86, {CF}
v_lshrrev_b32 v25, 4, v24
v_mul_u32_u24 v25, 128, v25
v_lshl_add_u32 v17, v24, 2, v25
v_add_u32 v17, s86, v17
s_mul_i32 s87, s77, 96
v_add_u32 v21, s87, v0
v_add3_u32 v22, v24, s87, 64
s_lshl_b32 s86, s8, 4
s_add_u32 s86, s86, {WS_RS}
v_lshl_add_u32 v19, v21, 4, s86
v_lshl_add_u32 v20, v22, 4, s86
s_lshl_b32 s86, s7, 13
s_lshl_b32 s87, s77, 9
s_add_u32 s86, s86, s87
s_add_u32 s86, s86, {WS_CS}
s_lshl_b32 s87, s15, 10
s_add_u32 s74, s86, s87
v_lshlrev_b32 v23, 4, v24
v_lshrrev_b32 v25, 5, v0
v_lshl_add_u32 v18, v25, 12, v23
v_add_u32 v18, s86, v18""")
for r in range(52, 56): A(f"v_mov_b32 v{r}, 0x3f803f80")
def w1prefetch():
    A(f"""s_cmp_eq_u32 s77, 0
s_cselect_b32 s40, s24, s26
s_cselect_b32 s41, s25, s27
s_mov_b32 s42, {1376*1024}
s_mov_b32 s43, 0x20000
s_mul_i32 s86, s5, 43
v_min_u32 v16, 42, v0
v_add_u32 v16, s86, v16
v_lshlrev_b32 v16, 7, v16
buffer_load_dword v58, v16, {W}, 0 offen
s_mov_b32 s52, s18
s_mov_b32 s53, s19
s_mov_b32 s54, {512*3072}
s_mov_b32 s55, 0x20000
s_lshl_b32 s86, s5, 1
s_add_u32 s86, s86, s77
s_mul_i32 s86, s86, 24
v_min_u32 v16, 23, v0
v_add_u32 v16, s86, v16
v_lshlrev_b32 v16, 7, v16
buffer_load_dword v57, v16, s[52:55], 0 offen""")
kwait()
if OPT['w1pf'] == -2: w1prefetch()
p2setup()
A(f"""s_cmp_lt_u32 s7, 15
s_cbranch_scc1 L_NOCLR
s_cmp_ge_u32 s6, 8
s_cbranch_scc1 L_NOCLR""")
f_addr(24)
A(f"""v_mov_b32 v28, -1
v_mov_b32 v29, -1
v_mov_b32 v30, -1
v_mov_b32 v31, -1
s_mov_b32 exec_hi, 0
buffer_store_dwordx4 v[28:31], v24, {WS}, 0 offen sc1
s_mov_b32 exec_hi, -1""")
if OPT["prew"]: A(f"s_sub_u32 s86, {TAG}, 1\nv_mov_b32 v32, s86\nv_lshlrev_b32 v24, 4, v0\nbuffer_store_dwordx4 v[32:35], v24, {WS}, s91 offen sc1")
A(f"""L_NOCLR:
s_mov_b32 s83, 0
s_waitcnt vmcnt(0)""")
if OPT["w1pf"] == -1: w1prefetch()
A("L_SLOOP:\ns_barrier")
if OPT["w1pf"] >= 0:
    A(f"s_cmp_eq_u32 s83, {OPT['w1pf']}\ns_cbranch_scc0 L_NOPF1"); w1prefetch(); A("L_NOPF1:")
if OPT["w2late"] >= 0:
    A(f"""s_cmp_eq_u32 s83, {OPT['w2late']}
s_cbranch_scc0 L_NOPF2
s_mul_i32 s86, s5, 59
s_mul_i32 s87, s77, 30
s_add_u32 s86, s86, s87
v_min_u32 v16, 29, v0
v_add_u32 v16, s86, v16
v_lshlrev_b32 v16, 7, v16
buffer_load_dword v60, v16, {WD}, 0 offen
v_subrev_u32 v16, {1376*1024}, v16
buffer_load_dword v61, v16, {WO}, 0 offen
L_NOPF2:""")
if OPT["pf2"] >= 0:
    A(f"""s_cmp_eq_u32 s83, {OPT['pf2']}
s_cbranch_scc0 L_NOPF3
s_getpc_b64 s[88:89]
L_PC2:
s_sub_u32 s88, s88, L_PC2-{NAME}_kernel
s_subb_u32 s89, s89, 0
s_lshr_b32 s86, s2, 3
s_lshl_b32 s86, s86, 3
s_lshl_b32 s87, s77, 2
s_add_u32 s86, s86, s87
v_and_b32 v16, 3, v0
v_add_u32 v16, s86, v16
v_lshlrev_b32 v16, 7, v16
v_min_u32 v16, L_END-{NAME}_kernel, v16
global_load_dword v59, v16, s[88:89]
L_NOPF3:""")
A("s_cmp_eq_u32 s83, s14\ns_cbranch_scc0 L_LNOCS")
for t in range(2):
    A(f"s_cmp_ge_u32 s7, 15\ns_cbranch_scc1 L_CSQ{t}")
    for role in "GQ":
        if role == 'Q': A(f"s_branch L_CSM{t}\nL_CSQ{t}:")
        for j in range(6):
            for sec in range(2):
                par, off = woff(role, t, j, sec)
                A(f"ds_read_b64_tr_b16 {v(24+4*j+2*sec,2)}, v{62+par} offset:{off}")
    A(f"L_CSM{t}:\ns_waitcnt lgkmcnt(0)")
    for j in range(6): A(mf16(72+4*j, 52, 24+4*j, 0 if t == 0 else None))
A(f"v_mov_b32 v51, {TAG}")
for u in range(3): A(f"v_cndmask_b32 v{48+u}, v{72+4*u}, v{84+4*u}, s[72:73]")
A(f"""s_mov_b32 exec_hi, 0
buffer_store_dwordx4 v[48:51], v23, {WS}, s74 offen sc1
s_mov_b32 exec_hi, -1
L_LNOCS:""")
rawblocks()
A(f"""s_add_u32 s83, s83, 1
s_cmp_lt_u32 s83, 6
s_cbranch_scc1 L_SLOOP""")
def st_loads():
    for p in range(4): A(f"buffer_load_dwordx4 {v(32+4*p,4)}, v18, {WS}, 0 offen offset:{1024*p} sc1")
    A(f"buffer_load_dwordx4 v[48:51], v19, {WS}, 0 offen sc1\nbuffer_load_dwordx4 v[52:55], v20, {WS}, 0 offen sc1")
st_loads()
A("s_barrier")
stamp((2, 1), (4, 2))
for n in range(N7): w2item(n)
A(f"s_mov_b32 s88, 0\ns_waitcnt vmcnt({2*N7})\ns_barrier")
stamp((5, 2))
A("L_SPC:")
tagcheck(24, 24, [35+4*p for p in range(6)])
A(f"""v_cmp_ne_u32 vcc, 0, v24
s_add_u32 s88, s88, 1
s_cmp_gt_u32 s88, {OPT['spin']}
s_cbranch_scc1 L_SPCD
s_cbranch_vccz L_SPCD""")
st_loads()
A(f"""s_waitcnt vmcnt(0)
s_branch L_SPC
L_SPCD:
s_mov_b32 s86, {RS}
s_mov_b32 s87, {RR}
v_lshl_add_u32 v24, v21, 4, s86
v_lshl_add_u32 v25, v22, 4, s86
v_lshl_add_u32 v21, v21, 2, s87
v_lshl_add_u32 v22, v22, 2, s87
ds_write_b128 v24, v[48:51]
ds_write_b128 v25, v[52:55]
ds_write_b32 v21, v49
ds_write_b32 v22, v53
v_mul_f32 v24, v48, v49
v_mul_f32 v25, v52, v53
ds_write_b32 v21, v24 offset:{MR-RR}
ds_write_b32 v22, v25 offset:{MR-RR}""")
note("s88", 2)
for p in range(1, 4):
    for u in range(3): A(f"v_add_f32 v{32+u}, v{32+u}, v{32+4*p+u}")
for u in range(3): A(f"v_mov_b32 v{36+u}, v{32+u}")
for u in range(3): A(f"v_permlane32_swap_b32 v{32+u}, v{36+u}")
for u in range(3): A(f"v_add_f32 v{32+u}, v{32+u}, v{36+u}")
for u in range(3): A(f"ds_write_b32 v17, v{32+u} offset:{64*u}")
A("s_waitcnt lgkmcnt(0)\ns_barrier")
for n in range(N7, N8): w2item(n)

A("L_W2:")
stamp((3, 1), (6, 2))
AB = 8
A(f"v_lshlrev_b32 v16, 4, v0\nv_add_u32 v16, s76, v16\nv_mov_b32 v19, {LF+32}\nv_mov_b32 v20, 0")
def wr(reg, slot, blk):
    off = slot*SLOT + blk*2048
    A(f"ds_write_b128 v16, {v(reg,4)} offset:{off}\nds_write_b128 v16, {v(reg+4,4)} offset:{off+1024}")
def rd6(base, sl):
    for kk in range(6):
        E(w2read(base+8*kk, sl, kk, AB))
        if kk % 3 == 2: A("s_waitcnt lgkmcnt(0)")
nis = N8
NL = OPT['nl'] + OPT['nb'] if OPT['stage'] else 0
NIT = len(items)
assert all(isinstance(o, int) and items[o][0] == 'd' for o in post[len(post)-NL:])
DEF = {items[n][1] for n in range(NIT-NL, NIT)}
for op in (list(range(N8, 12)) + post)[:len(range(N8, 12)) + len(post) - NL]:
    if isinstance(op, int):
        assert op == nis; nis += 1
        w2item(op, OPT["thr"] if (OPT["thr"] and op < OPT["unthr"]) else None)
    elif op in ("bA", "bB"):
        base = 96 if op == "bA" else 144
        for kk in range(6): wr(base+8*kk, 1, kk)
        A("s_waitcnt lgkmcnt(0)"); rd6(base, 1)
    elif op == "wO":
        for kk in range(6): wr(192+8*kk, 1, kk)
    elif op[0] == "cp":
        A(f"s_waitcnt vmcnt({2*(nis-op[3])})"); rd6(op[1], op[2])
    elif op[0] == "fwo":
        A(f"""s_lshl_b32 s86, s4, 2
s_add_u32 s86, s86, {LF}
v_mov_b32 v18, s86
v_mov_b32 v17, 1
s_waitcnt vmcnt({2*(nis-op[1])}) lgkmcnt(0)
ds_write_b32 v18, v17""")
def reducer(CTr, va, vf, vc, msk, sz, pairbase):
    A(f"""s_lshr_b32 s79, s6, 1
s_lshl_b32 s86, s79, 8
s_add_u32 s86, s86, {pairbase}
v_lshrrev_b32 v{va}, 4, v0
v_mul_u32_u24 v{va}, 3072, v{va}
v_and_b32 v{vc}, 15, v0
v_lshl_add_u32 v{va}, v{vc}, 4, v{va}
v_add_u32 v{va}, s86, v{va}""")
    for j in range(12): A(f"v_mov_b32 v{CTr(5)+j}, " + (TAG if j % 4 == 3 else "0"))
    f_addr(vf)
    A(f"""v_lshrrev_b32 v24, 1, v0
v_mul_u32_u24 v24, 92, v24
v_and_b32 v25, 1, v0
v_lshl_add_u32 v24, v25, 1, v24
s_lshl_b32 s86, s7, 2
s_and_b32 s87, s6, 1
s_add_u32 s86, s86, s87
s_lshl_b32 s86, s86, 10
s_add_u32 s86, s86, {WS_FLAG}
v_lshl_add_u32 v24, v24, 10, s86""")
    if OPT["hints"]: spin_flag(24, 25, 22, 0)
    stamp((4, 3))
    A("s_mov_b32 s88, 0\nL_KVC:")
    for p in range(6):
        A(f"s_mov_b32 s86, {12288*p}")
        if p == 5: A("s_mov_b32 exec_hi, 0")
        for g_ in range(3): A(f"buffer_load_dwordx4 {v(CTr(p)+4*g_,4)}, v{va}, {WS}, s86 offen offset:{1024*g_} sc1")
    A("s_mov_b32 exec_hi, -1\ns_waitcnt vmcnt(0)")
    if OPT["redearly"] and not OPT["lred"]:
        A("s_cmp_lg_u32 s88, 0\ns_cbranch_scc1 L_NOFL"); flagstore(2); A("L_NOFL:")
    tagcheck(vc, 60, [CTr(n//3)+4*(n%3)+3 for n in range(18)])
    A(f"""v_cmp_ne_u32 vcc, 0, v{vc}
s_add_u32 s88, s88, 1
s_cmp_gt_u32 s88, {OPT['spin']}
s_cbranch_scc1 L_KVD
s_cbranch_vccnz L_KVC
L_KVD:""")
    note("s88", 3)
    rr = lambda p, j: CTr(p) + 4*(j//3) + j % 3
    for j in range(9): A(f"v_add_f32 v{24+j}, v{rr(0,j)}, v{rr(1,j)}")
    for p in range(2, 6):
        for j in range(9): A(f"v_add_f32 v{24+j}, v{24+j}, v{rr(p,j)}")
    for sw in (16, 32):
        for j in range(9): A(f"v_mov_b32 v{36+j}, v{24+j}")
        for j in range(9): A(f"v_permlane{sw}_swap_b32 v{24+j}, v{36+j}")
        for j in range(9): A(f"v_add_f32 v{24+j}, v{24+j}, v{36+j}")
    A(f"""s_lshr_b32 s86, s79, 1
s_lshl_b32 s86, s86, 3
s_add_u32 s87, s86, 2
s_add_u32 s88, s86, 4
s_add_u32 s89, s86, 6
v_mov_b32_dpp v33, v32 row_shl:1 row_mask:0xf bank_mask:0xf""")
    for j in range(4): A(f"v_cvt_pk_bf16_f32 v{36+j}, v{24+2*j}, v{25+2*j}")
    A(f"""v_cvt_pk_bf16_f32 v33, v32, v33
s_bitcmp1_b32 s79, 0
s_cselect_b64 s[80:81], -1, 0
s_xor_b64 s[80:81], s[80:81], {msk}""")
    for j in range(4): A(f"v_readlane_b32 s{sz+j}, v33, s{86+j}")
    for j in range(4): A(f"v_mov_b32 v{40+j}, s{sz+j}")
    for j in range(4): A(f"v_cndmask_b32 v{44+j}, v{36+j}, v{40+j}, s[80:81]")
    A(f"""s_mov_b32 exec_hi, 0
buffer_store_dwordx4 v[44:47], v{vf}, {WS}, 0 offen sc1
s_mov_b32 exec_hi, -1""")
    for j in range(4): A(f"v_mov_b32 v{24+j}, {TAG}")
    if OPT["hints"]: A(f"v_lshlrev_b32 v28, 4, v0\nbuffer_store_dwordx4 v[24:27], v28, {WS}, s91 offen sc1")
    stamp((5, 3))
if OPT["lred"]:
    A(f"""s_cmp_lg_u32 s3, 3
s_cbranch_scc1 L_NORED
s_cmp_lt_u32 s7, 15
s_cbranch_scc1 L_NORED
s_cmp_ge_u32 s6, 8
s_cbranch_scc1 L_NORED
s_setprio 2
s_sub_u32 s87, s7, 15
s_lshl_b32 s87, s87, 1
s_and_b32 s86, s6, 1
s_add_u32 s87, s87, s86
s_mul_i32 s77, s87, {24*3072}
s_add_u32 s77, s77, {WS_KV}""")
    reducer(lambda p: 192+12*p if p < 5 else 80, 19, 20, 21, "s[72:73]", 52, "s77")
    A("s_setprio 0\nL_NORED:")
xres_load()
stamp((4, 1), (1, 3), (1, 4))
def rdaddr(dst, isy_src, half, T):
    base = 0 if isy_src else SLOT
    t3 = 2*SLOT + (0 if isy_src else 8192)
    A(f"""s_and_b32 s70, s4, 2
s_lshl_b32 s70, s70, 12
s_add_u32 s70, s70, {base}
s_add_u32 s71, s70, 4096
s_cmp_ge_u32 s4, 2
s_cselect_b32 s71, {t3}, s71
v_mov_b32 v{T}, s70
v_mov_b32 v{T+1}, s71
v_and_b32 v{T+2}, 4, v0
v_cmp_ne_u32 vcc, 0, v{T+2}
v_and_b32 v{T+2}, 7, v0
v_lshrrev_b32 v{T+3}, 3, v0
v_cndmask_b32 v{T}, v{T}, v{T+1}, vcc
v_add_u32 v{T+3}, {8*half}, v{T+3}
v_lshlrev_b32 v{T+1}, 1, v{T+2}
v_xor_b32 v{T+3}, v{T+3}, v{T+1}
s_and_b32 s70, s4, 1
s_lshl_b32 s70, s70, 8
v_lshl_add_u32 v{T}, v{T+3}, 4, v{T}
v_and_b32 v{T+1}, 2, v0
v_lshl_add_u32 v{T}, v{T+1}, 8, v{T}
v_and_b32 v{T+1}, 1, v0
v_lshl_add_u32 v{T}, v{T+1}, 11, v{T}
v_add_u32 v{dst}, s70, v{T}""")
def wraddr(B_, isy):
    A(f"""v_lshrrev_b32 v{B_}, 3, v0
v_and_b32 v{B_}, 4, v{B_}
v_xor_b32 v{B_}, v{B_}, v0
v_lshlrev_b32 v{B_}, 4, v{B_}
v_xor_b32 v{B_+1}, 32, v{B_}
v_xor_b32 v{B_+2}, 0x80, v{B_}
v_xor_b32 v{B_+3}, 0xa0, v{B_}""")
    for j in range(4): A(f"v_add_u32 v{B_+j}, s76, v{B_+j}")
    t3 = 2*SLOT + (0 if isy else 8192)
    A(f"v_add_u32 v{B_+4}, {t3}, v{B_+2}\nv_add_u32 v{B_+5}, {t3}, v{B_+3}")
def wrpart(B_, isy):
    for q in range(4):
        for jq in range(4):
            if q < 3: A(f"ds_write_b128 v{B_ + 2*(q&1) + (jq>>1)}, {v(192+16*q+4*jq,4)} offset:{(0 if isy else SLOT) + q*4096 + jq*1024}")
            else: A(f"ds_write_b128 v{B_ + 4 + (jq>>1)}, {v(192+16*q+4*jq,4)} offset:{jq*1024}")
def rd4(dst, va):
    for src in range(4):
        for e in range(2): A(f"ds_read_b128 {v(dst+8*src+4*e,4)}, v{va} offset:{Q*src+1024*e}")
def sum4(d):
    for j in range(4): A(f"v_pk_add_f32 {v(d+2*j,2)}, {v(d+2*j,2)}, {v(d+8+2*j,2)}\nv_pk_add_f32 {v(d+16+2*j,2)}, {v(d+16+2*j,2)}, {v(d+24+2*j,2)}")
    for j in range(4): A(f"v_pk_add_f32 {v(d+2*j,2)}, {v(d+2*j,2)}, {v(d+16+2*j,2)}")
STG = OPT["stage"]
def sgo(va, vd): return f"s_lshl_b32 s86, s4, 2\ns_add_u32 s86, s86, {LF+48}\nv_mov_b32 v{va}, s86\nv_mov_b32 v{vd}, 1\nds_write_b32 v{va}, v{vd}"
if OPT["gate"]:
    A(f"v_mov_b32 v16, {LF+32}"); spin_lds(16, 17, OPT["gate"])
NB = OPT["nb"] if STG else 0
if STG:
    if not NB: spin_flag(5, 4, 16, 0)
else:
    spin_flag(5, 4, 24, 2); A(sgo(5, 4))
note("1" if NB else "s88", 4)
stamp((5, 1), (2, 3), (2, 4))
def hload(kd):
    va, kk = (6, ksoff(kd)) if kd < 21 else (7, 0)
    b = 16 + 8*(kd % 8)
    return [f"s_mov_b32 s86, {kk*65536}",
            f"VM h{kd}a|buffer_load_dwordx4 {v(b,4)}, v{va}, {H}, s86 offen sc1",
            f"VM h{kd}|buffer_load_dwordx4 {v(b+4,4)}, v{va}, {H}, s86 offen offset:1024 sc1"]
def w2late(n):
    kind, k, slot, blk = items[n]
    va, kk = (2, ksoff(k)) if k < 21 else (3, 0)
    return [f"s_add_u32 m0, s76, {slot*SLOT + blk*2048}\ns_mov_b32 s86, {kk*16384}\ns_mov_b32 s87, {kk*16384 + 7168}",
            f"VM w{k}a|buffer_load_dwordx4 v{va}, {WD}, s86 offen lds",
            f"VM w{k}|buffer_load_dwordx4 v{va}, {WD}, s87 offen offset:1024 lds"]
def ipoll(c):
    nl = 16 if c <= 1 else 24
    return [f"VM p{c}|v_mov_b32 v4, {TAG}\ns_mov_b32 s87, {c << 20}\ns_mov_b64 exec, {hex((1<<nl)-1)}\nbuffer_load_dword v4, v5, {WS}, s87 offen sc1\ns_mov_b64 exec, -1"]
res_loc = lambda kd: (2, kd-12) if kd < 16 else (0, kd-16)
YD = OPT["ydep"]; assert YD <= 7
PRE = cap(lambda: (wraddr(96, True), rdaddr(102, True, 0, 104), A("v_xor_b32 v103, 0x80, v102"), rdaddr(108, False, 0, 104),
    A(f"s_lshl_b32 s70, s4, 11\ns_add_u32 s70, s70, {GB}\nv_lshl_add_u32 v109, v0, 4, s70\nv_mov_b32 v110, {LF+36}\nv_mov_b32 v111, 1"),
    [A(f"v_lshlrev_b32 v{112+2*j}, 16, v{12+j}\nv_and_b32 v{113+2*j}, 0xffff0000, v{12+j}") for j in range(4)],
    A(f"s_mov_b32 s70, {hx(-1.4426950408889634)}\ns_mov_b32 s71, s70")))
Y = [f"s_setprio {OPT['yprio']}"]
if NB:
    Y += ipoll(0)
    for n in range(NB): Y += w2late(NIT-NL+n)
    Y += ["WAIT p0|", f"v_cmp_ne_u32 vcc, {TAG}, v4\ns_cbranch_vccnz L_YR0\nL_YB0:", "STAMP 2"]
for kd in range(YD): Y += hload(kd)
for kd in range(22):
    wf = 96+8*kd if kd < 12 else 80+8*(kd & 1)
    hb = 16 + 8*(kd % 8)
    need = [f"h{kd}"]
    chk = 0 if not STG else (1 if kd+YD == 7 else (2 if kd == OPT['c2'] else 0))
    if chk: need.append(f"p{chk}")
    if kd+1 in DEF: need.append(f"w{kd+1}")
    Y.append("WAIT " + ",".join(need) + ("|L" if kd >= 12 else "|"))
    if chk:
        Y.append(f"v_cmp_ne_u32 vcc, {TAG}, v4\ns_cbranch_vccnz L_YR{chk}\nL_YB{chk}:")
        if chk == 2: Y.append(sgo(5, 4))
    ms = [mfma(192+32*r+16*c, wf+4*c, hb+4*r, 0 if kd == 0 else None) for r in range(2) for c in range(2)]
    fill = []
    if STG and kd == OPT["p1"]: fill += ipoll(1)
    if STG and kd == OPT["p2"]: fill += ipoll(2)
    if kd+YD < 22: fill += hload(kd+YD)
    if 1 <= kd <= NL-NB: fill += w2late(NIT-NL+NB+kd-1)
    if 12 <= kd+1 < 22: fill += w2read(80+8*((kd+1) & 1), *res_loc(kd+1), AB)
    if kd in (11, 12, 13): fill = fill + PRE[(kd-11)*37:(kd-10)*37] if kd < 13 else fill + PRE[74:]
    Y += interleave(ms, fill, 3 if len(fill) <= 12 else 6)
    if kd+1 == OPT["ydrop"]: Y.append(f"s_setprio {OPT['ypost']}")
    if kd == 0: Y.append("STAMP 3")
    if kd == 10: Y.append("STAMP 4")
assert not STG or (OPT["p1"] < 7-YD <= OPT["p2"] < OPT["c2"] <= 14-YD)
vm = []
for t in Y:
    if t.startswith("VM "):
        nm, ins = t[3:].split("|"); vm.append(nm); A(ins)
    elif t.startswith("WAIT "):
        nms, lg = t[5:].split("|")
        A(f"s_waitcnt vmcnt({len(vm)-1-max(vm.index(x) for x in nms.split(','))})" + (" lgkmcnt(0)" if lg else ""))
    elif t.startswith("STAMP "): stamp((int(t[6:]), 4))
    else: A(t)
stamp((6, 1), (3, 3), (5, 4))
def final(isy):
    if isy:
        wrpart(96, True)
        A("""v_mov_b32 v4, v108
s_mov_b64 exec, 1
s_waitcnt lgkmcnt(0)
ds_add_u32 v110, v111
s_mov_b64 exec, -1""")
        spin_lds(110, 6, 4)
        rd4(16, 103); A("s_waitcnt lgkmcnt(4)"); rd4(48, 102)
        for d, w_ in ((16, 8), (48, 2)):
            A(f"s_waitcnt lgkmcnt({w_})")
            if OPT["ypk"]:
                sum4(d)
                for j in range(4): A(f"v_pk_mul_f32 {v(d+8+2*j,2)}, {v(d+2*j,2)}, s[70:71]")
            else:
                for j in range(8): A(f"v_add_f32 v{d+j}, v{d+j}, v{d+8+j}\nv_add_f32 v{d+16+j}, v{d+16+j}, v{d+24+j}")
                for j in range(8): A(f"v_add_f32 v{d+j}, v{d+j}, v{d+16+j}")
                for j in range(8): A(f"v_mul_f32 v{d+8+j}, s70, v{d+j}")
            for j in range(8): A(f"v_exp_f32 v{d+8+j}, v{d+8+j}")
            for j in range(8): A(f"v_add_f32 v{d+8+j}, 1.0, v{d+8+j}")
            for j in range(8): A(f"v_rcp_f32 v{d+8+j}, v{d+8+j}")
            for j in range(8): A(f"v_mul_f32 v{(d if d == 16 else 88)+j}, v{d+j}, v{d+8+j}")
            if d == 16:
                A("ds_write_b128 v109, v[16:19]\nds_write_b128 v109, v[20:23] offset:1024")
    else:
        wrpart(80, False)
    A("s_waitcnt lgkmcnt(0)")
final(True)
A("s_branch L_FINAL")
if STG:
    for c in ((0, 1, 2) if NB else (1, 2)):
        A(f"L_YR{c}:"); note(str(10+c), 4); spin_flag(5, 4, 16 if c <= 1 else 24, c, 1); A(f"s_branch L_YB{c}")
A("L_COMPUTE:")
srd(WS, 32, 0x800000); srd(H, 32, 118*65536, WS_H); srd(OUT, 30, 2097152)
ACC = 112
for r in range(ACC, 256): A(f"v_mov_b32 v{r}, 0")
A(f"""v_lshlrev_b32 v16, 2, v0
v_add_u32 v16, {LF}, v16
v_mov_b32 v17, 0
s_mov_b64 exec, 0xffff
ds_write_b32 v16, v17
s_mov_b64 exec, -1
s_lshr_b32 s13, s4, 1
s_and_b32 s14, s4, 1
s_movk_i32 s11, 0x1ff
s_lshl_b32 s86, s13, 4
s_add_u32 s86, s86, s6
s_cmp_eq_u32 s86, 10
s_cselect_b32 s11, 0x1c0, s11
s_mul_i32 s86, s14, 0x1b6
s_cmp_eq_u32 s7, 14
s_cselect_b32 s86, s86, 0x1ff
s_and_b32 s11, s11, s86
s_cmp_eq_u32 s12, 1
s_cselect_b32 s11, 0, s11
s_mul_i32 s76, s4, {Q}
s_lshr_b32 s86, s9, 4
s_mul_i32 s87, s14, 3
s_add_u32 s86, s86, s87
s_lshl_b32 s87, s7, 1
s_add_u32 s87, s87, s14
s_lshl1_add_u32 s87, s87, 26
s_and_b32 s88, s11, 0xdb
s_cmp_ge_u32 s7, 15
s_cselect_b32 s86, s87, s86
s_cselect_b32 s11, s88, s11
s_lshl_b32 s86, s86, 6
s_lshr_b32 s87, s8, 5
s_add_u32 s86, s86, s87
s_mul_i32 s87, s13, 3
s_add_u32 s86, s86, s87
s_lshl_b32 s86, s86, 10
v_lshl_add_u32 v1, v0, 4, s86
s_mov_b32 s80, 0
s_mov_b32 s81, 65536
s_mov_b32 s82, 131072
v_and_b32 v16, 15, v0
v_lshrrev_b32 v17, 4, v0
v_bfe_u32 v18, v0, 1, 3
v_xor_b32 v18, v18, v17
s_mul_i32 s86, s13, {96*128}
v_lshl_add_u32 v16, v16, 7, s86
v_lshl_add_u32 v2, v18, 4, v16
v_xor_b32 v3, 64, v2""")
wfrag_addr(4, "s14", 16, "L_CA")
A(f"""s_mul_i32 s86, s6, 23
s_add_u32 s86, s86, s7
s_cmp_eq_u32 s12, 1
s_cselect_b32 s86, 255, s86
s_lshl_b32 s86, s86, 2
s_add_u32 s86, s86, s4
s_lshl_b32 s86, s86, 10
s_add_u32 s15, s86, {WS_FLAG}""")
stamp((2, 2))
A("s_waitcnt vmcnt(0)")
stamp((5, 2))
for j in range(8):
    A(f"v_lshlrev_b32 v{16+2*j}, 16, v{8+j}\nv_and_b32 v{17+2*j}, 0xffff0000, v{8+j}")
def red32(r, t):
    for sh_ in (8, 4, 2, 1):
        A(f"v_add_f32_dpp v{r}, v{r}, v{r} row_ror:{sh_} row_mask:0xf bank_mask:0xf")
    A(f"v_mov_b32 v{t}, v{r}\nv_permlane16_swap_b32 v{r}, v{t}\nv_add_f32 v{r}, v{r}, v{t}")
for j in range(4): A(f"v_pk_add_f32 {v(8+2*j,2)}, {v(16+2*j,2)}, {v(24+2*j,2)}")
A("v_pk_add_f32 v[8:9], v[8:9], v[12:13]\nv_pk_add_f32 v[10:11], v[10:11], v[14:15]\nv_pk_add_f32 v[8:9], v[8:9], v[10:11]\nv_add_f32 v8, v8, v9")
red32(8, 9)
A(f"v_mul_f32 v8, {hx(-1/512)}, v8")
for j in range(8): A(f"v_pk_add_f32 {v(16+2*j,2)}, {v(16+2*j,2)}, v[8:9] op_sel_hi:[1,0]")
A("v_pk_mul_f32 v[10:11], v[16:17], v[16:17]\nv_pk_mul_f32 v[12:13], v[18:19], v[18:19]")
for j in range(2, 8): A(f"v_pk_fma_f32 {v(10+2*(j&1),2)}, {v(16+2*j,2)}, {v(16+2*j,2)}, {v(10+2*(j&1),2)}")
A("v_pk_add_f32 v[10:11], v[10:11], v[12:13]\nv_add_f32 v10, v10, v11")
red32(10, 9)
A(f"""v_mul_f32 v10, {hx(1/512)}, v10
v_cvt_pk_bf16_f32 v10, v10, v10
v_and_b32 v10, 0xffff0000, v10
v_add_f32 v10, {hx(1e-5)}, v10
v_cvt_pk_bf16_f32 v10, v10, v10
v_and_b32 v10, 0xffff0000, v10
v_sqrt_f32 v10, v10
v_cvt_pk_bf16_f32 v32, v8, v8
v_cvt_pk_bf16_f32 v10, v10, v10
v_and_b32 v10, 0xffff0000, v10
v_and_b32 v32, 0xffff0000, v32
v_rcp_f32 v33, v10
v_mul_f32 v34, v10, v10
v_lshlrev_b32 v7, 4, v7
v_add_u32 v7, {WS_RS}, v7
s_waitcnt lgkmcnt(0)
s_add_u32 {TAG}, {TAG}, 0x9E3779B9
v_mov_b32 v35, {TAG}
v_mov_b32 v36, {TAG}
v_mov_b32 v37, {TAG}
v_mov_b32 v38, {TAG}
v_mov_b32 v39, {TAG}
v_lshlrev_b32 v6, 4, v0
s_mov_b32 s78, 0
s_mov_b32 s79, {SLOT}
s_mov_b32 s83, 0""")
stamp((1, 1), (3, 2))
A(f"""s_barrier
s_mov_b32 exec_lo, 1
s_mov_b32 exec_hi, 1
buffer_store_dwordx4 v[32:35], v7, {WS}, 0 offen sc1
s_mov_b64 exec, -1""")
if OPT["prew"]:
    for kind in ((0, 1, 2) if OPT["stage"] else (0, 2)):
        sk = L("PW")
        if kind == 0 and not OPT["stage"]: A(f"s_cmp_lt_u32 s7, 15\ns_cbranch_scc1 {sk}")
        A(f"s_add_u32 s86, s15, {kind << 20}\nbuffer_store_dwordx4 v[28:31], v6, {WS}, s86 offen sc1")
        A.label(sk)
stamp((2, 1), (4, 2))
A("s_cmp_ge_u32 s7, 15\ns_cbranch_scc1 L_QKV")
if OPT["dead"]: A("s_or_b32 s86, s11, s12\ns_cbranch_scc0 L_DEAD")

XB = lambda buf, a: (40 if buf == 0 else 8) + 4*a
WF = lambda buf, j: 64 + 24*buf + 4*j
acc = lambda a, j: ACC + 4*(6*a+j)
CB = 40
def reads(role, s_):
    w_ = []
    for j in range(6):
        for sec in range(2):
            par, off = woff(role, s_, j, sec)
            w_.append(f"ds_read_b64_tr_b16 {v(WF(s_,j)+2*sec,2)}, v{4+par} offset:{off}")
    o = []
    for a in range(6): o += [f"ds_read_b128 {v(XB(s_,a),4)}, v{2+s_} offset:{2048*a}"] + w_[2*a:2*a+2]
    return o
def mm(role, wb, a, j, xb=1):
    return mf16(acc(a,j), WF(wb,j), XB(xb,a)) if (role == 'G' or j < 2) else mf16(acc(a,j), XB(xb,a), WF(wb,j))
def grp(role, buf, a): return [mm(role, buf, a, j, buf) for j in range(6)]
def spread(ms, fill, num, den):
    o = []; f = list(fill); nr = 0
    for i, m in enumerate(ms):
        o.append(m)
        k = ((i+1)*num)//den - (i*num)//den
        for _ in range(k):
            if f:
                x = f.pop(0)
                if x.startswith("ds_read"):
                    nr += 1
                    if nr == 13: o.append("s_waitcnt lgkmcnt(6)")
                o.append(x)
    assert not f
    return o
def mainloop(role, lastord, tailfill):
    lp, ex = f"L_ML{role}", f"L_MX{role}"
    BP = OPT["bpos"]
    allm = lambda buf: [m for a in range(6) for m in grp(role, buf, a)]
    def ordm(buf):
        o = OPT["mord"]
        if o == 0: idx = [(a, j) for a in range(6) for j in range(6)]
        elif o == 1: idx = [(a, j) for j in range(6) for a in range(6)]
        elif o == 2: idx = [(a, (j if a % 2 == 0 else 5-j)) for a in range(6) for j in range(6)]
        elif o == 3: idx = [((a if j % 2 == 0 else 5-a), j) for j in range(6) for a in range(6)]
        elif o == 4: idx = [(i, (i+d) % 6) for d in range(6) for i in range(6)]
        return [mm(role, buf, a, j, buf) + ('\ns_nop 7' if OPT['slow'] and n_ % OPT['slow'] == 0 else '') for n_, (a, j) in enumerate(idx)]
    r0 = reads(role, 0); E(r0[:12]); A("s_waitcnt lgkmcnt(6)"); E(r0[12:])
    A.label(lp)
    A("s_waitcnt lgkmcnt(0)")
    sal = f"""s_add_u32 s78, s78, 1
s_cmp_eq_u32 s78, 3
s_cselect_b32 s86, {-2*SLOT & 0xffffffff}, s79
s_cselect_b32 s78, 0, s78
s_add_u32 s83, s83, 1
s_cmp_eq_u32 s83, 8""".split("\n") + [f"v_add_u32 v{r}, s86, v{r}" for r in (2, 4, 5, 3)]
    E(spread(ordm(0), reads(role, 1) + sal, OPT["rgap"]+2, OPT["rgap"]+3))
    A("s_waitcnt lgkmcnt(0)")
    E(allm(1)[:BP])
    A(f"s_barrier\ns_cbranch_scc1 {ex}")
    assert BP == 0
    E(spread(ordm(1), reads(role, 0), OPT["rgap"], 4))
    A(f"s_branch {lp}")
    A.label(ex)
    pre = ["s_waitcnt vmcnt(0)", f"v_and_b32 v2, 15, v0",
           f"s_mul_i32 s86, s13, {96*16}", f"s_add_u32 s86, s86, {RS}",
           f"v_lshl_add_u32 v3, v2, 4, s86", "v_lshrrev_b32 v5, 4, v0",
           f"s_mul_i32 s86, s14, 384", f"s_add_u32 s86, s86, {CF}",
           f"v_lshl_add_u32 v4, v5, 4, s86", f"v_lshl_add_u32 v2, v2, 2, s86"]
    rd = [f"ds_read_b128 {v(CB+4*a,4)}, v3 offset:{256*a}" for a in range(6)]
    if role == 'G': rd += [f"ds_read_b128 {v(WF(0,j),4)}, v4 offset:{64*j}" for j in range(6)]
    else:
        rd += [f"ds_read_b128 {v(WF(0,j),4)}, v4 offset:{64*j}" for j in range(2)]
        rd += [f"ds_read_b32 v{72+j}, v2 offset:{128+64*j}" for j in range(4)]
        rd += [f"s_mul_i32 s86, s13, {96*4}", f"s_add_u32 s86, s86, {RR}", "v_lshl_add_u32 v5, v5, 4, s86"]
    last = [mm(role, 1, a, j, 1) for a, j in lastord]
    E(interleave(last[:18], pre + rd, 2))
    A("s_waitcnt lgkmcnt(0)")
    E(interleave(last[18:], tailfill, 2))

def flagstore(kind):
    m = (1 << (8*OPT["nrep"])) - 1
    A(f"s_add_u32 s86, s15, {kind << 20}\ns_mov_b64 exec, {hex(m) if m < (1<<32) else -1}\nbuffer_store_dwordx4 v[36:39], v6, {WS}, s86 offen sc1\ns_mov_b64 exec, -1")
def gsig(pos):
    if OPT["gate"] and OPT["gpos"] == pos:
        A(f"v_mov_b32 v2, {LF+32}\nv_mov_b32 v3, 1\ns_mov_b64 exec, 1\nds_add_u32 v2, v3\ns_mov_b64 exec, -1")
def publish(staged):
    if staged:
        A("s_bitcmp1_b32 s11, 2\ns_cbranch_scc1 L_PFULL\ns_waitcnt vmcnt(1)\nL_PFULL:")
        A("s_waitcnt vmcnt(3)"); flagstore(1); gsig(1)
        A("s_waitcnt vmcnt(1)"); flagstore(2); gsig(2)
    else:
        A("s_waitcnt vmcnt(0)"); flagstore(2)
    if OPT["ydelay"] >= 0:
        A(f"s_lshl_b32 s86, s4, 2\ns_add_u32 s86, s86, {LF+16}\nv_mov_b32 v2, s86\nv_mov_b32 v3, 1\nds_write_b32 v2, v3")
C1 = -2.0*0.7978845608028654*1.4426950408889634
cst = []
for a in range(6):
    b = CB+4*a
    cst += [f"v_mul_f32 v{b+3}, {hx(C1)}, v{b+1}", f"v_mul_f32 v{b+1}, v{b+1}, v{b+1}",
            f"v_mul_f32 v{b+1}, {hx(0.044715)}, v{b+1}", f"v_mul_f32 v{b+1}, v{b+1}, v{b+3}"]
mainloop('G', [(a, j) for j in (0, 3, 1, 4, 2, 5) for a in range(6)], cst)
A("s_nop 3")
stamp((3, 1), (1, 3))
tiles = [(u, a) for u in range(3) for a in range(3)]
def tregs(n):
    u, a = tiles[n]
    return (88 + 8*(n & 1), 104 + 4*(n & 1), [acc(2*a + j//2, u) + 2*(j & 1) for j in range(4)],
            [acc(2*a + j//2, u+3) + 2*(j & 1) for j in range(4)], [CB+4*(2*a + j//2) for j in range(4)])
def stA(n):
    u, a = tiles[n]; T, P, gp, up, cb = tregs(n)
    return ([f"v_pk_fma_f32 {v(gp[j],2)}, {v(WF(0,u)+2*(j&1),2)}, {v(cb[j],2)}, {v(gp[j],2)} op_sel_hi:[1,0,1]" for j in range(4)]
          + [f"v_pk_mul_f32 {v(T+2*j,2)}, {v(gp[j],2)}, {v(gp[j],2)}" for j in range(4)]
          + [f"v_pk_fma_f32 {v(T+2*j,2)}, {v(T+2*j,2)}, {v(cb[j],2)}, {v(cb[j]+2,2)} op_sel:[0,1,1] op_sel_hi:[1,1,1]" for j in range(4)]
          + [f"v_pk_mul_f32 {v(T+2*j,2)}, {v(T+2*j,2)}, {v(gp[j],2)}" for j in range(4)])
E(stA(0))
for n, (u, a) in enumerate(tiles):
    T, P, gp, up, cb = tregs(n)
    E(interleave([f"v_exp_f32 v{T+j}, v{T+j}" for j in range(8)],
        [f"v_pk_fma_f32 {v(up[j],2)}, {v(WF(0,u+3)+2*(j&1),2)}, {v(cb[j],2)}, {v(up[j],2)} op_sel_hi:[1,0,1]" for j in range(4)]
      + [f"v_pk_mul_f32 {v(gp[j],2)}, {v(gp[j],2)}, {v(up[j],2)}" for j in range(4)], 1))
    for j in range(4): A(f"v_pk_fma_f32 {v(T+2*j,2)}, {v(T+2*j,2)}, {v(cb[j]+2,2)}, {v(cb[j]+2,2)} op_sel_hi:[1,0,0]")
    nxt = stA(n+1) if n+1 < 9 else []
    E(interleave([f"v_rcp_f32 v{T+j}, v{T+j}" for j in range(8)], nxt[:12], 2))
    for j in range(4): A(f"v_pk_mul_f32 {v(T+2*j,2)}, {v(T+2*j,2)}, {v(gp[j],2)}")
    for j in (0, 2, 1, 3): A(f"v_cvt_pk_bf16_f32 v{P+j}, v{T+2*j}, v{T+2*j+1}")
    E(nxt[12:14])
    sk = L("GS")
    A(f"s_bitcmp1_b32 s11, {3*a+u}\nv_permlane16_swap_b32 v{P}, v{P+2}\nv_permlane16_swap_b32 v{P+1}, v{P+3}\ns_cbranch_scc0 {sk}")
    A(f"buffer_store_dwordx4 {v(P,4)}, v1, {H}, s{80+u} offen offset:{1024*a} sc1")
    A.label(sk)
    E(nxt[14:])
    if n == 2: stamp((2, 3))
    if n == 5 and STG:
        A("s_bitcmp1_b32 s11, 2\ns_cbranch_scc1 L_F0\ns_waitcnt vmcnt(1)\nL_F0:\ns_waitcnt vmcnt(3)"); flagstore(0); gsig(0)
stamp((4, 1), (4, 3))
A("L_GPUB:")
publish(STG)
A("s_branch L_SPART")
if OPT["dead"]:
    A("L_DEAD:\ns_barrier\ns_add_u32 s83, s83, 1\ns_cmp_lt_u32 s83, 8\ns_cbranch_scc1 L_DEAD")
    if STG: flagstore(0); gsig(0)
    A("s_branch L_GPUB")

A("L_QKV:")
RV, MV, ONE, G = 88, 8, 32, 8
cst = f"""s_mov_b32 s70, {hx(1.4426950408889634)}
s_mov_b32 s71, {hx(1.4426950408889634)}
s_mov_b32 s72, {hx(1e-6)}
s_mov_b32 s73, {hx(1e-6)}
v_and_b32 v3, 16, v0
v_cmp_ne_u32 s[74:75], 0, v3
s_sub_u32 s87, s7, 15
s_lshl_b32 s87, s87, 1
s_add_u32 s87, s87, s14
s_mul_i32 s77, s87, {24*3072}
s_add_u32 s77, s77, {WS_KV}
s_lshl_b32 s86, s6, 1
s_add_u32 s86, s86, s13
s_mul_i32 s86, s86, 3072
s_add_u32 s86, s86, s77
v_lshl_add_u32 v7, v0, 4, s86""".split("\n") + [f"v_mov_b32 v{ONE+j}, 0x3f803f80" for j in range(4)]
lo = [(a, j) for j in (5, 4) for a in range(6)] + [(a, j) for a in (5, 4, 3, 2, 1, 0) for j in (3, 2, 1, 0)]
cst = cst[:6] + [f"ds_read_b128 {v(RV+4*a,4)}, v5 offset:{64*a}" for a in (4, 5)] + [f"ds_read_b128 {v(MV+4*a,4)}, v5 offset:{MR-RR+64*a}" for a in (4, 5)] + cst[6:]
mainloop('Q', lo, cst)
for a in (3, 2, 1, 0): A(f"ds_read_b128 {v(RV+4*a,4)}, v5 offset:{64*a}\nds_read_b128 {v(MV+4*a,4)}, v5 offset:{MR-RR+64*a}")
A("s_waitcnt lgkmcnt(8)")
stamp((3, 1))
def phi2(pairs, T, dst):
    for j in range(8): A(f"v_pk_mul_f32 {v(T[j],2)}, {v(pairs[j],2)}, s[70:71]")
    for j in range(16):
        r = pairs[j//2] + (j & 1); t_ = T[j//2] + (j & 1)
        A(f"v_exp_f32 v{t_}, v{t_} clamp\nv_max_f32 v{r}, s72, v{r}")
    for j in range(8): A(f"v_pk_add_f32 {v(T[j],2)}, {v(T[j],2)}, {v(pairs[j],2)}")
    for j in range(8): A(f"v_cvt_pk_bf16_f32 v{dst[j]}, v{T[j]}, v{T[j]+1}")
prs = lambda a, j0: [acc(2*a + (j % 4)//2, j0 + j//4) + 2*(j & 1) for j in range(8)]
KVa, KVb, Za, Zb = acc(5,2), acc(5,3), acc(5,4), acc(5,5)
for a in (2, 1, 0):
    if a == 1: A("s_bitcmp1_b32 s11, 0\ns_cbranch_scc0 L_KVS\ns_waitcnt lgkmcnt(0)")
    off = lambda j: 4*(2*a + (j % 4)//2) + 2*(j & 1)
    pv = prs(a, 4); pk = prs(a, 2)
    PV = acc(2*a, 4); PK = acc(2*a, 2)
    TL = [acc(2*a+1, 4) + 2*j for j in range(4)] + [80 + 2*j for j in range(4)]
    for j in range(8): A(f"v_pk_mul_f32 {v(pv[j],2)}, {v(pv[j],2)}, {v(RV+off(j),2)}")
    for j in range(8): A(f"v_pk_fma_f32 {v(pk[j],2)}, {v(pk[j],2)}, {v(RV+off(j),2)}, s[72:73]")
    for j in range(8): A(f"v_pk_fma_f32 {v(pv[j],2)}, {v(MV+off(j),2)}, v[74:75], {v(pv[j],2)} op_sel:[0,{j//4},0] op_sel_hi:[1,{j//4},1]")
    for j in range(8): A(f"v_pk_fma_f32 {v(pk[j],2)}, {v(MV+off(j),2)}, v[72:73], {v(pk[j],2)} op_sel:[0,{j//4},0] op_sel_hi:[1,{j//4},1]")
    for j in range(8): A(f"v_cvt_pk_bf16_f32 v{PV+j}, v{pv[j]}, v{pv[j]+1}")
    phi2(pk, TL, [PK+j for j in range(8)])
    c0 = 0 if a == 2 else None
    A(mf16(KVa, PK, PV, c0)); A(mf16(KVb, PK+4, PV+4, c0)); A(mf16(Za, ONE, PK, c0)); A(mf16(Zb, ONE, PK+4, c0))
    if a: A("s_nop 3")
A("L_KVS:\ns_waitcnt lgkmcnt(0)")
for j in (3, 7, 11): A(f"v_mov_b32 v{G+j}, {TAG}")
A("s_nop 4")
for j in range(4): A(f"v_permlane16_swap_b32 v{KVa+j}, v{KVb+j}")
for j in range(8): A(f"v_mov_b32 v{G+4*(j//3)+j%3}, v{KVa+j}")
A(f"v_cndmask_b32 v{G+10}, v{Za}, v{Zb}, s[74:75]")
for g_ in range(3): A(f"buffer_store_dwordx4 {v(G+4*g_,4)}, v7, {WS}, 0 offen offset:{1024*g_} sc1")
if OPT["hints"]: flagstore(0)
stamp((4, 1), (1, 3))
for a in (2, 1, 0):
    if a == 1: A("s_bitcmp1_b32 s11, 0\ns_cbranch_scc0 L_PQS")
    D_ = 88 + 8*a
    pq_ = prs(a, 0); cbq = lambda j: v(CB+4*(2*a + (j % 4)//2), 2)
    for j in range(8): A(f"v_pk_fma_f32 {v(pq_[j],2)}, {v(WF(0,j//4)+2*(j&1),2)}, {cbq(j)}, {v(pq_[j],2)} op_sel_hi:[1,0,1]")
    for j in range(8): A(f"v_pk_fma_f32 {v(pq_[j],2)}, {v(pq_[j],2)}, {cbq(j)}, s[72:73] op_sel:[0,1,0] op_sel_hi:[1,1,1]")
    phi2(pq_, [72+2*j for j in range(8)], [D_+j for j in range(8)])
    for hd in range(2):
        A(f"v_permlane16_swap_b32 v{D_+4*hd}, v{D_+4*hd+2}\nv_permlane16_swap_b32 v{D_+4*hd+1}, v{D_+4*hd+3}")
    A(f"buffer_store_dwordx4 {v(D_,4)}, v1, {H}, 0 offen offset:{1024*a} sc1")
    A(f"buffer_store_dwordx4 {v(D_+4,4)}, v1, {H}, s81 offen offset:{1024*a} sc1")
A("L_PQS:")
stamp((2, 3))
gsig(0); gsig(1); gsig(2); gsig(3); gsig(4)
if not OPT["redearly"]: publish(False)
if not OPT["lred"]:
    A("s_and_b32 s86, s6, 9\ns_add_u32 s86, s86, 2\ns_cmp_eq_u32 s86, s4\ns_cbranch_scc0 " + ("L_QPUB" if OPT["redearly"] else "L_SPART"))
    reducer(lambda p: 128+12*p, 7, 9, 8, "s[74:75]", 70, "s77")
    if OPT["redearly"]:
        A("s_branch L_SPART\nL_QPUB:"); publish(False)

A("L_SPART:")
if OPT["sprio"] != OPT["prio"]: A(f"s_setprio {OPT['sprio']}")
stamp((5, 1), (3, 3))
xres_addr(1, 8); xres_load()
w2addr(4, 8, False)
A(f"""s_lshl_b32 s86, s4, 3
s_add_u32 s86, s86, 86
s_lshl_b32 s86, s86, 16
s_lshl_b32 s87, s84, 11
s_add_u32 s86, s86, s87
v_lshl_add_u32 v2, v0, 4, s86
s_mul_i32 s88, s84, 43
s_lshr_b32 s88, s88, 7
s_mul_i32 s88, s88, 23
s_lshl_b32 s87, s4, 1
s_add_u32 s88, s88, s87
s_add_u32 s88, s88, 15
s_lshl_b32 s88, s88, 12
s_add_u32 s88, s88, {WS_FLAG}
v_and_b32 v3, 7, v0
v_lshl_add_u32 v3, v3, 10, s88
s_lshl_b32 s74, s4, 13
s_add_u32 s74, s74, {WS_F}
v_lshl_add_u32 v8, v0, 4, s74
s_lshl_b32 s86, s4, 2
s_add_u32 s86, s86, {LF}
v_mov_b32 v10, s86
s_mov_b32 s72, {hx(1e-6)}
s_movk_i32 s73, 4096
s_mov_b32 s89, 0""")
if OPT["warm"]:
    assert OPT["sd"] == 8
    A("s_mov_b32 s75, 1\ns_mov_b64 exec, 0\ns_branch L_PIPE\nL_WBACK:\ns_mov_b32 s75, 0\ns_mov_b64 exec, -1")
stamp((1, 4))
if OPT['sdelay']: A(f"s_sleep {OPT['sdelay']}")
if OPT["comb"]:
    A("v_add_u32 v3, 48, v10"); spin_lds(3, 9)
else: spin_flag(3, 9, 8, 2)
note("s88", 4)
stamp((6, 1), (2, 4))
SD = OPT["sd"]
def pqload(k):
    return [f"s_mov_b32 s86, {k*65536}",
            f"buffer_load_dwordx4 {v(16+8*k,4)}, v2, {H}, s86 offen sc1",
            f"buffer_load_dwordx4 {v(20+8*k,4)}, v2, {H}, s86 offen offset:1024 sc1"]
def floads():
    for k in range(8):
        A(f"buffer_load_dwordx4 {v(80+4*k,4)}, v8, {WS}, " + ("0" if k < 4 else "s73") + f" offen offset:{1024*(k%4)} sc1")
if OPT["ffirst"]: floads()
for k in range(SD):
    if OPT["sdep"]: A(f"s_waitcnt vmcnt({OPT['sdep']-2})")
    E(pqload(k))
if OPT["ffirst"]: A(f"s_waitcnt vmcnt({2*SD})\ns_branch L_FC")
if OPT["hints"]:
    A(f"s_lshl_b32 s86, s4, 14\ns_add_u32 s86, s86, {WS_FF}\nv_lshl_add_u32 v9, v0, 10, s86")
    spin_flag(9, 11, 16)
else: A(f"s_waitcnt vmcnt({OPT['fafter']})")
A("s_branch L_FL\nL_FQ:\ns_sleep 8\nL_FL:")
floads()
A("s_waitcnt vmcnt(0)\nL_FC:\ns_add_u32 s89, s89, 1")
E(vmax(112, [80+4*k for k in range(8)]))
A(f"""v_cmp_eq_u32 vcc, -1, v112
s_cmp_gt_u32 s89, {OPT['spin']}
s_cbranch_scc1 L_FPD
s_cbranch_vccnz L_FQ
L_FPD:""")
note("s89", 4); note("s89", 1)
spin_lds(10, 9)
stamp((6, 3), (3, 4))
woloc = lambda k: (1, k) if k < 6 else (2, k-2)
def Om(k): return [mfma(128+32*(k&1)+16*r, 80+4*k, 16+8*k+4*r, 0) for r in range(2)]
def Vv(k):
    o = []
    D = [128+32*(k&1)+16*r for r in range(2)]
    nd = [((d, d+8) if k % 2 == 0 else (d+8, d)) for d in D]
    for num, den in nd: o.append(f"v_add_f32 v{den}, s72, v{den}")
    for num, den in nd: o.append(f"v_rcp_f32 v{den}, v{den}")
    for r, (num, den) in enumerate(nd):
        if OPT["spk"]:
            for j in range(4): o.append(f"v_pk_mul_f32 {v(num+2*j,2)}, {v(num+2*j,2)}, {v(den,2)} op_sel_hi:[1,0]")
        else:
            for j in range(8): o.append(f"v_mul_f32 v{num+j}, v{num+j}, v{den}")
        for j in range(4): o.append(f"v_cvt_pk_bf16_f32 v{16+8*k+4*r+j}, v{num+2*j}, v{num+2*j+1}")
    return o
def Sm(k): return [mfmaH(192+32*r+16*c, 112+8*(k&1)+4*c, 16+8*k+4*r, 0 if k <= OPT['h16'] else None, k & 1) for r in range(2) for c in range(2)]
issued = [SD]
def need(k):
    o = [f"s_waitcnt vmcnt({2*(issued[0]-1-k)})"]
    more = []
    if issued[0] < 8: more = pqload(issued[0]); issued[0] += 1
    return o, more
A('L_PIPE:')
E(w2read(112, *woloc(0), 4, False))
for k in (0, 1):
    w_, m_ = need(k); E(w_ + Om(k) + m_)
E(Vv(0))
for k in range(8):
    A("s_waitcnt lgkmcnt(0)")
    fill = (w2read(112+8*((k+1)&1), *woloc(k+1), 4, False) + Vv(k+1)) if k+1 < 8 else []
    if k == 7:
        fill = cap(lambda: (wraddr(80, False), rdaddr(4, False, 1, 88), A(f"s_lshl_b32 s86, s4, 11\ns_add_u32 s86, s86, {GB}\nv_lshl_add_u32 v9, v0, 4, s86"),
            [A(f"v_lshlrev_b32 v{112+2*j}, 16, v{12+j}\nv_and_b32 v{113+2*j}, 0xffff0000, v{12+j}") for j in range(4)]))
    NF = 16 if OPT['spk'] else 20
    if k == 7: NF = 28
    E(interleave(Sm(k), fill[:NF], NF//4))
    if k+2 < 8:
        w_, m_ = need(k+2); E(w_); E(interleave(Om(k+2), fill[NF:] + m_, 6))
    else: E(fill[NF:])
    if k == 3: stamp((4, 4))
if OPT["warm"] == 1: A("s_cmp_eq_u32 s75, 1\ns_cbranch_scc1 L_WBACK")
stamp((7, 1), (5, 4))
final(False)
stamp((6, 4))
A("s_barrier\nds_read_b128 v[88:91], v9\nds_read_b128 v[92:95], v9 offset:1024\ns_branch L_FIN2")

A("L_FINAL:")
stamp((6, 4))
A("s_barrier")
A("L_FIN2:")
stamp((7, 3), (7, 4))
rd4(48, 4)
A("s_waitcnt lgkmcnt(0)")
sum4(48)
for j in range(4): A(f"v_pk_fma_f32 {v(48+2*j,2)}, {v(48+2*j,2)}, {v(88+2*j,2)}, {v(112+2*j,2)}")
for j in range(4): A(f"v_cvt_pk_bf16_f32 v{24+j}, v{48+2*j}, v{49+2*j}")
if OPT["warm"] == 2: A("s_cbranch_execz L_WBACK")
A(f"""buffer_store_dwordx4 v[24:27], v1, {OUT}, 0 offen {['', 'sc1', 'nt', 'sc0 sc1'][OPT['osc']]}
s_add_u32 s86, s2, s3
s_cmp_eq_u32 s86, 0
s_cbranch_scc0 L_NOBUMP
v_mov_b32 v2, 0
v_mov_b32 v3, {TAG}
buffer_store_dword v3, v2, {WS}, 0 offen sc1
L_NOBUMP:""")
if OPT["stamps"]:
    A("s_waitcnt vmcnt(0)")
    stamp((8, 0))
    A(f"""s_memrealtime s[68:69]
s_waitcnt lgkmcnt(0)
s_mov_b32 s101, s68""")
    if OPT["diag"]:
        A(f"""s_cmp_lg_u32 s2, 64
s_cbranch_scc1 L_END
s_cmp_lg_u32 s3, {OPT['dwave']}
s_cbranch_scc1 L_END
s_sub_u32 s86, s{92+OPT['diag']}, s34
s_lshl_b32 s86, s86, 2
s_min_u32 s86, s86, 20000
L_DSPIN:
s_memrealtime s[68:69]
s_waitcnt lgkmcnt(0)
s_sub_u32 s87, s68, s101
s_cmp_lt_u32 s87, s86
s_cbranch_scc1 L_DSPIN
s_endpgm""")
    A(f"""s_lshl_b32 s86, s2, 3
s_add_u32 s86, s86, s3
s_lshl_b32 s86, s86, 6
s_add_u32 s86, s86, {WS_DBG}
v_mov_b32 v2, s86""")
    for i in range(10): A(f"v_mov_b32 v3, s{92+i}\nbuffer_store_dword v3, v2, {WS}, 0 offen offset:{4*i}")
    A(f"v_mov_b32 v3, s34\nbuffer_store_dword v3, v2, {WS}, 0 offen offset:40")
    A(f"v_mov_b32 v3, s35\nbuffer_store_dword v3, v2, {WS}, 0 offen offset:44")
A("L_END:\ns_endpgm")

lines, errs = pad(A.lines)
for e in errs: print("HAZARD:", e, file=sys.stderr)
hdr = open("cdna_kernels/%s.s.ref" % NAME).read().split("; Override launch")[0]
out = hdr + f"""; Fused single-launch kernel (generated by my own generator script gen/gen.py).
; @launch grid=(256,1,1) block=(512,1,1) lds={LDS}
.amdgcn_target "amdgcn-amd-amdhsa--gfx950"
.text
.globl {NAME}_kernel
.p2align 8
.type {NAME}_kernel,@function
{NAME}_kernel:
""" + render(lines) + f""".section .rodata,"a"
.p2align 6
.amdhsa_kernel {NAME}_kernel
  .amdhsa_next_free_vgpr 256
  .amdhsa_next_free_sgpr 102
  .amdhsa_accum_offset 256
  .amdhsa_group_segment_fixed_size 0
  .amdhsa_kernarg_size 80
  .amdhsa_user_sgpr_count 2
  .amdhsa_user_sgpr_kernarg_segment_ptr 1
  .amdhsa_system_sgpr_workgroup_id_x 1
.end_amdhsa_kernel
"""
open(sys.argv[1], "w").write(out)
```

```python
import sys, struct
from asmlib import *
NAME = "recurrent_scan__linear_attn_block__glu_gated_geglu__prompt"
OPT = dict(stamps=0, rot=2, prio=1, pfcode=1, spin=1<<17, thr=4, unthr=41, n7=1, ca=14, cb=22, h=7, mix=0, sub=1,
           psleep=2, ydep=4, sdep=0, w2late=4, p2map=1, stage=1, sprio=1, ydelay=-1, sdelay=0, fdelay=0, rdelay=0, xlate=0, now2=0, sd=3, apoll=0, fgate=1, rt=1, zf=1, nr=0, r0=3, lred=0, prew=0, hints=0, comb=1, fafter=0, h16=0, gate=4, ffirst=1, warm=0, nodma=0, redearly=1, xz=1, gmix=0, qmix=0, qnop=0, bpos=0, rgap=3, spk=0, diag=0, dwave=4, nrep=2, nl=4, p1=2, p2=8, osc=0, gpos=1, c2=10, yprio=2, ydrop=22, ypost=0, mord=0, adapt=1, ypk=0, nb=3, pf2=-1, drot=0, xfirst=1, nostat=0, w1pf=-9, slow=0, dead=1, qg=0, rq=1, tfrom=6, nc=0, thr2=4, nraw=6, krot=1)
for a in sys.argv[2:]:
    k, v_ = a.split("="); assert k in OPT, k; OPT[k] = int(v_, 0)
def f2u(x): return struct.unpack("<I", struct.pack("<f", x))[0]
def hx(x): return "0x%08x" % f2u(x)

SLOT = 49152; XW = 24576; UPOFF = 12288; MISC = 3*SLOT; LDS = 163840
RS = MISC; RR = MISC+3072; CF = MISC+3840; MR = MISC+4608; LF = MISC+5376; GB = MISC+5632
Q = 12288
WS_RS = 0x10000; WS_CS = 0x20000; WS_FLAG = 0x300000; WS_FF = 0x60000; WS_DBG = 0x80000; WS_F = 0xC0000; WS_KV = 0x100000; WS_H = 0x800000
X="s[36:39]"; W="s[40:43]"; WS="s[44:47]"; H="s[48:51]"; WD="s[56:59]"; WO="s[60:63]"; OUT="s[64:67]"
TAG="s10"
def v(b, n=1): return f"v{b}" if n == 1 else f"v[{b}:{b+n-1}]"
def mfma(d, a, b, c=None):
    return f"v_mfma_f32_32x32x16_bf16 {v(d,16)}, {v(a,4)}, {v(b,4)}, " + ("0" if c == 0 else v(d,16))
def mfmaH(d, a, b, c, alt):
    if not OPT["h16"]: return mfma(d, a, b, c)
    return mf16(d+8*alt, a, b, c) + "\n" + mf16(d+8*alt+4, a ^ 4, b, c)
def mf16(d, a, b, c=None):
    return f"v_mfma_f32_16x16x32_bf16 {v(d,4)}, {v(a,4)}, {v(b,4)}, " + ("0" if c == 0 else v(d,4))
def bc(r): return v(r & ~1, 2), r & 1
_lab = [0]
def L(p="L"):
    _lab[0] += 1; return f"{p}_{_lab[0]}"
A = Asm()
def E(lst):
    for t in lst: A(t)
def cap(fn):
    n = len(A.lines); fn(); o = [t for _, t in A.lines[n:]]; del A.lines[n:]; return o
def stamp(*pairs):
    for i, st in pairs:
        if OPT["stamps"] == st or (OPT["stamps"] and st == 0):
            A(f"{'s_memrealtime' if (OPT['rt'] and i != 8) else 's_memtime'} s[68:69]\ns_waitcnt lgkmcnt(0)\ns_mov_b32 s{92+i}, s68")
def note(reg, st):
    if OPT["stamps"] == st: A(f"s_mov_b32 s35, {reg}")
def srd(name, lo, size, add=0):
    b = int(name[2:4])
    if add: A(f"s_add_u32 s{b}, s{lo}, {add}\ns_addc_u32 s{b+1}, s{lo+1}, 0")
    else: A(f"s_mov_b32 s{b}, s{lo}\ns_mov_b32 s{b+1}, s{lo+1}")
    A(f"s_mov_b32 s{b+2}, {size}\ns_mov_b32 s{b+3}, 0x20000")
def spin_flag(vaddr, vt, nl, kind=None, first=0):
    l1, l2 = L("POLL"), L("POLLD")
    A(f"""s_mov_b32 s88, {first}
s_mov_b64 exec, {hex((1<<nl)-1)}
{l1}:
s_and_b32 s87, s88, {OPT['nrep']-1}
s_lshl_b32 s87, s87, 7""")
    if kind: A(f"s_add_u32 s87, s87, {kind << 20}")
    A(f"""buffer_load_dword {v(vt)}, {v(vaddr)}, {WS}, s87 offen sc1
s_add_u32 s88, s88, 1
s_waitcnt vmcnt(0)
v_cmp_ne_u32 vcc, {TAG}, {v(vt)}
s_cmp_gt_u32 s88, {OPT['spin']}
s_cbranch_scc1 {l2}
s_cbranch_vccz {l2}
s_sleep {OPT['psleep']}
s_branch {l1}
{l2}:
s_mov_b64 exec, -1""")
def spin_lds(vaddr, vt, need=1):
    l1, l2 = L("LP"), L("LPD")
    A(f"""s_mov_b32 s86, 0
{l1}:
ds_read_b32 {v(vt)}, {v(vaddr)}
s_add_u32 s86, s86, 1
s_waitcnt lgkmcnt(0)
v_cmp_gt_u32 vcc, {need}, {v(vt)}
s_cmp_gt_u32 s86, {OPT['spin']*8}
s_cbranch_scc1 {l2}
s_cbranch_vccz {l2}
s_sleep 1
s_branch {l1}
{l2}:""")
def vmax(dst, regs_):
    o = []; r = list(regs_)
    if len(r) == 2: return [f"v_max_u32 v{dst}, v{r[0]}, v{r[1]}"]
    o.append(f"v_max3_u32 v{dst}, v{r[0]}, v{r[1]}, v{r[2]}"); r = r[3:]
    while r:
        if len(r) >= 2: o.append(f"v_max3_u32 v{dst}, v{dst}, v{r[0]}, v{r[1]}"); r = r[2:]
        else: o.append(f"v_max_u32 v{dst}, v{dst}, v{r[0]}"); r = r[1:]
    return o
def tagcheck(dst, tmp, regs_):
    for n, r in enumerate(regs_): A(f"v_xor_b32 v{dst if n == 0 else tmp+n}, {TAG}, v{r}")
    n = 1
    while n < len(regs_):
        if n+1 < len(regs_): A(f"v_or3_b32 v{dst}, v{dst}, v{tmp+n}, v{tmp+n+1}"); n += 2
        else: A(f"v_or_b32 v{dst}, v{dst}, v{tmp+n}"); n += 1

A(f"""s_cmp_ge_u32 s2, 256
s_cbranch_scc1 L_END
s_load_dwordx16 s[16:31], s[0:1], 0
s_load_dwordx2 s[32:33], s[0:1], 72""")
if OPT["stamps"]: A("s_memrealtime s[34:35]\ns_memtime s[68:69]")
A(f"""v_lshrrev_b32 v1, 6, v0
v_and_b32 v0, 63, v0
v_readfirstlane_b32 s3, v1
s_and_b32 s5, s2, 7
s_lshr_b32 s86, s2, 3""")
if OPT["p2map"] == 0:
    A("s_lshl_b32 s84, s5, 2\ns_lshr_b32 s87, s86, 3\ns_add_u32 s84, s84, s87\ns_and_b32 s85, s86, 7")
else:
    A("""s_lshr_b32 s84, s5, 1
s_lshl_b32 s84, s84, 3
s_lshr_b32 s87, s86, 2
s_add_u32 s84, s84, s87
s_and_b32 s85, s5, 1
s_lshl_b32 s85, s85, 2
s_and_b32 s87, s86, 3
s_add_u32 s85, s85, s87""")
A(f"""s_lshl_b32 s5, s5, 5
s_add_u32 s5, s5, s86
s_and_b32 s4, s3, 3
s_mov_b32 s12, 0
s_cmp_lt_u32 s5, 138
s_cbranch_scc0 L_BOT
s_mul_i32 s7, s5, 171
s_lshr_b32 s7, s7, 10
s_mul_i32 s86, s7, 6
s_sub_u32 s6, s5, s86
s_branch L_IDS
L_BOT:
s_cmp_ge_u32 s5, 253
s_cselect_b32 s12, 1, 0
s_cselect_b32 s86, 5, 0
s_sub_u32 s86, s5, s86
s_sub_u32 s86, s86, 138
s_mul_i32 s87, s86, 205
s_lshr_b32 s87, s87, 10
s_sub_u32 s7, 22, s87
s_mul_i32 s87, s87, 5
s_sub_u32 s6, s86, s87
s_add_u32 s6, s6, 6
L_IDS:
s_mov_b32 s90, s7""")
if OPT["mix"]:
    A("""s_mul_i32 s86, s7, 43
s_lshr_b32 s86, s86, 7
s_sub_u32 s87, s7, s86
s_lshl_b32 s88, s86, 1
s_sub_u32 s88, s87, s88
s_add_u32 s86, s86, 15
s_cmp_eq_u32 s7, 22
s_cselect_b32 s7, s86, s87
s_cmp_eq_u32 s88, 2
s_cselect_b32 s7, s86, s7""")
A(f"""s_mul_i32 s8, s6, 192
s_min_u32 s8, s8, 1856
s_mul_i32 s9, s7, 96
s_min_u32 s9, s9, 1280
s_cmp_lt_u32 s3, 4
s_cbranch_scc1 L_LOADER""")
def kwait():
    A("s_waitcnt lgkmcnt(0)\ns_load_dword s10, s[32:33], 0")
    if OPT["stamps"]: A("s_mov_b32 s92, s68")
    srd(X, 16, 2097152)
if OPT["prio"]: A(f"s_setprio {OPT['prio']}")
if OPT["pfcode"]:
    A(f"""s_getpc_b64 s[88:89]
L_PC:
s_sub_u32 s88, s88, L_PC-{NAME}_kernel
s_subb_u32 s89, s89, 0
s_lshr_b32 s86, s2, 3
s_lshl_b32 s86, s86, 3
s_lshl_b32 s87, s4, 1
s_add_u32 s86, s86, s87
v_and_b32 v3, 1, v0
v_add_u32 v3, s86, v3
v_lshlrev_b32 v3, 7, v3
v_min_u32 v3, L_END-{NAME}_kernel, v3
global_load_dword v47, v3, s[88:89]""")
A(f"""s_lshl_b32 s86, s5, 3
s_lshl_b32 s87, s4, 1
s_add_u32 s86, s86, s87
v_lshrrev_b32 v7, 5, v0
v_add_u32 v7, s86, v7
v_and_b32 v2, 31, v0
v_lshlrev_b32 v2, 4, v2
v_lshl_add_u32 v2, v7, 10, v2""")
kwait()
if not OPT["nostat"]: A(f"""buffer_load_dwordx4 v[8:11], v2, {X}, 0 offen
buffer_load_dwordx4 v[12:15], v2, {X}, 0 offen offset:512""")
stamp((1, 2))
A("s_branch L_COMPUTE\nL_LOADER:")

def w2addr(base, T, nat):
    a_, b_, c_, d_ = T, T+1, T+2, T+3
    A(f"""v_and_b32 v{a_}, 3, v0
v_bfe_u32 v{b_}, v0, 2, 2
v_bfe_u32 v{c_}, v0, 4, 1
v_lshrrev_b32 v{d_}, 5, v0
v_lshl_add_u32 v{d_}, v{d_}, {3 if nat else 2}, v{b_}
v_lshlrev_b32 v{d_}, 7, v{d_}
v_lshrrev_b32 v{b_}, 1, v{b_}
v_lshl_add_u32 v{c_}, v{b_}, 2, v{c_}
v_and_b32 v{b_}, 1, v{a_}
v_lshl_add_u32 v{c_}, v{b_}, 1, v{c_}
v_lshl_add_u32 v{d_}, v{c_}, 4, v{d_}
v_lshrrev_b32 v{a_}, 1, v{a_}
v_lshl_add_u32 v{d_}, v{a_}, 3, v{d_}
v_add_u32 v{base}, s76, v{d_}
v_xor_b32 v{d_}, 64, v{d_}
v_add_u32 v{base+1}, s76, v{d_}
v_add_u32 v{base+2}, {2*SLOT}, v{base}
v_add_u32 v{base+3}, {2*SLOT}, v{base+1}""")
def w2read(dst, slot, blk, ab, nat=True):
    o = []
    for c in range(2):
        for sec in range(2):
            ar = ab + c + (2 if slot == 2 else 0)
            off = (SLOT if slot == 1 else 0) + blk*2048 + sec*(512 if nat else 1024)
            o.append(f"ds_read_b64_tr_b16 {v(dst+4*c+2*sec,2)}, v{ar} offset:{off}")
    return o
def xres_addr(half, T):
    A(f"""s_lshl_b32 s86, s4, 4
s_lshl_b32 s87, s84, 6
s_add_u32 s86, s86, s87
s_add_u32 s86, s86, {8*half}
s_lshl_b32 s86, s86, 10
s_lshl_b32 s87, s85, 7
s_add_u32 s86, s86, s87
v_lshrrev_b32 v{T}, 3, v0
v_lshlrev_b32 v{T}, 10, v{T}
v_and_b32 v{T+1}, 7, v0
v_lshl_add_u32 v{T}, v{T+1}, 4, v{T}
v_add_u32 v1, s86, v{T}""")
def xres_load(late=0):
    if OPT["xlate"] == late: A(f"buffer_load_dwordx4 v[12:15], v1, {X}, 0 offen")
def p2setup():
    srd(WS, 32, 0x800000); srd(H, 32, 118*65536, WS_H); srd(WD, 28, 1376*1024); srd(WO, 20, 512*1024); srd(OUT, 30, 2097152)
    A(f"""v_lshrrev_b32 v24, 3, v0
v_lshlrev_b32 v24, 10, v24
v_and_b32 v25, 7, v0
v_bfe_u32 v26, v0, 4, 1
v_lshlrev_b32 v26, 2, v26
v_xor_b32 v25, v25, v26
v_lshl_add_u32 v24, v25, 4, v24
s_lshl_b32 s86, s85, 7
v_add_u32 v4, s86, v24
s_mul_i32 s87, s4, {3*16384}
v_add_u32 v2, s87, v4
s_add_u32 s87, s4, 84
s_lshl_b32 s87, s87, 14
v_add_u32 v3, s87, v4
s_lshl_b32 s87, s4, 17
v_add_u32 v4, s87, v4
s_mul_i32 s76, s4, {Q}
s_lshl_b32 s87, s84, 11
s_mul_i32 s86, s4, {3*65536}
s_add_u32 s86, s86, s87
v_lshl_add_u32 v6, v0, 4, s86
v_bfe_u32 v24, v0, 1, 3
v_lshlrev_b32 v24, 3, v24
s_lshr_b32 s86, s4, 1
s_lshl_b32 s86, s86, 2
s_and_b32 s90, s4, 1
s_add_u32 s86, s86, s90
v_add_u32 v24, s86, v24
v_min_u32 v24, 57, v24
v_cmp_eq_u32 vcc, 56, v24
v_cndmask_b32 v24, v24, 57, vcc
v_and_b32 v25, 1, v0
v_lshl_add_u32 v24, v25, 1, v24
s_lshl_b32 s86, s4, 3
s_add_u32 s86, s86, 44
v_add_u32 v25, s86, v0
v_cmp_lt_u32 vcc, 15, v0
v_cndmask_b32 v24, v24, v25, vcc
s_mul_i32 s86, s84, 43
s_lshr_b32 s86, s86, 7
s_mul_i32 s86, s86, {23*4096}
s_add_u32 s86, s86, {WS_FLAG}
v_lshl_add_u32 v5, v24, 10, s86
s_add_u32 s86, s4, 84
s_lshl_b32 s86, s86, 16
s_add_u32 s86, s86, s87
s_cmp_lt_u32 s4, 2
s_cselect_b32 s86, s86, 0x80000000
v_lshl_add_u32 v7, v0, 4, s86""")
    w2addr(8, 24, True); xres_addr(0, 24)
    A(f"s_waitcnt lgkmcnt(0)\ns_add_u32 {TAG}, {TAG}, 0x9E3779B9")
def wfrag_addr(dst, swc, T, lab):
    A(f"""v_and_b32 v{T}, 3, v0
v_bfe_u32 v{T+1}, v0, 2, 2
v_bfe_u32 v{T+2}, v0, 4, 1
s_cmp_ge_u32 s7, 15
s_cbranch_scc1 {lab}Q
v_lshrrev_b32 v{T+3}, 4, v0
v_lshl_add_u32 v{T+3}, v{T+3}, 3, v{T+1}
v_mul_u32_u24 v{T+3}, 192, v{T+3}
v_lshl_add_u32 v{T}, v{T}, 3, v{T+3}
v_add_u32 v{T}, {XW}, v{T}
s_mul_i32 s87, {swc}, 3
v_xor_b32 v{T+3}, s87, v{T+2}
v_lshl_add_u32 v{dst}, v{T+3}, 5, v{T}
s_add_u32 s87, s87, 1
v_xor_b32 v{T+3}, s87, v{T+2}
v_lshl_add_u32 v{dst+1}, v{T+3}, 5, v{T}
s_branch {lab}D
{lab}Q:
v_lshrrev_b32 v{T+3}, 5, v0
v_mul_u32_u24 v{T+3}, 3072, v{T+3}
v_lshl_add_u32 v{T+3}, v{T+1}, 7, v{T+3}
v_mul_u32_u24 v{T+4}, {UPOFF+32}, v{T+2}
v_lshrrev_b32 v{T+1}, 1, v{T+1}
v_xor_b32 v{T+1}, {swc}, v{T+1}
v_lshl_add_u32 v{T+4}, v{T+1}, 6, v{T+4}
v_lshl_add_u32 v{T}, v{T}, 3, v{T+3}
v_add_u32 v{T}, {XW}, v{T}
v_add_u32 v{dst}, v{T}, v{T+4}
v_xor_b32 v{dst+1}, 32, v{dst}
{lab}D:""")
def woff(role, s_, j, sec):
    if role == 'G':
        jj = j % 3
        return jj & 1, s_*6144 + sec*768 + (j//3)*UPOFF + (64 if jj == 2 else 0)
    return j & 1, s_*6144 + (j//2)*1024 + sec*512
def ksoff(kd): return 12*(kd % 7) + kd//7
S2R = [('o',6+k,2,4+k) for k in range(2)] + [('d',12+k,2,k) for k in range(4)]
S0R = [('d',16+k,0,k) for k in range(6)]
items = [('d',k,2,k) for k in range(6)] + [('d',6+k,2,k) for k in range(6)] + S2R + [('o',k,1,k) for k in range(6)] + S0R
N7 = OPT["n7"]
def rho8():
    if OPT["krot"]: A("s_add_u32 s75, s84, s85\ns_and_b32 s75, s75, 3\ns_lshl_b32 s75, s75, 15")
    else: A("s_mov_b32 s75, 0")
def ktable():
    if OPT["krot"]:
        A("""s_lshl1_add_u32 s86, s85, s84
s_mul_i32 s87, s86, 37
s_lshr_b32 s87, s87, 8
s_mul_i32 s87, s87, 7
s_sub_u32 s86, s86, s87""")
    else: A("s_mov_b32 s86, 0")
    A(f"s_mul_i32 s77, s86, {12*16384}")
    for i in range(1, 7):
        A(f"s_add_u32 s{77+i}, s{76+i}, {12*16384}\ns_cmp_eq_u32 s{77+i}, {84*16384}\ns_cselect_b32 s{77+i}, 0, s{77+i}")
    rho8()
def w2ops(kind, k, dst, thr=None):
    nm = kind + str(k)
    if kind == 'o': va, S_, so = 4, WO, f"s_xor_b32 s86, s75, {k*16384}"
    elif k < 21: va, S_, so = 2, WD, f"s_add_u32 s86, s{77 + k % 7}, {(k//7)*16384}"
    else: va, S_, so = 3, WD, "s_mov_b32 s86, 0"
    if isinstance(dst, tuple):
        pre = f"s_add_u32 m0, s76, {dst[0]*SLOT + dst[1]*2048}\n{so}\ns_add_u32 s87, s86, 7168"
        i1 = f"buffer_load_dwordx4 v{va}, {S_}, s86 offen lds"; i2 = f"buffer_load_dwordx4 v{va}, {S_}, s87 offen offset:1024 lds"
    else:
        pre = f"{so}\ns_add_u32 s87, s86, 8192"
        i1 = f"buffer_load_dwordx4 {v(dst,4)}, v{va}, {S_}, s86 offen"; i2 = f"buffer_load_dwordx4 {v(dst+4,4)}, v{va}, {S_}, s87 offen"
    tw = f"s_waitcnt vmcnt({thr})\n" if thr is not None else ""
    return [pre, f"VM {nm}a|{tw}{i1}", f"VM {nm}|{tw}{i2}"]
def w2item(n):
    for t in w2ops(items[n][0], items[n][1], items[n][2:]): A(t.split("|")[-1])

A(f"""s_cmp_ge_u32 s3, 2
s_cbranch_scc1 L_SIDE
s_add_u32 s79, s6, s90""")
R_ = OPT["drot"] or OPT["rot"]
A(f"s_and_b32 s79, s79, {R_-1}\ns_lshl_b32 s79, s79, { {1:0, 2:2, 4:1, 8:0}[R_] }")
A(f"""v_lshrrev_b32 v24, 3, v0
v_and_b32 v25, 7, v0
v_lshrrev_b32 v26, 4, v0
v_xor_b32 v27, v25, v26
s_mul_i32 s86, s4, 96
s_add_u32 s86, s86, s8
s_lshl_b32 s86, s86, 10
v_lshl_add_u32 v16, v24, 10, s86
v_lshl_add_u32 v16, v27, 4, v16
v_xor_b32 v17, 64, v16
v_add_u32 v18, {2*7168}, v16
v_add_u32 v19, {3*7168}, v17
v_add_u32 v17, 7168, v17
s_mul_i32 s74, s4, 12288
""")
XG = ["s70", "s71", "s72"]; WL = ["s52", "s53", "s54", "s55"]; WG = ["s73", "s77", "s14", "s15"]
sh = {2: 1, 4: 2, 8: 0, 1: 0}[R_]
if OPT["sub"]:
    A(f"""s_lshr_b32 s86, s90, {sh}
s_mul_i32 s87, s86, 43
s_lshr_b32 s87, s87, 7
s_mul_i32 s87, s87, 3
s_sub_u32 s86, s86, s87
""")
else:
    A("s_mov_b32 s86, 0")
A("""s_lshl_b32 s70, s86, 12
s_add_u32 s71, s70, 4096
s_cmp_eq_u32 s71, 12288
s_cselect_b32 s71, 0, s71
s_add_u32 s72, s70, s71
s_sub_u32 s72, 12288, s72""")
XN = ["s11", "s13", "s91"]
A(f"s_lshl_b32 s86, s4, 4\ns_add_u32 s86, s86, s6\ns_cmp_eq_u32 s86, 10\ns_cselect_b32 s88, {8192 if OPT['xz'] else 0}, 0\ns_cmp_eq_u32 s12, 1\ns_cselect_b32 s88, {65536 if OPT['xz'] else 0}, s88")
for g in range(3): A(f"s_cmp_lt_u32 {XG[g]}, s88\ns_cselect_b32 {XN[g]}, 0, 2097152")
A("s_lshl_b32 s80, s79, 7\ns_mov_b32 s88, s74")
kwait()
stamp((1, 2))
def issue_head():
    A(f"""s_lshl_b32 s80, s79, 7
s_mul_i32 s81, s79, s82
s_lshl_b32 s81, s81, 2
s_add_u32 s88, s78, s74
s_add_u32 s89, s78, s75""")
ORDER = ["x0", "w0", "x1", "w1", "x2", "w2", "w3"]
def issue_part(lo, hi, order=None):
    n = 0
    for it in (order or ORDER[lo:hi]):
        g = int(it[1])
        if it[0] == 'x':
            A(f"s_add_u32 m0, s88, {XG[g]}\ns_lshl3_add_u32 s86, {XG[g]}, s80\ns_mov_b32 s38, {XN[g]}")
            for q in range(4): A(f"buffer_load_dwordx4 v{16+q}, {X}, s86 offen offset:{1024*q} lds")
            n += 4
        else:
            A(f"s_add_u32 m0, s89, {WL[g]}\ns_add_u32 s87, s81, {WG[g]}")
            for j in range(3): A(f"buffer_load_dwordx4 v{20+j}, {W}, s87 offen offset:{1024*j} lds")
            n += 3
    return n
def issue_tail():
    A(f"""s_add_u32 s79, s79, 1
s_and_b32 s79, s79, 7
s_add_u32 s78, s78, {SLOT}
s_cmp_eq_u32 s78, {3*SLOT}
s_cselect_b32 s78, 0, s78""")
HH = OPT["h"]
issue_part(0, 0, ["x0", "x1", "x2"][:3 if OPT["xfirst"] == 1 else 1])
A(f"""s_mul_i32 s75, s4, {UPOFF}
s_add_u32 s75, s75, {XW}
s_mov_b32 s43, 0x20000
s_mov_b32 s78, 0
s_cmp_ge_u32 s7, 15
s_cbranch_scc1 L_LQKV
s_mov_b32 s42, {512*2752}
s_mov_b32 s82, {16*2752}
s_movk_i32 s86, 0x1556
s_movk_i32 s87, 2752
s_lshl_b32 s88, s9, 1
s_cmp_eq_u32 s7, 14
s_cselect_b32 s89, {8 if OPT['zf'] else 0}, 0
s_cmp_eq_u32 s12, 1
s_cselect_b32 s89, {12 if OPT['zf'] else 0}, s89
v_mov_b32 v28, 0x80000000""")
for i in range(3):
    A(f"""v_add_u32 v24, {64*i}, v0
v_mul_u32_u24 v25, s86, v24
v_lshrrev_b32 v25, 16, v25
v_mul_u32_u24 v26, 12, v25
v_sub_u32 v24, v24, v26
v_lshrrev_b32 v26, 2, v25
v_and_b32 v26, 2, v26
v_xor_b32 v24, v24, v26
v_cmp_gt_u32 vcc, s89, v24
v_mul_u32_u24 v25, s87, v25
v_lshl_add_u32 v24, v24, 4, v25
v_add_u32 v24, s88, v24
v_subrev_u32 v24, {1024*i}, v24
v_cndmask_b32 v{20+i}, v24, v28, vcc""")
A(f"""s_branch L_LGO
L_LQKV:
s_mov_b32 s42, {512*3072}
s_mov_b32 s82, {16*3072}
s_sub_u32 s87, s7, 15
s_lshl_b32 s87, s87, 7
s_mul_i32 s88, s4, {8*3072}
s_add_u32 s87, s87, s88
v_mul_u32_u24 v24, 3072, v24
v_and_b32 v26, 1, v26
v_lshlrev_b32 v26, 2, v26
v_xor_b32 v25, v25, v26
s_lshl_b32 s88, s4, 1
v_xor_b32 v25, s88, v25
v_lshl_add_u32 v20, v25, 4, v24
v_add_u32 v20, s87, v20
v_mov_b32 v21, v20
v_mov_b32 v22, v20
L_LGO:""")
A(f"s_lshr_b32 s87, s6, {sh}" if OPT["sub"] else "s_mov_b32 s87, 0")
for g in range(4):
    A(f"s_add_u32 s86, s87, {g}\ns_and_b32 s86, s86, 3\ns_mul_i32 {WL[g]}, s86, 3072\ns_mul_i32 {WG[g]}, s86, s82")
A(f"""s_cmp_eq_u32 s4, 1
s_cselect_b32 s40, s26, s24
s_cselect_b32 s41, s27, s25
s_cmp_ge_u32 s7, 15
s_cselect_b32 s40, s18, s40
s_cselect_b32 s41, s19, s41""")
issue_head(); issue_part(0, 0, ["w0", "w1", "w2", "w3"] if OPT["xfirst"] == 1 else ["w0", "x1", "w1", "x2", "w2", "w3"]); issue_tail()
stamp((2, 2))
issue_head(); n_ = issue_part(0, HH)
p2setup()
A(f"s_waitcnt vmcnt({n_})")
stamp((1, 1), (3, 2))
A("s_barrier\ns_mov_b32 s83, 0\nL_LLOOP:")
if OPT['nodma']: issue_tail(); issue_head()
else:
    if HH < 7: issue_part(HH, 7)
    issue_tail(); issue_head(); issue_part(0, HH)
A(f"""s_add_u32 s83, s83, 1
s_waitcnt vmcnt({n_})
s_barrier
s_cmp_lt_u32 s83, 6
s_cbranch_scc1 L_LLOOP""")
stamp((2, 1), (4, 2))
if HH < 7: issue_part(HH, 7)
A("s_mov_b32 s38, 2097152")
ktable()
for n in range(N7): w2item(n)
A(f"s_waitcnt vmcnt({2*N7})\ns_barrier")
A("s_branch L_W2")

def f_addr(dst):
    A(f"""s_sub_u32 s86, s7, 15
s_lshl_b32 s86, s86, 12
s_and_b32 s87, s6, 1
s_lshl_b32 s87, s87, 11
s_add_u32 s86, s86, s87
s_and_b32 s87, s6, 2
s_lshl_b32 s87, s87, 9
s_add_u32 s86, s86, s87
s_lshr_b32 s87, s6, 2
s_lshl_b32 s87, s87, 9
s_add_u32 s86, s86, s87
s_lshl1_add_u32 s91, s86, {WS_FF}
s_add_u32 s86, s86, {WS_F}
v_lshl_add_u32 v{dst}, v0, 4, s86""")
assert OPT["rot"] in (2, 4, 8)
A(f"""L_SIDE:
s_add_u32 s13, s6, s90
s_and_b32 s13, s13, {OPT['rot']-1}
s_lshl_b32 s13, s13, { {2:2, 4:1, 8:0}[OPT['rot']] }
s_lshr_b32 s14, s6, { {2:1, 4:2, 8:3}[OPT['rot']] }
s_add_u32 s15, s13, s14
s_cmp_ge_u32 s6, 8
s_cselect_b32 s14, 99, s14
s_cmp_eq_u32 s12, 1
s_cselect_b32 s14, 99, s14
s_and_b32 s77, s4, 1""")
wfrag_addr(62, "s77", 24, "L_SA")
A(f"""s_cmp_eq_u32 s14, 1
s_cselect_b32 s86, {SLOT}, 0
s_cmp_eq_u32 s14, 2
s_cselect_b32 s86, {2*SLOT}, s86
v_add_u32 v62, s86, v62
v_add_u32 v63, s86, v63
v_and_b32 v24, 16, v0
v_cmp_ne_u32 s[72:73], 0, v24
v_and_b32 v24, 31, v0
s_mul_i32 s86, s77, 384
s_add_u32 s86, s86, {CF}
v_lshrrev_b32 v25, 4, v24
v_mul_u32_u24 v25, 128, v25
v_lshl_add_u32 v17, v24, 2, v25
v_add_u32 v17, s86, v17
s_mul_i32 s87, s77, 96
v_add_u32 v21, s87, v0
v_add3_u32 v22, v24, s87, 64
s_lshl_b32 s86, s8, 4
s_add_u32 s86, s86, {WS_RS}
v_lshl_add_u32 v19, v21, 4, s86
v_lshl_add_u32 v20, v22, 4, s86
s_lshl_b32 s86, s7, 13
s_lshl_b32 s87, s77, 9
s_add_u32 s86, s86, s87
s_add_u32 s86, s86, {WS_CS}
s_lshl_b32 s87, s15, 10
s_add_u32 s74, s86, s87
v_lshlrev_b32 v23, 4, v24
v_lshrrev_b32 v25, 5, v0
v_lshl_add_u32 v18, v25, 12, v23
v_add_u32 v18, s86, v18""")
for r in range(52, 56): A(f"v_mov_b32 v{r}, 0x3f803f80")
def w1prefetch():
    A(f"""s_cmp_eq_u32 s77, 0
s_cselect_b32 s40, s24, s26
s_cselect_b32 s41, s25, s27
s_mov_b32 s42, {1376*1024}
s_mov_b32 s43, 0x20000
s_mul_i32 s86, s5, 43
v_min_u32 v16, 42, v0
v_add_u32 v16, s86, v16
v_lshlrev_b32 v16, 7, v16
buffer_load_dword v58, v16, {W}, 0 offen
s_mov_b32 s52, s18
s_mov_b32 s53, s19
s_mov_b32 s54, {512*3072}
s_mov_b32 s55, 0x20000
s_lshl_b32 s86, s5, 1
s_add_u32 s86, s86, s77
s_mul_i32 s86, s86, 24
v_min_u32 v16, 23, v0
v_add_u32 v16, s86, v16
v_lshlrev_b32 v16, 7, v16
buffer_load_dword v57, v16, s[52:55], 0 offen""")
kwait()
if OPT['w1pf'] == -2: w1prefetch()
p2setup()
A(f"""s_cmp_lt_u32 s7, 15
s_cbranch_scc1 L_NOCLR
s_cmp_ge_u32 s6, 8
s_cbranch_scc1 L_NOCLR""")
f_addr(24)
A(f"""v_mov_b32 v28, -1
v_mov_b32 v29, -1
v_mov_b32 v30, -1
v_mov_b32 v31, -1
s_mov_b32 exec_hi, 0
buffer_store_dwordx4 v[28:31], v24, {WS}, 0 offen sc1
s_mov_b32 exec_hi, -1""")
if OPT["prew"]: A(f"s_sub_u32 s86, {TAG}, 1\nv_mov_b32 v32, s86\nv_lshlrev_b32 v24, 4, v0\nbuffer_store_dwordx4 v[32:35], v24, {WS}, s91 offen sc1")
A(f"""L_NOCLR:
s_mov_b32 s83, 0
s_waitcnt vmcnt(0)""")
if OPT["w1pf"] == -1: w1prefetch()
A("L_SLOOP:\ns_barrier")
if OPT["w1pf"] >= 0:
    A(f"s_cmp_eq_u32 s83, {OPT['w1pf']}\ns_cbranch_scc0 L_NOPF1"); w1prefetch(); A("L_NOPF1:")
if OPT["w2late"] >= 0:
    A(f"""s_cmp_eq_u32 s83, {OPT['w2late']}
s_cbranch_scc0 L_NOPF2
s_mul_i32 s86, s5, 59
s_mul_i32 s87, s77, 30
s_add_u32 s86, s86, s87
v_min_u32 v16, 29, v0
v_add_u32 v16, s86, v16
v_lshlrev_b32 v16, 7, v16
buffer_load_dword v60, v16, {WD}, 0 offen
v_subrev_u32 v16, {1376*1024}, v16
buffer_load_dword v61, v16, {WO}, 0 offen
L_NOPF2:""")
if OPT["pf2"] >= 0:
    A(f"""s_cmp_eq_u32 s83, {OPT['pf2']}
s_cbranch_scc0 L_NOPF3
s_getpc_b64 s[88:89]
L_PC2:
s_sub_u32 s88, s88, L_PC2-{NAME}_kernel
s_subb_u32 s89, s89, 0
s_lshr_b32 s86, s2, 3
s_lshl_b32 s86, s86, 3
s_lshl_b32 s87, s77, 2
s_add_u32 s86, s86, s87
v_and_b32 v16, 3, v0
v_add_u32 v16, s86, v16
v_lshlrev_b32 v16, 7, v16
v_min_u32 v16, L_END-{NAME}_kernel, v16
global_load_dword v59, v16, s[88:89]
L_NOPF3:""")
A("s_cmp_eq_u32 s83, s14\ns_cbranch_scc0 L_LNOCS")
for t in range(2):
    A(f"s_cmp_ge_u32 s7, 15\ns_cbranch_scc1 L_CSQ{t}")
    for role in "GQ":
        if role == 'Q': A(f"s_branch L_CSM{t}\nL_CSQ{t}:")
        for j in range(6):
            for sec in range(2):
                par, off = woff(role, t, j, sec)
                A(f"ds_read_b64_tr_b16 {v(24+4*j+2*sec,2)}, v{62+par} offset:{off}")
    A(f"L_CSM{t}:\ns_waitcnt lgkmcnt(0)")
    for j in range(6): A(mf16(72+4*j, 52, 24+4*j, 0 if t == 0 else None))
A(f"v_mov_b32 v51, {TAG}")
for u in range(3): A(f"v_cndmask_b32 v{48+u}, v{72+4*u}, v{84+4*u}, s[72:73]")
A(f"""s_mov_b32 exec_hi, 0
buffer_store_dwordx4 v[48:51], v23, {WS}, s74 offen sc1
s_mov_b32 exec_hi, -1
L_LNOCS:""")
A(f"""s_add_u32 s83, s83, 1
s_cmp_lt_u32 s83, 6
s_cbranch_scc1 L_SLOOP""")
def st_loads():
    for p in range(4): A(f"buffer_load_dwordx4 {v(32+4*p,4)}, v18, {WS}, 0 offen offset:{1024*p} sc1")
    A(f"buffer_load_dwordx4 v[48:51], v19, {WS}, 0 offen sc1\nbuffer_load_dwordx4 v[52:55], v20, {WS}, 0 offen sc1")
st_loads()
A("s_barrier")
stamp((2, 1), (4, 2))
ktable()
for n in range(N7): w2item(n)
A(f"s_mov_b32 s88, 0\ns_waitcnt vmcnt({2*N7})")
A("L_SPC:")
tagcheck(24, 24, [35+4*p for p in range(6)])
A(f"""v_cmp_ne_u32 vcc, 0, v24
s_add_u32 s88, s88, 1
s_cmp_gt_u32 s88, {OPT['spin']}
s_cbranch_scc1 L_SPCD
s_cbranch_vccz L_SPCD""")
st_loads()
A(f"""s_waitcnt vmcnt(0)
s_branch L_SPC
L_SPCD:
s_mov_b32 s86, {RS}
s_mov_b32 s87, {RR}
v_lshl_add_u32 v24, v21, 4, s86
v_lshl_add_u32 v25, v22, 4, s86
v_lshl_add_u32 v21, v21, 2, s87
v_lshl_add_u32 v22, v22, 2, s87
ds_write_b128 v24, v[48:51]
ds_write_b128 v25, v[52:55]
ds_write_b32 v21, v49
ds_write_b32 v22, v53
v_mul_f32 v24, v48, v49
v_mul_f32 v25, v52, v53
ds_write_b32 v21, v24 offset:{MR-RR}
ds_write_b32 v22, v25 offset:{MR-RR}""")
note("s88", 2)
for p in range(1, 4):
    for u in range(3): A(f"v_add_f32 v{32+u}, v{32+u}, v{32+4*p+u}")
for u in range(3): A(f"v_mov_b32 v{36+u}, v{32+u}")
for u in range(3): A(f"v_permlane32_swap_b32 v{32+u}, v{36+u}")
for u in range(3): A(f"v_add_f32 v{32+u}, v{32+u}, v{36+u}")
for u in range(3): A(f"ds_write_b32 v17, v{32+u} offset:{64*u}")
A("s_waitcnt lgkmcnt(0)\ns_barrier")

A("L_W2:")
stamp((3, 1), (6, 2))
AB = 8
vm = [x for n in range(N7) for x in (f"d{n}a", f"d{n}")]
def emit(Y):
    for t in Y:
        if callable(t): t()
        elif t.startswith("VM "):
            nm, ins = t[3:].split("|"); vm.append(nm); A(ins)
        elif t.startswith("WAIT "):
            nms, lg = t[5:].split("|")
            A(f"s_waitcnt vmcnt({len(vm)-1-max(vm.index(x) for x in nms.split(','))})" + (" lgkmcnt(0)" if lg else ""))
        elif t.startswith("STAMP "): stamp((int(t[6:]), 4))
        else: A(t)
A(f"v_lshlrev_b32 v84, 4, v0\nv_add_u32 v84, s76, v84")
def wr(reg, slot, blk):
    off = slot*SLOT + blk*2048
    A(f"ds_write_b128 v84, {v(reg,4)} offset:{off}\nds_write_b128 v84, {v(reg+4,4)} offset:{off+1024}")
def rd6(base, sl):
    for kk in range(6):
        E(w2read(base+8*kk, sl, kk, AB))
        if kk % 3 == 2: A("s_waitcnt lgkmcnt(0)")
NB = OPT["nb"]; NC = OPT["nc"]; NIT = len(items); NW = OPT['nraw']; NL = 12 - NW - NB - NC; assert NL >= 0 and NW <= 8
cnt = [N7]
def TH():
    cnt[0] += 1
    return OPT["thr"] if (OPT["thr"] and cnt[0] > OPT["tfrom"]) else None
it = lambda n: w2ops(items[n][0], items[n][1], items[n][2:], TH())
Z = []
for n in range(N7, 6): Z += it(n)
order2 = [12+2, 12+3, 12+4, 12+5, 12+0, 12+1]
for n in range(12):
    Z += [f"WAIT d{n}|"] + w2read(96+8*n, 2, n % 6, AB) + ["s_waitcnt lgkmcnt(0)"]
    Z += it(n+6 if n < 6 else order2[n-6])
for n in range(NW): Z += w2ops(items[18+n][0], items[18+n][1], 192+8*n, TH())
Z += [f"VM x|buffer_load_dwordx4 v[12:15], v1, {X}, 0 offen", f"v_mov_b32 v18, {LF+40}", lambda: spin_lds(18, 17, 4)]
emit(Z)
stamp((4, 1), (1, 3), (1, 4))
def rdaddr(dst, isy_src, half, T):
    base = 0 if isy_src else SLOT
    t3 = 2*SLOT + (0 if isy_src else 8192)
    A(f"""s_and_b32 s70, s4, 2
s_lshl_b32 s70, s70, 12
s_add_u32 s70, s70, {base}
s_add_u32 s71, s70, 4096
s_cmp_ge_u32 s4, 2
s_cselect_b32 s71, {t3}, s71
v_mov_b32 v{T}, s70
v_mov_b32 v{T+1}, s71
v_and_b32 v{T+2}, 4, v0
v_cmp_ne_u32 vcc, 0, v{T+2}
v_and_b32 v{T+2}, 7, v0
v_lshrrev_b32 v{T+3}, 3, v0
v_cndmask_b32 v{T}, v{T}, v{T+1}, vcc
v_add_u32 v{T+3}, {8*half}, v{T+3}
v_lshlrev_b32 v{T+1}, 1, v{T+2}
v_xor_b32 v{T+3}, v{T+3}, v{T+1}
s_and_b32 s70, s4, 1
s_lshl_b32 s70, s70, 8
v_lshl_add_u32 v{T}, v{T+3}, 4, v{T}
v_and_b32 v{T+1}, 2, v0
v_lshl_add_u32 v{T}, v{T+1}, 8, v{T}
v_and_b32 v{T+1}, 1, v0
v_lshl_add_u32 v{T}, v{T+1}, 11, v{T}
v_add_u32 v{dst}, s70, v{T}""")
def wraddr(B_, isy):
    A(f"""v_lshrrev_b32 v{B_}, 3, v0
v_and_b32 v{B_}, 4, v{B_}
v_xor_b32 v{B_}, v{B_}, v0
v_lshlrev_b32 v{B_}, 4, v{B_}
v_xor_b32 v{B_+1}, 32, v{B_}
v_xor_b32 v{B_+2}, 0x80, v{B_}
v_xor_b32 v{B_+3}, 0xa0, v{B_}""")
    for j in range(4): A(f"v_add_u32 v{B_+j}, s76, v{B_+j}")
    t3 = 2*SLOT + (0 if isy else 8192)
    A(f"v_add_u32 v{B_+4}, {t3}, v{B_+2}\nv_add_u32 v{B_+5}, {t3}, v{B_+3}")
def wrpart(B_, isy):
    for q in range(4):
        for jq in range(4):
            if q < 3: A(f"ds_write_b128 v{B_ + 2*(q&1) + (jq>>1)}, {v(192+16*q+4*jq,4)} offset:{(0 if isy else SLOT) + q*4096 + jq*1024}")
            else: A(f"ds_write_b128 v{B_ + 4 + (jq>>1)}, {v(192+16*q+4*jq,4)} offset:{jq*1024}")
def rd4(dst, va):
    for src in range(4):
        for e in range(2): A(f"ds_read_b128 {v(dst+8*src+4*e,4)}, v{va} offset:{Q*src+1024*e}")
def sum4(d):
    for j in range(4): A(f"v_pk_add_f32 {v(d+2*j,2)}, {v(d+2*j,2)}, {v(d+8+2*j,2)}\nv_pk_add_f32 {v(d+16+2*j,2)}, {v(d+16+2*j,2)}, {v(d+24+2*j,2)}")
    for j in range(4): A(f"v_pk_add_f32 {v(d+2*j,2)}, {v(d+2*j,2)}, {v(d+16+2*j,2)}")
STG = OPT["stage"]
def sgo(va, vd): return f"s_lshl_b32 s86, s4, 2\ns_add_u32 s86, s86, {LF+48}\nv_mov_b32 v{va}, s86\nv_mov_b32 v{vd}, 1\nds_write_b32 v{va}, v{vd}"
assert STG
note("1", 4)
def hload(kd):
    va = 6 if kd < 21 else 7
    b = 16 + 8*(kd % 8)
    return [f"s_lshl2_add_u32 s86, s{77 + kd % 7}, {(kd//7)*65536}" if kd < 21 else "s_mov_b32 s86, 0",
            f"VM h{kd}a|buffer_load_dwordx4 {v(b,4)}, v{va}, {H}, s86 offen sc1",
            f"VM h{kd}|buffer_load_dwordx4 {v(b+4,4)}, v{va}, {H}, s86 offen offset:1024 sc1"]
w2late = lambda n, t=None: w2ops(items[n][0], items[n][1], items[n][2:], t)
def ipoll(c):
    nl = 16 if c <= 1 else 24
    return [f"VM p{c}|v_mov_b32 v82, {TAG}\ns_mov_b32 s87, {c << 20}\ns_mov_b64 exec, {hex((1<<nl)-1)}\nbuffer_load_dword v82, v5, {WS}, s87 offen sc1\ns_mov_b64 exec, -1"]
res_loc = lambda kd: (2, kd-12) if kd < 16 else (0, kd-16)
YD = OPT["ydep"]; assert YD <= 7
PRE = cap(lambda: (wraddr(96, True), rdaddr(102, True, 0, 104), A("v_xor_b32 v103, 0x80, v102"), rdaddr(108, False, 0, 104),
    A(f"s_lshl_b32 s70, s4, 11\ns_add_u32 s70, s70, {GB}\nv_lshl_add_u32 v109, v0, 4, s70\nv_mov_b32 v110, {LF+36}\nv_mov_b32 v111, 1"),
    [A(f"v_lshlrev_b32 v{112+2*j}, 16, v{12+j}\nv_and_b32 v{113+2*j}, 0xffff0000, v{12+j}") for j in range(4)],
    A(f"s_mov_b32 s70, {hx(-1.4426950408889634)}\ns_mov_b32 s71, s70")))
Y = []
Y += ipoll(0)
for n in range(NB): Y += w2late(18+NW+n, OPT['thr2'] or None)
if NW: Y += ['WAIT x|', lambda: [wr(192+8*n, *items[18+n][2:]) for n in range(NW//2)]]
Y += ["WAIT p0|", f"v_cmp_ne_u32 vcc, {TAG}, v82\ns_cbranch_vccnz L_YR0\nL_YB0:", lambda: stamp((5, 1), (2, 3), (2, 4))]
for kd in range(YD): Y += hload(kd)
for n in range(NC): Y += w2late(18+NW+NB+n, OPT['thr2'] or None)
if NW: Y += [lambda: [wr(192+8*n, *items[18+n][2:]) for n in range(NW//2, NW)], 's_waitcnt lgkmcnt(0)']
if OPT["gate"]: Y += [f"v_mov_b32 v80, {LF+32}", lambda: spin_lds(80, 81, OPT["gate"])]
Y.append(f"s_setprio {OPT['yprio']}")
for kd in range(22):
    wf = 96+8*kd if kd < 12 else 80+8*(kd & 1)
    hb = 16 + 8*(kd % 8)
    need = [f"h{kd}"]
    chk = 0 if not STG else (1 if kd+YD == 7 else (2 if kd == OPT['c2'] else 0))
    if chk: need.append(f"p{chk}")
    if chk == 2: need.append("o5")
    if 16 <= kd+1 < 22: need.append(f"d{kd+1}")
    Y.append("WAIT " + ",".join(need) + ("|L" if kd >= 12 else "|"))
    if chk:
        Y.append(f"v_cmp_ne_u32 vcc, {TAG}, v82\ns_cbranch_vccnz L_YR{chk}\nL_YB{chk}:")
        if chk == 2: Y.append(sgo(82, 83))
    ms = [mfma(192+32*r+16*c, wf+4*c, hb+4*r, 0 if kd == 0 else None) for r in range(2) for c in range(2)]
    fill = []
    if STG and kd == OPT["p1"]: fill += ipoll(1)
    if STG and kd == OPT["p2"]: fill += ipoll(2)
    if kd+YD < 22: fill += hload(kd+YD)
    if kd < NL: fill += w2late(NIT-NL+kd)
    if 12 <= kd+1 < 22: fill += w2read(80+8*((kd+1) & 1), *res_loc(kd+1), AB)
    if kd in (11, 12, 13): fill = fill + PRE[(kd-11)*37:(kd-10)*37] if kd < 13 else fill + PRE[74:]
    Y += interleave(ms, fill, 3 if len(fill) <= 12 else 6)
    if kd+1 == OPT["ydrop"]: Y.append(f"s_setprio {OPT['ypost']}")
    if kd == 0: Y.append("STAMP 3")
    if kd == 10: Y.append("STAMP 4")
assert not STG or (OPT["p1"] < 7-YD <= OPT["p2"] < OPT["c2"] <= 14-YD)
emit(Y)
stamp((6, 1), (3, 3), (5, 4))
def final(isy):
    if isy:
        wrpart(96, True)
        A("""v_mov_b32 v4, v108
s_mov_b64 exec, 1
s_waitcnt lgkmcnt(0)
ds_add_u32 v110, v111
s_mov_b64 exec, -1""")
        spin_lds(110, 6, 4)
        rd4(16, 103); A("s_waitcnt lgkmcnt(4)"); rd4(48, 102)
        for d, w_ in ((16, 8), (48, 2)):
            A(f"s_waitcnt lgkmcnt({w_})")
            if OPT["ypk"]:
                sum4(d)
                for j in range(4): A(f"v_pk_mul_f32 {v(d+8+2*j,2)}, {v(d+2*j,2)}, s[70:71]")
            else:
                for j in range(8): A(f"v_add_f32 v{d+j}, v{d+j}, v{d+8+j}\nv_add_f32 v{d+16+j}, v{d+16+j}, v{d+24+j}")
                for j in range(8): A(f"v_add_f32 v{d+j}, v{d+j}, v{d+16+j}")
                for j in range(8): A(f"v_mul_f32 v{d+8+j}, s70, v{d+j}")
            for j in range(8): A(f"v_exp_f32 v{d+8+j}, v{d+8+j}")
            for j in range(8): A(f"v_add_f32 v{d+8+j}, 1.0, v{d+8+j}")
            for j in range(8): A(f"v_rcp_f32 v{d+8+j}, v{d+8+j}")
            for j in range(8): A(f"v_mul_f32 v{(d if d == 16 else 88)+j}, v{d+j}, v{d+8+j}")
            if d == 16:
                A("ds_write_b128 v109, v[16:19]\nds_write_b128 v109, v[20:23] offset:1024")
    else:
        wrpart(80, False)
    A("s_waitcnt lgkmcnt(0)")
final(True)
A("s_branch L_FINAL")
if STG:
    for c in (0, 1, 2):
        A(f"L_YR{c}:"); note(str(10+c), 4); spin_flag(5, 82, 16 if c <= 1 else 24, c, 1); A(f"s_branch L_YB{c}")
A("L_COMPUTE:")
srd(WS, 32, 0x800000); srd(H, 32, 118*65536, WS_H); srd(OUT, 30, 2097152)
ACC = 112
for r in range(ACC, 256): A(f"v_mov_b32 v{r}, 0")
A(f"""v_lshlrev_b32 v16, 2, v0
v_add_u32 v16, {LF}, v16
v_mov_b32 v17, 0
s_mov_b64 exec, 0xffff
ds_write_b32 v16, v17
s_mov_b64 exec, -1
s_lshr_b32 s13, s4, 1
s_and_b32 s14, s4, 1
s_movk_i32 s11, 0x1ff
s_lshl_b32 s86, s13, 4
s_add_u32 s86, s86, s6
s_cmp_eq_u32 s86, 10
s_cselect_b32 s11, 0x1c0, s11
s_mul_i32 s86, s14, 0x1b6
s_cmp_eq_u32 s7, 14
s_cselect_b32 s86, s86, 0x1ff
s_and_b32 s11, s11, s86
s_cmp_eq_u32 s12, 1
s_cselect_b32 s11, 0, s11
s_mul_i32 s76, s4, {Q}
s_lshr_b32 s86, s9, 4
s_mul_i32 s87, s14, 3
s_add_u32 s86, s86, s87
s_lshl_b32 s87, s7, 1
s_add_u32 s87, s87, s14
s_lshl1_add_u32 s87, s87, 26
s_and_b32 s88, s11, 0xdb
s_cmp_ge_u32 s7, 15
s_cselect_b32 s86, s87, s86
s_cselect_b32 s11, s88, s11
s_lshl_b32 s86, s86, 6
s_lshr_b32 s87, s8, 5
s_add_u32 s86, s86, s87
s_mul_i32 s87, s13, 3
s_add_u32 s86, s86, s87
s_lshl_b32 s86, s86, 10
v_lshl_add_u32 v1, v0, 4, s86
s_mov_b32 s80, 0
s_mov_b32 s81, 65536
s_mov_b32 s82, 131072
v_and_b32 v16, 15, v0
v_lshrrev_b32 v17, 4, v0
v_bfe_u32 v18, v0, 1, 3
v_xor_b32 v18, v18, v17
s_mul_i32 s86, s13, {96*128}
v_lshl_add_u32 v16, v16, 7, s86
v_lshl_add_u32 v2, v18, 4, v16
v_xor_b32 v3, 64, v2""")
wfrag_addr(4, "s14", 16, "L_CA")
A(f"""s_mul_i32 s86, s6, 23
s_add_u32 s86, s86, s7
s_cmp_eq_u32 s12, 1
s_cselect_b32 s86, 255, s86
s_lshl_b32 s86, s86, 2
s_add_u32 s86, s86, s4
s_lshl_b32 s86, s86, 10
s_add_u32 s15, s86, {WS_FLAG}""")
stamp((2, 2))
A("s_waitcnt vmcnt(0)")
stamp((5, 2))
for j in range(8):
    A(f"v_lshlrev_b32 v{16+2*j}, 16, v{8+j}\nv_and_b32 v{17+2*j}, 0xffff0000, v{8+j}")
def red32(r, t):
    for sh_ in (8, 4, 2, 1):
        A(f"v_add_f32_dpp v{r}, v{r}, v{r} row_ror:{sh_} row_mask:0xf bank_mask:0xf")
    A(f"v_mov_b32 v{t}, v{r}\nv_permlane16_swap_b32 v{r}, v{t}\nv_add_f32 v{r}, v{r}, v{t}")
for j in range(4): A(f"v_pk_add_f32 {v(8+2*j,2)}, {v(16+2*j,2)}, {v(24+2*j,2)}")
A("v_pk_add_f32 v[8:9], v[8:9], v[12:13]\nv_pk_add_f32 v[10:11], v[10:11], v[14:15]\nv_pk_add_f32 v[8:9], v[8:9], v[10:11]\nv_add_f32 v8, v8, v9")
red32(8, 9)
A(f"v_mul_f32 v8, {hx(-1/512)}, v8")
for j in range(8): A(f"v_pk_add_f32 {v(16+2*j,2)}, {v(16+2*j,2)}, v[8:9] op_sel_hi:[1,0]")
A("v_pk_mul_f32 v[10:11], v[16:17], v[16:17]\nv_pk_mul_f32 v[12:13], v[18:19], v[18:19]")
for j in range(2, 8): A(f"v_pk_fma_f32 {v(10+2*(j&1),2)}, {v(16+2*j,2)}, {v(16+2*j,2)}, {v(10+2*(j&1),2)}")
A("v_pk_add_f32 v[10:11], v[10:11], v[12:13]\nv_add_f32 v10, v10, v11")
red32(10, 9)
A(f"""v_mul_f32 v10, {hx(1/512)}, v10
v_cvt_pk_bf16_f32 v10, v10, v10
v_and_b32 v10, 0xffff0000, v10
v_add_f32 v10, {hx(1e-5)}, v10
v_cvt_pk_bf16_f32 v10, v10, v10
v_and_b32 v10, 0xffff0000, v10
v_sqrt_f32 v10, v10
v_cvt_pk_bf16_f32 v32, v8, v8
v_cvt_pk_bf16_f32 v10, v10, v10
v_and_b32 v10, 0xffff0000, v10
v_and_b32 v32, 0xffff0000, v32
v_rcp_f32 v33, v10
v_mul_f32 v34, v10, v10
v_lshlrev_b32 v7, 4, v7
v_add_u32 v7, {WS_RS}, v7
s_waitcnt lgkmcnt(0)
s_add_u32 {TAG}, {TAG}, 0x9E3779B9
v_mov_b32 v35, {TAG}
v_mov_b32 v36, {TAG}
v_mov_b32 v37, {TAG}
v_mov_b32 v38, {TAG}
v_mov_b32 v39, {TAG}
v_lshlrev_b32 v6, 4, v0
s_mov_b32 s78, 0
s_mov_b32 s79, {SLOT}
s_mov_b32 s83, 0""")
stamp((1, 1), (3, 2))
A(f"""s_barrier
s_mov_b32 exec_lo, 1
s_mov_b32 exec_hi, 1
buffer_store_dwordx4 v[32:35], v7, {WS}, 0 offen sc1
s_mov_b64 exec, -1""")
if OPT["prew"]:
    for kind in ((0, 1, 2) if OPT["stage"] else (0, 2)):
        sk = L("PW")
        if kind == 0 and not OPT["stage"]: A(f"s_cmp_lt_u32 s7, 15\ns_cbranch_scc1 {sk}")
        A(f"s_add_u32 s86, s15, {kind << 20}\nbuffer_store_dwordx4 v[28:31], v6, {WS}, s86 offen sc1")
        A.label(sk)
stamp((2, 1), (4, 2))
A("s_cmp_ge_u32 s7, 15\ns_cbranch_scc1 L_QKV")
if OPT["dead"]: A("s_or_b32 s86, s11, s12\ns_cbranch_scc0 L_DEAD")

XB = lambda buf, a: (40 if buf == 0 else 8) + 4*a
WF = lambda buf, j: 64 + 24*buf + 4*j
acc = lambda a, j: ACC + 4*(6*a+j)
CB = 88
def reads(role, s_):
    w_ = []
    for j in range(6):
        for sec in range(2):
            par, off = woff(role, s_, j, sec)
            w_.append(f"ds_read_b64_tr_b16 {v(WF(s_,j)+2*sec,2)}, v{4+par} offset:{off}")
    o = []
    for a in range(6): o += [f"ds_read_b128 {v(XB(s_,a),4)}, v{2+s_} offset:{2048*a}"] + w_[2*a:2*a+2]
    return o
def mm(role, wb, a, j, xb=1):
    return mf16(acc(a,j), WF(wb,j), XB(xb,a)) if (role == 'G' or j < 2) else mf16(acc(a,j), XB(xb,a), WF(wb,j))
def grp(role, buf, a): return [mm(role, buf, a, j, buf) for j in range(6)]
def spread(ms, fill, num, den):
    o = []; f = list(fill); nr = 0
    for i, m in enumerate(ms):
        o.append(m)
        k = ((i+1)*num)//den - (i*num)//den
        for _ in range(k):
            if f:
                x = f.pop(0)
                if x.startswith("ds_read"):
                    nr += 1
                    if nr == 13: o.append("s_waitcnt lgkmcnt(6)")
                o.append(x)
    assert not f
    return o
def treads(role, st, js, wb):
    buf = st & 1
    xs_ = [f"ds_read_b128 {v(XB(buf,a),4)}, v{2+buf} offset:{2048*a + (SLOT if st >= 2 else 0)}" for a in range(6)]
    ws_ = []
    for i, j in enumerate(js):
        for sec in range(2):
            par, off = woff(role, buf, j, sec)
            ws_.append(f"ds_read_b64_tr_b16 {v(wb(buf)+4*i+2*sec,2)}, v{(32 if st >= 2 else 4)+par} offset:{off}")
    return ws_[:4] + xs_ + ws_[4:]
def ldsadd(off, va, vd): return f"v_mov_b32 v{va}, {LF+off}\nv_mov_b32 v{vd}, 1\ns_mov_b64 exec, 1\nds_add_u32 v{va}, v{vd}\ns_mov_b64 exec, -1"
def tphase(role, js, wb, first, last, nxt, extra, rows=range(6), start3=0):
    for st in range(4):
        buf = st & 1
        A("s_waitcnt lgkmcnt(0)")
        if first and st == 1: A("s_barrier")
        ms = []
        for a in (rows if st == 3 else range(6)):
            for i, j in enumerate(js):
                w_, x_ = wb(buf)+4*i, XB(buf, a)
                ms.append(mf16(acc(a,j), w_, x_) if (role == 'G' or j < 2) else mf16(acc(a,j), x_, w_))
        fill = (treads(role, st+1, js, wb) if st < 3 else nxt) + extra.get(st, [])
        if last and st == 3: fill = [ldsadd(40, 32, 33)] + fill
        E(interleave(ms, fill, max(1, -(-len(fill)//(len(ms)-1)))))
def mainloop(role, pre):
    lp, ex = f"L_ML{role}", f"L_MX{role}"
    allm = lambda buf: [m for a in range(6) for m in grp(role, buf, a)]
    r0 = reads(role, 0); E(r0[:12]); A("s_waitcnt lgkmcnt(6)"); E(r0[12:])
    A.label(lp)
    A("s_waitcnt lgkmcnt(0)")
    sal = f"""s_add_u32 s78, s78, 1
s_cmp_eq_u32 s78, 3
s_cselect_b32 s86, {-2*SLOT & 0xffffffff}, s79
s_cselect_b32 s78, 0, s78
s_add_u32 s83, s83, 1
s_cmp_eq_u32 s83, 6""".split("\n") + [f"v_add_u32 v{r}, s86, v{r}" for r in (2, 4, 5, 3)]
    E(spread(allm(0), reads(role, 1) + sal, OPT["rgap"]+2, OPT["rgap"]+3))
    A(f"s_waitcnt lgkmcnt(0)\ns_barrier\ns_cbranch_scc1 {ex}")
    E(spread(allm(1), reads(role, 0), OPT["rgap"], 4))
    A(f"s_branch {lp}")
    A.label(ex)
    com = ["s_waitcnt vmcnt(0)", f"v_add_u32 v32, {SLOT}, v4", f"v_add_u32 v33, {SLOT}, v5", "v_and_b32 v34, 15, v0",
           f"s_mul_i32 s86, s13, {96*16}", f"s_add_u32 s86, s86, {RS}", "v_lshl_add_u32 v34, v34, 4, s86",
           "v_lshrrev_b32 v7, 4, v0", "s_mul_i32 s79, s14, 384", f"s_add_u32 s79, s79, {CF}", "v_lshl_add_u32 v35, v7, 4, s79",
           f"s_mul_i32 s86, s13, {96*4}", f"s_add_u32 s86, s86, {RR}", "v_lshl_add_u32 v7, v7, 4, s86"]
    E(interleave(allm(1), pre + com, 2))

def flagstore(kind):
    m = (1 << (8*OPT["nrep"])) - 1
    A(f"s_add_u32 s86, s15, {kind << 20}\ns_mov_b64 exec, {hex(m) if m < (1<<32) else -1}\nbuffer_store_dwordx4 v[36:39], v6, {WS}, s86 offen sc1\ns_mov_b64 exec, -1")
def gsig():
    if OPT["gate"]: A(ldsadd(32, 2, 3))
rsrd = lambda a: f"ds_read_b128 {v(CB+4*a,4)}, v34 offset:{256*a}"
C1 = -2.0*0.7978845608028654*1.4426950408889634
cst = []
for a in range(6):
    b = CB+4*a
    cst += [f"v_mul_f32 v{b+3}, {hx(C1)}, v{b+1}", f"v_mul_f32 v{b+1}, v{b+1}, v{b+1}",
            f"v_mul_f32 v{b+1}, {hx(0.044715)}, v{b+1}", f"v_mul_f32 v{b+1}, v{b+1}, v{b+3}"]
wb2 = lambda buf: 64 + 8*buf
mainloop('G', treads('G', 0, (0, 3), wb2))
def tregs(u, a):
    return (8 + 8*(a & 1), 24 + 4*(a & 1), [acc(2*a + j//2, u) + 2*(j & 1) for j in range(4)],
            [acc(2*a + j//2, u+3) + 2*(j & 1) for j in range(4)], [CB+4*(2*a + j//2) for j in range(4)])
def stA(u, a):
    T, P, gp, up, cb = tregs(u, a)
    return ([f"v_pk_fma_f32 {v(gp[j],2)}, {v(80+2*(j&1),2)}, {v(cb[j],2)}, {v(gp[j],2)} op_sel_hi:[1,0,1]" for j in range(4)]
          + [f"v_pk_mul_f32 {v(T+2*j,2)}, {v(gp[j],2)}, {v(gp[j],2)}" for j in range(4)]
          + [f"v_pk_fma_f32 {v(T+2*j,2)}, {v(T+2*j,2)}, {v(cb[j],2)}, {v(cb[j]+2,2)} op_sel:[0,1,1] op_sel_hi:[1,1,1]" for j in range(4)]
          + [f"v_pk_mul_f32 {v(T+2*j,2)}, {v(T+2*j,2)}, {v(gp[j],2)}" for j in range(4)])
for u in range(3):
    crd = [f"ds_read_b128 v[80:83], v35 offset:{64*u}", f"ds_read_b128 v[84:87], v35 offset:{64*(u+3)}"]
    ex_ = {1: [rsrd(a) for a in range(4)], 2: [rsrd(4), rsrd(5)] + crd, 3: cst} if u == 0 else {0: crd}
    tphase('G', (u, u+3), wb2, u == 0, u == 2, treads('G', 0, (u+1, u+4), wb2) if u < 2 else [], ex_)
    if u: A("s_waitcnt vmcnt(0)"); flagstore(u-1)
    else: A("s_nop 3")
    if u == 0: stamp((1, 3))
    if u == 2: stamp((3, 1))
    E(stA(u, 0))
    for a in range(3):
        T, P, gp, up, cb = tregs(u, a)
        E(interleave([f"v_exp_f32 v{T+j}, v{T+j}" for j in range(8)],
            [f"v_pk_fma_f32 {v(up[j],2)}, {v(84+2*(j&1),2)}, {v(cb[j],2)}, {v(up[j],2)} op_sel_hi:[1,0,1]" for j in range(4)]
          + [f"v_pk_mul_f32 {v(gp[j],2)}, {v(gp[j],2)}, {v(up[j],2)}" for j in range(4)], 1))
        for j in range(4): A(f"v_pk_fma_f32 {v(T+2*j,2)}, {v(T+2*j,2)}, {v(cb[j]+2,2)}, {v(cb[j]+2,2)} op_sel_hi:[1,0,0]")
        nxt = stA(u, a+1) if a < 2 else []
        E(interleave([f"v_rcp_f32 v{T+j}, v{T+j}" for j in range(8)], nxt[:12], 2))
        for j in range(4): A(f"v_pk_mul_f32 {v(T+2*j,2)}, {v(T+2*j,2)}, {v(gp[j],2)}")
        for j in (0, 2, 1, 3): A(f"v_cvt_pk_bf16_f32 v{P+j}, v{T+2*j}, v{T+2*j+1}")
        E(nxt[12:14])
        sk = L("GS")
        A(f"s_bitcmp1_b32 s11, {3*a+u}\nv_permlane16_swap_b32 v{P}, v{P+2}\nv_permlane16_swap_b32 v{P+1}, v{P+3}\ns_cbranch_scc0 {sk}")
        A(f"buffer_store_dwordx4 {v(P,4)}, v1, {H}, s{80+u} offen offset:{1024*a} sc1")
        A.label(sk)
        E(nxt[14:])
    if u == 0: stamp((2, 3))
stamp((4, 1), (4, 3))
A("L_PUB:")
gsig()
A("L_PUB2:\ns_waitcnt vmcnt(0)"); flagstore(2)
A("s_branch L_SPART")
if OPT["dead"]:
    A("L_DEAD:\ns_barrier\ns_add_u32 s83, s83, 1\ns_cmp_lt_u32 s83, 7\ns_cbranch_scc1 L_DEAD")
    A(ldsadd(40, 32, 33)); flagstore(0); flagstore(1)
    A("s_branch L_PUB")

A("L_QKV:")
RV, MV, ONE, G = 88, 8, 76, 8
cst = f"""s_mov_b32 s70, {hx(1.4426950408889634)}
s_mov_b32 s71, {hx(1.4426950408889634)}
s_mov_b32 s72, {hx(1e-6)}
s_mov_b32 s73, {hx(1e-6)}
s_mov_b32 s74, 0xffff0000
s_mov_b32 s75, 0xffff0000
s_sub_u32 s87, s7, 15
s_lshl_b32 s87, s87, 1
s_add_u32 s87, s87, s14
s_mul_i32 s77, s87, {24*3072}
s_add_u32 s77, s77, {WS_KV}
s_lshl_b32 s78, s6, 1
s_add_u32 s78, s78, s13
s_mul_i32 s78, s78, 3072
s_add_u32 s78, s78, s77""".split("\n")
wb4 = lambda buf: 64 + 16*buf
mainloop('Q', treads('Q', 0, (2, 3, 4, 5), wb4) + cst)
rvr = lambda a: f"ds_read_b128 {v(RV+4*a,4)}, v7 offset:{64*a}"
mvr = lambda a: f"ds_read_b128 {v(MV+4*a,4)}, v7 offset:{MR-RR+64*a}"
x3 = ["v_and_b32 v75, 15, v0", "v_lshl_add_u32 v75, v75, 2, s79"] + [f"ds_read_b32 v{72+j}, v75 offset:{128+64*j}" for j in range(4)] \
   + [f"v_mov_b32 v{ONE+j}, 0x3f803f80" for j in range(4)] + [rvr(5), rvr(4)]
q0 = treads('Q', 0, (0, 1), wb2)
x3 += q0[:4] + [mvr(5), mvr(4), "s_waitcnt lgkmcnt(4)"] + q0[4:]
assert len(x3) > 23
tphase('Q', (2, 3, 4, 5), wb4, True, False, x3, {}, rows=(5, 4, 3, 2, 1, 0))
A("s_waitcnt lgkmcnt(6)")
for a in (3, 2, 1, 0): A(rvr(a)); A(mvr(a))
stamp((1, 3))
def phi2(pairs, T, dst):
    for j in range(8): A(f"v_pk_mul_f32 {v(T[j],2)}, {v(pairs[j],2)}, s[70:71]")
    for j in range(16):
        r = pairs[j//2] + (j & 1); t_ = T[j//2] + (j & 1)
        A(f"v_exp_f32 v{t_}, v{t_} clamp\nv_max_f32 v{r}, s72, v{r}")
    for j in range(8): A(f"v_pk_add_f32 {v(T[j],2)}, {v(T[j],2)}, {v(pairs[j],2)}")
    for j in range(8): A(f"v_cvt_pk_bf16_f32 v{dst[j]}, v{T[j]}, v{T[j]+1}")
prs = lambda a, j0: [acc(2*a + (j % 4)//2, j0 + j//4) + 2*(j & 1) for j in range(8)]
KVa, KVb, Za, Zb = acc(5,2), acc(5,3), acc(5,4), acc(5,5)
for a in (2, 1, 0):
    if a == 1: A("s_bitcmp1_b32 s11, 0\ns_cbranch_scc0 L_KVS\ns_waitcnt lgkmcnt(0)")
    off = lambda j: 4*(2*a + (j % 4)//2) + 2*(j & 1)
    pv = prs(a, 4); pk = prs(a, 2)
    PV = acc(2*a, 4); PK = acc(2*a, 2)
    TL = [acc(2*a+1, 4) + 2*j for j in range(4)] + [80 + 2*j for j in range(4)]
    for j in range(8): A(f"v_pk_mul_f32 {v(pv[j],2)}, {v(pv[j],2)}, {v(RV+off(j),2)}")
    for j in range(8): A(f"v_pk_fma_f32 {v(pk[j],2)}, {v(pk[j],2)}, {v(RV+off(j),2)}, s[72:73]")
    for j in range(8): A(f"v_pk_fma_f32 {v(pv[j],2)}, {v(MV+off(j),2)}, v[74:75], {v(pv[j],2)} op_sel:[0,{j//4},0] op_sel_hi:[1,{j//4},1]")
    for j in range(8): A(f"v_pk_fma_f32 {v(pk[j],2)}, {v(MV+off(j),2)}, v[72:73], {v(pk[j],2)} op_sel:[0,{j//4},0] op_sel_hi:[1,{j//4},1]")
    for j in range(8): A(f"v_cvt_pk_bf16_f32 v{PV+j}, v{pv[j]}, v{pv[j]+1}")
    phi2(pk, TL, [PK+j for j in range(8)])
    c0 = 0 if a == 2 else None
    A(mf16(KVa, PK, PV, c0)); A(mf16(KVb, PK+4, PV+4, c0)); A(mf16(Za, ONE, PK, c0)); A(mf16(Zb, ONE, PK+4, c0))
    if a: A("s_nop 3")
A("L_KVS:\ns_waitcnt lgkmcnt(0)")
G = 96
for j in (3, 7, 11): A(f"v_mov_b32 v{G+j}, {TAG}")
A("s_nop 4")
for j in range(4): A(f"v_permlane16_swap_b32 v{KVa+j}, v{KVb+j}")
for j in range(8): A(f"v_mov_b32 v{G+4*(j//3)+j%3}, v{KVa+j}")
A(f"v_cndmask_b32 v{G+10}, v{Za}, v{Zb}, s[74:75]")
for g_ in range(3): A(f"buffer_store_dwordx4 {v(G+4*g_,4)}, v6, {WS}, s78 offen offset:{1024*g_} sc1")
stamp((2, 3))
CTr = lambda p: acc(p, 2)
rsetup = cap(lambda: (A(f"""s_lshr_b32 s79, s6, 1
s_lshl_b32 s86, s79, 8
s_add_u32 s86, s86, s77
v_lshrrev_b32 v7, 4, v0
v_mul_u32_u24 v7, 3072, v7
v_and_b32 v{acc(0,5)}, 15, v0
v_lshl_add_u32 v7, v{acc(0,5)}, 4, v7
v_add_u32 v7, s86, v7"""), [A(f"v_mov_b32 v{CTr(5)+j}, " + (TAG if j % 4 == 3 else "0")) for j in range(12)],
    A("s_and_b32 s78, s6, 9\ns_add_u32 s78, s78, 2")))
tphase('Q', (0, 1), wb2, False, True, [], {0: rsetup[:11], 1: rsetup[11:] + [rsrd(a) for a in (5, 4, 3, 2)],
       2: [rsrd(1), rsrd(0), "ds_read_b128 v[80:83], v35", "ds_read_b128 v[84:87], v35 offset:64"]}, rows=(5, 4, 3, 2, 1, 0))
A("s_nop 3")
stamp((3, 1))
def rloads():
    for p in range(6):
        A(f"s_mov_b32 s86, {12288*p}")
        if p == 5: A("s_mov_b32 exec_hi, 0")
        for g_ in range(3): A(f"buffer_load_dwordx4 {v(CTr(p)+4*g_,4)}, v7, {WS}, s86 offen offset:{1024*g_} sc1")
    A("s_mov_b32 exec_hi, -1")
def rissue(t):
    if OPT["rq"] == t:
        A("s_cmp_eq_u32 s78, s4\ns_cbranch_scc0 L_NORI"); rloads(); stamp((4, 3)); A("L_NORI:")
rissue(0)
for a in (2, 1, 0):
    if a == 1: A("s_bitcmp1_b32 s11, 0\ns_cbranch_scc0 L_PUB")
    D_ = 40 + 8*a
    pq_ = prs(a, 0); cbq = lambda j: v(CB+4*(2*a + (j % 4)//2), 2)
    for j in range(8): A(f"v_pk_fma_f32 {v(pq_[j],2)}, {v(80+4*(j//4)+2*(j&1),2)}, {cbq(j)}, {v(pq_[j],2)} op_sel_hi:[1,0,1]")
    for j in range(8): A(f"v_pk_fma_f32 {v(pq_[j],2)}, {v(pq_[j],2)}, {cbq(j)}, s[72:73] op_sel:[0,1,0] op_sel_hi:[1,1,1]")
    phi2(pq_, [8+2*j for j in range(8)], [D_+j for j in range(8)])
    for hd in range(2):
        A(f"v_permlane16_swap_b32 v{D_+4*hd}, v{D_+4*hd+2}\nv_permlane16_swap_b32 v{D_+4*hd+1}, v{D_+4*hd+3}")
    A(f"buffer_store_dwordx4 {v(D_,4)}, v1, {H}, 0 offen offset:{1024*a} sc1")
    A(f"buffer_store_dwordx4 {v(D_+4,4)}, v1, {H}, s81 offen offset:{1024*a} sc1")
    rissue(3-a)
stamp((4, 1))
A("s_cmp_eq_u32 s78, s4\ns_cbranch_scc0 L_PUB")
gsig()
f_addr(9)
A(f"s_mov_b32 s88, 0\ns_waitcnt vmcnt({2*(3-OPT['rq'])})\nL_KVC:")
tagcheck(8, 64, [CTr(n//3)+4*(n%3)+3 for n in range(18)])
A(f"""v_cmp_ne_u32 vcc, 0, v8
s_add_u32 s88, s88, 1
s_cmp_gt_u32 s88, {OPT['spin']}
s_cbranch_scc1 L_KVD
s_cbranch_vccz L_KVD""")
rloads()
A("s_waitcnt vmcnt(0)\ns_branch L_KVC\nL_KVD:")
note("s88", 3)
rr = lambda p, j: CTr(p) + 4*(j//3) + j % 3
RA, RB = 12, 64
for j in range(9): A(f"v_add_f32 v{RA+j}, v{rr(0,j)}, v{rr(1,j)}")
for p in range(2, 6):
    for j in range(9): A(f"v_add_f32 v{RA+j}, v{RA+j}, v{rr(p,j)}")
for sw in (16, 32):
    for j in range(9): A(f"v_mov_b32 v{RB+j}, v{RA+j}")
    for j in range(9): A(f"v_permlane{sw}_swap_b32 v{RA+j}, v{RB+j}")
    for j in range(9): A(f"v_add_f32 v{RA+j}, v{RA+j}, v{RB+j}")
A(f"""s_lshr_b32 s86, s79, 1
s_lshl_b32 s86, s86, 3
s_add_u32 s87, s86, 2
s_add_u32 s88, s86, 4
s_add_u32 s89, s86, 6
v_mov_b32_dpp v{RA+9}, v{RA+8} row_shl:1 row_mask:0xf bank_mask:0xf""")
for j in range(4): A(f"v_cvt_pk_bf16_f32 v{RB+j}, v{RA+2*j}, v{RA+1+2*j}")
A(f"""v_cvt_pk_bf16_f32 v{RA+9}, v{RA+8}, v{RA+9}
s_bitcmp1_b32 s79, 0
s_cselect_b64 s[80:81], -1, 0
s_xor_b64 s[80:81], s[80:81], s[74:75]""")
for j in range(4): A(f"v_readlane_b32 s{70+j}, v{RA+9}, s{86+j}")
for j in range(4): A(f"v_mov_b32 v{RB+4+j}, s{70+j}")
for j in range(4): A(f"v_cndmask_b32 v{RB+8+j}, v{RB+j}, v{RB+4+j}, s[80:81]")
A(f"""s_mov_b32 exec_hi, 0
buffer_store_dwordx4 {v(RB+8,4)}, v9, {WS}, 0 offen sc1
s_mov_b32 exec_hi, -1
s_waitcnt vmcnt(1)""")
stamp((5, 3))
flagstore(2)

A("L_SPART:")
if OPT["sprio"] != OPT["prio"]: A(f"s_setprio {OPT['sprio']}")
stamp((5, 1), (3, 3))
xres_addr(1, 8); xres_load()
w2addr(4, 8, False)
A(f"""s_lshl_b32 s86, s4, 3
s_add_u32 s86, s86, 86
s_lshl_b32 s86, s86, 16
s_lshl_b32 s87, s84, 11
s_add_u32 s86, s86, s87
v_lshl_add_u32 v2, v0, 4, s86
s_mul_i32 s88, s84, 43
s_lshr_b32 s88, s88, 7
s_mul_i32 s88, s88, 23
s_lshl_b32 s87, s4, 1
s_add_u32 s88, s88, s87
s_add_u32 s88, s88, 15
s_lshl_b32 s88, s88, 12
s_add_u32 s88, s88, {WS_FLAG}
v_and_b32 v3, 7, v0
v_lshl_add_u32 v3, v3, 10, s88
s_lshl_b32 s74, s4, 13
s_add_u32 s74, s74, {WS_F}
v_lshl_add_u32 v8, v0, 4, s74
s_lshl_b32 s86, s4, 2
s_add_u32 s86, s86, {LF}
v_mov_b32 v10, s86
s_mov_b32 s72, {hx(1e-6)}
s_movk_i32 s73, 4096
s_mov_b32 s89, 0""")
if OPT["warm"]:
    assert OPT["sd"] == 8
    A("s_mov_b32 s75, 1\ns_mov_b64 exec, 0\ns_branch L_PIPE\nL_WBACK:\ns_mov_b32 s75, 0\ns_mov_b64 exec, -1")
stamp((1, 4))
if OPT['sdelay']: A(f"s_sleep {OPT['sdelay']}")
if OPT["comb"]:
    A("v_add_u32 v3, 48, v10"); spin_lds(3, 9)
else: spin_flag(3, 9, 8, 2)
note("s88", 4)
stamp((6, 1), (2, 4))
SD = OPT["sd"]
rho8()
A("s_lshl_b32 s78, s75, 2\ns_lshr_b32 s79, s75, 4")
def pqload(k):
    return [f"s_xor_b32 s86, s78, {k*65536}",
            f"buffer_load_dwordx4 {v(16+8*k,4)}, v2, {H}, s86 offen sc1",
            f"buffer_load_dwordx4 {v(20+8*k,4)}, v2, {H}, s86 offen offset:1024 sc1"]
def floads():
    for k in range(8):
        if k % 2 == 0: A(f"s_xor_b32 s86, s79, {k*1024}")
        A(f"buffer_load_dwordx4 {v(80+4*k,4)}, v8, {WS}, s86 offen offset:{1024*(k%2)} sc1")
if OPT["ffirst"]: floads()
for k in range(SD):
    if OPT["sdep"]: A(f"s_waitcnt vmcnt({OPT['sdep']-2})")
    E(pqload(k))
if OPT["ffirst"]: A(f"s_waitcnt vmcnt({2*SD})\ns_branch L_FC")
if OPT["hints"]:
    A(f"s_lshl_b32 s86, s4, 14\ns_add_u32 s86, s86, {WS_FF}\nv_lshl_add_u32 v9, v0, 10, s86")
    spin_flag(9, 11, 16)
else: A(f"s_waitcnt vmcnt({OPT['fafter']})")
A("s_branch L_FL\nL_FQ:\ns_sleep 8\nL_FL:")
floads()
A("s_waitcnt vmcnt(0)\nL_FC:\ns_add_u32 s89, s89, 1")
E(vmax(112, [80+4*k for k in range(8)]))
A(f"""v_cmp_eq_u32 vcc, -1, v112
s_cmp_gt_u32 s89, {OPT['spin']}
s_cbranch_scc1 L_FPD
s_cbranch_vccnz L_FQ
L_FPD:""")
note("s89", 4); note("s89", 1)
stamp((6, 3), (3, 4))
woloc = lambda k: (1, k) if k < 6 else (2, k-2)
def Om(k): return [mfma(128+32*(k&1)+16*r, 80+4*k, 16+8*k+4*r, 0) for r in range(2)]
def Vv(k):
    o = []
    D = [128+32*(k&1)+16*r for r in range(2)]
    nd = [((d, d+8) if k % 2 == 0 else (d+8, d)) for d in D]
    for num, den in nd: o.append(f"v_add_f32 v{den}, s72, v{den}")
    for num, den in nd: o.append(f"v_rcp_f32 v{den}, v{den}")
    for r, (num, den) in enumerate(nd):
        if OPT["spk"]:
            for j in range(4): o.append(f"v_pk_mul_f32 {v(num+2*j,2)}, {v(num+2*j,2)}, {v(den,2)} op_sel_hi:[1,0]")
        else:
            for j in range(8): o.append(f"v_mul_f32 v{num+j}, v{num+j}, v{den}")
        for j in range(4): o.append(f"v_cvt_pk_bf16_f32 v{16+8*k+4*r+j}, v{num+2*j}, v{num+2*j+1}")
    return o
def Sm(k): return [mfmaH(192+32*r+16*c, 112+8*(k&1)+4*c, 16+8*k+4*r, 0 if k <= OPT['h16'] else None, k & 1) for r in range(2) for c in range(2)]
issued = [SD]
def need(k):
    o = [f"s_waitcnt vmcnt({2*(issued[0]-1-k)})"]
    more = []
    if issued[0] < 8: more = pqload(issued[0]); issued[0] += 1
    return o, more
A('L_PIPE:')
E(w2read(112, *woloc(0), 4, False))
for k in (0, 1):
    w_, m_ = need(k); E(w_ + Om(k) + m_)
E(Vv(0))
for k in range(8):
    A("s_waitcnt lgkmcnt(0)")
    fill = (w2read(112+8*((k+1)&1), *woloc(k+1), 4, False) + Vv(k+1)) if k+1 < 8 else []
    if k == 7:
        fill = cap(lambda: (wraddr(80, False), rdaddr(4, False, 1, 88), A(f"s_lshl_b32 s86, s4, 11\ns_add_u32 s86, s86, {GB}\nv_lshl_add_u32 v9, v0, 4, s86"),
            [A(f"v_lshlrev_b32 v{112+2*j}, 16, v{12+j}\nv_and_b32 v{113+2*j}, 0xffff0000, v{12+j}") for j in range(4)]))
    NF = 16 if OPT['spk'] else 20
    if k == 7: NF = 28
    E(interleave(Sm(k), fill[:NF], NF//4))
    if k+2 < 8:
        w_, m_ = need(k+2); E(w_); E(interleave(Om(k+2), fill[NF:] + m_, 6))
    else: E(fill[NF:])
    if k == 3: stamp((4, 4))
if OPT["warm"] == 1: A("s_cmp_eq_u32 s75, 1\ns_cbranch_scc1 L_WBACK")
stamp((7, 1), (5, 4))
final(False)
stamp((6, 4))
A("s_barrier\nds_read_b128 v[88:91], v9\nds_read_b128 v[92:95], v9 offset:1024\ns_branch L_FIN2")

A("L_FINAL:")
stamp((6, 4))
A("s_barrier")
A("L_FIN2:")
stamp((7, 3), (7, 4))
rd4(48, 4)
A("s_waitcnt lgkmcnt(0)")
sum4(48)
for j in range(4): A(f"v_pk_fma_f32 {v(48+2*j,2)}, {v(48+2*j,2)}, {v(88+2*j,2)}, {v(112+2*j,2)}")
for j in range(4): A(f"v_cvt_pk_bf16_f32 v{24+j}, v{48+2*j}, v{49+2*j}")
if OPT["warm"] == 2: A("s_cbranch_execz L_WBACK")
A(f"""buffer_store_dwordx4 v[24:27], v1, {OUT}, 0 offen {['', 'sc1', 'nt', 'sc0 sc1'][OPT['osc']]}
s_add_u32 s86, s2, s3
s_cmp_eq_u32 s86, 0
s_cbranch_scc0 L_NOBUMP
v_mov_b32 v2, 0
v_mov_b32 v3, {TAG}
buffer_store_dword v3, v2, {WS}, 0 offen sc1
L_NOBUMP:""")
if OPT["stamps"]:
    A("s_waitcnt vmcnt(0)")
    stamp((8, 0))
    A(f"""s_memrealtime s[68:69]
s_waitcnt lgkmcnt(0)
s_mov_b32 s101, s68""")
    if OPT["diag"]:
        A(f"""s_cmp_lg_u32 s2, 64
s_cbranch_scc1 L_END
s_cmp_lg_u32 s3, {OPT['dwave']}
s_cbranch_scc1 L_END
s_sub_u32 s86, s{92+OPT['diag']}, s34
s_lshl_b32 s86, s86, 2
s_min_u32 s86, s86, 20000
L_DSPIN:
s_memrealtime s[68:69]
s_waitcnt lgkmcnt(0)
s_sub_u32 s87, s68, s101
s_cmp_lt_u32 s87, s86
s_cbranch_scc1 L_DSPIN
s_endpgm""")
    A(f"""s_lshl_b32 s86, s2, 3
s_add_u32 s86, s86, s3
s_lshl_b32 s86, s86, 6
s_add_u32 s86, s86, {WS_DBG}
v_mov_b32 v2, s86""")
    for i in range(10): A(f"v_mov_b32 v3, s{92+i}\nbuffer_store_dword v3, v2, {WS}, 0 offen offset:{4*i}")
    A(f"v_mov_b32 v3, s34\nbuffer_store_dword v3, v2, {WS}, 0 offen offset:40")
    A(f"v_mov_b32 v3, s35\nbuffer_store_dword v3, v2, {WS}, 0 offen offset:44")
A("L_END:\ns_endpgm")

lines, errs = pad(A.lines)
for e in errs: print("HAZARD:", e, file=sys.stderr)
hdr = open("cdna_kernels/%s.s.ref" % NAME).read().split("; Override launch")[0]
out = hdr + f"""; Fused single-launch kernel (generated by my own generator script gen/gen.py).
; @launch grid=(256,1,1) block=(512,1,1) lds={LDS}
.amdgcn_target "amdgcn-amd-amdhsa--gfx950"
.text
.globl {NAME}_kernel
.p2align 8
.type {NAME}_kernel,@function
{NAME}_kernel:
""" + render(lines) + f""".section .rodata,"a"
.p2align 6
.amdhsa_kernel {NAME}_kernel
  .amdhsa_next_free_vgpr 256
  .amdhsa_next_free_sgpr 102
  .amdhsa_accum_offset 256
  .amdhsa_group_segment_fixed_size 0
  .amdhsa_kernarg_size 80
  .amdhsa_user_sgpr_count 2
  .amdhsa_user_sgpr_kernarg_segment_ptr 1
  .amdhsa_system_sgpr_workgroup_id_x 1
.end_amdhsa_kernel
"""
open(sys.argv[1], "w").write(out)
```

```python
import sys, struct
from asmlib import *
NAME = "recurrent_scan__linear_attn_block__glu_gated_geglu__prompt"
OPT = dict(stamps=0, rot=4, prio=1, pfcode=1, spin=1<<17, thr=4, unthr=41, n7=1, ca=14, cb=22, h=5, mix=0, sub=0,
           psleep=2, ydep=5, sdep=0, w2late=3, p2map=1, stage=1, sprio=1, ydelay=-1, sdelay=0, fdelay=0, rdelay=0, xlate=0, now2=0, sd=3, apoll=0, fgate=1, rt=1, zf=1, nr=0, r0=3, lred=0, prew=0, hints=0, comb=1, fafter=0, h16=0, gate=4, ffirst=1, warm=0, nodma=0, redearly=1, xz=1, gmix=0, qmix=0, qnop=0, bpos=0, rgap=3, spk=0, diag=0, dwave=4, nrep=2, nl=4, p1=1, p2=7, osc=0, gpos=1, c2=9, yprio=2, ydrop=22, ypost=0, mord=0, adapt=1, ypk=0, nb=3, pf2=-1, drot=0, xfirst=1, nostat=0, w1pf=-9, slow=0, dead=1, qg=0, rq=1, tfrom=6, nc=0, thr2=4, nraw=6, krot=0, slo=0, shi=0, sn=4, nearly=0, e0=3, e1=6)
for a in sys.argv[2:]:
    k, v_ = a.split("="); assert k in OPT, k; OPT[k] = int(v_, 0)
def f2u(x): return struct.unpack("<I", struct.pack("<f", x))[0]
def hx(x): return "0x%08x" % f2u(x)

SLOT = 49152; XW = 24576; UPOFF = 12288; MISC = 3*SLOT; LDS = 163840
RS = MISC; RR = MISC+3072; CF = MISC+3840; MR = MISC+4608; LF = MISC+5376; GB = MISC+5632
Q = 12288
WS_RS = 0x10000; WS_CS = 0x20000; WS_FLAG = 0x300000; WS_FF = 0x60000; WS_DBG = 0x80000; WS_F = 0xC0000; WS_KV = 0x100000; WS_H = 0x800000
X="s[36:39]"; W="s[40:43]"; WS="s[44:47]"; H="s[48:51]"; WD="s[56:59]"; WO="s[60:63]"; OUT="s[64:67]"
TAG="s10"
def v(b, n=1): return f"v{b}" if n == 1 else f"v[{b}:{b+n-1}]"
def mfma(d, a, b, c=None):
    return f"v_mfma_f32_32x32x16_bf16 {v(d,16)}, {v(a,4)}, {v(b,4)}, " + ("0" if c == 0 else v(d,16))
def mfmaH(d, a, b, c, alt):
    if not OPT["h16"]: return mfma(d, a, b, c)
    return mf16(d+8*alt, a, b, c) + "\n" + mf16(d+8*alt+4, a ^ 4, b, c)
def mf16(d, a, b, c=None):
    return f"v_mfma_f32_16x16x32_bf16 {v(d,4)}, {v(a,4)}, {v(b,4)}, " + ("0" if c == 0 else v(d,4))
def bc(r): return v(r & ~1, 2), r & 1
_lab = [0]
def L(p="L"):
    _lab[0] += 1; return f"{p}_{_lab[0]}"
A = Asm()
def E(lst):
    for t in lst: A(t)
def cap(fn):
    n = len(A.lines); fn(); o = [t for _, t in A.lines[n:]]; del A.lines[n:]; return o
def stamp(*pairs):
    for i, st in pairs:
        if OPT["stamps"] == st or (OPT["stamps"] and st == 0):
            A(f"{'s_memrealtime' if (OPT['rt'] and i != 8) else 's_memtime'} s[68:69]\ns_waitcnt lgkmcnt(0)\ns_mov_b32 s{92+i}, s68")
def note(reg, st):
    if OPT["stamps"] == st: A(f"s_mov_b32 s35, {reg}")
def srd(name, lo, size, add=0):
    b = int(name[2:4])
    if add: A(f"s_add_u32 s{b}, s{lo}, {add}\ns_addc_u32 s{b+1}, s{lo+1}, 0")
    else: A(f"s_mov_b32 s{b}, s{lo}\ns_mov_b32 s{b+1}, s{lo+1}")
    A(f"s_mov_b32 s{b+2}, {size}\ns_mov_b32 s{b+3}, 0x20000")
def spin_flag(vaddr, vt, nl, kind=None, first=0):
    l1, l2 = L("POLL"), L("POLLD")
    A(f"""s_mov_b32 s88, {first}
s_mov_b64 exec, {hex((1<<nl)-1)}
{l1}:
s_and_b32 s87, s88, {OPT['nrep']-1}
s_lshl_b32 s87, s87, 7""")
    if kind: A(f"s_add_u32 s87, s87, {kind << 20}")
    A(f"""buffer_load_dword {v(vt)}, {v(vaddr)}, {WS}, s87 offen sc1
s_add_u32 s88, s88, 1
s_waitcnt vmcnt(0)
v_cmp_ne_u32 vcc, {TAG}, {v(vt)}
s_cmp_gt_u32 s88, {OPT['spin']}
s_cbranch_scc1 {l2}
s_cbranch_vccz {l2}
s_sleep {OPT['psleep']}
s_branch {l1}
{l2}:
s_mov_b64 exec, -1""")
def spin_lds(vaddr, vt, need=1):
    l1, l2 = L("LP"), L("LPD")
    A(f"""s_mov_b32 s86, 0
{l1}:
ds_read_b32 {v(vt)}, {v(vaddr)}
s_add_u32 s86, s86, 1
s_waitcnt lgkmcnt(0)
v_cmp_gt_u32 vcc, {need}, {v(vt)}
s_cmp_gt_u32 s86, {OPT['spin']*8}
s_cbranch_scc1 {l2}
s_cbranch_vccz {l2}
s_sleep 1
s_branch {l1}
{l2}:""")
def vmax(dst, regs_):
    o = []; r = list(regs_)
    if len(r) == 2: return [f"v_max_u32 v{dst}, v{r[0]}, v{r[1]}"]
    o.append(f"v_max3_u32 v{dst}, v{r[0]}, v{r[1]}, v{r[2]}"); r = r[3:]
    while r:
        if len(r) >= 2: o.append(f"v_max3_u32 v{dst}, v{dst}, v{r[0]}, v{r[1]}"); r = r[2:]
        else: o.append(f"v_max_u32 v{dst}, v{dst}, v{r[0]}"); r = r[1:]
    return o
def tagcheck(dst, tmp, regs_):
    for n, r in enumerate(regs_): A(f"v_xor_b32 v{dst if n == 0 else tmp+n}, {TAG}, v{r}")
    n = 1
    while n < len(regs_):
        if n+1 < len(regs_): A(f"v_or3_b32 v{dst}, v{dst}, v{tmp+n}, v{tmp+n+1}"); n += 2
        else: A(f"v_or_b32 v{dst}, v{dst}, v{tmp+n}"); n += 1

A(f"""s_cmp_ge_u32 s2, 256
s_cbranch_scc1 L_END
s_load_dwordx16 s[16:31], s[0:1], 0
s_load_dwordx2 s[32:33], s[0:1], 72""")
if OPT["stamps"]: A("s_memrealtime s[34:35]\ns_memtime s[68:69]")
A(f"""v_lshrrev_b32 v1, 6, v0
v_and_b32 v0, 63, v0
v_readfirstlane_b32 s3, v1
s_and_b32 s5, s2, 7
s_lshr_b32 s86, s2, 3""")
if OPT["p2map"] == 0:
    A("s_lshl_b32 s84, s5, 2\ns_lshr_b32 s87, s86, 3\ns_add_u32 s84, s84, s87\ns_and_b32 s85, s86, 7")
else:
    A("""s_lshr_b32 s84, s5, 1
s_lshl_b32 s84, s84, 3
s_lshr_b32 s87, s86, 2
s_add_u32 s84, s84, s87
s_and_b32 s85, s5, 1
s_lshl_b32 s85, s85, 2
s_and_b32 s87, s86, 3
s_add_u32 s85, s85, s87""")
A(f"""s_lshl_b32 s5, s5, 5
s_add_u32 s5, s5, s86
s_and_b32 s4, s3, 3
s_mov_b32 s12, 0
s_cmp_lt_u32 s5, 138
s_cbranch_scc0 L_BOT
s_mul_i32 s7, s5, 171
s_lshr_b32 s7, s7, 10
s_mul_i32 s86, s7, 6
s_sub_u32 s6, s5, s86
s_branch L_IDS
L_BOT:
s_cmp_ge_u32 s5, 253
s_cselect_b32 s12, 1, 0
s_cselect_b32 s86, 5, 0
s_sub_u32 s86, s5, s86
s_sub_u32 s86, s86, 138
s_mul_i32 s87, s86, 205
s_lshr_b32 s87, s87, 10
s_sub_u32 s7, 22, s87
s_mul_i32 s87, s87, 5
s_sub_u32 s6, s86, s87
s_add_u32 s6, s6, 6
L_IDS:
s_mov_b32 s90, s7""")
if OPT["mix"]:
    A("""s_mul_i32 s86, s7, 43
s_lshr_b32 s86, s86, 7
s_sub_u32 s87, s7, s86
s_lshl_b32 s88, s86, 1
s_sub_u32 s88, s87, s88
s_add_u32 s86, s86, 15
s_cmp_eq_u32 s7, 22
s_cselect_b32 s7, s86, s87
s_cmp_eq_u32 s88, 2
s_cselect_b32 s7, s86, s7""")
A(f"""s_mul_i32 s8, s6, 192
s_min_u32 s8, s8, 1856
s_mul_i32 s9, s7, 96
s_min_u32 s9, s9, 1280
s_cmp_lt_u32 s3, 4
s_cbranch_scc1 L_LOADER""")
def kwait():
    A("s_waitcnt lgkmcnt(0)\ns_load_dword s10, s[32:33], 0")
    if OPT["stamps"]: A("s_mov_b32 s92, s68")
    srd(X, 16, 2097152)
if OPT["prio"]: A(f"s_setprio {OPT['prio']}")
if OPT["pfcode"]:
    A(f"""s_getpc_b64 s[88:89]
L_PC:
s_sub_u32 s88, s88, L_PC-{NAME}_kernel
s_subb_u32 s89, s89, 0
s_lshr_b32 s86, s2, 3
s_lshl_b32 s86, s86, 3
s_lshl_b32 s87, s4, 1
s_add_u32 s86, s86, s87
v_and_b32 v3, 1, v0
v_add_u32 v3, s86, v3
v_lshlrev_b32 v3, 7, v3
v_min_u32 v3, L_END-{NAME}_kernel, v3
global_load_dword v47, v3, s[88:89]""")
A(f"""s_lshl_b32 s86, s5, 3
s_lshl_b32 s87, s4, 1
s_add_u32 s86, s86, s87
v_lshrrev_b32 v7, 5, v0
v_add_u32 v7, s86, v7
v_and_b32 v2, 31, v0
v_lshlrev_b32 v2, 4, v2
v_lshl_add_u32 v2, v7, 10, v2""")
kwait()
if not OPT["nostat"]: A(f"""buffer_load_dwordx4 v[8:11], v2, {X}, 0 offen
buffer_load_dwordx4 v[12:15], v2, {X}, 0 offen offset:512""")
stamp((1, 2))
A("s_branch L_COMPUTE\nL_LOADER:")

def w2addr(base, T, nat):
    a_, b_, c_, d_ = T, T+1, T+2, T+3
    A(f"""v_and_b32 v{a_}, 3, v0
v_bfe_u32 v{b_}, v0, 2, 2
v_bfe_u32 v{c_}, v0, 4, 1
v_lshrrev_b32 v{d_}, 5, v0
v_lshl_add_u32 v{d_}, v{d_}, {3 if nat else 2}, v{b_}
v_lshlrev_b32 v{d_}, 7, v{d_}
v_lshrrev_b32 v{b_}, 1, v{b_}
v_lshl_add_u32 v{c_}, v{b_}, 2, v{c_}
v_and_b32 v{b_}, 1, v{a_}
v_lshl_add_u32 v{c_}, v{b_}, 1, v{c_}
v_lshl_add_u32 v{d_}, v{c_}, 4, v{d_}
v_lshrrev_b32 v{a_}, 1, v{a_}
v_lshl_add_u32 v{d_}, v{a_}, 3, v{d_}
v_add_u32 v{base}, s76, v{d_}
v_xor_b32 v{d_}, 64, v{d_}
v_add_u32 v{base+1}, s76, v{d_}
v_add_u32 v{base+2}, {2*SLOT}, v{base}
v_add_u32 v{base+3}, {2*SLOT}, v{base+1}""")
def w2read(dst, slot, blk, ab, nat=True):
    o = []
    for c in range(2):
        for sec in range(2):
            ar = ab + c + (2 if slot == 2 else 0)
            off = (SLOT if slot == 1 else 0) + blk*2048 + sec*(512 if nat else 1024)
            o.append(f"ds_read_b64_tr_b16 {v(dst+4*c+2*sec,2)}, v{ar} offset:{off}")
    return o
def xres_addr(half, T):
    A(f"""s_lshl_b32 s86, s4, 4
s_lshl_b32 s87, s84, 6
s_add_u32 s86, s86, s87
s_add_u32 s86, s86, {8*half}
s_lshl_b32 s86, s86, 10
s_lshl_b32 s87, s85, 7
s_add_u32 s86, s86, s87
v_lshrrev_b32 v{T}, 3, v0
v_lshlrev_b32 v{T}, 10, v{T}
v_and_b32 v{T+1}, 7, v0
v_lshl_add_u32 v{T}, v{T+1}, 4, v{T}
v_add_u32 v1, s86, v{T}""")
def xres_load(late=0):
    if OPT["xlate"] == late: A(f"buffer_load_dwordx4 v[12:15], v1, {X}, 0 offen")
def p2setup():
    srd(WS, 32, 0x800000); srd(H, 32, 118*65536, WS_H); srd(WD, 28, 1376*1024); srd(WO, 20, 512*1024); srd(OUT, 30, 2097152)
    A(f"""v_lshrrev_b32 v24, 3, v0
v_lshlrev_b32 v24, 10, v24
v_and_b32 v25, 7, v0
v_bfe_u32 v26, v0, 4, 1
v_lshlrev_b32 v26, 2, v26
v_xor_b32 v25, v25, v26
v_lshl_add_u32 v24, v25, 4, v24
s_lshl_b32 s86, s85, 7
v_add_u32 v4, s86, v24
s_mul_i32 s87, s4, {3*16384}
v_add_u32 v2, s87, v4
s_add_u32 s87, s4, 84
s_lshl_b32 s87, s87, 14
v_add_u32 v3, s87, v4
s_lshl_b32 s87, s4, 17
v_add_u32 v4, s87, v4
s_mul_i32 s76, s4, {Q}
s_lshl_b32 s87, s84, 11
s_mul_i32 s86, s4, {3*65536}
s_add_u32 s86, s86, s87
v_lshl_add_u32 v6, v0, 4, s86
v_bfe_u32 v24, v0, 1, 3
v_lshlrev_b32 v24, 3, v24
s_lshr_b32 s86, s4, 1
s_lshl_b32 s86, s86, 2
s_and_b32 s90, s4, 1
s_add_u32 s86, s86, s90
v_add_u32 v24, s86, v24
v_min_u32 v24, 57, v24
v_cmp_eq_u32 vcc, 56, v24
v_cndmask_b32 v24, v24, 57, vcc
v_and_b32 v25, 1, v0
v_lshl_add_u32 v24, v25, 1, v24
s_lshl_b32 s86, s4, 3
s_add_u32 s86, s86, 44
v_add_u32 v25, s86, v0
v_cmp_lt_u32 vcc, 15, v0
v_cndmask_b32 v24, v24, v25, vcc
s_mul_i32 s86, s84, 43
s_lshr_b32 s86, s86, 7
s_mul_i32 s86, s86, {23*4096}
s_add_u32 s86, s86, {WS_FLAG}
v_lshl_add_u32 v5, v24, 10, s86
s_add_u32 s86, s4, 84
s_lshl_b32 s86, s86, 16
s_add_u32 s86, s86, s87
s_cmp_lt_u32 s4, 2
s_cselect_b32 s86, s86, 0x80000000
v_lshl_add_u32 v7, v0, 4, s86""")
    w2addr(8, 24, True); xres_addr(0, 24); rho8()
    A(f"s_waitcnt lgkmcnt(0)\ns_add_u32 {TAG}, {TAG}, 0x9E3779B9")
def wfrag_addr(dst, swc, T, lab):
    A(f"""v_and_b32 v{T}, 3, v0
v_bfe_u32 v{T+1}, v0, 2, 2
v_bfe_u32 v{T+2}, v0, 4, 1
s_cmp_ge_u32 s7, 15
s_cbranch_scc1 {lab}Q
v_lshrrev_b32 v{T+3}, 4, v0
v_lshl_add_u32 v{T+3}, v{T+3}, 3, v{T+1}
v_mul_u32_u24 v{T+3}, 192, v{T+3}
v_lshl_add_u32 v{T}, v{T}, 3, v{T+3}
v_add_u32 v{T}, {XW}, v{T}
s_mul_i32 s87, {swc}, 3
v_xor_b32 v{T+3}, s87, v{T+2}
v_lshl_add_u32 v{dst}, v{T+3}, 5, v{T}
s_add_u32 s87, s87, 1
v_xor_b32 v{T+3}, s87, v{T+2}
v_lshl_add_u32 v{dst+1}, v{T+3}, 5, v{T}
s_branch {lab}D
{lab}Q:
v_lshrrev_b32 v{T+3}, 5, v0
v_mul_u32_u24 v{T+3}, 3072, v{T+3}
v_lshl_add_u32 v{T+3}, v{T+1}, 7, v{T+3}
v_mul_u32_u24 v{T+4}, {UPOFF+32}, v{T+2}
v_lshrrev_b32 v{T+1}, 1, v{T+1}
v_xor_b32 v{T+1}, {swc}, v{T+1}
v_lshl_add_u32 v{T+4}, v{T+1}, 6, v{T+4}
v_lshl_add_u32 v{T}, v{T}, 3, v{T+3}
v_add_u32 v{T}, {XW}, v{T}
v_add_u32 v{dst}, v{T}, v{T+4}
v_xor_b32 v{dst+1}, 32, v{dst}
{lab}D:""")
def woff(role, s_, j, sec):
    if role == 'G':
        jj = j % 3
        return jj & 1, s_*6144 + sec*768 + (j//3)*UPOFF + (64 if jj == 2 else 0)
    return j & 1, s_*6144 + (j//2)*1024 + sec*512
def ksoff(kd): return 12*(kd % 7) + kd//7
S2R = [('o',6+k,2,4+k) for k in range(2)] + [('d',12+k,2,k) for k in range(4)]
S0R = [('d',16+k,0,k) for k in range(6)]
items = [('d',k,2,k) for k in range(6)] + [('d',6+k,2,k) for k in range(6)] + S2R + [('o',k,1,k) for k in range(6)] + S0R
N7 = OPT["n7"]
def rho8():
    if OPT["krot"]: A("s_add_u32 s12, s84, s85\ns_and_b32 s12, s12, 3\ns_lshl_b32 s12, s12, 15")
    else: A("s_mov_b32 s12, 0")
def ktable():
    if OPT["krot"]:
        A("""s_lshl1_add_u32 s86, s85, s84
s_mul_i32 s87, s86, 37
s_lshr_b32 s87, s87, 8
s_mul_i32 s87, s87, 7
s_sub_u32 s86, s86, s87""")
    else: A("s_mov_b32 s86, 0")
    A(f"s_mul_i32 s77, s86, {12*16384}")
    for i in range(1, 7):
        A(f"s_add_u32 s{77+i}, s{76+i}, {12*16384}\ns_cmp_eq_u32 s{77+i}, {84*16384}\ns_cselect_b32 s{77+i}, 0, s{77+i}")
def w2ops(kind, k, dst, thr=None):
    nm = kind + str(k)
    if kind == 'o': va, S_, so = 4, WO, f"s_xor_b32 s86, s12, {k*16384}"
    elif k < 21: va, S_, so = 2, WD, f"s_add_u32 s86, s{77 + k % 7}, {(k//7)*16384}"
    else: va, S_, so = 3, WD, "s_mov_b32 s86, 0"
    if isinstance(dst, tuple):
        pre = f"s_add_u32 m0, s76, {dst[0]*SLOT + dst[1]*2048}\n{so}\ns_add_u32 s87, s86, 7168"
        i1 = f"buffer_load_dwordx4 v{va}, {S_}, s86 offen lds"; i2 = f"buffer_load_dwordx4 v{va}, {S_}, s87 offen offset:1024 lds"
    else:
        pre = f"{so}\ns_add_u32 s87, s86, 8192"
        i1 = f"buffer_load_dwordx4 {v(dst,4)}, v{va}, {S_}, s86 offen"; i2 = f"buffer_load_dwordx4 {v(dst+4,4)}, v{va}, {S_}, s87 offen"
    tw = f"s_waitcnt vmcnt({thr})\n" if thr is not None else ""
    return [pre, f"VM {nm}a|{tw}{i1}", f"VM {nm}|{tw}{i2}"]
NE = OPT["nearly"]
def rawblocks():
    steps = list(range(OPT["e0"], OPT["e1"])); n = len(steps)
    for i, st in enumerate(steps):
        its = range(NE*i//n, NE*(i+1)//n)
        if not len(its): continue
        sk = L("RW")
        A(f"s_cmp_eq_u32 s83, {st}\ns_cbranch_scc0 {sk}")
        for k in its:
            for t in w2ops('o', k, 192+8*k): A(t.split("|")[-1])
        A.label(sk)
def w2item(n):
    for t in w2ops(items[n][0], items[n][1], items[n][2:]): A(t.split("|")[-1])

A(f"""s_cmp_ge_u32 s3, 2
s_cbranch_scc1 L_SIDE
s_add_u32 s79, s6, s90""")
R_ = OPT["drot"] or OPT["rot"]
A(f"s_and_b32 s79, s79, {R_-1}\ns_lshl_b32 s79, s79, { {1:0, 2:2, 4:1, 8:0}[R_] }")
A(f"""v_lshrrev_b32 v24, 3, v0
v_and_b32 v25, 7, v0
v_lshrrev_b32 v26, 4, v0
v_xor_b32 v27, v25, v26
s_mul_i32 s86, s4, 96
s_add_u32 s86, s86, s8
s_lshl_b32 s86, s86, 10
v_lshl_add_u32 v16, v24, 10, s86
v_lshl_add_u32 v16, v27, 4, v16
v_xor_b32 v17, 64, v16
v_add_u32 v18, {2*7168}, v16
v_add_u32 v19, {3*7168}, v17
v_add_u32 v17, 7168, v17
s_mul_i32 s74, s4, 12288
""")
XG = ["s70", "s71", "s72"]; WL = ["s52", "s53", "s54", "s55"]; WG = ["s73", "s77", "s14", "s15"]
sh = {2: 1, 4: 2, 8: 0, 1: 0}[R_]
if OPT["sub"]:
    A(f"""s_lshr_b32 s86, s90, {sh}
s_mul_i32 s87, s86, 43
s_lshr_b32 s87, s87, 7
s_mul_i32 s87, s87, 3
s_sub_u32 s86, s86, s87
""")
else:
    A("s_mov_b32 s86, 0")
A("""s_lshl_b32 s70, s86, 12
s_add_u32 s71, s70, 4096
s_cmp_eq_u32 s71, 12288
s_cselect_b32 s71, 0, s71
s_add_u32 s72, s70, s71
s_sub_u32 s72, 12288, s72""")
XN = ["s11", "s13", "s91"]
A(f"s_lshl_b32 s86, s4, 4\ns_add_u32 s86, s86, s6\ns_cmp_eq_u32 s86, 10\ns_cselect_b32 s88, {8192 if OPT['xz'] else 0}, 0\ns_cmp_eq_u32 s12, 1\ns_cselect_b32 s88, {65536 if OPT['xz'] else 0}, s88")
for g in range(3): A(f"s_cmp_lt_u32 {XG[g]}, s88\ns_cselect_b32 {XN[g]}, 0, 2097152")
A("s_lshl_b32 s80, s79, 7\ns_mov_b32 s88, s74")
kwait()
stamp((1, 2))
def issue_head():
    A(f"""s_lshl_b32 s80, s79, 7
s_mul_i32 s81, s79, s82
s_lshl_b32 s81, s81, 2
s_add_u32 s88, s78, s74
s_add_u32 s89, s78, s75""")
ORDER = ["x0", "w0", "x1", "w1", "x2", "w2", "w3"]
def issue_part(lo, hi, order=None):
    n = 0
    for it in (order or ORDER[lo:hi]):
        g = int(it[1])
        if it[0] == 'x':
            A(f"s_add_u32 m0, s88, {XG[g]}\ns_lshl3_add_u32 s86, {XG[g]}, s80\ns_mov_b32 s38, {XN[g]}")
            for q in range(4): A(f"buffer_load_dwordx4 v{16+q}, {X}, s86 offen offset:{1024*q} lds")
            n += 4
        else:
            A(f"s_add_u32 m0, s89, {WL[g]}\ns_add_u32 s87, s81, {WG[g]}")
            for j in range(3): A(f"buffer_load_dwordx4 v{20+j}, {W}, s87 offen offset:{1024*j} lds")
            n += 3
    return n
def issue_tail():
    A(f"""s_add_u32 s79, s79, 1
s_and_b32 s79, s79, 7
s_add_u32 s78, s78, {SLOT}
s_cmp_eq_u32 s78, {3*SLOT}
s_cselect_b32 s78, 0, s78""")
HH = OPT["h"]
issue_part(0, 0, ["x0", "x1", "x2"][:3 if OPT["xfirst"] == 1 else 1])
A(f"""s_mul_i32 s75, s4, {UPOFF}
s_add_u32 s75, s75, {XW}
s_mov_b32 s43, 0x20000
s_mov_b32 s78, 0
s_cmp_ge_u32 s7, 15
s_cbranch_scc1 L_LQKV
s_mov_b32 s42, {512*2752}
s_mov_b32 s82, {16*2752}
s_movk_i32 s86, 0x1556
s_movk_i32 s87, 2752
s_lshl_b32 s88, s9, 1
s_cmp_eq_u32 s7, 14
s_cselect_b32 s89, {8 if OPT['zf'] else 0}, 0
s_cmp_eq_u32 s12, 1
s_cselect_b32 s89, {12 if OPT['zf'] else 0}, s89
v_mov_b32 v28, 0x80000000""")
for i in range(3):
    A(f"""v_add_u32 v24, {64*i}, v0
v_mul_u32_u24 v25, s86, v24
v_lshrrev_b32 v25, 16, v25
v_mul_u32_u24 v26, 12, v25
v_sub_u32 v24, v24, v26
v_lshrrev_b32 v26, 2, v25
v_and_b32 v26, 2, v26
v_xor_b32 v24, v24, v26
v_cmp_gt_u32 vcc, s89, v24
v_mul_u32_u24 v25, s87, v25
v_lshl_add_u32 v24, v24, 4, v25
v_add_u32 v24, s88, v24
v_subrev_u32 v24, {1024*i}, v24
v_cndmask_b32 v{20+i}, v24, v28, vcc""")
A(f"""s_branch L_LGO
L_LQKV:
s_mov_b32 s42, {512*3072}
s_mov_b32 s82, {16*3072}
s_sub_u32 s87, s7, 15
s_lshl_b32 s87, s87, 7
s_mul_i32 s88, s4, {8*3072}
s_add_u32 s87, s87, s88
v_mul_u32_u24 v24, 3072, v24
v_and_b32 v26, 1, v26
v_lshlrev_b32 v26, 2, v26
v_xor_b32 v25, v25, v26
s_lshl_b32 s88, s4, 1
v_xor_b32 v25, s88, v25
v_lshl_add_u32 v20, v25, 4, v24
v_add_u32 v20, s87, v20
v_mov_b32 v21, v20
v_mov_b32 v22, v20
L_LGO:""")
A(f"s_lshr_b32 s87, s6, {sh}" if OPT["sub"] else "s_mov_b32 s87, 0")
for g in range(4):
    A(f"s_add_u32 s86, s87, {g}\ns_and_b32 s86, s86, 3\ns_mul_i32 {WL[g]}, s86, 3072\ns_mul_i32 {WG[g]}, s86, s82")
A(f"""s_cmp_eq_u32 s4, 1
s_cselect_b32 s40, s26, s24
s_cselect_b32 s41, s27, s25
s_cmp_ge_u32 s7, 15
s_cselect_b32 s40, s18, s40
s_cselect_b32 s41, s19, s41""")
issue_head(); issue_part(0, 0, ["w0", "w1", "w2", "w3"] if OPT["xfirst"] == 1 else ["w0", "x1", "w1", "x2", "w2", "w3"]); issue_tail()
stamp((2, 2))
issue_head(); n_ = issue_part(0, HH)
p2setup()
A(f"s_waitcnt vmcnt({n_})")
stamp((1, 1), (3, 2))
A("s_barrier\ns_mov_b32 s83, 0\nL_LLOOP:")
rawblocks()
if OPT['nodma']: issue_tail(); issue_head()
else:
    if HH < 7: issue_part(HH, 7)
    issue_tail(); issue_head(); issue_part(0, HH)
A(f"""s_add_u32 s83, s83, 1
s_waitcnt vmcnt({n_})
s_barrier
s_cmp_lt_u32 s83, 6
s_cbranch_scc1 L_LLOOP""")
stamp((2, 1), (4, 2))
if HH < 7: issue_part(HH, 7)
A("s_mov_b32 s38, 2097152")
ktable()
for n in range(N7): w2item(n)
A(f"s_waitcnt vmcnt({2*N7})\ns_barrier")
A("s_branch L_W2")

def f_addr(dst):
    A(f"""s_sub_u32 s86, s7, 15
s_lshl_b32 s86, s86, 12
s_and_b32 s87, s6, 1
s_lshl_b32 s87, s87, 11
s_add_u32 s86, s86, s87
s_and_b32 s87, s6, 2
s_lshl_b32 s87, s87, 9
s_add_u32 s86, s86, s87
s_lshr_b32 s87, s6, 2
s_lshl_b32 s87, s87, 9
s_add_u32 s86, s86, s87
s_lshl1_add_u32 s91, s86, {WS_FF}
s_add_u32 s86, s86, {WS_F}
v_lshl_add_u32 v{dst}, v0, 4, s86""")
assert OPT["rot"] in (2, 4, 8)
A(f"""L_SIDE:
s_add_u32 s13, s6, s90
s_and_b32 s13, s13, {OPT['rot']-1}
s_lshl_b32 s13, s13, { {2:2, 4:1, 8:0}[OPT['rot']] }
s_lshr_b32 s14, s6, { {2:1, 4:2, 8:3}[OPT['rot']] }
s_add_u32 s15, s13, s14
s_cmp_ge_u32 s6, 8
s_cselect_b32 s14, 99, s14
s_cmp_eq_u32 s12, 1
s_cselect_b32 s14, 99, s14
s_and_b32 s77, s4, 1""")
wfrag_addr(62, "s77", 24, "L_SA")
A(f"""s_cmp_eq_u32 s14, 1
s_cselect_b32 s86, {SLOT}, 0
s_cmp_eq_u32 s14, 2
s_cselect_b32 s86, {2*SLOT}, s86
v_add_u32 v62, s86, v62
v_add_u32 v63, s86, v63
v_and_b32 v24, 16, v0
v_cmp_ne_u32 s[72:73], 0, v24
v_and_b32 v24, 31, v0
s_mul_i32 s86, s77, 384
s_add_u32 s86, s86, {CF}
v_lshrrev_b32 v25, 4, v24
v_mul_u32_u24 v25, 128, v25
v_lshl_add_u32 v17, v24, 2, v25
v_add_u32 v17, s86, v17
s_mul_i32 s87, s77, 96
v_add_u32 v21, s87, v0
v_add3_u32 v22, v24, s87, 64
s_lshl_b32 s86, s8, 4
s_add_u32 s86, s86, {WS_RS}
v_lshl_add_u32 v19, v21, 4, s86
v_lshl_add_u32 v20, v22, 4, s86
s_lshl_b32 s86, s7, 13
s_lshl_b32 s87, s77, 9
s_add_u32 s86, s86, s87
s_add_u32 s86, s86, {WS_CS}
s_lshl_b32 s87, s15, 10
s_add_u32 s74, s86, s87
v_lshlrev_b32 v23, 4, v24
v_lshrrev_b32 v25, 5, v0
v_lshl_add_u32 v18, v25, 12, v23
v_add_u32 v18, s86, v18""")
for r in range(52, 56): A(f"v_mov_b32 v{r}, 0x3f803f80")
def w1prefetch():
    A(f"""s_cmp_eq_u32 s77, 0
s_cselect_b32 s40, s24, s26
s_cselect_b32 s41, s25, s27
s_mov_b32 s42, {1376*1024}
s_mov_b32 s43, 0x20000
s_mul_i32 s86, s5, 43
v_min_u32 v16, 42, v0
v_add_u32 v16, s86, v16
v_lshlrev_b32 v16, 7, v16
buffer_load_dword v58, v16, {W}, 0 offen
s_mov_b32 s52, s18
s_mov_b32 s53, s19
s_mov_b32 s54, {512*3072}
s_mov_b32 s55, 0x20000
s_lshl_b32 s86, s5, 1
s_add_u32 s86, s86, s77
s_mul_i32 s86, s86, 24
v_min_u32 v16, 23, v0
v_add_u32 v16, s86, v16
v_lshlrev_b32 v16, 7, v16
buffer_load_dword v57, v16, s[52:55], 0 offen""")
kwait()
if OPT['w1pf'] == -2: w1prefetch()
p2setup()
A(f"""s_cmp_lt_u32 s7, 15
s_cbranch_scc1 L_NOCLR
s_cmp_ge_u32 s6, 8
s_cbranch_scc1 L_NOCLR""")
f_addr(24)
A(f"""v_mov_b32 v28, -1
v_mov_b32 v29, -1
v_mov_b32 v30, -1
v_mov_b32 v31, -1
s_mov_b32 exec_hi, 0
buffer_store_dwordx4 v[28:31], v24, {WS}, 0 offen sc1
s_mov_b32 exec_hi, -1""")
if OPT["prew"]: A(f"s_sub_u32 s86, {TAG}, 1\nv_mov_b32 v32, s86\nv_lshlrev_b32 v24, 4, v0\nbuffer_store_dwordx4 v[32:35], v24, {WS}, s91 offen sc1")
A(f"""L_NOCLR:
s_mov_b32 s83, 0
s_waitcnt vmcnt(0)""")
if OPT["w1pf"] == -1: w1prefetch()
A("L_SLOOP:\ns_barrier")
if OPT["w1pf"] >= 0:
    A(f"s_cmp_eq_u32 s83, {OPT['w1pf']}\ns_cbranch_scc0 L_NOPF1"); w1prefetch(); A("L_NOPF1:")
if OPT["w2late"] >= 0:
    A(f"""s_cmp_eq_u32 s83, {OPT['w2late']}
s_cbranch_scc0 L_NOPF2
s_mul_i32 s86, s5, 59
s_mul_i32 s87, s77, 30
s_add_u32 s86, s86, s87
v_min_u32 v16, 29, v0
v_add_u32 v16, s86, v16
v_lshlrev_b32 v16, 7, v16
buffer_load_dword v60, v16, {WD}, 0 offen
v_subrev_u32 v16, {1376*1024}, v16
buffer_load_dword v61, v16, {WO}, 0 offen
L_NOPF2:""")
if OPT["pf2"] >= 0:
    A(f"""s_cmp_eq_u32 s83, {OPT['pf2']}
s_cbranch_scc0 L_NOPF3
s_getpc_b64 s[88:89]
L_PC2:
s_sub_u32 s88, s88, L_PC2-{NAME}_kernel
s_subb_u32 s89, s89, 0
s_lshr_b32 s86, s2, 3
s_lshl_b32 s86, s86, 3
s_lshl_b32 s87, s77, 2
s_add_u32 s86, s86, s87
v_and_b32 v16, 3, v0
v_add_u32 v16, s86, v16
v_lshlrev_b32 v16, 7, v16
v_min_u32 v16, L_END-{NAME}_kernel, v16
global_load_dword v59, v16, s[88:89]
L_NOPF3:""")
A("s_cmp_eq_u32 s83, s14\ns_cbranch_scc0 L_LNOCS")
for t in range(2):
    A(f"s_cmp_ge_u32 s7, 15\ns_cbranch_scc1 L_CSQ{t}")
    for role in "GQ":
        if role == 'Q': A(f"s_branch L_CSM{t}\nL_CSQ{t}:")
        for j in range(6):
            for sec in range(2):
                par, off = woff(role, t, j, sec)
                A(f"ds_read_b64_tr_b16 {v(24+4*j+2*sec,2)}, v{62+par} offset:{off}")
    A(f"L_CSM{t}:\ns_waitcnt lgkmcnt(0)")
    for j in range(6): A(mf16(72+4*j, 52, 24+4*j, 0 if t == 0 else None))
A(f"v_mov_b32 v51, {TAG}")
for u in range(3): A(f"v_cndmask_b32 v{48+u}, v{72+4*u}, v{84+4*u}, s[72:73]")
A(f"""s_mov_b32 exec_hi, 0
buffer_store_dwordx4 v[48:51], v23, {WS}, s74 offen sc1
s_mov_b32 exec_hi, -1
L_LNOCS:""")
rawblocks()
A(f"""s_add_u32 s83, s83, 1
s_cmp_lt_u32 s83, 6
s_cbranch_scc1 L_SLOOP""")
def st_loads():
    for p in range(4): A(f"buffer_load_dwordx4 {v(32+4*p,4)}, v18, {WS}, 0 offen offset:{1024*p} sc1")
    A(f"buffer_load_dwordx4 v[48:51], v19, {WS}, 0 offen sc1\nbuffer_load_dwordx4 v[52:55], v20, {WS}, 0 offen sc1")
st_loads()
A("s_barrier")
stamp((2, 1), (4, 2))
ktable()
for n in range(N7): w2item(n)
A(f"s_mov_b32 s88, 0\ns_waitcnt vmcnt({2*N7})")
A("L_SPC:")
tagcheck(24, 24, [35+4*p for p in range(6)])
A(f"""v_cmp_ne_u32 vcc, 0, v24
s_add_u32 s88, s88, 1
s_cmp_gt_u32 s88, {OPT['spin']}
s_cbranch_scc1 L_SPCD
s_cbranch_vccz L_SPCD""")
st_loads()
A(f"""s_waitcnt vmcnt(0)
s_branch L_SPC
L_SPCD:
s_mov_b32 s86, {RS}
s_mov_b32 s87, {RR}
v_lshl_add_u32 v24, v21, 4, s86
v_lshl_add_u32 v25, v22, 4, s86
v_lshl_add_u32 v21, v21, 2, s87
v_lshl_add_u32 v22, v22, 2, s87
ds_write_b128 v24, v[48:51]
ds_write_b128 v25, v[52:55]
ds_write_b32 v21, v49
ds_write_b32 v22, v53
v_mul_f32 v24, v48, v49
v_mul_f32 v25, v52, v53
ds_write_b32 v21, v24 offset:{MR-RR}
ds_write_b32 v22, v25 offset:{MR-RR}""")
note("s88", 2)
for p in range(1, 4):
    for u in range(3): A(f"v_add_f32 v{32+u}, v{32+u}, v{32+4*p+u}")
for u in range(3): A(f"v_mov_b32 v{36+u}, v{32+u}")
for u in range(3): A(f"v_permlane32_swap_b32 v{32+u}, v{36+u}")
for u in range(3): A(f"v_add_f32 v{32+u}, v{32+u}, v{36+u}")
for u in range(3): A(f"ds_write_b32 v17, v{32+u} offset:{64*u}")
A("s_waitcnt lgkmcnt(0)\ns_barrier")

A("L_W2:")
stamp((3, 1), (6, 2))
AB = 8
vm = [x for n in range(N7) for x in (f"d{n}a", f"d{n}")]
def emit(Y):
    for t in Y:
        if callable(t): t()
        elif t.startswith("VM "):
            nm, ins = t[3:].split("|"); vm.append(nm); A(ins)
        elif t.startswith("WAIT "):
            nms, lg = t[5:].split("|")
            A(f"s_waitcnt vmcnt({len(vm)-1-max(vm.index(x) for x in nms.split(','))})" + (" lgkmcnt(0)" if lg else ""))
        elif t.startswith("STAMP "): stamp((int(t[6:]), 4))
        else: A(t)
A(f"v_lshlrev_b32 v84, 4, v0\nv_add_u32 v84, s76, v84")
def wr(reg, slot, blk):
    off = slot*SLOT + blk*2048
    A(f"ds_write_b128 v84, {v(reg,4)} offset:{off}\nds_write_b128 v84, {v(reg+4,4)} offset:{off+1024}")
def rd6(base, sl):
    for kk in range(6):
        E(w2read(base+8*kk, sl, kk, AB))
        if kk % 3 == 2: A("s_waitcnt lgkmcnt(0)")
NB = OPT["nb"]; NC = OPT["nc"]; NIT = len(items); NW = OPT['nraw']; NL = 12 - NW - NB - NC; assert NL >= 0 and NW <= 8
cnt = [N7]
def TH():
    cnt[0] += 1
    return OPT["thr"] if (OPT["thr"] and cnt[0] > OPT["tfrom"]) else None
it = lambda n: w2ops(items[n][0], items[n][1], items[n][2:], TH())
Z = []
for n in range(N7, 6): Z += it(n)
order2 = [12+2, 12+3, 12+4, 12+5, 12+0, 12+1]
for n in range(12):
    Z += [f"WAIT d{n}|"] + w2read(96+8*n, 2, n % 6, AB) + ["s_waitcnt lgkmcnt(0)"]
    Z += it(n+6 if n < 6 else order2[n-6])
assert NE <= min(NW, 6)
for n in range(NE, NW): Z += w2ops(items[18+n][0], items[18+n][1], 192+8*n, TH())
Z += [f"VM x|buffer_load_dwordx4 v[12:15], v1, {X}, 0 offen", f"v_mov_b32 v18, {LF+40}", lambda: spin_lds(18, 17, 4)]
emit(Z)
stamp((4, 1), (1, 3), (1, 4))
def rdaddr(dst, isy_src, half, T):
    base = 0 if isy_src else SLOT
    t3 = 2*SLOT + (0 if isy_src else 8192)
    A(f"""s_and_b32 s70, s4, 2
s_lshl_b32 s70, s70, 12
s_add_u32 s70, s70, {base}
s_add_u32 s71, s70, 4096
s_cmp_ge_u32 s4, 2
s_cselect_b32 s71, {t3}, s71
v_mov_b32 v{T}, s70
v_mov_b32 v{T+1}, s71
v_and_b32 v{T+2}, 4, v0
v_cmp_ne_u32 vcc, 0, v{T+2}
v_and_b32 v{T+2}, 7, v0
v_lshrrev_b32 v{T+3}, 3, v0
v_cndmask_b32 v{T}, v{T}, v{T+1}, vcc
v_add_u32 v{T+3}, {8*half}, v{T+3}
v_lshlrev_b32 v{T+1}, 1, v{T+2}
v_xor_b32 v{T+3}, v{T+3}, v{T+1}
s_and_b32 s70, s4, 1
s_lshl_b32 s70, s70, 8
v_lshl_add_u32 v{T}, v{T+3}, 4, v{T}
v_and_b32 v{T+1}, 2, v0
v_lshl_add_u32 v{T}, v{T+1}, 8, v{T}
v_and_b32 v{T+1}, 1, v0
v_lshl_add_u32 v{T}, v{T+1}, 11, v{T}
v_add_u32 v{dst}, s70, v{T}""")
def wraddr(B_, isy):
    A(f"""v_lshrrev_b32 v{B_}, 3, v0
v_and_b32 v{B_}, 4, v{B_}
v_xor_b32 v{B_}, v{B_}, v0
v_lshlrev_b32 v{B_}, 4, v{B_}
v_xor_b32 v{B_+1}, 32, v{B_}
v_xor_b32 v{B_+2}, 0x80, v{B_}
v_xor_b32 v{B_+3}, 0xa0, v{B_}""")
    for j in range(4): A(f"v_add_u32 v{B_+j}, s76, v{B_+j}")
    t3 = 2*SLOT + (0 if isy else 8192)
    A(f"v_add_u32 v{B_+4}, {t3}, v{B_+2}\nv_add_u32 v{B_+5}, {t3}, v{B_+3}")
def wrpart(B_, isy):
    for q in range(4):
        for jq in range(4):
            if q < 3: A(f"ds_write_b128 v{B_ + 2*(q&1) + (jq>>1)}, {v(192+16*q+4*jq,4)} offset:{(0 if isy else SLOT) + q*4096 + jq*1024}")
            else: A(f"ds_write_b128 v{B_ + 4 + (jq>>1)}, {v(192+16*q+4*jq,4)} offset:{jq*1024}")
def rd4(dst, va):
    for src in range(4):
        for e in range(2): A(f"ds_read_b128 {v(dst+8*src+4*e,4)}, v{va} offset:{Q*src+1024*e}")
def sum4(d):
    for j in range(4): A(f"v_pk_add_f32 {v(d+2*j,2)}, {v(d+2*j,2)}, {v(d+8+2*j,2)}\nv_pk_add_f32 {v(d+16+2*j,2)}, {v(d+16+2*j,2)}, {v(d+24+2*j,2)}")
    for j in range(4): A(f"v_pk_add_f32 {v(d+2*j,2)}, {v(d+2*j,2)}, {v(d+16+2*j,2)}")
STG = OPT["stage"]
def sgo(va, vd): return f"s_lshl_b32 s86, s4, 2\ns_add_u32 s86, s86, {LF+48}\nv_mov_b32 v{va}, s86\nv_mov_b32 v{vd}, 1\nds_write_b32 v{va}, v{vd}"
assert STG
note("1", 4)
def hload(kd):
    va = 6 if kd < 21 else 7
    b = 16 + 8*(kd % 8)
    return [f"s_lshl2_add_u32 s86, s{77 + kd % 7}, {(kd//7)*65536}" if kd < 21 else "s_mov_b32 s86, 0",
            f"VM h{kd}a|buffer_load_dwordx4 {v(b,4)}, v{va}, {H}, s86 offen sc1",
            f"VM h{kd}|buffer_load_dwordx4 {v(b+4,4)}, v{va}, {H}, s86 offen offset:1024 sc1"]
w2late = lambda n, t=None: w2ops(items[n][0], items[n][1], items[n][2:], t)
def ipoll(c):
    nl = 16 if c <= 1 else 24
    return [f"VM p{c}|v_mov_b32 v82, {TAG}\ns_mov_b32 s87, {c << 20}\ns_mov_b64 exec, {hex((1<<nl)-1)}\nbuffer_load_dword v82, v5, {WS}, s87 offen sc1\ns_mov_b64 exec, -1"]
res_loc = lambda kd: (2, kd-12) if kd < 16 else (0, kd-16)
YD = OPT["ydep"]; assert YD <= 7
PRE = cap(lambda: (wraddr(96, True), rdaddr(102, True, 0, 104), A("v_xor_b32 v103, 0x80, v102"), rdaddr(108, False, 0, 104),
    A(f"s_lshl_b32 s70, s4, 11\ns_add_u32 s70, s70, {GB}\nv_lshl_add_u32 v109, v0, 4, s70\nv_mov_b32 v110, {LF+36}\nv_mov_b32 v111, 1"),
    [A(f"v_lshlrev_b32 v{112+2*j}, 16, v{12+j}\nv_and_b32 v{113+2*j}, 0xffff0000, v{12+j}") for j in range(4)],
    A(f"s_mov_b32 s70, {hx(-1.4426950408889634)}\ns_mov_b32 s71, s70")))
Y = []
Y += ipoll(0)
for n in range(NB): Y += w2late(18+NW+n, OPT['thr2'] or None)
if NW: Y += ['WAIT x|', lambda: [wr(192+8*n, *items[18+n][2:]) for n in range(NW//2)]]
Y += ["WAIT p0|", f"v_cmp_ne_u32 vcc, {TAG}, v82\ns_cbranch_vccnz L_YR0\nL_YB0:", lambda: stamp((5, 1), (2, 3), (2, 4))]
for kd in range(YD): Y += hload(kd)
for n in range(NC): Y += w2late(18+NW+NB+n, OPT['thr2'] or None)
if NW: Y += [lambda: [wr(192+8*n, *items[18+n][2:]) for n in range(NW//2, NW)], 's_waitcnt lgkmcnt(0)']
if OPT["gate"]: Y += [f"v_mov_b32 v80, {LF+32}", lambda: spin_lds(80, 81, OPT["gate"])]
Y.append(f"s_setprio {OPT['yprio']}")
for kd in range(22):
    wf = 96+8*kd if kd < 12 else 80+8*(kd & 1)
    hb = 16 + 8*(kd % 8)
    need = [f"h{kd}"]
    chk = 0 if not STG else (1 if kd+YD == 7 else (2 if kd == OPT['c2'] else 0))
    if chk: need.append(f"p{chk}")
    if chk == 2 and NE < 6: need.append("o5")
    if 16 <= kd+1 < 22: need.append(f"d{kd+1}")
    Y.append("WAIT " + ",".join(need) + ("|L" if kd >= 12 else "|"))
    if chk:
        Y.append(f"v_cmp_ne_u32 vcc, {TAG}, v82\ns_cbranch_vccnz L_YR{chk}\nL_YB{chk}:")
        if chk == 2: Y.append(sgo(82, 83))
    ms = [mfma(192+32*r+16*c, wf+4*c, hb+4*r, 0 if kd == 0 else None) for r in range(2) for c in range(2)]
    fill = []
    if STG and kd == OPT["p1"]: fill += ipoll(1)
    if STG and kd == OPT["p2"]: fill += ipoll(2)
    if kd+YD < 22: fill += hload(kd+YD)
    if kd < NL: fill += w2late(NIT-NL+kd)
    if 12 <= kd+1 < 22: fill += w2read(80+8*((kd+1) & 1), *res_loc(kd+1), AB)
    if kd in (11, 12, 13): fill = fill + PRE[(kd-11)*37:(kd-10)*37] if kd < 13 else fill + PRE[74:]
    Y += interleave(ms, fill, 3 if len(fill) <= 12 else 6)
    if kd+1 == OPT["ydrop"]: Y.append(f"s_setprio {OPT['ypost']}")
    if kd == 0: Y.append("STAMP 3")
    if kd == 10: Y.append("STAMP 4")
assert not STG or (OPT["p1"] < 7-YD <= OPT["p2"] < OPT["c2"] <= 14-YD)
emit(Y)
stamp((6, 1), (3, 3), (5, 4))
def final(isy):
    if isy:
        wrpart(96, True)
        A("""v_mov_b32 v4, v108
s_mov_b64 exec, 1
s_waitcnt lgkmcnt(0)
ds_add_u32 v110, v111
s_mov_b64 exec, -1""")
        spin_lds(110, 6, 4)
        rd4(16, 103); A("s_waitcnt lgkmcnt(4)"); rd4(48, 102)
        for d, w_ in ((16, 8), (48, 2)):
            A(f"s_waitcnt lgkmcnt({w_})")
            if OPT["ypk"]:
                sum4(d)
                for j in range(4): A(f"v_pk_mul_f32 {v(d+8+2*j,2)}, {v(d+2*j,2)}, s[70:71]")
            else:
                for j in range(8): A(f"v_add_f32 v{d+j}, v{d+j}, v{d+8+j}\nv_add_f32 v{d+16+j}, v{d+16+j}, v{d+24+j}")
                for j in range(8): A(f"v_add_f32 v{d+j}, v{d+j}, v{d+16+j}")
                for j in range(8): A(f"v_mul_f32 v{d+8+j}, s70, v{d+j}")
            for j in range(8): A(f"v_exp_f32 v{d+8+j}, v{d+8+j}")
            for j in range(8): A(f"v_add_f32 v{d+8+j}, 1.0, v{d+8+j}")
            for j in range(8): A(f"v_rcp_f32 v{d+8+j}, v{d+8+j}")
            for j in range(8): A(f"v_mul_f32 v{(d if d == 16 else 88)+j}, v{d+j}, v{d+8+j}")
            if d == 16:
                A("ds_write_b128 v109, v[16:19]\nds_write_b128 v109, v[20:23] offset:1024")
    else:
        wrpart(80, False)
    A("s_waitcnt lgkmcnt(0)")
final(True)
A("s_branch L_FINAL")
if STG:
    for c in (0, 1, 2):
        A(f"L_YR{c}:"); note(str(10+c), 4); spin_flag(5, 82, 16 if c <= 1 else 24, c, 1); A(f"s_branch L_YB{c}")
A("L_COMPUTE:")
srd(WS, 32, 0x800000); srd(H, 32, 118*65536, WS_H); srd(OUT, 30, 2097152)
ACC = 112
for r in range(ACC, 256): A(f"v_mov_b32 v{r}, 0")
A(f"""v_lshlrev_b32 v16, 2, v0
v_add_u32 v16, {LF}, v16
v_mov_b32 v17, 0
s_mov_b64 exec, 0xffff
ds_write_b32 v16, v17
s_mov_b64 exec, -1
s_lshr_b32 s13, s4, 1
s_and_b32 s14, s4, 1
s_movk_i32 s11, 0x1ff
s_lshl_b32 s86, s13, 4
s_add_u32 s86, s86, s6
s_cmp_eq_u32 s86, 10
s_cselect_b32 s11, 0x1c0, s11
s_mul_i32 s86, s14, 0x1b6
s_cmp_eq_u32 s7, 14
s_cselect_b32 s86, s86, 0x1ff
s_and_b32 s11, s11, s86
s_cmp_eq_u32 s12, 1
s_cselect_b32 s11, 0, s11
s_mul_i32 s76, s4, {Q}
s_lshr_b32 s86, s9, 4
s_mul_i32 s87, s14, 3
s_add_u32 s86, s86, s87
s_lshl_b32 s87, s7, 1
s_add_u32 s87, s87, s14
s_lshl1_add_u32 s87, s87, 26
s_and_b32 s88, s11, 0xdb
s_cmp_ge_u32 s7, 15
s_cselect_b32 s86, s87, s86
s_cselect_b32 s11, s88, s11
s_lshl_b32 s86, s86, 6
s_lshr_b32 s87, s8, 5
s_add_u32 s86, s86, s87
s_mul_i32 s87, s13, 3
s_add_u32 s86, s86, s87
s_lshl_b32 s86, s86, 10
v_lshl_add_u32 v1, v0, 4, s86
s_mov_b32 s80, 0
s_mov_b32 s81, 65536
s_mov_b32 s82, 131072
v_and_b32 v16, 15, v0
v_lshrrev_b32 v17, 4, v0
v_bfe_u32 v18, v0, 1, 3
v_xor_b32 v18, v18, v17
s_mul_i32 s86, s13, {96*128}
v_lshl_add_u32 v16, v16, 7, s86
v_lshl_add_u32 v2, v18, 4, v16
v_xor_b32 v3, 64, v2""")
wfrag_addr(4, "s14", 16, "L_CA")
A(f"""s_mul_i32 s86, s6, 23
s_add_u32 s86, s86, s7
s_cmp_eq_u32 s12, 1
s_cselect_b32 s86, 255, s86
s_lshl_b32 s86, s86, 2
s_add_u32 s86, s86, s4
s_lshl_b32 s86, s86, 10
s_add_u32 s15, s86, {WS_FLAG}""")
stamp((2, 2))
A("s_waitcnt vmcnt(0)")
stamp((5, 2))
for j in range(8):
    A(f"v_lshlrev_b32 v{16+2*j}, 16, v{8+j}\nv_and_b32 v{17+2*j}, 0xffff0000, v{8+j}")
def red32(r, t):
    for sh_ in (8, 4, 2, 1):
        A(f"v_add_f32_dpp v{r}, v{r}, v{r} row_ror:{sh_} row_mask:0xf bank_mask:0xf")
    A(f"v_mov_b32 v{t}, v{r}\nv_permlane16_swap_b32 v{r}, v{t}\nv_add_f32 v{r}, v{r}, v{t}")
for j in range(4): A(f"v_pk_add_f32 {v(8+2*j,2)}, {v(16+2*j,2)}, {v(24+2*j,2)}")
A("v_pk_add_f32 v[8:9], v[8:9], v[12:13]\nv_pk_add_f32 v[10:11], v[10:11], v[14:15]\nv_pk_add_f32 v[8:9], v[8:9], v[10:11]\nv_add_f32 v8, v8, v9")
red32(8, 9)
A(f"v_mul_f32 v8, {hx(-1/512)}, v8")
for j in range(8): A(f"v_pk_add_f32 {v(16+2*j,2)}, {v(16+2*j,2)}, v[8:9] op_sel_hi:[1,0]")
A("v_pk_mul_f32 v[10:11], v[16:17], v[16:17]\nv_pk_mul_f32 v[12:13], v[18:19], v[18:19]")
for j in range(2, 8): A(f"v_pk_fma_f32 {v(10+2*(j&1),2)}, {v(16+2*j,2)}, {v(16+2*j,2)}, {v(10+2*(j&1),2)}")
A("v_pk_add_f32 v[10:11], v[10:11], v[12:13]\nv_add_f32 v10, v10, v11")
red32(10, 9)
A(f"""v_mul_f32 v10, {hx(1/512)}, v10
v_cvt_pk_bf16_f32 v10, v10, v10
v_and_b32 v10, 0xffff0000, v10
v_add_f32 v10, {hx(1e-5)}, v10
v_cvt_pk_bf16_f32 v10, v10, v10
v_and_b32 v10, 0xffff0000, v10
v_sqrt_f32 v10, v10
v_cvt_pk_bf16_f32 v32, v8, v8
v_cvt_pk_bf16_f32 v10, v10, v10
v_and_b32 v10, 0xffff0000, v10
v_and_b32 v32, 0xffff0000, v32
v_rcp_f32 v33, v10
v_mul_f32 v34, v10, v10
v_lshlrev_b32 v7, 4, v7
v_add_u32 v7, {WS_RS}, v7
s_waitcnt lgkmcnt(0)
s_add_u32 {TAG}, {TAG}, 0x9E3779B9
v_mov_b32 v35, {TAG}
v_mov_b32 v36, {TAG}
v_mov_b32 v37, {TAG}
v_mov_b32 v38, {TAG}
v_mov_b32 v39, {TAG}
v_lshlrev_b32 v6, 4, v0
s_mov_b32 s78, 0
s_mov_b32 s79, {SLOT}
s_mov_b32 s83, 0""")
stamp((1, 1), (3, 2))
A(f"""s_barrier
s_mov_b32 exec_lo, 1
s_mov_b32 exec_hi, 1
buffer_store_dwordx4 v[32:35], v7, {WS}, 0 offen sc1
s_mov_b64 exec, -1""")
if OPT["prew"]:
    for kind in ((0, 1, 2) if OPT["stage"] else (0, 2)):
        sk = L("PW")
        if kind == 0 and not OPT["stage"]: A(f"s_cmp_lt_u32 s7, 15\ns_cbranch_scc1 {sk}")
        A(f"s_add_u32 s86, s15, {kind << 20}\nbuffer_store_dwordx4 v[28:31], v6, {WS}, s86 offen sc1")
        A.label(sk)
stamp((2, 1), (4, 2))
A("s_cmp_ge_u32 s7, 15\ns_cbranch_scc1 L_QKV")
if OPT["dead"]: A("s_or_b32 s86, s11, s12\ns_cbranch_scc0 L_DEAD")

XB = lambda buf, a: (40 if buf == 0 else 8) + 4*a
WF = lambda buf, j: 64 + 24*buf + 4*j
acc = lambda a, j: ACC + 4*(6*a+j)
CB = 88
def reads(role, s_):
    w_ = []
    for j in range(6):
        for sec in range(2):
            par, off = woff(role, s_, j, sec)
            w_.append(f"ds_read_b64_tr_b16 {v(WF(s_,j)+2*sec,2)}, v{4+par} offset:{off}")
    o = []
    for a in range(6): o += [f"ds_read_b128 {v(XB(s_,a),4)}, v{2+s_} offset:{2048*a}"] + w_[2*a:2*a+2]
    return o
def mm(role, wb, a, j, xb=1):
    return mf16(acc(a,j), WF(wb,j), XB(xb,a)) if (role == 'G' or j < 2) else mf16(acc(a,j), XB(xb,a), WF(wb,j))
def grp(role, buf, a): return [mm(role, buf, a, j, buf) for j in range(6)]
def spread(ms, fill, num, den):
    o = []; f = list(fill); nr = 0
    for i, m in enumerate(ms):
        o.append(m)
        k = ((i+1)*num)//den - (i*num)//den
        for _ in range(k):
            if f:
                x = f.pop(0)
                if x.startswith("ds_read"):
                    nr += 1
                    if nr == 13: o.append("s_waitcnt lgkmcnt(6)")
                o.append(x)
    assert not f
    return o
def treads(role, st, js, wb):
    buf = st & 1
    xs_ = [f"ds_read_b128 {v(XB(buf,a),4)}, v{2+buf} offset:{2048*a + (SLOT if st >= 2 else 0)}" for a in range(6)]
    ws_ = []
    for i, j in enumerate(js):
        for sec in range(2):
            par, off = woff(role, buf, j, sec)
            ws_.append(f"ds_read_b64_tr_b16 {v(wb(buf)+4*i+2*sec,2)}, v{(32 if st >= 2 else 4)+par} offset:{off}")
    return ws_[:4] + xs_ + ws_[4:]
def ldsadd(off, va, vd): return f"v_mov_b32 v{va}, {LF+off}\nv_mov_b32 v{vd}, 1\ns_mov_b64 exec, 1\nds_add_u32 v{va}, v{vd}\ns_mov_b64 exec, -1"
def tphase(role, js, wb, first, last, nxt, extra, rows=range(6), start3=0):
    for st in range(4):
        buf = st & 1
        A("s_waitcnt lgkmcnt(0)")
        if first and st == 1: A("s_barrier")
        ms = []
        for a in (rows if st == 3 else range(6)):
            for i, j in enumerate(js):
                w_, x_ = wb(buf)+4*i, XB(buf, a)
                ms.append(mf16(acc(a,j), w_, x_) if (role == 'G' or j < 2) else mf16(acc(a,j), x_, w_))
        fill = (treads(role, st+1, js, wb) if st < 3 else nxt) + extra.get(st, [])
        if last and st == 3: fill = [ldsadd(40, 32, 33)] + fill
        E(interleave(ms, fill, max(1, -(-len(fill)//(len(ms)-1)))))
def mainloop(role, pre):
    lp, ex = f"L_ML{role}", f"L_MX{role}"
    allm = lambda buf: [m + ('\ns_nop 7' if OPT['slow'] and n_ % OPT['slow'] == 0 else '') for n_, m in enumerate([m for a in range(6) for m in grp(role, buf, a)])]
    def coarse():
        if OPT["shi"]:
            sk = L("SL"); A(f"s_sub_u32 s87, s83, {OPT['slo']}\ns_cmp_lt_u32 s87, {OPT['shi']-OPT['slo']}\ns_cbranch_scc0 {sk}")
            for _ in range(OPT["sn"]): A("s_nop 15")
            A.label(sk)
    r0 = reads(role, 0); E(r0[:12]); A("s_waitcnt lgkmcnt(6)"); E(r0[12:])
    A.label(lp)
    coarse()
    A("s_waitcnt lgkmcnt(0)")
    sal = f"""s_add_u32 s78, s78, 1
s_cmp_eq_u32 s78, 3
s_cselect_b32 s86, {-2*SLOT & 0xffffffff}, s79
s_cselect_b32 s78, 0, s78
s_add_u32 s83, s83, 1
s_cmp_eq_u32 s83, 6""".split("\n") + [f"v_add_u32 v{r}, s86, v{r}" for r in (2, 4, 5, 3)]
    E(spread(allm(0), reads(role, 1) + sal, OPT["rgap"]+2, OPT["rgap"]+3))
    A(f"s_waitcnt lgkmcnt(0)\ns_barrier\ns_cbranch_scc1 {ex}")
    E(spread(allm(1), reads(role, 0), OPT["rgap"], 4))
    A(f"s_branch {lp}")
    A.label(ex)
    com = ["s_waitcnt vmcnt(0)", f"v_add_u32 v32, {SLOT}, v4", f"v_add_u32 v33, {SLOT}, v5", "v_and_b32 v34, 15, v0",
           f"s_mul_i32 s86, s13, {96*16}", f"s_add_u32 s86, s86, {RS}", "v_lshl_add_u32 v34, v34, 4, s86",
           "v_lshrrev_b32 v7, 4, v0", "s_mul_i32 s79, s14, 384", f"s_add_u32 s79, s79, {CF}", "v_lshl_add_u32 v35, v7, 4, s79",
           f"s_mul_i32 s86, s13, {96*4}", f"s_add_u32 s86, s86, {RR}", "v_lshl_add_u32 v7, v7, 4, s86"]
    E(interleave(allm(1), pre + com, 2))

def flagstore(kind):
    m = (1 << (8*OPT["nrep"])) - 1
    A(f"s_add_u32 s86, s15, {kind << 20}\ns_mov_b64 exec, {hex(m) if m < (1<<32) else -1}\nbuffer_store_dwordx4 v[36:39], v6, {WS}, s86 offen sc1\ns_mov_b64 exec, -1")
def gsig():
    if OPT["gate"]: A(ldsadd(32, 2, 3))
rsrd = lambda a: f"ds_read_b128 {v(CB+4*a,4)}, v34 offset:{256*a}"
C1 = -2.0*0.7978845608028654*1.4426950408889634
cst = []
for a in range(6):
    b = CB+4*a
    cst += [f"v_mul_f32 v{b+3}, {hx(C1)}, v{b+1}", f"v_mul_f32 v{b+1}, v{b+1}, v{b+1}",
            f"v_mul_f32 v{b+1}, {hx(0.044715)}, v{b+1}", f"v_mul_f32 v{b+1}, v{b+1}, v{b+3}"]
wb2 = lambda buf: 64 + 8*buf
mainloop('G', treads('G', 0, (0, 3), wb2))
def tregs(u, a):
    return (8 + 8*(a & 1), 24 + 4*(a & 1), [acc(2*a + j//2, u) + 2*(j & 1) for j in range(4)],
            [acc(2*a + j//2, u+3) + 2*(j & 1) for j in range(4)], [CB+4*(2*a + j//2) for j in range(4)])
def stA(u, a):
    T, P, gp, up, cb = tregs(u, a)
    return ([f"v_pk_fma_f32 {v(gp[j],2)}, {v(80+2*(j&1),2)}, {v(cb[j],2)}, {v(gp[j],2)} op_sel_hi:[1,0,1]" for j in range(4)]
          + [f"v_pk_mul_f32 {v(T+2*j,2)}, {v(gp[j],2)}, {v(gp[j],2)}" for j in range(4)]
          + [f"v_pk_fma_f32 {v(T+2*j,2)}, {v(T+2*j,2)}, {v(cb[j],2)}, {v(cb[j]+2,2)} op_sel:[0,1,1] op_sel_hi:[1,1,1]" for j in range(4)]
          + [f"v_pk_mul_f32 {v(T+2*j,2)}, {v(T+2*j,2)}, {v(gp[j],2)}" for j in range(4)])
for u in range(3):
    crd = [f"ds_read_b128 v[80:83], v35 offset:{64*u}", f"ds_read_b128 v[84:87], v35 offset:{64*(u+3)}"]
    ex_ = {1: [rsrd(a) for a in range(4)], 2: [rsrd(4), rsrd(5)] + crd, 3: cst} if u == 0 else {0: crd}
    tphase('G', (u, u+3), wb2, u == 0, u == 2, treads('G', 0, (u+1, u+4), wb2) if u < 2 else [], ex_)
    if u: A("s_waitcnt vmcnt(0)"); flagstore(u-1)
    else: A("s_nop 3")
    if u == 0: stamp((1, 3))
    if u == 2: stamp((3, 1))
    E(stA(u, 0))
    for a in range(3):
        T, P, gp, up, cb = tregs(u, a)
        E(interleave([f"v_exp_f32 v{T+j}, v{T+j}" for j in range(8)],
            [f"v_pk_fma_f32 {v(up[j],2)}, {v(84+2*(j&1),2)}, {v(cb[j],2)}, {v(up[j],2)} op_sel_hi:[1,0,1]" for j in range(4)]
          + [f"v_pk_mul_f32 {v(gp[j],2)}, {v(gp[j],2)}, {v(up[j],2)}" for j in range(4)], 1))
        for j in range(4): A(f"v_pk_fma_f32 {v(T+2*j,2)}, {v(T+2*j,2)}, {v(cb[j]+2,2)}, {v(cb[j]+2,2)} op_sel_hi:[1,0,0]")
        nxt = stA(u, a+1) if a < 2 else []
        E(interleave([f"v_rcp_f32 v{T+j}, v{T+j}" for j in range(8)], nxt[:12], 2))
        for j in range(4): A(f"v_pk_mul_f32 {v(T+2*j,2)}, {v(T+2*j,2)}, {v(gp[j],2)}")
        for j in (0, 2, 1, 3): A(f"v_cvt_pk_bf16_f32 v{P+j}, v{T+2*j}, v{T+2*j+1}")
        E(nxt[12:14])
        sk = L("GS")
        A(f"s_bitcmp1_b32 s11, {3*a+u}\nv_permlane16_swap_b32 v{P}, v{P+2}\nv_permlane16_swap_b32 v{P+1}, v{P+3}\ns_cbranch_scc0 {sk}")
        A(f"buffer_store_dwordx4 {v(P,4)}, v1, {H}, s{80+u} offen offset:{1024*a} sc1")
        A.label(sk)
        E(nxt[14:])
    if u == 0: stamp((2, 3))
stamp((4, 1), (4, 3))
A("L_PUB:")
gsig()
A("L_PUB2:\ns_waitcnt vmcnt(0)"); flagstore(2)
A("s_branch L_SPART")
if OPT["dead"]:
    A("L_DEAD:\ns_barrier\ns_add_u32 s83, s83, 1\ns_cmp_lt_u32 s83, 7\ns_cbranch_scc1 L_DEAD")
    A(ldsadd(40, 32, 33)); flagstore(0); flagstore(1)
    A("s_branch L_PUB")

A("L_QKV:")
RV, MV, ONE, G = 88, 8, 76, 8
cst = f"""s_mov_b32 s70, {hx(1.4426950408889634)}
s_mov_b32 s71, {hx(1.4426950408889634)}
s_mov_b32 s72, {hx(1e-6)}
s_mov_b32 s73, {hx(1e-6)}
s_mov_b32 s74, 0xffff0000
s_mov_b32 s75, 0xffff0000
s_sub_u32 s87, s7, 15
s_lshl_b32 s87, s87, 1
s_add_u32 s87, s87, s14
s_mul_i32 s77, s87, {24*3072}
s_add_u32 s77, s77, {WS_KV}
s_lshl_b32 s78, s6, 1
s_add_u32 s78, s78, s13
s_mul_i32 s78, s78, 3072
s_add_u32 s78, s78, s77""".split("\n")
wb4 = lambda buf: 64 + 16*buf
mainloop('Q', treads('Q', 0, (2, 3, 4, 5), wb4) + cst)
rvr = lambda a: f"ds_read_b128 {v(RV+4*a,4)}, v7 offset:{64*a}"
mvr = lambda a: f"ds_read_b128 {v(MV+4*a,4)}, v7 offset:{MR-RR+64*a}"
x3 = ["v_and_b32 v75, 15, v0", "v_lshl_add_u32 v75, v75, 2, s79"] + [f"ds_read_b32 v{72+j}, v75 offset:{128+64*j}" for j in range(4)] \
   + [f"v_mov_b32 v{ONE+j}, 0x3f803f80" for j in range(4)] + [rvr(5), rvr(4)]
q0 = treads('Q', 0, (0, 1), wb2)
x3 += q0[:4] + [mvr(5), mvr(4), "s_waitcnt lgkmcnt(4)"] + q0[4:]
assert len(x3) > 23
tphase('Q', (2, 3, 4, 5), wb4, True, False, x3, {}, rows=(5, 4, 3, 2, 1, 0))
A("s_waitcnt lgkmcnt(6)")
for a in (3, 2, 1, 0): A(rvr(a)); A(mvr(a))
stamp((1, 3))
def phi2(pairs, T, dst):
    for j in range(8): A(f"v_pk_mul_f32 {v(T[j],2)}, {v(pairs[j],2)}, s[70:71]")
    for j in range(16):
        r = pairs[j//2] + (j & 1); t_ = T[j//2] + (j & 1)
        A(f"v_exp_f32 v{t_}, v{t_} clamp\nv_max_f32 v{r}, s72, v{r}")
    for j in range(8): A(f"v_pk_add_f32 {v(T[j],2)}, {v(T[j],2)}, {v(pairs[j],2)}")
    for j in range(8): A(f"v_cvt_pk_bf16_f32 v{dst[j]}, v{T[j]}, v{T[j]+1}")
prs = lambda a, j0: [acc(2*a + (j % 4)//2, j0 + j//4) + 2*(j & 1) for j in range(8)]
KVa, KVb, Za, Zb = acc(5,2), acc(5,3), acc(5,4), acc(5,5)
for a in (2, 1, 0):
    if a == 1: A("s_bitcmp1_b32 s11, 0\ns_cbranch_scc0 L_KVS\ns_waitcnt lgkmcnt(0)")
    off = lambda j: 4*(2*a + (j % 4)//2) + 2*(j & 1)
    pv = prs(a, 4); pk = prs(a, 2)
    PV = acc(2*a, 4); PK = acc(2*a, 2)
    TL = [acc(2*a+1, 4) + 2*j for j in range(4)] + [80 + 2*j for j in range(4)]
    for j in range(8): A(f"v_pk_mul_f32 {v(pv[j],2)}, {v(pv[j],2)}, {v(RV+off(j),2)}")
    for j in range(8): A(f"v_pk_fma_f32 {v(pk[j],2)}, {v(pk[j],2)}, {v(RV+off(j),2)}, s[72:73]")
    for j in range(8): A(f"v_pk_fma_f32 {v(pv[j],2)}, {v(MV+off(j),2)}, v[74:75], {v(pv[j],2)} op_sel:[0,{j//4},0] op_sel_hi:[1,{j//4},1]")
    for j in range(8): A(f"v_pk_fma_f32 {v(pk[j],2)}, {v(MV+off(j),2)}, v[72:73], {v(pk[j],2)} op_sel:[0,{j//4},0] op_sel_hi:[1,{j//4},1]")
    for j in range(8): A(f"v_cvt_pk_bf16_f32 v{PV+j}, v{pv[j]}, v{pv[j]+1}")
    phi2(pk, TL, [PK+j for j in range(8)])
    c0 = 0 if a == 2 else None
    A(mf16(KVa, PK, PV, c0)); A(mf16(KVb, PK+4, PV+4, c0)); A(mf16(Za, ONE, PK, c0)); A(mf16(Zb, ONE, PK+4, c0))
    if a: A("s_nop 3")
A("L_KVS:\ns_waitcnt lgkmcnt(0)")
G = 96
for j in (3, 7, 11): A(f"v_mov_b32 v{G+j}, {TAG}")
A("s_nop 4")
for j in range(4): A(f"v_permlane16_swap_b32 v{KVa+j}, v{KVb+j}")
for j in range(8): A(f"v_mov_b32 v{G+4*(j//3)+j%3}, v{KVa+j}")
A(f"v_cndmask_b32 v{G+10}, v{Za}, v{Zb}, s[74:75]")
for g_ in range(3): A(f"buffer_store_dwordx4 {v(G+4*g_,4)}, v6, {WS}, s78 offen offset:{1024*g_} sc1")
stamp((2, 3))
CTr = lambda p: acc(p, 2)
rsetup = cap(lambda: (A(f"""s_lshr_b32 s79, s6, 1
s_lshl_b32 s86, s79, 8
s_add_u32 s86, s86, s77
v_lshrrev_b32 v7, 4, v0
v_mul_u32_u24 v7, 3072, v7
v_and_b32 v{acc(0,5)}, 15, v0
v_lshl_add_u32 v7, v{acc(0,5)}, 4, v7
v_add_u32 v7, s86, v7"""), [A(f"v_mov_b32 v{CTr(5)+j}, " + (TAG if j % 4 == 3 else "0")) for j in range(12)],
    A("s_and_b32 s78, s6, 9\ns_add_u32 s78, s78, 2")))
tphase('Q', (0, 1), wb2, False, True, [], {0: rsetup[:11], 1: rsetup[11:] + [rsrd(a) for a in (5, 4, 3, 2)],
       2: [rsrd(1), rsrd(0), "ds_read_b128 v[80:83], v35", "ds_read_b128 v[84:87], v35 offset:64"]}, rows=(5, 4, 3, 2, 1, 0))
A("s_nop 3")
stamp((3, 1))
def rloads():
    for p in range(6):
        A(f"s_mov_b32 s86, {12288*p}")
        if p == 5: A("s_mov_b32 exec_hi, 0")
        for g_ in range(3): A(f"buffer_load_dwordx4 {v(CTr(p)+4*g_,4)}, v7, {WS}, s86 offen offset:{1024*g_} sc1")
    A("s_mov_b32 exec_hi, -1")
def rissue(t):
    if OPT["rq"] == t:
        A("s_cmp_eq_u32 s78, s4\ns_cbranch_scc0 L_NORI"); rloads(); stamp((4, 3)); A("L_NORI:")
rissue(0)
for a in (2, 1, 0):
    if a == 1: A("s_bitcmp1_b32 s11, 0\ns_cbranch_scc0 L_PUB")
    D_ = 40 + 8*a
    pq_ = prs(a, 0); cbq = lambda j: v(CB+4*(2*a + (j % 4)//2), 2)
    for j in range(8): A(f"v_pk_fma_f32 {v(pq_[j],2)}, {v(80+4*(j//4)+2*(j&1),2)}, {cbq(j)}, {v(pq_[j],2)} op_sel_hi:[1,0,1]")
    for j in range(8): A(f"v_pk_fma_f32 {v(pq_[j],2)}, {v(pq_[j],2)}, {cbq(j)}, s[72:73] op_sel:[0,1,0] op_sel_hi:[1,1,1]")
    phi2(pq_, [8+2*j for j in range(8)], [D_+j for j in range(8)])
    for hd in range(2):
        A(f"v_permlane16_swap_b32 v{D_+4*hd}, v{D_+4*hd+2}\nv_permlane16_swap_b32 v{D_+4*hd+1}, v{D_+4*hd+3}")
    A(f"buffer_store_dwordx4 {v(D_,4)}, v1, {H}, 0 offen offset:{1024*a} sc1")
    A(f"buffer_store_dwordx4 {v(D_+4,4)}, v1, {H}, s81 offen offset:{1024*a} sc1")
    rissue(3-a)
stamp((4, 1))
A("s_cmp_eq_u32 s78, s4\ns_cbranch_scc0 L_PUB")
gsig()
f_addr(9)
A(f"s_mov_b32 s88, 0\ns_waitcnt vmcnt({2*(3-OPT['rq'])})\nL_KVC:")
tagcheck(8, 64, [CTr(n//3)+4*(n%3)+3 for n in range(18)])
A(f"""v_cmp_ne_u32 vcc, 0, v8
s_add_u32 s88, s88, 1
s_cmp_gt_u32 s88, {OPT['spin']}
s_cbranch_scc1 L_KVD
s_cbranch_vccz L_KVD""")
rloads()
A("s_waitcnt vmcnt(0)\ns_branch L_KVC\nL_KVD:")
note("s88", 3)
rr = lambda p, j: CTr(p) + 4*(j//3) + j % 3
RA, RB = 12, 64
for j in range(9): A(f"v_add_f32 v{RA+j}, v{rr(0,j)}, v{rr(1,j)}")
for p in range(2, 6):
    for j in range(9): A(f"v_add_f32 v{RA+j}, v{RA+j}, v{rr(p,j)}")
for sw in (16, 32):
    for j in range(9): A(f"v_mov_b32 v{RB+j}, v{RA+j}")
    for j in range(9): A(f"v_permlane{sw}_swap_b32 v{RA+j}, v{RB+j}")
    for j in range(9): A(f"v_add_f32 v{RA+j}, v{RA+j}, v{RB+j}")
A(f"""s_lshr_b32 s86, s79, 1
s_lshl_b32 s86, s86, 3
s_add_u32 s87, s86, 2
s_add_u32 s88, s86, 4
s_add_u32 s89, s86, 6
v_mov_b32_dpp v{RA+9}, v{RA+8} row_shl:1 row_mask:0xf bank_mask:0xf""")
for j in range(4): A(f"v_cvt_pk_bf16_f32 v{RB+j}, v{RA+2*j}, v{RA+1+2*j}")
A(f"""v_cvt_pk_bf16_f32 v{RA+9}, v{RA+8}, v{RA+9}
s_bitcmp1_b32 s79, 0
s_cselect_b64 s[80:81], -1, 0
s_xor_b64 s[80:81], s[80:81], s[74:75]""")
for j in range(4): A(f"v_readlane_b32 s{70+j}, v{RA+9}, s{86+j}")
for j in range(4): A(f"v_mov_b32 v{RB+4+j}, s{70+j}")
for j in range(4): A(f"v_cndmask_b32 v{RB+8+j}, v{RB+j}, v{RB+4+j}, s[80:81]")
A(f"""s_mov_b32 exec_hi, 0
buffer_store_dwordx4 {v(RB+8,4)}, v9, {WS}, 0 offen sc1
s_mov_b32 exec_hi, -1
s_waitcnt vmcnt(1)""")
stamp((5, 3))
flagstore(2)

A("L_SPART:")
if OPT["sprio"] != OPT["prio"]: A(f"s_setprio {OPT['sprio']}")
stamp((5, 1), (3, 3))
xres_addr(1, 8); xres_load()
w2addr(4, 8, False)
A(f"""s_lshl_b32 s86, s4, 3
s_add_u32 s86, s86, 86
s_lshl_b32 s86, s86, 16
s_lshl_b32 s87, s84, 11
s_add_u32 s86, s86, s87
v_lshl_add_u32 v2, v0, 4, s86
s_mul_i32 s88, s84, 43
s_lshr_b32 s88, s88, 7
s_mul_i32 s88, s88, 23
s_lshl_b32 s87, s4, 1
s_add_u32 s88, s88, s87
s_add_u32 s88, s88, 15
s_lshl_b32 s88, s88, 12
s_add_u32 s88, s88, {WS_FLAG}
v_and_b32 v3, 7, v0
v_lshl_add_u32 v3, v3, 10, s88
s_lshl_b32 s74, s4, 13
s_add_u32 s74, s74, {WS_F}
v_lshl_add_u32 v8, v0, 4, s74
s_lshl_b32 s86, s4, 2
s_add_u32 s86, s86, {LF}
v_mov_b32 v10, s86
s_mov_b32 s72, {hx(1e-6)}
s_movk_i32 s73, 4096
s_mov_b32 s89, 0""")
if OPT["warm"]:
    assert OPT["sd"] == 8
    A("s_mov_b32 s75, 1\ns_mov_b64 exec, 0\ns_branch L_PIPE\nL_WBACK:\ns_mov_b32 s75, 0\ns_mov_b64 exec, -1")
stamp((1, 4))
if OPT['sdelay']: A(f"s_sleep {OPT['sdelay']}")
if OPT["comb"]:
    A("v_add_u32 v3, 48, v10"); spin_lds(3, 9)
else: spin_flag(3, 9, 8, 2)
note("s88", 4)
stamp((6, 1), (2, 4))
SD = OPT["sd"]
rho8()
A("s_lshl_b32 s78, s12, 2\ns_lshr_b32 s79, s12, 4")
def pqload(k):
    return [f"s_xor_b32 s86, s78, {k*65536}",
            f"buffer_load_dwordx4 {v(16+8*k,4)}, v2, {H}, s86 offen sc1",
            f"buffer_load_dwordx4 {v(20+8*k,4)}, v2, {H}, s86 offen offset:1024 sc1"]
def floads():
    for k in range(8):
        if k % 2 == 0: A(f"s_xor_b32 s86, s79, {k*1024}")
        A(f"buffer_load_dwordx4 {v(80+4*k,4)}, v8, {WS}, s86 offen offset:{1024*(k%2)} sc1")
if OPT["ffirst"]: floads()
for k in range(SD):
    if OPT["sdep"]: A(f"s_waitcnt vmcnt({OPT['sdep']-2})")
    E(pqload(k))
if OPT["ffirst"]: A(f"s_waitcnt vmcnt({2*SD})\ns_branch L_FC")
if OPT["hints"]:
    A(f"s_lshl_b32 s86, s4, 14\ns_add_u32 s86, s86, {WS_FF}\nv_lshl_add_u32 v9, v0, 10, s86")
    spin_flag(9, 11, 16)
else: A(f"s_waitcnt vmcnt({OPT['fafter']})")
A("s_branch L_FL\nL_FQ:\ns_sleep 8\nL_FL:")
floads()
A("s_waitcnt vmcnt(0)\nL_FC:\ns_add_u32 s89, s89, 1")
E(vmax(112, [80+4*k for k in range(8)]))
A(f"""v_cmp_eq_u32 vcc, -1, v112
s_cmp_gt_u32 s89, {OPT['spin']}
s_cbranch_scc1 L_FPD
s_cbranch_vccnz L_FQ
L_FPD:""")
note("s89", 4); note("s89", 1)
stamp((6, 3), (3, 4))
woloc = lambda k: (1, k) if k < 6 else (2, k-2)
def Om(k): return [mfma(128+32*(k&1)+16*r, 80+4*k, 16+8*k+4*r, 0) for r in range(2)]
def Vv(k):
    o = []
    D = [128+32*(k&1)+16*r for r in range(2)]
    nd = [((d, d+8) if k % 2 == 0 else (d+8, d)) for d in D]
    for num, den in nd: o.append(f"v_add_f32 v{den}, s72, v{den}")
    for num, den in nd: o.append(f"v_rcp_f32 v{den}, v{den}")
    for r, (num, den) in enumerate(nd):
        if OPT["spk"]:
            for j in range(4): o.append(f"v_pk_mul_f32 {v(num+2*j,2)}, {v(num+2*j,2)}, {v(den,2)} op_sel_hi:[1,0]")
        else:
            for j in range(8): o.append(f"v_mul_f32 v{num+j}, v{num+j}, v{den}")
        for j in range(4): o.append(f"v_cvt_pk_bf16_f32 v{16+8*k+4*r+j}, v{num+2*j}, v{num+2*j+1}")
    return o
def Sm(k): return [mfmaH(192+32*r+16*c, 112+8*(k&1)+4*c, 16+8*k+4*r, 0 if k <= OPT['h16'] else None, k & 1) for r in range(2) for c in range(2)]
issued = [SD]
def need(k):
    o = [f"s_waitcnt vmcnt({2*(issued[0]-1-k)})"]
    more = []
    if issued[0] < 8: more = pqload(issued[0]); issued[0] += 1
    return o, more
A('L_PIPE:')
E(w2read(112, *woloc(0), 4, False))
for k in (0, 1):
    w_, m_ = need(k); E(w_ + Om(k) + m_)
E(Vv(0))
for k in range(8):
    A("s_waitcnt lgkmcnt(0)")
    fill = (w2read(112+8*((k+1)&1), *woloc(k+1), 4, False) + Vv(k+1)) if k+1 < 8 else []
    if k == 7:
        fill = cap(lambda: (wraddr(80, False), rdaddr(4, False, 1, 88), A(f"s_lshl_b32 s86, s4, 11\ns_add_u32 s86, s86, {GB}\nv_lshl_add_u32 v9, v0, 4, s86"),
            [A(f"v_lshlrev_b32 v{112+2*j}, 16, v{12+j}\nv_and_b32 v{113+2*j}, 0xffff0000, v{12+j}") for j in range(4)]))
    NF = 16 if OPT['spk'] else 20
    if k == 7: NF = 28
    E(interleave(Sm(k), fill[:NF], NF//4))
    if k+2 < 8:
        w_, m_ = need(k+2); E(w_); E(interleave(Om(k+2), fill[NF:] + m_, 6))
    else: E(fill[NF:])
    if k == 3: stamp((4, 4))
if OPT["warm"] == 1: A("s_cmp_eq_u32 s75, 1\ns_cbranch_scc1 L_WBACK")
stamp((7, 1), (5, 4))
final(False)
stamp((6, 4))
A("s_barrier\nds_read_b128 v[88:91], v9\nds_read_b128 v[92:95], v9 offset:1024\ns_branch L_FIN2")

A("L_FINAL:")
stamp((6, 4))
A("s_barrier")
A("L_FIN2:")
stamp((7, 3), (7, 4))
rd4(48, 4)
A("s_waitcnt lgkmcnt(0)")
sum4(48)
for j in range(4): A(f"v_pk_fma_f32 {v(48+2*j,2)}, {v(48+2*j,2)}, {v(88+2*j,2)}, {v(112+2*j,2)}")
for j in range(4): A(f"v_cvt_pk_bf16_f32 v{24+j}, v{48+2*j}, v{49+2*j}")
if OPT["warm"] == 2: A("s_cbranch_execz L_WBACK")
A(f"""buffer_store_dwordx4 v[24:27], v1, {OUT}, 0 offen {['', 'sc1', 'nt', 'sc0 sc1'][OPT['osc']]}
s_add_u32 s86, s2, s3
s_cmp_eq_u32 s86, 0
s_cbranch_scc0 L_NOBUMP
v_mov_b32 v2, 0
v_mov_b32 v3, {TAG}
buffer_store_dword v3, v2, {WS}, 0 offen sc1
L_NOBUMP:""")
if OPT["stamps"]:
    A("s_waitcnt vmcnt(0)")
    stamp((8, 0))
    A(f"""s_memrealtime s[68:69]
s_waitcnt lgkmcnt(0)
s_mov_b32 s101, s68""")
    if OPT["diag"]:
        A(f"""s_cmp_lg_u32 s2, 64
s_cbranch_scc1 L_END
s_cmp_lg_u32 s3, {OPT['dwave']}
s_cbranch_scc1 L_END
s_sub_u32 s86, s{92+OPT['diag']}, s34
s_lshl_b32 s86, s86, 2
s_min_u32 s86, s86, 20000
L_DSPIN:
s_memrealtime s[68:69]
s_waitcnt lgkmcnt(0)
s_sub_u32 s87, s68, s101
s_cmp_lt_u32 s87, s86
s_cbranch_scc1 L_DSPIN
s_endpgm""")
    A(f"""s_lshl_b32 s86, s2, 3
s_add_u32 s86, s86, s3
s_lshl_b32 s86, s86, 6
s_add_u32 s86, s86, {WS_DBG}
v_mov_b32 v2, s86""")
    for i in range(10): A(f"v_mov_b32 v3, s{92+i}\nbuffer_store_dword v3, v2, {WS}, 0 offen offset:{4*i}")
    A(f"v_mov_b32 v3, s34\nbuffer_store_dword v3, v2, {WS}, 0 offen offset:40")
    A(f"v_mov_b32 v3, s35\nbuffer_store_dword v3, v2, {WS}, 0 offen offset:44")
A("L_END:\ns_endpgm")

lines, errs = pad(A.lines)
for e in errs: print("HAZARD:", e, file=sys.stderr)
hdr = open("cdna_kernels/%s.s.ref" % NAME).read().split("; Override launch")[0]
out = hdr + f"""; Fused single-launch kernel (generated by my own generator script gen/gen.py).
; @launch grid=(256,1,1) block=(512,1,1) lds={LDS}
.amdgcn_target "amdgcn-amd-amdhsa--gfx950"
.text
.globl {NAME}_kernel
.p2align 8
.type {NAME}_kernel,@function
{NAME}_kernel:
""" + render(lines) + f""".section .rodata,"a"
.p2align 6
.amdhsa_kernel {NAME}_kernel
  .amdhsa_next_free_vgpr 256
  .amdhsa_next_free_sgpr 102
  .amdhsa_accum_offset 256
  .amdhsa_group_segment_fixed_size 0
  .amdhsa_kernarg_size 80
  .amdhsa_user_sgpr_count 2
  .amdhsa_user_sgpr_kernarg_segment_ptr 1
  .amdhsa_system_sgpr_workgroup_id_x 1
.end_amdhsa_kernel
"""
open(sys.argv[1], "w").write(out)
```

```python
import sys, struct
from asmlib import *
NAME = "recurrent_scan__linear_attn_block__glu_gated_geglu__prompt"
OPT = dict(stamps=0, rot=2, prio=1, pfcode=1, spin=1<<17, thr=4, unthr=41, n7=1, ca=14, cb=22, h=5, mix=0, sub=0,
           psleep=2, ydep=5, sdep=0, w2late=0, p2map=1, stage=1, sprio=1, ydelay=-1, sdelay=0, fdelay=0, rdelay=0, xlate=0, now2=0, sd=3, apoll=0, fgate=1, rt=1, zf=1, nr=0, r0=3, lred=0, prew=0, hints=0, comb=1, fafter=0, h16=0, gate=4, ffirst=1, warm=0, nodma=0, redearly=1, xz=1, gmix=0, qmix=0, qnop=0, bpos=0, rgap=3, spk=0, diag=0, dwave=4, nrep=2, nl=4, p1=1, p2=7, osc=0, gpos=1, c2=9, yprio=2, ydrop=22, ypost=0, mord=0, adapt=1, ypk=0, nb=3, pf2=-1, drot=0, xfirst=1, nostat=0, w1pf=-9, slow=0, dead=1, qg=0, rq=1, tfrom=6, nc=0, thr2=4, nraw=6, krot=0, slo=0, shi=0, sn=4, nearly=0, e0=3, e1=6, fin=0)
for a in sys.argv[2:]:
    k, v_ = a.split("="); assert k in OPT, k; OPT[k] = int(v_, 0)
def f2u(x): return struct.unpack("<I", struct.pack("<f", x))[0]
def hx(x): return "0x%08x" % f2u(x)

SLOT = 49152; XW = 24576; UPOFF = 12288; MISC = 3*SLOT; LDS = 163840
RS = MISC; RR = MISC+3072; CF = MISC+3840; MR = MISC+4608; LF = MISC+5376; GB = MISC+5632
Q = 12288
WS_RS = 0x10000; WS_CS = 0x20000; WS_FLAG = 0x300000; WS_FF = 0x60000; WS_DBG = 0x80000; WS_F = 0xC0000; WS_KV = 0x100000; WS_H = 0x800000
X="s[36:39]"; W="s[40:43]"; WS="s[44:47]"; H="s[48:51]"; WD="s[56:59]"; WO="s[60:63]"; OUT="s[64:67]"
TAG="s10"
def v(b, n=1): return f"v{b}" if n == 1 else f"v[{b}:{b+n-1}]"
def mfma(d, a, b, c=None):
    return f"v_mfma_f32_32x32x16_bf16 {v(d,16)}, {v(a,4)}, {v(b,4)}, " + ("0" if c == 0 else v(d,16))
def mfmaH(d, a, b, c, alt):
    if not OPT["h16"]: return mfma(d, a, b, c)
    return mf16(d+8*alt, a, b, c) + "\n" + mf16(d+8*alt+4, a ^ 4, b, c)
def mf16(d, a, b, c=None):
    return f"v_mfma_f32_16x16x32_bf16 {v(d,4)}, {v(a,4)}, {v(b,4)}, " + ("0" if c == 0 else v(d,4))
def bc(r): return v(r & ~1, 2), r & 1
_lab = [0]
def L(p="L"):
    _lab[0] += 1; return f"{p}_{_lab[0]}"
A = Asm()
def E(lst):
    for t in lst: A(t)
def cap(fn):
    n = len(A.lines); fn(); o = [t for _, t in A.lines[n:]]; del A.lines[n:]; return o
def stamp(*pairs):
    for i, st in pairs:
        if OPT["stamps"] == st or (OPT["stamps"] and st == 0):
            A(f"{'s_memrealtime' if (OPT['rt'] and i != 8) else 's_memtime'} s[68:69]\ns_waitcnt lgkmcnt(0)\ns_mov_b32 s{92+i}, s68")
def note(reg, st):
    if OPT["stamps"] == st: A(f"s_mov_b32 s35, {reg}")
def srd(name, lo, size, add=0):
    b = int(name[2:4])
    if add: A(f"s_add_u32 s{b}, s{lo}, {add}\ns_addc_u32 s{b+1}, s{lo+1}, 0")
    else: A(f"s_mov_b32 s{b}, s{lo}\ns_mov_b32 s{b+1}, s{lo+1}")
    A(f"s_mov_b32 s{b+2}, {size}\ns_mov_b32 s{b+3}, 0x20000")
def spin_flag(vaddr, vt, nl, kind=None, first=0):
    l1, l2 = L("POLL"), L("POLLD")
    A(f"""s_mov_b32 s88, {first}
s_mov_b64 exec, {hex((1<<nl)-1)}
{l1}:
s_and_b32 s87, s88, {OPT['nrep']-1}
s_lshl_b32 s87, s87, 7""")
    if kind: A(f"s_add_u32 s87, s87, {kind << 20}")
    A(f"""buffer_load_dword {v(vt)}, {v(vaddr)}, {WS}, s87 offen sc1
s_add_u32 s88, s88, 1
s_waitcnt vmcnt(0)
v_cmp_ne_u32 vcc, {TAG}, {v(vt)}
s_cmp_gt_u32 s88, {OPT['spin']}
s_cbranch_scc1 {l2}
s_cbranch_vccz {l2}
s_sleep {OPT['psleep']}
s_branch {l1}
{l2}:
s_mov_b64 exec, -1""")
def spin_lds(vaddr, vt, need=1):
    l1, l2 = L("LP"), L("LPD")
    A(f"""s_mov_b32 s86, 0
{l1}:
ds_read_b32 {v(vt)}, {v(vaddr)}
s_add_u32 s86, s86, 1
s_waitcnt lgkmcnt(0)
v_cmp_gt_u32 vcc, {need}, {v(vt)}
s_cmp_gt_u32 s86, {OPT['spin']*8}
s_cbranch_scc1 {l2}
s_cbranch_vccz {l2}
s_sleep 1
s_branch {l1}
{l2}:""")
def vmax(dst, regs_):
    o = []; r = list(regs_)
    if len(r) == 2: return [f"v_max_u32 v{dst}, v{r[0]}, v{r[1]}"]
    o.append(f"v_max3_u32 v{dst}, v{r[0]}, v{r[1]}, v{r[2]}"); r = r[3:]
    while r:
        if len(r) >= 2: o.append(f"v_max3_u32 v{dst}, v{dst}, v{r[0]}, v{r[1]}"); r = r[2:]
        else: o.append(f"v_max_u32 v{dst}, v{dst}, v{r[0]}"); r = r[1:]
    return o
def tagcheck(dst, tmp, regs_):
    for n, r in enumerate(regs_): A(f"v_xor_b32 v{dst if n == 0 else tmp+n}, {TAG}, v{r}")
    n = 1
    while n < len(regs_):
        if n+1 < len(regs_): A(f"v_or3_b32 v{dst}, v{dst}, v{tmp+n}, v{tmp+n+1}"); n += 2
        else: A(f"v_or_b32 v{dst}, v{dst}, v{tmp+n}"); n += 1

A(f"""s_cmp_ge_u32 s2, 256
s_cbranch_scc1 L_END
s_load_dwordx16 s[16:31], s[0:1], 0
s_load_dwordx2 s[32:33], s[0:1], 72""")
if OPT["stamps"]: A("s_memrealtime s[34:35]\ns_memtime s[68:69]")
A(f"""v_lshrrev_b32 v1, 6, v0
v_and_b32 v0, 63, v0
v_readfirstlane_b32 s3, v1
s_and_b32 s5, s2, 7
s_lshr_b32 s86, s2, 3""")
if OPT["p2map"] == 0:
    A("s_lshl_b32 s84, s5, 2\ns_lshr_b32 s87, s86, 3\ns_add_u32 s84, s84, s87\ns_and_b32 s85, s86, 7")
else:
    A("""s_lshr_b32 s84, s5, 1
s_lshl_b32 s84, s84, 3
s_lshr_b32 s87, s86, 2
s_add_u32 s84, s84, s87
s_and_b32 s85, s5, 1
s_lshl_b32 s85, s85, 2
s_and_b32 s87, s86, 3
s_add_u32 s85, s85, s87""")
A(f"""s_lshl_b32 s5, s5, 5
s_add_u32 s5, s5, s86
s_and_b32 s4, s3, 3
s_mov_b32 s12, 0
s_cmp_lt_u32 s5, 138
s_cbranch_scc0 L_BOT
s_mul_i32 s7, s5, 171
s_lshr_b32 s7, s7, 10
s_mul_i32 s86, s7, 6
s_sub_u32 s6, s5, s86
s_branch L_IDS
L_BOT:
s_cmp_ge_u32 s5, 253
s_cselect_b32 s12, 1, 0
s_cselect_b32 s86, 5, 0
s_sub_u32 s86, s5, s86
s_sub_u32 s86, s86, 138
s_mul_i32 s87, s86, 205
s_lshr_b32 s87, s87, 10
s_sub_u32 s7, 22, s87
s_mul_i32 s87, s87, 5
s_sub_u32 s6, s86, s87
s_add_u32 s6, s6, 6
L_IDS:
s_mov_b32 s90, s7""")
if OPT["mix"]:
    A("""s_mul_i32 s86, s7, 43
s_lshr_b32 s86, s86, 7
s_sub_u32 s87, s7, s86
s_lshl_b32 s88, s86, 1
s_sub_u32 s88, s87, s88
s_add_u32 s86, s86, 15
s_cmp_eq_u32 s7, 22
s_cselect_b32 s7, s86, s87
s_cmp_eq_u32 s88, 2
s_cselect_b32 s7, s86, s7""")
A(f"""s_mul_i32 s8, s6, 192
s_min_u32 s8, s8, 1856
s_mul_i32 s9, s7, 96
s_min_u32 s9, s9, 1280
s_cmp_lt_u32 s3, 4
s_cbranch_scc1 L_LOADER""")
def kwait():
    A("s_waitcnt lgkmcnt(0)\ns_load_dword s10, s[32:33], 0")
    if OPT["stamps"]: A("s_mov_b32 s92, s68")
    srd(X, 16, 2097152)
if OPT["prio"]: A(f"s_setprio {OPT['prio']}")
if OPT["pfcode"]:
    A(f"""s_getpc_b64 s[88:89]
L_PC:
s_sub_u32 s88, s88, L_PC-{NAME}_kernel
s_subb_u32 s89, s89, 0
s_lshr_b32 s86, s2, 3
s_lshl_b32 s86, s86, 3
s_lshl_b32 s87, s4, 1
s_add_u32 s86, s86, s87
v_and_b32 v3, 1, v0
v_add_u32 v3, s86, v3
v_lshlrev_b32 v3, 7, v3
v_min_u32 v3, L_END-{NAME}_kernel, v3
global_load_dword v47, v3, s[88:89]""")
A(f"""s_lshl_b32 s86, s5, 3
s_lshl_b32 s87, s4, 1
s_add_u32 s86, s86, s87
v_lshrrev_b32 v7, 5, v0
v_add_u32 v7, s86, v7
v_and_b32 v2, 31, v0
v_lshlrev_b32 v2, 4, v2
v_lshl_add_u32 v2, v7, 10, v2""")
kwait()
if not OPT["nostat"]: A(f"""buffer_load_dwordx4 v[8:11], v2, {X}, 0 offen
buffer_load_dwordx4 v[12:15], v2, {X}, 0 offen offset:512""")
stamp((1, 2))
A("s_branch L_COMPUTE\nL_LOADER:")

def w2addr(base, T, nat):
    a_, b_, c_, d_ = T, T+1, T+2, T+3
    A(f"""v_and_b32 v{a_}, 3, v0
v_bfe_u32 v{b_}, v0, 2, 2
v_bfe_u32 v{c_}, v0, 4, 1
v_lshrrev_b32 v{d_}, 5, v0
v_lshl_add_u32 v{d_}, v{d_}, {3 if nat else 2}, v{b_}
v_lshlrev_b32 v{d_}, 7, v{d_}
v_lshrrev_b32 v{b_}, 1, v{b_}
v_lshl_add_u32 v{c_}, v{b_}, 2, v{c_}
v_and_b32 v{b_}, 1, v{a_}
v_lshl_add_u32 v{c_}, v{b_}, 1, v{c_}
v_lshl_add_u32 v{d_}, v{c_}, 4, v{d_}
v_lshrrev_b32 v{a_}, 1, v{a_}
v_lshl_add_u32 v{d_}, v{a_}, 3, v{d_}
v_add_u32 v{base}, s76, v{d_}
v_xor_b32 v{d_}, 64, v{d_}
v_add_u32 v{base+1}, s76, v{d_}
v_add_u32 v{base+2}, {2*SLOT}, v{base}
v_add_u32 v{base+3}, {2*SLOT}, v{base+1}""")
def w2read(dst, slot, blk, ab, nat=True):
    o = []
    for c in range(2):
        for sec in range(2):
            ar = ab + c + (2 if slot == 2 else 0)
            off = (SLOT if slot == 1 else 0) + blk*2048 + sec*(512 if nat else 1024)
            o.append(f"ds_read_b64_tr_b16 {v(dst+4*c+2*sec,2)}, v{ar} offset:{off}")
    return o
def xres_addr(half, T):
    A(f"""s_lshl_b32 s86, s4, 4
s_lshl_b32 s87, s84, 6
s_add_u32 s86, s86, s87
s_add_u32 s86, s86, {8*half}
s_lshl_b32 s86, s86, 10
s_lshl_b32 s87, s85, 7
s_add_u32 s86, s86, s87
v_lshrrev_b32 v{T}, 3, v0
v_lshlrev_b32 v{T}, 10, v{T}
v_and_b32 v{T+1}, 7, v0
v_lshl_add_u32 v{T}, v{T+1}, 4, v{T}
v_add_u32 v1, s86, v{T}""")
def xres_load(late=0):
    if OPT["xlate"] == late: A(f"buffer_load_dwordx4 v[12:15], v1, {X}, 0 offen")
def p2setup():
    srd(WS, 32, 0x800000); srd(H, 32, 118*65536, WS_H); srd(WD, 28, 1376*1024); srd(WO, 20, 512*1024); srd(OUT, 30, 2097152)
    A(f"""v_lshrrev_b32 v24, 3, v0
v_lshlrev_b32 v24, 10, v24
v_and_b32 v25, 7, v0
v_bfe_u32 v26, v0, 4, 1
v_lshlrev_b32 v26, 2, v26
v_xor_b32 v25, v25, v26
v_lshl_add_u32 v24, v25, 4, v24
s_lshl_b32 s86, s85, 7
v_add_u32 v4, s86, v24
s_mul_i32 s87, s4, {3*16384}
v_add_u32 v2, s87, v4
s_add_u32 s87, s4, 84
s_lshl_b32 s87, s87, 14
v_add_u32 v3, s87, v4
s_lshl_b32 s87, s4, 17
v_add_u32 v4, s87, v4
s_mul_i32 s76, s4, {Q}
s_lshl_b32 s87, s84, 11
s_mul_i32 s86, s4, {3*65536}
s_add_u32 s86, s86, s87
v_lshl_add_u32 v6, v0, 4, s86
v_bfe_u32 v24, v0, 1, 3
v_lshlrev_b32 v24, 3, v24
s_lshr_b32 s86, s4, 1
s_lshl_b32 s86, s86, 2
s_and_b32 s90, s4, 1
s_add_u32 s86, s86, s90
v_add_u32 v24, s86, v24
v_min_u32 v24, 57, v24
v_cmp_eq_u32 vcc, 56, v24
v_cndmask_b32 v24, v24, 57, vcc
v_and_b32 v25, 1, v0
v_lshl_add_u32 v24, v25, 1, v24
s_lshl_b32 s86, s4, 3
s_add_u32 s86, s86, 44
v_add_u32 v25, s86, v0
v_cmp_lt_u32 vcc, 15, v0
v_cndmask_b32 v24, v24, v25, vcc
s_mul_i32 s86, s84, 43
s_lshr_b32 s86, s86, 7
s_mul_i32 s86, s86, {23*4096}
s_add_u32 s86, s86, {WS_FLAG}
v_lshl_add_u32 v5, v24, 10, s86
s_add_u32 s86, s4, 84
s_lshl_b32 s86, s86, 16
s_add_u32 s86, s86, s87
s_cmp_lt_u32 s4, 2
s_cselect_b32 s86, s86, 0x80000000
v_lshl_add_u32 v7, v0, 4, s86""")
    w2addr(8, 24, True); xres_addr(0, 24); rho8()
    A(f"s_waitcnt lgkmcnt(0)\ns_add_u32 {TAG}, {TAG}, 0x9E3779B9")
def wfrag_addr(dst, swc, T, lab):
    A(f"""v_and_b32 v{T}, 3, v0
v_bfe_u32 v{T+1}, v0, 2, 2
v_bfe_u32 v{T+2}, v0, 4, 1
s_cmp_ge_u32 s7, 15
s_cbranch_scc1 {lab}Q
v_lshrrev_b32 v{T+3}, 4, v0
v_lshl_add_u32 v{T+3}, v{T+3}, 3, v{T+1}
v_mul_u32_u24 v{T+3}, 192, v{T+3}
v_lshl_add_u32 v{T}, v{T}, 3, v{T+3}
v_add_u32 v{T}, {XW}, v{T}
s_mul_i32 s87, {swc}, 3
v_xor_b32 v{T+3}, s87, v{T+2}
v_lshl_add_u32 v{dst}, v{T+3}, 5, v{T}
s_add_u32 s87, s87, 1
v_xor_b32 v{T+3}, s87, v{T+2}
v_lshl_add_u32 v{dst+1}, v{T+3}, 5, v{T}
s_branch {lab}D
{lab}Q:
v_lshrrev_b32 v{T+3}, 5, v0
v_mul_u32_u24 v{T+3}, 3072, v{T+3}
v_lshl_add_u32 v{T+3}, v{T+1}, 7, v{T+3}
v_mul_u32_u24 v{T+4}, {UPOFF+32}, v{T+2}
v_lshrrev_b32 v{T+1}, 1, v{T+1}
v_xor_b32 v{T+1}, {swc}, v{T+1}
v_lshl_add_u32 v{T+4}, v{T+1}, 6, v{T+4}
v_lshl_add_u32 v{T}, v{T}, 3, v{T+3}
v_add_u32 v{T}, {XW}, v{T}
v_add_u32 v{dst}, v{T}, v{T+4}
v_xor_b32 v{dst+1}, 32, v{dst}
{lab}D:""")
def woff(role, s_, j, sec):
    if role == 'G':
        jj = j % 3
        return jj & 1, s_*6144 + sec*768 + (j//3)*UPOFF + (64 if jj == 2 else 0)
    return j & 1, s_*6144 + (j//2)*1024 + sec*512
def ksoff(kd): return 12*(kd % 7) + kd//7
S2R = [('o',6+k,2,4+k) for k in range(2)] + [('d',12+k,2,k) for k in range(4)]
S0R = [('d',16+k,0,k) for k in range(6)]
items = [('d',k,2,k) for k in range(6)] + [('d',6+k,2,k) for k in range(6)] + S2R + [('o',k,1,k) for k in range(6)] + S0R
N7 = OPT["n7"]
def rho8():
    if OPT["krot"]: A("s_add_u32 s12, s84, s85\ns_and_b32 s12, s12, 3\ns_lshl_b32 s12, s12, 15")
    else: A("s_mov_b32 s12, 0")
def ktable():
    if OPT["krot"]:
        A("""s_lshl1_add_u32 s86, s85, s84
s_mul_i32 s87, s86, 37
s_lshr_b32 s87, s87, 8
s_mul_i32 s87, s87, 7
s_sub_u32 s86, s86, s87""")
    else: A("s_mov_b32 s86, 0")
    A(f"s_mul_i32 s77, s86, {12*16384}")
    for i in range(1, 7):
        A(f"s_add_u32 s{77+i}, s{76+i}, {12*16384}\ns_cmp_eq_u32 s{77+i}, {84*16384}\ns_cselect_b32 s{77+i}, 0, s{77+i}")
def w2ops(kind, k, dst, thr=None):
    nm = kind + str(k)
    if kind == 'o': va, S_, so = 4, WO, f"s_xor_b32 s86, s12, {k*16384}"
    elif k < 21: va, S_, so = 2, WD, f"s_add_u32 s86, s{77 + k % 7}, {(k//7)*16384}"
    else: va, S_, so = 3, WD, "s_mov_b32 s86, 0"
    if isinstance(dst, tuple):
        pre = f"s_add_u32 m0, s76, {dst[0]*SLOT + dst[1]*2048}\n{so}\ns_add_u32 s87, s86, 7168"
        i1 = f"buffer_load_dwordx4 v{va}, {S_}, s86 offen lds"; i2 = f"buffer_load_dwordx4 v{va}, {S_}, s87 offen offset:1024 lds"
    else:
        pre = f"{so}\ns_add_u32 s87, s86, 8192"
        i1 = f"buffer_load_dwordx4 {v(dst,4)}, v{va}, {S_}, s86 offen"; i2 = f"buffer_load_dwordx4 {v(dst+4,4)}, v{va}, {S_}, s87 offen"
    tw = f"s_waitcnt vmcnt({thr})\n" if thr is not None else ""
    return [pre, f"VM {nm}a|{tw}{i1}", f"VM {nm}|{tw}{i2}"]
NE = OPT["nearly"]
def rawblocks():
    steps = list(range(OPT["e0"], OPT["e1"])); n = len(steps)
    for i, st in enumerate(steps):
        its = range(NE*i//n, NE*(i+1)//n)
        if not len(its): continue
        sk = L("RW")
        A(f"s_cmp_eq_u32 s83, {st}\ns_cbranch_scc0 {sk}")
        for k in its:
            for t in w2ops('o', k, 192+8*k): A(t.split("|")[-1])
        A.label(sk)
def w2item(n):
    for t in w2ops(items[n][0], items[n][1], items[n][2:]): A(t.split("|")[-1])

A(f"""s_cmp_ge_u32 s3, 2
s_cbranch_scc1 L_SIDE
s_add_u32 s79, s6, s90""")
R_ = OPT["drot"] or OPT["rot"]
A(f"s_and_b32 s79, s79, {R_-1}\ns_lshl_b32 s79, s79, { {1:0, 2:2, 4:1, 8:0}[R_] }")
A(f"""v_lshrrev_b32 v24, 3, v0
v_and_b32 v25, 7, v0
v_lshrrev_b32 v26, 4, v0
v_xor_b32 v27, v25, v26
s_mul_i32 s86, s4, 96
s_add_u32 s86, s86, s8
s_lshl_b32 s86, s86, 10
v_lshl_add_u32 v16, v24, 10, s86
v_lshl_add_u32 v16, v27, 4, v16
v_xor_b32 v17, 64, v16
v_add_u32 v18, {2*7168}, v16
v_add_u32 v19, {3*7168}, v17
v_add_u32 v17, 7168, v17
s_mul_i32 s74, s4, 12288
""")
XG = ["s70", "s71", "s72"]; WL = ["s52", "s53", "s54", "s55"]; WG = ["s73", "s77", "s14", "s15"]
sh = {2: 1, 4: 2, 8: 0, 1: 0}[R_]
if OPT["sub"]:
    A(f"""s_lshr_b32 s86, s90, {sh}
s_mul_i32 s87, s86, 43
s_lshr_b32 s87, s87, 7
s_mul_i32 s87, s87, 3
s_sub_u32 s86, s86, s87
""")
else:
    A("s_mov_b32 s86, 0")
A("""s_lshl_b32 s70, s86, 12
s_add_u32 s71, s70, 4096
s_cmp_eq_u32 s71, 12288
s_cselect_b32 s71, 0, s71
s_add_u32 s72, s70, s71
s_sub_u32 s72, 12288, s72""")
XN = ["s11", "s13", "s91"]
A(f"s_lshl_b32 s86, s4, 4\ns_add_u32 s86, s86, s6\ns_cmp_eq_u32 s86, 10\ns_cselect_b32 s88, {8192 if OPT['xz'] else 0}, 0\ns_cmp_eq_u32 s12, 1\ns_cselect_b32 s88, {65536 if OPT['xz'] else 0}, s88")
for g in range(3): A(f"s_cmp_lt_u32 {XG[g]}, s88\ns_cselect_b32 {XN[g]}, 0, 2097152")
A("s_lshl_b32 s80, s79, 7\ns_mov_b32 s88, s74")
kwait()
stamp((1, 2))
def issue_head():
    A(f"""s_lshl_b32 s80, s79, 7
s_mul_i32 s81, s79, s82
s_lshl_b32 s81, s81, 2
s_add_u32 s88, s78, s74
s_add_u32 s89, s78, s75""")
ORDER = ["x0", "w0", "x1", "w1", "x2", "w2", "w3"]
def issue_part(lo, hi, order=None):
    n = 0
    for it in (order or ORDER[lo:hi]):
        g = int(it[1])
        if it[0] == 'x':
            A(f"s_add_u32 m0, s88, {XG[g]}\ns_lshl3_add_u32 s86, {XG[g]}, s80\ns_mov_b32 s38, {XN[g]}")
            for q in range(4): A(f"buffer_load_dwordx4 v{16+q}, {X}, s86 offen offset:{1024*q} lds")
            n += 4
        else:
            A(f"s_add_u32 m0, s89, {WL[g]}\ns_add_u32 s87, s81, {WG[g]}")
            for j in range(3): A(f"buffer_load_dwordx4 v{20+j}, {W}, s87 offen offset:{1024*j} lds")
            n += 3
    return n
def issue_tail():
    A(f"""s_add_u32 s79, s79, 1
s_and_b32 s79, s79, 7
s_add_u32 s78, s78, {SLOT}
s_cmp_eq_u32 s78, {3*SLOT}
s_cselect_b32 s78, 0, s78""")
HH = OPT["h"]
issue_part(0, 0, ["x0", "x1", "x2"][:3 if OPT["xfirst"] == 1 else 1])
A(f"""s_mul_i32 s75, s4, {UPOFF}
s_add_u32 s75, s75, {XW}
s_mov_b32 s43, 0x20000
s_mov_b32 s78, 0
s_cmp_ge_u32 s7, 15
s_cbranch_scc1 L_LQKV
s_mov_b32 s42, {512*2752}
s_mov_b32 s82, {16*2752}
s_movk_i32 s86, 0x1556
s_movk_i32 s87, 2752
s_lshl_b32 s88, s9, 1
s_cmp_eq_u32 s7, 14
s_cselect_b32 s89, {8 if OPT['zf'] else 0}, 0
s_cmp_eq_u32 s12, 1
s_cselect_b32 s89, {12 if OPT['zf'] else 0}, s89
v_mov_b32 v28, 0x80000000""")
for i in range(3):
    A(f"""v_add_u32 v24, {64*i}, v0
v_mul_u32_u24 v25, s86, v24
v_lshrrev_b32 v25, 16, v25
v_mul_u32_u24 v26, 12, v25
v_sub_u32 v24, v24, v26
v_lshrrev_b32 v26, 2, v25
v_and_b32 v26, 2, v26
v_xor_b32 v24, v24, v26
v_cmp_gt_u32 vcc, s89, v24
v_mul_u32_u24 v25, s87, v25
v_lshl_add_u32 v24, v24, 4, v25
v_add_u32 v24, s88, v24
v_subrev_u32 v24, {1024*i}, v24
v_cndmask_b32 v{20+i}, v24, v28, vcc""")
A(f"""s_branch L_LGO
L_LQKV:
s_mov_b32 s42, {512*3072}
s_mov_b32 s82, {16*3072}
s_sub_u32 s87, s7, 15
s_lshl_b32 s87, s87, 7
s_mul_i32 s88, s4, {8*3072}
s_add_u32 s87, s87, s88
v_mul_u32_u24 v24, 3072, v24
v_and_b32 v26, 1, v26
v_lshlrev_b32 v26, 2, v26
v_xor_b32 v25, v25, v26
s_lshl_b32 s88, s4, 1
v_xor_b32 v25, s88, v25
v_lshl_add_u32 v20, v25, 4, v24
v_add_u32 v20, s87, v20
v_mov_b32 v21, v20
v_mov_b32 v22, v20
L_LGO:""")
A(f"s_lshr_b32 s87, s6, {sh}" if OPT["sub"] else "s_mov_b32 s87, 0")
for g in range(4):
    A(f"s_add_u32 s86, s87, {g}\ns_and_b32 s86, s86, 3\ns_mul_i32 {WL[g]}, s86, 3072\ns_mul_i32 {WG[g]}, s86, s82")
A(f"""s_cmp_eq_u32 s4, 1
s_cselect_b32 s40, s26, s24
s_cselect_b32 s41, s27, s25
s_cmp_ge_u32 s7, 15
s_cselect_b32 s40, s18, s40
s_cselect_b32 s41, s19, s41""")
issue_head(); issue_part(0, 0, ["w0", "w1", "w2", "w3"] if OPT["xfirst"] == 1 else ["w0", "x1", "w1", "x2", "w2", "w3"]); issue_tail()
stamp((2, 2))
issue_head(); n_ = issue_part(0, HH)
p2setup()
A(f"s_waitcnt vmcnt({n_})")
stamp((1, 1), (3, 2))
A("s_barrier\ns_mov_b32 s83, 0\nL_LLOOP:")
rawblocks()
if OPT['nodma']: issue_tail(); issue_head()
else:
    if HH < 7: issue_part(HH, 7)
    issue_tail(); issue_head(); issue_part(0, HH)
A(f"""s_add_u32 s83, s83, 1
s_waitcnt vmcnt({n_})
s_barrier
s_cmp_lt_u32 s83, 6
s_cbranch_scc1 L_LLOOP""")
stamp((2, 1), (4, 2))
if HH < 7: issue_part(HH, 7)
A("s_mov_b32 s38, 2097152")
ktable()
for n in range(N7): w2item(n)
A(f"s_waitcnt vmcnt({2*N7})\ns_barrier")
A("s_branch L_W2")

def f_addr(dst):
    A(f"""s_sub_u32 s86, s7, 15
s_lshl_b32 s86, s86, 12
s_and_b32 s87, s6, 1
s_lshl_b32 s87, s87, 11
s_add_u32 s86, s86, s87
s_and_b32 s87, s6, 2
s_lshl_b32 s87, s87, 9
s_add_u32 s86, s86, s87
s_lshr_b32 s87, s6, 2
s_lshl_b32 s87, s87, 9
s_add_u32 s86, s86, s87
s_lshl1_add_u32 s91, s86, {WS_FF}
s_add_u32 s86, s86, {WS_F}
v_lshl_add_u32 v{dst}, v0, 4, s86""")
assert OPT["rot"] in (2, 4, 8)
A(f"""L_SIDE:
s_add_u32 s13, s6, s90
s_and_b32 s13, s13, {OPT['rot']-1}
s_lshl_b32 s13, s13, { {2:2, 4:1, 8:0}[OPT['rot']] }
s_lshr_b32 s14, s6, { {2:1, 4:2, 8:3}[OPT['rot']] }
s_add_u32 s15, s13, s14
s_cmp_ge_u32 s6, 8
s_cselect_b32 s14, 99, s14
s_cmp_eq_u32 s12, 1
s_cselect_b32 s14, 99, s14
s_and_b32 s77, s4, 1""")
wfrag_addr(62, "s77", 24, "L_SA")
A(f"""s_cmp_eq_u32 s14, 1
s_cselect_b32 s86, {SLOT}, 0
s_cmp_eq_u32 s14, 2
s_cselect_b32 s86, {2*SLOT}, s86
v_add_u32 v62, s86, v62
v_add_u32 v63, s86, v63
v_and_b32 v24, 16, v0
v_cmp_ne_u32 s[72:73], 0, v24
v_and_b32 v24, 31, v0
s_mul_i32 s86, s77, 384
s_add_u32 s86, s86, {CF}
v_lshrrev_b32 v25, 4, v24
v_mul_u32_u24 v25, 128, v25
v_lshl_add_u32 v17, v24, 2, v25
v_add_u32 v17, s86, v17
s_mul_i32 s87, s77, 96
v_add_u32 v21, s87, v0
v_add3_u32 v22, v24, s87, 64
s_lshl_b32 s86, s8, 4
s_add_u32 s86, s86, {WS_RS}
v_lshl_add_u32 v19, v21, 4, s86
v_lshl_add_u32 v20, v22, 4, s86
s_lshl_b32 s86, s7, 13
s_lshl_b32 s87, s77, 9
s_add_u32 s86, s86, s87
s_add_u32 s86, s86, {WS_CS}
s_lshl_b32 s87, s15, 10
s_add_u32 s74, s86, s87
v_lshlrev_b32 v23, 4, v24
v_lshrrev_b32 v25, 5, v0
v_lshl_add_u32 v18, v25, 12, v23
v_add_u32 v18, s86, v18""")
for r in range(52, 56): A(f"v_mov_b32 v{r}, 0x3f803f80")
def w1prefetch():
    A(f"""s_cmp_eq_u32 s77, 0
s_cselect_b32 s40, s24, s26
s_cselect_b32 s41, s25, s27
s_mov_b32 s42, {1376*1024}
s_mov_b32 s43, 0x20000
s_mul_i32 s86, s5, 43
v_min_u32 v16, 42, v0
v_add_u32 v16, s86, v16
v_lshlrev_b32 v16, 7, v16
buffer_load_dword v58, v16, {W}, 0 offen
s_mov_b32 s52, s18
s_mov_b32 s53, s19
s_mov_b32 s54, {512*3072}
s_mov_b32 s55, 0x20000
s_lshl_b32 s86, s5, 1
s_add_u32 s86, s86, s77
s_mul_i32 s86, s86, 24
v_min_u32 v16, 23, v0
v_add_u32 v16, s86, v16
v_lshlrev_b32 v16, 7, v16
buffer_load_dword v57, v16, s[52:55], 0 offen""")
kwait()
if OPT['w1pf'] == -2: w1prefetch()
p2setup()
A(f"""s_cmp_lt_u32 s7, 15
s_cbranch_scc1 L_NOCLR
s_cmp_ge_u32 s6, 8
s_cbranch_scc1 L_NOCLR""")
f_addr(24)
A(f"""v_mov_b32 v28, -1
v_mov_b32 v29, -1
v_mov_b32 v30, -1
v_mov_b32 v31, -1
s_mov_b32 exec_hi, 0
buffer_store_dwordx4 v[28:31], v24, {WS}, 0 offen sc1
s_mov_b32 exec_hi, -1""")
if OPT["prew"]: A(f"s_sub_u32 s86, {TAG}, 1\nv_mov_b32 v32, s86\nv_lshlrev_b32 v24, 4, v0\nbuffer_store_dwordx4 v[32:35], v24, {WS}, s91 offen sc1")
A(f"""L_NOCLR:
s_mov_b32 s83, 0
s_waitcnt vmcnt(0)""")
if OPT["w1pf"] == -1: w1prefetch()
A("L_SLOOP:\ns_barrier")
if OPT["w1pf"] >= 0:
    A(f"s_cmp_eq_u32 s83, {OPT['w1pf']}\ns_cbranch_scc0 L_NOPF1"); w1prefetch(); A("L_NOPF1:")
if OPT["w2late"] >= 0:
    A(f"""s_cmp_eq_u32 s83, {OPT['w2late']}
s_cbranch_scc0 L_NOPF2
s_mul_i32 s86, s5, 59
s_mul_i32 s87, s77, 30
s_add_u32 s86, s86, s87
v_min_u32 v16, 29, v0
v_add_u32 v16, s86, v16
v_lshlrev_b32 v16, 7, v16
buffer_load_dword v60, v16, {WD}, 0 offen
v_subrev_u32 v16, {1376*1024}, v16
buffer_load_dword v61, v16, {WO}, 0 offen
L_NOPF2:""")
if OPT["pf2"] >= 0:
    A(f"""s_cmp_eq_u32 s83, {OPT['pf2']}
s_cbranch_scc0 L_NOPF3
s_getpc_b64 s[88:89]
L_PC2:
s_sub_u32 s88, s88, L_PC2-{NAME}_kernel
s_subb_u32 s89, s89, 0
s_lshr_b32 s86, s2, 3
s_lshl_b32 s86, s86, 3
s_lshl_b32 s87, s77, 2
s_add_u32 s86, s86, s87
v_and_b32 v16, 3, v0
v_add_u32 v16, s86, v16
v_lshlrev_b32 v16, 7, v16
v_min_u32 v16, L_END-{NAME}_kernel, v16
global_load_dword v59, v16, s[88:89]
L_NOPF3:""")
A("s_cmp_eq_u32 s83, s14\ns_cbranch_scc0 L_LNOCS")
for t in range(2):
    A(f"s_cmp_ge_u32 s7, 15\ns_cbranch_scc1 L_CSQ{t}")
    for role in "GQ":
        if role == 'Q': A(f"s_branch L_CSM{t}\nL_CSQ{t}:")
        for j in range(6):
            for sec in range(2):
                par, off = woff(role, t, j, sec)
                A(f"ds_read_b64_tr_b16 {v(24+4*j+2*sec,2)}, v{62+par} offset:{off}")
    A(f"L_CSM{t}:\ns_waitcnt lgkmcnt(0)")
    for j in range(6): A(mf16(72+4*j, 52, 24+4*j, 0 if t == 0 else None))
A(f"v_mov_b32 v51, {TAG}")
for u in range(3): A(f"v_cndmask_b32 v{48+u}, v{72+4*u}, v{84+4*u}, s[72:73]")
A(f"""s_mov_b32 exec_hi, 0
buffer_store_dwordx4 v[48:51], v23, {WS}, s74 offen sc1
s_mov_b32 exec_hi, -1
L_LNOCS:""")
rawblocks()
A(f"""s_add_u32 s83, s83, 1
s_cmp_lt_u32 s83, 6
s_cbranch_scc1 L_SLOOP""")
def st_loads():
    for p in range(4): A(f"buffer_load_dwordx4 {v(32+4*p,4)}, v18, {WS}, 0 offen offset:{1024*p} sc1")
    A(f"buffer_load_dwordx4 v[48:51], v19, {WS}, 0 offen sc1\nbuffer_load_dwordx4 v[52:55], v20, {WS}, 0 offen sc1")
st_loads()
A("s_barrier")
stamp((2, 1), (4, 2))
ktable()
for n in range(N7): w2item(n)
A(f"s_mov_b32 s88, 0\ns_waitcnt vmcnt({2*N7})")
A("L_SPC:")
tagcheck(24, 24, [35+4*p for p in range(6)])
A(f"""v_cmp_ne_u32 vcc, 0, v24
s_add_u32 s88, s88, 1
s_cmp_gt_u32 s88, {OPT['spin']}
s_cbranch_scc1 L_SPCD
s_cbranch_vccz L_SPCD""")
st_loads()
A(f"""s_waitcnt vmcnt(0)
s_branch L_SPC
L_SPCD:
s_mov_b32 s86, {RS}
s_mov_b32 s87, {RR}
v_lshl_add_u32 v24, v21, 4, s86
v_lshl_add_u32 v25, v22, 4, s86
v_lshl_add_u32 v21, v21, 2, s87
v_lshl_add_u32 v22, v22, 2, s87
ds_write_b128 v24, v[48:51]
ds_write_b128 v25, v[52:55]
ds_write_b32 v21, v49
ds_write_b32 v22, v53
v_mul_f32 v24, v48, v49
v_mul_f32 v25, v52, v53
ds_write_b32 v21, v24 offset:{MR-RR}
ds_write_b32 v22, v25 offset:{MR-RR}""")
note("s88", 2)
for p in range(1, 4):
    for u in range(3): A(f"v_add_f32 v{32+u}, v{32+u}, v{32+4*p+u}")
for u in range(3): A(f"v_mov_b32 v{36+u}, v{32+u}")
for u in range(3): A(f"v_permlane32_swap_b32 v{32+u}, v{36+u}")
for u in range(3): A(f"v_add_f32 v{32+u}, v{32+u}, v{36+u}")
for u in range(3): A(f"ds_write_b32 v17, v{32+u} offset:{64*u}")
A("s_waitcnt lgkmcnt(0)\ns_barrier")

A("L_W2:")
stamp((3, 1), (6, 2))
AB = 8
vm = [x for n in range(N7) for x in (f"d{n}a", f"d{n}")]
def emit(Y):
    for t in Y:
        if callable(t): t()
        elif t.startswith("VM "):
            nm, ins = t[3:].split("|"); vm.append(nm); A(ins)
        elif t.startswith("WAIT "):
            nms, lg = t[5:].split("|")
            A(f"s_waitcnt vmcnt({len(vm)-1-max(vm.index(x) for x in nms.split(','))})" + (" lgkmcnt(0)" if lg else ""))
        elif t.startswith("STAMP "): stamp((int(t[6:]), 4))
        else: A(t)
A(f"v_lshlrev_b32 v84, 4, v0\nv_add_u32 v84, s76, v84")
def wr(reg, slot, blk):
    off = slot*SLOT + blk*2048
    A(f"ds_write_b128 v84, {v(reg,4)} offset:{off}\nds_write_b128 v84, {v(reg+4,4)} offset:{off+1024}")
def rd6(base, sl):
    for kk in range(6):
        E(w2read(base+8*kk, sl, kk, AB))
        if kk % 3 == 2: A("s_waitcnt lgkmcnt(0)")
NB = OPT["nb"]; NC = OPT["nc"]; NIT = len(items); NW = OPT['nraw']; NL = 12 - NW - NB - NC; assert NL >= 0 and NW <= 8
cnt = [N7]
def TH():
    cnt[0] += 1
    return OPT["thr"] if (OPT["thr"] and cnt[0] > OPT["tfrom"]) else None
it = lambda n: w2ops(items[n][0], items[n][1], items[n][2:], TH())
Z = []
for n in range(N7, 6): Z += it(n)
order2 = [12+2, 12+3, 12+4, 12+5, 12+0, 12+1]
for n in range(12):
    Z += [f"WAIT d{n}|"] + w2read(96+8*n, 2, n % 6, AB) + ["s_waitcnt lgkmcnt(0)"]
    Z += it(n+6 if n < 6 else order2[n-6])
assert NE <= min(NW, 6)
for n in range(NE, NW): Z += w2ops(items[18+n][0], items[18+n][1], 192+8*n, TH())
Z += [f"VM x|buffer_load_dwordx4 v[12:15], v1, {X}, 0 offen", f"v_mov_b32 v18, {LF+40}", lambda: spin_lds(18, 17, 4)]
emit(Z)
stamp((4, 1), (1, 3), (1, 4))
def rdaddr(dst, isy_src, half, T):
    base = 0 if isy_src else SLOT
    t3 = 2*SLOT + (0 if isy_src else 8192)
    A(f"""s_and_b32 s70, s4, 2
s_lshl_b32 s70, s70, 12
s_add_u32 s70, s70, {base}
s_add_u32 s71, s70, 4096
s_cmp_ge_u32 s4, 2
s_cselect_b32 s71, {t3}, s71
v_mov_b32 v{T}, s70
v_mov_b32 v{T+1}, s71
v_and_b32 v{T+2}, 4, v0
v_cmp_ne_u32 vcc, 0, v{T+2}
v_and_b32 v{T+2}, 7, v0
v_lshrrev_b32 v{T+3}, 3, v0
v_cndmask_b32 v{T}, v{T}, v{T+1}, vcc
v_add_u32 v{T+3}, {8*half}, v{T+3}
v_lshlrev_b32 v{T+1}, 1, v{T+2}
v_xor_b32 v{T+3}, v{T+3}, v{T+1}
s_and_b32 s70, s4, 1
s_lshl_b32 s70, s70, 8
v_lshl_add_u32 v{T}, v{T+3}, 4, v{T}
v_and_b32 v{T+1}, 2, v0
v_lshl_add_u32 v{T}, v{T+1}, 8, v{T}
v_and_b32 v{T+1}, 1, v0
v_lshl_add_u32 v{T}, v{T+1}, 11, v{T}
v_add_u32 v{dst}, s70, v{T}""")
def wraddr(B_, isy):
    A(f"""v_lshrrev_b32 v{B_}, 3, v0
v_and_b32 v{B_}, 4, v{B_}
v_xor_b32 v{B_}, v{B_}, v0
v_lshlrev_b32 v{B_}, 4, v{B_}
v_xor_b32 v{B_+1}, 32, v{B_}
v_xor_b32 v{B_+2}, 0x80, v{B_}
v_xor_b32 v{B_+3}, 0xa0, v{B_}""")
    for j in range(4): A(f"v_add_u32 v{B_+j}, s76, v{B_+j}")
    t3 = 2*SLOT + (0 if isy else 8192)
    A(f"v_add_u32 v{B_+4}, {t3}, v{B_+2}\nv_add_u32 v{B_+5}, {t3}, v{B_+3}")
def wrpart(B_, isy):
    for q in range(4):
        for jq in range(4):
            if q < 3: A(f"ds_write_b128 v{B_ + 2*(q&1) + (jq>>1)}, {v(192+16*q+4*jq,4)} offset:{(0 if isy else SLOT) + q*4096 + jq*1024}")
            else: A(f"ds_write_b128 v{B_ + 4 + (jq>>1)}, {v(192+16*q+4*jq,4)} offset:{jq*1024}")
def rd4(dst, va):
    for src in range(4):
        for e in range(2): A(f"ds_read_b128 {v(dst+8*src+4*e,4)}, v{va} offset:{Q*src+1024*e}")
def sum4(d):
    for j in range(4): A(f"v_pk_add_f32 {v(d+2*j,2)}, {v(d+2*j,2)}, {v(d+8+2*j,2)}\nv_pk_add_f32 {v(d+16+2*j,2)}, {v(d+16+2*j,2)}, {v(d+24+2*j,2)}")
    for j in range(4): A(f"v_pk_add_f32 {v(d+2*j,2)}, {v(d+2*j,2)}, {v(d+16+2*j,2)}")
STG = OPT["stage"]
def sgo(va, vd): return f"s_lshl_b32 s86, s4, 2\ns_add_u32 s86, s86, {LF+48}\nv_mov_b32 v{va}, s86\nv_mov_b32 v{vd}, 1\nds_write_b32 v{va}, v{vd}"
assert STG
note("1", 4)
def hload(kd):
    va = 6 if kd < 21 else 7
    b = 16 + 8*(kd % 8)
    return [f"s_lshl2_add_u32 s86, s{77 + kd % 7}, {(kd//7)*65536}" if kd < 21 else "s_mov_b32 s86, 0",
            f"VM h{kd}a|buffer_load_dwordx4 {v(b,4)}, v{va}, {H}, s86 offen sc1",
            f"VM h{kd}|buffer_load_dwordx4 {v(b+4,4)}, v{va}, {H}, s86 offen offset:1024 sc1"]
w2late = lambda n, t=None: w2ops(items[n][0], items[n][1], items[n][2:], t)
def ipoll(c):
    nl = 16 if c <= 1 else 24
    return [f"VM p{c}|v_mov_b32 v82, {TAG}\ns_mov_b32 s87, {c << 20}\ns_mov_b64 exec, {hex((1<<nl)-1)}\nbuffer_load_dword v82, v5, {WS}, s87 offen sc1\ns_mov_b64 exec, -1"]
res_loc = lambda kd: (2, kd-12) if kd < 16 else (0, kd-16)
YD = OPT["ydep"]; assert YD <= 7
PRE = cap(lambda: (wraddr(96, True), rdaddr(102, True, 0, 104), A("v_xor_b32 v103, 0x80, v102"), rdaddr(108, False, 0, 104),
    A(f"s_lshl_b32 s70, s4, 11\ns_add_u32 s70, s70, {GB}\nv_lshl_add_u32 v109, v0, 4, s70\nv_mov_b32 v110, {LF+36}\nv_mov_b32 v111, 1"),
    [A(f"v_lshlrev_b32 v{112+2*j}, 16, v{12+j}\nv_and_b32 v{113+2*j}, 0xffff0000, v{12+j}") for j in range(4)],
    A(f"s_mov_b32 s70, {hx(-1.4426950408889634)}\ns_mov_b32 s71, s70")))
Y = []
Y += ipoll(0)
for n in range(NB): Y += w2late(18+NW+n, OPT['thr2'] or None)
if NW: Y += ['WAIT x|', lambda: [wr(192+8*n, *items[18+n][2:]) for n in range(NW//2)]]
Y += ["WAIT p0|", f"v_cmp_ne_u32 vcc, {TAG}, v82\ns_cbranch_vccnz L_YR0\nL_YB0:", lambda: stamp((5, 1), (2, 3), (2, 4))]
for kd in range(YD): Y += hload(kd)
for n in range(NC): Y += w2late(18+NW+NB+n, OPT['thr2'] or None)
if NW: Y += [lambda: [wr(192+8*n, *items[18+n][2:]) for n in range(NW//2, NW)], 's_waitcnt lgkmcnt(0)']
if OPT["gate"]: Y += [f"v_mov_b32 v80, {LF+32}", lambda: spin_lds(80, 81, OPT["gate"])]
Y.append(f"s_setprio {OPT['yprio']}")
for kd in range(22):
    wf = 96+8*kd if kd < 12 else 80+8*(kd & 1)
    hb = 16 + 8*(kd % 8)
    need = [f"h{kd}"]
    chk = 0 if not STG else (1 if kd+YD == 7 else (2 if kd == OPT['c2'] else 0))
    if chk: need.append(f"p{chk}")
    if chk == 2 and NE < 6: need.append("o5")
    if 16 <= kd+1 < 22: need.append(f"d{kd+1}")
    Y.append("WAIT " + ",".join(need) + ("|L" if kd >= 12 else "|"))
    if chk:
        Y.append(f"v_cmp_ne_u32 vcc, {TAG}, v82\ns_cbranch_vccnz L_YR{chk}\nL_YB{chk}:")
        if chk == 2: Y.append(sgo(82, 83))
    ms = [mfma(192+32*r+16*c, wf+4*c, hb+4*r, 0 if kd == 0 else None) for r in range(2) for c in range(2)]
    fill = []
    if STG and kd == OPT["p1"]: fill += ipoll(1)
    if STG and kd == OPT["p2"]: fill += ipoll(2)
    if kd+YD < 22: fill += hload(kd+YD)
    if kd < NL: fill += w2late(NIT-NL+kd)
    if 12 <= kd+1 < 22: fill += w2read(80+8*((kd+1) & 1), *res_loc(kd+1), AB)
    if kd in (11, 12, 13): fill = fill + PRE[(kd-11)*37:(kd-10)*37] if kd < 13 else fill + PRE[74:]
    Y += interleave(ms, fill, 3 if len(fill) <= 12 else 6)
    if kd+1 == OPT["ydrop"]: Y.append(f"s_setprio {OPT['ypost']}")
    if kd == 0: Y.append("STAMP 3")
    if kd == 10: Y.append("STAMP 4")
assert not STG or (OPT["p1"] < 7-YD <= OPT["p2"] < OPT["c2"] <= 14-YD)
emit(Y)
stamp((6, 1), (3, 3), (5, 4))
def final(isy):
    if OPT["fin"] == 1:
        if isy:
            wrpart(96, True); A("v_mov_b32 v4, v102\ns_waitcnt lgkmcnt(0)")
        else:
            wrpart(80, False)
            A("s_setprio 0")
            rdaddr(10, True, 1, 88)
            A(f"""v_xor_b32 v5, 0x80, v4
v_mov_b32 v6, {LF+36}
v_mov_b32 v7, 1
s_mov_b32 s70, {hx(-1.4426950408889634)}
s_mov_b32 s71, s70
s_mov_b64 exec, 1
s_waitcnt lgkmcnt(0)
ds_add_u32 v6, v7
s_mov_b64 exec, -1""")
            spin_lds(6, 7, 4)
            rd4(16, 5); A("s_waitcnt lgkmcnt(4)"); rd4(48, 4)
            for d, w_ in ((16, 8), (48, 2)):
                A(f"s_waitcnt lgkmcnt({w_})")
                for j in range(8): A(f"v_add_f32 v{d+j}, v{d+j}, v{d+8+j}\nv_add_f32 v{d+16+j}, v{d+16+j}, v{d+24+j}")
                for j in range(8): A(f"v_add_f32 v{(d if d == 16 else 88)+j}, v{d+j}, v{d+16+j}")
                if d == 16: A("ds_write_b128 v9, v[16:19]\nds_write_b128 v9, v[20:23] offset:1024")
            A("v_mov_b32 v4, v10\ns_waitcnt lgkmcnt(0)")
        return
    if isy:
        wrpart(96, True)
        A("""v_mov_b32 v4, v108
s_mov_b64 exec, 1
s_waitcnt lgkmcnt(0)
ds_add_u32 v110, v111
s_mov_b64 exec, -1""")
        spin_lds(110, 6, 4)
        rd4(16, 103); A("s_waitcnt lgkmcnt(4)"); rd4(48, 102)
        for d, w_ in ((16, 8), (48, 2)):
            A(f"s_waitcnt lgkmcnt({w_})")
            if OPT["ypk"]:
                sum4(d)
                for j in range(4): A(f"v_pk_mul_f32 {v(d+8+2*j,2)}, {v(d+2*j,2)}, s[70:71]")
            else:
                for j in range(8): A(f"v_add_f32 v{d+j}, v{d+j}, v{d+8+j}\nv_add_f32 v{d+16+j}, v{d+16+j}, v{d+24+j}")
                for j in range(8): A(f"v_add_f32 v{d+j}, v{d+j}, v{d+16+j}")
                for j in range(8): A(f"v_mul_f32 v{d+8+j}, s70, v{d+j}")
            for j in range(8): A(f"v_exp_f32 v{d+8+j}, v{d+8+j}")
            for j in range(8): A(f"v_add_f32 v{d+8+j}, 1.0, v{d+8+j}")
            for j in range(8): A(f"v_rcp_f32 v{d+8+j}, v{d+8+j}")
            for j in range(8): A(f"v_mul_f32 v{(d if d == 16 else 88)+j}, v{d+j}, v{d+8+j}")
            if d == 16:
                A("ds_write_b128 v109, v[16:19]\nds_write_b128 v109, v[20:23] offset:1024")
    else:
        wrpart(80, False)
    A("s_waitcnt lgkmcnt(0)")
final(True)
A("s_branch L_FINAL")
if STG:
    for c in (0, 1, 2):
        A(f"L_YR{c}:"); note(str(10+c), 4); spin_flag(5, 82, 16 if c <= 1 else 24, c, 1); A(f"s_branch L_YB{c}")
A("L_COMPUTE:")
srd(WS, 32, 0x800000); srd(H, 32, 118*65536, WS_H); srd(OUT, 30, 2097152)
ACC = 112
for r in range(ACC, 256): A(f"v_mov_b32 v{r}, 0")
A(f"""v_lshlrev_b32 v16, 2, v0
v_add_u32 v16, {LF}, v16
v_mov_b32 v17, 0
s_mov_b64 exec, 0xffff
ds_write_b32 v16, v17
s_mov_b64 exec, -1
s_lshr_b32 s13, s4, 1
s_and_b32 s14, s4, 1
s_movk_i32 s11, 0x1ff
s_lshl_b32 s86, s13, 4
s_add_u32 s86, s86, s6
s_cmp_eq_u32 s86, 10
s_cselect_b32 s11, 0x1c0, s11
s_mul_i32 s86, s14, 0x1b6
s_cmp_eq_u32 s7, 14
s_cselect_b32 s86, s86, 0x1ff
s_and_b32 s11, s11, s86
s_cmp_eq_u32 s12, 1
s_cselect_b32 s11, 0, s11
s_mul_i32 s76, s4, {Q}
s_lshr_b32 s86, s9, 4
s_mul_i32 s87, s14, 3
s_add_u32 s86, s86, s87
s_lshl_b32 s87, s7, 1
s_add_u32 s87, s87, s14
s_lshl1_add_u32 s87, s87, 26
s_and_b32 s88, s11, 0xdb
s_cmp_ge_u32 s7, 15
s_cselect_b32 s86, s87, s86
s_cselect_b32 s11, s88, s11
s_lshl_b32 s86, s86, 6
s_lshr_b32 s87, s8, 5
s_add_u32 s86, s86, s87
s_mul_i32 s87, s13, 3
s_add_u32 s86, s86, s87
s_lshl_b32 s86, s86, 10
v_lshl_add_u32 v1, v0, 4, s86
s_mov_b32 s80, 0
s_mov_b32 s81, 65536
s_mov_b32 s82, 131072
v_and_b32 v16, 15, v0
v_lshrrev_b32 v17, 4, v0
v_bfe_u32 v18, v0, 1, 3
v_xor_b32 v18, v18, v17
s_mul_i32 s86, s13, {96*128}
v_lshl_add_u32 v16, v16, 7, s86
v_lshl_add_u32 v2, v18, 4, v16
v_xor_b32 v3, 64, v2""")
wfrag_addr(4, "s14", 16, "L_CA")
A(f"""s_mul_i32 s86, s6, 23
s_add_u32 s86, s86, s7
s_cmp_eq_u32 s12, 1
s_cselect_b32 s86, 255, s86
s_lshl_b32 s86, s86, 2
s_add_u32 s86, s86, s4
s_lshl_b32 s86, s86, 10
s_add_u32 s15, s86, {WS_FLAG}""")
stamp((2, 2))
A("s_waitcnt vmcnt(0)")
stamp((5, 2))
for j in range(8):
    A(f"v_lshlrev_b32 v{16+2*j}, 16, v{8+j}\nv_and_b32 v{17+2*j}, 0xffff0000, v{8+j}")
def red32(r, t):
    for sh_ in (8, 4, 2, 1):
        A(f"v_add_f32_dpp v{r}, v{r}, v{r} row_ror:{sh_} row_mask:0xf bank_mask:0xf")
    A(f"v_mov_b32 v{t}, v{r}\nv_permlane16_swap_b32 v{r}, v{t}\nv_add_f32 v{r}, v{r}, v{t}")
for j in range(4): A(f"v_pk_add_f32 {v(8+2*j,2)}, {v(16+2*j,2)}, {v(24+2*j,2)}")
A("v_pk_add_f32 v[8:9], v[8:9], v[12:13]\nv_pk_add_f32 v[10:11], v[10:11], v[14:15]\nv_pk_add_f32 v[8:9], v[8:9], v[10:11]\nv_add_f32 v8, v8, v9")
red32(8, 9)
A(f"v_mul_f32 v8, {hx(-1/512)}, v8")
for j in range(8): A(f"v_pk_add_f32 {v(16+2*j,2)}, {v(16+2*j,2)}, v[8:9] op_sel_hi:[1,0]")
A("v_pk_mul_f32 v[10:11], v[16:17], v[16:17]\nv_pk_mul_f32 v[12:13], v[18:19], v[18:19]")
for j in range(2, 8): A(f"v_pk_fma_f32 {v(10+2*(j&1),2)}, {v(16+2*j,2)}, {v(16+2*j,2)}, {v(10+2*(j&1),2)}")
A("v_pk_add_f32 v[10:11], v[10:11], v[12:13]\nv_add_f32 v10, v10, v11")
red32(10, 9)
A(f"""v_mul_f32 v10, {hx(1/512)}, v10
v_cvt_pk_bf16_f32 v10, v10, v10
v_and_b32 v10, 0xffff0000, v10
v_add_f32 v10, {hx(1e-5)}, v10
v_cvt_pk_bf16_f32 v10, v10, v10
v_and_b32 v10, 0xffff0000, v10
v_sqrt_f32 v10, v10
v_cvt_pk_bf16_f32 v32, v8, v8
v_cvt_pk_bf16_f32 v10, v10, v10
v_and_b32 v10, 0xffff0000, v10
v_and_b32 v32, 0xffff0000, v32
v_rcp_f32 v33, v10
v_mul_f32 v34, v10, v10
v_lshlrev_b32 v7, 4, v7
v_add_u32 v7, {WS_RS}, v7
s_waitcnt lgkmcnt(0)
s_add_u32 {TAG}, {TAG}, 0x9E3779B9
v_mov_b32 v35, {TAG}
v_mov_b32 v36, {TAG}
v_mov_b32 v37, {TAG}
v_mov_b32 v38, {TAG}
v_mov_b32 v39, {TAG}
v_lshlrev_b32 v6, 4, v0
s_mov_b32 s78, 0
s_mov_b32 s79, {SLOT}
s_mov_b32 s83, 0""")
stamp((1, 1), (3, 2))
A(f"""s_barrier
s_mov_b32 exec_lo, 1
s_mov_b32 exec_hi, 1
buffer_store_dwordx4 v[32:35], v7, {WS}, 0 offen sc1
s_mov_b64 exec, -1""")
if OPT["prew"]:
    for kind in ((0, 1, 2) if OPT["stage"] else (0, 2)):
        sk = L("PW")
        if kind == 0 and not OPT["stage"]: A(f"s_cmp_lt_u32 s7, 15\ns_cbranch_scc1 {sk}")
        A(f"s_add_u32 s86, s15, {kind << 20}\nbuffer_store_dwordx4 v[28:31], v6, {WS}, s86 offen sc1")
        A.label(sk)
stamp((2, 1), (4, 2))
A("s_cmp_ge_u32 s7, 15\ns_cbranch_scc1 L_QKV")
if OPT["dead"]: A("s_or_b32 s86, s11, s12\ns_cbranch_scc0 L_DEAD")

XB = lambda buf, a: (40 if buf == 0 else 8) + 4*a
WF = lambda buf, j: 64 + 24*buf + 4*j
acc = lambda a, j: ACC + 4*(6*a+j)
CB = 88
def reads(role, s_):
    w_ = []
    for j in range(6):
        for sec in range(2):
            par, off = woff(role, s_, j, sec)
            w_.append(f"ds_read_b64_tr_b16 {v(WF(s_,j)+2*sec,2)}, v{4+par} offset:{off}")
    o = []
    for a in range(6): o += [f"ds_read_b128 {v(XB(s_,a),4)}, v{2+s_} offset:{2048*a}"] + w_[2*a:2*a+2]
    return o
def mm(role, wb, a, j, xb=1):
    return mf16(acc(a,j), WF(wb,j), XB(xb,a)) if (role == 'G' or j < 2) else mf16(acc(a,j), XB(xb,a), WF(wb,j))
def grp(role, buf, a): return [mm(role, buf, a, j, buf) for j in range(6)]
def spread(ms, fill, num, den):
    o = []; f = list(fill); nr = 0
    for i, m in enumerate(ms):
        o.append(m)
        k = ((i+1)*num)//den - (i*num)//den
        for _ in range(k):
            if f:
                x = f.pop(0)
                if x.startswith("ds_read"):
                    nr += 1
                    if nr == 13: o.append("s_waitcnt lgkmcnt(6)")
                o.append(x)
    assert not f
    return o
def treads(role, st, js, wb):
    buf = st & 1
    xs_ = [f"ds_read_b128 {v(XB(buf,a),4)}, v{2+buf} offset:{2048*a + (SLOT if st >= 2 else 0)}" for a in range(6)]
    ws_ = []
    for i, j in enumerate(js):
        for sec in range(2):
            par, off = woff(role, buf, j, sec)
            ws_.append(f"ds_read_b64_tr_b16 {v(wb(buf)+4*i+2*sec,2)}, v{(32 if st >= 2 else 4)+par} offset:{off}")
    return ws_[:4] + xs_ + ws_[4:]
def ldsadd(off, va, vd): return f"v_mov_b32 v{va}, {LF+off}\nv_mov_b32 v{vd}, 1\ns_mov_b64 exec, 1\nds_add_u32 v{va}, v{vd}\ns_mov_b64 exec, -1"
def tphase(role, js, wb, first, last, nxt, extra, rows=range(6), start3=0):
    for st in range(4):
        buf = st & 1
        A("s_waitcnt lgkmcnt(0)")
        if first and st == 1: A("s_barrier")
        ms = []
        for a in (rows if st == 3 else range(6)):
            for i, j in enumerate(js):
                w_, x_ = wb(buf)+4*i, XB(buf, a)
                ms.append(mf16(acc(a,j), w_, x_) if (role == 'G' or j < 2) else mf16(acc(a,j), x_, w_))
        fill = (treads(role, st+1, js, wb) if st < 3 else nxt) + extra.get(st, [])
        if last and st == 3: fill = [ldsadd(40, 32, 33)] + fill
        E(interleave(ms, fill, max(1, -(-len(fill)//(len(ms)-1)))))
def mainloop(role, pre):
    lp, ex = f"L_ML{role}", f"L_MX{role}"
    allm = lambda buf: [m + ('\ns_nop 7' if OPT['slow'] and n_ % OPT['slow'] == 0 else '') for n_, m in enumerate([m for a in range(6) for m in grp(role, buf, a)])]
    def coarse():
        if OPT["shi"]:
            sk = L("SL"); A(f"s_sub_u32 s87, s83, {OPT['slo']}\ns_cmp_lt_u32 s87, {OPT['shi']-OPT['slo']}\ns_cbranch_scc0 {sk}")
            for _ in range(OPT["sn"]): A("s_nop 15")
            A.label(sk)
    r0 = reads(role, 0); E(r0[:12]); A("s_waitcnt lgkmcnt(6)"); E(r0[12:])
    A.label(lp)
    coarse()
    A("s_waitcnt lgkmcnt(0)")
    sal = f"""s_add_u32 s78, s78, 1
s_cmp_eq_u32 s78, 3
s_cselect_b32 s86, {-2*SLOT & 0xffffffff}, s79
s_cselect_b32 s78, 0, s78
s_add_u32 s83, s83, 1
s_cmp_eq_u32 s83, 6""".split("\n") + [f"v_add_u32 v{r}, s86, v{r}" for r in (2, 4, 5, 3)]
    E(spread(allm(0), reads(role, 1) + sal, OPT["rgap"]+2, OPT["rgap"]+3))
    A(f"s_waitcnt lgkmcnt(0)\ns_barrier\ns_cbranch_scc1 {ex}")
    E(spread(allm(1), reads(role, 0), OPT["rgap"], 4))
    A(f"s_branch {lp}")
    A.label(ex)
    com = ["s_waitcnt vmcnt(0)", f"v_add_u32 v32, {SLOT}, v4", f"v_add_u32 v33, {SLOT}, v5", "v_and_b32 v34, 15, v0",
           f"s_mul_i32 s86, s13, {96*16}", f"s_add_u32 s86, s86, {RS}", "v_lshl_add_u32 v34, v34, 4, s86",
           "v_lshrrev_b32 v7, 4, v0", "s_mul_i32 s79, s14, 384", f"s_add_u32 s79, s79, {CF}", "v_lshl_add_u32 v35, v7, 4, s79",
           f"s_mul_i32 s86, s13, {96*4}", f"s_add_u32 s86, s86, {RR}", "v_lshl_add_u32 v7, v7, 4, s86"]
    E(interleave(allm(1), pre + com, 2))

def flagstore(kind):
    m = (1 << (8*OPT["nrep"])) - 1
    A(f"s_add_u32 s86, s15, {kind << 20}\ns_mov_b64 exec, {hex(m) if m < (1<<32) else -1}\nbuffer_store_dwordx4 v[36:39], v6, {WS}, s86 offen sc1\ns_mov_b64 exec, -1")
def gsig():
    if OPT["gate"]: A(ldsadd(32, 2, 3))
rsrd = lambda a: f"ds_read_b128 {v(CB+4*a,4)}, v34 offset:{256*a}"
C1 = -2.0*0.7978845608028654*1.4426950408889634
cst = []
for a in range(6):
    b = CB+4*a
    cst += [f"v_mul_f32 v{b+3}, {hx(C1)}, v{b+1}", f"v_mul_f32 v{b+1}, v{b+1}, v{b+1}",
            f"v_mul_f32 v{b+1}, {hx(0.044715)}, v{b+1}", f"v_mul_f32 v{b+1}, v{b+1}, v{b+3}"]
wb2 = lambda buf: 64 + 8*buf
mainloop('G', treads('G', 0, (0, 3), wb2))
def tregs(u, a):
    return (8 + 8*(a & 1), 24 + 4*(a & 1), [acc(2*a + j//2, u) + 2*(j & 1) for j in range(4)],
            [acc(2*a + j//2, u+3) + 2*(j & 1) for j in range(4)], [CB+4*(2*a + j//2) for j in range(4)])
def stA(u, a):
    T, P, gp, up, cb = tregs(u, a)
    return ([f"v_pk_fma_f32 {v(gp[j],2)}, {v(80+2*(j&1),2)}, {v(cb[j],2)}, {v(gp[j],2)} op_sel_hi:[1,0,1]" for j in range(4)]
          + [f"v_pk_mul_f32 {v(T+2*j,2)}, {v(gp[j],2)}, {v(gp[j],2)}" for j in range(4)]
          + [f"v_pk_fma_f32 {v(T+2*j,2)}, {v(T+2*j,2)}, {v(cb[j],2)}, {v(cb[j]+2,2)} op_sel:[0,1,1] op_sel_hi:[1,1,1]" for j in range(4)]
          + [f"v_pk_mul_f32 {v(T+2*j,2)}, {v(T+2*j,2)}, {v(gp[j],2)}" for j in range(4)])
for u in range(3):
    crd = [f"ds_read_b128 v[80:83], v35 offset:{64*u}", f"ds_read_b128 v[84:87], v35 offset:{64*(u+3)}"]
    ex_ = {1: [rsrd(a) for a in range(4)], 2: [rsrd(4), rsrd(5)] + crd, 3: cst} if u == 0 else {0: crd}
    tphase('G', (u, u+3), wb2, u == 0, u == 2, treads('G', 0, (u+1, u+4), wb2) if u < 2 else [], ex_)
    if u: A("s_waitcnt vmcnt(0)"); flagstore(u-1)
    else: A("s_nop 3")
    if u == 0: stamp((1, 3))
    if u == 2: stamp((3, 1))
    E(stA(u, 0))
    for a in range(3):
        T, P, gp, up, cb = tregs(u, a)
        E(interleave([f"v_exp_f32 v{T+j}, v{T+j}" for j in range(8)],
            [f"v_pk_fma_f32 {v(up[j],2)}, {v(84+2*(j&1),2)}, {v(cb[j],2)}, {v(up[j],2)} op_sel_hi:[1,0,1]" for j in range(4)]
          + [f"v_pk_mul_f32 {v(gp[j],2)}, {v(gp[j],2)}, {v(up[j],2)}" for j in range(4)], 1))
        for j in range(4): A(f"v_pk_fma_f32 {v(T+2*j,2)}, {v(T+2*j,2)}, {v(cb[j]+2,2)}, {v(cb[j]+2,2)} op_sel_hi:[1,0,0]")
        nxt = stA(u, a+1) if a < 2 else []
        E(interleave([f"v_rcp_f32 v{T+j}, v{T+j}" for j in range(8)], nxt[:12], 2))
        for j in range(4): A(f"v_pk_mul_f32 {v(T+2*j,2)}, {v(T+2*j,2)}, {v(gp[j],2)}")
        for j in (0, 2, 1, 3): A(f"v_cvt_pk_bf16_f32 v{P+j}, v{T+2*j}, v{T+2*j+1}")
        E(nxt[12:14])
        sk = L("GS")
        A(f"s_bitcmp1_b32 s11, {3*a+u}\nv_permlane16_swap_b32 v{P}, v{P+2}\nv_permlane16_swap_b32 v{P+1}, v{P+3}\ns_cbranch_scc0 {sk}")
        A(f"buffer_store_dwordx4 {v(P,4)}, v1, {H}, s{80+u} offen offset:{1024*a} sc1")
        A.label(sk)
        E(nxt[14:])
    if u == 0: stamp((2, 3))
stamp((4, 1), (4, 3))
A("L_PUB:")
gsig()
A("L_PUB2:\ns_waitcnt vmcnt(0)"); flagstore(2)
A("s_branch L_SPART")
if OPT["dead"]:
    A("L_DEAD:\ns_barrier\ns_add_u32 s83, s83, 1\ns_cmp_lt_u32 s83, 7\ns_cbranch_scc1 L_DEAD")
    A(ldsadd(40, 32, 33)); flagstore(0); flagstore(1)
    A("s_branch L_PUB")

A("L_QKV:")
RV, MV, ONE, G = 88, 8, 76, 8
cst = f"""s_mov_b32 s70, {hx(1.4426950408889634)}
s_mov_b32 s71, {hx(1.4426950408889634)}
s_mov_b32 s72, {hx(1e-6)}
s_mov_b32 s73, {hx(1e-6)}
s_mov_b32 s74, 0xffff0000
s_mov_b32 s75, 0xffff0000
s_sub_u32 s87, s7, 15
s_lshl_b32 s87, s87, 1
s_add_u32 s87, s87, s14
s_mul_i32 s77, s87, {24*3072}
s_add_u32 s77, s77, {WS_KV}
s_lshl_b32 s78, s6, 1
s_add_u32 s78, s78, s13
s_mul_i32 s78, s78, 3072
s_add_u32 s78, s78, s77""".split("\n")
wb4 = lambda buf: 64 + 16*buf
mainloop('Q', treads('Q', 0, (2, 3, 4, 5), wb4) + cst)
rvr = lambda a: f"ds_read_b128 {v(RV+4*a,4)}, v7 offset:{64*a}"
mvr = lambda a: f"ds_read_b128 {v(MV+4*a,4)}, v7 offset:{MR-RR+64*a}"
x3 = ["v_and_b32 v75, 15, v0", "v_lshl_add_u32 v75, v75, 2, s79"] + [f"ds_read_b32 v{72+j}, v75 offset:{128+64*j}" for j in range(4)] \
   + [f"v_mov_b32 v{ONE+j}, 0x3f803f80" for j in range(4)] + [rvr(5), rvr(4)]
q0 = treads('Q', 0, (0, 1), wb2)
x3 += q0[:4] + [mvr(5), mvr(4), "s_waitcnt lgkmcnt(4)"] + q0[4:]
assert len(x3) > 23
tphase('Q', (2, 3, 4, 5), wb4, True, False, x3, {}, rows=(5, 4, 3, 2, 1, 0))
A("s_waitcnt lgkmcnt(6)")
for a in (3, 2, 1, 0): A(rvr(a)); A(mvr(a))
stamp((1, 3))
def phi2(pairs, T, dst):
    for j in range(8): A(f"v_pk_mul_f32 {v(T[j],2)}, {v(pairs[j],2)}, s[70:71]")
    for j in range(16):
        r = pairs[j//2] + (j & 1); t_ = T[j//2] + (j & 1)
        A(f"v_exp_f32 v{t_}, v{t_} clamp\nv_max_f32 v{r}, s72, v{r}")
    for j in range(8): A(f"v_pk_add_f32 {v(T[j],2)}, {v(T[j],2)}, {v(pairs[j],2)}")
    for j in range(8): A(f"v_cvt_pk_bf16_f32 v{dst[j]}, v{T[j]}, v{T[j]+1}")
prs = lambda a, j0: [acc(2*a + (j % 4)//2, j0 + j//4) + 2*(j & 1) for j in range(8)]
KVa, KVb, Za, Zb = acc(5,2), acc(5,3), acc(5,4), acc(5,5)
for a in (2, 1, 0):
    if a == 1: A("s_bitcmp1_b32 s11, 0\ns_cbranch_scc0 L_KVS\ns_waitcnt lgkmcnt(0)")
    off = lambda j: 4*(2*a + (j % 4)//2) + 2*(j & 1)
    pv = prs(a, 4); pk = prs(a, 2)
    PV = acc(2*a, 4); PK = acc(2*a, 2)
    TL = [acc(2*a+1, 4) + 2*j for j in range(4)] + [80 + 2*j for j in range(4)]
    for j in range(8): A(f"v_pk_mul_f32 {v(pv[j],2)}, {v(pv[j],2)}, {v(RV+off(j),2)}")
    for j in range(8): A(f"v_pk_fma_f32 {v(pk[j],2)}, {v(pk[j],2)}, {v(RV+off(j),2)}, s[72:73]")
    for j in range(8): A(f"v_pk_fma_f32 {v(pv[j],2)}, {v(MV+off(j),2)}, v[74:75], {v(pv[j],2)} op_sel:[0,{j//4},0] op_sel_hi:[1,{j//4},1]")
    for j in range(8): A(f"v_pk_fma_f32 {v(pk[j],2)}, {v(MV+off(j),2)}, v[72:73], {v(pk[j],2)} op_sel:[0,{j//4},0] op_sel_hi:[1,{j//4},1]")
    for j in range(8): A(f"v_cvt_pk_bf16_f32 v{PV+j}, v{pv[j]}, v{pv[j]+1}")
    phi2(pk, TL, [PK+j for j in range(8)])
    c0 = 0 if a == 2 else None
    A(mf16(KVa, PK, PV, c0)); A(mf16(KVb, PK+4, PV+4, c0)); A(mf16(Za, ONE, PK, c0)); A(mf16(Zb, ONE, PK+4, c0))
    if a: A("s_nop 3")
A("L_KVS:\ns_waitcnt lgkmcnt(0)")
G = 96
for j in (3, 7, 11): A(f"v_mov_b32 v{G+j}, {TAG}")
A("s_nop 4")
for j in range(4): A(f"v_permlane16_swap_b32 v{KVa+j}, v{KVb+j}")
for j in range(8): A(f"v_mov_b32 v{G+4*(j//3)+j%3}, v{KVa+j}")
A(f"v_cndmask_b32 v{G+10}, v{Za}, v{Zb}, s[74:75]")
for g_ in range(3): A(f"buffer_store_dwordx4 {v(G+4*g_,4)}, v6, {WS}, s78 offen offset:{1024*g_} sc1")
stamp((2, 3))
CTr = lambda p: acc(p, 2)
rsetup = cap(lambda: (A(f"""s_lshr_b32 s79, s6, 1
s_lshl_b32 s86, s79, 8
s_add_u32 s86, s86, s77
v_lshrrev_b32 v7, 4, v0
v_mul_u32_u24 v7, 3072, v7
v_and_b32 v{acc(0,5)}, 15, v0
v_lshl_add_u32 v7, v{acc(0,5)}, 4, v7
v_add_u32 v7, s86, v7"""), [A(f"v_mov_b32 v{CTr(5)+j}, " + (TAG if j % 4 == 3 else "0")) for j in range(12)],
    A("s_and_b32 s78, s6, 9\ns_add_u32 s78, s78, 2")))
tphase('Q', (0, 1), wb2, False, True, [], {0: rsetup[:11], 1: rsetup[11:] + [rsrd(a) for a in (5, 4, 3, 2)],
       2: [rsrd(1), rsrd(0), "ds_read_b128 v[80:83], v35", "ds_read_b128 v[84:87], v35 offset:64"]}, rows=(5, 4, 3, 2, 1, 0))
A("s_nop 3")
stamp((3, 1))
def rloads():
    for p in range(6):
        A(f"s_mov_b32 s86, {12288*p}")
        if p == 5: A("s_mov_b32 exec_hi, 0")
        for g_ in range(3): A(f"buffer_load_dwordx4 {v(CTr(p)+4*g_,4)}, v7, {WS}, s86 offen offset:{1024*g_} sc1")
    A("s_mov_b32 exec_hi, -1")
def rissue(t):
    if OPT["rq"] == t:
        A("s_cmp_eq_u32 s78, s4\ns_cbranch_scc0 L_NORI"); rloads(); stamp((4, 3)); A("L_NORI:")
rissue(0)
for a in (2, 1, 0):
    if a == 1: A("s_bitcmp1_b32 s11, 0\ns_cbranch_scc0 L_PUB")
    D_ = 40 + 8*a
    pq_ = prs(a, 0); cbq = lambda j: v(CB+4*(2*a + (j % 4)//2), 2)
    for j in range(8): A(f"v_pk_fma_f32 {v(pq_[j],2)}, {v(80+4*(j//4)+2*(j&1),2)}, {cbq(j)}, {v(pq_[j],2)} op_sel_hi:[1,0,1]")
    for j in range(8): A(f"v_pk_fma_f32 {v(pq_[j],2)}, {v(pq_[j],2)}, {cbq(j)}, s[72:73] op_sel:[0,1,0] op_sel_hi:[1,1,1]")
    phi2(pq_, [8+2*j for j in range(8)], [D_+j for j in range(8)])
    for hd in range(2):
        A(f"v_permlane16_swap_b32 v{D_+4*hd}, v{D_+4*hd+2}\nv_permlane16_swap_b32 v{D_+4*hd+1}, v{D_+4*hd+3}")
    A(f"buffer_store_dwordx4 {v(D_,4)}, v1, {H}, 0 offen offset:{1024*a} sc1")
    A(f"buffer_store_dwordx4 {v(D_+4,4)}, v1, {H}, s81 offen offset:{1024*a} sc1")
    rissue(3-a)
stamp((4, 1))
A("s_cmp_eq_u32 s78, s4\ns_cbranch_scc0 L_PUB")
gsig()
f_addr(9)
A(f"s_mov_b32 s88, 0\ns_waitcnt vmcnt({2*(3-OPT['rq'])})\nL_KVC:")
tagcheck(8, 64, [CTr(n//3)+4*(n%3)+3 for n in range(18)])
A(f"""v_cmp_ne_u32 vcc, 0, v8
s_add_u32 s88, s88, 1
s_cmp_gt_u32 s88, {OPT['spin']}
s_cbranch_scc1 L_KVD
s_cbranch_vccz L_KVD""")
rloads()
A("s_waitcnt vmcnt(0)\ns_branch L_KVC\nL_KVD:")
note("s88", 3)
rr = lambda p, j: CTr(p) + 4*(j//3) + j % 3
RA, RB = 12, 64
for j in range(9): A(f"v_add_f32 v{RA+j}, v{rr(0,j)}, v{rr(1,j)}")
for p in range(2, 6):
    for j in range(9): A(f"v_add_f32 v{RA+j}, v{RA+j}, v{rr(p,j)}")
for sw in (16, 32):
    for j in range(9): A(f"v_mov_b32 v{RB+j}, v{RA+j}")
    for j in range(9): A(f"v_permlane{sw}_swap_b32 v{RA+j}, v{RB+j}")
    for j in range(9): A(f"v_add_f32 v{RA+j}, v{RA+j}, v{RB+j}")
A(f"""s_lshr_b32 s86, s79, 1
s_lshl_b32 s86, s86, 3
s_add_u32 s87, s86, 2
s_add_u32 s88, s86, 4
s_add_u32 s89, s86, 6
v_mov_b32_dpp v{RA+9}, v{RA+8} row_shl:1 row_mask:0xf bank_mask:0xf""")
for j in range(4): A(f"v_cvt_pk_bf16_f32 v{RB+j}, v{RA+2*j}, v{RA+1+2*j}")
A(f"""v_cvt_pk_bf16_f32 v{RA+9}, v{RA+8}, v{RA+9}
s_bitcmp1_b32 s79, 0
s_cselect_b64 s[80:81], -1, 0
s_xor_b64 s[80:81], s[80:81], s[74:75]""")
for j in range(4): A(f"v_readlane_b32 s{70+j}, v{RA+9}, s{86+j}")
for j in range(4): A(f"v_mov_b32 v{RB+4+j}, s{70+j}")
for j in range(4): A(f"v_cndmask_b32 v{RB+8+j}, v{RB+j}, v{RB+4+j}, s[80:81]")
A(f"""s_mov_b32 exec_hi, 0
buffer_store_dwordx4 {v(RB+8,4)}, v9, {WS}, 0 offen sc1
s_mov_b32 exec_hi, -1
s_waitcnt vmcnt(1)""")
stamp((5, 3))
flagstore(2)

A("L_SPART:")
if OPT["sprio"] != OPT["prio"]: A(f"s_setprio {OPT['sprio']}")
stamp((5, 1), (3, 3))
xres_addr(1, 8); xres_load()
w2addr(4, 8, False)
A(f"""s_lshl_b32 s86, s4, 3
s_add_u32 s86, s86, 86
s_lshl_b32 s86, s86, 16
s_lshl_b32 s87, s84, 11
s_add_u32 s86, s86, s87
v_lshl_add_u32 v2, v0, 4, s86
s_mul_i32 s88, s84, 43
s_lshr_b32 s88, s88, 7
s_mul_i32 s88, s88, 23
s_lshl_b32 s87, s4, 1
s_add_u32 s88, s88, s87
s_add_u32 s88, s88, 15
s_lshl_b32 s88, s88, 12
s_add_u32 s88, s88, {WS_FLAG}
v_and_b32 v3, 7, v0
v_lshl_add_u32 v3, v3, 10, s88
s_lshl_b32 s74, s4, 13
s_add_u32 s74, s74, {WS_F}
v_lshl_add_u32 v8, v0, 4, s74
s_lshl_b32 s86, s4, 2
s_add_u32 s86, s86, {LF}
v_mov_b32 v10, s86
s_mov_b32 s72, {hx(1e-6)}
s_movk_i32 s73, 4096
s_mov_b32 s89, 0""")
if OPT["warm"]:
    assert OPT["sd"] == 8
    A("s_mov_b32 s75, 1\ns_mov_b64 exec, 0\ns_branch L_PIPE\nL_WBACK:\ns_mov_b32 s75, 0\ns_mov_b64 exec, -1")
stamp((1, 4))
if OPT['sdelay']: A(f"s_sleep {OPT['sdelay']}")
if OPT["comb"]:
    A("v_add_u32 v3, 48, v10"); spin_lds(3, 9)
else: spin_flag(3, 9, 8, 2)
note("s88", 4)
stamp((6, 1), (2, 4))
SD = OPT["sd"]
rho8()
A("s_lshl_b32 s78, s12, 2\ns_lshr_b32 s79, s12, 4")
def pqload(k):
    return [f"s_xor_b32 s86, s78, {k*65536}",
            f"buffer_load_dwordx4 {v(16+8*k,4)}, v2, {H}, s86 offen sc1",
            f"buffer_load_dwordx4 {v(20+8*k,4)}, v2, {H}, s86 offen offset:1024 sc1"]
def floads():
    for k in range(8):
        if k % 2 == 0: A(f"s_xor_b32 s86, s79, {k*1024}")
        A(f"buffer_load_dwordx4 {v(80+4*k,4)}, v8, {WS}, s86 offen offset:{1024*(k%2)} sc1")
if OPT["ffirst"]: floads()
for k in range(SD):
    if OPT["sdep"]: A(f"s_waitcnt vmcnt({OPT['sdep']-2})")
    E(pqload(k))
if OPT["ffirst"]: A(f"s_waitcnt vmcnt({2*SD})\ns_branch L_FC")
if OPT["hints"]:
    A(f"s_lshl_b32 s86, s4, 14\ns_add_u32 s86, s86, {WS_FF}\nv_lshl_add_u32 v9, v0, 10, s86")
    spin_flag(9, 11, 16)
else: A(f"s_waitcnt vmcnt({OPT['fafter']})")
A("s_branch L_FL\nL_FQ:\ns_sleep 8\nL_FL:")
floads()
A("s_waitcnt vmcnt(0)\nL_FC:\ns_add_u32 s89, s89, 1")
E(vmax(112, [80+4*k for k in range(8)]))
A(f"""v_cmp_eq_u32 vcc, -1, v112
s_cmp_gt_u32 s89, {OPT['spin']}
s_cbranch_scc1 L_FPD
s_cbranch_vccnz L_FQ
L_FPD:""")
note("s89", 4); note("s89", 1)
stamp((6, 3), (3, 4))
woloc = lambda k: (1, k) if k < 6 else (2, k-2)
def Om(k): return [mfma(128+32*(k&1)+16*r, 80+4*k, 16+8*k+4*r, 0) for r in range(2)]
def Vv(k):
    o = []
    D = [128+32*(k&1)+16*r for r in range(2)]
    nd = [((d, d+8) if k % 2 == 0 else (d+8, d)) for d in D]
    for num, den in nd: o.append(f"v_add_f32 v{den}, s72, v{den}")
    for num, den in nd: o.append(f"v_rcp_f32 v{den}, v{den}")
    for r, (num, den) in enumerate(nd):
        if OPT["spk"]:
            for j in range(4): o.append(f"v_pk_mul_f32 {v(num+2*j,2)}, {v(num+2*j,2)}, {v(den,2)} op_sel_hi:[1,0]")
        else:
            for j in range(8): o.append(f"v_mul_f32 v{num+j}, v{num+j}, v{den}")
        for j in range(4): o.append(f"v_cvt_pk_bf16_f32 v{16+8*k+4*r+j}, v{num+2*j}, v{num+2*j+1}")
    return o
def Sm(k): return [mfmaH(192+32*r+16*c, 112+8*(k&1)+4*c, 16+8*k+4*r, 0 if k <= OPT['h16'] else None, k & 1) for r in range(2) for c in range(2)]
issued = [SD]
def need(k):
    o = [f"s_waitcnt vmcnt({2*(issued[0]-1-k)})"]
    more = []
    if issued[0] < 8: more = pqload(issued[0]); issued[0] += 1
    return o, more
A('L_PIPE:')
E(w2read(112, *woloc(0), 4, False))
for k in (0, 1):
    w_, m_ = need(k); E(w_ + Om(k) + m_)
E(Vv(0))
for k in range(8):
    A("s_waitcnt lgkmcnt(0)")
    fill = (w2read(112+8*((k+1)&1), *woloc(k+1), 4, False) + Vv(k+1)) if k+1 < 8 else []
    if k == 7:
        fill = cap(lambda: (wraddr(80, False), rdaddr(4, False, 1, 88), A(f"s_lshl_b32 s86, s4, 11\ns_add_u32 s86, s86, {GB}\nv_lshl_add_u32 v9, v0, 4, s86"),
            [A(f"v_lshlrev_b32 v{112+2*j}, 16, v{12+j}\nv_and_b32 v{113+2*j}, 0xffff0000, v{12+j}") for j in range(4)]))
    NF = 16 if OPT['spk'] else 20
    if k == 7: NF = 28
    E(interleave(Sm(k), fill[:NF], NF//4))
    if k+2 < 8:
        w_, m_ = need(k+2); E(w_); E(interleave(Om(k+2), fill[NF:] + m_, 6))
    else: E(fill[NF:])
    if k == 3: stamp((4, 4))
if OPT["warm"] == 1: A("s_cmp_eq_u32 s75, 1\ns_cbranch_scc1 L_WBACK")
stamp((7, 1), (5, 4))
final(False)
stamp((6, 4))
if OPT["fin"] == 0: A("s_barrier\nds_read_b128 v[88:91], v9\nds_read_b128 v[92:95], v9 offset:1024\ns_branch L_FIN2")
else: A("s_barrier\ns_branch L_FIN2")

A("L_FINAL:")
stamp((6, 4))
A("s_barrier")
if OPT["fin"] == 1: A("ds_read_b128 v[88:91], v109\nds_read_b128 v[92:95], v109 offset:1024")
A("L_FIN2:")
stamp((7, 3), (7, 4))
rd4(48, 4)
A("s_waitcnt lgkmcnt(0)")
sum4(48)
if OPT["fin"] == 1:
    for j in range(4): A(f"v_pk_mul_f32 {v(56+2*j,2)}, {v(48+2*j,2)}, s[70:71]")
    E(interleave([f"v_exp_f32 v{56+j}, v{56+j}" for j in range(8)], [f"v_pk_mul_f32 {v(88+2*j,2)}, {v(88+2*j,2)}, {v(48+2*j,2)}" for j in range(4)], 1))
    for j in range(4): A(f"v_pk_add_f32 {v(56+2*j,2)}, {v(56+2*j,2)}, 1.0 op_sel_hi:[1,0]")
    for j in range(8): A(f"v_rcp_f32 v{48+j}, v{56+j}")
for j in range(4): A(f"v_pk_fma_f32 {v(48+2*j,2)}, {v(48+2*j,2)}, {v(88+2*j,2)}, {v(112+2*j,2)}")
for j in range(4): A(f"v_cvt_pk_bf16_f32 v{24+j}, v{48+2*j}, v{49+2*j}")
if OPT["warm"] == 2: A("s_cbranch_execz L_WBACK")
A(f"""buffer_store_dwordx4 v[24:27], v1, {OUT}, 0 offen {['', 'sc1', 'nt', 'sc0 sc1'][OPT['osc']]}
s_add_u32 s86, s2, s3
s_cmp_eq_u32 s86, 0
s_cbranch_scc0 L_NOBUMP
v_mov_b32 v2, 0
v_mov_b32 v3, {TAG}
buffer_store_dword v3, v2, {WS}, 0 offen sc1
L_NOBUMP:""")
if OPT["stamps"]:
    A("s_waitcnt vmcnt(0)")
    stamp((8, 0))
    A(f"""s_memrealtime s[68:69]
s_waitcnt lgkmcnt(0)
s_mov_b32 s101, s68""")
    if OPT["diag"]:
        A(f"""s_cmp_lg_u32 s2, 64
s_cbranch_scc1 L_END
s_cmp_lg_u32 s3, {OPT['dwave']}
s_cbranch_scc1 L_END
s_sub_u32 s86, s{92+OPT['diag']}, s34
s_lshl_b32 s86, s86, 2
s_min_u32 s86, s86, 20000
L_DSPIN:
s_memrealtime s[68:69]
s_waitcnt lgkmcnt(0)
s_sub_u32 s87, s68, s101
s_cmp_lt_u32 s87, s86
s_cbranch_scc1 L_DSPIN
s_endpgm""")
    A(f"""s_lshl_b32 s86, s2, 3
s_add_u32 s86, s86, s3
s_lshl_b32 s86, s86, 6
s_add_u32 s86, s86, {WS_DBG}
v_mov_b32 v2, s86""")
    for i in range(10): A(f"v_mov_b32 v3, s{92+i}\nbuffer_store_dword v3, v2, {WS}, 0 offen offset:{4*i}")
    A(f"v_mov_b32 v3, s34\nbuffer_store_dword v3, v2, {WS}, 0 offen offset:40")
    A(f"v_mov_b32 v3, s35\nbuffer_store_dword v3, v2, {WS}, 0 offen offset:44")
A("L_END:\ns_endpgm")

lines, errs = pad(A.lines)
for e in errs: print("HAZARD:", e, file=sys.stderr)
hdr = open("cdna_kernels/%s.s.ref" % NAME).read().split("; Override launch")[0]
out = hdr + f"""; Fused single-launch kernel (generated by my own generator script gen/gen.py).
; @launch grid=(256,1,1) block=(512,1,1) lds={LDS}
.amdgcn_target "amdgcn-amd-amdhsa--gfx950"
.text
.globl {NAME}_kernel
.p2align 8
.type {NAME}_kernel,@function
{NAME}_kernel:
""" + render(lines) + f""".section .rodata,"a"
.p2align 6
.amdhsa_kernel {NAME}_kernel
  .amdhsa_next_free_vgpr 256
  .amdhsa_next_free_sgpr 102
  .amdhsa_accum_offset 256
  .amdhsa_group_segment_fixed_size 0
  .amdhsa_kernarg_size 80
  .amdhsa_user_sgpr_count 2
  .amdhsa_user_sgpr_kernarg_segment_ptr 1
  .amdhsa_system_sgpr_workgroup_id_x 1
.end_amdhsa_kernel
"""
open(sys.argv[1], "w").write(out)
```

```python
import sys, struct
from asmlib import *
NAME = "recurrent_scan__linear_attn_block__glu_gated_geglu__prompt"
OPT = dict(stamps=0, rot=2, prio=1, pfcode=1, spin=1<<17, thr=4, unthr=41, n7=1, ca=14, cb=22, h=5, mix=0, sub=0,
           psleep=2, ydep=5, sdep=0, w2late=0, p2map=1, stage=1, sprio=1, ydelay=-1, sdelay=0, fdelay=0, rdelay=0, xlate=0, now2=0, sd=3, apoll=0, fgate=1, rt=1, zf=1, nr=0, r0=3, lred=0, prew=0, hints=0, comb=1, fafter=0, h16=0, gate=4, ffirst=1, warm=0, nodma=0, redearly=1, xz=1, gmix=0, qmix=0, qnop=0, bpos=0, rgap=3, spk=0, diag=0, dwave=4, nrep=2, nl=4, p1=1, p2=7, osc=0, gpos=1, c2=9, yprio=2, ydrop=22, ypost=0, mord=0, adapt=1, ypk=0, nb=3, pf2=-1, drot=0, xfirst=1, nostat=0, w1pf=-9, slow=0, dead=1, qg=0, rq=1, tfrom=6, nc=0, thr2=4, nraw=6, krot=0, slo=0, shi=0, sn=4, nearly=0, e0=3, e1=6, fin=0)
for a in sys.argv[2:]:
    k, v_ = a.split("="); assert k in OPT, k; OPT[k] = int(v_, 0)
def f2u(x): return struct.unpack("<I", struct.pack("<f", x))[0]
def hx(x): return "0x%08x" % f2u(x)

SLOT = 49152; XW = 24576; UPOFF = 12288; MISC = 3*SLOT; LDS = 163840
RS = MISC; RR = MISC+3072; CF = MISC+3840; MR = MISC+4608; LF = MISC+5376; GB = MISC+5632
Q = 12288
WS_RS = 0x10000; WS_CS = 0x20000; WS_FLAG = 0x300000; WS_FF = 0x60000; WS_DBG = 0x80000; WS_F = 0xC0000; WS_KV = 0x100000; WS_H = 0x800000
X="s[36:39]"; W="s[40:43]"; WS="s[44:47]"; H="s[48:51]"; WD="s[56:59]"; WO="s[60:63]"; OUT="s[64:67]"
TAG="s10"
def v(b, n=1): return f"v{b}" if n == 1 else f"v[{b}:{b+n-1}]"
def mfma(d, a, b, c=None):
    return f"v_mfma_f32_32x32x16_bf16 {v(d,16)}, {v(a,4)}, {v(b,4)}, " + ("0" if c == 0 else v(d,16))
def mfmaH(d, a, b, c, alt):
    if not OPT["h16"]: return mfma(d, a, b, c)
    return mf16(d+8*alt, a, b, c) + "\n" + mf16(d+8*alt+4, a ^ 4, b, c)
def mf16(d, a, b, c=None):
    return f"v_mfma_f32_16x16x32_bf16 {v(d,4)}, {v(a,4)}, {v(b,4)}, " + ("0" if c == 0 else v(d,4))
def bc(r): return v(r & ~1, 2), r & 1
_lab = [0]
def L(p="L"):
    _lab[0] += 1; return f"{p}_{_lab[0]}"
A = Asm()
def E(lst):
    for t in lst: A(t)
def cap(fn):
    n = len(A.lines); fn(); o = [t for _, t in A.lines[n:]]; del A.lines[n:]; return o
def stamp(*pairs):
    for i, st in pairs:
        if OPT["stamps"] == st or (OPT["stamps"] and st == 0):
            A(f"{'s_memrealtime' if (OPT['rt'] and i != 8) else 's_memtime'} s[68:69]\ns_waitcnt lgkmcnt(0)\ns_mov_b32 s{92+i}, s68")
def note(reg, st):
    if OPT["stamps"] == st: A(f"s_mov_b32 s35, {reg}")
def srd(name, lo, size, add=0):
    b = int(name[2:4])
    if add: A(f"s_add_u32 s{b}, s{lo}, {add}\ns_addc_u32 s{b+1}, s{lo+1}, 0")
    else: A(f"s_mov_b32 s{b}, s{lo}\ns_mov_b32 s{b+1}, s{lo+1}")
    A(f"s_mov_b32 s{b+2}, {size}\ns_mov_b32 s{b+3}, 0x20000")
def spin_flag(vaddr, vt, nl, kind=None, first=0):
    l1, l2 = L("POLL"), L("POLLD")
    A(f"""s_mov_b32 s88, {first}
s_mov_b64 exec, {hex((1<<nl)-1)}
{l1}:
s_and_b32 s87, s88, {OPT['nrep']-1}
s_lshl_b32 s87, s87, 7""")
    if kind: A(f"s_add_u32 s87, s87, {kind << 20}")
    A(f"""buffer_load_dword {v(vt)}, {v(vaddr)}, {WS}, s87 offen sc1
s_add_u32 s88, s88, 1
s_waitcnt vmcnt(0)
v_cmp_ne_u32 vcc, {TAG}, {v(vt)}
s_cmp_gt_u32 s88, {OPT['spin']}
s_cbranch_scc1 {l2}
s_cbranch_vccz {l2}
s_sleep {OPT['psleep']}
s_branch {l1}
{l2}:
s_mov_b64 exec, -1""")
def spin_lds(vaddr, vt, need=1):
    l1, l2 = L("LP"), L("LPD")
    A(f"""s_mov_b32 s86, 0
{l1}:
ds_read_b32 {v(vt)}, {v(vaddr)}
s_add_u32 s86, s86, 1
s_waitcnt lgkmcnt(0)
v_cmp_gt_u32 vcc, {need}, {v(vt)}
s_cmp_gt_u32 s86, {OPT['spin']*8}
s_cbranch_scc1 {l2}
s_cbranch_vccz {l2}
s_sleep 1
s_branch {l1}
{l2}:""")
def vmax(dst, regs_):
    o = []; r = list(regs_)
    if len(r) == 2: return [f"v_max_u32 v{dst}, v{r[0]}, v{r[1]}"]
    o.append(f"v_max3_u32 v{dst}, v{r[0]}, v{r[1]}, v{r[2]}"); r = r[3:]
    while r:
        if len(r) >= 2: o.append(f"v_max3_u32 v{dst}, v{dst}, v{r[0]}, v{r[1]}"); r = r[2:]
        else: o.append(f"v_max_u32 v{dst}, v{dst}, v{r[0]}"); r = r[1:]
    return o
def tagcheck(dst, tmp, regs_):
    for n, r in enumerate(regs_): A(f"v_xor_b32 v{dst if n == 0 else tmp+n}, {TAG}, v{r}")
    n = 1
    while n < len(regs_):
        if n+1 < len(regs_): A(f"v_or3_b32 v{dst}, v{dst}, v{tmp+n}, v{tmp+n+1}"); n += 2
        else: A(f"v_or_b32 v{dst}, v{dst}, v{tmp+n}"); n += 1

A(f"""s_cmp_ge_u32 s2, 256
s_cbranch_scc1 L_END
s_load_dwordx16 s[16:31], s[0:1], 0
s_load_dwordx2 s[32:33], s[0:1], 72""")
if OPT["stamps"]: A("s_memrealtime s[34:35]\ns_memtime s[68:69]")
A(f"""v_lshrrev_b32 v1, 6, v0
v_and_b32 v0, 63, v0
v_readfirstlane_b32 s3, v1
s_and_b32 s5, s2, 7
s_lshr_b32 s86, s2, 3""")
if OPT["p2map"] == 0:
    A("s_lshl_b32 s84, s5, 2\ns_lshr_b32 s87, s86, 3\ns_add_u32 s84, s84, s87\ns_and_b32 s85, s86, 7")
else:
    A("""s_lshr_b32 s84, s5, 1
s_lshl_b32 s84, s84, 3
s_lshr_b32 s87, s86, 2
s_add_u32 s84, s84, s87
s_and_b32 s85, s5, 1
s_lshl_b32 s85, s85, 2
s_and_b32 s87, s86, 3
s_add_u32 s85, s85, s87""")
A(f"""s_lshl_b32 s5, s5, 5
s_add_u32 s5, s5, s86
s_and_b32 s4, s3, 3
s_mov_b32 s12, 0
s_cmp_lt_u32 s5, 138
s_cbranch_scc0 L_BOT
s_mul_i32 s7, s5, 171
s_lshr_b32 s7, s7, 10
s_mul_i32 s86, s7, 6
s_sub_u32 s6, s5, s86
s_branch L_IDS
L_BOT:
s_cmp_ge_u32 s5, 253
s_cselect_b32 s12, 1, 0
s_cselect_b32 s86, 5, 0
s_sub_u32 s86, s5, s86
s_sub_u32 s86, s86, 138
s_mul_i32 s87, s86, 205
s_lshr_b32 s87, s87, 10
s_sub_u32 s7, 22, s87
s_mul_i32 s87, s87, 5
s_sub_u32 s6, s86, s87
s_add_u32 s6, s6, 6
L_IDS:
s_mov_b32 s90, s7""")
if OPT["mix"]:
    A("""s_mul_i32 s86, s7, 43
s_lshr_b32 s86, s86, 7
s_sub_u32 s87, s7, s86
s_lshl_b32 s88, s86, 1
s_sub_u32 s88, s87, s88
s_add_u32 s86, s86, 15
s_cmp_eq_u32 s7, 22
s_cselect_b32 s7, s86, s87
s_cmp_eq_u32 s88, 2
s_cselect_b32 s7, s86, s7""")
A(f"""s_mul_i32 s8, s6, 192
s_min_u32 s8, s8, 1856
s_mul_i32 s9, s7, 96
s_min_u32 s9, s9, 1280
s_cmp_lt_u32 s3, 4
s_cbranch_scc1 L_LOADER""")
def kwait():
    A("s_waitcnt lgkmcnt(0)\ns_load_dword s10, s[32:33], 0")
    if OPT["stamps"]: A("s_mov_b32 s92, s68")
    srd(X, 16, 2097152)
if OPT["prio"]: A(f"s_setprio {OPT['prio']}")
if OPT["pfcode"]:
    A(f"""s_getpc_b64 s[88:89]
L_PC:
s_sub_u32 s88, s88, L_PC-{NAME}_kernel
s_subb_u32 s89, s89, 0
s_lshr_b32 s86, s2, 3
s_lshl_b32 s86, s86, 3
s_lshl_b32 s87, s4, 1
s_add_u32 s86, s86, s87
v_and_b32 v3, 1, v0
v_add_u32 v3, s86, v3
v_lshlrev_b32 v3, 7, v3
v_min_u32 v3, L_END-{NAME}_kernel, v3
global_load_dword v47, v3, s[88:89]""")
A(f"""s_lshl_b32 s86, s5, 3
s_lshl_b32 s87, s4, 1
s_add_u32 s86, s86, s87
v_lshrrev_b32 v7, 5, v0
v_add_u32 v7, s86, v7
v_and_b32 v2, 31, v0
v_lshlrev_b32 v2, 4, v2
v_lshl_add_u32 v2, v7, 10, v2""")
kwait()
if not OPT["nostat"]: A(f"""buffer_load_dwordx4 v[8:11], v2, {X}, 0 offen
buffer_load_dwordx4 v[12:15], v2, {X}, 0 offen offset:512""")
stamp((1, 2))
A("s_branch L_COMPUTE\nL_LOADER:")

def w2addr(base, T, nat):
    a_, b_, c_, d_ = T, T+1, T+2, T+3
    A(f"""v_and_b32 v{a_}, 3, v0
v_bfe_u32 v{b_}, v0, 2, 2
v_bfe_u32 v{c_}, v0, 4, 1
v_lshrrev_b32 v{d_}, 5, v0
v_lshl_add_u32 v{d_}, v{d_}, {3 if nat else 2}, v{b_}
v_lshlrev_b32 v{d_}, 7, v{d_}
v_lshrrev_b32 v{b_}, 1, v{b_}
v_lshl_add_u32 v{c_}, v{b_}, 2, v{c_}
v_and_b32 v{b_}, 1, v{a_}
v_lshl_add_u32 v{c_}, v{b_}, 1, v{c_}
v_lshl_add_u32 v{d_}, v{c_}, 4, v{d_}
v_lshrrev_b32 v{a_}, 1, v{a_}
v_lshl_add_u32 v{d_}, v{a_}, 3, v{d_}
v_add_u32 v{base}, s76, v{d_}
v_xor_b32 v{d_}, 64, v{d_}
v_add_u32 v{base+1}, s76, v{d_}
v_add_u32 v{base+2}, {2*SLOT}, v{base}
v_add_u32 v{base+3}, {2*SLOT}, v{base+1}""")
def w2read(dst, slot, blk, ab, nat=True):
    o = []
    for c in range(2):
        for sec in range(2):
            ar = ab + c + (2 if slot == 2 else 0)
            off = (SLOT if slot == 1 else 0) + blk*2048 + sec*(512 if nat else 1024)
            o.append(f"ds_read_b64_tr_b16 {v(dst+4*c+2*sec,2)}, v{ar} offset:{off}")
    return o
def xres_addr(half, T):
    A(f"""s_lshl_b32 s86, s4, 4
s_lshl_b32 s87, s84, 6
s_add_u32 s86, s86, s87
s_add_u32 s86, s86, {8*half}
s_lshl_b32 s86, s86, 10
s_lshl_b32 s87, s85, 7
s_add_u32 s86, s86, s87
v_lshrrev_b32 v{T}, 3, v0
v_lshlrev_b32 v{T}, 10, v{T}
v_and_b32 v{T+1}, 7, v0
v_lshl_add_u32 v{T}, v{T+1}, 4, v{T}
v_add_u32 v1, s86, v{T}""")
def xres_load(late=0):
    if OPT["xlate"] == late: A(f"buffer_load_dwordx4 v[12:15], v1, {X}, 0 offen")
def p2setup():
    srd(WS, 32, 0x800000); srd(H, 32, 118*65536, WS_H); srd(WD, 28, 1376*1024); srd(WO, 20, 512*1024); srd(OUT, 30, 2097152)
    A(f"""v_lshrrev_b32 v24, 3, v0
v_lshlrev_b32 v24, 10, v24
v_and_b32 v25, 7, v0
v_bfe_u32 v26, v0, 4, 1
v_lshlrev_b32 v26, 2, v26
v_xor_b32 v25, v25, v26
v_lshl_add_u32 v24, v25, 4, v24
s_lshl_b32 s86, s85, 7
v_add_u32 v4, s86, v24
s_mul_i32 s87, s4, {3*16384}
v_add_u32 v2, s87, v4
s_add_u32 s87, s4, 84
s_lshl_b32 s87, s87, 14
v_add_u32 v3, s87, v4
s_lshl_b32 s87, s4, 17
v_add_u32 v4, s87, v4
s_mul_i32 s76, s4, {Q}
s_lshl_b32 s87, s84, 11
s_mul_i32 s86, s4, {3*65536}
s_add_u32 s86, s86, s87
v_lshl_add_u32 v6, v0, 4, s86
v_bfe_u32 v24, v0, 1, 3
v_lshlrev_b32 v24, 3, v24
s_lshr_b32 s86, s4, 1
s_lshl_b32 s86, s86, 2
s_and_b32 s90, s4, 1
s_add_u32 s86, s86, s90
v_add_u32 v24, s86, v24
v_min_u32 v24, 57, v24
v_cmp_eq_u32 vcc, 56, v24
v_cndmask_b32 v24, v24, 57, vcc
v_and_b32 v25, 1, v0
v_lshl_add_u32 v24, v25, 1, v24
s_lshl_b32 s86, s4, 3
s_add_u32 s86, s86, 44
v_add_u32 v25, s86, v0
v_cmp_lt_u32 vcc, 15, v0
v_cndmask_b32 v24, v24, v25, vcc
s_mul_i32 s86, s84, 43
s_lshr_b32 s86, s86, 7
s_mul_i32 s86, s86, {23*4096}
s_add_u32 s86, s86, {WS_FLAG}
v_lshl_add_u32 v5, v24, 10, s86
s_add_u32 s86, s4, 84
s_lshl_b32 s86, s86, 16
s_add_u32 s86, s86, s87
s_cmp_lt_u32 s4, 2
s_cselect_b32 s86, s86, 0x80000000
v_lshl_add_u32 v7, v0, 4, s86""")
    w2addr(8, 24, True); xres_addr(0, 24); rho8()
    A(f"s_waitcnt lgkmcnt(0)\ns_add_u32 {TAG}, {TAG}, 0x9E3779B9")
def wfrag_addr(dst, swc, T, lab):
    A(f"""v_and_b32 v{T}, 3, v0
v_bfe_u32 v{T+1}, v0, 2, 2
v_bfe_u32 v{T+2}, v0, 4, 1
s_cmp_ge_u32 s7, 15
s_cbranch_scc1 {lab}Q
v_lshrrev_b32 v{T+3}, 4, v0
v_lshl_add_u32 v{T+3}, v{T+3}, 3, v{T+1}
v_mul_u32_u24 v{T+3}, 192, v{T+3}
v_lshl_add_u32 v{T}, v{T}, 3, v{T+3}
v_add_u32 v{T}, {XW}, v{T}
s_mul_i32 s87, {swc}, 3
v_xor_b32 v{T+3}, s87, v{T+2}
v_lshl_add_u32 v{dst}, v{T+3}, 5, v{T}
s_add_u32 s87, s87, 1
v_xor_b32 v{T+3}, s87, v{T+2}
v_lshl_add_u32 v{dst+1}, v{T+3}, 5, v{T}
s_branch {lab}D
{lab}Q:
v_lshrrev_b32 v{T+3}, 5, v0
v_mul_u32_u24 v{T+3}, 3072, v{T+3}
v_lshl_add_u32 v{T+3}, v{T+1}, 7, v{T+3}
v_mul_u32_u24 v{T+4}, {UPOFF+32}, v{T+2}
v_lshrrev_b32 v{T+1}, 1, v{T+1}
v_xor_b32 v{T+1}, {swc}, v{T+1}
v_lshl_add_u32 v{T+4}, v{T+1}, 6, v{T+4}
v_lshl_add_u32 v{T}, v{T}, 3, v{T+3}
v_add_u32 v{T}, {XW}, v{T}
v_add_u32 v{dst}, v{T}, v{T+4}
v_xor_b32 v{dst+1}, 32, v{dst}
{lab}D:""")
def woff(role, s_, j, sec):
    if role == 'G':
        jj = j % 3
        return jj & 1, s_*6144 + sec*768 + (j//3)*UPOFF + (64 if jj == 2 else 0)
    return j & 1, s_*6144 + (j//2)*1024 + sec*512
def ksoff(kd): return 12*(kd % 7) + kd//7
S2R = [('o',6+k,2,4+k) for k in range(2)] + [('d',12+k,2,k) for k in range(4)]
S0R = [('d',16+k,0,k) for k in range(6)]
items = [('d',k,2,k) for k in range(6)] + [('d',6+k,2,k) for k in range(6)] + S2R + [('o',k,1,k) for k in range(6)] + S0R
N7 = OPT["n7"]
def rho8():
    if OPT["krot"]: A("s_add_u32 s12, s84, s85\ns_and_b32 s12, s12, 3\ns_lshl_b32 s12, s12, 15")
    else: A("s_mov_b32 s12, 0")
def ktable():
    if OPT["krot"]:
        A("""s_lshl1_add_u32 s86, s85, s84
s_mul_i32 s87, s86, 37
s_lshr_b32 s87, s87, 8
s_mul_i32 s87, s87, 7
s_sub_u32 s86, s86, s87""")
    else: A("s_mov_b32 s86, 0")
    A(f"s_mul_i32 s77, s86, {12*16384}")
    for i in range(1, 7):
        A(f"s_add_u32 s{77+i}, s{76+i}, {12*16384}\ns_cmp_eq_u32 s{77+i}, {84*16384}\ns_cselect_b32 s{77+i}, 0, s{77+i}")
def w2ops(kind, k, dst, thr=None):
    nm = kind + str(k)
    if kind == 'o': va, S_, so = 4, WO, f"s_xor_b32 s86, s12, {k*16384}"
    elif k < 21: va, S_, so = 2, WD, f"s_add_u32 s86, s{77 + k % 7}, {(k//7)*16384}"
    else: va, S_, so = 3, WD, "s_mov_b32 s86, 0"
    if isinstance(dst, tuple):
        pre = f"s_add_u32 m0, s76, {dst[0]*SLOT + dst[1]*2048}\n{so}\ns_add_u32 s87, s86, 7168"
        i1 = f"buffer_load_dwordx4 v{va}, {S_}, s86 offen lds"; i2 = f"buffer_load_dwordx4 v{va}, {S_}, s87 offen offset:1024 lds"
    else:
        pre = f"{so}\ns_add_u32 s87, s86, 8192"
        i1 = f"buffer_load_dwordx4 {v(dst,4)}, v{va}, {S_}, s86 offen"; i2 = f"buffer_load_dwordx4 {v(dst+4,4)}, v{va}, {S_}, s87 offen"
    tw = f"s_waitcnt vmcnt({thr})\n" if thr is not None else ""
    return [pre, f"VM {nm}a|{tw}{i1}", f"VM {nm}|{tw}{i2}"]
NE = OPT["nearly"]
def rawblocks():
    steps = list(range(OPT["e0"], OPT["e1"])); n = len(steps)
    for i, st in enumerate(steps):
        its = range(NE*i//n, NE*(i+1)//n)
        if not len(its): continue
        sk = L("RW")
        A(f"s_cmp_eq_u32 s83, {st}\ns_cbranch_scc0 {sk}")
        for k in its:
            for t in w2ops('o', k, 192+8*k): A(t.split("|")[-1])
        A.label(sk)
def w2item(n):
    for t in w2ops(items[n][0], items[n][1], items[n][2:]): A(t.split("|")[-1])

A(f"""s_cmp_ge_u32 s3, 2
s_cbranch_scc1 L_SIDE
s_add_u32 s79, s6, s90""")
R_ = OPT["drot"] or OPT["rot"]
A(f"s_and_b32 s79, s79, {R_-1}\ns_lshl_b32 s79, s79, { {1:0, 2:2, 4:1, 8:0}[R_] }")
A(f"""v_lshrrev_b32 v24, 3, v0
v_and_b32 v25, 7, v0
v_lshrrev_b32 v26, 4, v0
v_xor_b32 v27, v25, v26
s_mul_i32 s86, s4, 96
s_add_u32 s86, s86, s8
s_lshl_b32 s86, s86, 10
v_lshl_add_u32 v16, v24, 10, s86
v_lshl_add_u32 v16, v27, 4, v16
v_xor_b32 v17, 64, v16
v_add_u32 v18, {2*7168}, v16
v_add_u32 v19, {3*7168}, v17
v_add_u32 v17, 7168, v17
s_mul_i32 s74, s4, 12288
""")
XG = ["s70", "s71", "s72"]; WL = ["s52", "s53", "s54", "s55"]; WG = ["s73", "s77", "s14", "s15"]
sh = {2: 1, 4: 2, 8: 0, 1: 0}[R_]
if OPT["sub"]:
    A(f"""s_lshr_b32 s86, s90, {sh}
s_mul_i32 s87, s86, 43
s_lshr_b32 s87, s87, 7
s_mul_i32 s87, s87, 3
s_sub_u32 s86, s86, s87
""")
else:
    A("s_mov_b32 s86, 0")
A("""s_lshl_b32 s70, s86, 12
s_add_u32 s71, s70, 4096
s_cmp_eq_u32 s71, 12288
s_cselect_b32 s71, 0, s71
s_add_u32 s72, s70, s71
s_sub_u32 s72, 12288, s72""")
XN = ["s11", "s13", "s91"]
A(f"s_lshl_b32 s86, s4, 4\ns_add_u32 s86, s86, s6\ns_cmp_eq_u32 s86, 10\ns_cselect_b32 s88, {8192 if OPT['xz'] else 0}, 0\ns_cmp_eq_u32 s12, 1\ns_cselect_b32 s88, {65536 if OPT['xz'] else 0}, s88")
for g in range(3): A(f"s_cmp_lt_u32 {XG[g]}, s88\ns_cselect_b32 {XN[g]}, 0, 2097152")
A("s_lshl_b32 s80, s79, 7\ns_mov_b32 s88, s74")
kwait()
stamp((1, 2))
def issue_head():
    A(f"""s_lshl_b32 s80, s79, 7
s_mul_i32 s81, s79, s82
s_lshl_b32 s81, s81, 2
s_add_u32 s88, s78, s74
s_add_u32 s89, s78, s75""")
ORDER = ["x0", "w0", "x1", "w1", "x2", "w2", "w3"]
def issue_part(lo, hi, order=None):
    n = 0
    for it in (order or ORDER[lo:hi]):
        g = int(it[1])
        if it[0] == 'x':
            A(f"s_add_u32 m0, s88, {XG[g]}\ns_lshl3_add_u32 s86, {XG[g]}, s80\ns_mov_b32 s38, {XN[g]}")
            for q in range(4): A(f"buffer_load_dwordx4 v{16+q}, {X}, s86 offen offset:{1024*q} lds")
            n += 4
        else:
            A(f"s_add_u32 m0, s89, {WL[g]}\ns_add_u32 s87, s81, {WG[g]}")
            for j in range(3): A(f"buffer_load_dwordx4 v{20+j}, {W}, s87 offen offset:{1024*j} lds")
            n += 3
    return n
def issue_tail():
    A(f"""s_add_u32 s79, s79, 1
s_and_b32 s79, s79, 7
s_add_u32 s78, s78, {SLOT}
s_cmp_eq_u32 s78, {3*SLOT}
s_cselect_b32 s78, 0, s78""")
HH = OPT["h"]
issue_part(0, 0, ["x0", "x1", "x2"][:3 if OPT["xfirst"] == 1 else 1])
A(f"""s_mul_i32 s75, s4, {UPOFF}
s_add_u32 s75, s75, {XW}
s_mov_b32 s43, 0x20000
s_mov_b32 s78, 0
s_cmp_ge_u32 s7, 15
s_cbranch_scc1 L_LQKV
s_mov_b32 s42, {512*2752}
s_mov_b32 s82, {16*2752}
s_movk_i32 s86, 0x1556
s_movk_i32 s87, 2752
s_lshl_b32 s88, s9, 1
s_cmp_eq_u32 s7, 14
s_cselect_b32 s89, {8 if OPT['zf'] else 0}, 0
s_cmp_eq_u32 s12, 1
s_cselect_b32 s89, {12 if OPT['zf'] else 0}, s89
v_mov_b32 v28, 0x80000000""")
for i in range(3):
    A(f"""v_add_u32 v24, {64*i}, v0
v_mul_u32_u24 v25, s86, v24
v_lshrrev_b32 v25, 16, v25
v_mul_u32_u24 v26, 12, v25
v_sub_u32 v24, v24, v26
v_lshrrev_b32 v26, 2, v25
v_and_b32 v26, 2, v26
v_xor_b32 v24, v24, v26
v_cmp_gt_u32 vcc, s89, v24
v_mul_u32_u24 v25, s87, v25
v_lshl_add_u32 v24, v24, 4, v25
v_add_u32 v24, s88, v24
v_subrev_u32 v24, {1024*i}, v24
v_cndmask_b32 v{20+i}, v24, v28, vcc""")
A(f"""s_branch L_LGO
L_LQKV:
s_mov_b32 s42, {512*3072}
s_mov_b32 s82, {16*3072}
s_sub_u32 s87, s7, 15
s_lshl_b32 s87, s87, 7
s_mul_i32 s88, s4, {8*3072}
s_add_u32 s87, s87, s88
v_mul_u32_u24 v24, 3072, v24
v_and_b32 v26, 1, v26
v_lshlrev_b32 v26, 2, v26
v_xor_b32 v25, v25, v26
s_lshl_b32 s88, s4, 1
v_xor_b32 v25, s88, v25
v_lshl_add_u32 v20, v25, 4, v24
v_add_u32 v20, s87, v20
v_mov_b32 v21, v20
v_mov_b32 v22, v20
L_LGO:""")
A(f"s_lshr_b32 s87, s6, {sh}" if OPT["sub"] else "s_mov_b32 s87, 0")
for g in range(4):
    A(f"s_add_u32 s86, s87, {g}\ns_and_b32 s86, s86, 3\ns_mul_i32 {WL[g]}, s86, 3072\ns_mul_i32 {WG[g]}, s86, s82")
A(f"""s_cmp_eq_u32 s4, 1
s_cselect_b32 s40, s26, s24
s_cselect_b32 s41, s27, s25
s_cmp_ge_u32 s7, 15
s_cselect_b32 s40, s18, s40
s_cselect_b32 s41, s19, s41""")
issue_head(); issue_part(0, 0, ["w0", "w1", "w2", "w3"] if OPT["xfirst"] == 1 else ["w0", "x1", "w1", "x2", "w2", "w3"]); issue_tail()
stamp((2, 2))
issue_head(); n_ = issue_part(0, HH)
p2setup()
A(f"s_waitcnt vmcnt({n_})")
stamp((1, 1), (3, 2))
A("s_barrier\ns_mov_b32 s83, 0\nL_LLOOP:")
rawblocks()
if OPT['nodma']: issue_tail(); issue_head()
else:
    if HH < 7: issue_part(HH, 7)
    issue_tail(); issue_head(); issue_part(0, HH)
A(f"""s_add_u32 s83, s83, 1
s_waitcnt vmcnt({n_})
s_barrier
s_cmp_lt_u32 s83, 6
s_cbranch_scc1 L_LLOOP""")
stamp((2, 1), (4, 2))
if HH < 7: issue_part(HH, 7)
A("s_mov_b32 s38, 2097152")
ktable()
for n in range(N7): w2item(n)
A(f"s_waitcnt vmcnt({2*N7})\ns_barrier")
A("s_branch L_W2")

def f_addr(dst):
    A(f"""s_sub_u32 s86, s7, 15
s_lshl_b32 s86, s86, 12
s_and_b32 s87, s6, 1
s_lshl_b32 s87, s87, 11
s_add_u32 s86, s86, s87
s_and_b32 s87, s6, 2
s_lshl_b32 s87, s87, 9
s_add_u32 s86, s86, s87
s_lshr_b32 s87, s6, 2
s_lshl_b32 s87, s87, 9
s_add_u32 s86, s86, s87
s_lshl1_add_u32 s91, s86, {WS_FF}
s_add_u32 s86, s86, {WS_F}
v_lshl_add_u32 v{dst}, v0, 4, s86""")
assert OPT["rot"] in (2, 4, 8)
A(f"""L_SIDE:
s_add_u32 s13, s6, s90
s_and_b32 s13, s13, {OPT['rot']-1}
s_lshl_b32 s13, s13, { {2:2, 4:1, 8:0}[OPT['rot']] }
s_lshr_b32 s14, s6, { {2:1, 4:2, 8:3}[OPT['rot']] }
s_add_u32 s15, s13, s14
s_cmp_ge_u32 s6, 8
s_cselect_b32 s14, 99, s14
s_cmp_eq_u32 s12, 1
s_cselect_b32 s14, 99, s14
s_and_b32 s77, s4, 1""")
wfrag_addr(62, "s77", 24, "L_SA")
A(f"""s_cmp_eq_u32 s14, 1
s_cselect_b32 s86, {SLOT}, 0
s_cmp_eq_u32 s14, 2
s_cselect_b32 s86, {2*SLOT}, s86
v_add_u32 v62, s86, v62
v_add_u32 v63, s86, v63
v_and_b32 v24, 16, v0
v_cmp_ne_u32 s[72:73], 0, v24
v_and_b32 v24, 31, v0
s_mul_i32 s86, s77, 384
s_add_u32 s86, s86, {CF}
v_lshrrev_b32 v25, 4, v24
v_mul_u32_u24 v25, 128, v25
v_lshl_add_u32 v17, v24, 2, v25
v_add_u32 v17, s86, v17
s_mul_i32 s87, s77, 96
v_add_u32 v21, s87, v0
v_add3_u32 v22, v24, s87, 64
s_lshl_b32 s86, s8, 4
s_add_u32 s86, s86, {WS_RS}
v_lshl_add_u32 v19, v21, 4, s86
v_lshl_add_u32 v20, v22, 4, s86
s_lshl_b32 s86, s7, 13
s_lshl_b32 s87, s77, 9
s_add_u32 s86, s86, s87
s_add_u32 s86, s86, {WS_CS}
s_lshl_b32 s87, s15, 10
s_add_u32 s74, s86, s87
v_lshlrev_b32 v23, 4, v24
v_lshrrev_b32 v25, 5, v0
v_lshl_add_u32 v18, v25, 12, v23
v_add_u32 v18, s86, v18""")
for r in range(52, 56): A(f"v_mov_b32 v{r}, 0x3f803f80")
def w1prefetch():
    A(f"""s_cmp_eq_u32 s77, 0
s_cselect_b32 s40, s24, s26
s_cselect_b32 s41, s25, s27
s_mov_b32 s42, {1376*1024}
s_mov_b32 s43, 0x20000
s_mul_i32 s86, s5, 43
v_min_u32 v16, 42, v0
v_add_u32 v16, s86, v16
v_lshlrev_b32 v16, 7, v16
buffer_load_dword v58, v16, {W}, 0 offen
s_mov_b32 s52, s18
s_mov_b32 s53, s19
s_mov_b32 s54, {512*3072}
s_mov_b32 s55, 0x20000
s_lshl_b32 s86, s5, 1
s_add_u32 s86, s86, s77
s_mul_i32 s86, s86, 24
v_min_u32 v16, 23, v0
v_add_u32 v16, s86, v16
v_lshlrev_b32 v16, 7, v16
buffer_load_dword v57, v16, s[52:55], 0 offen""")
kwait()
if OPT['w1pf'] == -2: w1prefetch()
p2setup()
A(f"""s_cmp_lt_u32 s7, 15
s_cbranch_scc1 L_NOCLR
s_cmp_ge_u32 s6, 8
s_cbranch_scc1 L_NOCLR""")
f_addr(24)
A(f"""v_mov_b32 v28, -1
v_mov_b32 v29, -1
v_mov_b32 v30, -1
v_mov_b32 v31, -1
s_mov_b32 exec_hi, 0
buffer_store_dwordx4 v[28:31], v24, {WS}, 0 offen sc1
s_mov_b32 exec_hi, -1""")
if OPT["prew"]: A(f"s_sub_u32 s86, {TAG}, 1\nv_mov_b32 v32, s86\nv_lshlrev_b32 v24, 4, v0\nbuffer_store_dwordx4 v[32:35], v24, {WS}, s91 offen sc1")
A(f"""L_NOCLR:
s_mov_b32 s83, 0
s_waitcnt vmcnt(0)""")
if OPT["w1pf"] == -1: w1prefetch()
A("L_SLOOP:\ns_barrier")
if OPT["w1pf"] >= 0:
    A(f"s_cmp_eq_u32 s83, {OPT['w1pf']}\ns_cbranch_scc0 L_NOPF1"); w1prefetch(); A("L_NOPF1:")
if OPT["w2late"] >= 0:
    A(f"""s_cmp_eq_u32 s83, {OPT['w2late']}
s_cbranch_scc0 L_NOPF2
s_mul_i32 s86, s5, 59
s_mul_i32 s87, s77, 30
s_add_u32 s86, s86, s87
v_min_u32 v16, 29, v0
v_add_u32 v16, s86, v16
v_lshlrev_b32 v16, 7, v16
buffer_load_dword v60, v16, {WD}, 0 offen
v_subrev_u32 v16, {1376*1024}, v16
buffer_load_dword v61, v16, {WO}, 0 offen
L_NOPF2:""")
if OPT["pf2"] >= 0:
    A(f"""s_cmp_eq_u32 s83, {OPT['pf2']}
s_cbranch_scc0 L_NOPF3
s_getpc_b64 s[88:89]
L_PC2:
s_sub_u32 s88, s88, L_PC2-{NAME}_kernel
s_subb_u32 s89, s89, 0
s_lshr_b32 s86, s2, 3
s_lshl_b32 s86, s86, 3
s_lshl_b32 s87, s77, 2
s_add_u32 s86, s86, s87
v_and_b32 v16, 3, v0
v_add_u32 v16, s86, v16
v_lshlrev_b32 v16, 7, v16
v_min_u32 v16, L_END-{NAME}_kernel, v16
global_load_dword v59, v16, s[88:89]
L_NOPF3:""")
A("s_cmp_eq_u32 s83, s14\ns_cbranch_scc0 L_LNOCS")
for t in range(2):
    A(f"s_cmp_ge_u32 s7, 15\ns_cbranch_scc1 L_CSQ{t}")
    for role in "GQ":
        if role == 'Q': A(f"s_branch L_CSM{t}\nL_CSQ{t}:")
        for j in range(6):
            for sec in range(2):
                par, off = woff(role, t, j, sec)
                A(f"ds_read_b64_tr_b16 {v(24+4*j+2*sec,2)}, v{62+par} offset:{off}")
    A(f"L_CSM{t}:\ns_waitcnt lgkmcnt(0)")
    for j in range(6): A(mf16(72+4*j, 52, 24+4*j, 0 if t == 0 else None))
A(f"v_mov_b32 v51, {TAG}")
for u in range(3): A(f"v_cndmask_b32 v{48+u}, v{72+4*u}, v{84+4*u}, s[72:73]")
A(f"""s_mov_b32 exec_hi, 0
buffer_store_dwordx4 v[48:51], v23, {WS}, s74 offen sc1
s_mov_b32 exec_hi, -1
L_LNOCS:""")
rawblocks()
A(f"""s_add_u32 s83, s83, 1
s_cmp_lt_u32 s83, 6
s_cbranch_scc1 L_SLOOP""")
def st_loads():
    for p in range(4): A(f"buffer_load_dwordx4 {v(32+4*p,4)}, v18, {WS}, 0 offen offset:{1024*p} sc1")
    A(f"buffer_load_dwordx4 v[48:51], v19, {WS}, 0 offen sc1\nbuffer_load_dwordx4 v[52:55], v20, {WS}, 0 offen sc1")
st_loads()
A("s_barrier")
stamp((2, 1), (4, 2))
ktable()
for n in range(N7): w2item(n)
A(f"s_mov_b32 s88, 0\ns_waitcnt vmcnt({2*N7})")
A("L_SPC:")
tagcheck(24, 24, [35+4*p for p in range(6)])
A(f"""v_cmp_ne_u32 vcc, 0, v24
s_add_u32 s88, s88, 1
s_cmp_gt_u32 s88, {OPT['spin']}
s_cbranch_scc1 L_SPCD
s_cbranch_vccz L_SPCD""")
st_loads()
A(f"""s_waitcnt vmcnt(0)
s_branch L_SPC
L_SPCD:
s_mov_b32 s86, {RS}
s_mov_b32 s87, {RR}
v_lshl_add_u32 v24, v21, 4, s86
v_lshl_add_u32 v25, v22, 4, s86
v_lshl_add_u32 v21, v21, 2, s87
v_lshl_add_u32 v22, v22, 2, s87
ds_write_b128 v24, v[48:51]
ds_write_b128 v25, v[52:55]
ds_write_b32 v21, v49
ds_write_b32 v22, v53
v_mul_f32 v24, v48, v49
v_mul_f32 v25, v52, v53
ds_write_b32 v21, v24 offset:{MR-RR}
ds_write_b32 v22, v25 offset:{MR-RR}""")
note("s88", 2)
for p in range(1, 4):
    for u in range(3): A(f"v_add_f32 v{32+u}, v{32+u}, v{32+4*p+u}")
for u in range(3): A(f"v_mov_b32 v{36+u}, v{32+u}")
for u in range(3): A(f"v_permlane32_swap_b32 v{32+u}, v{36+u}")
for u in range(3): A(f"v_add_f32 v{32+u}, v{32+u}, v{36+u}")
for u in range(3): A(f"ds_write_b32 v17, v{32+u} offset:{64*u}")
A("s_waitcnt lgkmcnt(0)\ns_barrier")

A("L_W2:")
stamp((3, 1), (6, 2))
AB = 8
vm = [x for n in range(N7) for x in (f"d{n}a", f"d{n}")]
def emit(Y):
    for t in Y:
        if callable(t): t()
        elif t.startswith("VM "):
            nm, ins = t[3:].split("|"); vm.append(nm); A(ins)
        elif t.startswith("WAIT "):
            nms, lg = t[5:].split("|")
            A(f"s_waitcnt vmcnt({len(vm)-1-max(vm.index(x) for x in nms.split(','))})" + (" lgkmcnt(0)" if lg else ""))
        elif t.startswith("STAMP "): stamp((int(t[6:]), 4))
        else: A(t)
A(f"v_lshlrev_b32 v84, 4, v0\nv_add_u32 v84, s76, v84")
def wr(reg, slot, blk):
    off = slot*SLOT + blk*2048
    A(f"ds_write_b128 v84, {v(reg,4)} offset:{off}\nds_write_b128 v84, {v(reg+4,4)} offset:{off+1024}")
def rd6(base, sl):
    for kk in range(6):
        E(w2read(base+8*kk, sl, kk, AB))
        if kk % 3 == 2: A("s_waitcnt lgkmcnt(0)")
NB = OPT["nb"]; NC = OPT["nc"]; NIT = len(items); NW = OPT['nraw']; NL = 12 - NW - NB - NC; assert NL >= 0 and NW <= 8
cnt = [N7]
def TH():
    cnt[0] += 1
    return OPT["thr"] if (OPT["thr"] and cnt[0] > OPT["tfrom"]) else None
it = lambda n: w2ops(items[n][0], items[n][1], items[n][2:], TH())
Z = []
for n in range(N7, 6): Z += it(n)
order2 = [12+2, 12+3, 12+4, 12+5, 12+0, 12+1]
for n in range(12):
    Z += [f"WAIT d{n}|"] + w2read(96+8*n, 2, n % 6, AB) + ["s_waitcnt lgkmcnt(0)"]
    Z += it(n+6 if n < 6 else order2[n-6])
assert NE <= min(NW, 6)
for n in range(NE, NW): Z += w2ops(items[18+n][0], items[18+n][1], 192+8*n, TH())
Z += [f"VM x|buffer_load_dwordx4 v[12:15], v1, {X}, 0 offen", f"v_mov_b32 v18, {LF+40}", lambda: spin_lds(18, 17, 4)]
emit(Z)
stamp((4, 1), (1, 3), (1, 4))
def rdaddr(dst, isy_src, half, T):
    base = 0 if isy_src else SLOT
    t3 = 2*SLOT + (0 if isy_src else 8192)
    A(f"""s_and_b32 s70, s4, 2
s_lshl_b32 s70, s70, 12
s_add_u32 s70, s70, {base}
s_add_u32 s71, s70, 4096
s_cmp_ge_u32 s4, 2
s_cselect_b32 s71, {t3}, s71
v_mov_b32 v{T}, s70
v_mov_b32 v{T+1}, s71
v_and_b32 v{T+2}, 4, v0
v_cmp_ne_u32 vcc, 0, v{T+2}
v_and_b32 v{T+2}, 7, v0
v_lshrrev_b32 v{T+3}, 3, v0
v_cndmask_b32 v{T}, v{T}, v{T+1}, vcc
v_add_u32 v{T+3}, {8*half}, v{T+3}
v_lshlrev_b32 v{T+1}, 1, v{T+2}
v_xor_b32 v{T+3}, v{T+3}, v{T+1}
s_and_b32 s70, s4, 1
s_lshl_b32 s70, s70, 8
v_lshl_add_u32 v{T}, v{T+3}, 4, v{T}
v_and_b32 v{T+1}, 2, v0
v_lshl_add_u32 v{T}, v{T+1}, 8, v{T}
v_and_b32 v{T+1}, 1, v0
v_lshl_add_u32 v{T}, v{T+1}, 11, v{T}
v_add_u32 v{dst}, s70, v{T}""")
def wraddr(B_, isy):
    A(f"""v_lshrrev_b32 v{B_}, 3, v0
v_and_b32 v{B_}, 4, v{B_}
v_xor_b32 v{B_}, v{B_}, v0
v_lshlrev_b32 v{B_}, 4, v{B_}
v_xor_b32 v{B_+1}, 32, v{B_}
v_xor_b32 v{B_+2}, 0x80, v{B_}
v_xor_b32 v{B_+3}, 0xa0, v{B_}""")
    for j in range(4): A(f"v_add_u32 v{B_+j}, s76, v{B_+j}")
    t3 = 2*SLOT + (0 if isy else 8192)
    A(f"v_add_u32 v{B_+4}, {t3}, v{B_+2}\nv_add_u32 v{B_+5}, {t3}, v{B_+3}")
def wrpart(B_, isy):
    for q in range(4):
        for jq in range(4):
            if q < 3: A(f"ds_write_b128 v{B_ + 2*(q&1) + (jq>>1)}, {v(192+16*q+4*jq,4)} offset:{(0 if isy else SLOT) + q*4096 + jq*1024}")
            else: A(f"ds_write_b128 v{B_ + 4 + (jq>>1)}, {v(192+16*q+4*jq,4)} offset:{jq*1024}")
def rd4(dst, va):
    for src in range(4):
        for e in range(2): A(f"ds_read_b128 {v(dst+8*src+4*e,4)}, v{va} offset:{Q*src+1024*e}")
def sum4(d):
    for j in range(4): A(f"v_pk_add_f32 {v(d+2*j,2)}, {v(d+2*j,2)}, {v(d+8+2*j,2)}\nv_pk_add_f32 {v(d+16+2*j,2)}, {v(d+16+2*j,2)}, {v(d+24+2*j,2)}")
    for j in range(4): A(f"v_pk_add_f32 {v(d+2*j,2)}, {v(d+2*j,2)}, {v(d+16+2*j,2)}")
STG = OPT["stage"]
def sgo(va, vd): return f"s_lshl_b32 s86, s4, 2\ns_add_u32 s86, s86, {LF+48}\nv_mov_b32 v{va}, s86\nv_mov_b32 v{vd}, 1\nds_write_b32 v{va}, v{vd}"
assert STG
note("1", 4)
def hload(kd):
    va = 6 if kd < 21 else 7
    b = 16 + 8*(kd % 8)
    return [f"s_lshl2_add_u32 s86, s{77 + kd % 7}, {(kd//7)*65536}" if kd < 21 else "s_mov_b32 s86, 0",
            f"VM h{kd}a|buffer_load_dwordx4 {v(b,4)}, v{va}, {H}, s86 offen sc1",
            f"VM h{kd}|buffer_load_dwordx4 {v(b+4,4)}, v{va}, {H}, s86 offen offset:1024 sc1"]
w2late = lambda n, t=None: w2ops(items[n][0], items[n][1], items[n][2:], t)
def ipoll(c):
    nl = 16 if c <= 1 else 24
    return [f"VM p{c}|v_mov_b32 v82, {TAG}\ns_mov_b32 s87, {c << 20}\ns_mov_b64 exec, {hex((1<<nl)-1)}\nbuffer_load_dword v82, v5, {WS}, s87 offen sc1\ns_mov_b64 exec, -1"]
res_loc = lambda kd: (2, kd-12) if kd < 16 else (0, kd-16)
YD = OPT["ydep"]; assert YD <= 7
PRE = cap(lambda: (wraddr(96, True), rdaddr(102, True, 0, 104), A("v_xor_b32 v103, 0x80, v102"), rdaddr(108, False, 0, 104),
    A(f"s_lshl_b32 s70, s4, 11\ns_add_u32 s70, s70, {GB}\nv_lshl_add_u32 v109, v0, 4, s70\nv_mov_b32 v110, {LF+36}\nv_mov_b32 v111, 1"),
    [A(f"v_lshlrev_b32 v{112+2*j}, 16, v{12+j}\nv_and_b32 v{113+2*j}, 0xffff0000, v{12+j}") for j in range(4)],
    A(f"s_mov_b32 s70, {hx(-1.4426950408889634)}\ns_mov_b32 s71, s70")))
Y = []
Y += ipoll(0)
for n in range(NB): Y += w2late(18+NW+n, OPT['thr2'] or None)
if NW: Y += ['WAIT x|', lambda: [wr(192+8*n, *items[18+n][2:]) for n in range(NW//2)]]
Y += ["WAIT p0|", f"v_cmp_ne_u32 vcc, {TAG}, v82\ns_cbranch_vccnz L_YR0\nL_YB0:", lambda: stamp((5, 1), (2, 3), (2, 4))]
for kd in range(YD): Y += hload(kd)
for n in range(NC): Y += w2late(18+NW+NB+n, OPT['thr2'] or None)
if NW: Y += [lambda: [wr(192+8*n, *items[18+n][2:]) for n in range(NW//2, NW)], 's_waitcnt lgkmcnt(0)']
if OPT["gate"]: Y += [f"v_mov_b32 v80, {LF+32}", lambda: spin_lds(80, 81, OPT["gate"])]
Y.append(f"s_setprio {OPT['yprio']}")
for kd in range(22):
    wf = 96+8*kd if kd < 12 else 80+8*(kd & 1)
    hb = 16 + 8*(kd % 8)
    need = [f"h{kd}"]
    chk = 0 if not STG else (1 if kd+YD == 7 else (2 if kd == OPT['c2'] else 0))
    if chk: need.append(f"p{chk}")
    if chk == 2 and NE < 6: need.append("o5")
    if 16 <= kd+1 < 22: need.append(f"d{kd+1}")
    Y.append("WAIT " + ",".join(need) + ("|L" if kd >= 12 else "|"))
    if chk:
        Y.append(f"v_cmp_ne_u32 vcc, {TAG}, v82\ns_cbranch_vccnz L_YR{chk}\nL_YB{chk}:")
        if chk == 2: Y.append(sgo(82, 83))
    ms = [mfma(192+32*r+16*c, wf+4*c, hb+4*r, 0 if kd == 0 else None) for r in range(2) for c in range(2)]
    fill = []
    if STG and kd == OPT["p1"]: fill += ipoll(1)
    if STG and kd == OPT["p2"]: fill += ipoll(2)
    if kd+YD < 22: fill += hload(kd+YD)
    if kd < NL: fill += w2late(NIT-NL+kd)
    if 12 <= kd+1 < 22: fill += w2read(80+8*((kd+1) & 1), *res_loc(kd+1), AB)
    if kd in (11, 12, 13): fill = fill + PRE[(kd-11)*37:(kd-10)*37] if kd < 13 else fill + PRE[74:]
    Y += interleave(ms, fill, 3 if len(fill) <= 12 else 6)
    if kd+1 == OPT["ydrop"]: Y.append(f"s_setprio {OPT['ypost']}")
    if kd == 0: Y.append("STAMP 3")
    if kd == 10: Y.append("STAMP 4")
assert not STG or (OPT["p1"] < 7-YD <= OPT["p2"] < OPT["c2"] <= 14-YD)
emit(Y)
stamp((6, 1), (3, 3), (5, 4))
def final(isy):
    if OPT["fin"] == 1:
        if isy:
            wrpart(96, True); A("v_mov_b32 v4, v102\ns_waitcnt lgkmcnt(0)")
        else:
            wrpart(80, False)
            A("s_setprio 0")
            rdaddr(10, True, 1, 88)
            A(f"""v_xor_b32 v5, 0x80, v4
v_mov_b32 v6, {LF+36}
v_mov_b32 v7, 1
s_mov_b32 s70, {hx(-1.4426950408889634)}
s_mov_b32 s71, s70
s_mov_b64 exec, 1
s_waitcnt lgkmcnt(0)
ds_add_u32 v6, v7
s_mov_b64 exec, -1""")
            spin_lds(6, 7, 4)
            rd4(16, 5); A("s_waitcnt lgkmcnt(4)"); rd4(48, 4)
            for d, w_ in ((16, 8), (48, 2)):
                A(f"s_waitcnt lgkmcnt({w_})")
                for j in range(8): A(f"v_add_f32 v{d+j}, v{d+j}, v{d+8+j}\nv_add_f32 v{d+16+j}, v{d+16+j}, v{d+24+j}")
                for j in range(8): A(f"v_add_f32 v{(d if d == 16 else 88)+j}, v{d+j}, v{d+16+j}")
                if d == 16: A("ds_write_b128 v9, v[16:19]\nds_write_b128 v9, v[20:23] offset:1024")
            A("v_mov_b32 v4, v10\ns_waitcnt lgkmcnt(0)")
        return
    if isy:
        wrpart(96, True)
        A("""v_mov_b32 v4, v108
s_mov_b64 exec, 1
s_waitcnt lgkmcnt(0)
ds_add_u32 v110, v111
s_mov_b64 exec, -1""")
        spin_lds(110, 6, 4)
        rd4(16, 103); A("s_waitcnt lgkmcnt(4)"); rd4(48, 102)
        for d, w_ in ((16, 8), (48, 2)):
            A(f"s_waitcnt lgkmcnt({w_})")
            if OPT["ypk"]:
                sum4(d)
                for j in range(4): A(f"v_pk_mul_f32 {v(d+8+2*j,2)}, {v(d+2*j,2)}, s[70:71]")
            else:
                for j in range(8): A(f"v_add_f32 v{d+j}, v{d+j}, v{d+8+j}\nv_add_f32 v{d+16+j}, v{d+16+j}, v{d+24+j}")
                for j in range(8): A(f"v_add_f32 v{d+j}, v{d+j}, v{d+16+j}")
                for j in range(8): A(f"v_mul_f32 v{d+8+j}, s70, v{d+j}")
            for j in range(8): A(f"v_exp_f32 v{d+8+j}, v{d+8+j}")
            for j in range(8): A(f"v_add_f32 v{d+8+j}, 1.0, v{d+8+j}")
            for j in range(8): A(f"v_rcp_f32 v{d+8+j}, v{d+8+j}")
            for j in range(8): A(f"v_mul_f32 v{(d if d == 16 else 88)+j}, v{d+j}, v{d+8+j}")
            if d == 16:
                A("ds_write_b128 v109, v[16:19]\nds_write_b128 v109, v[20:23] offset:1024")
    else:
        wrpart(80, False)
    A("s_waitcnt lgkmcnt(0)")
final(True)
A("s_branch L_FINAL")
if STG:
    for c in (0, 1, 2):
        A(f"L_YR{c}:"); note(str(10+c), 4); spin_flag(5, 82, 16 if c <= 1 else 24, c, 1); A(f"s_branch L_YB{c}")
A("L_COMPUTE:")
srd(WS, 32, 0x800000); srd(H, 32, 118*65536, WS_H); srd(OUT, 30, 2097152)
ACC = 112
for r in range(ACC, 256): A(f"v_mov_b32 v{r}, 0")
A(f"""v_lshlrev_b32 v16, 2, v0
v_add_u32 v16, {LF}, v16
v_mov_b32 v17, 0
s_mov_b64 exec, 0xffff
ds_write_b32 v16, v17
s_mov_b64 exec, -1
s_lshr_b32 s13, s4, 1
s_and_b32 s14, s4, 1
s_movk_i32 s11, 0x1ff
s_lshl_b32 s86, s13, 4
s_add_u32 s86, s86, s6
s_cmp_eq_u32 s86, 10
s_cselect_b32 s11, 0x1c0, s11
s_mul_i32 s86, s14, 0x1b6
s_cmp_eq_u32 s7, 14
s_cselect_b32 s86, s86, 0x1ff
s_and_b32 s11, s11, s86
s_cmp_eq_u32 s12, 1
s_cselect_b32 s11, 0, s11
s_mul_i32 s76, s4, {Q}
s_lshr_b32 s86, s9, 4
s_mul_i32 s87, s14, 3
s_add_u32 s86, s86, s87
s_lshl_b32 s87, s7, 1
s_add_u32 s87, s87, s14
s_lshl1_add_u32 s87, s87, 26
s_and_b32 s88, s11, 0xdb
s_cmp_ge_u32 s7, 15
s_cselect_b32 s86, s87, s86
s_cselect_b32 s11, s88, s11
s_lshl_b32 s86, s86, 6
s_lshr_b32 s87, s8, 5
s_add_u32 s86, s86, s87
s_mul_i32 s87, s13, 3
s_add_u32 s86, s86, s87
s_lshl_b32 s86, s86, 10
v_lshl_add_u32 v1, v0, 4, s86
s_mov_b32 s80, 0
s_mov_b32 s81, 65536
s_mov_b32 s82, 131072
v_and_b32 v16, 15, v0
v_lshrrev_b32 v17, 4, v0
v_bfe_u32 v18, v0, 1, 3
v_xor_b32 v18, v18, v17
s_mul_i32 s86, s13, {96*128}
v_lshl_add_u32 v16, v16, 7, s86
v_lshl_add_u32 v2, v18, 4, v16
v_xor_b32 v3, 64, v2""")
wfrag_addr(4, "s14", 16, "L_CA")
A(f"""s_mul_i32 s86, s6, 23
s_add_u32 s86, s86, s7
s_cmp_eq_u32 s12, 1
s_cselect_b32 s86, 255, s86
s_lshl_b32 s86, s86, 2
s_add_u32 s86, s86, s4
s_lshl_b32 s86, s86, 10
s_add_u32 s15, s86, {WS_FLAG}""")
stamp((2, 2))
A("s_waitcnt vmcnt(0)")
stamp((5, 2))
for j in range(8):
    A(f"v_lshlrev_b32 v{16+2*j}, 16, v{8+j}\nv_and_b32 v{17+2*j}, 0xffff0000, v{8+j}")
def red32(r, t):
    for sh_ in (8, 4, 2, 1):
        A(f"v_add_f32_dpp v{r}, v{r}, v{r} row_ror:{sh_} row_mask:0xf bank_mask:0xf")
    A(f"v_mov_b32 v{t}, v{r}\nv_permlane16_swap_b32 v{r}, v{t}\nv_add_f32 v{r}, v{r}, v{t}")
for j in range(4): A(f"v_pk_add_f32 {v(8+2*j,2)}, {v(16+2*j,2)}, {v(24+2*j,2)}")
A("v_pk_add_f32 v[8:9], v[8:9], v[12:13]\nv_pk_add_f32 v[10:11], v[10:11], v[14:15]\nv_pk_add_f32 v[8:9], v[8:9], v[10:11]\nv_add_f32 v8, v8, v9")
red32(8, 9)
A(f"v_mul_f32 v8, {hx(-1/512)}, v8")
for j in range(8): A(f"v_pk_add_f32 {v(16+2*j,2)}, {v(16+2*j,2)}, v[8:9] op_sel_hi:[1,0]")
A("v_pk_mul_f32 v[10:11], v[16:17], v[16:17]\nv_pk_mul_f32 v[12:13], v[18:19], v[18:19]")
for j in range(2, 8): A(f"v_pk_fma_f32 {v(10+2*(j&1),2)}, {v(16+2*j,2)}, {v(16+2*j,2)}, {v(10+2*(j&1),2)}")
A("v_pk_add_f32 v[10:11], v[10:11], v[12:13]\nv_add_f32 v10, v10, v11")
red32(10, 9)
A(f"""v_mul_f32 v10, {hx(1/512)}, v10
v_cvt_pk_bf16_f32 v10, v10, v10
v_and_b32 v10, 0xffff0000, v10
v_add_f32 v10, {hx(1e-5)}, v10
v_cvt_pk_bf16_f32 v10, v10, v10
v_and_b32 v10, 0xffff0000, v10
v_sqrt_f32 v10, v10
v_cvt_pk_bf16_f32 v32, v8, v8
v_cvt_pk_bf16_f32 v10, v10, v10
v_and_b32 v10, 0xffff0000, v10
v_and_b32 v32, 0xffff0000, v32
v_rcp_f32 v33, v10
v_mul_f32 v34, v10, v10
v_lshlrev_b32 v7, 4, v7
v_add_u32 v7, {WS_RS}, v7
s_waitcnt lgkmcnt(0)
s_add_u32 {TAG}, {TAG}, 0x9E3779B9
v_mov_b32 v35, {TAG}
v_mov_b32 v36, {TAG}
v_mov_b32 v37, {TAG}
v_mov_b32 v38, {TAG}
v_mov_b32 v39, {TAG}
v_lshlrev_b32 v6, 4, v0
s_mov_b32 s78, 0
s_mov_b32 s79, {SLOT}
s_mov_b32 s83, 0""")
stamp((1, 1), (3, 2))
A(f"""s_barrier
s_mov_b32 exec_lo, 1
s_mov_b32 exec_hi, 1
buffer_store_dwordx4 v[32:35], v7, {WS}, 0 offen sc1
s_mov_b64 exec, -1""")
if OPT["prew"]:
    for kind in ((0, 1, 2) if OPT["stage"] else (0, 2)):
        sk = L("PW")
        if kind == 0 and not OPT["stage"]: A(f"s_cmp_lt_u32 s7, 15\ns_cbranch_scc1 {sk}")
        A(f"s_add_u32 s86, s15, {kind << 20}\nbuffer_store_dwordx4 v[28:31], v6, {WS}, s86 offen sc1")
        A.label(sk)
stamp((2, 1), (4, 2))
A("s_cmp_ge_u32 s7, 15\ns_cbranch_scc1 L_QKV")
if OPT["dead"]: A("s_or_b32 s86, s11, s12\ns_cbranch_scc0 L_DEAD")

XB = lambda buf, a: (40 if buf == 0 else 8) + 4*a
WF = lambda buf, j: 64 + 24*buf + 4*j
acc = lambda a, j: ACC + 4*(6*a+j)
CB = 88
def reads(role, s_):
    w_ = []
    for j in range(6):
        for sec in range(2):
            par, off = woff(role, s_, j, sec)
            w_.append(f"ds_read_b64_tr_b16 {v(WF(s_,j)+2*sec,2)}, v{4+par} offset:{off}")
    o = []
    for a in range(6): o += [f"ds_read_b128 {v(XB(s_,a),4)}, v{2+s_} offset:{2048*a}"] + w_[2*a:2*a+2]
    return o
def mm(role, wb, a, j, xb=1):
    return mf16(acc(a,j), WF(wb,j), XB(xb,a)) if (role == 'G' or j < 2) else mf16(acc(a,j), XB(xb,a), WF(wb,j))
def grp(role, buf, a): return [mm(role, buf, a, j, buf) for j in range(6)]
def spread(ms, fill, num, den):
    o = []; f = list(fill); nr = 0
    for i, m in enumerate(ms):
        o.append(m)
        k = ((i+1)*num)//den - (i*num)//den
        for _ in range(k):
            if f:
                x = f.pop(0)
                if x.startswith("ds_read"):
                    nr += 1
                    if nr == 13: o.append("s_waitcnt lgkmcnt(6)")
                o.append(x)
    assert not f
    return o
def treads(role, st, js, wb):
    buf = st & 1
    xs_ = [f"ds_read_b128 {v(XB(buf,a),4)}, v{2+buf} offset:{2048*a + (SLOT if st >= 2 else 0)}" for a in range(6)]
    ws_ = []
    for i, j in enumerate(js):
        for sec in range(2):
            par, off = woff(role, buf, j, sec)
            ws_.append(f"ds_read_b64_tr_b16 {v(wb(buf)+4*i+2*sec,2)}, v{(32 if st >= 2 else 4)+par} offset:{off}")
    return ws_[:4] + xs_ + ws_[4:]
def ldsadd(off, va, vd): return f"v_mov_b32 v{va}, {LF+off}\nv_mov_b32 v{vd}, 1\ns_mov_b64 exec, 1\nds_add_u32 v{va}, v{vd}\ns_mov_b64 exec, -1"
def tphase(role, js, wb, first, last, nxt, extra, rows=range(6), start3=0):
    for st in range(4):
        buf = st & 1
        A("s_waitcnt lgkmcnt(0)")
        if first and st == 1: A("s_barrier")
        ms = []
        for a in (rows if st == 3 else range(6)):
            for i, j in enumerate(js):
                w_, x_ = wb(buf)+4*i, XB(buf, a)
                ms.append(mf16(acc(a,j), w_, x_) if (role == 'G' or j < 2) else mf16(acc(a,j), x_, w_))
        fill = (treads(role, st+1, js, wb) if st < 3 else nxt) + extra.get(st, [])
        if last and st == 3: fill = [ldsadd(40, 32, 33)] + fill
        E(interleave(ms, fill, max(1, -(-len(fill)//(len(ms)-1)))))
def mainloop(role, pre):
    lp, ex = f"L_ML{role}", f"L_MX{role}"
    allm = lambda buf: [m + ('\ns_nop 7' if OPT['slow'] and n_ % OPT['slow'] == 0 else '') for n_, m in enumerate([m for a in range(6) for m in grp(role, buf, a)])]
    def coarse():
        if OPT["shi"]:
            sk = L("SL"); A(f"s_sub_u32 s87, s83, {OPT['slo']}\ns_cmp_lt_u32 s87, {OPT['shi']-OPT['slo']}\ns_cbranch_scc0 {sk}")
            for _ in range(OPT["sn"]): A("s_nop 15")
            A.label(sk)
    r0 = reads(role, 0); E(r0[:12]); A("s_waitcnt lgkmcnt(6)"); E(r0[12:])
    A.label(lp)
    coarse()
    A("s_waitcnt lgkmcnt(0)")
    sal = f"""s_add_u32 s78, s78, 1
s_cmp_eq_u32 s78, 3
s_cselect_b32 s86, {-2*SLOT & 0xffffffff}, s79
s_cselect_b32 s78, 0, s78
s_add_u32 s83, s83, 1
s_cmp_eq_u32 s83, 6""".split("\n") + [f"v_add_u32 v{r}, s86, v{r}" for r in (2, 4, 5, 3)]
    E(spread(allm(0), reads(role, 1) + sal, OPT["rgap"]+2, OPT["rgap"]+3))
    A(f"s_waitcnt lgkmcnt(0)\ns_barrier\ns_cbranch_scc1 {ex}")
    E(spread(allm(1), reads(role, 0), OPT["rgap"], 4))
    A(f"s_branch {lp}")
    A.label(ex)
    com = ["s_waitcnt vmcnt(0)", f"v_add_u32 v32, {SLOT}, v4", f"v_add_u32 v33, {SLOT}, v5", "v_and_b32 v34, 15, v0",
           f"s_mul_i32 s86, s13, {96*16}", f"s_add_u32 s86, s86, {RS}", "v_lshl_add_u32 v34, v34, 4, s86",
           "v_lshrrev_b32 v7, 4, v0", "s_mul_i32 s79, s14, 384", f"s_add_u32 s79, s79, {CF}", "v_lshl_add_u32 v35, v7, 4, s79",
           f"s_mul_i32 s86, s13, {96*4}", f"s_add_u32 s86, s86, {RR}", "v_lshl_add_u32 v7, v7, 4, s86"]
    E(interleave(allm(1), pre + com, 2))

def flagstore(kind):
    m = (1 << (8*OPT["nrep"])) - 1
    A(f"s_add_u32 s86, s15, {kind << 20}\ns_mov_b64 exec, {hex(m) if m < (1<<32) else -1}\nbuffer_store_dwordx4 v[36:39], v6, {WS}, s86 offen sc1\ns_mov_b64 exec, -1")
def gsig():
    if OPT["gate"]: A(ldsadd(32, 2, 3))
rsrd = lambda a: f"ds_read_b128 {v(CB+4*a,4)}, v34 offset:{256*a}"
C1 = -2.0*0.7978845608028654*1.4426950408889634
cst = []
for a in range(6):
    b = CB+4*a
    cst += [f"v_mul_f32 v{b+3}, {hx(C1)}, v{b+1}", f"v_mul_f32 v{b+1}, v{b+1}, v{b+1}",
            f"v_mul_f32 v{b+1}, {hx(0.044715)}, v{b+1}", f"v_mul_f32 v{b+1}, v{b+1}, v{b+3}"]
wb2 = lambda buf: 64 + 8*buf
mainloop('G', treads('G', 0, (0, 3), wb2))
def tregs(u, a):
    return (8 + 8*(a & 1), 24 + 4*(a & 1), [acc(2*a + j//2, u) + 2*(j & 1) for j in range(4)],
            [acc(2*a + j//2, u+3) + 2*(j & 1) for j in range(4)], [CB+4*(2*a + j//2) for j in range(4)])
def stA(u, a):
    T, P, gp, up, cb = tregs(u, a)
    return ([f"v_pk_fma_f32 {v(gp[j],2)}, {v(80+2*(j&1),2)}, {v(cb[j],2)}, {v(gp[j],2)} op_sel_hi:[1,0,1]" for j in range(4)]
          + [f"v_pk_mul_f32 {v(T+2*j,2)}, {v(gp[j],2)}, {v(gp[j],2)}" for j in range(4)]
          + [f"v_pk_fma_f32 {v(T+2*j,2)}, {v(T+2*j,2)}, {v(cb[j],2)}, {v(cb[j]+2,2)} op_sel:[0,1,1] op_sel_hi:[1,1,1]" for j in range(4)]
          + [f"v_pk_mul_f32 {v(T+2*j,2)}, {v(T+2*j,2)}, {v(gp[j],2)}" for j in range(4)])
for u in range(3):
    crd = [f"ds_read_b128 v[80:83], v35 offset:{64*u}", f"ds_read_b128 v[84:87], v35 offset:{64*(u+3)}"]
    ex_ = {1: [rsrd(a) for a in range(4)], 2: [rsrd(4), rsrd(5)] + crd, 3: cst} if u == 0 else {0: crd}
    tphase('G', (u, u+3), wb2, u == 0, u == 2, treads('G', 0, (u+1, u+4), wb2) if u < 2 else [], ex_)
    if u: A("s_waitcnt vmcnt(0)"); flagstore(u-1)
    else: A("s_nop 3")
    if u == 0: stamp((1, 3))
    if u == 2: stamp((3, 1))
    E(stA(u, 0))
    for a in range(3):
        T, P, gp, up, cb = tregs(u, a)
        E(interleave([f"v_exp_f32 v{T+j}, v{T+j}" for j in range(8)],
            [f"v_pk_fma_f32 {v(up[j],2)}, {v(84+2*(j&1),2)}, {v(cb[j],2)}, {v(up[j],2)} op_sel_hi:[1,0,1]" for j in range(4)]
          + [f"v_pk_mul_f32 {v(gp[j],2)}, {v(gp[j],2)}, {v(up[j],2)}" for j in range(4)], 1))
        for j in range(4): A(f"v_pk_fma_f32 {v(T+2*j,2)}, {v(T+2*j,2)}, {v(cb[j]+2,2)}, {v(cb[j]+2,2)} op_sel_hi:[1,0,0]")
        nxt = stA(u, a+1) if a < 2 else []
        E(interleave([f"v_rcp_f32 v{T+j}, v{T+j}" for j in range(8)], nxt[:12], 2))
        for j in range(4): A(f"v_pk_mul_f32 {v(T+2*j,2)}, {v(T+2*j,2)}, {v(gp[j],2)}")
        for j in (0, 2, 1, 3): A(f"v_cvt_pk_bf16_f32 v{P+j}, v{T+2*j}, v{T+2*j+1}")
        E(nxt[12:14])
        sk = L("GS")
        A(f"s_bitcmp1_b32 s11, {3*a+u}\nv_permlane16_swap_b32 v{P}, v{P+2}\nv_permlane16_swap_b32 v{P+1}, v{P+3}\ns_cbranch_scc0 {sk}")
        A(f"buffer_store_dwordx4 {v(P,4)}, v1, {H}, s{80+u} offen offset:{1024*a} sc1")
        A.label(sk)
        E(nxt[14:])
    if u == 0: stamp((2, 3))
stamp((4, 1), (4, 3))
A("L_PUB:")
gsig()
A("L_PUB2:\ns_waitcnt vmcnt(0)"); flagstore(2)
A("s_branch L_SPART")
if OPT["dead"]:
    A("L_DEAD:\ns_barrier\ns_add_u32 s83, s83, 1\ns_cmp_lt_u32 s83, 7\ns_cbranch_scc1 L_DEAD")
    A(ldsadd(40, 32, 33)); flagstore(0); flagstore(1)
    A("s_branch L_PUB")

A("L_QKV:")
RV, MV, ONE, G = 88, 8, 76, 8
cst = f"""s_mov_b32 s70, {hx(1.4426950408889634)}
s_mov_b32 s71, {hx(1.4426950408889634)}
s_mov_b32 s72, {hx(1e-6)}
s_mov_b32 s73, {hx(1e-6)}
s_mov_b32 s74, 0xffff0000
s_mov_b32 s75, 0xffff0000
s_sub_u32 s87, s7, 15
s_lshl_b32 s87, s87, 1
s_add_u32 s87, s87, s14
s_mul_i32 s77, s87, {24*3072}
s_add_u32 s77, s77, {WS_KV}
s_lshl_b32 s78, s6, 1
s_add_u32 s78, s78, s13
s_mul_i32 s78, s78, 3072
s_add_u32 s78, s78, s77""".split("\n")
wb4 = lambda buf: 64 + 16*buf
mainloop('Q', treads('Q', 0, (2, 3, 4, 5), wb4) + cst)
rvr = lambda a: f"ds_read_b128 {v(RV+4*a,4)}, v7 offset:{64*a}"
mvr = lambda a: f"ds_read_b128 {v(MV+4*a,4)}, v7 offset:{MR-RR+64*a}"
x3 = ["v_and_b32 v75, 15, v0", "v_lshl_add_u32 v75, v75, 2, s79"] + [f"ds_read_b32 v{72+j}, v75 offset:{128+64*j}" for j in range(4)] \
   + [f"v_mov_b32 v{ONE+j}, 0x3f803f80" for j in range(4)] + [rvr(5), rvr(4)]
q0 = treads('Q', 0, (0, 1), wb2)
x3 += q0[:4] + [mvr(5), mvr(4), "s_waitcnt lgkmcnt(4)"] + q0[4:]
assert len(x3) > 23
tphase('Q', (2, 3, 4, 5), wb4, True, False, x3, {}, rows=(5, 4, 3, 2, 1, 0))
A("s_waitcnt lgkmcnt(6)")
for a in (3, 2, 1, 0): A(rvr(a)); A(mvr(a))
stamp((1, 3))
def phi2(pairs, T, dst):
    for j in range(8): A(f"v_pk_mul_f32 {v(T[j],2)}, {v(pairs[j],2)}, s[70:71]")
    for j in range(16):
        r = pairs[j//2] + (j & 1); t_ = T[j//2] + (j & 1)
        A(f"v_exp_f32 v{t_}, v{t_} clamp\nv_max_f32 v{r}, s72, v{r}")
    for j in range(8): A(f"v_pk_add_f32 {v(T[j],2)}, {v(T[j],2)}, {v(pairs[j],2)}")
    for j in range(8): A(f"v_cvt_pk_bf16_f32 v{dst[j]}, v{T[j]}, v{T[j]+1}")
prs = lambda a, j0: [acc(2*a + (j % 4)//2, j0 + j//4) + 2*(j & 1) for j in range(8)]
KVa, KVb, Za, Zb = acc(5,2), acc(5,3), acc(5,4), acc(5,5)
for a in (2, 1, 0):
    if a == 1: A("s_bitcmp1_b32 s11, 0\ns_cbranch_scc0 L_KVS\ns_waitcnt lgkmcnt(0)")
    off = lambda j: 4*(2*a + (j % 4)//2) + 2*(j & 1)
    pv = prs(a, 4); pk = prs(a, 2)
    PV = acc(2*a, 4); PK = acc(2*a, 2)
    TL = [acc(2*a+1, 4) + 2*j for j in range(4)] + [80 + 2*j for j in range(4)]
    for j in range(8): A(f"v_pk_mul_f32 {v(pv[j],2)}, {v(pv[j],2)}, {v(RV+off(j),2)}")
    for j in range(8): A(f"v_pk_fma_f32 {v(pk[j],2)}, {v(pk[j],2)}, {v(RV+off(j),2)}, s[72:73]")
    for j in range(8): A(f"v_pk_fma_f32 {v(pv[j],2)}, {v(MV+off(j),2)}, v[74:75], {v(pv[j],2)} op_sel:[0,{j//4},0] op_sel_hi:[1,{j//4},1]")
    for j in range(8): A(f"v_pk_fma_f32 {v(pk[j],2)}, {v(MV+off(j),2)}, v[72:73], {v(pk[j],2)} op_sel:[0,{j//4},0] op_sel_hi:[1,{j//4},1]")
    for j in range(8): A(f"v_cvt_pk_bf16_f32 v{PV+j}, v{pv[j]}, v{pv[j]+1}")
    phi2(pk, TL, [PK+j for j in range(8)])
    c0 = 0 if a == 2 else None
    A(mf16(KVa, PK, PV, c0)); A(mf16(KVb, PK+4, PV+4, c0)); A(mf16(Za, ONE, PK, c0)); A(mf16(Zb, ONE, PK+4, c0))
    if a: A("s_nop 3")
A("L_KVS:\ns_waitcnt lgkmcnt(0)")
G = 96
for j in (3, 7, 11): A(f"v_mov_b32 v{G+j}, {TAG}")
A("s_nop 4")
for j in range(4): A(f"v_permlane16_swap_b32 v{KVa+j}, v{KVb+j}")
for j in range(8): A(f"v_mov_b32 v{G+4*(j//3)+j%3}, v{KVa+j}")
A(f"v_cndmask_b32 v{G+10}, v{Za}, v{Zb}, s[74:75]")
for g_ in range(3): A(f"buffer_store_dwordx4 {v(G+4*g_,4)}, v6, {WS}, s78 offen offset:{1024*g_} sc1")
stamp((2, 3))
CTr = lambda p: acc(p, 2)
rsetup = cap(lambda: (A(f"""s_lshr_b32 s79, s6, 1
s_lshl_b32 s86, s79, 8
s_add_u32 s86, s86, s77
v_lshrrev_b32 v7, 4, v0
v_mul_u32_u24 v7, 3072, v7
v_and_b32 v{acc(0,5)}, 15, v0
v_lshl_add_u32 v7, v{acc(0,5)}, 4, v7
v_add_u32 v7, s86, v7"""), [A(f"v_mov_b32 v{CTr(5)+j}, " + (TAG if j % 4 == 3 else "0")) for j in range(12)],
    A("s_and_b32 s78, s6, 9\ns_add_u32 s78, s78, 2")))
tphase('Q', (0, 1), wb2, False, True, [], {0: rsetup[:11], 1: rsetup[11:] + [rsrd(a) for a in (5, 4, 3, 2)],
       2: [rsrd(1), rsrd(0), "ds_read_b128 v[80:83], v35", "ds_read_b128 v[84:87], v35 offset:64"]}, rows=(5, 4, 3, 2, 1, 0))
A("s_nop 3")
stamp((3, 1))
def rloads():
    for p in range(6):
        A(f"s_mov_b32 s86, {12288*p}")
        if p == 5: A("s_mov_b32 exec_hi, 0")
        for g_ in range(3): A(f"buffer_load_dwordx4 {v(CTr(p)+4*g_,4)}, v7, {WS}, s86 offen offset:{1024*g_} sc1")
    A("s_mov_b32 exec_hi, -1")
def rissue(t):
    if OPT["rq"] == t:
        A("s_cmp_eq_u32 s78, s4\ns_cbranch_scc0 L_NORI"); rloads(); stamp((4, 3)); A("L_NORI:")
rissue(0)
for a in (2, 1, 0):
    if a == 1: A("s_bitcmp1_b32 s11, 0\ns_cbranch_scc0 L_PUB")
    D_ = 40 + 8*a
    pq_ = prs(a, 0); cbq = lambda j: v(CB+4*(2*a + (j % 4)//2), 2)
    for j in range(8): A(f"v_pk_fma_f32 {v(pq_[j],2)}, {v(80+4*(j//4)+2*(j&1),2)}, {cbq(j)}, {v(pq_[j],2)} op_sel_hi:[1,0,1]")
    for j in range(8): A(f"v_pk_fma_f32 {v(pq_[j],2)}, {v(pq_[j],2)}, {cbq(j)}, s[72:73] op_sel:[0,1,0] op_sel_hi:[1,1,1]")
    phi2(pq_, [8+2*j for j in range(8)], [D_+j for j in range(8)])
    for hd in range(2):
        A(f"v_permlane16_swap_b32 v{D_+4*hd}, v{D_+4*hd+2}\nv_permlane16_swap_b32 v{D_+4*hd+1}, v{D_+4*hd+3}")
    A(f"buffer_store_dwordx4 {v(D_,4)}, v1, {H}, 0 offen offset:{1024*a} sc1")
    A(f"buffer_store_dwordx4 {v(D_+4,4)}, v1, {H}, s81 offen offset:{1024*a} sc1")
    rissue(3-a)
stamp((4, 1))
A("s_cmp_eq_u32 s78, s4\ns_cbranch_scc0 L_PUB")
gsig()
f_addr(9)
A(f"s_mov_b32 s88, 0\ns_waitcnt vmcnt({2*(3-OPT['rq'])})\nL_KVC:")
tagcheck(8, 64, [CTr(n//3)+4*(n%3)+3 for n in range(18)])
A(f"""v_cmp_ne_u32 vcc, 0, v8
s_add_u32 s88, s88, 1
s_cmp_gt_u32 s88, {OPT['spin']}
s_cbranch_scc1 L_KVD
s_cbranch_vccz L_KVD""")
rloads()
A("s_waitcnt vmcnt(0)\ns_branch L_KVC\nL_KVD:")
note("s88", 3)
rr = lambda p, j: CTr(p) + 4*(j//3) + j % 3
RA, RB = 12, 64
for j in range(9): A(f"v_add_f32 v{RA+j}, v{rr(0,j)}, v{rr(1,j)}")
for p in range(2, 6):
    for j in range(9): A(f"v_add_f32 v{RA+j}, v{RA+j}, v{rr(p,j)}")
for sw in (16, 32):
    for j in range(9): A(f"v_mov_b32 v{RB+j}, v{RA+j}")
    for j in range(9): A(f"v_permlane{sw}_swap_b32 v{RA+j}, v{RB+j}")
    for j in range(9): A(f"v_add_f32 v{RA+j}, v{RA+j}, v{RB+j}")
A(f"""s_lshr_b32 s86, s79, 1
s_lshl_b32 s86, s86, 3
s_add_u32 s87, s86, 2
s_add_u32 s88, s86, 4
s_add_u32 s89, s86, 6
v_mov_b32_dpp v{RA+9}, v{RA+8} row_shl:1 row_mask:0xf bank_mask:0xf""")
for j in range(4): A(f"v_cvt_pk_bf16_f32 v{RB+j}, v{RA+2*j}, v{RA+1+2*j}")
A(f"""v_cvt_pk_bf16_f32 v{RA+9}, v{RA+8}, v{RA+9}
s_bitcmp1_b32 s79, 0
s_cselect_b64 s[80:81], -1, 0
s_xor_b64 s[80:81], s[80:81], s[74:75]""")
for j in range(4): A(f"v_readlane_b32 s{70+j}, v{RA+9}, s{86+j}")
for j in range(4): A(f"v_mov_b32 v{RB+4+j}, s{70+j}")
for j in range(4): A(f"v_cndmask_b32 v{RB+8+j}, v{RB+j}, v{RB+4+j}, s[80:81]")
A(f"""s_mov_b32 exec_hi, 0
buffer_store_dwordx4 {v(RB+8,4)}, v9, {WS}, 0 offen sc1
s_mov_b32 exec_hi, -1
s_waitcnt vmcnt(1)""")
stamp((5, 3))
flagstore(2)

A("L_SPART:")
if OPT["sprio"] != OPT["prio"]: A(f"s_setprio {OPT['sprio']}")
stamp((5, 1), (3, 3))
xres_addr(1, 8); xres_load()
w2addr(4, 8, False)
A(f"""s_lshl_b32 s86, s4, 3
s_add_u32 s86, s86, 86
s_lshl_b32 s86, s86, 16
s_lshl_b32 s87, s84, 11
s_add_u32 s86, s86, s87
v_lshl_add_u32 v2, v0, 4, s86
s_mul_i32 s88, s84, 43
s_lshr_b32 s88, s88, 7
s_mul_i32 s88, s88, 23
s_lshl_b32 s87, s4, 1
s_add_u32 s88, s88, s87
s_add_u32 s88, s88, 15
s_lshl_b32 s88, s88, 12
s_add_u32 s88, s88, {WS_FLAG}
v_and_b32 v3, 7, v0
v_lshl_add_u32 v3, v3, 10, s88
s_lshl_b32 s74, s4, 13
s_add_u32 s74, s74, {WS_F}
v_lshl_add_u32 v8, v0, 4, s74
s_lshl_b32 s86, s4, 2
s_add_u32 s86, s86, {LF}
v_mov_b32 v10, s86
s_mov_b32 s72, {hx(1e-6)}
s_movk_i32 s73, 4096
s_mov_b32 s89, 0""")
if OPT["warm"]:
    assert OPT["sd"] == 8
    A("s_mov_b32 s75, 1\ns_mov_b64 exec, 0\ns_branch L_PIPE\nL_WBACK:\ns_mov_b32 s75, 0\ns_mov_b64 exec, -1")
stamp((1, 4))
if OPT['sdelay']: A(f"s_sleep {OPT['sdelay']}")
if OPT["comb"]:
    A("v_add_u32 v3, 48, v10"); spin_lds(3, 9)
else: spin_flag(3, 9, 8, 2)
note("s88", 4)
stamp((6, 1), (2, 4))
SD = OPT["sd"]
rho8()
A("s_lshl_b32 s78, s12, 2\ns_lshr_b32 s79, s12, 4")
def pqload(k):
    return [f"s_xor_b32 s86, s78, {k*65536}",
            f"buffer_load_dwordx4 {v(16+8*k,4)}, v2, {H}, s86 offen sc1",
            f"buffer_load_dwordx4 {v(20+8*k,4)}, v2, {H}, s86 offen offset:1024 sc1"]
def floads():
    for k in range(8):
        if k % 2 == 0: A(f"s_xor_b32 s86, s79, {k*1024}")
        A(f"buffer_load_dwordx4 {v(80+4*k,4)}, v8, {WS}, s86 offen offset:{1024*(k%2)} sc1")
if OPT["ffirst"]: floads()
for k in range(SD):
    if OPT["sdep"]: A(f"s_waitcnt vmcnt({OPT['sdep']-2})")
    E(pqload(k))
if OPT["ffirst"]: A(f"s_waitcnt vmcnt({2*SD})\ns_branch L_FC")
if OPT["hints"]:
    A(f"s_lshl_b32 s86, s4, 14\ns_add_u32 s86, s86, {WS_FF}\nv_lshl_add_u32 v9, v0, 10, s86")
    spin_flag(9, 11, 16)
else: A(f"s_waitcnt vmcnt({OPT['fafter']})")
A("s_branch L_FL\nL_FQ:\ns_sleep 8\nL_FL:")
floads()
A("s_waitcnt vmcnt(0)\nL_FC:\ns_add_u32 s89, s89, 1")
E(vmax(112, [80+4*k for k in range(8)]))
A(f"""v_cmp_eq_u32 vcc, -1, v112
s_cmp_gt_u32 s89, {OPT['spin']}
s_cbranch_scc1 L_FPD
s_cbranch_vccnz L_FQ
L_FPD:""")
note("s89", 4); note("s89", 1)
stamp((6, 3), (3, 4))
woloc = lambda k: (1, k) if k < 6 else (2, k-2)
def Om(k): return [mfma(128+32*(k&1)+16*r, 80+4*k, 16+8*k+4*r, 0) for r in range(2)]
def Vv(k):
    o = []
    D = [128+32*(k&1)+16*r for r in range(2)]
    nd = [((d, d+8) if k % 2 == 0 else (d+8, d)) for d in D]
    for num, den in nd: o.append(f"v_add_f32 v{den}, s72, v{den}")
    for num, den in nd: o.append(f"v_rcp_f32 v{den}, v{den}")
    for r, (num, den) in enumerate(nd):
        if OPT["spk"]:
            for j in range(4): o.append(f"v_pk_mul_f32 {v(num+2*j,2)}, {v(num+2*j,2)}, {v(den,2)} op_sel_hi:[1,0]")
        else:
            for j in range(8): o.append(f"v_mul_f32 v{num+j}, v{num+j}, v{den}")
        for j in range(4): o.append(f"v_cvt_pk_bf16_f32 v{16+8*k+4*r+j}, v{num+2*j}, v{num+2*j+1}")
    return o
def Sm(k): return [mfmaH(192+32*r+16*c, 112+8*(k&1)+4*c, 16+8*k+4*r, 0 if k <= OPT['h16'] else None, k & 1) for r in range(2) for c in range(2)]
issued = [SD]
def need(k):
    o = [f"s_waitcnt vmcnt({2*(issued[0]-1-k)})"]
    more = []
    if issued[0] < 8: more = pqload(issued[0]); issued[0] += 1
    return o, more
A('L_PIPE:')
E(w2read(112, *woloc(0), 4, False))
for k in (0, 1):
    w_, m_ = need(k); E(w_ + Om(k) + m_)
E(Vv(0))
for k in range(8):
    A("s_waitcnt lgkmcnt(0)")
    fill = (w2read(112+8*((k+1)&1), *woloc(k+1), 4, False) + Vv(k+1)) if k+1 < 8 else []
    if k == 7:
        fill = cap(lambda: (wraddr(80, False), rdaddr(4, False, 1, 88), A(f"s_lshl_b32 s86, s4, 11\ns_add_u32 s86, s86, {GB}\nv_lshl_add_u32 v9, v0, 4, s86"),
            [A(f"v_lshlrev_b32 v{112+2*j}, 16, v{12+j}\nv_and_b32 v{113+2*j}, 0xffff0000, v{12+j}") for j in range(4)]))
    NF = 16 if OPT['spk'] else 20
    if k == 7: NF = 28
    E(interleave(Sm(k), fill[:NF], NF//4))
    if k+2 < 8:
        w_, m_ = need(k+2); E(w_); E(interleave(Om(k+2), fill[NF:] + m_, 6))
    else: E(fill[NF:])
    if k == 3: stamp((4, 4))
if OPT["warm"] == 1: A("s_cmp_eq_u32 s75, 1\ns_cbranch_scc1 L_WBACK")
stamp((7, 1), (5, 4))
final(False)
stamp((6, 4))
if OPT["fin"] == 0: A("s_barrier\nds_read_b128 v[88:91], v9\nds_read_b128 v[92:95], v9 offset:1024\ns_branch L_FIN2")
else: A("s_barrier\ns_branch L_FIN2")

A("L_FINAL:")
stamp((6, 4))
A("s_barrier")
if OPT["fin"] == 1: A("ds_read_b128 v[88:91], v109\nds_read_b128 v[92:95], v109 offset:1024")
A("L_FIN2:")
stamp((7, 3), (7, 4))
rd4(48, 4)
A("s_waitcnt lgkmcnt(0)")
sum4(48)
if OPT["fin"] == 1:
    for j in range(4): A(f"v_pk_mul_f32 {v(56+2*j,2)}, {v(48+2*j,2)}, s[70:71]")
    E(interleave([f"v_exp_f32 v{56+j}, v{56+j}" for j in range(8)], [f"v_pk_mul_f32 {v(88+2*j,2)}, {v(88+2*j,2)}, {v(48+2*j,2)}" for j in range(4)], 1))
    for j in range(4): A(f"v_pk_add_f32 {v(56+2*j,2)}, {v(56+2*j,2)}, 1.0 op_sel_hi:[1,0]")
    for j in range(8): A(f"v_rcp_f32 v{48+j}, v{56+j}")
for j in range(4): A(f"v_pk_fma_f32 {v(48+2*j,2)}, {v(48+2*j,2)}, {v(88+2*j,2)}, {v(112+2*j,2)}")
for j in range(4): A(f"v_cvt_pk_bf16_f32 v{24+j}, v{48+2*j}, v{49+2*j}")
if OPT["warm"] == 2: A("s_cbranch_execz L_WBACK")
A(f"""buffer_store_dwordx4 v[24:27], v1, {OUT}, 0 offen {['', 'sc1', 'nt', 'sc0 sc1'][OPT['osc']]}
s_add_u32 s86, s2, s3
s_cmp_eq_u32 s86, 0
s_cbranch_scc0 L_NOBUMP
v_mov_b32 v2, 0
v_mov_b32 v3, {TAG}
buffer_store_dword v3, v2, {WS}, 0 offen sc1
L_NOBUMP:""")
if OPT["stamps"]:
    A("s_waitcnt vmcnt(0)")
    stamp((8, 0))
    A(f"""s_memrealtime s[68:69]
s_waitcnt lgkmcnt(0)
s_mov_b32 s101, s68""")
    if OPT["diag"]:
        A(f"""s_cmp_lg_u32 s2, 64
s_cbranch_scc1 L_END
s_cmp_lg_u32 s3, {OPT['dwave']}
s_cbranch_scc1 L_END
s_sub_u32 s86, s{92+OPT['diag']}, s34
s_lshl_b32 s86, s86, 2
s_min_u32 s86, s86, 20000
L_DSPIN:
s_memrealtime s[68:69]
s_waitcnt lgkmcnt(0)
s_sub_u32 s87, s68, s101
s_cmp_lt_u32 s87, s86
s_cbranch_scc1 L_DSPIN
s_endpgm""")
    A(f"""s_lshl_b32 s86, s2, 3
s_add_u32 s86, s86, s3
s_lshl_b32 s86, s86, 6
s_add_u32 s86, s86, {WS_DBG}
v_mov_b32 v2, s86""")
    for i in range(10): A(f"v_mov_b32 v3, s{92+i}\nbuffer_store_dword v3, v2, {WS}, 0 offen offset:{4*i}")
    A(f"v_mov_b32 v3, s34\nbuffer_store_dword v3, v2, {WS}, 0 offen offset:40")
    A(f"v_mov_b32 v3, s35\nbuffer_store_dword v3, v2, {WS}, 0 offen offset:44")
A("L_END:\ns_endpgm")

lines, errs = pad(A.lines)
for e in errs: print("HAZARD:", e, file=sys.stderr)
hdr = open("cdna_kernels/%s.s.ref" % NAME).read().split("; Override launch")[0]
out = hdr + f"""; Fused single-launch kernel, emitted by my own generator script (gen/gen.py); 256 WGs x 8 waves, 1 WG per CU.
;  Phase 1: 192x192 tiles of x @ [w_gate|w_up] (GU role) or x @ [wq|wk|wv] (QKV role), K streamed through a
;    3-slot LDS ring by LDS-DMA (waves 0-1), MFMA 16x16x32 in waves 4-7. LayerNorm is applied after the GEMM:
;    r*(acc - mean*colsum(W)); row stats and column sums are computed once and shared through tagged granules.
;    GU epilogue: gelu(g)*u -> h fragments; QKV epilogue: phi(k)^T v / sum phi(k) partials, phi(q) fragments.
;  Phase 2: 64x64 output tiles: waves 0-3 y = h @ w_down (K split), waves 4-7 o = phi(q) kv / den, s = o @ wo,
;    LDS reduction, out = x + s * silu(y).
;  Hand-offs: write-through (sc1) stores, drained, then a flag line holding this launch's tag (tag = word found at
;    d_ws[0] + constant, written back at the end); readers use sc1 loads. All waits are bounded.
; @launch grid=(256,1,1) block=(512,1,1) lds={LDS}
.amdgcn_target "amdgcn-amd-amdhsa--gfx950"
.text
.globl {NAME}_kernel
.p2align 8
.type {NAME}_kernel,@function
{NAME}_kernel:
""" + render(lines) + f""".section .rodata,"a"
.p2align 6
.amdhsa_kernel {NAME}_kernel
  .amdhsa_next_free_vgpr 256
  .amdhsa_next_free_sgpr 102
  .amdhsa_accum_offset 256
  .amdhsa_group_segment_fixed_size 0
  .amdhsa_kernarg_size 80
  .amdhsa_user_sgpr_count 2
  .amdhsa_user_sgpr_kernarg_segment_ptr 1
  .amdhsa_system_sgpr_workgroup_id_x 1
.end_amdhsa_kernel
"""
open(sys.argv[1], "w").write(out)
```

```python
import sys, struct
from asmlib import *
NAME = "recurrent_scan__linear_attn_block__glu_gated_geglu__prompt"
OPT = dict(stamps=0, rot=2, prio=1, pfcode=1, spin=1<<17, thr=4, unthr=41, n7=1, ca=14, cb=22, h=5, mix=0, sub=0,
           psleep=2, ydep=5, sdep=0, w2late=0, p2map=1, stage=1, sprio=1, ydelay=-1, sdelay=0, fdelay=0, rdelay=0, xlate=0, now2=0, sd=3, apoll=0, fgate=1, rt=1, zf=1, nr=0, r0=3, lred=0, prew=0, hints=0, comb=1, fafter=0, h16=0, gate=4, ffirst=1, warm=0, nodma=0, redearly=1, xz=1, gmix=0, qmix=0, qnop=0, bpos=0, rgap=3, spk=0, diag=0, dwave=4, nrep=2, nl=4, p1=1, p2=7, osc=0, gpos=1, c2=9, yprio=2, ydrop=22, ypost=0, mord=0, adapt=1, ypk=0, nb=3, pf2=-1, drot=0, xfirst=1, nostat=0, w1pf=-9, slow=0, dead=1, qg=0, rq=1, tfrom=6, nc=0, thr2=4, nraw=6, krot=0, slo=0, shi=0, sn=4, nearly=0, e0=3, e1=6, fin=0, c1=-1, pre0=11, pe=-1)
for a in sys.argv[2:]:
    k, v_ = a.split("="); assert k in OPT, k; OPT[k] = int(v_, 0)
def f2u(x): return struct.unpack("<I", struct.pack("<f", x))[0]
def hx(x): return "0x%08x" % f2u(x)

SLOT = 49152; XW = 24576; UPOFF = 12288; MISC = 3*SLOT; LDS = 163840
RS = MISC; RR = MISC+3072; CF = MISC+3840; MR = MISC+4608; LF = MISC+5376; GB = MISC+5632
Q = 12288
WS_RS = 0x10000; WS_CS = 0x20000; WS_FLAG = 0x300000; WS_FF = 0x60000; WS_DBG = 0x80000; WS_F = 0xC0000; WS_KV = 0x100000; WS_H = 0x800000
X="s[36:39]"; W="s[40:43]"; WS="s[44:47]"; H="s[48:51]"; WD="s[56:59]"; WO="s[60:63]"; OUT="s[64:67]"
TAG="s10"
def v(b, n=1): return f"v{b}" if n == 1 else f"v[{b}:{b+n-1}]"
def mfma(d, a, b, c=None):
    return f"v_mfma_f32_32x32x16_bf16 {v(d,16)}, {v(a,4)}, {v(b,4)}, " + ("0" if c == 0 else v(d,16))
def mfmaH(d, a, b, c, alt):
    if not OPT["h16"]: return mfma(d, a, b, c)
    return mf16(d+8*alt, a, b, c) + "\n" + mf16(d+8*alt+4, a ^ 4, b, c)
def mf16(d, a, b, c=None):
    return f"v_mfma_f32_16x16x32_bf16 {v(d,4)}, {v(a,4)}, {v(b,4)}, " + ("0" if c == 0 else v(d,4))
def bc(r): return v(r & ~1, 2), r & 1
_lab = [0]
def L(p="L"):
    _lab[0] += 1; return f"{p}_{_lab[0]}"
A = Asm()
def E(lst):
    for t in lst: A(t)
def cap(fn):
    n = len(A.lines); fn(); o = [t for _, t in A.lines[n:]]; del A.lines[n:]; return o
def stamp(*pairs):
    for i, st in pairs:
        if OPT["stamps"] == st or (OPT["stamps"] and st == 0):
            A(f"{'s_memrealtime' if (OPT['rt'] and i != 8) else 's_memtime'} s[68:69]\ns_waitcnt lgkmcnt(0)\ns_mov_b32 s{92+i}, s68")
def note(reg, st):
    if OPT["stamps"] == st: A(f"s_mov_b32 s35, {reg}")
def srd(name, lo, size, add=0):
    b = int(name[2:4])
    if add: A(f"s_add_u32 s{b}, s{lo}, {add}\ns_addc_u32 s{b+1}, s{lo+1}, 0")
    else: A(f"s_mov_b32 s{b}, s{lo}\ns_mov_b32 s{b+1}, s{lo+1}")
    A(f"s_mov_b32 s{b+2}, {size}\ns_mov_b32 s{b+3}, 0x20000")
def spin_flag(vaddr, vt, nl, kind=None, first=0):
    l1, l2 = L("POLL"), L("POLLD")
    A(f"""s_mov_b32 s88, {first}
s_mov_b64 exec, {hex((1<<nl)-1)}
{l1}:
s_and_b32 s87, s88, {OPT['nrep']-1}
s_lshl_b32 s87, s87, 7""")
    if kind: A(f"s_add_u32 s87, s87, {kind << 20}")
    A(f"""buffer_load_dword {v(vt)}, {v(vaddr)}, {WS}, s87 offen sc1
s_add_u32 s88, s88, 1
s_waitcnt vmcnt(0)
v_cmp_ne_u32 vcc, {TAG}, {v(vt)}
s_cmp_gt_u32 s88, {OPT['spin']}
s_cbranch_scc1 {l2}
s_cbranch_vccz {l2}
s_sleep {OPT['psleep']}
s_branch {l1}
{l2}:
s_mov_b64 exec, -1""")
def spin_lds(vaddr, vt, need=1):
    l1, l2 = L("LP"), L("LPD")
    A(f"""s_mov_b32 s86, 0
{l1}:
ds_read_b32 {v(vt)}, {v(vaddr)}
s_add_u32 s86, s86, 1
s_waitcnt lgkmcnt(0)
v_cmp_gt_u32 vcc, {need}, {v(vt)}
s_cmp_gt_u32 s86, {OPT['spin']*8}
s_cbranch_scc1 {l2}
s_cbranch_vccz {l2}
s_sleep 1
s_branch {l1}
{l2}:""")
def vmax(dst, regs_):
    o = []; r = list(regs_)
    if len(r) == 2: return [f"v_max_u32 v{dst}, v{r[0]}, v{r[1]}"]
    o.append(f"v_max3_u32 v{dst}, v{r[0]}, v{r[1]}, v{r[2]}"); r = r[3:]
    while r:
        if len(r) >= 2: o.append(f"v_max3_u32 v{dst}, v{dst}, v{r[0]}, v{r[1]}"); r = r[2:]
        else: o.append(f"v_max_u32 v{dst}, v{dst}, v{r[0]}"); r = r[1:]
    return o
def tagcheck(dst, tmp, regs_):
    for n, r in enumerate(regs_): A(f"v_xor_b32 v{dst if n == 0 else tmp+n}, {TAG}, v{r}")
    n = 1
    while n < len(regs_):
        if n+1 < len(regs_): A(f"v_or3_b32 v{dst}, v{dst}, v{tmp+n}, v{tmp+n+1}"); n += 2
        else: A(f"v_or_b32 v{dst}, v{dst}, v{tmp+n}"); n += 1

A(f"""s_cmp_ge_u32 s2, 256
s_cbranch_scc1 L_END
s_load_dwordx16 s[16:31], s[0:1], 0
s_load_dwordx2 s[32:33], s[0:1], 72""")
if OPT["stamps"]: A("s_memrealtime s[34:35]\ns_memtime s[68:69]")
A(f"""v_lshrrev_b32 v1, 6, v0
v_and_b32 v0, 63, v0
v_readfirstlane_b32 s3, v1
s_and_b32 s5, s2, 7
s_lshr_b32 s86, s2, 3""")
if OPT["p2map"] == 0:
    A("s_lshl_b32 s84, s5, 2\ns_lshr_b32 s87, s86, 3\ns_add_u32 s84, s84, s87\ns_and_b32 s85, s86, 7")
else:
    A("""s_lshr_b32 s84, s5, 1
s_lshl_b32 s84, s84, 3
s_lshr_b32 s87, s86, 2
s_add_u32 s84, s84, s87
s_and_b32 s85, s5, 1
s_lshl_b32 s85, s85, 2
s_and_b32 s87, s86, 3
s_add_u32 s85, s85, s87""")
A(f"""s_lshl_b32 s5, s5, 5
s_add_u32 s5, s5, s86
s_and_b32 s4, s3, 3
s_mov_b32 s12, 0
s_cmp_lt_u32 s5, 138
s_cbranch_scc0 L_BOT
s_mul_i32 s7, s5, 171
s_lshr_b32 s7, s7, 10
s_mul_i32 s86, s7, 6
s_sub_u32 s6, s5, s86
s_branch L_IDS
L_BOT:
s_cmp_ge_u32 s5, 253
s_cselect_b32 s12, 1, 0
s_cselect_b32 s86, 5, 0
s_sub_u32 s86, s5, s86
s_sub_u32 s86, s86, 138
s_mul_i32 s87, s86, 205
s_lshr_b32 s87, s87, 10
s_sub_u32 s7, 22, s87
s_mul_i32 s87, s87, 5
s_sub_u32 s6, s86, s87
s_add_u32 s6, s6, 6
L_IDS:
s_mov_b32 s90, s7""")
if OPT["mix"]:
    A("""s_mul_i32 s86, s7, 43
s_lshr_b32 s86, s86, 7
s_sub_u32 s87, s7, s86
s_lshl_b32 s88, s86, 1
s_sub_u32 s88, s87, s88
s_add_u32 s86, s86, 15
s_cmp_eq_u32 s7, 22
s_cselect_b32 s7, s86, s87
s_cmp_eq_u32 s88, 2
s_cselect_b32 s7, s86, s7""")
A(f"""s_mul_i32 s8, s6, 192
s_min_u32 s8, s8, 1856
s_mul_i32 s9, s7, 96
s_min_u32 s9, s9, 1280
s_cmp_lt_u32 s3, 4
s_cbranch_scc1 L_LOADER""")
def kwait():
    A("s_waitcnt lgkmcnt(0)\ns_load_dword s10, s[32:33], 0")
    if OPT["stamps"]: A("s_mov_b32 s92, s68")
    srd(X, 16, 2097152)
if OPT["prio"]: A(f"s_setprio {OPT['prio']}")
if OPT["pfcode"]:
    A(f"""s_getpc_b64 s[88:89]
L_PC:
s_sub_u32 s88, s88, L_PC-{NAME}_kernel
s_subb_u32 s89, s89, 0
s_lshr_b32 s86, s2, 3
s_lshl_b32 s86, s86, 3
s_lshl_b32 s87, s4, 1
s_add_u32 s86, s86, s87
v_and_b32 v3, 1, v0
v_add_u32 v3, s86, v3
v_lshlrev_b32 v3, 7, v3
v_min_u32 v3, L_END-{NAME}_kernel, v3
global_load_dword v47, v3, s[88:89]""")
A(f"""s_lshl_b32 s86, s5, 3
s_lshl_b32 s87, s4, 1
s_add_u32 s86, s86, s87
v_lshrrev_b32 v7, 5, v0
v_add_u32 v7, s86, v7
v_and_b32 v2, 31, v0
v_lshlrev_b32 v2, 4, v2
v_lshl_add_u32 v2, v7, 10, v2""")
kwait()
if not OPT["nostat"]: A(f"""buffer_load_dwordx4 v[8:11], v2, {X}, 0 offen
buffer_load_dwordx4 v[12:15], v2, {X}, 0 offen offset:512""")
stamp((1, 2))
A("s_branch L_COMPUTE\nL_LOADER:")

def w2addr(base, T, nat):
    a_, b_, c_, d_ = T, T+1, T+2, T+3
    A(f"""v_and_b32 v{a_}, 3, v0
v_bfe_u32 v{b_}, v0, 2, 2
v_bfe_u32 v{c_}, v0, 4, 1
v_lshrrev_b32 v{d_}, 5, v0
v_lshl_add_u32 v{d_}, v{d_}, {3 if nat else 2}, v{b_}
v_lshlrev_b32 v{d_}, 7, v{d_}
v_lshrrev_b32 v{b_}, 1, v{b_}
v_lshl_add_u32 v{c_}, v{b_}, 2, v{c_}
v_and_b32 v{b_}, 1, v{a_}
v_lshl_add_u32 v{c_}, v{b_}, 1, v{c_}
v_lshl_add_u32 v{d_}, v{c_}, 4, v{d_}
v_lshrrev_b32 v{a_}, 1, v{a_}
v_lshl_add_u32 v{d_}, v{a_}, 3, v{d_}
v_add_u32 v{base}, s76, v{d_}
v_xor_b32 v{d_}, 64, v{d_}
v_add_u32 v{base+1}, s76, v{d_}
v_add_u32 v{base+2}, {2*SLOT}, v{base}
v_add_u32 v{base+3}, {2*SLOT}, v{base+1}""")
def w2read(dst, slot, blk, ab, nat=True):
    o = []
    for c in range(2):
        for sec in range(2):
            ar = ab + c + (2 if slot == 2 else 0)
            off = (SLOT if slot == 1 else 0) + blk*2048 + sec*(512 if nat else 1024)
            o.append(f"ds_read_b64_tr_b16 {v(dst+4*c+2*sec,2)}, v{ar} offset:{off}")
    return o
def xres_addr(half, T):
    A(f"""s_lshl_b32 s86, s4, 4
s_lshl_b32 s87, s84, 6
s_add_u32 s86, s86, s87
s_add_u32 s86, s86, {8*half}
s_lshl_b32 s86, s86, 10
s_lshl_b32 s87, s85, 7
s_add_u32 s86, s86, s87
v_lshrrev_b32 v{T}, 3, v0
v_lshlrev_b32 v{T}, 10, v{T}
v_and_b32 v{T+1}, 7, v0
v_lshl_add_u32 v{T}, v{T+1}, 4, v{T}
v_add_u32 v1, s86, v{T}""")
def xres_load(late=0):
    if OPT["xlate"] == late: A(f"buffer_load_dwordx4 v[12:15], v1, {X}, 0 offen")
def p2setup():
    srd(WS, 32, 0x800000); srd(H, 32, 118*65536, WS_H); srd(WD, 28, 1376*1024); srd(WO, 20, 512*1024); srd(OUT, 30, 2097152)
    A(f"""v_lshrrev_b32 v24, 3, v0
v_lshlrev_b32 v24, 10, v24
v_and_b32 v25, 7, v0
v_bfe_u32 v26, v0, 4, 1
v_lshlrev_b32 v26, 2, v26
v_xor_b32 v25, v25, v26
v_lshl_add_u32 v24, v25, 4, v24
s_lshl_b32 s86, s85, 7
v_add_u32 v4, s86, v24
s_mul_i32 s87, s4, {3*16384}
v_add_u32 v2, s87, v4
s_add_u32 s87, s4, 84
s_lshl_b32 s87, s87, 14
v_add_u32 v3, s87, v4
s_lshl_b32 s87, s4, 17
v_add_u32 v4, s87, v4
s_mul_i32 s76, s4, {Q}
s_lshl_b32 s87, s84, 11
s_mul_i32 s86, s4, {3*65536}
s_add_u32 s86, s86, s87
v_lshl_add_u32 v6, v0, 4, s86
v_bfe_u32 v24, v0, 1, 3
v_lshlrev_b32 v24, 3, v24
s_lshr_b32 s86, s4, 1
s_lshl_b32 s86, s86, 2
s_and_b32 s90, s4, 1
s_add_u32 s86, s86, s90
v_add_u32 v24, s86, v24
v_min_u32 v24, 57, v24
v_cmp_eq_u32 vcc, 56, v24
v_cndmask_b32 v24, v24, 57, vcc
v_and_b32 v25, 1, v0
v_lshl_add_u32 v24, v25, 1, v24
s_lshl_b32 s86, s4, 3
s_add_u32 s86, s86, 44
v_add_u32 v25, s86, v0
v_cmp_lt_u32 vcc, 15, v0
v_cndmask_b32 v24, v24, v25, vcc
s_mul_i32 s86, s84, 43
s_lshr_b32 s86, s86, 7
s_mul_i32 s86, s86, {23*4096}
s_add_u32 s86, s86, {WS_FLAG}
v_lshl_add_u32 v5, v24, 10, s86
s_add_u32 s86, s4, 84
s_lshl_b32 s86, s86, 16
s_add_u32 s86, s86, s87
s_cmp_lt_u32 s4, 2
s_cselect_b32 s86, s86, 0x80000000
v_lshl_add_u32 v7, v0, 4, s86""")
    w2addr(8, 24, True); xres_addr(0, 24); rho8()
    A(f"s_waitcnt lgkmcnt(0)\ns_add_u32 {TAG}, {TAG}, 0x9E3779B9")
def wfrag_addr(dst, swc, T, lab):
    A(f"""v_and_b32 v{T}, 3, v0
v_bfe_u32 v{T+1}, v0, 2, 2
v_bfe_u32 v{T+2}, v0, 4, 1
s_cmp_ge_u32 s7, 15
s_cbranch_scc1 {lab}Q
v_lshrrev_b32 v{T+3}, 4, v0
v_lshl_add_u32 v{T+3}, v{T+3}, 3, v{T+1}
v_mul_u32_u24 v{T+3}, 192, v{T+3}
v_lshl_add_u32 v{T}, v{T}, 3, v{T+3}
v_add_u32 v{T}, {XW}, v{T}
s_mul_i32 s87, {swc}, 3
v_xor_b32 v{T+3}, s87, v{T+2}
v_lshl_add_u32 v{dst}, v{T+3}, 5, v{T}
s_add_u32 s87, s87, 1
v_xor_b32 v{T+3}, s87, v{T+2}
v_lshl_add_u32 v{dst+1}, v{T+3}, 5, v{T}
s_branch {lab}D
{lab}Q:
v_lshrrev_b32 v{T+3}, 5, v0
v_mul_u32_u24 v{T+3}, 3072, v{T+3}
v_lshl_add_u32 v{T+3}, v{T+1}, 7, v{T+3}
v_mul_u32_u24 v{T+4}, {UPOFF+32}, v{T+2}
v_lshrrev_b32 v{T+1}, 1, v{T+1}
v_xor_b32 v{T+1}, {swc}, v{T+1}
v_lshl_add_u32 v{T+4}, v{T+1}, 6, v{T+4}
v_lshl_add_u32 v{T}, v{T}, 3, v{T+3}
v_add_u32 v{T}, {XW}, v{T}
v_add_u32 v{dst}, v{T}, v{T+4}
v_xor_b32 v{dst+1}, 32, v{dst}
{lab}D:""")
def woff(role, s_, j, sec):
    if role == 'G':
        jj = j % 3
        return jj & 1, s_*6144 + sec*768 + (j//3)*UPOFF + (64 if jj == 2 else 0)
    return j & 1, s_*6144 + (j//2)*1024 + sec*512
def ksoff(kd): return 12*(kd % 7) + kd//7
S2R = [('o',6+k,2,4+k) for k in range(2)] + [('d',12+k,2,k) for k in range(4)]
S0R = [('d',16+k,0,k) for k in range(6)]
items = [('d',k,2,k) for k in range(6)] + [('d',6+k,2,k) for k in range(6)] + S2R + [('o',k,1,k) for k in range(6)] + S0R
N7 = OPT["n7"]
def rho8():
    if OPT["krot"]: A("s_add_u32 s12, s84, s85\ns_and_b32 s12, s12, 3\ns_lshl_b32 s12, s12, 15")
    else: A("s_mov_b32 s12, 0")
def ktable():
    if OPT["krot"]:
        A("""s_lshl1_add_u32 s86, s85, s84
s_mul_i32 s87, s86, 37
s_lshr_b32 s87, s87, 8
s_mul_i32 s87, s87, 7
s_sub_u32 s86, s86, s87""")
    else: A("s_mov_b32 s86, 0")
    A(f"s_mul_i32 s77, s86, {12*16384}")
    for i in range(1, 7):
        A(f"s_add_u32 s{77+i}, s{76+i}, {12*16384}\ns_cmp_eq_u32 s{77+i}, {84*16384}\ns_cselect_b32 s{77+i}, 0, s{77+i}")
def w2ops(kind, k, dst, thr=None):
    nm = kind + str(k)
    if kind == 'o': va, S_, so = 4, WO, f"s_xor_b32 s86, s12, {k*16384}"
    elif k < 21: va, S_, so = 2, WD, f"s_add_u32 s86, s{77 + k % 7}, {(k//7)*16384}"
    else: va, S_, so = 3, WD, "s_mov_b32 s86, 0"
    if isinstance(dst, tuple):
        pre = f"s_add_u32 m0, s76, {dst[0]*SLOT + dst[1]*2048}\n{so}\ns_add_u32 s87, s86, 7168"
        i1 = f"buffer_load_dwordx4 v{va}, {S_}, s86 offen lds"; i2 = f"buffer_load_dwordx4 v{va}, {S_}, s87 offen offset:1024 lds"
    else:
        pre = f"{so}\ns_add_u32 s87, s86, 8192"
        i1 = f"buffer_load_dwordx4 {v(dst,4)}, v{va}, {S_}, s86 offen"; i2 = f"buffer_load_dwordx4 {v(dst+4,4)}, v{va}, {S_}, s87 offen"
    tw = f"s_waitcnt vmcnt({thr})\n" if thr is not None else ""
    return [pre, f"VM {nm}a|{tw}{i1}", f"VM {nm}|{tw}{i2}"]
NE = OPT["nearly"]
def rawblocks():
    steps = list(range(OPT["e0"], OPT["e1"])); n = len(steps)
    for i, st in enumerate(steps):
        its = range(NE*i//n, NE*(i+1)//n)
        if not len(its): continue
        sk = L("RW")
        A(f"s_cmp_eq_u32 s83, {st}\ns_cbranch_scc0 {sk}")
        for k in its:
            for t in w2ops('o', k, 192+8*k): A(t.split("|")[-1])
        A.label(sk)
def w2item(n):
    for t in w2ops(items[n][0], items[n][1], items[n][2:]): A(t.split("|")[-1])

A(f"""s_cmp_ge_u32 s3, 2
s_cbranch_scc1 L_SIDE
s_add_u32 s79, s6, s90""")
R_ = OPT["drot"] or OPT["rot"]
A(f"s_and_b32 s79, s79, {R_-1}\ns_lshl_b32 s79, s79, { {1:0, 2:2, 4:1, 8:0}[R_] }")
A(f"""v_lshrrev_b32 v24, 3, v0
v_and_b32 v25, 7, v0
v_lshrrev_b32 v26, 4, v0
v_xor_b32 v27, v25, v26
s_mul_i32 s86, s4, 96
s_add_u32 s86, s86, s8
s_lshl_b32 s86, s86, 10
v_lshl_add_u32 v16, v24, 10, s86
v_lshl_add_u32 v16, v27, 4, v16
v_xor_b32 v17, 64, v16
v_add_u32 v18, {2*7168}, v16
v_add_u32 v19, {3*7168}, v17
v_add_u32 v17, 7168, v17
s_mul_i32 s74, s4, 12288
""")
XG = ["s70", "s71", "s72"]; WL = ["s52", "s53", "s54", "s55"]; WG = ["s73", "s77", "s14", "s15"]
sh = {2: 1, 4: 2, 8: 0, 1: 0}[R_]
if OPT["sub"]:
    A(f"""s_lshr_b32 s86, s90, {sh}
s_mul_i32 s87, s86, 43
s_lshr_b32 s87, s87, 7
s_mul_i32 s87, s87, 3
s_sub_u32 s86, s86, s87
""")
else:
    A("s_mov_b32 s86, 0")
A("""s_lshl_b32 s70, s86, 12
s_add_u32 s71, s70, 4096
s_cmp_eq_u32 s71, 12288
s_cselect_b32 s71, 0, s71
s_add_u32 s72, s70, s71
s_sub_u32 s72, 12288, s72""")
XN = ["s11", "s13", "s91"]
A(f"s_lshl_b32 s86, s4, 4\ns_add_u32 s86, s86, s6\ns_cmp_eq_u32 s86, 10\ns_cselect_b32 s88, {8192 if OPT['xz'] else 0}, 0\ns_cmp_eq_u32 s12, 1\ns_cselect_b32 s88, {65536 if OPT['xz'] else 0}, s88")
for g in range(3): A(f"s_cmp_lt_u32 {XG[g]}, s88\ns_cselect_b32 {XN[g]}, 0, 2097152")
A("s_lshl_b32 s80, s79, 7\ns_mov_b32 s88, s74")
kwait()
stamp((1, 2))
def issue_head():
    A(f"""s_lshl_b32 s80, s79, 7
s_mul_i32 s81, s79, s82
s_lshl_b32 s81, s81, 2
s_add_u32 s88, s78, s74
s_add_u32 s89, s78, s75""")
ORDER = ["x0", "w0", "x1", "w1", "x2", "w2", "w3"]
def issue_part(lo, hi, order=None):
    n = 0
    for it in (order or ORDER[lo:hi]):
        g = int(it[1])
        if it[0] == 'x':
            A(f"s_add_u32 m0, s88, {XG[g]}\ns_lshl3_add_u32 s86, {XG[g]}, s80\ns_mov_b32 s38, {XN[g]}")
            for q in range(4): A(f"buffer_load_dwordx4 v{16+q}, {X}, s86 offen offset:{1024*q} lds")
            n += 4
        else:
            A(f"s_add_u32 m0, s89, {WL[g]}\ns_add_u32 s87, s81, {WG[g]}")
            for j in range(3): A(f"buffer_load_dwordx4 v{20+j}, {W}, s87 offen offset:{1024*j} lds")
            n += 3
    return n
def issue_tail():
    A(f"""s_add_u32 s79, s79, 1
s_and_b32 s79, s79, 7
s_add_u32 s78, s78, {SLOT}
s_cmp_eq_u32 s78, {3*SLOT}
s_cselect_b32 s78, 0, s78""")
HH = OPT["h"]
issue_part(0, 0, ["x0", "x1", "x2"][:3 if OPT["xfirst"] == 1 else 1])
A(f"""s_mul_i32 s75, s4, {UPOFF}
s_add_u32 s75, s75, {XW}
s_mov_b32 s43, 0x20000
s_mov_b32 s78, 0
s_cmp_ge_u32 s7, 15
s_cbranch_scc1 L_LQKV
s_mov_b32 s42, {512*2752}
s_mov_b32 s82, {16*2752}
s_movk_i32 s86, 0x1556
s_movk_i32 s87, 2752
s_lshl_b32 s88, s9, 1
s_cmp_eq_u32 s7, 14
s_cselect_b32 s89, {8 if OPT['zf'] else 0}, 0
s_cmp_eq_u32 s12, 1
s_cselect_b32 s89, {12 if OPT['zf'] else 0}, s89
v_mov_b32 v28, 0x80000000""")
for i in range(3):
    A(f"""v_add_u32 v24, {64*i}, v0
v_mul_u32_u24 v25, s86, v24
v_lshrrev_b32 v25, 16, v25
v_mul_u32_u24 v26, 12, v25
v_sub_u32 v24, v24, v26
v_lshrrev_b32 v26, 2, v25
v_and_b32 v26, 2, v26
v_xor_b32 v24, v24, v26
v_cmp_gt_u32 vcc, s89, v24
v_mul_u32_u24 v25, s87, v25
v_lshl_add_u32 v24, v24, 4, v25
v_add_u32 v24, s88, v24
v_subrev_u32 v24, {1024*i}, v24
v_cndmask_b32 v{20+i}, v24, v28, vcc""")
A(f"""s_branch L_LGO
L_LQKV:
s_mov_b32 s42, {512*3072}
s_mov_b32 s82, {16*3072}
s_sub_u32 s87, s7, 15
s_lshl_b32 s87, s87, 7
s_mul_i32 s88, s4, {8*3072}
s_add_u32 s87, s87, s88
v_mul_u32_u24 v24, 3072, v24
v_and_b32 v26, 1, v26
v_lshlrev_b32 v26, 2, v26
v_xor_b32 v25, v25, v26
s_lshl_b32 s88, s4, 1
v_xor_b32 v25, s88, v25
v_lshl_add_u32 v20, v25, 4, v24
v_add_u32 v20, s87, v20
v_mov_b32 v21, v20
v_mov_b32 v22, v20
L_LGO:""")
A(f"s_lshr_b32 s87, s6, {sh}" if OPT["sub"] else "s_mov_b32 s87, 0")
for g in range(4):
    A(f"s_add_u32 s86, s87, {g}\ns_and_b32 s86, s86, 3\ns_mul_i32 {WL[g]}, s86, 3072\ns_mul_i32 {WG[g]}, s86, s82")
A(f"""s_cmp_eq_u32 s4, 1
s_cselect_b32 s40, s26, s24
s_cselect_b32 s41, s27, s25
s_cmp_ge_u32 s7, 15
s_cselect_b32 s40, s18, s40
s_cselect_b32 s41, s19, s41""")
issue_head(); issue_part(0, 0, ["w0", "w1", "w2", "w3"] if OPT["xfirst"] == 1 else ["w0", "x1", "w1", "x2", "w2", "w3"]); issue_tail()
stamp((2, 2))
issue_head(); n_ = issue_part(0, HH)
p2setup()
A(f"s_waitcnt vmcnt({n_})")
stamp((1, 1), (3, 2))
A("s_barrier\ns_mov_b32 s83, 0\nL_LLOOP:")
rawblocks()
if OPT['nodma']: issue_tail(); issue_head()
else:
    if HH < 7: issue_part(HH, 7)
    issue_tail(); issue_head(); issue_part(0, HH)
A(f"""s_add_u32 s83, s83, 1
s_waitcnt vmcnt({n_})
s_barrier
s_cmp_lt_u32 s83, 6
s_cbranch_scc1 L_LLOOP""")
stamp((2, 1), (4, 2))
if HH < 7: issue_part(HH, 7)
A("s_mov_b32 s38, 2097152")
ktable()
for n in range(N7): w2item(n)
A(f"s_waitcnt vmcnt({2*N7})\ns_barrier")
A("s_branch L_W2")

def f_addr(dst):
    A(f"""s_sub_u32 s86, s7, 15
s_lshl_b32 s86, s86, 12
s_and_b32 s87, s6, 1
s_lshl_b32 s87, s87, 11
s_add_u32 s86, s86, s87
s_and_b32 s87, s6, 2
s_lshl_b32 s87, s87, 9
s_add_u32 s86, s86, s87
s_lshr_b32 s87, s6, 2
s_lshl_b32 s87, s87, 9
s_add_u32 s86, s86, s87
s_lshl1_add_u32 s91, s86, {WS_FF}
s_add_u32 s86, s86, {WS_F}
v_lshl_add_u32 v{dst}, v0, 4, s86""")
assert OPT["rot"] in (2, 4, 8)
A(f"""L_SIDE:
s_add_u32 s13, s6, s90
s_and_b32 s13, s13, {OPT['rot']-1}
s_lshl_b32 s13, s13, { {2:2, 4:1, 8:0}[OPT['rot']] }
s_lshr_b32 s14, s6, { {2:1, 4:2, 8:3}[OPT['rot']] }
s_add_u32 s15, s13, s14
s_cmp_ge_u32 s6, 8
s_cselect_b32 s14, 99, s14
s_cmp_eq_u32 s12, 1
s_cselect_b32 s14, 99, s14
s_and_b32 s77, s4, 1""")
wfrag_addr(62, "s77", 24, "L_SA")
A(f"""s_cmp_eq_u32 s14, 1
s_cselect_b32 s86, {SLOT}, 0
s_cmp_eq_u32 s14, 2
s_cselect_b32 s86, {2*SLOT}, s86
v_add_u32 v62, s86, v62
v_add_u32 v63, s86, v63
v_and_b32 v24, 16, v0
v_cmp_ne_u32 s[72:73], 0, v24
v_and_b32 v24, 31, v0
s_mul_i32 s86, s77, 384
s_add_u32 s86, s86, {CF}
v_lshrrev_b32 v25, 4, v24
v_mul_u32_u24 v25, 128, v25
v_lshl_add_u32 v17, v24, 2, v25
v_add_u32 v17, s86, v17
s_mul_i32 s87, s77, 96
v_add_u32 v21, s87, v0
v_add3_u32 v22, v24, s87, 64
s_lshl_b32 s86, s8, 4
s_add_u32 s86, s86, {WS_RS}
v_lshl_add_u32 v19, v21, 4, s86
v_lshl_add_u32 v20, v22, 4, s86
s_lshl_b32 s86, s7, 13
s_lshl_b32 s87, s77, 9
s_add_u32 s86, s86, s87
s_add_u32 s86, s86, {WS_CS}
s_lshl_b32 s87, s15, 10
s_add_u32 s74, s86, s87
v_lshlrev_b32 v23, 4, v24
v_lshrrev_b32 v25, 5, v0
v_lshl_add_u32 v18, v25, 12, v23
v_add_u32 v18, s86, v18""")
for r in range(52, 56): A(f"v_mov_b32 v{r}, 0x3f803f80")
def w1prefetch():
    A(f"""s_cmp_eq_u32 s77, 0
s_cselect_b32 s40, s24, s26
s_cselect_b32 s41, s25, s27
s_mov_b32 s42, {1376*1024}
s_mov_b32 s43, 0x20000
s_mul_i32 s86, s5, 43
v_min_u32 v16, 42, v0
v_add_u32 v16, s86, v16
v_lshlrev_b32 v16, 7, v16
buffer_load_dword v58, v16, {W}, 0 offen
s_mov_b32 s52, s18
s_mov_b32 s53, s19
s_mov_b32 s54, {512*3072}
s_mov_b32 s55, 0x20000
s_lshl_b32 s86, s5, 1
s_add_u32 s86, s86, s77
s_mul_i32 s86, s86, 24
v_min_u32 v16, 23, v0
v_add_u32 v16, s86, v16
v_lshlrev_b32 v16, 7, v16
buffer_load_dword v57, v16, s[52:55], 0 offen""")
kwait()
if OPT['w1pf'] == -2: w1prefetch()
p2setup()
A(f"""s_cmp_lt_u32 s7, 15
s_cbranch_scc1 L_NOCLR
s_cmp_ge_u32 s6, 8
s_cbranch_scc1 L_NOCLR""")
f_addr(24)
A(f"""v_mov_b32 v28, -1
v_mov_b32 v29, -1
v_mov_b32 v30, -1
v_mov_b32 v31, -1
s_mov_b32 exec_hi, 0
buffer_store_dwordx4 v[28:31], v24, {WS}, 0 offen sc1
s_mov_b32 exec_hi, -1""")
if OPT["prew"]: A(f"s_sub_u32 s86, {TAG}, 1\nv_mov_b32 v32, s86\nv_lshlrev_b32 v24, 4, v0\nbuffer_store_dwordx4 v[32:35], v24, {WS}, s91 offen sc1")
A(f"""L_NOCLR:
s_mov_b32 s83, 0
s_waitcnt vmcnt(0)""")
if OPT["w1pf"] == -1: w1prefetch()
A("L_SLOOP:\ns_barrier")
if OPT["w1pf"] >= 0:
    A(f"s_cmp_eq_u32 s83, {OPT['w1pf']}\ns_cbranch_scc0 L_NOPF1"); w1prefetch(); A("L_NOPF1:")
if OPT["w2late"] >= 0:
    A(f"""s_cmp_eq_u32 s83, {OPT['w2late']}
s_cbranch_scc0 L_NOPF2
s_mul_i32 s86, s5, 59
s_mul_i32 s87, s77, 30
s_add_u32 s86, s86, s87
v_min_u32 v16, 29, v0
v_add_u32 v16, s86, v16
v_lshlrev_b32 v16, 7, v16
buffer_load_dword v60, v16, {WD}, 0 offen
v_subrev_u32 v16, {1376*1024}, v16
buffer_load_dword v61, v16, {WO}, 0 offen
L_NOPF2:""")
if OPT["pf2"] >= 0:
    A(f"""s_cmp_eq_u32 s83, {OPT['pf2']}
s_cbranch_scc0 L_NOPF3
s_getpc_b64 s[88:89]
L_PC2:
s_sub_u32 s88, s88, L_PC2-{NAME}_kernel
s_subb_u32 s89, s89, 0
s_lshr_b32 s86, s2, 3
s_lshl_b32 s86, s86, 3
s_lshl_b32 s87, s77, 2
s_add_u32 s86, s86, s87
v_and_b32 v16, 3, v0
v_add_u32 v16, s86, v16
v_lshlrev_b32 v16, 7, v16
v_min_u32 v16, L_END-{NAME}_kernel, v16
global_load_dword v59, v16, s[88:89]
L_NOPF3:""")
A("s_cmp_eq_u32 s83, s14\ns_cbranch_scc0 L_LNOCS")
for t in range(2):
    A(f"s_cmp_ge_u32 s7, 15\ns_cbranch_scc1 L_CSQ{t}")
    for role in "GQ":
        if role == 'Q': A(f"s_branch L_CSM{t}\nL_CSQ{t}:")
        for j in range(6):
            for sec in range(2):
                par, off = woff(role, t, j, sec)
                A(f"ds_read_b64_tr_b16 {v(24+4*j+2*sec,2)}, v{62+par} offset:{off}")
    A(f"L_CSM{t}:\ns_waitcnt lgkmcnt(0)")
    for j in range(6): A(mf16(72+4*j, 52, 24+4*j, 0 if t == 0 else None))
A(f"v_mov_b32 v51, {TAG}")
for u in range(3): A(f"v_cndmask_b32 v{48+u}, v{72+4*u}, v{84+4*u}, s[72:73]")
A(f"""s_mov_b32 exec_hi, 0
buffer_store_dwordx4 v[48:51], v23, {WS}, s74 offen sc1
s_mov_b32 exec_hi, -1
L_LNOCS:""")
rawblocks()
A(f"""s_add_u32 s83, s83, 1
s_cmp_lt_u32 s83, 6
s_cbranch_scc1 L_SLOOP""")
def st_loads():
    for p in range(4): A(f"buffer_load_dwordx4 {v(32+4*p,4)}, v18, {WS}, 0 offen offset:{1024*p} sc1")
    A(f"buffer_load_dwordx4 v[48:51], v19, {WS}, 0 offen sc1\nbuffer_load_dwordx4 v[52:55], v20, {WS}, 0 offen sc1")
st_loads()
A("s_barrier")
stamp((2, 1), (4, 2))
ktable()
for n in range(N7): w2item(n)
A(f"s_mov_b32 s88, 0\ns_waitcnt vmcnt({2*N7})")
A("L_SPC:")
tagcheck(24, 24, [35+4*p for p in range(6)])
A(f"""v_cmp_ne_u32 vcc, 0, v24
s_add_u32 s88, s88, 1
s_cmp_gt_u32 s88, {OPT['spin']}
s_cbranch_scc1 L_SPCD
s_cbranch_vccz L_SPCD""")
st_loads()
A(f"""s_waitcnt vmcnt(0)
s_branch L_SPC
L_SPCD:
s_mov_b32 s86, {RS}
s_mov_b32 s87, {RR}
v_lshl_add_u32 v24, v21, 4, s86
v_lshl_add_u32 v25, v22, 4, s86
v_lshl_add_u32 v21, v21, 2, s87
v_lshl_add_u32 v22, v22, 2, s87
ds_write_b128 v24, v[48:51]
ds_write_b128 v25, v[52:55]
ds_write_b32 v21, v49
ds_write_b32 v22, v53
v_mul_f32 v24, v48, v49
v_mul_f32 v25, v52, v53
ds_write_b32 v21, v24 offset:{MR-RR}
ds_write_b32 v22, v25 offset:{MR-RR}""")
note("s88", 2)
for p in range(1, 4):
    for u in range(3): A(f"v_add_f32 v{32+u}, v{32+u}, v{32+4*p+u}")
for u in range(3): A(f"v_mov_b32 v{36+u}, v{32+u}")
for u in range(3): A(f"v_permlane32_swap_b32 v{32+u}, v{36+u}")
for u in range(3): A(f"v_add_f32 v{32+u}, v{32+u}, v{36+u}")
for u in range(3): A(f"ds_write_b32 v17, v{32+u} offset:{64*u}")
A("s_waitcnt lgkmcnt(0)\ns_barrier")

A("L_W2:")
stamp((3, 1), (6, 2))
AB = 8
vm = [x for n in range(N7) for x in (f"d{n}a", f"d{n}")]
def emit(Y):
    for t in Y:
        if callable(t): t()
        elif t.startswith("VM "):
            nm, ins = t[3:].split("|"); vm.append(nm); A(ins)
        elif t.startswith("WAIT "):
            nms, lg = t[5:].split("|")
            A(f"s_waitcnt vmcnt({len(vm)-1-max(vm.index(x) for x in nms.split(','))})" + (" lgkmcnt(0)" if lg else ""))
        elif t.startswith("STAMP "): stamp((int(t[6:]), 4))
        else: A(t)
A(f"v_lshlrev_b32 v84, 4, v0\nv_add_u32 v84, s76, v84")
def wr(reg, slot, blk):
    off = slot*SLOT + blk*2048
    A(f"ds_write_b128 v84, {v(reg,4)} offset:{off}\nds_write_b128 v84, {v(reg+4,4)} offset:{off+1024}")
def rd6(base, sl):
    for kk in range(6):
        E(w2read(base+8*kk, sl, kk, AB))
        if kk % 3 == 2: A("s_waitcnt lgkmcnt(0)")
NB = OPT["nb"]; NC = OPT["nc"]; NIT = len(items); NW = OPT['nraw']; NL = 12 - NW - NB - NC; assert NL >= 0 and NW <= 8
cnt = [N7]
def TH():
    cnt[0] += 1
    return OPT["thr"] if (OPT["thr"] and cnt[0] > OPT["tfrom"]) else None
it = lambda n: w2ops(items[n][0], items[n][1], items[n][2:], TH())
Z = []
for n in range(N7, 6): Z += it(n)
order2 = [12+2, 12+3, 12+4, 12+5, 12+0, 12+1]
for n in range(12):
    Z += [f"WAIT d{n}|"] + w2read(96+8*n, 2, n % 6, AB) + ["s_waitcnt lgkmcnt(0)"]
    Z += it(n+6 if n < 6 else order2[n-6])
assert NE <= min(NW, 6)
PE = OPT['pe']
rawop = lambda n: w2ops(items[18+n][0], items[18+n][1], 192+8*n, TH())
for n in range(NE, NW - max(PE, 0)): Z += rawop(n)
XREL = [f"VM x|buffer_load_dwordx4 v[12:15], v1, {X}, 0 offen"], [f"v_mov_b32 v80, {LF+40}", lambda: spin_lds(80, 81, 4)]
if PE < 0: Z += XREL[0] + XREL[1]
emit(Z)
stamp((4, 1), (1, 3), (1, 4))
def rdaddr(dst, isy_src, half, T):
    base = 0 if isy_src else SLOT
    t3 = 2*SLOT + (0 if isy_src else 8192)
    A(f"""s_and_b32 s70, s4, 2
s_lshl_b32 s70, s70, 12
s_add_u32 s70, s70, {base}
s_add_u32 s71, s70, 4096
s_cmp_ge_u32 s4, 2
s_cselect_b32 s71, {t3}, s71
v_mov_b32 v{T}, s70
v_mov_b32 v{T+1}, s71
v_and_b32 v{T+2}, 4, v0
v_cmp_ne_u32 vcc, 0, v{T+2}
v_and_b32 v{T+2}, 7, v0
v_lshrrev_b32 v{T+3}, 3, v0
v_cndmask_b32 v{T}, v{T}, v{T+1}, vcc
v_add_u32 v{T+3}, {8*half}, v{T+3}
v_lshlrev_b32 v{T+1}, 1, v{T+2}
v_xor_b32 v{T+3}, v{T+3}, v{T+1}
s_and_b32 s70, s4, 1
s_lshl_b32 s70, s70, 8
v_lshl_add_u32 v{T}, v{T+3}, 4, v{T}
v_and_b32 v{T+1}, 2, v0
v_lshl_add_u32 v{T}, v{T+1}, 8, v{T}
v_and_b32 v{T+1}, 1, v0
v_lshl_add_u32 v{T}, v{T+1}, 11, v{T}
v_add_u32 v{dst}, s70, v{T}""")
def wraddr(B_, isy):
    A(f"""v_lshrrev_b32 v{B_}, 3, v0
v_and_b32 v{B_}, 4, v{B_}
v_xor_b32 v{B_}, v{B_}, v0
v_lshlrev_b32 v{B_}, 4, v{B_}
v_xor_b32 v{B_+1}, 32, v{B_}
v_xor_b32 v{B_+2}, 0x80, v{B_}
v_xor_b32 v{B_+3}, 0xa0, v{B_}""")
    for j in range(4): A(f"v_add_u32 v{B_+j}, s76, v{B_+j}")
    t3 = 2*SLOT + (0 if isy else 8192)
    A(f"v_add_u32 v{B_+4}, {t3}, v{B_+2}\nv_add_u32 v{B_+5}, {t3}, v{B_+3}")
def wrpart(B_, isy):
    for q in range(4):
        for jq in range(4):
            if q < 3: A(f"ds_write_b128 v{B_ + 2*(q&1) + (jq>>1)}, {v(192+16*q+4*jq,4)} offset:{(0 if isy else SLOT) + q*4096 + jq*1024}")
            else: A(f"ds_write_b128 v{B_ + 4 + (jq>>1)}, {v(192+16*q+4*jq,4)} offset:{jq*1024}")
def rd4(dst, va):
    for src in range(4):
        for e in range(2): A(f"ds_read_b128 {v(dst+8*src+4*e,4)}, v{va} offset:{Q*src+1024*e}")
def sum4(d):
    for j in range(4): A(f"v_pk_add_f32 {v(d+2*j,2)}, {v(d+2*j,2)}, {v(d+8+2*j,2)}\nv_pk_add_f32 {v(d+16+2*j,2)}, {v(d+16+2*j,2)}, {v(d+24+2*j,2)}")
    for j in range(4): A(f"v_pk_add_f32 {v(d+2*j,2)}, {v(d+2*j,2)}, {v(d+16+2*j,2)}")
STG = OPT["stage"]
def sgo(va, vd): return f"s_lshl_b32 s86, s4, 2\ns_add_u32 s86, s86, {LF+48}\nv_mov_b32 v{va}, s86\nv_mov_b32 v{vd}, 1\nds_write_b32 v{va}, v{vd}"
assert STG
note("1", 4)
def hload(kd):
    va = 6 if kd < 21 else 7
    b = 16 + 8*(kd % 8)
    return [f"s_lshl2_add_u32 s86, s{77 + kd % 7}, {(kd//7)*65536}" if kd < 21 else "s_mov_b32 s86, 0",
            f"VM h{kd}a|buffer_load_dwordx4 {v(b,4)}, v{va}, {H}, s86 offen sc1",
            f"VM h{kd}|buffer_load_dwordx4 {v(b+4,4)}, v{va}, {H}, s86 offen offset:1024 sc1"]
w2late = lambda n, t=None: w2ops(items[n][0], items[n][1], items[n][2:], t)
PR = lambda c: 82 if c < 2 else 120
def ipoll(c):
    nl = 16 if c <= 1 else 24
    return [f"VM p{c}|v_mov_b32 v{PR(c)}, {TAG}\ns_mov_b32 s87, {c << 20}\ns_mov_b64 exec, {hex((1<<nl)-1)}\nbuffer_load_dword v{PR(c)}, v5, {WS}, s87 offen sc1\ns_mov_b64 exec, -1"]
res_loc = lambda kd: (2, kd-12) if kd < 16 else (0, kd-16)
YD = OPT["ydep"]; assert YD <= 7
PRE = cap(lambda: (wraddr(96, True), rdaddr(102, True, 0, 104), A("v_xor_b32 v103, 0x80, v102"), rdaddr(108, False, 0, 104),
    A(f"s_lshl_b32 s70, s4, 11\ns_add_u32 s70, s70, {GB}\nv_lshl_add_u32 v109, v0, 4, s70\nv_mov_b32 v110, {LF+36}\nv_mov_b32 v111, 1"),
    [A(f"v_lshlrev_b32 v{112+2*j}, 16, v{12+j}\nv_and_b32 v{113+2*j}, 0xffff0000, v{12+j}") for j in range(4)],
    A(f"s_mov_b32 s70, {hx(-1.4426950408889634)}\ns_mov_b32 s71, s70")))
Y = []
if PE < 0:
    Y += ipoll(0)
    for n in range(NB): Y += w2late(18+NW+n, OPT['thr2'] or None)
    if NW: Y += ['WAIT x|', lambda: [wr(192+8*n, *items[18+n][2:]) for n in range(NW//2)]]
    Y += ["WAIT p0|", f"v_cmp_ne_u32 vcc, {TAG}, v82\ns_cbranch_vccnz L_YR0\nL_YB0:", lambda: stamp((5, 1), (2, 3), (2, 4))]
    for kd in range(YD): Y += hload(kd)
    for n in range(NC): Y += w2late(18+NW+NB+n, OPT['thr2'] or None)
    if NW: Y += [lambda: [wr(192+8*n, *items[18+n][2:]) for n in range(NW//2, NW)], 's_waitcnt lgkmcnt(0)']
else:
    Y += ipoll(0)
    for n in range(NW-PE, NW): Y += rawop(n)
    Y += XREL[0] + ["WAIT p0|", f"v_cmp_ne_u32 vcc, {TAG}, v82\ns_cbranch_vccnz L_YR0\nL_YB0:", lambda: stamp((5, 1), (2, 3), (2, 4))]
    for kd in range(YD):
        hl = hload(kd)
        if OPT["thr2"]: hl = [hl[0], f"s_waitcnt vmcnt({OPT['thr2']})"] + hl[1:]
        Y += hl
    Y += XREL[1] + ["WAIT x|", lambda: [wr(192+8*n, *items[18+n][2:]) for n in range(NW//2)]]
    for n in range(NB+NC): Y += w2late(18+NW+n, OPT['thr2'] or None)
    Y += [lambda: [wr(192+8*n, *items[18+n][2:]) for n in range(NW//2, NW)], 's_waitcnt lgkmcnt(0)']
if OPT["gate"]: Y += [f"v_mov_b32 v80, {LF+32}", lambda: spin_lds(80, 81, OPT["gate"])]
Y.append(f"s_setprio {OPT['yprio']}")
for kd in range(22):
    wf = 96+8*kd if kd < 12 else 80+8*(kd & 1)
    hb = 16 + 8*(kd % 8)
    need = [f"h{kd}"]
    C1_ = OPT['c1'] if OPT['c1'] >= 0 else 7-YD
    chk = 1 if kd == C1_ else (2 if kd == OPT['c2'] else 0)
    if chk: need.append(f"p{chk}")
    if chk == 2 and NE < 6: need.append("o5")
    if 16 <= kd+1 < 22: need.append(f"d{kd+1}")
    Y.append("WAIT " + ",".join(need) + ("|L" if kd >= 12 else "|"))
    if chk:
        Y.append(f"v_cmp_ne_u32 vcc, {TAG}, v{PR(chk)}\ns_cbranch_vccnz L_YR{chk}\nL_YB{chk}:")
        if chk == 2: Y.append(sgo(120, 121))
    ms = [mfma(192+32*r+16*c, wf+4*c, hb+4*r, 0 if kd == 0 else None) for r in range(2) for c in range(2)]
    fill = []
    if STG and kd == OPT["p1"]: fill += ipoll(1)
    if STG and kd == OPT["p2"]: fill += ipoll(2)
    for k_ in range(YD, 22):
        if max(k_-YD, [0, C1_, OPT['c2'], OPT['c2']][k_//7]) == kd: fill += hload(k_)
    if kd < NL: fill += w2late(NIT-NL+kd)
    if 12 <= kd+1 < 22: fill += w2read(80+8*((kd+1) & 1), *res_loc(kd+1), AB)
    P0_ = OPT['pre0']
    if kd in (P0_, P0_+1, P0_+2): fill = fill + PRE[(kd-P0_)*37:(kd-P0_+1)*37]
    Y += interleave(ms, fill, 3 if len(fill) <= 12 else 6)
    if kd+1 == OPT["ydrop"]: Y.append(f"s_setprio {OPT['ypost']}")
    if kd == 0: Y.append("STAMP 3")
    if kd == 10: Y.append("STAMP 4")
assert OPT["p1"] < C1_ <= OPT["p2"] < OPT["c2"] <= 13 and C1_ <= 6
emit(Y)
stamp((6, 1), (3, 3), (5, 4))
def final(isy):
    if OPT["fin"] == 1:
        if isy:
            wrpart(96, True); A("v_mov_b32 v4, v102\ns_waitcnt lgkmcnt(0)")
        else:
            wrpart(80, False)
            A("s_setprio 0")
            rdaddr(10, True, 1, 88)
            A(f"""v_xor_b32 v5, 0x80, v4
v_mov_b32 v6, {LF+36}
v_mov_b32 v7, 1
s_mov_b32 s70, {hx(-1.4426950408889634)}
s_mov_b32 s71, s70
s_mov_b64 exec, 1
s_waitcnt lgkmcnt(0)
ds_add_u32 v6, v7
s_mov_b64 exec, -1""")
            spin_lds(6, 7, 4)
            rd4(16, 5); A("s_waitcnt lgkmcnt(4)"); rd4(48, 4)
            for d, w_ in ((16, 8), (48, 2)):
                A(f"s_waitcnt lgkmcnt({w_})")
                for j in range(8): A(f"v_add_f32 v{d+j}, v{d+j}, v{d+8+j}\nv_add_f32 v{d+16+j}, v{d+16+j}, v{d+24+j}")
                for j in range(8): A(f"v_add_f32 v{(d if d == 16 else 88)+j}, v{d+j}, v{d+16+j}")
                if d == 16: A("ds_write_b128 v9, v[16:19]\nds_write_b128 v9, v[20:23] offset:1024")
            A("v_mov_b32 v4, v10\ns_waitcnt lgkmcnt(0)")
        return
    if isy:
        wrpart(96, True)
        A("""v_mov_b32 v4, v108
s_mov_b64 exec, 1
s_waitcnt lgkmcnt(0)
ds_add_u32 v110, v111
s_mov_b64 exec, -1""")
        spin_lds(110, 6, 4)
        rd4(16, 103); A("s_waitcnt lgkmcnt(4)"); rd4(48, 102)
        for d, w_ in ((16, 8), (48, 2)):
            A(f"s_waitcnt lgkmcnt({w_})")
            if OPT["ypk"]:
                sum4(d)
                for j in range(4): A(f"v_pk_mul_f32 {v(d+8+2*j,2)}, {v(d+2*j,2)}, s[70:71]")
            else:
                for j in range(8): A(f"v_add_f32 v{d+j}, v{d+j}, v{d+8+j}\nv_add_f32 v{d+16+j}, v{d+16+j}, v{d+24+j}")
                for j in range(8): A(f"v_add_f32 v{d+j}, v{d+j}, v{d+16+j}")
                for j in range(8): A(f"v_mul_f32 v{d+8+j}, s70, v{d+j}")
            for j in range(8): A(f"v_exp_f32 v{d+8+j}, v{d+8+j}")
            for j in range(8): A(f"v_add_f32 v{d+8+j}, 1.0, v{d+8+j}")
            for j in range(8): A(f"v_rcp_f32 v{d+8+j}, v{d+8+j}")
            for j in range(8): A(f"v_mul_f32 v{(d if d == 16 else 88)+j}, v{d+j}, v{d+8+j}")
            if d == 16:
                A("ds_write_b128 v109, v[16:19]\nds_write_b128 v109, v[20:23] offset:1024")
    else:
        wrpart(80, False)
    A("s_waitcnt lgkmcnt(0)")
final(True)
A("s_branch L_FINAL")
if STG:
    for c in (0, 1, 2):
        A(f"L_YR{c}:"); note(str(10+c), 4); spin_flag(5, PR(c), 16 if c <= 1 else 24, c, 1); A(f"s_branch L_YB{c}")
A("L_COMPUTE:")
srd(WS, 32, 0x800000); srd(H, 32, 118*65536, WS_H); srd(OUT, 30, 2097152)
ACC = 112
for r in range(ACC, 256): A(f"v_mov_b32 v{r}, 0")
A(f"""v_lshlrev_b32 v16, 2, v0
v_add_u32 v16, {LF}, v16
v_mov_b32 v17, 0
s_mov_b64 exec, 0xffff
ds_write_b32 v16, v17
s_mov_b64 exec, -1
s_lshr_b32 s13, s4, 1
s_and_b32 s14, s4, 1
s_movk_i32 s11, 0x1ff
s_lshl_b32 s86, s13, 4
s_add_u32 s86, s86, s6
s_cmp_eq_u32 s86, 10
s_cselect_b32 s11, 0x1c0, s11
s_mul_i32 s86, s14, 0x1b6
s_cmp_eq_u32 s7, 14
s_cselect_b32 s86, s86, 0x1ff
s_and_b32 s11, s11, s86
s_cmp_eq_u32 s12, 1
s_cselect_b32 s11, 0, s11
s_mul_i32 s76, s4, {Q}
s_lshr_b32 s86, s9, 4
s_mul_i32 s87, s14, 3
s_add_u32 s86, s86, s87
s_lshl_b32 s87, s7, 1
s_add_u32 s87, s87, s14
s_lshl1_add_u32 s87, s87, 26
s_and_b32 s88, s11, 0xdb
s_cmp_ge_u32 s7, 15
s_cselect_b32 s86, s87, s86
s_cselect_b32 s11, s88, s11
s_lshl_b32 s86, s86, 6
s_lshr_b32 s87, s8, 5
s_add_u32 s86, s86, s87
s_mul_i32 s87, s13, 3
s_add_u32 s86, s86, s87
s_lshl_b32 s86, s86, 10
v_lshl_add_u32 v1, v0, 4, s86
s_mov_b32 s80, 0
s_mov_b32 s81, 65536
s_mov_b32 s82, 131072
v_and_b32 v16, 15, v0
v_lshrrev_b32 v17, 4, v0
v_bfe_u32 v18, v0, 1, 3
v_xor_b32 v18, v18, v17
s_mul_i32 s86, s13, {96*128}
v_lshl_add_u32 v16, v16, 7, s86
v_lshl_add_u32 v2, v18, 4, v16
v_xor_b32 v3, 64, v2""")
wfrag_addr(4, "s14", 16, "L_CA")
A(f"""s_mul_i32 s86, s6, 23
s_add_u32 s86, s86, s7
s_cmp_eq_u32 s12, 1
s_cselect_b32 s86, 255, s86
s_lshl_b32 s86, s86, 2
s_add_u32 s86, s86, s4
s_lshl_b32 s86, s86, 10
s_add_u32 s15, s86, {WS_FLAG}""")
stamp((2, 2))
A("s_waitcnt vmcnt(0)")
stamp((5, 2))
for j in range(8):
    A(f"v_lshlrev_b32 v{16+2*j}, 16, v{8+j}\nv_and_b32 v{17+2*j}, 0xffff0000, v{8+j}")
def red32(r, t):
    for sh_ in (8, 4, 2, 1):
        A(f"v_add_f32_dpp v{r}, v{r}, v{r} row_ror:{sh_} row_mask:0xf bank_mask:0xf")
    A(f"v_mov_b32 v{t}, v{r}\nv_permlane16_swap_b32 v{r}, v{t}\nv_add_f32 v{r}, v{r}, v{t}")
for j in range(4): A(f"v_pk_add_f32 {v(8+2*j,2)}, {v(16+2*j,2)}, {v(24+2*j,2)}")
A("v_pk_add_f32 v[8:9], v[8:9], v[12:13]\nv_pk_add_f32 v[10:11], v[10:11], v[14:15]\nv_pk_add_f32 v[8:9], v[8:9], v[10:11]\nv_add_f32 v8, v8, v9")
red32(8, 9)
A(f"v_mul_f32 v8, {hx(-1/512)}, v8")
for j in range(8): A(f"v_pk_add_f32 {v(16+2*j,2)}, {v(16+2*j,2)}, v[8:9] op_sel_hi:[1,0]")
A("v_pk_mul_f32 v[10:11], v[16:17], v[16:17]\nv_pk_mul_f32 v[12:13], v[18:19], v[18:19]")
for j in range(2, 8): A(f"v_pk_fma_f32 {v(10+2*(j&1),2)}, {v(16+2*j,2)}, {v(16+2*j,2)}, {v(10+2*(j&1),2)}")
A("v_pk_add_f32 v[10:11], v[10:11], v[12:13]\nv_add_f32 v10, v10, v11")
red32(10, 9)
A(f"""v_mul_f32 v10, {hx(1/512)}, v10
v_cvt_pk_bf16_f32 v10, v10, v10
v_and_b32 v10, 0xffff0000, v10
v_add_f32 v10, {hx(1e-5)}, v10
v_cvt_pk_bf16_f32 v10, v10, v10
v_and_b32 v10, 0xffff0000, v10
v_sqrt_f32 v10, v10
v_cvt_pk_bf16_f32 v32, v8, v8
v_cvt_pk_bf16_f32 v10, v10, v10
v_and_b32 v10, 0xffff0000, v10
v_and_b32 v32, 0xffff0000, v32
v_rcp_f32 v33, v10
v_mul_f32 v34, v10, v10
v_lshlrev_b32 v7, 4, v7
v_add_u32 v7, {WS_RS}, v7
s_waitcnt lgkmcnt(0)
s_add_u32 {TAG}, {TAG}, 0x9E3779B9
v_mov_b32 v35, {TAG}
v_mov_b32 v36, {TAG}
v_mov_b32 v37, {TAG}
v_mov_b32 v38, {TAG}
v_mov_b32 v39, {TAG}
v_lshlrev_b32 v6, 4, v0
s_mov_b32 s78, 0
s_mov_b32 s79, {SLOT}
s_mov_b32 s83, 0""")
stamp((1, 1), (3, 2))
A(f"""s_barrier
s_mov_b32 exec_lo, 1
s_mov_b32 exec_hi, 1
buffer_store_dwordx4 v[32:35], v7, {WS}, 0 offen sc1
s_mov_b64 exec, -1""")
if OPT["prew"]:
    for kind in ((0, 1, 2) if OPT["stage"] else (0, 2)):
        sk = L("PW")
        if kind == 0 and not OPT["stage"]: A(f"s_cmp_lt_u32 s7, 15\ns_cbranch_scc1 {sk}")
        A(f"s_add_u32 s86, s15, {kind << 20}\nbuffer_store_dwordx4 v[28:31], v6, {WS}, s86 offen sc1")
        A.label(sk)
stamp((2, 1), (4, 2))
A("s_cmp_ge_u32 s7, 15\ns_cbranch_scc1 L_QKV")
if OPT["dead"]: A("s_or_b32 s86, s11, s12\ns_cbranch_scc0 L_DEAD")

XB = lambda buf, a: (40 if buf == 0 else 8) + 4*a
WF = lambda buf, j: 64 + 24*buf + 4*j
acc = lambda a, j: ACC + 4*(6*a+j)
CB = 88
def reads(role, s_):
    w_ = []
    for j in range(6):
        for sec in range(2):
            par, off = woff(role, s_, j, sec)
            w_.append(f"ds_read_b64_tr_b16 {v(WF(s_,j)+2*sec,2)}, v{4+par} offset:{off}")
    o = []
    for a in range(6): o += [f"ds_read_b128 {v(XB(s_,a),4)}, v{2+s_} offset:{2048*a}"] + w_[2*a:2*a+2]
    return o
def mm(role, wb, a, j, xb=1):
    return mf16(acc(a,j), WF(wb,j), XB(xb,a)) if (role == 'G' or j < 2) else mf16(acc(a,j), XB(xb,a), WF(wb,j))
def grp(role, buf, a): return [mm(role, buf, a, j, buf) for j in range(6)]
def spread(ms, fill, num, den):
    o = []; f = list(fill); nr = 0
    for i, m in enumerate(ms):
        o.append(m)
        k = ((i+1)*num)//den - (i*num)//den
        for _ in range(k):
            if f:
                x = f.pop(0)
                if x.startswith("ds_read"):
                    nr += 1
                    if nr == 13: o.append("s_waitcnt lgkmcnt(6)")
                o.append(x)
    assert not f
    return o
def treads(role, st, js, wb):
    buf = st & 1
    xs_ = [f"ds_read_b128 {v(XB(buf,a),4)}, v{2+buf} offset:{2048*a + (SLOT if st >= 2 else 0)}" for a in range(6)]
    ws_ = []
    for i, j in enumerate(js):
        for sec in range(2):
            par, off = woff(role, buf, j, sec)
            ws_.append(f"ds_read_b64_tr_b16 {v(wb(buf)+4*i+2*sec,2)}, v{(32 if st >= 2 else 4)+par} offset:{off}")
    return ws_[:4] + xs_ + ws_[4:]
def ldsadd(off, va, vd): return f"v_mov_b32 v{va}, {LF+off}\nv_mov_b32 v{vd}, 1\ns_mov_b64 exec, 1\nds_add_u32 v{va}, v{vd}\ns_mov_b64 exec, -1"
def tphase(role, js, wb, first, last, nxt, extra, rows=range(6), start3=0):
    for st in range(4):
        buf = st & 1
        A("s_waitcnt lgkmcnt(0)")
        if first and st == 1: A("s_barrier")
        ms = []
        for a in (rows if st == 3 else range(6)):
            for i, j in enumerate(js):
                w_, x_ = wb(buf)+4*i, XB(buf, a)
                ms.append(mf16(acc(a,j), w_, x_) if (role == 'G' or j < 2) else mf16(acc(a,j), x_, w_))
        fill = (treads(role, st+1, js, wb) if st < 3 else nxt) + extra.get(st, [])
        if last and st == 3: fill = [ldsadd(40, 32, 33)] + fill
        E(interleave(ms, fill, max(1, -(-len(fill)//(len(ms)-1)))))
def mainloop(role, pre):
    lp, ex = f"L_ML{role}", f"L_MX{role}"
    allm = lambda buf: [m + ('\ns_nop 7' if OPT['slow'] and n_ % OPT['slow'] == 0 else '') for n_, m in enumerate([m for a in range(6) for m in grp(role, buf, a)])]
    def coarse():
        if OPT["shi"]:
            sk = L("SL"); A(f"s_sub_u32 s87, s83, {OPT['slo']}\ns_cmp_lt_u32 s87, {OPT['shi']-OPT['slo']}\ns_cbranch_scc0 {sk}")
            for _ in range(OPT["sn"]): A("s_nop 15")
            A.label(sk)
    r0 = reads(role, 0); E(r0[:12]); A("s_waitcnt lgkmcnt(6)"); E(r0[12:])
    A.label(lp)
    coarse()
    A("s_waitcnt lgkmcnt(0)")
    sal = f"""s_add_u32 s78, s78, 1
s_cmp_eq_u32 s78, 3
s_cselect_b32 s86, {-2*SLOT & 0xffffffff}, s79
s_cselect_b32 s78, 0, s78
s_add_u32 s83, s83, 1
s_cmp_eq_u32 s83, 6""".split("\n") + [f"v_add_u32 v{r}, s86, v{r}" for r in (2, 4, 5, 3)]
    E(spread(allm(0), reads(role, 1) + sal, OPT["rgap"]+2, OPT["rgap"]+3))
    A(f"s_waitcnt lgkmcnt(0)\ns_barrier\ns_cbranch_scc1 {ex}")
    E(spread(allm(1), reads(role, 0), OPT["rgap"], 4))
    A(f"s_branch {lp}")
    A.label(ex)
    com = ["s_waitcnt vmcnt(0)", f"v_add_u32 v32, {SLOT}, v4", f"v_add_u32 v33, {SLOT}, v5", "v_and_b32 v34, 15, v0",
           f"s_mul_i32 s86, s13, {96*16}", f"s_add_u32 s86, s86, {RS}", "v_lshl_add_u32 v34, v34, 4, s86",
           "v_lshrrev_b32 v7, 4, v0", "s_mul_i32 s79, s14, 384", f"s_add_u32 s79, s79, {CF}", "v_lshl_add_u32 v35, v7, 4, s79",
           f"s_mul_i32 s86, s13, {96*4}", f"s_add_u32 s86, s86, {RR}", "v_lshl_add_u32 v7, v7, 4, s86"]
    E(interleave(allm(1), pre + com, 2))

def flagstore(kind):
    m = (1 << (8*OPT["nrep"])) - 1
    A(f"s_add_u32 s86, s15, {kind << 20}\ns_mov_b64 exec, {hex(m) if m < (1<<32) else -1}\nbuffer_store_dwordx4 v[36:39], v6, {WS}, s86 offen sc1\ns_mov_b64 exec, -1")
def gsig():
    if OPT["gate"]: A(ldsadd(32, 2, 3))
rsrd = lambda a: f"ds_read_b128 {v(CB+4*a,4)}, v34 offset:{256*a}"
C1 = -2.0*0.7978845608028654*1.4426950408889634
cst = []
for a in range(6):
    b = CB+4*a
    cst += [f"v_mul_f32 v{b+3}, {hx(C1)}, v{b+1}", f"v_mul_f32 v{b+1}, v{b+1}, v{b+1}",
            f"v_mul_f32 v{b+1}, {hx(0.044715)}, v{b+1}", f"v_mul_f32 v{b+1}, v{b+1}, v{b+3}"]
wb2 = lambda buf: 64 + 8*buf
mainloop('G', treads('G', 0, (0, 3), wb2))
def tregs(u, a):
    return (8 + 8*(a & 1), 24 + 4*(a & 1), [acc(2*a + j//2, u) + 2*(j & 1) for j in range(4)],
            [acc(2*a + j//2, u+3) + 2*(j & 1) for j in range(4)], [CB+4*(2*a + j//2) for j in range(4)])
def stA(u, a):
    T, P, gp, up, cb = tregs(u, a)
    return ([f"v_pk_fma_f32 {v(gp[j],2)}, {v(80+2*(j&1),2)}, {v(cb[j],2)}, {v(gp[j],2)} op_sel_hi:[1,0,1]" for j in range(4)]
          + [f"v_pk_mul_f32 {v(T+2*j,2)}, {v(gp[j],2)}, {v(gp[j],2)}" for j in range(4)]
          + [f"v_pk_fma_f32 {v(T+2*j,2)}, {v(T+2*j,2)}, {v(cb[j],2)}, {v(cb[j]+2,2)} op_sel:[0,1,1] op_sel_hi:[1,1,1]" for j in range(4)]
          + [f"v_pk_mul_f32 {v(T+2*j,2)}, {v(T+2*j,2)}, {v(gp[j],2)}" for j in range(4)])
for u in range(3):
    crd = [f"ds_read_b128 v[80:83], v35 offset:{64*u}", f"ds_read_b128 v[84:87], v35 offset:{64*(u+3)}"]
    ex_ = {1: [rsrd(a) for a in range(4)], 2: [rsrd(4), rsrd(5)] + crd, 3: cst} if u == 0 else {0: crd}
    tphase('G', (u, u+3), wb2, u == 0, u == 2, treads('G', 0, (u+1, u+4), wb2) if u < 2 else [], ex_)
    if u: A("s_waitcnt vmcnt(0)"); flagstore(u-1)
    else: A("s_nop 3")
    if u == 0: stamp((1, 3))
    if u == 2: stamp((3, 1))
    E(stA(u, 0))
    for a in range(3):
        T, P, gp, up, cb = tregs(u, a)
        E(interleave([f"v_exp_f32 v{T+j}, v{T+j}" for j in range(8)],
            [f"v_pk_fma_f32 {v(up[j],2)}, {v(84+2*(j&1),2)}, {v(cb[j],2)}, {v(up[j],2)} op_sel_hi:[1,0,1]" for j in range(4)]
          + [f"v_pk_mul_f32 {v(gp[j],2)}, {v(gp[j],2)}, {v(up[j],2)}" for j in range(4)], 1))
        for j in range(4): A(f"v_pk_fma_f32 {v(T+2*j,2)}, {v(T+2*j,2)}, {v(cb[j]+2,2)}, {v(cb[j]+2,2)} op_sel_hi:[1,0,0]")
        nxt = stA(u, a+1) if a < 2 else []
        E(interleave([f"v_rcp_f32 v{T+j}, v{T+j}" for j in range(8)], nxt[:12], 2))
        for j in range(4): A(f"v_pk_mul_f32 {v(T+2*j,2)}, {v(T+2*j,2)}, {v(gp[j],2)}")
        for j in (0, 2, 1, 3): A(f"v_cvt_pk_bf16_f32 v{P+j}, v{T+2*j}, v{T+2*j+1}")
        E(nxt[12:14])
        sk = L("GS")
        A(f"s_bitcmp1_b32 s11, {3*a+u}\nv_permlane16_swap_b32 v{P}, v{P+2}\nv_permlane16_swap_b32 v{P+1}, v{P+3}\ns_cbranch_scc0 {sk}")
        A(f"buffer_store_dwordx4 {v(P,4)}, v1, {H}, s{80+u} offen offset:{1024*a} sc1")
        A.label(sk)
        E(nxt[14:])
    if u == 0: stamp((2, 3))
stamp((4, 1), (4, 3))
A("L_PUB:")
gsig()
A("L_PUB2:\ns_waitcnt vmcnt(0)"); flagstore(2)
A("s_branch L_SPART")
if OPT["dead"]:
    A("L_DEAD:\ns_barrier\ns_add_u32 s83, s83, 1\ns_cmp_lt_u32 s83, 7\ns_cbranch_scc1 L_DEAD")
    A(ldsadd(40, 32, 33)); flagstore(0); flagstore(1)
    A("s_branch L_PUB")

A("L_QKV:")
RV, MV, ONE, G = 88, 8, 76, 8
cst = f"""s_mov_b32 s70, {hx(1.4426950408889634)}
s_mov_b32 s71, {hx(1.4426950408889634)}
s_mov_b32 s72, {hx(1e-6)}
s_mov_b32 s73, {hx(1e-6)}
s_mov_b32 s74, 0xffff0000
s_mov_b32 s75, 0xffff0000
s_sub_u32 s87, s7, 15
s_lshl_b32 s87, s87, 1
s_add_u32 s87, s87, s14
s_mul_i32 s77, s87, {24*3072}
s_add_u32 s77, s77, {WS_KV}
s_lshl_b32 s78, s6, 1
s_add_u32 s78, s78, s13
s_mul_i32 s78, s78, 3072
s_add_u32 s78, s78, s77""".split("\n")
wb4 = lambda buf: 64 + 16*buf
mainloop('Q', treads('Q', 0, (2, 3, 4, 5), wb4) + cst)
rvr = lambda a: f"ds_read_b128 {v(RV+4*a,4)}, v7 offset:{64*a}"
mvr = lambda a: f"ds_read_b128 {v(MV+4*a,4)}, v7 offset:{MR-RR+64*a}"
x3 = ["v_and_b32 v75, 15, v0", "v_lshl_add_u32 v75, v75, 2, s79"] + [f"ds_read_b32 v{72+j}, v75 offset:{128+64*j}" for j in range(4)] \
   + [f"v_mov_b32 v{ONE+j}, 0x3f803f80" for j in range(4)] + [rvr(5), rvr(4)]
q0 = treads('Q', 0, (0, 1), wb2)
x3 += q0[:4] + [mvr(5), mvr(4), "s_waitcnt lgkmcnt(4)"] + q0[4:]
assert len(x3) > 23
tphase('Q', (2, 3, 4, 5), wb4, True, False, x3, {}, rows=(5, 4, 3, 2, 1, 0))
A("s_waitcnt lgkmcnt(6)")
for a in (3, 2, 1, 0): A(rvr(a)); A(mvr(a))
stamp((1, 3))
def phi2(pairs, T, dst):
    for j in range(8): A(f"v_pk_mul_f32 {v(T[j],2)}, {v(pairs[j],2)}, s[70:71]")
    for j in range(16):
        r = pairs[j//2] + (j & 1); t_ = T[j//2] + (j & 1)
        A(f"v_exp_f32 v{t_}, v{t_} clamp\nv_max_f32 v{r}, s72, v{r}")
    for j in range(8): A(f"v_pk_add_f32 {v(T[j],2)}, {v(T[j],2)}, {v(pairs[j],2)}")
    for j in range(8): A(f"v_cvt_pk_bf16_f32 v{dst[j]}, v{T[j]}, v{T[j]+1}")
prs = lambda a, j0: [acc(2*a + (j % 4)//2, j0 + j//4) + 2*(j & 1) for j in range(8)]
KVa, KVb, Za, Zb = acc(5,2), acc(5,3), acc(5,4), acc(5,5)
for a in (2, 1, 0):
    if a == 1: A("s_bitcmp1_b32 s11, 0\ns_cbranch_scc0 L_KVS\ns_waitcnt lgkmcnt(0)")
    off = lambda j: 4*(2*a + (j % 4)//2) + 2*(j & 1)
    pv = prs(a, 4); pk = prs(a, 2)
    PV = acc(2*a, 4); PK = acc(2*a, 2)
    TL = [acc(2*a+1, 4) + 2*j for j in range(4)] + [80 + 2*j for j in range(4)]
    for j in range(8): A(f"v_pk_mul_f32 {v(pv[j],2)}, {v(pv[j],2)}, {v(RV+off(j),2)}")
    for j in range(8): A(f"v_pk_fma_f32 {v(pk[j],2)}, {v(pk[j],2)}, {v(RV+off(j),2)}, s[72:73]")
    for j in range(8): A(f"v_pk_fma_f32 {v(pv[j],2)}, {v(MV+off(j),2)}, v[74:75], {v(pv[j],2)} op_sel:[0,{j//4},0] op_sel_hi:[1,{j//4},1]")
    for j in range(8): A(f"v_pk_fma_f32 {v(pk[j],2)}, {v(MV+off(j),2)}, v[72:73], {v(pk[j],2)} op_sel:[0,{j//4},0] op_sel_hi:[1,{j//4},1]")
    for j in range(8): A(f"v_cvt_pk_bf16_f32 v{PV+j}, v{pv[j]}, v{pv[j]+1}")
    phi2(pk, TL, [PK+j for j in range(8)])
    c0 = 0 if a == 2 else None
    A(mf16(KVa, PK, PV, c0)); A(mf16(KVb, PK+4, PV+4, c0)); A(mf16(Za, ONE, PK, c0)); A(mf16(Zb, ONE, PK+4, c0))
    if a: A("s_nop 3")
A("L_KVS:\ns_waitcnt lgkmcnt(0)")
G = 96
for j in (3, 7, 11): A(f"v_mov_b32 v{G+j}, {TAG}")
A("s_nop 4")
for j in range(4): A(f"v_permlane16_swap_b32 v{KVa+j}, v{KVb+j}")
for j in range(8): A(f"v_mov_b32 v{G+4*(j//3)+j%3}, v{KVa+j}")
A(f"v_cndmask_b32 v{G+10}, v{Za}, v{Zb}, s[74:75]")
for g_ in range(3): A(f"buffer_store_dwordx4 {v(G+4*g_,4)}, v6, {WS}, s78 offen offset:{1024*g_} sc1")
stamp((2, 3))
CTr = lambda p: acc(p, 2)
rsetup = cap(lambda: (A(f"""s_lshr_b32 s79, s6, 1
s_lshl_b32 s86, s79, 8
s_add_u32 s86, s86, s77
v_lshrrev_b32 v7, 4, v0
v_mul_u32_u24 v7, 3072, v7
v_and_b32 v{acc(0,5)}, 15, v0
v_lshl_add_u32 v7, v{acc(0,5)}, 4, v7
v_add_u32 v7, s86, v7"""), [A(f"v_mov_b32 v{CTr(5)+j}, " + (TAG if j % 4 == 3 else "0")) for j in range(12)],
    A("s_and_b32 s78, s6, 9\ns_add_u32 s78, s78, 2")))
tphase('Q', (0, 1), wb2, False, True, [], {0: rsetup[:11], 1: rsetup[11:] + [rsrd(a) for a in (5, 4, 3, 2)],
       2: [rsrd(1), rsrd(0), "ds_read_b128 v[80:83], v35", "ds_read_b128 v[84:87], v35 offset:64"]}, rows=(5, 4, 3, 2, 1, 0))
A("s_nop 3")
stamp((3, 1))
def rloads():
    for p in range(6):
        A(f"s_mov_b32 s86, {12288*p}")
        if p == 5: A("s_mov_b32 exec_hi, 0")
        for g_ in range(3): A(f"buffer_load_dwordx4 {v(CTr(p)+4*g_,4)}, v7, {WS}, s86 offen offset:{1024*g_} sc1")
    A("s_mov_b32 exec_hi, -1")
def rissue(t):
    if OPT["rq"] == t:
        A("s_cmp_eq_u32 s78, s4\ns_cbranch_scc0 L_NORI"); rloads(); stamp((4, 3)); A("L_NORI:")
rissue(0)
for a in (2, 1, 0):
    if a == 1: A("s_bitcmp1_b32 s11, 0\ns_cbranch_scc0 L_PUB")
    D_ = 40 + 8*a
    pq_ = prs(a, 0); cbq = lambda j: v(CB+4*(2*a + (j % 4)//2), 2)
    for j in range(8): A(f"v_pk_fma_f32 {v(pq_[j],2)}, {v(80+4*(j//4)+2*(j&1),2)}, {cbq(j)}, {v(pq_[j],2)} op_sel_hi:[1,0,1]")
    for j in range(8): A(f"v_pk_fma_f32 {v(pq_[j],2)}, {v(pq_[j],2)}, {cbq(j)}, s[72:73] op_sel:[0,1,0] op_sel_hi:[1,1,1]")
    phi2(pq_, [8+2*j for j in range(8)], [D_+j for j in range(8)])
    for hd in range(2):
        A(f"v_permlane16_swap_b32 v{D_+4*hd}, v{D_+4*hd+2}\nv_permlane16_swap_b32 v{D_+4*hd+1}, v{D_+4*hd+3}")
    A(f"buffer_store_dwordx4 {v(D_,4)}, v1, {H}, 0 offen offset:{1024*a} sc1")
    A(f"buffer_store_dwordx4 {v(D_+4,4)}, v1, {H}, s81 offen offset:{1024*a} sc1")
    rissue(3-a)
stamp((4, 1))
A("s_cmp_eq_u32 s78, s4\ns_cbranch_scc0 L_PUB")
gsig()
f_addr(9)
A(f"s_mov_b32 s88, 0\ns_waitcnt vmcnt({2*(3-OPT['rq'])})\nL_KVC:")
tagcheck(8, 64, [CTr(n//3)+4*(n%3)+3 for n in range(18)])
A(f"""v_cmp_ne_u32 vcc, 0, v8
s_add_u32 s88, s88, 1
s_cmp_gt_u32 s88, {OPT['spin']}
s_cbranch_scc1 L_KVD
s_cbranch_vccz L_KVD""")
rloads()
A("s_waitcnt vmcnt(0)\ns_branch L_KVC\nL_KVD:")
note("s88", 3)
rr = lambda p, j: CTr(p) + 4*(j//3) + j % 3
RA, RB = 12, 64
for j in range(9): A(f"v_add_f32 v{RA+j}, v{rr(0,j)}, v{rr(1,j)}")
for p in range(2, 6):
    for j in range(9): A(f"v_add_f32 v{RA+j}, v{RA+j}, v{rr(p,j)}")
for sw in (16, 32):
    for j in range(9): A(f"v_mov_b32 v{RB+j}, v{RA+j}")
    for j in range(9): A(f"v_permlane{sw}_swap_b32 v{RA+j}, v{RB+j}")
    for j in range(9): A(f"v_add_f32 v{RA+j}, v{RA+j}, v{RB+j}")
A(f"""s_lshr_b32 s86, s79, 1
s_lshl_b32 s86, s86, 3
s_add_u32 s87, s86, 2
s_add_u32 s88, s86, 4
s_add_u32 s89, s86, 6
v_mov_b32_dpp v{RA+9}, v{RA+8} row_shl:1 row_mask:0xf bank_mask:0xf""")
for j in range(4): A(f"v_cvt_pk_bf16_f32 v{RB+j}, v{RA+2*j}, v{RA+1+2*j}")
A(f"""v_cvt_pk_bf16_f32 v{RA+9}, v{RA+8}, v{RA+9}
s_bitcmp1_b32 s79, 0
s_cselect_b64 s[80:81], -1, 0
s_xor_b64 s[80:81], s[80:81], s[74:75]""")
for j in range(4): A(f"v_readlane_b32 s{70+j}, v{RA+9}, s{86+j}")
for j in range(4): A(f"v_mov_b32 v{RB+4+j}, s{70+j}")
for j in range(4): A(f"v_cndmask_b32 v{RB+8+j}, v{RB+j}, v{RB+4+j}, s[80:81]")
A(f"""s_mov_b32 exec_hi, 0
buffer_store_dwordx4 {v(RB+8,4)}, v9, {WS}, 0 offen sc1
s_mov_b32 exec_hi, -1
s_waitcnt vmcnt(1)""")
stamp((5, 3))
flagstore(2)

A("L_SPART:")
if OPT["sprio"] != OPT["prio"]: A(f"s_setprio {OPT['sprio']}")
stamp((5, 1), (3, 3))
xres_addr(1, 8); xres_load()
w2addr(4, 8, False)
A(f"""s_lshl_b32 s86, s4, 3
s_add_u32 s86, s86, 86
s_lshl_b32 s86, s86, 16
s_lshl_b32 s87, s84, 11
s_add_u32 s86, s86, s87
v_lshl_add_u32 v2, v0, 4, s86
s_mul_i32 s88, s84, 43
s_lshr_b32 s88, s88, 7
s_mul_i32 s88, s88, 23
s_lshl_b32 s87, s4, 1
s_add_u32 s88, s88, s87
s_add_u32 s88, s88, 15
s_lshl_b32 s88, s88, 12
s_add_u32 s88, s88, {WS_FLAG}
v_and_b32 v3, 7, v0
v_lshl_add_u32 v3, v3, 10, s88
s_lshl_b32 s74, s4, 13
s_add_u32 s74, s74, {WS_F}
v_lshl_add_u32 v8, v0, 4, s74
s_lshl_b32 s86, s4, 2
s_add_u32 s86, s86, {LF}
v_mov_b32 v10, s86
s_mov_b32 s72, {hx(1e-6)}
s_movk_i32 s73, 4096
s_mov_b32 s89, 0""")
if OPT["warm"]:
    assert OPT["sd"] == 8
    A("s_mov_b32 s75, 1\ns_mov_b64 exec, 0\ns_branch L_PIPE\nL_WBACK:\ns_mov_b32 s75, 0\ns_mov_b64 exec, -1")
stamp((1, 4))
if OPT['sdelay']: A(f"s_sleep {OPT['sdelay']}")
if OPT["comb"]:
    A("v_add_u32 v3, 48, v10"); spin_lds(3, 9)
else: spin_flag(3, 9, 8, 2)
note("s88", 4)
stamp((6, 1), (2, 4))
SD = OPT["sd"]
rho8()
A("s_lshl_b32 s78, s12, 2\ns_lshr_b32 s79, s12, 4")
def pqload(k):
    return [f"s_xor_b32 s86, s78, {k*65536}",
            f"buffer_load_dwordx4 {v(16+8*k,4)}, v2, {H}, s86 offen sc1",
            f"buffer_load_dwordx4 {v(20+8*k,4)}, v2, {H}, s86 offen offset:1024 sc1"]
def floads():
    for k in range(8):
        if k % 2 == 0: A(f"s_xor_b32 s86, s79, {k*1024}")
        A(f"buffer_load_dwordx4 {v(80+4*k,4)}, v8, {WS}, s86 offen offset:{1024*(k%2)} sc1")
if OPT["ffirst"]: floads()
for k in range(SD):
    if OPT["sdep"]: A(f"s_waitcnt vmcnt({OPT['sdep']-2})")
    E(pqload(k))
if OPT["ffirst"]: A(f"s_waitcnt vmcnt({2*SD})\ns_branch L_FC")
if OPT["hints"]:
    A(f"s_lshl_b32 s86, s4, 14\ns_add_u32 s86, s86, {WS_FF}\nv_lshl_add_u32 v9, v0, 10, s86")
    spin_flag(9, 11, 16)
else: A(f"s_waitcnt vmcnt({OPT['fafter']})")
A("s_branch L_FL\nL_FQ:\ns_sleep 8\nL_FL:")
floads()
A("s_waitcnt vmcnt(0)\nL_FC:\ns_add_u32 s89, s89, 1")
E(vmax(112, [80+4*k for k in range(8)]))
A(f"""v_cmp_eq_u32 vcc, -1, v112
s_cmp_gt_u32 s89, {OPT['spin']}
s_cbranch_scc1 L_FPD
s_cbranch_vccnz L_FQ
L_FPD:""")
note("s89", 4); note("s89", 1)
stamp((6, 3), (3, 4))
woloc = lambda k: (1, k) if k < 6 else (2, k-2)
def Om(k): return [mfma(128+32*(k&1)+16*r, 80+4*k, 16+8*k+4*r, 0) for r in range(2)]
def Vv(k):
    o = []
    D = [128+32*(k&1)+16*r for r in range(2)]
    nd = [((d, d+8) if k % 2 == 0 else (d+8, d)) for d in D]
    for num, den in nd: o.append(f"v_add_f32 v{den}, s72, v{den}")
    for num, den in nd: o.append(f"v_rcp_f32 v{den}, v{den}")
    for r, (num, den) in enumerate(nd):
        if OPT["spk"]:
            for j in range(4): o.append(f"v_pk_mul_f32 {v(num+2*j,2)}, {v(num+2*j,2)}, {v(den,2)} op_sel_hi:[1,0]")
        else:
            for j in range(8): o.append(f"v_mul_f32 v{num+j}, v{num+j}, v{den}")
        for j in range(4): o.append(f"v_cvt_pk_bf16_f32 v{16+8*k+4*r+j}, v{num+2*j}, v{num+2*j+1}")
    return o
def Sm(k): return [mfmaH(192+32*r+16*c, 112+8*(k&1)+4*c, 16+8*k+4*r, 0 if k <= OPT['h16'] else None, k & 1) for r in range(2) for c in range(2)]
issued = [SD]
def need(k):
    o = [f"s_waitcnt vmcnt({2*(issued[0]-1-k)})"]
    more = []
    if issued[0] < 8: more = pqload(issued[0]); issued[0] += 1
    return o, more
A('L_PIPE:')
E(w2read(112, *woloc(0), 4, False))
for k in (0, 1):
    w_, m_ = need(k); E(w_ + Om(k) + m_)
E(Vv(0))
for k in range(8):
    A("s_waitcnt lgkmcnt(0)")
    fill = (w2read(112+8*((k+1)&1), *woloc(k+1), 4, False) + Vv(k+1)) if k+1 < 8 else []
    if k == 7:
        fill = cap(lambda: (wraddr(80, False), rdaddr(4, False, 1, 88), A(f"s_lshl_b32 s86, s4, 11\ns_add_u32 s86, s86, {GB}\nv_lshl_add_u32 v9, v0, 4, s86"),
            [A(f"v_lshlrev_b32 v{112+2*j}, 16, v{12+j}\nv_and_b32 v{113+2*j}, 0xffff0000, v{12+j}") for j in range(4)]))
    NF = 16 if OPT['spk'] else 20
    if k == 7: NF = 28
    E(interleave(Sm(k), fill[:NF], NF//4))
    if k+2 < 8:
        w_, m_ = need(k+2); E(w_); E(interleave(Om(k+2), fill[NF:] + m_, 6))
    else: E(fill[NF:])
    if k == 3: stamp((4, 4))
if OPT["warm"] == 1: A("s_cmp_eq_u32 s75, 1\ns_cbranch_scc1 L_WBACK")
stamp((7, 1), (5, 4))
final(False)
stamp((6, 4))
if OPT["fin"] == 0: A("s_barrier\nds_read_b128 v[88:91], v9\nds_read_b128 v[92:95], v9 offset:1024\ns_branch L_FIN2")
else: A("s_barrier\ns_branch L_FIN2")

A("L_FINAL:")
stamp((6, 4))
A("s_barrier")
if OPT["fin"] == 1: A("ds_read_b128 v[88:91], v109\nds_read_b128 v[92:95], v109 offset:1024")
A("L_FIN2:")
stamp((7, 3), (7, 4))
rd4(48, 4)
A("s_waitcnt lgkmcnt(0)")
sum4(48)
if OPT["fin"] == 1:
    for j in range(4): A(f"v_pk_mul_f32 {v(56+2*j,2)}, {v(48+2*j,2)}, s[70:71]")
    E(interleave([f"v_exp_f32 v{56+j}, v{56+j}" for j in range(8)], [f"v_pk_mul_f32 {v(88+2*j,2)}, {v(88+2*j,2)}, {v(48+2*j,2)}" for j in range(4)], 1))
    for j in range(4): A(f"v_pk_add_f32 {v(56+2*j,2)}, {v(56+2*j,2)}, 1.0 op_sel_hi:[1,0]")
    for j in range(8): A(f"v_rcp_f32 v{48+j}, v{56+j}")
for j in range(4): A(f"v_pk_fma_f32 {v(48+2*j,2)}, {v(48+2*j,2)}, {v(88+2*j,2)}, {v(112+2*j,2)}")
for j in range(4): A(f"v_cvt_pk_bf16_f32 v{24+j}, v{48+2*j}, v{49+2*j}")
if OPT["warm"] == 2: A("s_cbranch_execz L_WBACK")
A(f"""buffer_store_dwordx4 v[24:27], v1, {OUT}, 0 offen {['', 'sc1', 'nt', 'sc0 sc1'][OPT['osc']]}
s_add_u32 s86, s2, s3
s_cmp_eq_u32 s86, 0
s_cbranch_scc0 L_NOBUMP
v_mov_b32 v2, 0
v_mov_b32 v3, {TAG}
buffer_store_dword v3, v2, {WS}, 0 offen sc1
L_NOBUMP:""")
if OPT["stamps"]:
    A("s_waitcnt vmcnt(0)")
    stamp((8, 0))
    A(f"""s_memrealtime s[68:69]
s_waitcnt lgkmcnt(0)
s_mov_b32 s101, s68""")
    if OPT["diag"]:
        A(f"""s_cmp_lg_u32 s3, {OPT['dwave']}
s_cbranch_scc1 L_END
s_sub_u32 s86, s{92+OPT['diag']}, s34
s_lshl_b32 s86, s86, 2
s_min_u32 s86, s86, 20000
L_DSPIN:
s_memrealtime s[68:69]
s_waitcnt lgkmcnt(0)
s_sub_u32 s87, s68, s101
s_sleep 2
s_cmp_lt_u32 s87, s86
s_cbranch_scc1 L_DSPIN
s_endpgm""")
    A(f"""s_lshl_b32 s86, s2, 3
s_add_u32 s86, s86, s3
s_lshl_b32 s86, s86, 6
s_add_u32 s86, s86, {WS_DBG}
v_mov_b32 v2, s86""")
    for i in range(10): A(f"v_mov_b32 v3, s{92+i}\nbuffer_store_dword v3, v2, {WS}, 0 offen offset:{4*i}")
    A(f"v_mov_b32 v3, s34\nbuffer_store_dword v3, v2, {WS}, 0 offen offset:40")
    A(f"v_mov_b32 v3, s35\nbuffer_store_dword v3, v2, {WS}, 0 offen offset:44")
A("L_END:\ns_endpgm")

lines, errs = pad(A.lines)
for e in errs: print("HAZARD:", e, file=sys.stderr)
hdr = open("cdna_kernels/%s.s.ref" % NAME).read().split("; Override launch")[0]
out = hdr + f"""; Fused single-launch kernel, emitted by my own generator script (gen/gen.py); 256 WGs x 8 waves, 1 WG per CU.
;  Phase 1: 192x192 tiles of x @ [w_gate|w_up] (GU role) or x @ [wq|wk|wv] (QKV role), K streamed through a
;    3-slot LDS ring by LDS-DMA (waves 0-1), MFMA 16x16x32 in waves 4-7. LayerNorm is applied after the GEMM:
;    r*(acc - mean*colsum(W)); row stats and column sums are computed once and shared through tagged granules.
;    GU epilogue: gelu(g)*u -> h fragments; QKV epilogue: phi(k)^T v / sum phi(k) partials, phi(q) fragments.
;  Phase 2: 64x64 output tiles: waves 0-3 y = h @ w_down (K split), waves 4-7 o = phi(q) kv / den, s = o @ wo,
;    LDS reduction, out = x + s * silu(y).
;  Hand-offs: write-through (sc1) stores, drained, then a flag line holding this launch's tag (tag = word found at
;    d_ws[0] + constant, written back at the end); readers use sc1 loads. All waits are bounded.
; @launch grid=(256,1,1) block=(512,1,1) lds={LDS}
.amdgcn_target "amdgcn-amd-amdhsa--gfx950"
.text
.globl {NAME}_kernel
.p2align 8
.type {NAME}_kernel,@function
{NAME}_kernel:
""" + render(lines) + f""".section .rodata,"a"
.p2align 6
.amdhsa_kernel {NAME}_kernel
  .amdhsa_next_free_vgpr 256
  .amdhsa_next_free_sgpr 102
  .amdhsa_accum_offset 256
  .amdhsa_group_segment_fixed_size 0
  .amdhsa_kernarg_size 80
  .amdhsa_user_sgpr_count 2
  .amdhsa_user_sgpr_kernarg_segment_ptr 1
  .amdhsa_system_sgpr_workgroup_id_x 1
.end_amdhsa_kernel
"""
open(sys.argv[1], "w").write(out)
```

```python
import sys, struct
from asmlib import *
NAME = "recurrent_scan__linear_attn_block__glu_gated_geglu__prompt"
OPT = dict(stamps=0, rot=2, prio=1, pfcode=1, spin=1<<17, thr=4, unthr=41, n7=1, ca=14, cb=22, h=5, mix=0, sub=0,
           psleep=2, ydep=5, sdep=0, w2late=0, p2map=1, stage=1, sprio=1, ydelay=-1, sdelay=0, fdelay=0, rdelay=0, xlate=0, now2=0, sd=3, apoll=0, fgate=1, rt=1, zf=1, nr=0, r0=3, lred=0, prew=0, hints=0, comb=1, fafter=0, h16=0, gate=4, ffirst=1, warm=0, nodma=0, redearly=1, xz=1, gmix=0, qmix=0, qnop=0, bpos=0, rgap=3, spk=0, diag=0, dwave=4, nrep=2, nl=4, p1=1, p2=7, osc=0, gpos=1, c2=9, yprio=2, ydrop=22, ypost=0, mord=0, adapt=1, ypk=0, nb=3, pf2=-1, drot=0, xfirst=1, nostat=0, w1pf=-9, slow=0, dead=1, qg=0, rq=1, tfrom=6, nc=0, thr2=4, nraw=6, krot=0, slo=0, shi=0, sn=4, nearly=0, e0=3, e1=6, fin=0, c1=-1, pre0=11, pe=-1)
for a in sys.argv[2:]:
    k, v_ = a.split("="); assert k in OPT, k; OPT[k] = int(v_, 0)
def f2u(x): return struct.unpack("<I", struct.pack("<f", x))[0]
def hx(x): return "0x%08x" % f2u(x)

SLOT = 49152; XW = 24576; UPOFF = 12288; MISC = 3*SLOT; LDS = 163840
RS = MISC; RR = MISC+3072; CF = MISC+3840; MR = MISC+4608; LF = MISC+5376; GB = MISC+5632
Q = 12288
WS_RS = 0x10000; WS_CS = 0x20000; WS_FLAG = 0x300000; WS_FF = 0x60000; WS_DBG = 0x80000; WS_F = 0xC0000; WS_KV = 0x100000; WS_H = 0x800000
X="s[36:39]"; W="s[40:43]"; WS="s[44:47]"; H="s[48:51]"; WD="s[56:59]"; WO="s[60:63]"; OUT="s[64:67]"
TAG="s10"
def v(b, n=1): return f"v{b}" if n == 1 else f"v[{b}:{b+n-1}]"
def mfma(d, a, b, c=None):
    return f"v_mfma_f32_32x32x16_bf16 {v(d,16)}, {v(a,4)}, {v(b,4)}, " + ("0" if c == 0 else v(d,16))
def mfmaH(d, a, b, c, alt):
    if not OPT["h16"]: return mfma(d, a, b, c)
    return mf16(d+8*alt, a, b, c) + "\n" + mf16(d+8*alt+4, a ^ 4, b, c)
def mf16(d, a, b, c=None):
    return f"v_mfma_f32_16x16x32_bf16 {v(d,4)}, {v(a,4)}, {v(b,4)}, " + ("0" if c == 0 else v(d,4))
def bc(r): return v(r & ~1, 2), r & 1
_lab = [0]
def L(p="L"):
    _lab[0] += 1; return f"{p}_{_lab[0]}"
A = Asm()
def E(lst):
    for t in lst: A(t)
def cap(fn):
    n = len(A.lines); fn(); o = [t for _, t in A.lines[n:]]; del A.lines[n:]; return o
def stamp(*pairs):
    for i, st in pairs:
        if OPT["stamps"] == st or (OPT["stamps"] and st == 0):
            A(f"{'s_memrealtime' if (OPT['rt'] and i != 8) else 's_memtime'} s[68:69]\ns_waitcnt lgkmcnt(0)\ns_mov_b32 s{92+i}, s68")
def note(reg, st):
    if OPT["stamps"] == st: A(f"s_mov_b32 s35, {reg}")
def srd(name, lo, size, add=0):
    b = int(name[2:4])
    if add: A(f"s_add_u32 s{b}, s{lo}, {add}\ns_addc_u32 s{b+1}, s{lo+1}, 0")
    else: A(f"s_mov_b32 s{b}, s{lo}\ns_mov_b32 s{b+1}, s{lo+1}")
    A(f"s_mov_b32 s{b+2}, {size}\ns_mov_b32 s{b+3}, 0x20000")
def spin_flag(vaddr, vt, nl, kind=None, first=0):
    l1, l2 = L("POLL"), L("POLLD")
    A(f"""s_mov_b32 s88, {first}
s_mov_b64 exec, {hex((1<<nl)-1)}
{l1}:
s_and_b32 s87, s88, {OPT['nrep']-1}
s_lshl_b32 s87, s87, 7""")
    if kind: A(f"s_add_u32 s87, s87, {kind << 20}")
    A(f"""buffer_load_dword {v(vt)}, {v(vaddr)}, {WS}, s87 offen sc1
s_add_u32 s88, s88, 1
s_waitcnt vmcnt(0)
v_cmp_ne_u32 vcc, {TAG}, {v(vt)}
s_cmp_gt_u32 s88, {OPT['spin']}
s_cbranch_scc1 {l2}
s_cbranch_vccz {l2}
s_sleep {OPT['psleep']}
s_branch {l1}
{l2}:
s_mov_b64 exec, -1""")
def spin_lds(vaddr, vt, need=1):
    l1, l2 = L("LP"), L("LPD")
    A(f"""s_mov_b32 s86, 0
{l1}:
ds_read_b32 {v(vt)}, {v(vaddr)}
s_add_u32 s86, s86, 1
s_waitcnt lgkmcnt(0)
v_cmp_gt_u32 vcc, {need}, {v(vt)}
s_cmp_gt_u32 s86, {OPT['spin']*8}
s_cbranch_scc1 {l2}
s_cbranch_vccz {l2}
s_sleep 1
s_branch {l1}
{l2}:""")
def vmax(dst, regs_):
    o = []; r = list(regs_)
    if len(r) == 2: return [f"v_max_u32 v{dst}, v{r[0]}, v{r[1]}"]
    o.append(f"v_max3_u32 v{dst}, v{r[0]}, v{r[1]}, v{r[2]}"); r = r[3:]
    while r:
        if len(r) >= 2: o.append(f"v_max3_u32 v{dst}, v{dst}, v{r[0]}, v{r[1]}"); r = r[2:]
        else: o.append(f"v_max_u32 v{dst}, v{dst}, v{r[0]}"); r = r[1:]
    return o
def tagcheck(dst, tmp, regs_):
    for n, r in enumerate(regs_): A(f"v_xor_b32 v{dst if n == 0 else tmp+n}, {TAG}, v{r}")
    n = 1
    while n < len(regs_):
        if n+1 < len(regs_): A(f"v_or3_b32 v{dst}, v{dst}, v{tmp+n}, v{tmp+n+1}"); n += 2
        else: A(f"v_or_b32 v{dst}, v{dst}, v{tmp+n}"); n += 1

A(f"""s_cmp_ge_u32 s2, 256
s_cbranch_scc1 L_END
s_load_dwordx16 s[16:31], s[0:1], 0
s_load_dwordx2 s[32:33], s[0:1], 72""")
if OPT["stamps"]: A("s_memrealtime s[34:35]\ns_memtime s[68:69]")
A(f"""v_lshrrev_b32 v1, 6, v0
v_and_b32 v0, 63, v0
v_readfirstlane_b32 s3, v1
s_and_b32 s5, s2, 7
s_lshr_b32 s86, s2, 3""")
if OPT["p2map"] == 0:
    A("s_lshl_b32 s84, s5, 2\ns_lshr_b32 s87, s86, 3\ns_add_u32 s84, s84, s87\ns_and_b32 s85, s86, 7")
else:
    A("""s_lshr_b32 s84, s5, 1
s_lshl_b32 s84, s84, 3
s_lshr_b32 s87, s86, 2
s_add_u32 s84, s84, s87
s_and_b32 s85, s5, 1
s_lshl_b32 s85, s85, 2
s_and_b32 s87, s86, 3
s_add_u32 s85, s85, s87""")
A(f"""s_lshl_b32 s5, s5, 5
s_add_u32 s5, s5, s86
s_and_b32 s4, s3, 3
s_mov_b32 s12, 0
s_cmp_lt_u32 s5, 138
s_cbranch_scc0 L_BOT
s_mul_i32 s7, s5, 171
s_lshr_b32 s7, s7, 10
s_mul_i32 s86, s7, 6
s_sub_u32 s6, s5, s86
s_branch L_IDS
L_BOT:
s_cmp_ge_u32 s5, 253
s_cselect_b32 s12, 1, 0
s_cselect_b32 s86, 5, 0
s_sub_u32 s86, s5, s86
s_sub_u32 s86, s86, 138
s_mul_i32 s87, s86, 205
s_lshr_b32 s87, s87, 10
s_sub_u32 s7, 22, s87
s_mul_i32 s87, s87, 5
s_sub_u32 s6, s86, s87
s_add_u32 s6, s6, 6
L_IDS:
s_mov_b32 s90, s7""")
if OPT["mix"] == 2:
    A("""s_mul_i32 s86, s7, 43
s_lshr_b32 s86, s86, 8
s_mul_i32 s87, s86, 6
s_sub_u32 s87, s7, s87
s_lshl2_add_u32 s88, s86, s87
s_lshl1_add_u32 s86, s86, s87
s_add_u32 s86, s86, 11
s_cmp_ge_u32 s87, 4
s_cselect_b32 s88, s86, s88
s_cmp_ge_u32 s7, 21
s_cselect_b32 s7, s7, s88""")
if OPT["mix"] == 1:
    A("""s_mul_i32 s86, s7, 43
s_lshr_b32 s86, s86, 7
s_sub_u32 s87, s7, s86
s_lshl_b32 s88, s86, 1
s_sub_u32 s88, s87, s88
s_add_u32 s86, s86, 15
s_cmp_eq_u32 s7, 22
s_cselect_b32 s7, s86, s87
s_cmp_eq_u32 s88, 2
s_cselect_b32 s7, s86, s7""")
A(f"""s_mul_i32 s8, s6, 192
s_min_u32 s8, s8, 1856
s_mul_i32 s9, s7, 96
s_min_u32 s9, s9, 1280
s_cmp_lt_u32 s3, 4
s_cbranch_scc1 L_LOADER""")
def kwait():
    A("s_waitcnt lgkmcnt(0)\ns_load_dword s10, s[32:33], 0")
    if OPT["stamps"]: A("s_mov_b32 s92, s68")
    srd(X, 16, 2097152)
if OPT["prio"]: A(f"s_setprio {OPT['prio']}")
if OPT["pfcode"]:
    A(f"""s_getpc_b64 s[88:89]
L_PC:
s_sub_u32 s88, s88, L_PC-{NAME}_kernel
s_subb_u32 s89, s89, 0
s_lshr_b32 s86, s2, 3
s_lshl_b32 s86, s86, 3
s_lshl_b32 s87, s4, 1
s_add_u32 s86, s86, s87
v_and_b32 v3, 1, v0
v_add_u32 v3, s86, v3
v_lshlrev_b32 v3, 7, v3
v_min_u32 v3, L_END-{NAME}_kernel, v3
global_load_dword v47, v3, s[88:89]""")
A(f"""s_lshl_b32 s86, s5, 3
s_lshl_b32 s87, s4, 1
s_add_u32 s86, s86, s87
v_lshrrev_b32 v7, 5, v0
v_add_u32 v7, s86, v7
v_and_b32 v2, 31, v0
v_lshlrev_b32 v2, 4, v2
v_lshl_add_u32 v2, v7, 10, v2""")
kwait()
if not OPT["nostat"]: A(f"""buffer_load_dwordx4 v[8:11], v2, {X}, 0 offen
buffer_load_dwordx4 v[12:15], v2, {X}, 0 offen offset:512""")
stamp((1, 2))
A("s_branch L_COMPUTE\nL_LOADER:")

def w2addr(base, T, nat):
    a_, b_, c_, d_ = T, T+1, T+2, T+3
    A(f"""v_and_b32 v{a_}, 3, v0
v_bfe_u32 v{b_}, v0, 2, 2
v_bfe_u32 v{c_}, v0, 4, 1
v_lshrrev_b32 v{d_}, 5, v0
v_lshl_add_u32 v{d_}, v{d_}, {3 if nat else 2}, v{b_}
v_lshlrev_b32 v{d_}, 7, v{d_}
v_lshrrev_b32 v{b_}, 1, v{b_}
v_lshl_add_u32 v{c_}, v{b_}, 2, v{c_}
v_and_b32 v{b_}, 1, v{a_}
v_lshl_add_u32 v{c_}, v{b_}, 1, v{c_}
v_lshl_add_u32 v{d_}, v{c_}, 4, v{d_}
v_lshrrev_b32 v{a_}, 1, v{a_}
v_lshl_add_u32 v{d_}, v{a_}, 3, v{d_}
v_add_u32 v{base}, s76, v{d_}
v_xor_b32 v{d_}, 64, v{d_}
v_add_u32 v{base+1}, s76, v{d_}
v_add_u32 v{base+2}, {2*SLOT}, v{base}
v_add_u32 v{base+3}, {2*SLOT}, v{base+1}""")
def w2read(dst, slot, blk, ab, nat=True):
    o = []
    for c in range(2):
        for sec in range(2):
            ar = ab + c + (2 if slot == 2 else 0)
            off = (SLOT if slot == 1 else 0) + blk*2048 + sec*(512 if nat else 1024)
            o.append(f"ds_read_b64_tr_b16 {v(dst+4*c+2*sec,2)}, v{ar} offset:{off}")
    return o
def xres_addr(half, T):
    A(f"""s_lshl_b32 s86, s4, 4
s_lshl_b32 s87, s84, 6
s_add_u32 s86, s86, s87
s_add_u32 s86, s86, {8*half}
s_lshl_b32 s86, s86, 10
s_lshl_b32 s87, s85, 7
s_add_u32 s86, s86, s87
v_lshrrev_b32 v{T}, 3, v0
v_lshlrev_b32 v{T}, 10, v{T}
v_and_b32 v{T+1}, 7, v0
v_lshl_add_u32 v{T}, v{T+1}, 4, v{T}
v_add_u32 v1, s86, v{T}""")
def xres_load(late=0):
    if OPT["xlate"] == late: A(f"buffer_load_dwordx4 v[12:15], v1, {X}, 0 offen")
def p2setup():
    srd(WS, 32, 0x800000); srd(H, 32, 118*65536, WS_H); srd(WD, 28, 1376*1024); srd(WO, 20, 512*1024); srd(OUT, 30, 2097152)
    A(f"""v_lshrrev_b32 v24, 3, v0
v_lshlrev_b32 v24, 10, v24
v_and_b32 v25, 7, v0
v_bfe_u32 v26, v0, 4, 1
v_lshlrev_b32 v26, 2, v26
v_xor_b32 v25, v25, v26
v_lshl_add_u32 v24, v25, 4, v24
s_lshl_b32 s86, s85, 7
v_add_u32 v4, s86, v24
s_mul_i32 s87, s4, {3*16384}
v_add_u32 v2, s87, v4
s_add_u32 s87, s4, 84
s_lshl_b32 s87, s87, 14
v_add_u32 v3, s87, v4
s_lshl_b32 s87, s4, 17
v_add_u32 v4, s87, v4
s_mul_i32 s76, s4, {Q}
s_lshl_b32 s87, s84, 11
s_mul_i32 s86, s4, {3*65536}
s_add_u32 s86, s86, s87
v_lshl_add_u32 v6, v0, 4, s86
v_bfe_u32 v24, v0, 1, 3
v_lshlrev_b32 v24, 3, v24
s_lshr_b32 s86, s4, 1
s_lshl_b32 s86, s86, 2
s_and_b32 s90, s4, 1
s_add_u32 s86, s86, s90
v_add_u32 v24, s86, v24
v_min_u32 v24, 57, v24
v_cmp_eq_u32 vcc, 56, v24
v_cndmask_b32 v24, v24, 57, vcc
v_and_b32 v25, 1, v0
v_lshl_add_u32 v24, v25, 1, v24
s_lshl_b32 s86, s4, 3
s_add_u32 s86, s86, 44
v_add_u32 v25, s86, v0
v_cmp_lt_u32 vcc, 15, v0
v_cndmask_b32 v24, v24, v25, vcc
s_mul_i32 s86, s84, 43
s_lshr_b32 s86, s86, 7
s_mul_i32 s86, s86, {23*4096}
s_add_u32 s86, s86, {WS_FLAG}
v_lshl_add_u32 v5, v24, 10, s86
s_add_u32 s86, s4, 84
s_lshl_b32 s86, s86, 16
s_add_u32 s86, s86, s87
s_cmp_lt_u32 s4, 2
s_cselect_b32 s86, s86, 0x80000000
v_lshl_add_u32 v7, v0, 4, s86""")
    w2addr(8, 24, True); xres_addr(0, 24); rho8()
    A(f"s_waitcnt lgkmcnt(0)\ns_add_u32 {TAG}, {TAG}, 0x9E3779B9")
def wfrag_addr(dst, swc, T, lab):
    A(f"""v_and_b32 v{T}, 3, v0
v_bfe_u32 v{T+1}, v0, 2, 2
v_bfe_u32 v{T+2}, v0, 4, 1
s_cmp_ge_u32 s7, 15
s_cbranch_scc1 {lab}Q
v_lshrrev_b32 v{T+3}, 4, v0
v_lshl_add_u32 v{T+3}, v{T+3}, 3, v{T+1}
v_mul_u32_u24 v{T+3}, 192, v{T+3}
v_lshl_add_u32 v{T}, v{T}, 3, v{T+3}
v_add_u32 v{T}, {XW}, v{T}
s_mul_i32 s87, {swc}, 3
v_xor_b32 v{T+3}, s87, v{T+2}
v_lshl_add_u32 v{dst}, v{T+3}, 5, v{T}
s_add_u32 s87, s87, 1
v_xor_b32 v{T+3}, s87, v{T+2}
v_lshl_add_u32 v{dst+1}, v{T+3}, 5, v{T}
s_branch {lab}D
{lab}Q:
v_lshrrev_b32 v{T+3}, 5, v0
v_mul_u32_u24 v{T+3}, 3072, v{T+3}
v_lshl_add_u32 v{T+3}, v{T+1}, 7, v{T+3}
v_mul_u32_u24 v{T+4}, {UPOFF+32}, v{T+2}
v_lshrrev_b32 v{T+1}, 1, v{T+1}
v_xor_b32 v{T+1}, {swc}, v{T+1}
v_lshl_add_u32 v{T+4}, v{T+1}, 6, v{T+4}
v_lshl_add_u32 v{T}, v{T}, 3, v{T+3}
v_add_u32 v{T}, {XW}, v{T}
v_add_u32 v{dst}, v{T}, v{T+4}
v_xor_b32 v{dst+1}, 32, v{dst}
{lab}D:""")
def woff(role, s_, j, sec):
    if role == 'G':
        jj = j % 3
        return jj & 1, s_*6144 + sec*768 + (j//3)*UPOFF + (64 if jj == 2 else 0)
    return j & 1, s_*6144 + (j//2)*1024 + sec*512
def ksoff(kd): return 12*(kd % 7) + kd//7
S2R = [('o',6+k,2,4+k) for k in range(2)] + [('d',12+k,2,k) for k in range(4)]
S0R = [('d',16+k,0,k) for k in range(6)]
items = [('d',k,2,k) for k in range(6)] + [('d',6+k,2,k) for k in range(6)] + S2R + [('o',k,1,k) for k in range(6)] + S0R
N7 = OPT["n7"]
def rho8():
    if OPT["krot"]: A("s_add_u32 s12, s84, s85\ns_and_b32 s12, s12, 3\ns_lshl_b32 s12, s12, 15")
    else: A("s_mov_b32 s12, 0")
def ktable():
    if OPT["krot"]:
        A("""s_lshl1_add_u32 s86, s85, s84
s_mul_i32 s87, s86, 37
s_lshr_b32 s87, s87, 8
s_mul_i32 s87, s87, 7
s_sub_u32 s86, s86, s87""")
    else: A("s_mov_b32 s86, 0")
    A(f"s_mul_i32 s77, s86, {12*16384}")
    for i in range(1, 7):
        A(f"s_add_u32 s{77+i}, s{76+i}, {12*16384}\ns_cmp_eq_u32 s{77+i}, {84*16384}\ns_cselect_b32 s{77+i}, 0, s{77+i}")
def w2ops(kind, k, dst, thr=None):
    nm = kind + str(k)
    if kind == 'o': va, S_, so = 4, WO, f"s_xor_b32 s86, s12, {k*16384}"
    elif k < 21: va, S_, so = 2, WD, f"s_add_u32 s86, s{77 + k % 7}, {(k//7)*16384}"
    else: va, S_, so = 3, WD, "s_mov_b32 s86, 0"
    if isinstance(dst, tuple):
        pre = f"s_add_u32 m0, s76, {dst[0]*SLOT + dst[1]*2048}\n{so}\ns_add_u32 s87, s86, 7168"
        i1 = f"buffer_load_dwordx4 v{va}, {S_}, s86 offen lds"; i2 = f"buffer_load_dwordx4 v{va}, {S_}, s87 offen offset:1024 lds"
    else:
        pre = f"{so}\ns_add_u32 s87, s86, 8192"
        i1 = f"buffer_load_dwordx4 {v(dst,4)}, v{va}, {S_}, s86 offen"; i2 = f"buffer_load_dwordx4 {v(dst+4,4)}, v{va}, {S_}, s87 offen"
    tw = f"s_waitcnt vmcnt({thr})\n" if thr is not None else ""
    return [pre, f"VM {nm}a|{tw}{i1}", f"VM {nm}|{tw}{i2}"]
NE = OPT["nearly"]
def rawblocks():
    steps = list(range(OPT["e0"], OPT["e1"])); n = len(steps)
    for i, st in enumerate(steps):
        its = range(NE*i//n, NE*(i+1)//n)
        if not len(its): continue
        sk = L("RW")
        A(f"s_cmp_eq_u32 s83, {st}\ns_cbranch_scc0 {sk}")
        for k in its:
            for t in w2ops('o', k, 192+8*k): A(t.split("|")[-1])
        A.label(sk)
def w2item(n):
    for t in w2ops(items[n][0], items[n][1], items[n][2:]): A(t.split("|")[-1])

A(f"""s_cmp_ge_u32 s3, 2
s_cbranch_scc1 L_SIDE
s_add_u32 s79, s6, s90""")
R_ = OPT["drot"] or OPT["rot"]
A(f"s_and_b32 s79, s79, {R_-1}\ns_lshl_b32 s79, s79, { {1:0, 2:2, 4:1, 8:0}[R_] }")
A(f"""v_lshrrev_b32 v24, 3, v0
v_and_b32 v25, 7, v0
v_lshrrev_b32 v26, 4, v0
v_xor_b32 v27, v25, v26
s_mul_i32 s86, s4, 96
s_add_u32 s86, s86, s8
s_lshl_b32 s86, s86, 10
v_lshl_add_u32 v16, v24, 10, s86
v_lshl_add_u32 v16, v27, 4, v16
v_xor_b32 v17, 64, v16
v_add_u32 v18, {2*7168}, v16
v_add_u32 v19, {3*7168}, v17
v_add_u32 v17, 7168, v17
s_mul_i32 s74, s4, 12288
""")
XG = ["s70", "s71", "s72"]; WL = ["s52", "s53", "s54", "s55"]; WG = ["s73", "s77", "s14", "s15"]
sh = {2: 1, 4: 2, 8: 0, 1: 0}[R_]
if OPT["sub"]:
    A(f"""s_lshr_b32 s86, s90, {sh}
s_mul_i32 s87, s86, 43
s_lshr_b32 s87, s87, 7
s_mul_i32 s87, s87, 3
s_sub_u32 s86, s86, s87
""")
else:
    A("s_mov_b32 s86, 0")
A("""s_lshl_b32 s70, s86, 12
s_add_u32 s71, s70, 4096
s_cmp_eq_u32 s71, 12288
s_cselect_b32 s71, 0, s71
s_add_u32 s72, s70, s71
s_sub_u32 s72, 12288, s72""")
XN = ["s11", "s13", "s91"]
A(f"s_lshl_b32 s86, s4, 4\ns_add_u32 s86, s86, s6\ns_cmp_eq_u32 s86, 10\ns_cselect_b32 s88, {8192 if OPT['xz'] else 0}, 0\ns_cmp_eq_u32 s12, 1\ns_cselect_b32 s88, {65536 if OPT['xz'] else 0}, s88")
for g in range(3): A(f"s_cmp_lt_u32 {XG[g]}, s88\ns_cselect_b32 {XN[g]}, 0, 2097152")
A("s_lshl_b32 s80, s79, 7\ns_mov_b32 s88, s74")
kwait()
stamp((1, 2))
def issue_head():
    A(f"""s_lshl_b32 s80, s79, 7
s_mul_i32 s81, s79, s82
s_lshl_b32 s81, s81, 2
s_add_u32 s88, s78, s74
s_add_u32 s89, s78, s75""")
ORDER = ["x0", "w0", "x1", "w1", "x2", "w2", "w3"]
def issue_part(lo, hi, order=None):
    n = 0
    for it in (order or ORDER[lo:hi]):
        g = int(it[1])
        if it[0] == 'x':
            A(f"s_add_u32 m0, s88, {XG[g]}\ns_lshl3_add_u32 s86, {XG[g]}, s80\ns_mov_b32 s38, {XN[g]}")
            for q in range(4): A(f"buffer_load_dwordx4 v{16+q}, {X}, s86 offen offset:{1024*q} lds")
            n += 4
        else:
            A(f"s_add_u32 m0, s89, {WL[g]}\ns_add_u32 s87, s81, {WG[g]}")
            for j in range(3): A(f"buffer_load_dwordx4 v{20+j}, {W}, s87 offen offset:{1024*j} lds")
            n += 3
    return n
def issue_tail():
    A(f"""s_add_u32 s79, s79, 1
s_and_b32 s79, s79, 7
s_add_u32 s78, s78, {SLOT}
s_cmp_eq_u32 s78, {3*SLOT}
s_cselect_b32 s78, 0, s78""")
HH = OPT["h"]
issue_part(0, 0, ["x0", "x1", "x2"][:3 if OPT["xfirst"] == 1 else 1])
A(f"""s_mul_i32 s75, s4, {UPOFF}
s_add_u32 s75, s75, {XW}
s_mov_b32 s43, 0x20000
s_mov_b32 s78, 0
s_cmp_ge_u32 s7, 15
s_cbranch_scc1 L_LQKV
s_mov_b32 s42, {512*2752}
s_mov_b32 s82, {16*2752}
s_movk_i32 s86, 0x1556
s_movk_i32 s87, 2752
s_lshl_b32 s88, s9, 1
s_cmp_eq_u32 s7, 14
s_cselect_b32 s89, {8 if OPT['zf'] else 0}, 0
s_cmp_eq_u32 s12, 1
s_cselect_b32 s89, {12 if OPT['zf'] else 0}, s89
v_mov_b32 v28, 0x80000000""")
for i in range(3):
    A(f"""v_add_u32 v24, {64*i}, v0
v_mul_u32_u24 v25, s86, v24
v_lshrrev_b32 v25, 16, v25
v_mul_u32_u24 v26, 12, v25
v_sub_u32 v24, v24, v26
v_lshrrev_b32 v26, 2, v25
v_and_b32 v26, 2, v26
v_xor_b32 v24, v24, v26
v_cmp_gt_u32 vcc, s89, v24
v_mul_u32_u24 v25, s87, v25
v_lshl_add_u32 v24, v24, 4, v25
v_add_u32 v24, s88, v24
v_subrev_u32 v24, {1024*i}, v24
v_cndmask_b32 v{20+i}, v24, v28, vcc""")
A(f"""s_branch L_LGO
L_LQKV:
s_mov_b32 s42, {512*3072}
s_mov_b32 s82, {16*3072}
s_sub_u32 s87, s7, 15
s_lshl_b32 s87, s87, 7
s_mul_i32 s88, s4, {8*3072}
s_add_u32 s87, s87, s88
v_mul_u32_u24 v24, 3072, v24
v_and_b32 v26, 1, v26
v_lshlrev_b32 v26, 2, v26
v_xor_b32 v25, v25, v26
s_lshl_b32 s88, s4, 1
v_xor_b32 v25, s88, v25
v_lshl_add_u32 v20, v25, 4, v24
v_add_u32 v20, s87, v20
v_mov_b32 v21, v20
v_mov_b32 v22, v20
L_LGO:""")
A(f"s_lshr_b32 s87, s6, {sh}" if OPT["sub"] else "s_mov_b32 s87, 0")
for g in range(4):
    A(f"s_add_u32 s86, s87, {g}\ns_and_b32 s86, s86, 3\ns_mul_i32 {WL[g]}, s86, 3072\ns_mul_i32 {WG[g]}, s86, s82")
A(f"""s_cmp_eq_u32 s4, 1
s_cselect_b32 s40, s26, s24
s_cselect_b32 s41, s27, s25
s_cmp_ge_u32 s7, 15
s_cselect_b32 s40, s18, s40
s_cselect_b32 s41, s19, s41""")
issue_head(); issue_part(0, 0, ["w0", "w1", "w2", "w3"] if OPT["xfirst"] == 1 else ["w0", "x1", "w1", "x2", "w2", "w3"]); issue_tail()
stamp((2, 2))
issue_head(); n_ = issue_part(0, HH)
p2setup()
A(f"s_waitcnt vmcnt({n_})")
stamp((1, 1), (3, 2))
A("s_barrier\ns_mov_b32 s83, 0\nL_LLOOP:")
rawblocks()
if OPT['nodma']: issue_tail(); issue_head()
else:
    if HH < 7: issue_part(HH, 7)
    issue_tail(); issue_head(); issue_part(0, HH)
A(f"""s_add_u32 s83, s83, 1
s_waitcnt vmcnt({n_})
s_barrier
s_cmp_lt_u32 s83, 6
s_cbranch_scc1 L_LLOOP""")
stamp((2, 1), (4, 2))
if HH < 7: issue_part(HH, 7)
A("s_mov_b32 s38, 2097152")
ktable()
for n in range(N7): w2item(n)
A(f"s_waitcnt vmcnt({2*N7})\ns_barrier")
A("s_branch L_W2")

def f_addr(dst):
    A(f"""s_sub_u32 s86, s7, 15
s_lshl_b32 s86, s86, 12
s_and_b32 s87, s6, 1
s_lshl_b32 s87, s87, 11
s_add_u32 s86, s86, s87
s_and_b32 s87, s6, 2
s_lshl_b32 s87, s87, 9
s_add_u32 s86, s86, s87
s_lshr_b32 s87, s6, 2
s_lshl_b32 s87, s87, 9
s_add_u32 s86, s86, s87
s_lshl1_add_u32 s91, s86, {WS_FF}
s_add_u32 s86, s86, {WS_F}
v_lshl_add_u32 v{dst}, v0, 4, s86""")
assert OPT["rot"] in (2, 4, 8)
A(f"""L_SIDE:
s_add_u32 s13, s6, s90
s_and_b32 s13, s13, {OPT['rot']-1}
s_lshl_b32 s13, s13, { {2:2, 4:1, 8:0}[OPT['rot']] }
s_lshr_b32 s14, s6, { {2:1, 4:2, 8:3}[OPT['rot']] }
s_add_u32 s15, s13, s14
s_cmp_ge_u32 s6, 8
s_cselect_b32 s14, 99, s14
s_cmp_eq_u32 s12, 1
s_cselect_b32 s14, 99, s14
s_and_b32 s77, s4, 1""")
wfrag_addr(62, "s77", 24, "L_SA")
A(f"""s_cmp_eq_u32 s14, 1
s_cselect_b32 s86, {SLOT}, 0
s_cmp_eq_u32 s14, 2
s_cselect_b32 s86, {2*SLOT}, s86
v_add_u32 v62, s86, v62
v_add_u32 v63, s86, v63
v_and_b32 v24, 16, v0
v_cmp_ne_u32 s[72:73], 0, v24
v_and_b32 v24, 31, v0
s_mul_i32 s86, s77, 384
s_add_u32 s86, s86, {CF}
v_lshrrev_b32 v25, 4, v24
v_mul_u32_u24 v25, 128, v25
v_lshl_add_u32 v17, v24, 2, v25
v_add_u32 v17, s86, v17
s_mul_i32 s87, s77, 96
v_add_u32 v21, s87, v0
v_add3_u32 v22, v24, s87, 64
s_lshl_b32 s86, s8, 4
s_add_u32 s86, s86, {WS_RS}
v_lshl_add_u32 v19, v21, 4, s86
v_lshl_add_u32 v20, v22, 4, s86
s_lshl_b32 s86, s7, 13
s_lshl_b32 s87, s77, 9
s_add_u32 s86, s86, s87
s_add_u32 s86, s86, {WS_CS}
s_lshl_b32 s87, s15, 10
s_add_u32 s74, s86, s87
v_lshlrev_b32 v23, 4, v24
v_lshrrev_b32 v25, 5, v0
v_lshl_add_u32 v18, v25, 12, v23
v_add_u32 v18, s86, v18""")
for r in range(52, 56): A(f"v_mov_b32 v{r}, 0x3f803f80")
def w1prefetch():
    A(f"""s_cmp_eq_u32 s77, 0
s_cselect_b32 s40, s24, s26
s_cselect_b32 s41, s25, s27
s_mov_b32 s42, {1376*1024}
s_mov_b32 s43, 0x20000
s_mul_i32 s86, s5, 43
v_min_u32 v16, 42, v0
v_add_u32 v16, s86, v16
v_lshlrev_b32 v16, 7, v16
buffer_load_dword v58, v16, {W}, 0 offen
s_mov_b32 s52, s18
s_mov_b32 s53, s19
s_mov_b32 s54, {512*3072}
s_mov_b32 s55, 0x20000
s_lshl_b32 s86, s5, 1
s_add_u32 s86, s86, s77
s_mul_i32 s86, s86, 24
v_min_u32 v16, 23, v0
v_add_u32 v16, s86, v16
v_lshlrev_b32 v16, 7, v16
buffer_load_dword v57, v16, s[52:55], 0 offen""")
kwait()
if OPT['w1pf'] == -2: w1prefetch()
p2setup()
A(f"""s_cmp_lt_u32 s7, 15
s_cbranch_scc1 L_NOCLR
s_cmp_ge_u32 s6, 8
s_cbranch_scc1 L_NOCLR""")
f_addr(24)
A(f"""v_mov_b32 v28, -1
v_mov_b32 v29, -1
v_mov_b32 v30, -1
v_mov_b32 v31, -1
s_mov_b32 exec_hi, 0
buffer_store_dwordx4 v[28:31], v24, {WS}, 0 offen sc1
s_mov_b32 exec_hi, -1""")
if OPT["prew"]: A(f"s_sub_u32 s86, {TAG}, 1\nv_mov_b32 v32, s86\nv_lshlrev_b32 v24, 4, v0\nbuffer_store_dwordx4 v[32:35], v24, {WS}, s91 offen sc1")
A(f"""L_NOCLR:
s_mov_b32 s83, 0
s_waitcnt vmcnt(0)""")
if OPT["w1pf"] == -1: w1prefetch()
A("L_SLOOP:\ns_barrier")
if OPT["w1pf"] >= 0:
    A(f"s_cmp_eq_u32 s83, {OPT['w1pf']}\ns_cbranch_scc0 L_NOPF1"); w1prefetch(); A("L_NOPF1:")
if OPT["w2late"] >= 0:
    A(f"""s_cmp_eq_u32 s83, {OPT['w2late']}
s_cbranch_scc0 L_NOPF2
s_mul_i32 s86, s5, 59
s_mul_i32 s87, s77, 30
s_add_u32 s86, s86, s87
v_min_u32 v16, 29, v0
v_add_u32 v16, s86, v16
v_lshlrev_b32 v16, 7, v16
buffer_load_dword v60, v16, {WD}, 0 offen
v_subrev_u32 v16, {1376*1024}, v16
buffer_load_dword v61, v16, {WO}, 0 offen
L_NOPF2:""")
if OPT["pf2"] >= 0:
    A(f"""s_cmp_eq_u32 s83, {OPT['pf2']}
s_cbranch_scc0 L_NOPF3
s_getpc_b64 s[88:89]
L_PC2:
s_sub_u32 s88, s88, L_PC2-{NAME}_kernel
s_subb_u32 s89, s89, 0
s_lshr_b32 s86, s2, 3
s_lshl_b32 s86, s86, 3
s_lshl_b32 s87, s77, 2
s_add_u32 s86, s86, s87
v_and_b32 v16, 3, v0
v_add_u32 v16, s86, v16
v_lshlrev_b32 v16, 7, v16
v_min_u32 v16, L_END-{NAME}_kernel, v16
global_load_dword v59, v16, s[88:89]
L_NOPF3:""")
A("s_cmp_eq_u32 s83, s14\ns_cbranch_scc0 L_LNOCS")
for t in range(2):
    A(f"s_cmp_ge_u32 s7, 15\ns_cbranch_scc1 L_CSQ{t}")
    for role in "GQ":
        if role == 'Q': A(f"s_branch L_CSM{t}\nL_CSQ{t}:")
        for j in range(6):
            for sec in range(2):
                par, off = woff(role, t, j, sec)
                A(f"ds_read_b64_tr_b16 {v(24+4*j+2*sec,2)}, v{62+par} offset:{off}")
    A(f"L_CSM{t}:\ns_waitcnt lgkmcnt(0)")
    for j in range(6): A(mf16(72+4*j, 52, 24+4*j, 0 if t == 0 else None))
A(f"v_mov_b32 v51, {TAG}")
for u in range(3): A(f"v_cndmask_b32 v{48+u}, v{72+4*u}, v{84+4*u}, s[72:73]")
A(f"""s_mov_b32 exec_hi, 0
buffer_store_dwordx4 v[48:51], v23, {WS}, s74 offen sc1
s_mov_b32 exec_hi, -1
L_LNOCS:""")
rawblocks()
A(f"""s_add_u32 s83, s83, 1
s_cmp_lt_u32 s83, 6
s_cbranch_scc1 L_SLOOP""")
def st_loads():
    for p in range(4): A(f"buffer_load_dwordx4 {v(32+4*p,4)}, v18, {WS}, 0 offen offset:{1024*p} sc1")
    A(f"buffer_load_dwordx4 v[48:51], v19, {WS}, 0 offen sc1\nbuffer_load_dwordx4 v[52:55], v20, {WS}, 0 offen sc1")
st_loads()
A("s_barrier")
stamp((2, 1), (4, 2))
ktable()
for n in range(N7): w2item(n)
A(f"s_mov_b32 s88, 0\ns_waitcnt vmcnt({2*N7})")
A("L_SPC:")
tagcheck(24, 24, [35+4*p for p in range(6)])
A(f"""v_cmp_ne_u32 vcc, 0, v24
s_add_u32 s88, s88, 1
s_cmp_gt_u32 s88, {OPT['spin']}
s_cbranch_scc1 L_SPCD
s_cbranch_vccz L_SPCD""")
st_loads()
A(f"""s_waitcnt vmcnt(0)
s_branch L_SPC
L_SPCD:
s_mov_b32 s86, {RS}
s_mov_b32 s87, {RR}
v_lshl_add_u32 v24, v21, 4, s86
v_lshl_add_u32 v25, v22, 4, s86
v_lshl_add_u32 v21, v21, 2, s87
v_lshl_add_u32 v22, v22, 2, s87
ds_write_b128 v24, v[48:51]
ds_write_b128 v25, v[52:55]
ds_write_b32 v21, v49
ds_write_b32 v22, v53
v_mul_f32 v24, v48, v49
v_mul_f32 v25, v52, v53
ds_write_b32 v21, v24 offset:{MR-RR}
ds_write_b32 v22, v25 offset:{MR-RR}""")
note("s88", 2)
for p in range(1, 4):
    for u in range(3): A(f"v_add_f32 v{32+u}, v{32+u}, v{32+4*p+u}")
for u in range(3): A(f"v_mov_b32 v{36+u}, v{32+u}")
for u in range(3): A(f"v_permlane32_swap_b32 v{32+u}, v{36+u}")
for u in range(3): A(f"v_add_f32 v{32+u}, v{32+u}, v{36+u}")
for u in range(3): A(f"ds_write_b32 v17, v{32+u} offset:{64*u}")
A("s_waitcnt lgkmcnt(0)\ns_barrier")

A("L_W2:")
stamp((3, 1), (6, 2))
AB = 8
vm = [x for n in range(N7) for x in (f"d{n}a", f"d{n}")]
def emit(Y):
    for t in Y:
        if callable(t): t()
        elif t.startswith("VM "):
            nm, ins = t[3:].split("|"); vm.append(nm); A(ins)
        elif t.startswith("WAIT "):
            nms, lg = t[5:].split("|")
            A(f"s_waitcnt vmcnt({len(vm)-1-max(vm.index(x) for x in nms.split(','))})" + (" lgkmcnt(0)" if lg else ""))
        elif t.startswith("STAMP "): stamp((int(t[6:]), 4))
        else: A(t)
A(f"v_lshlrev_b32 v84, 4, v0\nv_add_u32 v84, s76, v84")
def wr(reg, slot, blk):
    off = slot*SLOT + blk*2048
    A(f"ds_write_b128 v84, {v(reg,4)} offset:{off}\nds_write_b128 v84, {v(reg+4,4)} offset:{off+1024}")
def rd6(base, sl):
    for kk in range(6):
        E(w2read(base+8*kk, sl, kk, AB))
        if kk % 3 == 2: A("s_waitcnt lgkmcnt(0)")
NB = OPT["nb"]; NC = OPT["nc"]; NIT = len(items); NW = OPT['nraw']; NL = 12 - NW - NB - NC; assert NL >= 0 and NW <= 8
cnt = [N7]
def TH():
    cnt[0] += 1
    return OPT["thr"] if (OPT["thr"] and cnt[0] > OPT["tfrom"]) else None
it = lambda n: w2ops(items[n][0], items[n][1], items[n][2:], TH())
Z = []
for n in range(N7, 6): Z += it(n)
order2 = [12+2, 12+3, 12+4, 12+5, 12+0, 12+1]
for n in range(12):
    Z += [f"WAIT d{n}|"] + w2read(96+8*n, 2, n % 6, AB) + ["s_waitcnt lgkmcnt(0)"]
    Z += it(n+6 if n < 6 else order2[n-6])
assert NE <= min(NW, 6)
PE = OPT['pe']
rawop = lambda n: w2ops(items[18+n][0], items[18+n][1], 192+8*n, TH())
for n in range(NE, NW - max(PE, 0)): Z += rawop(n)
XREL = [f"VM x|buffer_load_dwordx4 v[12:15], v1, {X}, 0 offen"], [f"v_mov_b32 v80, {LF+40}", lambda: spin_lds(80, 81, 4)]
if PE < 0: Z += XREL[0] + XREL[1]
emit(Z)
stamp((4, 1), (1, 3), (1, 4))
def rdaddr(dst, isy_src, half, T):
    base = 0 if isy_src else SLOT
    t3 = 2*SLOT + (0 if isy_src else 8192)
    A(f"""s_and_b32 s70, s4, 2
s_lshl_b32 s70, s70, 12
s_add_u32 s70, s70, {base}
s_add_u32 s71, s70, 4096
s_cmp_ge_u32 s4, 2
s_cselect_b32 s71, {t3}, s71
v_mov_b32 v{T}, s70
v_mov_b32 v{T+1}, s71
v_and_b32 v{T+2}, 4, v0
v_cmp_ne_u32 vcc, 0, v{T+2}
v_and_b32 v{T+2}, 7, v0
v_lshrrev_b32 v{T+3}, 3, v0
v_cndmask_b32 v{T}, v{T}, v{T+1}, vcc
v_add_u32 v{T+3}, {8*half}, v{T+3}
v_lshlrev_b32 v{T+1}, 1, v{T+2}
v_xor_b32 v{T+3}, v{T+3}, v{T+1}
s_and_b32 s70, s4, 1
s_lshl_b32 s70, s70, 8
v_lshl_add_u32 v{T}, v{T+3}, 4, v{T}
v_and_b32 v{T+1}, 2, v0
v_lshl_add_u32 v{T}, v{T+1}, 8, v{T}
v_and_b32 v{T+1}, 1, v0
v_lshl_add_u32 v{T}, v{T+1}, 11, v{T}
v_add_u32 v{dst}, s70, v{T}""")
def wraddr(B_, isy):
    A(f"""v_lshrrev_b32 v{B_}, 3, v0
v_and_b32 v{B_}, 4, v{B_}
v_xor_b32 v{B_}, v{B_}, v0
v_lshlrev_b32 v{B_}, 4, v{B_}
v_xor_b32 v{B_+1}, 32, v{B_}
v_xor_b32 v{B_+2}, 0x80, v{B_}
v_xor_b32 v{B_+3}, 0xa0, v{B_}""")
    for j in range(4): A(f"v_add_u32 v{B_+j}, s76, v{B_+j}")
    t3 = 2*SLOT + (0 if isy else 8192)
    A(f"v_add_u32 v{B_+4}, {t3}, v{B_+2}\nv_add_u32 v{B_+5}, {t3}, v{B_+3}")
def wrpart(B_, isy):
    for q in range(4):
        for jq in range(4):
            if q < 3: A(f"ds_write_b128 v{B_ + 2*(q&1) + (jq>>1)}, {v(192+16*q+4*jq,4)} offset:{(0 if isy else SLOT) + q*4096 + jq*1024}")
            else: A(f"ds_write_b128 v{B_ + 4 + (jq>>1)}, {v(192+16*q+4*jq,4)} offset:{jq*1024}")
def rd4(dst, va):
    for src in range(4):
        for e in range(2): A(f"ds_read_b128 {v(dst+8*src+4*e,4)}, v{va} offset:{Q*src+1024*e}")
def sum4(d):
    for j in range(4): A(f"v_pk_add_f32 {v(d+2*j,2)}, {v(d+2*j,2)}, {v(d+8+2*j,2)}\nv_pk_add_f32 {v(d+16+2*j,2)}, {v(d+16+2*j,2)}, {v(d+24+2*j,2)}")
    for j in range(4): A(f"v_pk_add_f32 {v(d+2*j,2)}, {v(d+2*j,2)}, {v(d+16+2*j,2)}")
STG = OPT["stage"]
def sgo(va, vd): return f"s_lshl_b32 s86, s4, 2\ns_add_u32 s86, s86, {LF+48}\nv_mov_b32 v{va}, s86\nv_mov_b32 v{vd}, 1\nds_write_b32 v{va}, v{vd}"
assert STG
note("1", 4)
def hload(kd):
    va = 6 if kd < 21 else 7
    b = 16 + 8*(kd % 8)
    return [f"s_lshl2_add_u32 s86, s{77 + kd % 7}, {(kd//7)*65536}" if kd < 21 else "s_mov_b32 s86, 0",
            f"VM h{kd}a|buffer_load_dwordx4 {v(b,4)}, v{va}, {H}, s86 offen sc1",
            f"VM h{kd}|buffer_load_dwordx4 {v(b+4,4)}, v{va}, {H}, s86 offen offset:1024 sc1"]
w2late = lambda n, t=None: w2ops(items[n][0], items[n][1], items[n][2:], t)
PR = lambda c: 82 if c < 2 else 120
def ipoll(c):
    nl = 16 if c <= 1 else 24
    return [f"VM p{c}|v_mov_b32 v{PR(c)}, {TAG}\ns_mov_b32 s87, {c << 20}\ns_mov_b64 exec, {hex((1<<nl)-1)}\nbuffer_load_dword v{PR(c)}, v5, {WS}, s87 offen sc1\ns_mov_b64 exec, -1"]
res_loc = lambda kd: (2, kd-12) if kd < 16 else (0, kd-16)
YD = OPT["ydep"]; assert YD <= 7
PRE = cap(lambda: (wraddr(96, True), rdaddr(102, True, 0, 104), A("v_xor_b32 v103, 0x80, v102"), rdaddr(108, False, 0, 104),
    A(f"s_lshl_b32 s70, s4, 11\ns_add_u32 s70, s70, {GB}\nv_lshl_add_u32 v109, v0, 4, s70\nv_mov_b32 v110, {LF+36}\nv_mov_b32 v111, 1"),
    [A(f"v_lshlrev_b32 v{112+2*j}, 16, v{12+j}\nv_and_b32 v{113+2*j}, 0xffff0000, v{12+j}") for j in range(4)],
    A(f"s_mov_b32 s70, {hx(-1.4426950408889634)}\ns_mov_b32 s71, s70")))
Y = []
if PE < 0:
    Y += ipoll(0)
    for n in range(NB): Y += w2late(18+NW+n, OPT['thr2'] or None)
    if NW: Y += ['WAIT x|', lambda: [wr(192+8*n, *items[18+n][2:]) for n in range(NW//2)]]
    Y += ["WAIT p0|", f"v_cmp_ne_u32 vcc, {TAG}, v82\ns_cbranch_vccnz L_YR0\nL_YB0:", lambda: stamp((5, 1), (2, 3), (2, 4))]
    for kd in range(YD): Y += hload(kd)
    for n in range(NC): Y += w2late(18+NW+NB+n, OPT['thr2'] or None)
    if NW: Y += [lambda: [wr(192+8*n, *items[18+n][2:]) for n in range(NW//2, NW)], 's_waitcnt lgkmcnt(0)']
else:
    Y += ipoll(0)
    for n in range(NW-PE, NW): Y += rawop(n)
    Y += XREL[0] + ["WAIT p0|", f"v_cmp_ne_u32 vcc, {TAG}, v82\ns_cbranch_vccnz L_YR0\nL_YB0:", lambda: stamp((5, 1), (2, 3), (2, 4))]
    for kd in range(YD):
        hl = hload(kd)
        if OPT["thr2"]: hl = [hl[0], f"s_waitcnt vmcnt({OPT['thr2']})"] + hl[1:]
        Y += hl
    Y += XREL[1] + ["WAIT x|", lambda: [wr(192+8*n, *items[18+n][2:]) for n in range(NW//2)]]
    for n in range(NB+NC): Y += w2late(18+NW+n, OPT['thr2'] or None)
    Y += [lambda: [wr(192+8*n, *items[18+n][2:]) for n in range(NW//2, NW)], 's_waitcnt lgkmcnt(0)']
if OPT["gate"]: Y += [f"v_mov_b32 v80, {LF+32}", lambda: spin_lds(80, 81, OPT["gate"])]
Y.append(f"s_setprio {OPT['yprio']}")
for kd in range(22):
    wf = 96+8*kd if kd < 12 else 80+8*(kd & 1)
    hb = 16 + 8*(kd % 8)
    need = [f"h{kd}"]
    C1_ = OPT['c1'] if OPT['c1'] >= 0 else 7-YD
    chk = 1 if kd == C1_ else (2 if kd == OPT['c2'] else 0)
    if chk: need.append(f"p{chk}")
    if chk == 2 and NE < 6: need.append("o5")
    if 16 <= kd+1 < 22: need.append(f"d{kd+1}")
    Y.append("WAIT " + ",".join(need) + ("|L" if kd >= 12 else "|"))
    if chk:
        Y.append(f"v_cmp_ne_u32 vcc, {TAG}, v{PR(chk)}\ns_cbranch_vccnz L_YR{chk}\nL_YB{chk}:")
        if chk == 2: Y.append(sgo(120, 121))
    ms = [mfma(192+32*r+16*c, wf+4*c, hb+4*r, 0 if kd == 0 else None) for r in range(2) for c in range(2)]
    fill = []
    if STG and kd == OPT["p1"]: fill += ipoll(1)
    if STG and kd == OPT["p2"]: fill += ipoll(2)
    for k_ in range(YD, 22):
        if max(k_-YD, [0, C1_, OPT['c2'], OPT['c2']][k_//7]) == kd: fill += hload(k_)
    if kd < NL: fill += w2late(NIT-NL+kd)
    if 12 <= kd+1 < 22: fill += w2read(80+8*((kd+1) & 1), *res_loc(kd+1), AB)
    P0_ = OPT['pre0']
    if kd in (P0_, P0_+1, P0_+2): fill = fill + PRE[(kd-P0_)*37:(kd-P0_+1)*37]
    Y += interleave(ms, fill, 3 if len(fill) <= 12 else 6)
    if kd+1 == OPT["ydrop"]: Y.append(f"s_setprio {OPT['ypost']}")
    if kd == 0: Y.append("STAMP 3")
    if kd == 10: Y.append("STAMP 4")
assert OPT["p1"] < C1_ <= OPT["p2"] < OPT["c2"] <= 13 and C1_ <= 6
emit(Y)
stamp((6, 1), (3, 3), (5, 4))
def final(isy):
    if OPT["fin"] == 1:
        if isy:
            wrpart(96, True); A("v_mov_b32 v4, v102\ns_waitcnt lgkmcnt(0)")
        else:
            wrpart(80, False)
            A("s_setprio 0")
            rdaddr(10, True, 1, 88)
            A(f"""v_xor_b32 v5, 0x80, v4
v_mov_b32 v6, {LF+36}
v_mov_b32 v7, 1
s_mov_b32 s70, {hx(-1.4426950408889634)}
s_mov_b32 s71, s70
s_mov_b64 exec, 1
s_waitcnt lgkmcnt(0)
ds_add_u32 v6, v7
s_mov_b64 exec, -1""")
            spin_lds(6, 7, 4)
            rd4(16, 5); A("s_waitcnt lgkmcnt(4)"); rd4(48, 4)
            for d, w_ in ((16, 8), (48, 2)):
                A(f"s_waitcnt lgkmcnt({w_})")
                for j in range(8): A(f"v_add_f32 v{d+j}, v{d+j}, v{d+8+j}\nv_add_f32 v{d+16+j}, v{d+16+j}, v{d+24+j}")
                for j in range(8): A(f"v_add_f32 v{(d if d == 16 else 88)+j}, v{d+j}, v{d+16+j}")
                if d == 16: A("ds_write_b128 v9, v[16:19]\nds_write_b128 v9, v[20:23] offset:1024")
            A("v_mov_b32 v4, v10\ns_waitcnt lgkmcnt(0)")
        return
    if isy:
        wrpart(96, True)
        A("""v_mov_b32 v4, v108
s_mov_b64 exec, 1
s_waitcnt lgkmcnt(0)
ds_add_u32 v110, v111
s_mov_b64 exec, -1""")
        spin_lds(110, 6, 4)
        rd4(16, 103); A("s_waitcnt lgkmcnt(4)"); rd4(48, 102)
        for d, w_ in ((16, 8), (48, 2)):
            A(f"s_waitcnt lgkmcnt({w_})")
            if OPT["ypk"]:
                sum4(d)
                for j in range(4): A(f"v_pk_mul_f32 {v(d+8+2*j,2)}, {v(d+2*j,2)}, s[70:71]")
            else:
                for j in range(8): A(f"v_add_f32 v{d+j}, v{d+j}, v{d+8+j}\nv_add_f32 v{d+16+j}, v{d+16+j}, v{d+24+j}")
                for j in range(8): A(f"v_add_f32 v{d+j}, v{d+j}, v{d+16+j}")
                for j in range(8): A(f"v_mul_f32 v{d+8+j}, s70, v{d+j}")
            for j in range(8): A(f"v_exp_f32 v{d+8+j}, v{d+8+j}")
            for j in range(8): A(f"v_add_f32 v{d+8+j}, 1.0, v{d+8+j}")
            for j in range(8): A(f"v_rcp_f32 v{d+8+j}, v{d+8+j}")
            for j in range(8): A(f"v_mul_f32 v{(d if d == 16 else 88)+j}, v{d+j}, v{d+8+j}")
            if d == 16:
                A("ds_write_b128 v109, v[16:19]\nds_write_b128 v109, v[20:23] offset:1024")
    else:
        wrpart(80, False)
    A("s_waitcnt lgkmcnt(0)")
final(True)
A("s_branch L_FINAL")
if STG:
    for c in (0, 1, 2):
        A(f"L_YR{c}:"); note(str(10+c), 4); spin_flag(5, PR(c), 16 if c <= 1 else 24, c, 1); A(f"s_branch L_YB{c}")
A("L_COMPUTE:")
srd(WS, 32, 0x800000); srd(H, 32, 118*65536, WS_H); srd(OUT, 30, 2097152)
ACC = 112
for r in range(ACC, 256): A(f"v_mov_b32 v{r}, 0")
A(f"""v_lshlrev_b32 v16, 2, v0
v_add_u32 v16, {LF}, v16
v_mov_b32 v17, 0
s_mov_b64 exec, 0xffff
ds_write_b32 v16, v17
s_mov_b64 exec, -1
s_lshr_b32 s13, s4, 1
s_and_b32 s14, s4, 1
s_movk_i32 s11, 0x1ff
s_lshl_b32 s86, s13, 4
s_add_u32 s86, s86, s6
s_cmp_eq_u32 s86, 10
s_cselect_b32 s11, 0x1c0, s11
s_mul_i32 s86, s14, 0x1b6
s_cmp_eq_u32 s7, 14
s_cselect_b32 s86, s86, 0x1ff
s_and_b32 s11, s11, s86
s_cmp_eq_u32 s12, 1
s_cselect_b32 s11, 0, s11
s_mul_i32 s76, s4, {Q}
s_lshr_b32 s86, s9, 4
s_mul_i32 s87, s14, 3
s_add_u32 s86, s86, s87
s_lshl_b32 s87, s7, 1
s_add_u32 s87, s87, s14
s_lshl1_add_u32 s87, s87, 26
s_and_b32 s88, s11, 0xdb
s_cmp_ge_u32 s7, 15
s_cselect_b32 s86, s87, s86
s_cselect_b32 s11, s88, s11
s_lshl_b32 s86, s86, 6
s_lshr_b32 s87, s8, 5
s_add_u32 s86, s86, s87
s_mul_i32 s87, s13, 3
s_add_u32 s86, s86, s87
s_lshl_b32 s86, s86, 10
v_lshl_add_u32 v1, v0, 4, s86
s_mov_b32 s80, 0
s_mov_b32 s81, 65536
s_mov_b32 s82, 131072
v_and_b32 v16, 15, v0
v_lshrrev_b32 v17, 4, v0
v_bfe_u32 v18, v0, 1, 3
v_xor_b32 v18, v18, v17
s_mul_i32 s86, s13, {96*128}
v_lshl_add_u32 v16, v16, 7, s86
v_lshl_add_u32 v2, v18, 4, v16
v_xor_b32 v3, 64, v2""")
wfrag_addr(4, "s14", 16, "L_CA")
A(f"""s_mul_i32 s86, s6, 23
s_add_u32 s86, s86, s7
s_cmp_eq_u32 s12, 1
s_cselect_b32 s86, 255, s86
s_lshl_b32 s86, s86, 2
s_add_u32 s86, s86, s4
s_lshl_b32 s86, s86, 10
s_add_u32 s15, s86, {WS_FLAG}""")
stamp((2, 2))
A("s_waitcnt vmcnt(0)")
stamp((5, 2))
for j in range(8):
    A(f"v_lshlrev_b32 v{16+2*j}, 16, v{8+j}\nv_and_b32 v{17+2*j}, 0xffff0000, v{8+j}")
def red32(r, t):
    for sh_ in (8, 4, 2, 1):
        A(f"v_add_f32_dpp v{r}, v{r}, v{r} row_ror:{sh_} row_mask:0xf bank_mask:0xf")
    A(f"v_mov_b32 v{t}, v{r}\nv_permlane16_swap_b32 v{r}, v{t}\nv_add_f32 v{r}, v{r}, v{t}")
for j in range(4): A(f"v_pk_add_f32 {v(8+2*j,2)}, {v(16+2*j,2)}, {v(24+2*j,2)}")
A("v_pk_add_f32 v[8:9], v[8:9], v[12:13]\nv_pk_add_f32 v[10:11], v[10:11], v[14:15]\nv_pk_add_f32 v[8:9], v[8:9], v[10:11]\nv_add_f32 v8, v8, v9")
red32(8, 9)
A(f"v_mul_f32 v8, {hx(-1/512)}, v8")
for j in range(8): A(f"v_pk_add_f32 {v(16+2*j,2)}, {v(16+2*j,2)}, v[8:9] op_sel_hi:[1,0]")
A("v_pk_mul_f32 v[10:11], v[16:17], v[16:17]\nv_pk_mul_f32 v[12:13], v[18:19], v[18:19]")
for j in range(2, 8): A(f"v_pk_fma_f32 {v(10+2*(j&1),2)}, {v(16+2*j,2)}, {v(16+2*j,2)}, {v(10+2*(j&1),2)}")
A("v_pk_add_f32 v[10:11], v[10:11], v[12:13]\nv_add_f32 v10, v10, v11")
red32(10, 9)
A(f"""v_mul_f32 v10, {hx(1/512)}, v10
v_cvt_pk_bf16_f32 v10, v10, v10
v_and_b32 v10, 0xffff0000, v10
v_add_f32 v10, {hx(1e-5)}, v10
v_cvt_pk_bf16_f32 v10, v10, v10
v_and_b32 v10, 0xffff0000, v10
v_sqrt_f32 v10, v10
v_cvt_pk_bf16_f32 v32, v8, v8
v_cvt_pk_bf16_f32 v10, v10, v10
v_and_b32 v10, 0xffff0000, v10
v_and_b32 v32, 0xffff0000, v32
v_rcp_f32 v33, v10
v_mul_f32 v34, v10, v10
v_lshlrev_b32 v7, 4, v7
v_add_u32 v7, {WS_RS}, v7
s_waitcnt lgkmcnt(0)
s_add_u32 {TAG}, {TAG}, 0x9E3779B9
v_mov_b32 v35, {TAG}
v_mov_b32 v36, {TAG}
v_mov_b32 v37, {TAG}
v_mov_b32 v38, {TAG}
v_mov_b32 v39, {TAG}
v_lshlrev_b32 v6, 4, v0
s_mov_b32 s78, 0
s_mov_b32 s79, {SLOT}
s_mov_b32 s83, 0""")
stamp((1, 1), (3, 2))
A(f"""s_barrier
s_mov_b32 exec_lo, 1
s_mov_b32 exec_hi, 1
buffer_store_dwordx4 v[32:35], v7, {WS}, 0 offen sc1
s_mov_b64 exec, -1""")
if OPT["prew"]:
    for kind in ((0, 1, 2) if OPT["stage"] else (0, 2)):
        sk = L("PW")
        if kind == 0 and not OPT["stage"]: A(f"s_cmp_lt_u32 s7, 15\ns_cbranch_scc1 {sk}")
        A(f"s_add_u32 s86, s15, {kind << 20}\nbuffer_store_dwordx4 v[28:31], v6, {WS}, s86 offen sc1")
        A.label(sk)
stamp((2, 1), (4, 2))
A("s_cmp_ge_u32 s7, 15\ns_cbranch_scc1 L_QKV")
if OPT["dead"]: A("s_or_b32 s86, s11, s12\ns_cbranch_scc0 L_DEAD")

XB = lambda buf, a: (40 if buf == 0 else 8) + 4*a
WF = lambda buf, j: 64 + 24*buf + 4*j
acc = lambda a, j: ACC + 4*(6*a+j)
CB = 88
def reads(role, s_):
    w_ = []
    for j in range(6):
        for sec in range(2):
            par, off = woff(role, s_, j, sec)
            w_.append(f"ds_read_b64_tr_b16 {v(WF(s_,j)+2*sec,2)}, v{4+par} offset:{off}")
    o = []
    for a in range(6): o += [f"ds_read_b128 {v(XB(s_,a),4)}, v{2+s_} offset:{2048*a}"] + w_[2*a:2*a+2]
    return o
def mm(role, wb, a, j, xb=1):
    return mf16(acc(a,j), WF(wb,j), XB(xb,a)) if (role == 'G' or j < 2) else mf16(acc(a,j), XB(xb,a), WF(wb,j))
def grp(role, buf, a): return [mm(role, buf, a, j, buf) for j in range(6)]
def spread(ms, fill, num, den):
    o = []; f = list(fill); nr = 0
    for i, m in enumerate(ms):
        o.append(m)
        k = ((i+1)*num)//den - (i*num)//den
        for _ in range(k):
            if f:
                x = f.pop(0)
                if x.startswith("ds_read"):
                    nr += 1
                    if nr == 13: o.append("s_waitcnt lgkmcnt(6)")
                o.append(x)
    assert not f
    return o
def treads(role, st, js, wb):
    buf = st & 1
    xs_ = [f"ds_read_b128 {v(XB(buf,a),4)}, v{2+buf} offset:{2048*a + (SLOT if st >= 2 else 0)}" for a in range(6)]
    ws_ = []
    for i, j in enumerate(js):
        for sec in range(2):
            par, off = woff(role, buf, j, sec)
            ws_.append(f"ds_read_b64_tr_b16 {v(wb(buf)+4*i+2*sec,2)}, v{(32 if st >= 2 else 4)+par} offset:{off}")
    return ws_[:4] + xs_ + ws_[4:]
def ldsadd(off, va, vd): return f"v_mov_b32 v{va}, {LF+off}\nv_mov_b32 v{vd}, 1\ns_mov_b64 exec, 1\nds_add_u32 v{va}, v{vd}\ns_mov_b64 exec, -1"
def tphase(role, js, wb, first, last, nxt, extra, rows=range(6), start3=0):
    for st in range(4):
        buf = st & 1
        A("s_waitcnt lgkmcnt(0)")
        if first and st == 1: A("s_barrier")
        ms = []
        for a in (rows if st == 3 else range(6)):
            for i, j in enumerate(js):
                w_, x_ = wb(buf)+4*i, XB(buf, a)
                ms.append(mf16(acc(a,j), w_, x_) if (role == 'G' or j < 2) else mf16(acc(a,j), x_, w_))
        fill = (treads(role, st+1, js, wb) if st < 3 else nxt) + extra.get(st, [])
        if last and st == 3: fill = [ldsadd(40, 32, 33)] + fill
        E(interleave(ms, fill, max(1, -(-len(fill)//(len(ms)-1)))))
def mainloop(role, pre):
    lp, ex = f"L_ML{role}", f"L_MX{role}"
    allm = lambda buf: [m + ('\ns_nop 7' if OPT['slow'] and n_ % OPT['slow'] == 0 else '') for n_, m in enumerate([m for a in range(6) for m in grp(role, buf, a)])]
    def coarse():
        if OPT["shi"]:
            sk = L("SL"); A(f"s_sub_u32 s87, s83, {OPT['slo']}\ns_cmp_lt_u32 s87, {OPT['shi']-OPT['slo']}\ns_cbranch_scc0 {sk}")
            for _ in range(OPT["sn"]): A("s_nop 15")
            A.label(sk)
    r0 = reads(role, 0); E(r0[:12]); A("s_waitcnt lgkmcnt(6)"); E(r0[12:])
    A.label(lp)
    coarse()
    A("s_waitcnt lgkmcnt(0)")
    sal = f"""s_add_u32 s78, s78, 1
s_cmp_eq_u32 s78, 3
s_cselect_b32 s86, {-2*SLOT & 0xffffffff}, s79
s_cselect_b32 s78, 0, s78
s_add_u32 s83, s83, 1
s_cmp_eq_u32 s83, 6""".split("\n") + [f"v_add_u32 v{r}, s86, v{r}" for r in (2, 4, 5, 3)]
    E(spread(allm(0), reads(role, 1) + sal, OPT["rgap"]+2, OPT["rgap"]+3))
    A(f"s_waitcnt lgkmcnt(0)\ns_barrier\ns_cbranch_scc1 {ex}")
    E(spread(allm(1), reads(role, 0), OPT["rgap"], 4))
    A(f"s_branch {lp}")
    A.label(ex)
    com = ["s_waitcnt vmcnt(0)", f"v_add_u32 v32, {SLOT}, v4", f"v_add_u32 v33, {SLOT}, v5", "v_and_b32 v34, 15, v0",
           f"s_mul_i32 s86, s13, {96*16}", f"s_add_u32 s86, s86, {RS}", "v_lshl_add_u32 v34, v34, 4, s86",
           "v_lshrrev_b32 v7, 4, v0", "s_mul_i32 s79, s14, 384", f"s_add_u32 s79, s79, {CF}", "v_lshl_add_u32 v35, v7, 4, s79",
           f"s_mul_i32 s86, s13, {96*4}", f"s_add_u32 s86, s86, {RR}", "v_lshl_add_u32 v7, v7, 4, s86"]
    E(interleave(allm(1), pre + com, 2))

def flagstore(kind):
    m = (1 << (8*OPT["nrep"])) - 1
    A(f"s_add_u32 s86, s15, {kind << 20}\ns_mov_b64 exec, {hex(m) if m < (1<<32) else -1}\nbuffer_store_dwordx4 v[36:39], v6, {WS}, s86 offen sc1\ns_mov_b64 exec, -1")
def gsig():
    if OPT["gate"]: A(ldsadd(32, 2, 3))
rsrd = lambda a: f"ds_read_b128 {v(CB+4*a,4)}, v34 offset:{256*a}"
C1 = -2.0*0.7978845608028654*1.4426950408889634
cst = []
for a in range(6):
    b = CB+4*a
    cst += [f"v_mul_f32 v{b+3}, {hx(C1)}, v{b+1}", f"v_mul_f32 v{b+1}, v{b+1}, v{b+1}",
            f"v_mul_f32 v{b+1}, {hx(0.044715)}, v{b+1}", f"v_mul_f32 v{b+1}, v{b+1}, v{b+3}"]
wb2 = lambda buf: 64 + 8*buf
mainloop('G', treads('G', 0, (0, 3), wb2))
def tregs(u, a):
    return (8 + 8*(a & 1), 24 + 4*(a & 1), [acc(2*a + j//2, u) + 2*(j & 1) for j in range(4)],
            [acc(2*a + j//2, u+3) + 2*(j & 1) for j in range(4)], [CB+4*(2*a + j//2) for j in range(4)])
def stA(u, a):
    T, P, gp, up, cb = tregs(u, a)
    return ([f"v_pk_fma_f32 {v(gp[j],2)}, {v(80+2*(j&1),2)}, {v(cb[j],2)}, {v(gp[j],2)} op_sel_hi:[1,0,1]" for j in range(4)]
          + [f"v_pk_mul_f32 {v(T+2*j,2)}, {v(gp[j],2)}, {v(gp[j],2)}" for j in range(4)]
          + [f"v_pk_fma_f32 {v(T+2*j,2)}, {v(T+2*j,2)}, {v(cb[j],2)}, {v(cb[j]+2,2)} op_sel:[0,1,1] op_sel_hi:[1,1,1]" for j in range(4)]
          + [f"v_pk_mul_f32 {v(T+2*j,2)}, {v(T+2*j,2)}, {v(gp[j],2)}" for j in range(4)])
for u in range(3):
    crd = [f"ds_read_b128 v[80:83], v35 offset:{64*u}", f"ds_read_b128 v[84:87], v35 offset:{64*(u+3)}"]
    ex_ = {1: [rsrd(a) for a in range(4)], 2: [rsrd(4), rsrd(5)] + crd, 3: cst} if u == 0 else {0: crd}
    tphase('G', (u, u+3), wb2, u == 0, u == 2, treads('G', 0, (u+1, u+4), wb2) if u < 2 else [], ex_)
    if u: A("s_waitcnt vmcnt(0)"); flagstore(u-1)
    else: A("s_nop 3")
    if u == 0: stamp((1, 3))
    if u == 2: stamp((3, 1))
    E(stA(u, 0))
    for a in range(3):
        T, P, gp, up, cb = tregs(u, a)
        E(interleave([f"v_exp_f32 v{T+j}, v{T+j}" for j in range(8)],
            [f"v_pk_fma_f32 {v(up[j],2)}, {v(84+2*(j&1),2)}, {v(cb[j],2)}, {v(up[j],2)} op_sel_hi:[1,0,1]" for j in range(4)]
          + [f"v_pk_mul_f32 {v(gp[j],2)}, {v(gp[j],2)}, {v(up[j],2)}" for j in range(4)], 1))
        for j in range(4): A(f"v_pk_fma_f32 {v(T+2*j,2)}, {v(T+2*j,2)}, {v(cb[j]+2,2)}, {v(cb[j]+2,2)} op_sel_hi:[1,0,0]")
        nxt = stA(u, a+1) if a < 2 else []
        E(interleave([f"v_rcp_f32 v{T+j}, v{T+j}" for j in range(8)], nxt[:12], 2))
        for j in range(4): A(f"v_pk_mul_f32 {v(T+2*j,2)}, {v(T+2*j,2)}, {v(gp[j],2)}")
        for j in (0, 2, 1, 3): A(f"v_cvt_pk_bf16_f32 v{P+j}, v{T+2*j}, v{T+2*j+1}")
        E(nxt[12:14])
        sk = L("GS")
        A(f"s_bitcmp1_b32 s11, {3*a+u}\nv_permlane16_swap_b32 v{P}, v{P+2}\nv_permlane16_swap_b32 v{P+1}, v{P+3}\ns_cbranch_scc0 {sk}")
        A(f"buffer_store_dwordx4 {v(P,4)}, v1, {H}, s{80+u} offen offset:{1024*a} sc1")
        A.label(sk)
        E(nxt[14:])
    if u == 0: stamp((2, 3))
stamp((4, 1), (4, 3))
A("L_PUB:")
gsig()
A("L_PUB2:\ns_waitcnt vmcnt(0)"); flagstore(2)
A("s_branch L_SPART")
if OPT["dead"]:
    A("L_DEAD:\ns_barrier\ns_add_u32 s83, s83, 1\ns_cmp_lt_u32 s83, 7\ns_cbranch_scc1 L_DEAD")
    A(ldsadd(40, 32, 33)); flagstore(0); flagstore(1)
    A("s_branch L_PUB")

A("L_QKV:")
RV, MV, ONE, G = 88, 8, 76, 8
cst = f"""s_mov_b32 s70, {hx(1.4426950408889634)}
s_mov_b32 s71, {hx(1.4426950408889634)}
s_mov_b32 s72, {hx(1e-6)}
s_mov_b32 s73, {hx(1e-6)}
s_mov_b32 s74, 0xffff0000
s_mov_b32 s75, 0xffff0000
s_sub_u32 s87, s7, 15
s_lshl_b32 s87, s87, 1
s_add_u32 s87, s87, s14
s_mul_i32 s77, s87, {24*3072}
s_add_u32 s77, s77, {WS_KV}
s_lshl_b32 s78, s6, 1
s_add_u32 s78, s78, s13
s_mul_i32 s78, s78, 3072
s_add_u32 s78, s78, s77""".split("\n")
wb4 = lambda buf: 64 + 16*buf
mainloop('Q', treads('Q', 0, (2, 3, 4, 5), wb4) + cst)
rvr = lambda a: f"ds_read_b128 {v(RV+4*a,4)}, v7 offset:{64*a}"
mvr = lambda a: f"ds_read_b128 {v(MV+4*a,4)}, v7 offset:{MR-RR+64*a}"
x3 = ["v_and_b32 v75, 15, v0", "v_lshl_add_u32 v75, v75, 2, s79"] + [f"ds_read_b32 v{72+j}, v75 offset:{128+64*j}" for j in range(4)] \
   + [f"v_mov_b32 v{ONE+j}, 0x3f803f80" for j in range(4)] + [rvr(5), rvr(4)]
q0 = treads('Q', 0, (0, 1), wb2)
x3 += q0[:4] + [mvr(5), mvr(4), "s_waitcnt lgkmcnt(4)"] + q0[4:]
assert len(x3) > 23
tphase('Q', (2, 3, 4, 5), wb4, True, False, x3, {}, rows=(5, 4, 3, 2, 1, 0))
A("s_waitcnt lgkmcnt(6)")
for a in (3, 2, 1, 0): A(rvr(a)); A(mvr(a))
stamp((1, 3))
def phi2(pairs, T, dst):
    for j in range(8): A(f"v_pk_mul_f32 {v(T[j],2)}, {v(pairs[j],2)}, s[70:71]")
    for j in range(16):
        r = pairs[j//2] + (j & 1); t_ = T[j//2] + (j & 1)
        A(f"v_exp_f32 v{t_}, v{t_} clamp\nv_max_f32 v{r}, s72, v{r}")
    for j in range(8): A(f"v_pk_add_f32 {v(T[j],2)}, {v(T[j],2)}, {v(pairs[j],2)}")
    for j in range(8): A(f"v_cvt_pk_bf16_f32 v{dst[j]}, v{T[j]}, v{T[j]+1}")
prs = lambda a, j0: [acc(2*a + (j % 4)//2, j0 + j//4) + 2*(j & 1) for j in range(8)]
KVa, KVb, Za, Zb = acc(5,2), acc(5,3), acc(5,4), acc(5,5)
for a in (2, 1, 0):
    if a == 1: A("s_bitcmp1_b32 s11, 0\ns_cbranch_scc0 L_KVS\ns_waitcnt lgkmcnt(0)")
    off = lambda j: 4*(2*a + (j % 4)//2) + 2*(j & 1)
    pv = prs(a, 4); pk = prs(a, 2)
    PV = acc(2*a, 4); PK = acc(2*a, 2)
    TL = [acc(2*a+1, 4) + 2*j for j in range(4)] + [80 + 2*j for j in range(4)]
    for j in range(8): A(f"v_pk_mul_f32 {v(pv[j],2)}, {v(pv[j],2)}, {v(RV+off(j),2)}")
    for j in range(8): A(f"v_pk_fma_f32 {v(pk[j],2)}, {v(pk[j],2)}, {v(RV+off(j),2)}, s[72:73]")
    for j in range(8): A(f"v_pk_fma_f32 {v(pv[j],2)}, {v(MV+off(j),2)}, v[74:75], {v(pv[j],2)} op_sel:[0,{j//4},0] op_sel_hi:[1,{j//4},1]")
    for j in range(8): A(f"v_pk_fma_f32 {v(pk[j],2)}, {v(MV+off(j),2)}, v[72:73], {v(pk[j],2)} op_sel:[0,{j//4},0] op_sel_hi:[1,{j//4},1]")
    for j in range(8): A(f"v_cvt_pk_bf16_f32 v{PV+j}, v{pv[j]}, v{pv[j]+1}")
    phi2(pk, TL, [PK+j for j in range(8)])
    c0 = 0 if a == 2 else None
    A(mf16(KVa, PK, PV, c0)); A(mf16(KVb, PK+4, PV+4, c0)); A(mf16(Za, ONE, PK, c0)); A(mf16(Zb, ONE, PK+4, c0))
    if a: A("s_nop 3")
A("L_KVS:\ns_waitcnt lgkmcnt(0)")
G = 96
for j in (3, 7, 11): A(f"v_mov_b32 v{G+j}, {TAG}")
A("s_nop 4")
for j in range(4): A(f"v_permlane16_swap_b32 v{KVa+j}, v{KVb+j}")
for j in range(8): A(f"v_mov_b32 v{G+4*(j//3)+j%3}, v{KVa+j}")
A(f"v_cndmask_b32 v{G+10}, v{Za}, v{Zb}, s[74:75]")
for g_ in range(3): A(f"buffer_store_dwordx4 {v(G+4*g_,4)}, v6, {WS}, s78 offen offset:{1024*g_} sc1")
stamp((2, 3))
CTr = lambda p: acc(p, 2)
rsetup = cap(lambda: (A(f"""s_lshr_b32 s79, s6, 1
s_lshl_b32 s86, s79, 8
s_add_u32 s86, s86, s77
v_lshrrev_b32 v7, 4, v0
v_mul_u32_u24 v7, 3072, v7
v_and_b32 v{acc(0,5)}, 15, v0
v_lshl_add_u32 v7, v{acc(0,5)}, 4, v7
v_add_u32 v7, s86, v7"""), [A(f"v_mov_b32 v{CTr(5)+j}, " + (TAG if j % 4 == 3 else "0")) for j in range(12)],
    A("s_and_b32 s78, s6, 9\ns_add_u32 s78, s78, 2")))
tphase('Q', (0, 1), wb2, False, True, [], {0: rsetup[:11], 1: rsetup[11:] + [rsrd(a) for a in (5, 4, 3, 2)],
       2: [rsrd(1), rsrd(0), "ds_read_b128 v[80:83], v35", "ds_read_b128 v[84:87], v35 offset:64"]}, rows=(5, 4, 3, 2, 1, 0))
A("s_nop 3")
stamp((3, 1))
def rloads():
    for p in range(6):
        A(f"s_mov_b32 s86, {12288*p}")
        if p == 5: A("s_mov_b32 exec_hi, 0")
        for g_ in range(3): A(f"buffer_load_dwordx4 {v(CTr(p)+4*g_,4)}, v7, {WS}, s86 offen offset:{1024*g_} sc1")
    A("s_mov_b32 exec_hi, -1")
def rissue(t):
    if OPT["rq"] == t:
        A("s_cmp_eq_u32 s78, s4\ns_cbranch_scc0 L_NORI"); rloads(); stamp((4, 3)); A("L_NORI:")
rissue(0)
for a in (2, 1, 0):
    if a == 1: A("s_bitcmp1_b32 s11, 0\ns_cbranch_scc0 L_PUB")
    D_ = 40 + 8*a
    pq_ = prs(a, 0); cbq = lambda j: v(CB+4*(2*a + (j % 4)//2), 2)
    for j in range(8): A(f"v_pk_fma_f32 {v(pq_[j],2)}, {v(80+4*(j//4)+2*(j&1),2)}, {cbq(j)}, {v(pq_[j],2)} op_sel_hi:[1,0,1]")
    for j in range(8): A(f"v_pk_fma_f32 {v(pq_[j],2)}, {v(pq_[j],2)}, {cbq(j)}, s[72:73] op_sel:[0,1,0] op_sel_hi:[1,1,1]")
    phi2(pq_, [8+2*j for j in range(8)], [D_+j for j in range(8)])
    for hd in range(2):
        A(f"v_permlane16_swap_b32 v{D_+4*hd}, v{D_+4*hd+2}\nv_permlane16_swap_b32 v{D_+4*hd+1}, v{D_+4*hd+3}")
    A(f"buffer_store_dwordx4 {v(D_,4)}, v1, {H}, 0 offen offset:{1024*a} sc1")
    A(f"buffer_store_dwordx4 {v(D_+4,4)}, v1, {H}, s81 offen offset:{1024*a} sc1")
    rissue(3-a)
stamp((4, 1))
A("s_cmp_eq_u32 s78, s4\ns_cbranch_scc0 L_PUB")
gsig()
f_addr(9)
A(f"s_mov_b32 s88, 0\ns_waitcnt vmcnt({2*(3-OPT['rq'])})\nL_KVC:")
tagcheck(8, 64, [CTr(n//3)+4*(n%3)+3 for n in range(18)])
A(f"""v_cmp_ne_u32 vcc, 0, v8
s_add_u32 s88, s88, 1
s_cmp_gt_u32 s88, {OPT['spin']}
s_cbranch_scc1 L_KVD
s_cbranch_vccz L_KVD""")
rloads()
A("s_waitcnt vmcnt(0)\ns_branch L_KVC\nL_KVD:")
note("s88", 3)
rr = lambda p, j: CTr(p) + 4*(j//3) + j % 3
RA, RB = 12, 64
for j in range(9): A(f"v_add_f32 v{RA+j}, v{rr(0,j)}, v{rr(1,j)}")
for p in range(2, 6):
    for j in range(9): A(f"v_add_f32 v{RA+j}, v{RA+j}, v{rr(p,j)}")
for sw in (16, 32):
    for j in range(9): A(f"v_mov_b32 v{RB+j}, v{RA+j}")
    for j in range(9): A(f"v_permlane{sw}_swap_b32 v{RA+j}, v{RB+j}")
    for j in range(9): A(f"v_add_f32 v{RA+j}, v{RA+j}, v{RB+j}")
A(f"""s_lshr_b32 s86, s79, 1
s_lshl_b32 s86, s86, 3
s_add_u32 s87, s86, 2
s_add_u32 s88, s86, 4
s_add_u32 s89, s86, 6
v_mov_b32_dpp v{RA+9}, v{RA+8} row_shl:1 row_mask:0xf bank_mask:0xf""")
for j in range(4): A(f"v_cvt_pk_bf16_f32 v{RB+j}, v{RA+2*j}, v{RA+1+2*j}")
A(f"""v_cvt_pk_bf16_f32 v{RA+9}, v{RA+8}, v{RA+9}
s_bitcmp1_b32 s79, 0
s_cselect_b64 s[80:81], -1, 0
s_xor_b64 s[80:81], s[80:81], s[74:75]""")
for j in range(4): A(f"v_readlane_b32 s{70+j}, v{RA+9}, s{86+j}")
for j in range(4): A(f"v_mov_b32 v{RB+4+j}, s{70+j}")
for j in range(4): A(f"v_cndmask_b32 v{RB+8+j}, v{RB+j}, v{RB+4+j}, s[80:81]")
A(f"""s_mov_b32 exec_hi, 0
buffer_store_dwordx4 {v(RB+8,4)}, v9, {WS}, 0 offen sc1
s_mov_b32 exec_hi, -1
s_waitcnt vmcnt(1)""")
stamp((5, 3))
flagstore(2)

A("L_SPART:")
if OPT["sprio"] != OPT["prio"]: A(f"s_setprio {OPT['sprio']}")
stamp((5, 1), (3, 3))
xres_addr(1, 8); xres_load()
w2addr(4, 8, False)
A(f"""s_lshl_b32 s86, s4, 3
s_add_u32 s86, s86, 86
s_lshl_b32 s86, s86, 16
s_lshl_b32 s87, s84, 11
s_add_u32 s86, s86, s87
v_lshl_add_u32 v2, v0, 4, s86
s_mul_i32 s88, s84, 43
s_lshr_b32 s88, s88, 7
s_mul_i32 s88, s88, 23
s_lshl_b32 s87, s4, 1
s_add_u32 s88, s88, s87
s_add_u32 s88, s88, 15
s_lshl_b32 s88, s88, 12
s_add_u32 s88, s88, {WS_FLAG}
v_and_b32 v3, 7, v0
v_lshl_add_u32 v3, v3, 10, s88
s_lshl_b32 s74, s4, 13
s_add_u32 s74, s74, {WS_F}
v_lshl_add_u32 v8, v0, 4, s74
s_lshl_b32 s86, s4, 2
s_add_u32 s86, s86, {LF}
v_mov_b32 v10, s86
s_mov_b32 s72, {hx(1e-6)}
s_movk_i32 s73, 4096
s_mov_b32 s89, 0""")
if OPT["warm"]:
    assert OPT["sd"] == 8
    A("s_mov_b32 s75, 1\ns_mov_b64 exec, 0\ns_branch L_PIPE\nL_WBACK:\ns_mov_b32 s75, 0\ns_mov_b64 exec, -1")
stamp((1, 4))
if OPT['sdelay']: A(f"s_sleep {OPT['sdelay']}")
if OPT["comb"]:
    A("v_add_u32 v3, 48, v10"); spin_lds(3, 9)
else: spin_flag(3, 9, 8, 2)
note("s88", 4)
stamp((6, 1), (2, 4))
SD = OPT["sd"]
rho8()
A("s_lshl_b32 s78, s12, 2\ns_lshr_b32 s79, s12, 4")
def pqload(k):
    return [f"s_xor_b32 s86, s78, {k*65536}",
            f"buffer_load_dwordx4 {v(16+8*k,4)}, v2, {H}, s86 offen sc1",
            f"buffer_load_dwordx4 {v(20+8*k,4)}, v2, {H}, s86 offen offset:1024 sc1"]
def floads():
    for k in range(8):
        if k % 2 == 0: A(f"s_xor_b32 s86, s79, {k*1024}")
        A(f"buffer_load_dwordx4 {v(80+4*k,4)}, v8, {WS}, s86 offen offset:{1024*(k%2)} sc1")
if OPT["ffirst"]: floads()
for k in range(SD):
    if OPT["sdep"]: A(f"s_waitcnt vmcnt({OPT['sdep']-2})")
    E(pqload(k))
if OPT["ffirst"]: A(f"s_waitcnt vmcnt({2*SD})\ns_branch L_FC")
if OPT["hints"]:
    A(f"s_lshl_b32 s86, s4, 14\ns_add_u32 s86, s86, {WS_FF}\nv_lshl_add_u32 v9, v0, 10, s86")
    spin_flag(9, 11, 16)
else: A(f"s_waitcnt vmcnt({OPT['fafter']})")
A("s_branch L_FL\nL_FQ:\ns_sleep 8\nL_FL:")
floads()
A("s_waitcnt vmcnt(0)\nL_FC:\ns_add_u32 s89, s89, 1")
E(vmax(112, [80+4*k for k in range(8)]))
A(f"""v_cmp_eq_u32 vcc, -1, v112
s_cmp_gt_u32 s89, {OPT['spin']}
s_cbranch_scc1 L_FPD
s_cbranch_vccnz L_FQ
L_FPD:""")
note("s89", 4); note("s89", 1)
stamp((6, 3), (3, 4))
woloc = lambda k: (1, k) if k < 6 else (2, k-2)
def Om(k): return [mfma(128+32*(k&1)+16*r, 80+4*k, 16+8*k+4*r, 0) for r in range(2)]
def Vv(k):
    o = []
    D = [128+32*(k&1)+16*r for r in range(2)]
    nd = [((d, d+8) if k % 2 == 0 else (d+8, d)) for d in D]
    for num, den in nd: o.append(f"v_add_f32 v{den}, s72, v{den}")
    for num, den in nd: o.append(f"v_rcp_f32 v{den}, v{den}")
    for r, (num, den) in enumerate(nd):
        if OPT["spk"]:
            for j in range(4): o.append(f"v_pk_mul_f32 {v(num+2*j,2)}, {v(num+2*j,2)}, {v(den,2)} op_sel_hi:[1,0]")
        else:
            for j in range(8): o.append(f"v_mul_f32 v{num+j}, v{num+j}, v{den}")
        for j in range(4): o.append(f"v_cvt_pk_bf16_f32 v{16+8*k+4*r+j}, v{num+2*j}, v{num+2*j+1}")
    return o
def Sm(k): return [mfmaH(192+32*r+16*c, 112+8*(k&1)+4*c, 16+8*k+4*r, 0 if k <= OPT['h16'] else None, k & 1) for r in range(2) for c in range(2)]
issued = [SD]
def need(k):
    o = [f"s_waitcnt vmcnt({2*(issued[0]-1-k)})"]
    more = []
    if issued[0] < 8: more = pqload(issued[0]); issued[0] += 1
    return o, more
A('L_PIPE:')
E(w2read(112, *woloc(0), 4, False))
for k in (0, 1):
    w_, m_ = need(k); E(w_ + Om(k) + m_)
E(Vv(0))
for k in range(8):
    A("s_waitcnt lgkmcnt(0)")
    fill = (w2read(112+8*((k+1)&1), *woloc(k+1), 4, False) + Vv(k+1)) if k+1 < 8 else []
    if k == 7:
        fill = cap(lambda: (wraddr(80, False), rdaddr(4, False, 1, 88), A(f"s_lshl_b32 s86, s4, 11\ns_add_u32 s86, s86, {GB}\nv_lshl_add_u32 v9, v0, 4, s86"),
            [A(f"v_lshlrev_b32 v{112+2*j}, 16, v{12+j}\nv_and_b32 v{113+2*j}, 0xffff0000, v{12+j}") for j in range(4)]))
    NF = 16 if OPT['spk'] else 20
    if k == 7: NF = 28
    E(interleave(Sm(k), fill[:NF], NF//4))
    if k+2 < 8:
        w_, m_ = need(k+2); E(w_); E(interleave(Om(k+2), fill[NF:] + m_, 6))
    else: E(fill[NF:])
    if k == 3: stamp((4, 4))
if OPT["warm"] == 1: A("s_cmp_eq_u32 s75, 1\ns_cbranch_scc1 L_WBACK")
stamp((7, 1), (5, 4))
final(False)
stamp((6, 4))
if OPT["fin"] == 0: A("s_barrier\nds_read_b128 v[88:91], v9\nds_read_b128 v[92:95], v9 offset:1024\ns_branch L_FIN2")
else: A("s_barrier\ns_branch L_FIN2")

A("L_FINAL:")
stamp((6, 4))
A("s_barrier")
if OPT["fin"] == 1: A("ds_read_b128 v[88:91], v109\nds_read_b128 v[92:95], v109 offset:1024")
A("L_FIN2:")
stamp((7, 3), (7, 4))
rd4(48, 4)
A("s_waitcnt lgkmcnt(0)")
sum4(48)
if OPT["fin"] == 1:
    for j in range(4): A(f"v_pk_mul_f32 {v(56+2*j,2)}, {v(48+2*j,2)}, s[70:71]")
    E(interleave([f"v_exp_f32 v{56+j}, v{56+j}" for j in range(8)], [f"v_pk_mul_f32 {v(88+2*j,2)}, {v(88+2*j,2)}, {v(48+2*j,2)}" for j in range(4)], 1))
    for j in range(4): A(f"v_pk_add_f32 {v(56+2*j,2)}, {v(56+2*j,2)}, 1.0 op_sel_hi:[1,0]")
    for j in range(8): A(f"v_rcp_f32 v{48+j}, v{56+j}")
for j in range(4): A(f"v_pk_fma_f32 {v(48+2*j,2)}, {v(48+2*j,2)}, {v(88+2*j,2)}, {v(112+2*j,2)}")
for j in range(4): A(f"v_cvt_pk_bf16_f32 v{24+j}, v{48+2*j}, v{49+2*j}")
if OPT["warm"] == 2: A("s_cbranch_execz L_WBACK")
A(f"""buffer_store_dwordx4 v[24:27], v1, {OUT}, 0 offen {['', 'sc1', 'nt', 'sc0 sc1'][OPT['osc']]}
s_add_u32 s86, s2, s3
s_cmp_eq_u32 s86, 0
s_cbranch_scc0 L_NOBUMP
v_mov_b32 v2, 0
v_mov_b32 v3, {TAG}
buffer_store_dword v3, v2, {WS}, 0 offen sc1
L_NOBUMP:""")
if OPT["stamps"]:
    A("s_waitcnt vmcnt(0)")
    stamp((8, 0))
    A(f"""s_memrealtime s[68:69]
s_waitcnt lgkmcnt(0)
s_mov_b32 s101, s68""")
    if OPT["diag"]:
        A(f"""s_cmp_lg_u32 s3, {OPT['dwave']}
s_cbranch_scc1 L_END
s_sub_u32 s86, s{92+OPT['diag']}, s34
s_lshl_b32 s86, s86, 2
s_min_u32 s86, s86, 20000
L_DSPIN:
s_memrealtime s[68:69]
s_waitcnt lgkmcnt(0)
s_sub_u32 s87, s68, s101
s_sleep 2
s_cmp_lt_u32 s87, s86
s_cbranch_scc1 L_DSPIN
s_endpgm""")
    A(f"""s_lshl_b32 s86, s2, 3
s_add_u32 s86, s86, s3
s_lshl_b32 s86, s86, 6
s_add_u32 s86, s86, {WS_DBG}
v_mov_b32 v2, s86""")
    for i in range(10): A(f"v_mov_b32 v3, s{92+i}\nbuffer_store_dword v3, v2, {WS}, 0 offen offset:{4*i}")
    A(f"v_mov_b32 v3, s34\nbuffer_store_dword v3, v2, {WS}, 0 offen offset:40")
    A(f"v_mov_b32 v3, s35\nbuffer_store_dword v3, v2, {WS}, 0 offen offset:44")
A("L_END:\ns_endpgm")

lines, errs = pad(A.lines)
for e in errs: print("HAZARD:", e, file=sys.stderr)
hdr = open("cdna_kernels/%s.s.ref" % NAME).read().split("; Override launch")[0]
out = hdr + f"""; Fused single-launch kernel, emitted by my own generator script (gen/gen.py); 256 WGs x 8 waves, 1 WG per CU.
;  Phase 1: 192x192 tiles of x @ [w_gate|w_up] (GU role) or x @ [wq|wk|wv] (QKV role), K streamed through a
;    3-slot LDS ring by LDS-DMA (waves 0-1), MFMA 16x16x32 in waves 4-7. LayerNorm is applied after the GEMM:
;    r*(acc - mean*colsum(W)); row stats and column sums are computed once and shared through tagged granules.
;    GU epilogue: gelu(g)*u -> h fragments; QKV epilogue: phi(k)^T v / sum phi(k) partials, phi(q) fragments.
;  Phase 2: 64x64 output tiles: waves 0-3 y = h @ w_down (K split), waves 4-7 o = phi(q) kv / den, s = o @ wo,
;    LDS reduction, out = x + s * silu(y).
;  Hand-offs: write-through (sc1) stores, drained, then a flag line holding this launch's tag (tag = word found at
;    d_ws[0] + constant, written back at the end); readers use sc1 loads. All waits are bounded.
; @launch grid=(256,1,1) block=(512,1,1) lds={LDS}
.amdgcn_target "amdgcn-amd-amdhsa--gfx950"
.text
.globl {NAME}_kernel
.p2align 8
.type {NAME}_kernel,@function
{NAME}_kernel:
""" + render(lines) + f""".section .rodata,"a"
.p2align 6
.amdhsa_kernel {NAME}_kernel
  .amdhsa_next_free_vgpr 256
  .amdhsa_next_free_sgpr 102
  .amdhsa_accum_offset 256
  .amdhsa_group_segment_fixed_size 0
  .amdhsa_kernarg_size 80
  .amdhsa_user_sgpr_count 2
  .amdhsa_user_sgpr_kernarg_segment_ptr 1
  .amdhsa_system_sgpr_workgroup_id_x 1
.end_amdhsa_kernel
"""
open(sys.argv[1], "w").write(out)
```

```python
import sys, struct
from asmlib import *
NAME = "recurrent_scan__linear_attn_block__glu_gated_geglu__prompt"
OPT = dict(stamps=0, rot=2, prio=1, pfcode=1, spin=1<<17, thr=4, unthr=41, n7=1, ca=14, cb=22, h=5, mix=0, sub=0,
           psleep=2, ydep=5, sdep=0, w2late=0, p2map=1, stage=1, sprio=1, ydelay=-1, sdelay=0, fdelay=0, rdelay=0, xlate=0, now2=0, sd=3, apoll=0, fgate=1, rt=1, zf=1, nr=0, r0=3, lred=0, prew=0, hints=0, comb=1, fafter=0, h16=0, gate=4, ffirst=1, warm=0, nodma=0, redearly=1, xz=1, gmix=0, qmix=0, qnop=0, bpos=0, rgap=3, spk=0, diag=0, dwave=4, nrep=2, nl=4, p1=1, p2=7, osc=0, gpos=1, c2=9, yprio=2, ydrop=22, ypost=0, mord=0, adapt=1, ypk=0, nb=3, pf2=-1, drot=0, xfirst=1, nostat=0, w1pf=-9, slow=0, dead=1, qg=0, rq=1, tfrom=6, nc=0, thr2=4, nraw=6, krot=0, slo=0, shi=0, sn=4, nearly=0, e0=3, e1=6, fin=0, c1=-1, pre0=11, pe=-1, map=0)
for a in sys.argv[2:]:
    k, v_ = a.split("="); assert k in OPT, k; OPT[k] = int(v_, 0)
def f2u(x): return struct.unpack("<I", struct.pack("<f", x))[0]
def hx(x): return "0x%08x" % f2u(x)

SLOT = 49152; XW = 24576; UPOFF = 12288; MISC = 3*SLOT; LDS = 163840
RS = MISC; RR = MISC+3072; CF = MISC+3840; MR = MISC+4608; LF = MISC+5376; GB = MISC+5632
Q = 12288
WS_RS = 0x10000; WS_CS = 0x20000; WS_FLAG = 0x300000; WS_FF = 0x60000; WS_DBG = 0x80000; WS_F = 0xC0000; WS_KV = 0x100000; WS_H = 0x800000
X="s[36:39]"; W="s[40:43]"; WS="s[44:47]"; H="s[48:51]"; WD="s[56:59]"; WO="s[60:63]"; OUT="s[64:67]"
TAG="s10"
def v(b, n=1): return f"v{b}" if n == 1 else f"v[{b}:{b+n-1}]"
def mfma(d, a, b, c=None):
    return f"v_mfma_f32_32x32x16_bf16 {v(d,16)}, {v(a,4)}, {v(b,4)}, " + ("0" if c == 0 else v(d,16))
def mfmaH(d, a, b, c, alt):
    if not OPT["h16"]: return mfma(d, a, b, c)
    return mf16(d+8*alt, a, b, c) + "\n" + mf16(d+8*alt+4, a ^ 4, b, c)
def mf16(d, a, b, c=None):
    return f"v_mfma_f32_16x16x32_bf16 {v(d,4)}, {v(a,4)}, {v(b,4)}, " + ("0" if c == 0 else v(d,4))
def bc(r): return v(r & ~1, 2), r & 1
_lab = [0]
def L(p="L"):
    _lab[0] += 1; return f"{p}_{_lab[0]}"
A = Asm()
def E(lst):
    for t in lst: A(t)
def cap(fn):
    n = len(A.lines); fn(); o = [t for _, t in A.lines[n:]]; del A.lines[n:]; return o
def stamp(*pairs):
    for i, st in pairs:
        if OPT["stamps"] == st or (OPT["stamps"] and st == 0):
            A(f"{'s_memrealtime' if (OPT['rt'] and i != 8) else 's_memtime'} s[68:69]\ns_waitcnt lgkmcnt(0)\ns_mov_b32 s{92+i}, s68")
def note(reg, st):
    if OPT["stamps"] == st: A(f"s_mov_b32 s35, {reg}")
def srd(name, lo, size, add=0):
    b = int(name[2:4])
    if add: A(f"s_add_u32 s{b}, s{lo}, {add}\ns_addc_u32 s{b+1}, s{lo+1}, 0")
    else: A(f"s_mov_b32 s{b}, s{lo}\ns_mov_b32 s{b+1}, s{lo+1}")
    A(f"s_mov_b32 s{b+2}, {size}\ns_mov_b32 s{b+3}, 0x20000")
def spin_flag(vaddr, vt, nl, kind=None, first=0):
    l1, l2 = L("POLL"), L("POLLD")
    A(f"""s_mov_b32 s88, {first}
s_mov_b64 exec, {hex((1<<nl)-1)}
{l1}:
s_and_b32 s87, s88, {OPT['nrep']-1}
s_lshl_b32 s87, s87, 7""")
    if kind: A(f"s_add_u32 s87, s87, {kind << 20}")
    A(f"""buffer_load_dword {v(vt)}, {v(vaddr)}, {WS}, s87 offen sc1
s_add_u32 s88, s88, 1
s_waitcnt vmcnt(0)
v_cmp_ne_u32 vcc, {TAG}, {v(vt)}
s_cmp_gt_u32 s88, {OPT['spin']}
s_cbranch_scc1 {l2}
s_cbranch_vccz {l2}
s_sleep {OPT['psleep']}
s_branch {l1}
{l2}:
s_mov_b64 exec, -1""")
def spin_lds(vaddr, vt, need=1):
    l1, l2 = L("LP"), L("LPD")
    A(f"""s_mov_b32 s86, 0
{l1}:
ds_read_b32 {v(vt)}, {v(vaddr)}
s_add_u32 s86, s86, 1
s_waitcnt lgkmcnt(0)
v_cmp_gt_u32 vcc, {need}, {v(vt)}
s_cmp_gt_u32 s86, {OPT['spin']*8}
s_cbranch_scc1 {l2}
s_cbranch_vccz {l2}
s_sleep 1
s_branch {l1}
{l2}:""")
def vmax(dst, regs_):
    o = []; r = list(regs_)
    if len(r) == 2: return [f"v_max_u32 v{dst}, v{r[0]}, v{r[1]}"]
    o.append(f"v_max3_u32 v{dst}, v{r[0]}, v{r[1]}, v{r[2]}"); r = r[3:]
    while r:
        if len(r) >= 2: o.append(f"v_max3_u32 v{dst}, v{dst}, v{r[0]}, v{r[1]}"); r = r[2:]
        else: o.append(f"v_max_u32 v{dst}, v{dst}, v{r[0]}"); r = r[1:]
    return o
def tagcheck(dst, tmp, regs_):
    for n, r in enumerate(regs_): A(f"v_xor_b32 v{dst if n == 0 else tmp+n}, {TAG}, v{r}")
    n = 1
    while n < len(regs_):
        if n+1 < len(regs_): A(f"v_or3_b32 v{dst}, v{dst}, v{tmp+n}, v{tmp+n+1}"); n += 2
        else: A(f"v_or_b32 v{dst}, v{dst}, v{tmp+n}"); n += 1

A(f"""s_cmp_ge_u32 s2, 256
s_cbranch_scc1 L_END
s_load_dwordx16 s[16:31], s[0:1], 0
s_load_dwordx2 s[32:33], s[0:1], 72""")
if OPT["stamps"]: A("s_memrealtime s[34:35]\ns_memtime s[68:69]")
A(f"""v_lshrrev_b32 v1, 6, v0
v_and_b32 v0, 63, v0
v_readfirstlane_b32 s3, v1
s_and_b32 s5, s2, 7
s_lshr_b32 s86, s2, 3""")
if OPT["p2map"] == 0:
    A("s_lshl_b32 s84, s5, 2\ns_lshr_b32 s87, s86, 3\ns_add_u32 s84, s84, s87\ns_and_b32 s85, s86, 7")
else:
    A("""s_lshr_b32 s84, s5, 1
s_lshl_b32 s84, s84, 3
s_lshr_b32 s87, s86, 2
s_add_u32 s84, s84, s87
s_and_b32 s85, s5, 1
s_lshl_b32 s85, s85, 2
s_and_b32 s87, s86, 3
s_add_u32 s85, s85, s87""")
A(f"""s_lshl_b32 s5, s5, 5
s_add_u32 s5, s5, s86
s_and_b32 s4, s3, 3
s_mov_b32 s12, 0
""")
if OPT["map"] == 0:
    A("""s_cmp_lt_u32 s5, 138
s_cbranch_scc0 L_BOT
s_mul_i32 s7, s5, 171
s_lshr_b32 s7, s7, 10
s_mul_i32 s86, s7, 6
s_sub_u32 s6, s5, s86
s_branch L_IDS
L_BOT:
s_cmp_ge_u32 s5, 253
s_cselect_b32 s12, 1, 0
s_cselect_b32 s86, 5, 0
s_sub_u32 s86, s5, s86
s_sub_u32 s86, s86, 138
s_mul_i32 s87, s86, 205
s_lshr_b32 s87, s87, 10
s_sub_u32 s7, 22, s87
s_mul_i32 s87, s87, 5
s_sub_u32 s6, s86, s87
s_add_u32 s6, s6, 6
""")
elif OPT["map"] == 1:
    A("""s_cmp_ge_u32 s5, 253
s_cselect_b32 s12, 1, 0
s_cselect_b32 s86, 253, 0
s_sub_u32 s86, s5, s86
s_mul_i32 s7, s86, 745
s_lshr_b32 s7, s7, 13
s_mul_i32 s87, s7, 11
s_sub_u32 s6, s86, s87""")
else:
    A("""s_and_b32 s87, s2, 7
s_mul_i32 s88, s87, 30
s_add_u32 s88, s88, s86
s_sub_u32 s87, 7, s87
s_lshl1_add_u32 s87, s87, s86
s_add_u32 s87, s87, 210
s_cmp_ge_u32 s86, 30
s_cselect_b32 s86, s87, s88
s_cmp_ge_u32 s86, 253
s_cselect_b32 s12, 1, 0
s_cselect_b32 s87, 253, 0
s_sub_u32 s86, s86, s87
s_mul_i32 s7, s86, 745
s_lshr_b32 s7, s7, 13
s_mul_i32 s87, s7, 11
s_sub_u32 s6, s86, s87
s_add_u32 s87, s7, 1
s_cmp_ge_u32 s7, 14
s_cselect_b32 s7, s87, s7
s_cmp_eq_u32 s7, 23
s_cselect_b32 s7, 14, s7""")
A(f"""L_IDS:
s_mov_b32 s90, s7""")
if OPT["mix"] == 2:
    A("""s_mul_i32 s86, s7, 43
s_lshr_b32 s86, s86, 8
s_mul_i32 s87, s86, 6
s_sub_u32 s87, s7, s87
s_lshl2_add_u32 s88, s86, s87
s_lshl1_add_u32 s86, s86, s87
s_add_u32 s86, s86, 11
s_cmp_ge_u32 s87, 4
s_cselect_b32 s88, s86, s88
s_cmp_ge_u32 s7, 21
s_cselect_b32 s7, s7, s88""")
if OPT["mix"] == 1:
    A("""s_mul_i32 s86, s7, 43
s_lshr_b32 s86, s86, 7
s_sub_u32 s87, s7, s86
s_lshl_b32 s88, s86, 1
s_sub_u32 s88, s87, s88
s_add_u32 s86, s86, 15
s_cmp_eq_u32 s7, 22
s_cselect_b32 s7, s86, s87
s_cmp_eq_u32 s88, 2
s_cselect_b32 s7, s86, s7""")
A(f"""s_mul_i32 s8, s6, 192
s_min_u32 s8, s8, 1856
s_mul_i32 s9, s7, 96
s_min_u32 s9, s9, 1280
s_cmp_lt_u32 s3, 4
s_cbranch_scc1 L_LOADER""")
def kwait():
    A("s_waitcnt lgkmcnt(0)\ns_load_dword s10, s[32:33], 0")
    if OPT["stamps"]: A("s_mov_b32 s92, s68")
    srd(X, 16, 2097152)
if OPT["prio"]: A(f"s_setprio {OPT['prio']}")
if OPT["pfcode"]:
    A(f"""s_getpc_b64 s[88:89]
L_PC:
s_sub_u32 s88, s88, L_PC-{NAME}_kernel
s_subb_u32 s89, s89, 0
s_lshr_b32 s86, s2, 3
s_lshl_b32 s86, s86, 3
s_lshl_b32 s87, s4, 1
s_add_u32 s86, s86, s87
v_and_b32 v3, 1, v0
v_add_u32 v3, s86, v3
v_lshlrev_b32 v3, 7, v3
v_min_u32 v3, L_END-{NAME}_kernel, v3
global_load_dword v47, v3, s[88:89]""")
A(f"""s_lshl_b32 s86, s5, 3
s_lshl_b32 s87, s4, 1
s_add_u32 s86, s86, s87
v_lshrrev_b32 v7, 5, v0
v_add_u32 v7, s86, v7
v_and_b32 v2, 31, v0
v_lshlrev_b32 v2, 4, v2
v_lshl_add_u32 v2, v7, 10, v2""")
kwait()
if not OPT["nostat"]: A(f"""buffer_load_dwordx4 v[8:11], v2, {X}, 0 offen
buffer_load_dwordx4 v[12:15], v2, {X}, 0 offen offset:512""")
stamp((1, 2))
A("s_branch L_COMPUTE\nL_LOADER:")

def w2addr(base, T, nat):
    a_, b_, c_, d_ = T, T+1, T+2, T+3
    A(f"""v_and_b32 v{a_}, 3, v0
v_bfe_u32 v{b_}, v0, 2, 2
v_bfe_u32 v{c_}, v0, 4, 1
v_lshrrev_b32 v{d_}, 5, v0
v_lshl_add_u32 v{d_}, v{d_}, {3 if nat else 2}, v{b_}
v_lshlrev_b32 v{d_}, 7, v{d_}
v_lshrrev_b32 v{b_}, 1, v{b_}
v_lshl_add_u32 v{c_}, v{b_}, 2, v{c_}
v_and_b32 v{b_}, 1, v{a_}
v_lshl_add_u32 v{c_}, v{b_}, 1, v{c_}
v_lshl_add_u32 v{d_}, v{c_}, 4, v{d_}
v_lshrrev_b32 v{a_}, 1, v{a_}
v_lshl_add_u32 v{d_}, v{a_}, 3, v{d_}
v_add_u32 v{base}, s76, v{d_}
v_xor_b32 v{d_}, 64, v{d_}
v_add_u32 v{base+1}, s76, v{d_}
v_add_u32 v{base+2}, {2*SLOT}, v{base}
v_add_u32 v{base+3}, {2*SLOT}, v{base+1}""")
def w2read(dst, slot, blk, ab, nat=True):
    o = []
    for c in range(2):
        for sec in range(2):
            ar = ab + c + (2 if slot == 2 else 0)
            off = (SLOT if slot == 1 else 0) + blk*2048 + sec*(512 if nat else 1024)
            o.append(f"ds_read_b64_tr_b16 {v(dst+4*c+2*sec,2)}, v{ar} offset:{off}")
    return o
def xres_addr(half, T):
    A(f"""s_lshl_b32 s86, s4, 4
s_lshl_b32 s87, s84, 6
s_add_u32 s86, s86, s87
s_add_u32 s86, s86, {8*half}
s_lshl_b32 s86, s86, 10
s_lshl_b32 s87, s85, 7
s_add_u32 s86, s86, s87
v_lshrrev_b32 v{T}, 3, v0
v_lshlrev_b32 v{T}, 10, v{T}
v_and_b32 v{T+1}, 7, v0
v_lshl_add_u32 v{T}, v{T+1}, 4, v{T}
v_add_u32 v1, s86, v{T}""")
def xres_load(late=0):
    if OPT["xlate"] == late: A(f"buffer_load_dwordx4 v[12:15], v1, {X}, 0 offen")
def p2setup():
    srd(WS, 32, 0x800000); srd(H, 32, 118*65536, WS_H); srd(WD, 28, 1376*1024); srd(WO, 20, 512*1024); srd(OUT, 30, 2097152)
    A(f"""v_lshrrev_b32 v24, 3, v0
v_lshlrev_b32 v24, 10, v24
v_and_b32 v25, 7, v0
v_bfe_u32 v26, v0, 4, 1
v_lshlrev_b32 v26, 2, v26
v_xor_b32 v25, v25, v26
v_lshl_add_u32 v24, v25, 4, v24
s_lshl_b32 s86, s85, 7
v_add_u32 v4, s86, v24
s_mul_i32 s87, s4, {3*16384}
v_add_u32 v2, s87, v4
s_add_u32 s87, s4, 84
s_lshl_b32 s87, s87, 14
v_add_u32 v3, s87, v4
s_lshl_b32 s87, s4, 17
v_add_u32 v4, s87, v4
s_mul_i32 s76, s4, {Q}
s_lshl_b32 s87, s84, 11
s_mul_i32 s86, s4, {3*65536}
s_add_u32 s86, s86, s87
v_lshl_add_u32 v6, v0, 4, s86
v_bfe_u32 v24, v0, 1, 3
v_lshlrev_b32 v24, 3, v24
s_lshr_b32 s86, s4, 1
s_lshl_b32 s86, s86, 2
s_and_b32 s90, s4, 1
s_add_u32 s86, s86, s90
v_add_u32 v24, s86, v24
v_min_u32 v24, 57, v24
v_cmp_eq_u32 vcc, 56, v24
v_cndmask_b32 v24, v24, 57, vcc
v_and_b32 v25, 1, v0
v_lshl_add_u32 v24, v25, 1, v24
s_lshl_b32 s86, s4, 3
s_add_u32 s86, s86, 44
v_add_u32 v25, s86, v0
v_cmp_lt_u32 vcc, 15, v0
v_cndmask_b32 v24, v24, v25, vcc
s_mul_i32 s86, s84, 43
s_lshr_b32 s86, s86, 7
s_mul_i32 s86, s86, {23*4096}
s_add_u32 s86, s86, {WS_FLAG}
v_lshl_add_u32 v5, v24, 10, s86
s_add_u32 s86, s4, 84
s_lshl_b32 s86, s86, 16
s_add_u32 s86, s86, s87
s_cmp_lt_u32 s4, 2
s_cselect_b32 s86, s86, 0x80000000
v_lshl_add_u32 v7, v0, 4, s86""")
    w2addr(8, 24, True); xres_addr(0, 24); rho8()
    A(f"s_waitcnt lgkmcnt(0)\ns_add_u32 {TAG}, {TAG}, 0x9E3779B9")
def wfrag_addr(dst, swc, T, lab):
    A(f"""v_and_b32 v{T}, 3, v0
v_bfe_u32 v{T+1}, v0, 2, 2
v_bfe_u32 v{T+2}, v0, 4, 1
s_cmp_ge_u32 s7, 15
s_cbranch_scc1 {lab}Q
v_lshrrev_b32 v{T+3}, 4, v0
v_lshl_add_u32 v{T+3}, v{T+3}, 3, v{T+1}
v_mul_u32_u24 v{T+3}, 192, v{T+3}
v_lshl_add_u32 v{T}, v{T}, 3, v{T+3}
v_add_u32 v{T}, {XW}, v{T}
s_mul_i32 s87, {swc}, 3
v_xor_b32 v{T+3}, s87, v{T+2}
v_lshl_add_u32 v{dst}, v{T+3}, 5, v{T}
s_add_u32 s87, s87, 1
v_xor_b32 v{T+3}, s87, v{T+2}
v_lshl_add_u32 v{dst+1}, v{T+3}, 5, v{T}
s_branch {lab}D
{lab}Q:
v_lshrrev_b32 v{T+3}, 5, v0
v_mul_u32_u24 v{T+3}, 3072, v{T+3}
v_lshl_add_u32 v{T+3}, v{T+1}, 7, v{T+3}
v_mul_u32_u24 v{T+4}, {UPOFF+32}, v{T+2}
v_lshrrev_b32 v{T+1}, 1, v{T+1}
v_xor_b32 v{T+1}, {swc}, v{T+1}
v_lshl_add_u32 v{T+4}, v{T+1}, 6, v{T+4}
v_lshl_add_u32 v{T}, v{T}, 3, v{T+3}
v_add_u32 v{T}, {XW}, v{T}
v_add_u32 v{dst}, v{T}, v{T+4}
v_xor_b32 v{dst+1}, 32, v{dst}
{lab}D:""")
def woff(role, s_, j, sec):
    if role == 'G':
        jj = j % 3
        return jj & 1, s_*6144 + sec*768 + (j//3)*UPOFF + (64 if jj == 2 else 0)
    return j & 1, s_*6144 + (j//2)*1024 + sec*512
def ksoff(kd): return 12*(kd % 7) + kd//7
S2R = [('o',6+k,2,4+k) for k in range(2)] + [('d',12+k,2,k) for k in range(4)]
S0R = [('d',16+k,0,k) for k in range(6)]
items = [('d',k,2,k) for k in range(6)] + [('d',6+k,2,k) for k in range(6)] + S2R + [('o',k,1,k) for k in range(6)] + S0R
N7 = OPT["n7"]
def rho8():
    if OPT["krot"]: A("s_add_u32 s12, s84, s85\ns_and_b32 s12, s12, 3\ns_lshl_b32 s12, s12, 15")
    else: A("s_mov_b32 s12, 0")
def ktable():
    if OPT["krot"]:
        A("""s_lshl1_add_u32 s86, s85, s84
s_mul_i32 s87, s86, 37
s_lshr_b32 s87, s87, 8
s_mul_i32 s87, s87, 7
s_sub_u32 s86, s86, s87""")
    else: A("s_mov_b32 s86, 0")
    A(f"s_mul_i32 s77, s86, {12*16384}")
    for i in range(1, 7):
        A(f"s_add_u32 s{77+i}, s{76+i}, {12*16384}\ns_cmp_eq_u32 s{77+i}, {84*16384}\ns_cselect_b32 s{77+i}, 0, s{77+i}")
def w2ops(kind, k, dst, thr=None):
    nm = kind + str(k)
    if kind == 'o': va, S_, so = 4, WO, f"s_xor_b32 s86, s12, {k*16384}"
    elif k < 21: va, S_, so = 2, WD, f"s_add_u32 s86, s{77 + k % 7}, {(k//7)*16384}"
    else: va, S_, so = 3, WD, "s_mov_b32 s86, 0"
    if isinstance(dst, tuple):
        pre = f"s_add_u32 m0, s76, {dst[0]*SLOT + dst[1]*2048}\n{so}\ns_add_u32 s87, s86, 7168"
        i1 = f"buffer_load_dwordx4 v{va}, {S_}, s86 offen lds"; i2 = f"buffer_load_dwordx4 v{va}, {S_}, s87 offen offset:1024 lds"
    else:
        pre = f"{so}\ns_add_u32 s87, s86, 8192"
        i1 = f"buffer_load_dwordx4 {v(dst,4)}, v{va}, {S_}, s86 offen"; i2 = f"buffer_load_dwordx4 {v(dst+4,4)}, v{va}, {S_}, s87 offen"
    tw = f"s_waitcnt vmcnt({thr})\n" if thr is not None else ""
    return [pre, f"VM {nm}a|{tw}{i1}", f"VM {nm}|{tw}{i2}"]
NE = OPT["nearly"]
def rawblocks():
    steps = list(range(OPT["e0"], OPT["e1"])); n = len(steps)
    for i, st in enumerate(steps):
        its = range(NE*i//n, NE*(i+1)//n)
        if not len(its): continue
        sk = L("RW")
        A(f"s_cmp_eq_u32 s83, {st}\ns_cbranch_scc0 {sk}")
        for k in its:
            for t in w2ops('o', k, 192+8*k): A(t.split("|")[-1])
        A.label(sk)
def w2item(n):
    for t in w2ops(items[n][0], items[n][1], items[n][2:]): A(t.split("|")[-1])

A(f"""s_cmp_ge_u32 s3, 2
s_cbranch_scc1 L_SIDE
s_add_u32 s79, s6, s90""")
R_ = OPT["drot"] or OPT["rot"]
A(f"s_and_b32 s79, s79, {R_-1}\ns_lshl_b32 s79, s79, { {1:0, 2:2, 4:1, 8:0}[R_] }")
A(f"""v_lshrrev_b32 v24, 3, v0
v_and_b32 v25, 7, v0
v_lshrrev_b32 v26, 4, v0
v_xor_b32 v27, v25, v26
s_mul_i32 s86, s4, 96
s_add_u32 s86, s86, s8
s_lshl_b32 s86, s86, 10
v_lshl_add_u32 v16, v24, 10, s86
v_lshl_add_u32 v16, v27, 4, v16
v_xor_b32 v17, 64, v16
v_add_u32 v18, {2*7168}, v16
v_add_u32 v19, {3*7168}, v17
v_add_u32 v17, 7168, v17
s_mul_i32 s74, s4, 12288
""")
XG = ["s70", "s71", "s72"]; WL = ["s52", "s53", "s54", "s55"]; WG = ["s73", "s77", "s14", "s15"]
sh = {2: 1, 4: 2, 8: 0, 1: 0}[R_]
if OPT["sub"]:
    A(f"""s_lshr_b32 s86, s90, {sh}
s_mul_i32 s87, s86, 43
s_lshr_b32 s87, s87, 7
s_mul_i32 s87, s87, 3
s_sub_u32 s86, s86, s87
""")
else:
    A("s_mov_b32 s86, 0")
A("""s_lshl_b32 s70, s86, 12
s_add_u32 s71, s70, 4096
s_cmp_eq_u32 s71, 12288
s_cselect_b32 s71, 0, s71
s_add_u32 s72, s70, s71
s_sub_u32 s72, 12288, s72""")
XN = ["s11", "s13", "s91"]
A(f"s_lshl_b32 s86, s4, 4\ns_add_u32 s86, s86, s6\ns_cmp_eq_u32 s86, 10\ns_cselect_b32 s88, {8192 if OPT['xz'] else 0}, 0\ns_cmp_eq_u32 s12, 1\ns_cselect_b32 s88, {65536 if OPT['xz'] else 0}, s88")
for g in range(3): A(f"s_cmp_lt_u32 {XG[g]}, s88\ns_cselect_b32 {XN[g]}, 0, 2097152")
A("s_lshl_b32 s80, s79, 7\ns_mov_b32 s88, s74")
kwait()
stamp((1, 2))
def issue_head():
    A(f"""s_lshl_b32 s80, s79, 7
s_mul_i32 s81, s79, s82
s_lshl_b32 s81, s81, 2
s_add_u32 s88, s78, s74
s_add_u32 s89, s78, s75""")
ORDER = ["x0", "w0", "x1", "w1", "x2", "w2", "w3"]
def issue_part(lo, hi, order=None):
    n = 0
    for it in (order or ORDER[lo:hi]):
        g = int(it[1])
        if it[0] == 'x':
            A(f"s_add_u32 m0, s88, {XG[g]}\ns_lshl3_add_u32 s86, {XG[g]}, s80\ns_mov_b32 s38, {XN[g]}")
            for q in range(4): A(f"buffer_load_dwordx4 v{16+q}, {X}, s86 offen offset:{1024*q} lds")
            n += 4
        else:
            A(f"s_add_u32 m0, s89, {WL[g]}\ns_add_u32 s87, s81, {WG[g]}")
            for j in range(3): A(f"buffer_load_dwordx4 v{20+j}, {W}, s87 offen offset:{1024*j} lds")
            n += 3
    return n
def issue_tail():
    A(f"""s_add_u32 s79, s79, 1
s_and_b32 s79, s79, 7
s_add_u32 s78, s78, {SLOT}
s_cmp_eq_u32 s78, {3*SLOT}
s_cselect_b32 s78, 0, s78""")
HH = OPT["h"]
issue_part(0, 0, ["x0", "x1", "x2"][:3 if OPT["xfirst"] == 1 else 1])
A(f"""s_mul_i32 s75, s4, {UPOFF}
s_add_u32 s75, s75, {XW}
s_mov_b32 s43, 0x20000
s_mov_b32 s78, 0
s_cmp_ge_u32 s7, 15
s_cbranch_scc1 L_LQKV
s_mov_b32 s42, {512*2752}
s_mov_b32 s82, {16*2752}
s_movk_i32 s86, 0x1556
s_movk_i32 s87, 2752
s_lshl_b32 s88, s9, 1
s_cmp_eq_u32 s7, 14
s_cselect_b32 s89, {8 if OPT['zf'] else 0}, 0
s_cmp_eq_u32 s12, 1
s_cselect_b32 s89, {12 if OPT['zf'] else 0}, s89
v_mov_b32 v28, 0x80000000""")
for i in range(3):
    A(f"""v_add_u32 v24, {64*i}, v0
v_mul_u32_u24 v25, s86, v24
v_lshrrev_b32 v25, 16, v25
v_mul_u32_u24 v26, 12, v25
v_sub_u32 v24, v24, v26
v_lshrrev_b32 v26, 2, v25
v_and_b32 v26, 2, v26
v_xor_b32 v24, v24, v26
v_cmp_gt_u32 vcc, s89, v24
v_mul_u32_u24 v25, s87, v25
v_lshl_add_u32 v24, v24, 4, v25
v_add_u32 v24, s88, v24
v_subrev_u32 v24, {1024*i}, v24
v_cndmask_b32 v{20+i}, v24, v28, vcc""")
A(f"""s_branch L_LGO
L_LQKV:
s_mov_b32 s42, {512*3072}
s_mov_b32 s82, {16*3072}
s_sub_u32 s87, s7, 15
s_lshl_b32 s87, s87, 7
s_mul_i32 s88, s4, {8*3072}
s_add_u32 s87, s87, s88
v_mul_u32_u24 v24, 3072, v24
v_and_b32 v26, 1, v26
v_lshlrev_b32 v26, 2, v26
v_xor_b32 v25, v25, v26
s_lshl_b32 s88, s4, 1
v_xor_b32 v25, s88, v25
v_lshl_add_u32 v20, v25, 4, v24
v_add_u32 v20, s87, v20
v_mov_b32 v21, v20
v_mov_b32 v22, v20
L_LGO:""")
A(f"s_lshr_b32 s87, s6, {sh}" if OPT["sub"] else "s_mov_b32 s87, 0")
for g in range(4):
    A(f"s_add_u32 s86, s87, {g}\ns_and_b32 s86, s86, 3\ns_mul_i32 {WL[g]}, s86, 3072\ns_mul_i32 {WG[g]}, s86, s82")
A(f"""s_cmp_eq_u32 s4, 1
s_cselect_b32 s40, s26, s24
s_cselect_b32 s41, s27, s25
s_cmp_ge_u32 s7, 15
s_cselect_b32 s40, s18, s40
s_cselect_b32 s41, s19, s41""")
issue_head(); issue_part(0, 0, ["w0", "w1", "w2", "w3"] if OPT["xfirst"] == 1 else ["w0", "x1", "w1", "x2", "w2", "w3"]); issue_tail()
stamp((2, 2))
issue_head(); n_ = issue_part(0, HH)
p2setup()
A(f"s_waitcnt vmcnt({n_})")
stamp((1, 1), (3, 2))
A("s_barrier\ns_mov_b32 s83, 0\nL_LLOOP:")
rawblocks()
if OPT['nodma']: issue_tail(); issue_head()
else:
    if HH < 7: issue_part(HH, 7)
    issue_tail(); issue_head(); issue_part(0, HH)
A(f"""s_add_u32 s83, s83, 1
s_waitcnt vmcnt({n_})
s_barrier
s_cmp_lt_u32 s83, 6
s_cbranch_scc1 L_LLOOP""")
stamp((2, 1), (4, 2))
if HH < 7: issue_part(HH, 7)
A("s_mov_b32 s38, 2097152")
ktable()
for n in range(N7): w2item(n)
A(f"s_waitcnt vmcnt({2*N7})\ns_barrier")
A("s_branch L_W2")

def f_addr(dst):
    A(f"""s_sub_u32 s86, s7, 15
s_lshl_b32 s86, s86, 12
s_and_b32 s87, s6, 1
s_lshl_b32 s87, s87, 11
s_add_u32 s86, s86, s87
s_and_b32 s87, s6, 2
s_lshl_b32 s87, s87, 9
s_add_u32 s86, s86, s87
s_lshr_b32 s87, s6, 2
s_lshl_b32 s87, s87, 9
s_add_u32 s86, s86, s87
s_lshl1_add_u32 s91, s86, {WS_FF}
s_add_u32 s86, s86, {WS_F}
v_lshl_add_u32 v{dst}, v0, 4, s86""")
assert OPT["rot"] in (2, 4, 8)
A(f"""L_SIDE:
s_add_u32 s13, s6, s90
s_and_b32 s13, s13, {OPT['rot']-1}
s_lshl_b32 s13, s13, { {2:2, 4:1, 8:0}[OPT['rot']] }
s_lshr_b32 s14, s6, { {2:1, 4:2, 8:3}[OPT['rot']] }
s_add_u32 s15, s13, s14
s_cmp_ge_u32 s6, 8
s_cselect_b32 s14, 99, s14
s_cmp_eq_u32 s12, 1
s_cselect_b32 s14, 99, s14
s_and_b32 s77, s4, 1""")
wfrag_addr(62, "s77", 24, "L_SA")
A(f"""s_cmp_eq_u32 s14, 1
s_cselect_b32 s86, {SLOT}, 0
s_cmp_eq_u32 s14, 2
s_cselect_b32 s86, {2*SLOT}, s86
v_add_u32 v62, s86, v62
v_add_u32 v63, s86, v63
v_and_b32 v24, 16, v0
v_cmp_ne_u32 s[72:73], 0, v24
v_and_b32 v24, 31, v0
s_mul_i32 s86, s77, 384
s_add_u32 s86, s86, {CF}
v_lshrrev_b32 v25, 4, v24
v_mul_u32_u24 v25, 128, v25
v_lshl_add_u32 v17, v24, 2, v25
v_add_u32 v17, s86, v17
s_mul_i32 s87, s77, 96
v_add_u32 v21, s87, v0
v_add3_u32 v22, v24, s87, 64
s_lshl_b32 s86, s8, 4
s_add_u32 s86, s86, {WS_RS}
v_lshl_add_u32 v19, v21, 4, s86
v_lshl_add_u32 v20, v22, 4, s86
s_lshl_b32 s86, s7, 13
s_lshl_b32 s87, s77, 9
s_add_u32 s86, s86, s87
s_add_u32 s86, s86, {WS_CS}
s_lshl_b32 s87, s15, 10
s_add_u32 s74, s86, s87
v_lshlrev_b32 v23, 4, v24
v_lshrrev_b32 v25, 5, v0
v_lshl_add_u32 v18, v25, 12, v23
v_add_u32 v18, s86, v18""")
for r in range(52, 56): A(f"v_mov_b32 v{r}, 0x3f803f80")
def w1prefetch():
    A(f"""s_cmp_eq_u32 s77, 0
s_cselect_b32 s40, s24, s26
s_cselect_b32 s41, s25, s27
s_mov_b32 s42, {1376*1024}
s_mov_b32 s43, 0x20000
s_mul_i32 s86, s5, 43
v_min_u32 v16, 42, v0
v_add_u32 v16, s86, v16
v_lshlrev_b32 v16, 7, v16
buffer_load_dword v58, v16, {W}, 0 offen
s_mov_b32 s52, s18
s_mov_b32 s53, s19
s_mov_b32 s54, {512*3072}
s_mov_b32 s55, 0x20000
s_lshl_b32 s86, s5, 1
s_add_u32 s86, s86, s77
s_mul_i32 s86, s86, 24
v_min_u32 v16, 23, v0
v_add_u32 v16, s86, v16
v_lshlrev_b32 v16, 7, v16
buffer_load_dword v57, v16, s[52:55], 0 offen""")
kwait()
if OPT['w1pf'] == -2: w1prefetch()
p2setup()
A(f"""s_cmp_lt_u32 s7, 15
s_cbranch_scc1 L_NOCLR
s_cmp_ge_u32 s6, 8
s_cbranch_scc1 L_NOCLR""")
f_addr(24)
A(f"""v_mov_b32 v28, -1
v_mov_b32 v29, -1
v_mov_b32 v30, -1
v_mov_b32 v31, -1
s_mov_b32 exec_hi, 0
buffer_store_dwordx4 v[28:31], v24, {WS}, 0 offen sc1
s_mov_b32 exec_hi, -1""")
if OPT["prew"]: A(f"s_sub_u32 s86, {TAG}, 1\nv_mov_b32 v32, s86\nv_lshlrev_b32 v24, 4, v0\nbuffer_store_dwordx4 v[32:35], v24, {WS}, s91 offen sc1")
A(f"""L_NOCLR:
s_mov_b32 s83, 0
s_waitcnt vmcnt(0)""")
if OPT["w1pf"] == -1: w1prefetch()
A("L_SLOOP:\ns_barrier")
if OPT["w1pf"] >= 0:
    A(f"s_cmp_eq_u32 s83, {OPT['w1pf']}\ns_cbranch_scc0 L_NOPF1"); w1prefetch(); A("L_NOPF1:")
if OPT["w2late"] >= 0:
    A(f"""s_cmp_eq_u32 s83, {OPT['w2late']}
s_cbranch_scc0 L_NOPF2
s_mul_i32 s86, s5, 59
s_mul_i32 s87, s77, 30
s_add_u32 s86, s86, s87
v_min_u32 v16, 29, v0
v_add_u32 v16, s86, v16
v_lshlrev_b32 v16, 7, v16
buffer_load_dword v60, v16, {WD}, 0 offen
v_subrev_u32 v16, {1376*1024}, v16
buffer_load_dword v61, v16, {WO}, 0 offen
L_NOPF2:""")
if OPT["pf2"] >= 0:
    A(f"""s_cmp_eq_u32 s83, {OPT['pf2']}
s_cbranch_scc0 L_NOPF3
s_getpc_b64 s[88:89]
L_PC2:
s_sub_u32 s88, s88, L_PC2-{NAME}_kernel
s_subb_u32 s89, s89, 0
s_lshr_b32 s86, s2, 3
s_lshl_b32 s86, s86, 3
s_lshl_b32 s87, s77, 2
s_add_u32 s86, s86, s87
v_and_b32 v16, 3, v0
v_add_u32 v16, s86, v16
v_lshlrev_b32 v16, 7, v16
v_min_u32 v16, L_END-{NAME}_kernel, v16
global_load_dword v59, v16, s[88:89]
L_NOPF3:""")
A("s_cmp_eq_u32 s83, s14\ns_cbranch_scc0 L_LNOCS")
for t in range(2):
    A(f"s_cmp_ge_u32 s7, 15\ns_cbranch_scc1 L_CSQ{t}")
    for role in "GQ":
        if role == 'Q': A(f"s_branch L_CSM{t}\nL_CSQ{t}:")
        for j in range(6):
            for sec in range(2):
                par, off = woff(role, t, j, sec)
                A(f"ds_read_b64_tr_b16 {v(24+4*j+2*sec,2)}, v{62+par} offset:{off}")
    A(f"L_CSM{t}:\ns_waitcnt lgkmcnt(0)")
    for j in range(6): A(mf16(72+4*j, 52, 24+4*j, 0 if t == 0 else None))
A(f"v_mov_b32 v51, {TAG}")
for u in range(3): A(f"v_cndmask_b32 v{48+u}, v{72+4*u}, v{84+4*u}, s[72:73]")
A(f"""s_mov_b32 exec_hi, 0
buffer_store_dwordx4 v[48:51], v23, {WS}, s74 offen sc1
s_mov_b32 exec_hi, -1
L_LNOCS:""")
rawblocks()
A(f"""s_add_u32 s83, s83, 1
s_cmp_lt_u32 s83, 6
s_cbranch_scc1 L_SLOOP""")
def st_loads():
    for p in range(4): A(f"buffer_load_dwordx4 {v(32+4*p,4)}, v18, {WS}, 0 offen offset:{1024*p} sc1")
    A(f"buffer_load_dwordx4 v[48:51], v19, {WS}, 0 offen sc1\nbuffer_load_dwordx4 v[52:55], v20, {WS}, 0 offen sc1")
st_loads()
A("s_barrier")
stamp((2, 1), (4, 2))
ktable()
for n in range(N7): w2item(n)
A(f"s_mov_b32 s88, 0\ns_waitcnt vmcnt({2*N7})")
A("L_SPC:")
tagcheck(24, 24, [35+4*p for p in range(6)])
A(f"""v_cmp_ne_u32 vcc, 0, v24
s_add_u32 s88, s88, 1
s_cmp_gt_u32 s88, {OPT['spin']}
s_cbranch_scc1 L_SPCD
s_cbranch_vccz L_SPCD""")
st_loads()
A(f"""s_waitcnt vmcnt(0)
s_branch L_SPC
L_SPCD:
s_mov_b32 s86, {RS}
s_mov_b32 s87, {RR}
v_lshl_add_u32 v24, v21, 4, s86
v_lshl_add_u32 v25, v22, 4, s86
v_lshl_add_u32 v21, v21, 2, s87
v_lshl_add_u32 v22, v22, 2, s87
ds_write_b128 v24, v[48:51]
ds_write_b128 v25, v[52:55]
ds_write_b32 v21, v49
ds_write_b32 v22, v53
v_mul_f32 v24, v48, v49
v_mul_f32 v25, v52, v53
ds_write_b32 v21, v24 offset:{MR-RR}
ds_write_b32 v22, v25 offset:{MR-RR}""")
note("s88", 2)
for p in range(1, 4):
    for u in range(3): A(f"v_add_f32 v{32+u}, v{32+u}, v{32+4*p+u}")
for u in range(3): A(f"v_mov_b32 v{36+u}, v{32+u}")
for u in range(3): A(f"v_permlane32_swap_b32 v{32+u}, v{36+u}")
for u in range(3): A(f"v_add_f32 v{32+u}, v{32+u}, v{36+u}")
for u in range(3): A(f"ds_write_b32 v17, v{32+u} offset:{64*u}")
A("s_waitcnt lgkmcnt(0)\ns_barrier")

A("L_W2:")
stamp((3, 1), (6, 2))
AB = 8
vm = [x for n in range(N7) for x in (f"d{n}a", f"d{n}")]
def emit(Y):
    for t in Y:
        if callable(t): t()
        elif t.startswith("VM "):
            nm, ins = t[3:].split("|"); vm.append(nm); A(ins)
        elif t.startswith("WAIT "):
            nms, lg = t[5:].split("|")
            A(f"s_waitcnt vmcnt({len(vm)-1-max(vm.index(x) for x in nms.split(','))})" + (" lgkmcnt(0)" if lg else ""))
        elif t.startswith("STAMP "): stamp((int(t[6:]), 4))
        else: A(t)
A(f"v_lshlrev_b32 v84, 4, v0\nv_add_u32 v84, s76, v84")
def wr(reg, slot, blk):
    off = slot*SLOT + blk*2048
    A(f"ds_write_b128 v84, {v(reg,4)} offset:{off}\nds_write_b128 v84, {v(reg+4,4)} offset:{off+1024}")
def rd6(base, sl):
    for kk in range(6):
        E(w2read(base+8*kk, sl, kk, AB))
        if kk % 3 == 2: A("s_waitcnt lgkmcnt(0)")
NB = OPT["nb"]; NC = OPT["nc"]; NIT = len(items); NW = OPT['nraw']; NL = 12 - NW - NB - NC; assert NL >= 0 and NW <= 8
cnt = [N7]
def TH():
    cnt[0] += 1
    return OPT["thr"] if (OPT["thr"] and cnt[0] > OPT["tfrom"]) else None
it = lambda n: w2ops(items[n][0], items[n][1], items[n][2:], TH())
Z = []
for n in range(N7, 6): Z += it(n)
order2 = [12+2, 12+3, 12+4, 12+5, 12+0, 12+1]
for n in range(12):
    Z += [f"WAIT d{n}|"] + w2read(96+8*n, 2, n % 6, AB) + ["s_waitcnt lgkmcnt(0)"]
    Z += it(n+6 if n < 6 else order2[n-6])
assert NE <= min(NW, 6)
PE = OPT['pe']
rawop = lambda n: w2ops(items[18+n][0], items[18+n][1], 192+8*n, TH())
for n in range(NE, NW - max(PE, 0)): Z += rawop(n)
XREL = [f"VM x|buffer_load_dwordx4 v[12:15], v1, {X}, 0 offen"], [f"v_mov_b32 v80, {LF+40}", lambda: spin_lds(80, 81, 4)]
if PE < 0: Z += XREL[0] + XREL[1]
emit(Z)
stamp((4, 1), (1, 3), (1, 4))
def rdaddr(dst, isy_src, half, T):
    base = 0 if isy_src else SLOT
    t3 = 2*SLOT + (0 if isy_src else 8192)
    A(f"""s_and_b32 s70, s4, 2
s_lshl_b32 s70, s70, 12
s_add_u32 s70, s70, {base}
s_add_u32 s71, s70, 4096
s_cmp_ge_u32 s4, 2
s_cselect_b32 s71, {t3}, s71
v_mov_b32 v{T}, s70
v_mov_b32 v{T+1}, s71
v_and_b32 v{T+2}, 4, v0
v_cmp_ne_u32 vcc, 0, v{T+2}
v_and_b32 v{T+2}, 7, v0
v_lshrrev_b32 v{T+3}, 3, v0
v_cndmask_b32 v{T}, v{T}, v{T+1}, vcc
v_add_u32 v{T+3}, {8*half}, v{T+3}
v_lshlrev_b32 v{T+1}, 1, v{T+2}
v_xor_b32 v{T+3}, v{T+3}, v{T+1}
s_and_b32 s70, s4, 1
s_lshl_b32 s70, s70, 8
v_lshl_add_u32 v{T}, v{T+3}, 4, v{T}
v_and_b32 v{T+1}, 2, v0
v_lshl_add_u32 v{T}, v{T+1}, 8, v{T}
v_and_b32 v{T+1}, 1, v0
v_lshl_add_u32 v{T}, v{T+1}, 11, v{T}
v_add_u32 v{dst}, s70, v{T}""")
def wraddr(B_, isy):
    A(f"""v_lshrrev_b32 v{B_}, 3, v0
v_and_b32 v{B_}, 4, v{B_}
v_xor_b32 v{B_}, v{B_}, v0
v_lshlrev_b32 v{B_}, 4, v{B_}
v_xor_b32 v{B_+1}, 32, v{B_}
v_xor_b32 v{B_+2}, 0x80, v{B_}
v_xor_b32 v{B_+3}, 0xa0, v{B_}""")
    for j in range(4): A(f"v_add_u32 v{B_+j}, s76, v{B_+j}")
    t3 = 2*SLOT + (0 if isy else 8192)
    A(f"v_add_u32 v{B_+4}, {t3}, v{B_+2}\nv_add_u32 v{B_+5}, {t3}, v{B_+3}")
def wrpart(B_, isy):
    for q in range(4):
        for jq in range(4):
            if q < 3: A(f"ds_write_b128 v{B_ + 2*(q&1) + (jq>>1)}, {v(192+16*q+4*jq,4)} offset:{(0 if isy else SLOT) + q*4096 + jq*1024}")
            else: A(f"ds_write_b128 v{B_ + 4 + (jq>>1)}, {v(192+16*q+4*jq,4)} offset:{jq*1024}")
def rd4(dst, va):
    for src in range(4):
        for e in range(2): A(f"ds_read_b128 {v(dst+8*src+4*e,4)}, v{va} offset:{Q*src+1024*e}")
def sum4(d):
    for j in range(4): A(f"v_pk_add_f32 {v(d+2*j,2)}, {v(d+2*j,2)}, {v(d+8+2*j,2)}\nv_pk_add_f32 {v(d+16+2*j,2)}, {v(d+16+2*j,2)}, {v(d+24+2*j,2)}")
    for j in range(4): A(f"v_pk_add_f32 {v(d+2*j,2)}, {v(d+2*j,2)}, {v(d+16+2*j,2)}")
STG = OPT["stage"]
def sgo(va, vd): return f"s_lshl_b32 s86, s4, 2\ns_add_u32 s86, s86, {LF+48}\nv_mov_b32 v{va}, s86\nv_mov_b32 v{vd}, 1\nds_write_b32 v{va}, v{vd}"
assert STG
note("1", 4)
def hload(kd):
    va = 6 if kd < 21 else 7
    b = 16 + 8*(kd % 8)
    return [f"s_lshl2_add_u32 s86, s{77 + kd % 7}, {(kd//7)*65536}" if kd < 21 else "s_mov_b32 s86, 0",
            f"VM h{kd}a|buffer_load_dwordx4 {v(b,4)}, v{va}, {H}, s86 offen sc1",
            f"VM h{kd}|buffer_load_dwordx4 {v(b+4,4)}, v{va}, {H}, s86 offen offset:1024 sc1"]
w2late = lambda n, t=None: w2ops(items[n][0], items[n][1], items[n][2:], t)
PR = lambda c: 82 if c < 2 else 120
def ipoll(c):
    nl = 16 if c <= 1 else 24
    return [f"VM p{c}|v_mov_b32 v{PR(c)}, {TAG}\ns_mov_b32 s87, {c << 20}\ns_mov_b64 exec, {hex((1<<nl)-1)}\nbuffer_load_dword v{PR(c)}, v5, {WS}, s87 offen sc1\ns_mov_b64 exec, -1"]
res_loc = lambda kd: (2, kd-12) if kd < 16 else (0, kd-16)
YD = OPT["ydep"]; assert YD <= 7
PRE = cap(lambda: (wraddr(96, True), rdaddr(102, True, 0, 104), A("v_xor_b32 v103, 0x80, v102"), rdaddr(108, False, 0, 104),
    A(f"s_lshl_b32 s70, s4, 11\ns_add_u32 s70, s70, {GB}\nv_lshl_add_u32 v109, v0, 4, s70\nv_mov_b32 v110, {LF+36}\nv_mov_b32 v111, 1"),
    [A(f"v_lshlrev_b32 v{112+2*j}, 16, v{12+j}\nv_and_b32 v{113+2*j}, 0xffff0000, v{12+j}") for j in range(4)],
    A(f"s_mov_b32 s70, {hx(-1.4426950408889634)}\ns_mov_b32 s71, s70")))
Y = []
if PE < 0:
    Y += ipoll(0)
    for n in range(NB): Y += w2late(18+NW+n, OPT['thr2'] or None)
    if NW: Y += ['WAIT x|', lambda: [wr(192+8*n, *items[18+n][2:]) for n in range(NW//2)]]
    Y += ["WAIT p0|", f"v_cmp_ne_u32 vcc, {TAG}, v82\ns_cbranch_vccnz L_YR0\nL_YB0:", lambda: stamp((5, 1), (2, 3), (2, 4))]
    for kd in range(YD): Y += hload(kd)
    for n in range(NC): Y += w2late(18+NW+NB+n, OPT['thr2'] or None)
    if NW: Y += [lambda: [wr(192+8*n, *items[18+n][2:]) for n in range(NW//2, NW)], 's_waitcnt lgkmcnt(0)']
else:
    Y += ipoll(0)
    for n in range(NW-PE, NW): Y += rawop(n)
    Y += XREL[0] + ["WAIT p0|", f"v_cmp_ne_u32 vcc, {TAG}, v82\ns_cbranch_vccnz L_YR0\nL_YB0:", lambda: stamp((5, 1), (2, 3), (2, 4))]
    for kd in range(YD):
        hl = hload(kd)
        if OPT["thr2"]: hl = [hl[0], f"s_waitcnt vmcnt({OPT['thr2']})"] + hl[1:]
        Y += hl
    Y += XREL[1] + ["WAIT x|", lambda: [wr(192+8*n, *items[18+n][2:]) for n in range(NW//2)]]
    for n in range(NB+NC): Y += w2late(18+NW+n, OPT['thr2'] or None)
    Y += [lambda: [wr(192+8*n, *items[18+n][2:]) for n in range(NW//2, NW)], 's_waitcnt lgkmcnt(0)']
if OPT["gate"]: Y += [f"v_mov_b32 v80, {LF+32}", lambda: spin_lds(80, 81, OPT["gate"])]
Y.append(f"s_setprio {OPT['yprio']}")
for kd in range(22):
    wf = 96+8*kd if kd < 12 else 80+8*(kd & 1)
    hb = 16 + 8*(kd % 8)
    need = [f"h{kd}"]
    C1_ = OPT['c1'] if OPT['c1'] >= 0 else 7-YD
    chk = 1 if kd == C1_ else (2 if kd == OPT['c2'] else 0)
    if chk: need.append(f"p{chk}")
    if chk == 2 and NE < 6: need.append("o5")
    if 16 <= kd+1 < 22: need.append(f"d{kd+1}")
    Y.append("WAIT " + ",".join(need) + ("|L" if kd >= 12 else "|"))
    if chk:
        Y.append(f"v_cmp_ne_u32 vcc, {TAG}, v{PR(chk)}\ns_cbranch_vccnz L_YR{chk}\nL_YB{chk}:")
        if chk == 2: Y.append(sgo(120, 121))
    ms = [mfma(192+32*r+16*c, wf+4*c, hb+4*r, 0 if kd == 0 else None) for r in range(2) for c in range(2)]
    fill = []
    if STG and kd == OPT["p1"]: fill += ipoll(1)
    if STG and kd == OPT["p2"]: fill += ipoll(2)
    for k_ in range(YD, 22):
        if max(k_-YD, [0, C1_, OPT['c2'], OPT['c2']][k_//7]) == kd: fill += hload(k_)
    if kd < NL: fill += w2late(NIT-NL+kd)
    if 12 <= kd+1 < 22: fill += w2read(80+8*((kd+1) & 1), *res_loc(kd+1), AB)
    P0_ = OPT['pre0']
    if kd in (P0_, P0_+1, P0_+2): fill = fill + PRE[(kd-P0_)*37:(kd-P0_+1)*37]
    Y += interleave(ms, fill, 3 if len(fill) <= 12 else 6)
    if kd+1 == OPT["ydrop"]: Y.append(f"s_setprio {OPT['ypost']}")
    if kd == 0: Y.append("STAMP 3")
    if kd == 10: Y.append("STAMP 4")
assert OPT["p1"] < C1_ <= OPT["p2"] < OPT["c2"] <= 13 and C1_ <= 6
emit(Y)
stamp((6, 1), (3, 3), (5, 4))
def final(isy):
    if OPT["fin"] == 1:
        if isy:
            wrpart(96, True); A("v_mov_b32 v4, v102\ns_waitcnt lgkmcnt(0)")
        else:
            wrpart(80, False)
            A("s_setprio 0")
            rdaddr(10, True, 1, 88)
            A(f"""v_xor_b32 v5, 0x80, v4
v_mov_b32 v6, {LF+36}
v_mov_b32 v7, 1
s_mov_b32 s70, {hx(-1.4426950408889634)}
s_mov_b32 s71, s70
s_mov_b64 exec, 1
s_waitcnt lgkmcnt(0)
ds_add_u32 v6, v7
s_mov_b64 exec, -1""")
            spin_lds(6, 7, 4)
            rd4(16, 5); A("s_waitcnt lgkmcnt(4)"); rd4(48, 4)
            for d, w_ in ((16, 8), (48, 2)):
                A(f"s_waitcnt lgkmcnt({w_})")
                for j in range(8): A(f"v_add_f32 v{d+j}, v{d+j}, v{d+8+j}\nv_add_f32 v{d+16+j}, v{d+16+j}, v{d+24+j}")
                for j in range(8): A(f"v_add_f32 v{(d if d == 16 else 88)+j}, v{d+j}, v{d+16+j}")
                if d == 16: A("ds_write_b128 v9, v[16:19]\nds_write_b128 v9, v[20:23] offset:1024")
            A("v_mov_b32 v4, v10\ns_waitcnt lgkmcnt(0)")
        return
    if isy:
        wrpart(96, True)
        A("""v_mov_b32 v4, v108
s_mov_b64 exec, 1
s_waitcnt lgkmcnt(0)
ds_add_u32 v110, v111
s_mov_b64 exec, -1""")
        spin_lds(110, 6, 4)
        rd4(16, 103); A("s_waitcnt lgkmcnt(4)"); rd4(48, 102)
        for d, w_ in ((16, 8), (48, 2)):
            A(f"s_waitcnt lgkmcnt({w_})")
            if OPT["ypk"]:
                sum4(d)
                for j in range(4): A(f"v_pk_mul_f32 {v(d+8+2*j,2)}, {v(d+2*j,2)}, s[70:71]")
            else:
                for j in range(8): A(f"v_add_f32 v{d+j}, v{d+j}, v{d+8+j}\nv_add_f32 v{d+16+j}, v{d+16+j}, v{d+24+j}")
                for j in range(8): A(f"v_add_f32 v{d+j}, v{d+j}, v{d+16+j}")
                for j in range(8): A(f"v_mul_f32 v{d+8+j}, s70, v{d+j}")
            for j in range(8): A(f"v_exp_f32 v{d+8+j}, v{d+8+j}")
            for j in range(8): A(f"v_add_f32 v{d+8+j}, 1.0, v{d+8+j}")
            for j in range(8): A(f"v_rcp_f32 v{d+8+j}, v{d+8+j}")
            for j in range(8): A(f"v_mul_f32 v{(d if d == 16 else 88)+j}, v{d+j}, v{d+8+j}")
            if d == 16:
                A("ds_write_b128 v109, v[16:19]\nds_write_b128 v109, v[20:23] offset:1024")
    else:
        wrpart(80, False)
    A("s_waitcnt lgkmcnt(0)")
final(True)
A("s_branch L_FINAL")
if STG:
    for c in (0, 1, 2):
        A(f"L_YR{c}:"); note(str(10+c), 4); spin_flag(5, PR(c), 16 if c <= 1 else 24, c, 1); A(f"s_branch L_YB{c}")
A("L_COMPUTE:")
srd(WS, 32, 0x800000); srd(H, 32, 118*65536, WS_H); srd(OUT, 30, 2097152)
ACC = 112
for r in range(ACC, 256): A(f"v_mov_b32 v{r}, 0")
A(f"""v_lshlrev_b32 v16, 2, v0
v_add_u32 v16, {LF}, v16
v_mov_b32 v17, 0
s_mov_b64 exec, 0xffff
ds_write_b32 v16, v17
s_mov_b64 exec, -1
s_lshr_b32 s13, s4, 1
s_and_b32 s14, s4, 1
s_movk_i32 s11, 0x1ff
s_lshl_b32 s86, s13, 4
s_add_u32 s86, s86, s6
s_cmp_eq_u32 s86, 10
s_cselect_b32 s11, 0x1c0, s11
s_mul_i32 s86, s14, 0x1b6
s_cmp_eq_u32 s7, 14
s_cselect_b32 s86, s86, 0x1ff
s_and_b32 s11, s11, s86
s_cmp_eq_u32 s12, 1
s_cselect_b32 s11, 0, s11
s_mul_i32 s76, s4, {Q}
s_lshr_b32 s86, s9, 4
s_mul_i32 s87, s14, 3
s_add_u32 s86, s86, s87
s_lshl_b32 s87, s7, 1
s_add_u32 s87, s87, s14
s_lshl1_add_u32 s87, s87, 26
s_and_b32 s88, s11, 0xdb
s_cmp_ge_u32 s7, 15
s_cselect_b32 s86, s87, s86
s_cselect_b32 s11, s88, s11
s_lshl_b32 s86, s86, 6
s_lshr_b32 s87, s8, 5
s_add_u32 s86, s86, s87
s_mul_i32 s87, s13, 3
s_add_u32 s86, s86, s87
s_lshl_b32 s86, s86, 10
v_lshl_add_u32 v1, v0, 4, s86
s_mov_b32 s80, 0
s_mov_b32 s81, 65536
s_mov_b32 s82, 131072
v_and_b32 v16, 15, v0
v_lshrrev_b32 v17, 4, v0
v_bfe_u32 v18, v0, 1, 3
v_xor_b32 v18, v18, v17
s_mul_i32 s86, s13, {96*128}
v_lshl_add_u32 v16, v16, 7, s86
v_lshl_add_u32 v2, v18, 4, v16
v_xor_b32 v3, 64, v2""")
wfrag_addr(4, "s14", 16, "L_CA")
A(f"""s_mul_i32 s86, s6, 23
s_add_u32 s86, s86, s7
s_cmp_eq_u32 s12, 1
s_cselect_b32 s86, 255, s86
s_lshl_b32 s86, s86, 2
s_add_u32 s86, s86, s4
s_lshl_b32 s86, s86, 10
s_add_u32 s15, s86, {WS_FLAG}""")
stamp((2, 2))
A("s_waitcnt vmcnt(0)")
stamp((5, 2))
for j in range(8):
    A(f"v_lshlrev_b32 v{16+2*j}, 16, v{8+j}\nv_and_b32 v{17+2*j}, 0xffff0000, v{8+j}")
def red32(r, t):
    for sh_ in (8, 4, 2, 1):
        A(f"v_add_f32_dpp v{r}, v{r}, v{r} row_ror:{sh_} row_mask:0xf bank_mask:0xf")
    A(f"v_mov_b32 v{t}, v{r}\nv_permlane16_swap_b32 v{r}, v{t}\nv_add_f32 v{r}, v{r}, v{t}")
for j in range(4): A(f"v_pk_add_f32 {v(8+2*j,2)}, {v(16+2*j,2)}, {v(24+2*j,2)}")
A("v_pk_add_f32 v[8:9], v[8:9], v[12:13]\nv_pk_add_f32 v[10:11], v[10:11], v[14:15]\nv_pk_add_f32 v[8:9], v[8:9], v[10:11]\nv_add_f32 v8, v8, v9")
red32(8, 9)
A(f"v_mul_f32 v8, {hx(-1/512)}, v8")
for j in range(8): A(f"v_pk_add_f32 {v(16+2*j,2)}, {v(16+2*j,2)}, v[8:9] op_sel_hi:[1,0]")
A("v_pk_mul_f32 v[10:11], v[16:17], v[16:17]\nv_pk_mul_f32 v[12:13], v[18:19], v[18:19]")
for j in range(2, 8): A(f"v_pk_fma_f32 {v(10+2*(j&1),2)}, {v(16+2*j,2)}, {v(16+2*j,2)}, {v(10+2*(j&1),2)}")
A("v_pk_add_f32 v[10:11], v[10:11], v[12:13]\nv_add_f32 v10, v10, v11")
red32(10, 9)
A(f"""v_mul_f32 v10, {hx(1/512)}, v10
v_cvt_pk_bf16_f32 v10, v10, v10
v_and_b32 v10, 0xffff0000, v10
v_add_f32 v10, {hx(1e-5)}, v10
v_cvt_pk_bf16_f32 v10, v10, v10
v_and_b32 v10, 0xffff0000, v10
v_sqrt_f32 v10, v10
v_cvt_pk_bf16_f32 v32, v8, v8
v_cvt_pk_bf16_f32 v10, v10, v10
v_and_b32 v10, 0xffff0000, v10
v_and_b32 v32, 0xffff0000, v32
v_rcp_f32 v33, v10
v_mul_f32 v34, v10, v10
v_lshlrev_b32 v7, 4, v7
v_add_u32 v7, {WS_RS}, v7
s_waitcnt lgkmcnt(0)
s_add_u32 {TAG}, {TAG}, 0x9E3779B9
v_mov_b32 v35, {TAG}
v_mov_b32 v36, {TAG}
v_mov_b32 v37, {TAG}
v_mov_b32 v38, {TAG}
v_mov_b32 v39, {TAG}
v_lshlrev_b32 v6, 4, v0
s_mov_b32 s78, 0
s_mov_b32 s79, {SLOT}
s_mov_b32 s83, 0""")
stamp((1, 1), (3, 2))
A(f"""s_barrier
s_mov_b32 exec_lo, 1
s_mov_b32 exec_hi, 1
buffer_store_dwordx4 v[32:35], v7, {WS}, 0 offen sc1
s_mov_b64 exec, -1""")
if OPT["prew"]:
    for kind in ((0, 1, 2) if OPT["stage"] else (0, 2)):
        sk = L("PW")
        if kind == 0 and not OPT["stage"]: A(f"s_cmp_lt_u32 s7, 15\ns_cbranch_scc1 {sk}")
        A(f"s_add_u32 s86, s15, {kind << 20}\nbuffer_store_dwordx4 v[28:31], v6, {WS}, s86 offen sc1")
        A.label(sk)
stamp((2, 1), (4, 2))
A("s_cmp_ge_u32 s7, 15\ns_cbranch_scc1 L_QKV")
if OPT["dead"]: A("s_or_b32 s86, s11, s12\ns_cbranch_scc0 L_DEAD")

XB = lambda buf, a: (40 if buf == 0 else 8) + 4*a
WF = lambda buf, j: 64 + 24*buf + 4*j
acc = lambda a, j: ACC + 4*(6*a+j)
CB = 88
def reads(role, s_):
    w_ = []
    for j in range(6):
        for sec in range(2):
            par, off = woff(role, s_, j, sec)
            w_.append(f"ds_read_b64_tr_b16 {v(WF(s_,j)+2*sec,2)}, v{4+par} offset:{off}")
    o = []
    for a in range(6): o += [f"ds_read_b128 {v(XB(s_,a),4)}, v{2+s_} offset:{2048*a}"] + w_[2*a:2*a+2]
    return o
def mm(role, wb, a, j, xb=1):
    return mf16(acc(a,j), WF(wb,j), XB(xb,a)) if (role == 'G' or j < 2) else mf16(acc(a,j), XB(xb,a), WF(wb,j))
def grp(role, buf, a): return [mm(role, buf, a, j, buf) for j in range(6)]
def spread(ms, fill, num, den):
    o = []; f = list(fill); nr = 0
    for i, m in enumerate(ms):
        o.append(m)
        k = ((i+1)*num)//den - (i*num)//den
        for _ in range(k):
            if f:
                x = f.pop(0)
                if x.startswith("ds_read"):
                    nr += 1
                    if nr == 13: o.append("s_waitcnt lgkmcnt(6)")
                o.append(x)
    assert not f
    return o
def treads(role, st, js, wb):
    buf = st & 1
    xs_ = [f"ds_read_b128 {v(XB(buf,a),4)}, v{2+buf} offset:{2048*a + (SLOT if st >= 2 else 0)}" for a in range(6)]
    ws_ = []
    for i, j in enumerate(js):
        for sec in range(2):
            par, off = woff(role, buf, j, sec)
            ws_.append(f"ds_read_b64_tr_b16 {v(wb(buf)+4*i+2*sec,2)}, v{(32 if st >= 2 else 4)+par} offset:{off}")
    return ws_[:4] + xs_ + ws_[4:]
def ldsadd(off, va, vd): return f"v_mov_b32 v{va}, {LF+off}\nv_mov_b32 v{vd}, 1\ns_mov_b64 exec, 1\nds_add_u32 v{va}, v{vd}\ns_mov_b64 exec, -1"
def tphase(role, js, wb, first, last, nxt, extra, rows=range(6), start3=0):
    for st in range(4):
        buf = st & 1
        A("s_waitcnt lgkmcnt(0)")
        if first and st == 1: A("s_barrier")
        ms = []
        for a in (rows if st == 3 else range(6)):
            for i, j in enumerate(js):
                w_, x_ = wb(buf)+4*i, XB(buf, a)
                ms.append(mf16(acc(a,j), w_, x_) if (role == 'G' or j < 2) else mf16(acc(a,j), x_, w_))
        fill = (treads(role, st+1, js, wb) if st < 3 else nxt) + extra.get(st, [])
        if last and st == 3: fill = [ldsadd(40, 32, 33)] + fill
        E(interleave(ms, fill, max(1, -(-len(fill)//(len(ms)-1)))))
def mainloop(role, pre):
    lp, ex = f"L_ML{role}", f"L_MX{role}"
    allm = lambda buf: [m + ('\ns_nop 7' if OPT['slow'] and n_ % OPT['slow'] == 0 else '') for n_, m in enumerate([m for a in range(6) for m in grp(role, buf, a)])]
    def coarse():
        if OPT["shi"]:
            sk = L("SL"); A(f"s_sub_u32 s87, s83, {OPT['slo']}\ns_cmp_lt_u32 s87, {OPT['shi']-OPT['slo']}\ns_cbranch_scc0 {sk}")
            for _ in range(OPT["sn"]): A("s_nop 15")
            A.label(sk)
    r0 = reads(role, 0); E(r0[:12]); A("s_waitcnt lgkmcnt(6)"); E(r0[12:])
    A.label(lp)
    coarse()
    A("s_waitcnt lgkmcnt(0)")
    sal = f"""s_add_u32 s78, s78, 1
s_cmp_eq_u32 s78, 3
s_cselect_b32 s86, {-2*SLOT & 0xffffffff}, s79
s_cselect_b32 s78, 0, s78
s_add_u32 s83, s83, 1
s_cmp_eq_u32 s83, 6""".split("\n") + [f"v_add_u32 v{r}, s86, v{r}" for r in (2, 4, 5, 3)]
    E(spread(allm(0), reads(role, 1) + sal, OPT["rgap"]+2, OPT["rgap"]+3))
    A(f"s_waitcnt lgkmcnt(0)\ns_barrier\ns_cbranch_scc1 {ex}")
    E(spread(allm(1), reads(role, 0), OPT["rgap"], 4))
    A(f"s_branch {lp}")
    A.label(ex)
    com = ["s_waitcnt vmcnt(0)", f"v_add_u32 v32, {SLOT}, v4", f"v_add_u32 v33, {SLOT}, v5", "v_and_b32 v34, 15, v0",
           f"s_mul_i32 s86, s13, {96*16}", f"s_add_u32 s86, s86, {RS}", "v_lshl_add_u32 v34, v34, 4, s86",
           "v_lshrrev_b32 v7, 4, v0", "s_mul_i32 s79, s14, 384", f"s_add_u32 s79, s79, {CF}", "v_lshl_add_u32 v35, v7, 4, s79",
           f"s_mul_i32 s86, s13, {96*4}", f"s_add_u32 s86, s86, {RR}", "v_lshl_add_u32 v7, v7, 4, s86"]
    E(interleave(allm(1), pre + com, 2))

def flagstore(kind):
    m = (1 << (8*OPT["nrep"])) - 1
    A(f"s_add_u32 s86, s15, {kind << 20}\ns_mov_b64 exec, {hex(m) if m < (1<<32) else -1}\nbuffer_store_dwordx4 v[36:39], v6, {WS}, s86 offen sc1\ns_mov_b64 exec, -1")
def gsig():
    if OPT["gate"]: A(ldsadd(32, 2, 3))
rsrd = lambda a: f"ds_read_b128 {v(CB+4*a,4)}, v34 offset:{256*a}"
C1 = -2.0*0.7978845608028654*1.4426950408889634
cst = []
for a in range(6):
    b = CB+4*a
    cst += [f"v_mul_f32 v{b+3}, {hx(C1)}, v{b+1}", f"v_mul_f32 v{b+1}, v{b+1}, v{b+1}",
            f"v_mul_f32 v{b+1}, {hx(0.044715)}, v{b+1}", f"v_mul_f32 v{b+1}, v{b+1}, v{b+3}"]
wb2 = lambda buf: 64 + 8*buf
mainloop('G', treads('G', 0, (0, 3), wb2))
def tregs(u, a):
    return (8 + 8*(a & 1), 24 + 4*(a & 1), [acc(2*a + j//2, u) + 2*(j & 1) for j in range(4)],
            [acc(2*a + j//2, u+3) + 2*(j & 1) for j in range(4)], [CB+4*(2*a + j//2) for j in range(4)])
def stA(u, a):
    T, P, gp, up, cb = tregs(u, a)
    return ([f"v_pk_fma_f32 {v(gp[j],2)}, {v(80+2*(j&1),2)}, {v(cb[j],2)}, {v(gp[j],2)} op_sel_hi:[1,0,1]" for j in range(4)]
          + [f"v_pk_mul_f32 {v(T+2*j,2)}, {v(gp[j],2)}, {v(gp[j],2)}" for j in range(4)]
          + [f"v_pk_fma_f32 {v(T+2*j,2)}, {v(T+2*j,2)}, {v(cb[j],2)}, {v(cb[j]+2,2)} op_sel:[0,1,1] op_sel_hi:[1,1,1]" for j in range(4)]
          + [f"v_pk_mul_f32 {v(T+2*j,2)}, {v(T+2*j,2)}, {v(gp[j],2)}" for j in range(4)])
for u in range(3):
    crd = [f"ds_read_b128 v[80:83], v35 offset:{64*u}", f"ds_read_b128 v[84:87], v35 offset:{64*(u+3)}"]
    ex_ = {1: [rsrd(a) for a in range(4)], 2: [rsrd(4), rsrd(5)] + crd, 3: cst} if u == 0 else {0: crd}
    tphase('G', (u, u+3), wb2, u == 0, u == 2, treads('G', 0, (u+1, u+4), wb2) if u < 2 else [], ex_)
    if u: A("s_waitcnt vmcnt(0)"); flagstore(u-1)
    else: A("s_nop 3")
    if u == 0: stamp((1, 3))
    if u == 2: stamp((3, 1))
    E(stA(u, 0))
    for a in range(3):
        T, P, gp, up, cb = tregs(u, a)
        E(interleave([f"v_exp_f32 v{T+j}, v{T+j}" for j in range(8)],
            [f"v_pk_fma_f32 {v(up[j],2)}, {v(84+2*(j&1),2)}, {v(cb[j],2)}, {v(up[j],2)} op_sel_hi:[1,0,1]" for j in range(4)]
          + [f"v_pk_mul_f32 {v(gp[j],2)}, {v(gp[j],2)}, {v(up[j],2)}" for j in range(4)], 1))
        for j in range(4): A(f"v_pk_fma_f32 {v(T+2*j,2)}, {v(T+2*j,2)}, {v(cb[j]+2,2)}, {v(cb[j]+2,2)} op_sel_hi:[1,0,0]")
        nxt = stA(u, a+1) if a < 2 else []
        E(interleave([f"v_rcp_f32 v{T+j}, v{T+j}" for j in range(8)], nxt[:12], 2))
        for j in range(4): A(f"v_pk_mul_f32 {v(T+2*j,2)}, {v(T+2*j,2)}, {v(gp[j],2)}")
        for j in (0, 2, 1, 3): A(f"v_cvt_pk_bf16_f32 v{P+j}, v{T+2*j}, v{T+2*j+1}")
        E(nxt[12:14])
        sk = L("GS")
        A(f"s_bitcmp1_b32 s11, {3*a+u}\nv_permlane16_swap_b32 v{P}, v{P+2}\nv_permlane16_swap_b32 v{P+1}, v{P+3}\ns_cbranch_scc0 {sk}")
        A(f"buffer_store_dwordx4 {v(P,4)}, v1, {H}, s{80+u} offen offset:{1024*a} sc1")
        A.label(sk)
        E(nxt[14:])
    if u == 0: stamp((2, 3))
stamp((4, 1), (4, 3))
A("L_PUB:")
gsig()
A("L_PUB2:\ns_waitcnt vmcnt(0)"); flagstore(2)
A("s_branch L_SPART")
if OPT["dead"]:
    A("L_DEAD:\ns_barrier\ns_add_u32 s83, s83, 1\ns_cmp_lt_u32 s83, 7\ns_cbranch_scc1 L_DEAD")
    A(ldsadd(40, 32, 33)); flagstore(0); flagstore(1)
    A("s_branch L_PUB")

A("L_QKV:")
RV, MV, ONE, G = 88, 8, 76, 8
cst = f"""s_mov_b32 s70, {hx(1.4426950408889634)}
s_mov_b32 s71, {hx(1.4426950408889634)}
s_mov_b32 s72, {hx(1e-6)}
s_mov_b32 s73, {hx(1e-6)}
s_mov_b32 s74, 0xffff0000
s_mov_b32 s75, 0xffff0000
s_sub_u32 s87, s7, 15
s_lshl_b32 s87, s87, 1
s_add_u32 s87, s87, s14
s_mul_i32 s77, s87, {24*3072}
s_add_u32 s77, s77, {WS_KV}
s_lshl_b32 s78, s6, 1
s_add_u32 s78, s78, s13
s_mul_i32 s78, s78, 3072
s_add_u32 s78, s78, s77""".split("\n")
wb4 = lambda buf: 64 + 16*buf
mainloop('Q', treads('Q', 0, (2, 3, 4, 5), wb4) + cst)
rvr = lambda a: f"ds_read_b128 {v(RV+4*a,4)}, v7 offset:{64*a}"
mvr = lambda a: f"ds_read_b128 {v(MV+4*a,4)}, v7 offset:{MR-RR+64*a}"
x3 = ["v_and_b32 v75, 15, v0", "v_lshl_add_u32 v75, v75, 2, s79"] + [f"ds_read_b32 v{72+j}, v75 offset:{128+64*j}" for j in range(4)] \
   + [f"v_mov_b32 v{ONE+j}, 0x3f803f80" for j in range(4)] + [rvr(5), rvr(4)]
q0 = treads('Q', 0, (0, 1), wb2)
x3 += q0[:4] + [mvr(5), mvr(4), "s_waitcnt lgkmcnt(4)"] + q0[4:]
assert len(x3) > 23
tphase('Q', (2, 3, 4, 5), wb4, True, False, x3, {}, rows=(5, 4, 3, 2, 1, 0))
A("s_waitcnt lgkmcnt(6)")
for a in (3, 2, 1, 0): A(rvr(a)); A(mvr(a))
stamp((1, 3))
def phi2(pairs, T, dst):
    for j in range(8): A(f"v_pk_mul_f32 {v(T[j],2)}, {v(pairs[j],2)}, s[70:71]")
    for j in range(16):
        r = pairs[j//2] + (j & 1); t_ = T[j//2] + (j & 1)
        A(f"v_exp_f32 v{t_}, v{t_} clamp\nv_max_f32 v{r}, s72, v{r}")
    for j in range(8): A(f"v_pk_add_f32 {v(T[j],2)}, {v(T[j],2)}, {v(pairs[j],2)}")
    for j in range(8): A(f"v_cvt_pk_bf16_f32 v{dst[j]}, v{T[j]}, v{T[j]+1}")
prs = lambda a, j0: [acc(2*a + (j % 4)//2, j0 + j//4) + 2*(j & 1) for j in range(8)]
KVa, KVb, Za, Zb = acc(5,2), acc(5,3), acc(5,4), acc(5,5)
for a in (2, 1, 0):
    if a == 1: A("s_bitcmp1_b32 s11, 0\ns_cbranch_scc0 L_KVS\ns_waitcnt lgkmcnt(0)")
    off = lambda j: 4*(2*a + (j % 4)//2) + 2*(j & 1)
    pv = prs(a, 4); pk = prs(a, 2)
    PV = acc(2*a, 4); PK = acc(2*a, 2)
    TL = [acc(2*a+1, 4) + 2*j for j in range(4)] + [80 + 2*j for j in range(4)]
    for j in range(8): A(f"v_pk_mul_f32 {v(pv[j],2)}, {v(pv[j],2)}, {v(RV+off(j),2)}")
    for j in range(8): A(f"v_pk_fma_f32 {v(pk[j],2)}, {v(pk[j],2)}, {v(RV+off(j),2)}, s[72:73]")
    for j in range(8): A(f"v_pk_fma_f32 {v(pv[j],2)}, {v(MV+off(j),2)}, v[74:75], {v(pv[j],2)} op_sel:[0,{j//4},0] op_sel_hi:[1,{j//4},1]")
    for j in range(8): A(f"v_pk_fma_f32 {v(pk[j],2)}, {v(MV+off(j),2)}, v[72:73], {v(pk[j],2)} op_sel:[0,{j//4},0] op_sel_hi:[1,{j//4},1]")
    for j in range(8): A(f"v_cvt_pk_bf16_f32 v{PV+j}, v{pv[j]}, v{pv[j]+1}")
    phi2(pk, TL, [PK+j for j in range(8)])
    c0 = 0 if a == 2 else None
    A(mf16(KVa, PK, PV, c0)); A(mf16(KVb, PK+4, PV+4, c0)); A(mf16(Za, ONE, PK, c0)); A(mf16(Zb, ONE, PK+4, c0))
    if a: A("s_nop 3")
A("L_KVS:\ns_waitcnt lgkmcnt(0)")
G = 96
for j in (3, 7, 11): A(f"v_mov_b32 v{G+j}, {TAG}")
A("s_nop 4")
for j in range(4): A(f"v_permlane16_swap_b32 v{KVa+j}, v{KVb+j}")
for j in range(8): A(f"v_mov_b32 v{G+4*(j//3)+j%3}, v{KVa+j}")
A(f"v_cndmask_b32 v{G+10}, v{Za}, v{Zb}, s[74:75]")
for g_ in range(3): A(f"buffer_store_dwordx4 {v(G+4*g_,4)}, v6, {WS}, s78 offen offset:{1024*g_} sc1")
stamp((2, 3))
CTr = lambda p: acc(p, 2)
rsetup = cap(lambda: (A(f"""s_lshr_b32 s79, s6, 1
s_lshl_b32 s86, s79, 8
s_add_u32 s86, s86, s77
v_lshrrev_b32 v7, 4, v0
v_mul_u32_u24 v7, 3072, v7
v_and_b32 v{acc(0,5)}, 15, v0
v_lshl_add_u32 v7, v{acc(0,5)}, 4, v7
v_add_u32 v7, s86, v7"""), [A(f"v_mov_b32 v{CTr(5)+j}, " + (TAG if j % 4 == 3 else "0")) for j in range(12)],
    A("s_and_b32 s78, s6, 9\ns_add_u32 s78, s78, 2")))
tphase('Q', (0, 1), wb2, False, True, [], {0: rsetup[:11], 1: rsetup[11:] + [rsrd(a) for a in (5, 4, 3, 2)],
       2: [rsrd(1), rsrd(0), "ds_read_b128 v[80:83], v35", "ds_read_b128 v[84:87], v35 offset:64"]}, rows=(5, 4, 3, 2, 1, 0))
A("s_nop 3")
stamp((3, 1))
def rloads():
    for p in range(6):
        A(f"s_mov_b32 s86, {12288*p}")
        if p == 5: A("s_mov_b32 exec_hi, 0")
        for g_ in range(3): A(f"buffer_load_dwordx4 {v(CTr(p)+4*g_,4)}, v7, {WS}, s86 offen offset:{1024*g_} sc1")
    A("s_mov_b32 exec_hi, -1")
def rissue(t):
    if OPT["rq"] == t:
        A("s_cmp_eq_u32 s78, s4\ns_cbranch_scc0 L_NORI"); rloads(); stamp((4, 3)); A("L_NORI:")
rissue(0)
for a in (2, 1, 0):
    if a == 1: A("s_bitcmp1_b32 s11, 0\ns_cbranch_scc0 L_PUB")
    D_ = 40 + 8*a
    pq_ = prs(a, 0); cbq = lambda j: v(CB+4*(2*a + (j % 4)//2), 2)
    for j in range(8): A(f"v_pk_fma_f32 {v(pq_[j],2)}, {v(80+4*(j//4)+2*(j&1),2)}, {cbq(j)}, {v(pq_[j],2)} op_sel_hi:[1,0,1]")
    for j in range(8): A(f"v_pk_fma_f32 {v(pq_[j],2)}, {v(pq_[j],2)}, {cbq(j)}, s[72:73] op_sel:[0,1,0] op_sel_hi:[1,1,1]")
    phi2(pq_, [8+2*j for j in range(8)], [D_+j for j in range(8)])
    for hd in range(2):
        A(f"v_permlane16_swap_b32 v{D_+4*hd}, v{D_+4*hd+2}\nv_permlane16_swap_b32 v{D_+4*hd+1}, v{D_+4*hd+3}")
    A(f"buffer_store_dwordx4 {v(D_,4)}, v1, {H}, 0 offen offset:{1024*a} sc1")
    A(f"buffer_store_dwordx4 {v(D_+4,4)}, v1, {H}, s81 offen offset:{1024*a} sc1")
    rissue(3-a)
stamp((4, 1))
A("s_cmp_eq_u32 s78, s4\ns_cbranch_scc0 L_PUB")
gsig()
f_addr(9)
A(f"s_mov_b32 s88, 0\ns_waitcnt vmcnt({2*(3-OPT['rq'])})\nL_KVC:")
tagcheck(8, 64, [CTr(n//3)+4*(n%3)+3 for n in range(18)])
A(f"""v_cmp_ne_u32 vcc, 0, v8
s_add_u32 s88, s88, 1
s_cmp_gt_u32 s88, {OPT['spin']}
s_cbranch_scc1 L_KVD
s_cbranch_vccz L_KVD""")
rloads()
A("s_waitcnt vmcnt(0)\ns_branch L_KVC\nL_KVD:")
note("s88", 3)
rr = lambda p, j: CTr(p) + 4*(j//3) + j % 3
RA, RB = 12, 64
for j in range(9): A(f"v_add_f32 v{RA+j}, v{rr(0,j)}, v{rr(1,j)}")
for p in range(2, 6):
    for j in range(9): A(f"v_add_f32 v{RA+j}, v{RA+j}, v{rr(p,j)}")
for sw in (16, 32):
    for j in range(9): A(f"v_mov_b32 v{RB+j}, v{RA+j}")
    for j in range(9): A(f"v_permlane{sw}_swap_b32 v{RA+j}, v{RB+j}")
    for j in range(9): A(f"v_add_f32 v{RA+j}, v{RA+j}, v{RB+j}")
A(f"""s_lshr_b32 s86, s79, 1
s_lshl_b32 s86, s86, 3
s_add_u32 s87, s86, 2
s_add_u32 s88, s86, 4
s_add_u32 s89, s86, 6
v_mov_b32_dpp v{RA+9}, v{RA+8} row_shl:1 row_mask:0xf bank_mask:0xf""")
for j in range(4): A(f"v_cvt_pk_bf16_f32 v{RB+j}, v{RA+2*j}, v{RA+1+2*j}")
A(f"""v_cvt_pk_bf16_f32 v{RA+9}, v{RA+8}, v{RA+9}
s_bitcmp1_b32 s79, 0
s_cselect_b64 s[80:81], -1, 0
s_xor_b64 s[80:81], s[80:81], s[74:75]""")
for j in range(4): A(f"v_readlane_b32 s{70+j}, v{RA+9}, s{86+j}")
for j in range(4): A(f"v_mov_b32 v{RB+4+j}, s{70+j}")
for j in range(4): A(f"v_cndmask_b32 v{RB+8+j}, v{RB+j}, v{RB+4+j}, s[80:81]")
A(f"""s_mov_b32 exec_hi, 0
buffer_store_dwordx4 {v(RB+8,4)}, v9, {WS}, 0 offen sc1
s_mov_b32 exec_hi, -1
s_waitcnt vmcnt(1)""")
stamp((5, 3))
flagstore(2)

A("L_SPART:")
if OPT["sprio"] != OPT["prio"]: A(f"s_setprio {OPT['sprio']}")
stamp((5, 1), (3, 3))
xres_addr(1, 8); xres_load()
w2addr(4, 8, False)
A(f"""s_lshl_b32 s86, s4, 3
s_add_u32 s86, s86, 86
s_lshl_b32 s86, s86, 16
s_lshl_b32 s87, s84, 11
s_add_u32 s86, s86, s87
v_lshl_add_u32 v2, v0, 4, s86
s_mul_i32 s88, s84, 43
s_lshr_b32 s88, s88, 7
s_mul_i32 s88, s88, 23
s_lshl_b32 s87, s4, 1
s_add_u32 s88, s88, s87
s_add_u32 s88, s88, 15
s_lshl_b32 s88, s88, 12
s_add_u32 s88, s88, {WS_FLAG}
v_and_b32 v3, 7, v0
v_lshl_add_u32 v3, v3, 10, s88
s_lshl_b32 s74, s4, 13
s_add_u32 s74, s74, {WS_F}
v_lshl_add_u32 v8, v0, 4, s74
s_lshl_b32 s86, s4, 2
s_add_u32 s86, s86, {LF}
v_mov_b32 v10, s86
s_mov_b32 s72, {hx(1e-6)}
s_movk_i32 s73, 4096
s_mov_b32 s89, 0""")
if OPT["warm"]:
    assert OPT["sd"] == 8
    A("s_mov_b32 s75, 1\ns_mov_b64 exec, 0\ns_branch L_PIPE\nL_WBACK:\ns_mov_b32 s75, 0\ns_mov_b64 exec, -1")
stamp((1, 4))
if OPT['sdelay']: A(f"s_sleep {OPT['sdelay']}")
if OPT["comb"]:
    A("v_add_u32 v3, 48, v10"); spin_lds(3, 9)
else: spin_flag(3, 9, 8, 2)
note("s88", 4)
stamp((6, 1), (2, 4))
SD = OPT["sd"]
rho8()
A("s_lshl_b32 s78, s12, 2\ns_lshr_b32 s79, s12, 4")
def pqload(k):
    return [f"s_xor_b32 s86, s78, {k*65536}",
            f"buffer_load_dwordx4 {v(16+8*k,4)}, v2, {H}, s86 offen sc1",
            f"buffer_load_dwordx4 {v(20+8*k,4)}, v2, {H}, s86 offen offset:1024 sc1"]
def floads():
    for k in range(8):
        if k % 2 == 0: A(f"s_xor_b32 s86, s79, {k*1024}")
        A(f"buffer_load_dwordx4 {v(80+4*k,4)}, v8, {WS}, s86 offen offset:{1024*(k%2)} sc1")
if OPT["ffirst"]: floads()
for k in range(SD):
    if OPT["sdep"]: A(f"s_waitcnt vmcnt({OPT['sdep']-2})")
    E(pqload(k))
if OPT["ffirst"]: A(f"s_waitcnt vmcnt({2*SD})\ns_branch L_FC")
if OPT["hints"]:
    A(f"s_lshl_b32 s86, s4, 14\ns_add_u32 s86, s86, {WS_FF}\nv_lshl_add_u32 v9, v0, 10, s86")
    spin_flag(9, 11, 16)
else: A(f"s_waitcnt vmcnt({OPT['fafter']})")
A("s_branch L_FL\nL_FQ:\ns_sleep 8\nL_FL:")
floads()
A("s_waitcnt vmcnt(0)\nL_FC:\ns_add_u32 s89, s89, 1")
E(vmax(112, [80+4*k for k in range(8)]))
A(f"""v_cmp_eq_u32 vcc, -1, v112
s_cmp_gt_u32 s89, {OPT['spin']}
s_cbranch_scc1 L_FPD
s_cbranch_vccnz L_FQ
L_FPD:""")
note("s89", 4); note("s89", 1)
stamp((6, 3), (3, 4))
woloc = lambda k: (1, k) if k < 6 else (2, k-2)
def Om(k): return [mfma(128+32*(k&1)+16*r, 80+4*k, 16+8*k+4*r, 0) for r in range(2)]
def Vv(k):
    o = []
    D = [128+32*(k&1)+16*r for r in range(2)]
    nd = [((d, d+8) if k % 2 == 0 else (d+8, d)) for d in D]
    for num, den in nd: o.append(f"v_add_f32 v{den}, s72, v{den}")
    for num, den in nd: o.append(f"v_rcp_f32 v{den}, v{den}")
    for r, (num, den) in enumerate(nd):
        if OPT["spk"]:
            for j in range(4): o.append(f"v_pk_mul_f32 {v(num+2*j,2)}, {v(num+2*j,2)}, {v(den,2)} op_sel_hi:[1,0]")
        else:
            for j in range(8): o.append(f"v_mul_f32 v{num+j}, v{num+j}, v{den}")
        for j in range(4): o.append(f"v_cvt_pk_bf16_f32 v{16+8*k+4*r+j}, v{num+2*j}, v{num+2*j+1}")
    return o
def Sm(k): return [mfmaH(192+32*r+16*c, 112+8*(k&1)+4*c, 16+8*k+4*r, 0 if k <= OPT['h16'] else None, k & 1) for r in range(2) for c in range(2)]
issued = [SD]
def need(k):
    o = [f"s_waitcnt vmcnt({2*(issued[0]-1-k)})"]
    more = []
    if issued[0] < 8: more = pqload(issued[0]); issued[0] += 1
    return o, more
A('L_PIPE:')
E(w2read(112, *woloc(0), 4, False))
for k in (0, 1):
    w_, m_ = need(k); E(w_ + Om(k) + m_)
E(Vv(0))
for k in range(8):
    A("s_waitcnt lgkmcnt(0)")
    fill = (w2read(112+8*((k+1)&1), *woloc(k+1), 4, False) + Vv(k+1)) if k+1 < 8 else []
    if k == 7:
        fill = cap(lambda: (wraddr(80, False), rdaddr(4, False, 1, 88), A(f"s_lshl_b32 s86, s4, 11\ns_add_u32 s86, s86, {GB}\nv_lshl_add_u32 v9, v0, 4, s86"),
            [A(f"v_lshlrev_b32 v{112+2*j}, 16, v{12+j}\nv_and_b32 v{113+2*j}, 0xffff0000, v{12+j}") for j in range(4)]))
    NF = 16 if OPT['spk'] else 20
    if k == 7: NF = 28
    E(interleave(Sm(k), fill[:NF], NF//4))
    if k+2 < 8:
        w_, m_ = need(k+2); E(w_); E(interleave(Om(k+2), fill[NF:] + m_, 6))
    else: E(fill[NF:])
    if k == 3: stamp((4, 4))
if OPT["warm"] == 1: A("s_cmp_eq_u32 s75, 1\ns_cbranch_scc1 L_WBACK")
stamp((7, 1), (5, 4))
final(False)
stamp((6, 4))
if OPT["fin"] == 0: A("s_barrier\nds_read_b128 v[88:91], v9\nds_read_b128 v[92:95], v9 offset:1024\ns_branch L_FIN2")
else: A("s_barrier\ns_branch L_FIN2")

A("L_FINAL:")
stamp((6, 4))
A("s_barrier")
if OPT["fin"] == 1: A("ds_read_b128 v[88:91], v109\nds_read_b128 v[92:95], v109 offset:1024")
A("L_FIN2:")
stamp((7, 3), (7, 4))
rd4(48, 4)
A("s_waitcnt lgkmcnt(0)")
sum4(48)
if OPT["fin"] == 1:
    for j in range(4): A(f"v_pk_mul_f32 {v(56+2*j,2)}, {v(48+2*j,2)}, s[70:71]")
    E(interleave([f"v_exp_f32 v{56+j}, v{56+j}" for j in range(8)], [f"v_pk_mul_f32 {v(88+2*j,2)}, {v(88+2*j,2)}, {v(48+2*j,2)}" for j in range(4)], 1))
    for j in range(4): A(f"v_pk_add_f32 {v(56+2*j,2)}, {v(56+2*j,2)}, 1.0 op_sel_hi:[1,0]")
    for j in range(8): A(f"v_rcp_f32 v{48+j}, v{56+j}")
for j in range(4): A(f"v_pk_fma_f32 {v(48+2*j,2)}, {v(48+2*j,2)}, {v(88+2*j,2)}, {v(112+2*j,2)}")
for j in range(4): A(f"v_cvt_pk_bf16_f32 v{24+j}, v{48+2*j}, v{49+2*j}")
if OPT["warm"] == 2: A("s_cbranch_execz L_WBACK")
A(f"""buffer_store_dwordx4 v[24:27], v1, {OUT}, 0 offen {['', 'sc1', 'nt', 'sc0 sc1'][OPT['osc']]}
s_add_u32 s86, s2, s3
s_cmp_eq_u32 s86, 0
s_cbranch_scc0 L_NOBUMP
v_mov_b32 v2, 0
v_mov_b32 v3, {TAG}
buffer_store_dword v3, v2, {WS}, 0 offen sc1
L_NOBUMP:""")
if OPT["stamps"]:
    A("s_waitcnt vmcnt(0)")
    stamp((8, 0))
    A(f"""s_memrealtime s[68:69]
s_waitcnt lgkmcnt(0)
s_mov_b32 s101, s68""")
    if OPT["diag"]:
        A(f"""s_cmp_lg_u32 s3, {OPT['dwave']}
s_cbranch_scc1 L_END
s_sub_u32 s86, s{92+OPT['diag']}, s34
s_lshl_b32 s86, s86, 2
s_min_u32 s86, s86, 20000
L_DSPIN:
s_memrealtime s[68:69]
s_waitcnt lgkmcnt(0)
s_sub_u32 s87, s68, s101
s_sleep 2
s_cmp_lt_u32 s87, s86
s_cbranch_scc1 L_DSPIN
s_endpgm""")
    A(f"""s_lshl_b32 s86, s2, 3
s_add_u32 s86, s86, s3
s_lshl_b32 s86, s86, 6
s_add_u32 s86, s86, {WS_DBG}
v_mov_b32 v2, s86""")
    for i in range(10): A(f"v_mov_b32 v3, s{92+i}\nbuffer_store_dword v3, v2, {WS}, 0 offen offset:{4*i}")
    A(f"v_mov_b32 v3, s34\nbuffer_store_dword v3, v2, {WS}, 0 offen offset:40")
    A(f"v_mov_b32 v3, s35\nbuffer_store_dword v3, v2, {WS}, 0 offen offset:44")
A("L_END:\ns_endpgm")

lines, errs = pad(A.lines)
for e in errs: print("HAZARD:", e, file=sys.stderr)
hdr = open("cdna_kernels/%s.s.ref" % NAME).read().split("; Override launch")[0]
out = hdr + f"""; Fused single-launch kernel, emitted by my own generator script (gen/gen.py); 256 WGs x 8 waves, 1 WG per CU.
;  Phase 1: 192x192 tiles of x @ [w_gate|w_up] (GU role) or x @ [wq|wk|wv] (QKV role), K streamed through a
;    3-slot LDS ring by LDS-DMA (waves 0-1), MFMA 16x16x32 in waves 4-7. LayerNorm is applied after the GEMM:
;    r*(acc - mean*colsum(W)); row stats and column sums are computed once and shared through tagged granules.
;    GU epilogue: gelu(g)*u -> h fragments; QKV epilogue: phi(k)^T v / sum phi(k) partials, phi(q) fragments.
;  Phase 2: 64x64 output tiles: waves 0-3 y = h @ w_down (K split), waves 4-7 o = phi(q) kv / den, s = o @ wo,
;    LDS reduction, out = x + s * silu(y).
;  Hand-offs: write-through (sc1) stores, drained, then a flag line holding this launch's tag (tag = word found at
;    d_ws[0] + constant, written back at the end); readers use sc1 loads. All waits are bounded.
; @launch grid=(256,1,1) block=(512,1,1) lds={LDS}
.amdgcn_target "amdgcn-amd-amdhsa--gfx950"
.text
.globl {NAME}_kernel
.p2align 8
.type {NAME}_kernel,@function
{NAME}_kernel:
""" + render(lines) + f""".section .rodata,"a"
.p2align 6
.amdhsa_kernel {NAME}_kernel
  .amdhsa_next_free_vgpr 256
  .amdhsa_next_free_sgpr 102
  .amdhsa_accum_offset 256
  .amdhsa_group_segment_fixed_size 0
  .amdhsa_kernarg_size 80
  .amdhsa_user_sgpr_count 2
  .amdhsa_user_sgpr_kernarg_segment_ptr 1
  .amdhsa_system_sgpr_workgroup_id_x 1
.end_amdhsa_kernel
"""
open(sys.argv[1], "w").write(out)
```

```python
import sys, struct
from asmlib import *
NAME = "recurrent_scan__linear_attn_block__glu_gated_geglu__prompt"
OPT = dict(stamps=0, rot=2, prio=1, pfcode=1, spin=1<<17, thr=4, unthr=41, n7=1, ca=14, cb=22, h=5, mix=0, sub=0,
           psleep=2, ydep=5, sdep=0, w2late=0, p2map=1, stage=1, sprio=1, ydelay=-1, sdelay=0, fdelay=0, rdelay=0, xlate=0, now2=0, sd=3, apoll=0, fgate=1, rt=1, zf=1, nr=0, r0=3, lred=0, prew=0, hints=0, comb=1, fafter=0, h16=0, gate=4, ffirst=1, warm=0, nodma=0, redearly=1, xz=1, gmix=0, qmix=0, qnop=0, bpos=0, rgap=3, spk=0, diag=0, dwave=4, nrep=2, nl=4, p1=1, p2=7, osc=0, gpos=1, c2=9, yprio=2, ydrop=22, ypost=0, mord=0, adapt=1, ypk=0, nb=3, pf2=-1, drot=0, xfirst=1, nostat=0, w1pf=-9, slow=0, dead=1, qg=0, rq=1, tfrom=6, nc=0, thr2=4, nraw=6, krot=0, slo=0, shi=0, sn=4, nearly=0, e0=3, e1=6, fin=0, c1=-1, pre0=11, pe=-1, map=0)
for a in sys.argv[2:]:
    k, v_ = a.split("="); assert k in OPT, k; OPT[k] = int(v_, 0)
def f2u(x): return struct.unpack("<I", struct.pack("<f", x))[0]
def hx(x): return "0x%08x" % f2u(x)

SLOT = 49152; XW = 24576; UPOFF = 12288; MISC = 3*SLOT; LDS = 163840
RS = MISC; RR = MISC+3072; CF = MISC+3840; MR = MISC+4608; LF = MISC+5376; GB = MISC+5632
Q = 12288
WS_RS = 0x10000; WS_CS = 0x20000; WS_FLAG = 0x300000; WS_FF = 0x60000; WS_DBG = 0x80000; WS_F = 0xC0000; WS_KV = 0x100000; WS_H = 0x800000
X="s[36:39]"; W="s[40:43]"; WS="s[44:47]"; H="s[48:51]"; WD="s[56:59]"; WO="s[60:63]"; OUT="s[64:67]"
TAG="s10"
def v(b, n=1): return f"v{b}" if n == 1 else f"v[{b}:{b+n-1}]"
def mfma(d, a, b, c=None):
    return f"v_mfma_f32_32x32x16_bf16 {v(d,16)}, {v(a,4)}, {v(b,4)}, " + ("0" if c == 0 else v(d,16))
def mfmaH(d, a, b, c, alt):
    if not OPT["h16"]: return mfma(d, a, b, c)
    return mf16(d+8*alt, a, b, c) + "\n" + mf16(d+8*alt+4, a ^ 4, b, c)
def mf16(d, a, b, c=None):
    return f"v_mfma_f32_16x16x32_bf16 {v(d,4)}, {v(a,4)}, {v(b,4)}, " + ("0" if c == 0 else v(d,4))
def bc(r): return v(r & ~1, 2), r & 1
_lab = [0]
def L(p="L"):
    _lab[0] += 1; return f"{p}_{_lab[0]}"
A = Asm()
def E(lst):
    for t in lst: A(t)
def cap(fn):
    n = len(A.lines); fn(); o = [t for _, t in A.lines[n:]]; del A.lines[n:]; return o
def stamp(*pairs):
    for i, st in pairs:
        if OPT["stamps"] == st or (OPT["stamps"] and st == 0):
            A(f"{'s_memrealtime' if (OPT['rt'] and i != 8) else 's_memtime'} s[68:69]\ns_waitcnt lgkmcnt(0)\ns_mov_b32 s{92+i}, s68")
def note(reg, st):
    if OPT["stamps"] == st: A(f"s_mov_b32 s35, {reg}")
def srd(name, lo, size, add=0):
    b = int(name[2:4])
    if add: A(f"s_add_u32 s{b}, s{lo}, {add}\ns_addc_u32 s{b+1}, s{lo+1}, 0")
    else: A(f"s_mov_b32 s{b}, s{lo}\ns_mov_b32 s{b+1}, s{lo+1}")
    A(f"s_mov_b32 s{b+2}, {size}\ns_mov_b32 s{b+3}, 0x20000")
def spin_flag(vaddr, vt, nl, kind=None, first=0):
    l1, l2 = L("POLL"), L("POLLD")
    A(f"""s_mov_b32 s88, {first}
s_mov_b64 exec, {hex((1<<nl)-1)}
{l1}:
s_and_b32 s87, s88, {OPT['nrep']-1}
s_lshl_b32 s87, s87, 7""")
    if kind: A(f"s_add_u32 s87, s87, {kind << 20}")
    A(f"""buffer_load_dword {v(vt)}, {v(vaddr)}, {WS}, s87 offen sc1
s_add_u32 s88, s88, 1
s_waitcnt vmcnt(0)
v_cmp_ne_u32 vcc, {TAG}, {v(vt)}
s_cmp_gt_u32 s88, {OPT['spin']}
s_cbranch_scc1 {l2}
s_cbranch_vccz {l2}
s_sleep {OPT['psleep']}
s_branch {l1}
{l2}:
s_mov_b64 exec, -1""")
def spin_lds(vaddr, vt, need=1):
    l1, l2 = L("LP"), L("LPD")
    A(f"""s_mov_b32 s86, 0
{l1}:
ds_read_b32 {v(vt)}, {v(vaddr)}
s_add_u32 s86, s86, 1
s_waitcnt lgkmcnt(0)
v_cmp_gt_u32 vcc, {need}, {v(vt)}
s_cmp_gt_u32 s86, {OPT['spin']*8}
s_cbranch_scc1 {l2}
s_cbranch_vccz {l2}
s_sleep 1
s_branch {l1}
{l2}:""")
def vmax(dst, regs_):
    o = []; r = list(regs_)
    if len(r) == 2: return [f"v_max_u32 v{dst}, v{r[0]}, v{r[1]}"]
    o.append(f"v_max3_u32 v{dst}, v{r[0]}, v{r[1]}, v{r[2]}"); r = r[3:]
    while r:
        if len(r) >= 2: o.append(f"v_max3_u32 v{dst}, v{dst}, v{r[0]}, v{r[1]}"); r = r[2:]
        else: o.append(f"v_max_u32 v{dst}, v{dst}, v{r[0]}"); r = r[1:]
    return o
def tagcheck(dst, tmp, regs_):
    for n, r in enumerate(regs_): A(f"v_xor_b32 v{dst if n == 0 else tmp+n}, {TAG}, v{r}")
    n = 1
    while n < len(regs_):
        if n+1 < len(regs_): A(f"v_or3_b32 v{dst}, v{dst}, v{tmp+n}, v{tmp+n+1}"); n += 2
        else: A(f"v_or_b32 v{dst}, v{dst}, v{tmp+n}"); n += 1

A(f"""s_cmp_ge_u32 s2, 256
s_cbranch_scc1 L_END
s_load_dwordx16 s[16:31], s[0:1], 0
s_load_dwordx2 s[32:33], s[0:1], 72""")
if OPT["stamps"]: A("s_memrealtime s[34:35]\ns_memtime s[68:69]")
A(f"""v_lshrrev_b32 v1, 6, v0
v_and_b32 v0, 63, v0
v_readfirstlane_b32 s3, v1
s_and_b32 s5, s2, 7
s_lshr_b32 s86, s2, 3""")
if OPT["p2map"] == 0:
    A("s_lshl_b32 s84, s5, 2\ns_lshr_b32 s87, s86, 3\ns_add_u32 s84, s84, s87\ns_and_b32 s85, s86, 7")
else:
    A("""s_lshr_b32 s84, s5, 1
s_lshl_b32 s84, s84, 3
s_lshr_b32 s87, s86, 2
s_add_u32 s84, s84, s87
s_and_b32 s85, s5, 1
s_lshl_b32 s85, s85, 2
s_and_b32 s87, s86, 3
s_add_u32 s85, s85, s87""")
A(f"""s_lshl_b32 s5, s5, 5
s_add_u32 s5, s5, s86
s_and_b32 s4, s3, 3
s_mov_b32 s12, 0
""")
if OPT["map"] == 0:
    A("""s_cmp_lt_u32 s5, 138
s_cbranch_scc0 L_BOT
s_mul_i32 s7, s5, 171
s_lshr_b32 s7, s7, 10
s_mul_i32 s86, s7, 6
s_sub_u32 s6, s5, s86
s_branch L_IDS
L_BOT:
s_cmp_ge_u32 s5, 253
s_cselect_b32 s12, 1, 0
s_cselect_b32 s86, 5, 0
s_sub_u32 s86, s5, s86
s_sub_u32 s86, s86, 138
s_mul_i32 s87, s86, 205
s_lshr_b32 s87, s87, 10
s_sub_u32 s7, 22, s87
s_mul_i32 s87, s87, 5
s_sub_u32 s6, s86, s87
s_add_u32 s6, s6, 6
""")
elif OPT["map"] == 3:
    A("""s_and_b32 s87, s2, 7
s_mul_i32 s88, s87, 29
s_lshl_b32 s89, s87, 5
s_sub_u32 s89, s89, 14
s_max_i32 s88, s88, s89
s_add_u32 s88, s88, s86
s_cmp_eq_u32 s87, 4
s_cselect_b32 s89, 30, 29
s_cmp_gt_u32 s87, 4
s_cselect_b32 s89, 32, s89
s_cmp_ge_u32 s86, s89
s_cbranch_scc1 L_LIGHT
s_cmp_lt_u32 s88, 132
s_cbranch_scc0 L_BOT
s_mul_i32 s7, s88, 171
s_lshr_b32 s7, s7, 10
s_mul_i32 s86, s7, 6
s_sub_u32 s6, s88, s86
s_branch L_FIX
L_LIGHT:
s_mul_i32 s87, s87, 3
s_add_u32 s87, s87, s86
s_sub_u32 s87, s87, s89
s_lshl_b32 s87, s87, 2
s_mov_b32 s88, 2197233504
s_mov_b32 s89, 11097151
s_lshr_b64 s[88:89], s[88:89], s87
s_and_b32 s6, s88, 15
s_mov_b32 s7, 14
s_cmp_eq_u32 s6, 15
s_cselect_b32 s12, 1, 0
s_cselect_b32 s6, 0, s6
s_cselect_b32 s7, 0, s7
s_branch L_IDS
L_BOT:
s_sub_u32 s86, s88, 132
s_mul_i32 s87, s86, 205
s_lshr_b32 s87, s87, 10
s_sub_u32 s7, 21, s87
s_mul_i32 s87, s87, 5
s_sub_u32 s6, s86, s87
s_add_u32 s6, s6, 6
L_FIX:
s_cmp_ge_u32 s7, 14
s_addc_u32 s7, s7, 0""")
elif OPT["map"] == 1:
    A("""s_cmp_ge_u32 s5, 253
s_cselect_b32 s12, 1, 0
s_cselect_b32 s86, 253, 0
s_sub_u32 s86, s5, s86
s_mul_i32 s7, s86, 745
s_lshr_b32 s7, s7, 13
s_mul_i32 s87, s7, 11
s_sub_u32 s6, s86, s87""")
else:
    A("""s_and_b32 s87, s2, 7
s_mul_i32 s88, s87, 30
s_add_u32 s88, s88, s86
s_sub_u32 s87, 7, s87
s_lshl1_add_u32 s87, s87, s86
s_add_u32 s87, s87, 210
s_cmp_ge_u32 s86, 30
s_cselect_b32 s86, s87, s88
s_cmp_ge_u32 s86, 253
s_cselect_b32 s12, 1, 0
s_cselect_b32 s87, 253, 0
s_sub_u32 s86, s86, s87
s_mul_i32 s7, s86, 745
s_lshr_b32 s7, s7, 13
s_mul_i32 s87, s7, 11
s_sub_u32 s6, s86, s87
s_add_u32 s87, s7, 1
s_cmp_ge_u32 s7, 14
s_cselect_b32 s7, s87, s7
s_cmp_eq_u32 s7, 23
s_cselect_b32 s7, 14, s7""")
A(f"""L_IDS:
s_mov_b32 s90, s7""")
if OPT["mix"] == 2:
    A("""s_mul_i32 s86, s7, 43
s_lshr_b32 s86, s86, 8
s_mul_i32 s87, s86, 6
s_sub_u32 s87, s7, s87
s_lshl2_add_u32 s88, s86, s87
s_lshl1_add_u32 s86, s86, s87
s_add_u32 s86, s86, 11
s_cmp_ge_u32 s87, 4
s_cselect_b32 s88, s86, s88
s_cmp_ge_u32 s7, 21
s_cselect_b32 s7, s7, s88""")
if OPT["mix"] == 1:
    A("""s_mul_i32 s86, s7, 43
s_lshr_b32 s86, s86, 7
s_sub_u32 s87, s7, s86
s_lshl_b32 s88, s86, 1
s_sub_u32 s88, s87, s88
s_add_u32 s86, s86, 15
s_cmp_eq_u32 s7, 22
s_cselect_b32 s7, s86, s87
s_cmp_eq_u32 s88, 2
s_cselect_b32 s7, s86, s7""")
A(f"""s_mul_i32 s8, s6, 192
s_min_u32 s8, s8, 1856
s_mul_i32 s9, s7, 96
s_min_u32 s9, s9, 1280
s_cmp_lt_u32 s3, 4
s_cbranch_scc1 L_LOADER""")
def kwait():
    A("s_waitcnt lgkmcnt(0)\ns_load_dword s10, s[32:33], 0")
    if OPT["stamps"]: A("s_mov_b32 s92, s68")
    srd(X, 16, 2097152)
if OPT["prio"]: A(f"s_setprio {OPT['prio']}")
if OPT["pfcode"]:
    A(f"""s_getpc_b64 s[88:89]
L_PC:
s_sub_u32 s88, s88, L_PC-{NAME}_kernel
s_subb_u32 s89, s89, 0
s_lshr_b32 s86, s2, 3
s_lshl_b32 s86, s86, 3
s_lshl_b32 s87, s4, 1
s_add_u32 s86, s86, s87
v_and_b32 v3, 1, v0
v_add_u32 v3, s86, v3
v_lshlrev_b32 v3, 7, v3
v_min_u32 v3, L_END-{NAME}_kernel, v3
global_load_dword v47, v3, s[88:89]""")
A(f"""s_lshl_b32 s86, s5, 3
s_lshl_b32 s87, s4, 1
s_add_u32 s86, s86, s87
v_lshrrev_b32 v7, 5, v0
v_add_u32 v7, s86, v7
v_and_b32 v2, 31, v0
v_lshlrev_b32 v2, 4, v2
v_lshl_add_u32 v2, v7, 10, v2""")
kwait()
if not OPT["nostat"]: A(f"""buffer_load_dwordx4 v[8:11], v2, {X}, 0 offen
buffer_load_dwordx4 v[12:15], v2, {X}, 0 offen offset:512""")
stamp((1, 2))
A("s_branch L_COMPUTE\nL_LOADER:")

def w2addr(base, T, nat):
    a_, b_, c_, d_ = T, T+1, T+2, T+3
    A(f"""v_and_b32 v{a_}, 3, v0
v_bfe_u32 v{b_}, v0, 2, 2
v_bfe_u32 v{c_}, v0, 4, 1
v_lshrrev_b32 v{d_}, 5, v0
v_lshl_add_u32 v{d_}, v{d_}, {3 if nat else 2}, v{b_}
v_lshlrev_b32 v{d_}, 7, v{d_}
v_lshrrev_b32 v{b_}, 1, v{b_}
v_lshl_add_u32 v{c_}, v{b_}, 2, v{c_}
v_and_b32 v{b_}, 1, v{a_}
v_lshl_add_u32 v{c_}, v{b_}, 1, v{c_}
v_lshl_add_u32 v{d_}, v{c_}, 4, v{d_}
v_lshrrev_b32 v{a_}, 1, v{a_}
v_lshl_add_u32 v{d_}, v{a_}, 3, v{d_}
v_add_u32 v{base}, s76, v{d_}
v_xor_b32 v{d_}, 64, v{d_}
v_add_u32 v{base+1}, s76, v{d_}
v_add_u32 v{base+2}, {2*SLOT}, v{base}
v_add_u32 v{base+3}, {2*SLOT}, v{base+1}""")
def w2read(dst, slot, blk, ab, nat=True):
    o = []
    for c in range(2):
        for sec in range(2):
            ar = ab + c + (2 if slot == 2 else 0)
            off = (SLOT if slot == 1 else 0) + blk*2048 + sec*(512 if nat else 1024)
            o.append(f"ds_read_b64_tr_b16 {v(dst+4*c+2*sec,2)}, v{ar} offset:{off}")
    return o
def xres_addr(half, T):
    A(f"""s_lshl_b32 s86, s4, 4
s_lshl_b32 s87, s84, 6
s_add_u32 s86, s86, s87
s_add_u32 s86, s86, {8*half}
s_lshl_b32 s86, s86, 10
s_lshl_b32 s87, s85, 7
s_add_u32 s86, s86, s87
v_lshrrev_b32 v{T}, 3, v0
v_lshlrev_b32 v{T}, 10, v{T}
v_and_b32 v{T+1}, 7, v0
v_lshl_add_u32 v{T}, v{T+1}, 4, v{T}
v_add_u32 v1, s86, v{T}""")
def xres_load(late=0):
    if OPT["xlate"] == late: A(f"buffer_load_dwordx4 v[12:15], v1, {X}, 0 offen")
def p2setup():
    srd(WS, 32, 0x800000); srd(H, 32, 118*65536, WS_H); srd(WD, 28, 1376*1024); srd(WO, 20, 512*1024); srd(OUT, 30, 2097152)
    A(f"""v_lshrrev_b32 v24, 3, v0
v_lshlrev_b32 v24, 10, v24
v_and_b32 v25, 7, v0
v_bfe_u32 v26, v0, 4, 1
v_lshlrev_b32 v26, 2, v26
v_xor_b32 v25, v25, v26
v_lshl_add_u32 v24, v25, 4, v24
s_lshl_b32 s86, s85, 7
v_add_u32 v4, s86, v24
s_mul_i32 s87, s4, {3*16384}
v_add_u32 v2, s87, v4
s_add_u32 s87, s4, 84
s_lshl_b32 s87, s87, 14
v_add_u32 v3, s87, v4
s_lshl_b32 s87, s4, 17
v_add_u32 v4, s87, v4
s_mul_i32 s76, s4, {Q}
s_lshl_b32 s87, s84, 11
s_mul_i32 s86, s4, {3*65536}
s_add_u32 s86, s86, s87
v_lshl_add_u32 v6, v0, 4, s86
v_bfe_u32 v24, v0, 1, 3
v_lshlrev_b32 v24, 3, v24
s_lshr_b32 s86, s4, 1
s_lshl_b32 s86, s86, 2
s_and_b32 s90, s4, 1
s_add_u32 s86, s86, s90
v_add_u32 v24, s86, v24
v_min_u32 v24, 57, v24
v_cmp_eq_u32 vcc, 56, v24
v_cndmask_b32 v24, v24, 57, vcc
v_and_b32 v25, 1, v0
v_lshl_add_u32 v24, v25, 1, v24
s_lshl_b32 s86, s4, 3
s_add_u32 s86, s86, 44
v_add_u32 v25, s86, v0
v_cmp_lt_u32 vcc, 15, v0
v_cndmask_b32 v24, v24, v25, vcc
s_mul_i32 s86, s84, 43
s_lshr_b32 s86, s86, 7
s_mul_i32 s86, s86, {23*4096}
s_add_u32 s86, s86, {WS_FLAG}
v_lshl_add_u32 v5, v24, 10, s86
s_add_u32 s86, s4, 84
s_lshl_b32 s86, s86, 16
s_add_u32 s86, s86, s87
s_cmp_lt_u32 s4, 2
s_cselect_b32 s86, s86, 0x80000000
v_lshl_add_u32 v7, v0, 4, s86""")
    w2addr(8, 24, True); xres_addr(0, 24); rho8()
    A(f"s_waitcnt lgkmcnt(0)\ns_add_u32 {TAG}, {TAG}, 0x9E3779B9")
def wfrag_addr(dst, swc, T, lab):
    A(f"""v_and_b32 v{T}, 3, v0
v_bfe_u32 v{T+1}, v0, 2, 2
v_bfe_u32 v{T+2}, v0, 4, 1
s_cmp_ge_u32 s7, 15
s_cbranch_scc1 {lab}Q
v_lshrrev_b32 v{T+3}, 4, v0
v_lshl_add_u32 v{T+3}, v{T+3}, 3, v{T+1}
v_mul_u32_u24 v{T+3}, 192, v{T+3}
v_lshl_add_u32 v{T}, v{T}, 3, v{T+3}
v_add_u32 v{T}, {XW}, v{T}
s_mul_i32 s87, {swc}, 3
v_xor_b32 v{T+3}, s87, v{T+2}
v_lshl_add_u32 v{dst}, v{T+3}, 5, v{T}
s_add_u32 s87, s87, 1
v_xor_b32 v{T+3}, s87, v{T+2}
v_lshl_add_u32 v{dst+1}, v{T+3}, 5, v{T}
s_branch {lab}D
{lab}Q:
v_lshrrev_b32 v{T+3}, 5, v0
v_mul_u32_u24 v{T+3}, 3072, v{T+3}
v_lshl_add_u32 v{T+3}, v{T+1}, 7, v{T+3}
v_mul_u32_u24 v{T+4}, {UPOFF+32}, v{T+2}
v_lshrrev_b32 v{T+1}, 1, v{T+1}
v_xor_b32 v{T+1}, {swc}, v{T+1}
v_lshl_add_u32 v{T+4}, v{T+1}, 6, v{T+4}
v_lshl_add_u32 v{T}, v{T}, 3, v{T+3}
v_add_u32 v{T}, {XW}, v{T}
v_add_u32 v{dst}, v{T}, v{T+4}
v_xor_b32 v{dst+1}, 32, v{dst}
{lab}D:""")
def woff(role, s_, j, sec):
    if role == 'G':
        jj = j % 3
        return jj & 1, s_*6144 + sec*768 + (j//3)*UPOFF + (64 if jj == 2 else 0)
    return j & 1, s_*6144 + (j//2)*1024 + sec*512
def ksoff(kd): return 12*(kd % 7) + kd//7
S2R = [('o',6+k,2,4+k) for k in range(2)] + [('d',12+k,2,k) for k in range(4)]
S0R = [('d',16+k,0,k) for k in range(6)]
items = [('d',k,2,k) for k in range(6)] + [('d',6+k,2,k) for k in range(6)] + S2R + [('o',k,1,k) for k in range(6)] + S0R
N7 = OPT["n7"]
def rho8():
    if OPT["krot"]: A("s_add_u32 s12, s84, s85\ns_and_b32 s12, s12, 3\ns_lshl_b32 s12, s12, 15")
    else: A("s_mov_b32 s12, 0")
def ktable():
    if OPT["krot"]:
        A("""s_lshl1_add_u32 s86, s85, s84
s_mul_i32 s87, s86, 37
s_lshr_b32 s87, s87, 8
s_mul_i32 s87, s87, 7
s_sub_u32 s86, s86, s87""")
    else: A("s_mov_b32 s86, 0")
    A(f"s_mul_i32 s77, s86, {12*16384}")
    for i in range(1, 7):
        A(f"s_add_u32 s{77+i}, s{76+i}, {12*16384}\ns_cmp_eq_u32 s{77+i}, {84*16384}\ns_cselect_b32 s{77+i}, 0, s{77+i}")
def w2ops(kind, k, dst, thr=None):
    nm = kind + str(k)
    if kind == 'o': va, S_, so = 4, WO, f"s_xor_b32 s86, s12, {k*16384}"
    elif k < 21: va, S_, so = 2, WD, f"s_add_u32 s86, s{77 + k % 7}, {(k//7)*16384}"
    else: va, S_, so = 3, WD, "s_mov_b32 s86, 0"
    if isinstance(dst, tuple):
        pre = f"s_add_u32 m0, s76, {dst[0]*SLOT + dst[1]*2048}\n{so}\ns_add_u32 s87, s86, 7168"
        i1 = f"buffer_load_dwordx4 v{va}, {S_}, s86 offen lds"; i2 = f"buffer_load_dwordx4 v{va}, {S_}, s87 offen offset:1024 lds"
    else:
        pre = f"{so}\ns_add_u32 s87, s86, 8192"
        i1 = f"buffer_load_dwordx4 {v(dst,4)}, v{va}, {S_}, s86 offen"; i2 = f"buffer_load_dwordx4 {v(dst+4,4)}, v{va}, {S_}, s87 offen"
    tw = f"s_waitcnt vmcnt({thr})\n" if thr is not None else ""
    return [pre, f"VM {nm}a|{tw}{i1}", f"VM {nm}|{tw}{i2}"]
NE = OPT["nearly"]
def rawblocks():
    steps = list(range(OPT["e0"], OPT["e1"])); n = len(steps)
    for i, st in enumerate(steps):
        its = range(NE*i//n, NE*(i+1)//n)
        if not len(its): continue
        sk = L("RW")
        A(f"s_cmp_eq_u32 s83, {st}\ns_cbranch_scc0 {sk}")
        for k in its:
            for t in w2ops('o', k, 192+8*k): A(t.split("|")[-1])
        A.label(sk)
def w2item(n):
    for t in w2ops(items[n][0], items[n][1], items[n][2:]): A(t.split("|")[-1])

A(f"""s_cmp_ge_u32 s3, 2
s_cbranch_scc1 L_SIDE
s_add_u32 s79, s6, s90""")
R_ = OPT["drot"] or OPT["rot"]
A(f"s_and_b32 s79, s79, {R_-1}\ns_lshl_b32 s79, s79, { {1:0, 2:2, 4:1, 8:0}[R_] }")
A(f"""v_lshrrev_b32 v24, 3, v0
v_and_b32 v25, 7, v0
v_lshrrev_b32 v26, 4, v0
v_xor_b32 v27, v25, v26
s_mul_i32 s86, s4, 96
s_add_u32 s86, s86, s8
s_lshl_b32 s86, s86, 10
v_lshl_add_u32 v16, v24, 10, s86
v_lshl_add_u32 v16, v27, 4, v16
v_xor_b32 v17, 64, v16
v_add_u32 v18, {2*7168}, v16
v_add_u32 v19, {3*7168}, v17
v_add_u32 v17, 7168, v17
s_mul_i32 s74, s4, 12288
""")
XG = ["s70", "s71", "s72"]; WL = ["s52", "s53", "s54", "s55"]; WG = ["s73", "s77", "s14", "s15"]
sh = {2: 1, 4: 2, 8: 0, 1: 0}[R_]
if OPT["sub"]:
    A(f"""s_lshr_b32 s86, s90, {sh}
s_mul_i32 s87, s86, 43
s_lshr_b32 s87, s87, 7
s_mul_i32 s87, s87, 3
s_sub_u32 s86, s86, s87
""")
else:
    A("s_mov_b32 s86, 0")
A("""s_lshl_b32 s70, s86, 12
s_add_u32 s71, s70, 4096
s_cmp_eq_u32 s71, 12288
s_cselect_b32 s71, 0, s71
s_add_u32 s72, s70, s71
s_sub_u32 s72, 12288, s72""")
XN = ["s11", "s13", "s91"]
A(f"s_lshl_b32 s86, s4, 4\ns_add_u32 s86, s86, s6\ns_cmp_eq_u32 s86, 10\ns_cselect_b32 s88, {8192 if OPT['xz'] else 0}, 0\ns_cmp_eq_u32 s12, 1\ns_cselect_b32 s88, {65536 if OPT['xz'] else 0}, s88")
for g in range(3): A(f"s_cmp_lt_u32 {XG[g]}, s88\ns_cselect_b32 {XN[g]}, 0, 2097152")
A("s_lshl_b32 s80, s79, 7\ns_mov_b32 s88, s74")
kwait()
stamp((1, 2))
def issue_head():
    A(f"""s_lshl_b32 s80, s79, 7
s_mul_i32 s81, s79, s82
s_lshl_b32 s81, s81, 2
s_add_u32 s88, s78, s74
s_add_u32 s89, s78, s75""")
ORDER = ["x0", "w0", "x1", "w1", "x2", "w2", "w3"]
def issue_part(lo, hi, order=None):
    n = 0
    for it in (order or ORDER[lo:hi]):
        g = int(it[1])
        if it[0] == 'x':
            A(f"s_add_u32 m0, s88, {XG[g]}\ns_lshl3_add_u32 s86, {XG[g]}, s80\ns_mov_b32 s38, {XN[g]}")
            for q in range(4): A(f"buffer_load_dwordx4 v{16+q}, {X}, s86 offen offset:{1024*q} lds")
            n += 4
        else:
            A(f"s_add_u32 m0, s89, {WL[g]}\ns_add_u32 s87, s81, {WG[g]}")
            for j in range(3): A(f"buffer_load_dwordx4 v{20+j}, {W}, s87 offen offset:{1024*j} lds")
            n += 3
    return n
def issue_tail():
    A(f"""s_add_u32 s79, s79, 1
s_and_b32 s79, s79, 7
s_add_u32 s78, s78, {SLOT}
s_cmp_eq_u32 s78, {3*SLOT}
s_cselect_b32 s78, 0, s78""")
HH = OPT["h"]
issue_part(0, 0, ["x0", "x1", "x2"][:3 if OPT["xfirst"] == 1 else 1])
A(f"""s_mul_i32 s75, s4, {UPOFF}
s_add_u32 s75, s75, {XW}
s_mov_b32 s43, 0x20000
s_mov_b32 s78, 0
s_cmp_ge_u32 s7, 15
s_cbranch_scc1 L_LQKV
s_mov_b32 s42, {512*2752}
s_mov_b32 s82, {16*2752}
s_movk_i32 s86, 0x1556
s_movk_i32 s87, 2752
s_lshl_b32 s88, s9, 1
s_cmp_eq_u32 s7, 14
s_cselect_b32 s89, {8 if OPT['zf'] else 0}, 0
s_cmp_eq_u32 s12, 1
s_cselect_b32 s89, {12 if OPT['zf'] else 0}, s89
v_mov_b32 v28, 0x80000000""")
for i in range(3):
    A(f"""v_add_u32 v24, {64*i}, v0
v_mul_u32_u24 v25, s86, v24
v_lshrrev_b32 v25, 16, v25
v_mul_u32_u24 v26, 12, v25
v_sub_u32 v24, v24, v26
v_lshrrev_b32 v26, 2, v25
v_and_b32 v26, 2, v26
v_xor_b32 v24, v24, v26
v_cmp_gt_u32 vcc, s89, v24
v_mul_u32_u24 v25, s87, v25
v_lshl_add_u32 v24, v24, 4, v25
v_add_u32 v24, s88, v24
v_subrev_u32 v24, {1024*i}, v24
v_cndmask_b32 v{20+i}, v24, v28, vcc""")
A(f"""s_branch L_LGO
L_LQKV:
s_mov_b32 s42, {512*3072}
s_mov_b32 s82, {16*3072}
s_sub_u32 s87, s7, 15
s_lshl_b32 s87, s87, 7
s_mul_i32 s88, s4, {8*3072}
s_add_u32 s87, s87, s88
v_mul_u32_u24 v24, 3072, v24
v_and_b32 v26, 1, v26
v_lshlrev_b32 v26, 2, v26
v_xor_b32 v25, v25, v26
s_lshl_b32 s88, s4, 1
v_xor_b32 v25, s88, v25
v_lshl_add_u32 v20, v25, 4, v24
v_add_u32 v20, s87, v20
v_mov_b32 v21, v20
v_mov_b32 v22, v20
L_LGO:""")
A(f"s_lshr_b32 s87, s6, {sh}" if OPT["sub"] else "s_mov_b32 s87, 0")
for g in range(4):
    A(f"s_add_u32 s86, s87, {g}\ns_and_b32 s86, s86, 3\ns_mul_i32 {WL[g]}, s86, 3072\ns_mul_i32 {WG[g]}, s86, s82")
A(f"""s_cmp_eq_u32 s4, 1
s_cselect_b32 s40, s26, s24
s_cselect_b32 s41, s27, s25
s_cmp_ge_u32 s7, 15
s_cselect_b32 s40, s18, s40
s_cselect_b32 s41, s19, s41""")
issue_head(); issue_part(0, 0, ["w0", "w1", "w2", "w3"] if OPT["xfirst"] == 1 else ["w0", "x1", "w1", "x2", "w2", "w3"]); issue_tail()
stamp((2, 2))
issue_head(); n_ = issue_part(0, HH)
p2setup()
A(f"s_waitcnt vmcnt({n_})")
stamp((1, 1), (3, 2))
A("s_barrier\ns_mov_b32 s83, 0\nL_LLOOP:")
rawblocks()
if OPT['nodma']: issue_tail(); issue_head()
else:
    if HH < 7: issue_part(HH, 7)
    issue_tail(); issue_head(); issue_part(0, HH)
A(f"""s_add_u32 s83, s83, 1
s_waitcnt vmcnt({n_})
s_barrier
s_cmp_lt_u32 s83, 6
s_cbranch_scc1 L_LLOOP""")
stamp((2, 1), (4, 2))
if HH < 7: issue_part(HH, 7)
A("s_mov_b32 s38, 2097152")
ktable()
for n in range(N7): w2item(n)
A(f"s_waitcnt vmcnt({2*N7})\ns_barrier")
A("s_branch L_W2")

def f_addr(dst):
    A(f"""s_sub_u32 s86, s7, 15
s_lshl_b32 s86, s86, 12
s_and_b32 s87, s6, 1
s_lshl_b32 s87, s87, 11
s_add_u32 s86, s86, s87
s_and_b32 s87, s6, 2
s_lshl_b32 s87, s87, 9
s_add_u32 s86, s86, s87
s_lshr_b32 s87, s6, 2
s_lshl_b32 s87, s87, 9
s_add_u32 s86, s86, s87
s_lshl1_add_u32 s91, s86, {WS_FF}
s_add_u32 s86, s86, {WS_F}
v_lshl_add_u32 v{dst}, v0, 4, s86""")
assert OPT["rot"] in (2, 4, 8)
A(f"""L_SIDE:
s_add_u32 s13, s6, s90
s_and_b32 s13, s13, {OPT['rot']-1}
s_lshl_b32 s13, s13, { {2:2, 4:1, 8:0}[OPT['rot']] }
s_lshr_b32 s14, s6, { {2:1, 4:2, 8:3}[OPT['rot']] }
s_add_u32 s15, s13, s14
s_cmp_ge_u32 s6, 8
s_cselect_b32 s14, 99, s14
s_cmp_eq_u32 s12, 1
s_cselect_b32 s14, 99, s14
s_and_b32 s77, s4, 1""")
wfrag_addr(62, "s77", 24, "L_SA")
A(f"""s_cmp_eq_u32 s14, 1
s_cselect_b32 s86, {SLOT}, 0
s_cmp_eq_u32 s14, 2
s_cselect_b32 s86, {2*SLOT}, s86
v_add_u32 v62, s86, v62
v_add_u32 v63, s86, v63
v_and_b32 v24, 16, v0
v_cmp_ne_u32 s[72:73], 0, v24
v_and_b32 v24, 31, v0
s_mul_i32 s86, s77, 384
s_add_u32 s86, s86, {CF}
v_lshrrev_b32 v25, 4, v24
v_mul_u32_u24 v25, 128, v25
v_lshl_add_u32 v17, v24, 2, v25
v_add_u32 v17, s86, v17
s_mul_i32 s87, s77, 96
v_add_u32 v21, s87, v0
v_add3_u32 v22, v24, s87, 64
s_lshl_b32 s86, s8, 4
s_add_u32 s86, s86, {WS_RS}
v_lshl_add_u32 v19, v21, 4, s86
v_lshl_add_u32 v20, v22, 4, s86
s_lshl_b32 s86, s7, 13
s_lshl_b32 s87, s77, 9
s_add_u32 s86, s86, s87
s_add_u32 s86, s86, {WS_CS}
s_lshl_b32 s87, s15, 10
s_add_u32 s74, s86, s87
v_lshlrev_b32 v23, 4, v24
v_lshrrev_b32 v25, 5, v0
v_lshl_add_u32 v18, v25, 12, v23
v_add_u32 v18, s86, v18""")
for r in range(52, 56): A(f"v_mov_b32 v{r}, 0x3f803f80")
def w1prefetch():
    A(f"""s_cmp_eq_u32 s77, 0
s_cselect_b32 s40, s24, s26
s_cselect_b32 s41, s25, s27
s_mov_b32 s42, {1376*1024}
s_mov_b32 s43, 0x20000
s_mul_i32 s86, s5, 43
v_min_u32 v16, 42, v0
v_add_u32 v16, s86, v16
v_lshlrev_b32 v16, 7, v16
buffer_load_dword v58, v16, {W}, 0 offen
s_mov_b32 s52, s18
s_mov_b32 s53, s19
s_mov_b32 s54, {512*3072}
s_mov_b32 s55, 0x20000
s_lshl_b32 s86, s5, 1
s_add_u32 s86, s86, s77
s_mul_i32 s86, s86, 24
v_min_u32 v16, 23, v0
v_add_u32 v16, s86, v16
v_lshlrev_b32 v16, 7, v16
buffer_load_dword v57, v16, s[52:55], 0 offen""")
kwait()
if OPT['w1pf'] == -2: w1prefetch()
p2setup()
A(f"""s_cmp_lt_u32 s7, 15
s_cbranch_scc1 L_NOCLR
s_cmp_ge_u32 s6, 8
s_cbranch_scc1 L_NOCLR""")
f_addr(24)
A(f"""v_mov_b32 v28, -1
v_mov_b32 v29, -1
v_mov_b32 v30, -1
v_mov_b32 v31, -1
s_mov_b32 exec_hi, 0
buffer_store_dwordx4 v[28:31], v24, {WS}, 0 offen sc1
s_mov_b32 exec_hi, -1""")
if OPT["prew"]: A(f"s_sub_u32 s86, {TAG}, 1\nv_mov_b32 v32, s86\nv_lshlrev_b32 v24, 4, v0\nbuffer_store_dwordx4 v[32:35], v24, {WS}, s91 offen sc1")
A(f"""L_NOCLR:
s_mov_b32 s83, 0
s_waitcnt vmcnt(0)""")
if OPT["w1pf"] == -1: w1prefetch()
A("L_SLOOP:\ns_barrier")
if OPT["w1pf"] >= 0:
    A(f"s_cmp_eq_u32 s83, {OPT['w1pf']}\ns_cbranch_scc0 L_NOPF1"); w1prefetch(); A("L_NOPF1:")
if OPT["w2late"] >= 0:
    A(f"""s_cmp_eq_u32 s83, {OPT['w2late']}
s_cbranch_scc0 L_NOPF2
s_mul_i32 s86, s5, 59
s_mul_i32 s87, s77, 30
s_add_u32 s86, s86, s87
v_min_u32 v16, 29, v0
v_add_u32 v16, s86, v16
v_lshlrev_b32 v16, 7, v16
buffer_load_dword v60, v16, {WD}, 0 offen
v_subrev_u32 v16, {1376*1024}, v16
buffer_load_dword v61, v16, {WO}, 0 offen
L_NOPF2:""")
if OPT["pf2"] >= 0:
    A(f"""s_cmp_eq_u32 s83, {OPT['pf2']}
s_cbranch_scc0 L_NOPF3
s_getpc_b64 s[88:89]
L_PC2:
s_sub_u32 s88, s88, L_PC2-{NAME}_kernel
s_subb_u32 s89, s89, 0
s_lshr_b32 s86, s2, 3
s_lshl_b32 s86, s86, 3
s_lshl_b32 s87, s77, 2
s_add_u32 s86, s86, s87
v_and_b32 v16, 3, v0
v_add_u32 v16, s86, v16
v_lshlrev_b32 v16, 7, v16
v_min_u32 v16, L_END-{NAME}_kernel, v16
global_load_dword v59, v16, s[88:89]
L_NOPF3:""")
A("s_cmp_eq_u32 s83, s14\ns_cbranch_scc0 L_LNOCS")
for t in range(2):
    A(f"s_cmp_ge_u32 s7, 15\ns_cbranch_scc1 L_CSQ{t}")
    for role in "GQ":
        if role == 'Q': A(f"s_branch L_CSM{t}\nL_CSQ{t}:")
        for j in range(6):
            for sec in range(2):
                par, off = woff(role, t, j, sec)
                A(f"ds_read_b64_tr_b16 {v(24+4*j+2*sec,2)}, v{62+par} offset:{off}")
    A(f"L_CSM{t}:\ns_waitcnt lgkmcnt(0)")
    for j in range(6): A(mf16(72+4*j, 52, 24+4*j, 0 if t == 0 else None))
A(f"v_mov_b32 v51, {TAG}")
for u in range(3): A(f"v_cndmask_b32 v{48+u}, v{72+4*u}, v{84+4*u}, s[72:73]")
A(f"""s_mov_b32 exec_hi, 0
buffer_store_dwordx4 v[48:51], v23, {WS}, s74 offen sc1
s_mov_b32 exec_hi, -1
L_LNOCS:""")
rawblocks()
A(f"""s_add_u32 s83, s83, 1
s_cmp_lt_u32 s83, 6
s_cbranch_scc1 L_SLOOP""")
def st_loads():
    for p in range(4): A(f"buffer_load_dwordx4 {v(32+4*p,4)}, v18, {WS}, 0 offen offset:{1024*p} sc1")
    A(f"buffer_load_dwordx4 v[48:51], v19, {WS}, 0 offen sc1\nbuffer_load_dwordx4 v[52:55], v20, {WS}, 0 offen sc1")
st_loads()
A("s_barrier")
stamp((2, 1), (4, 2))
ktable()
for n in range(N7): w2item(n)
A(f"s_mov_b32 s88, 0\ns_waitcnt vmcnt({2*N7})")
A("L_SPC:")
tagcheck(24, 24, [35+4*p for p in range(6)])
A(f"""v_cmp_ne_u32 vcc, 0, v24
s_add_u32 s88, s88, 1
s_cmp_gt_u32 s88, {OPT['spin']}
s_cbranch_scc1 L_SPCD
s_cbranch_vccz L_SPCD""")
st_loads()
A(f"""s_waitcnt vmcnt(0)
s_branch L_SPC
L_SPCD:
s_mov_b32 s86, {RS}
s_mov_b32 s87, {RR}
v_lshl_add_u32 v24, v21, 4, s86
v_lshl_add_u32 v25, v22, 4, s86
v_lshl_add_u32 v21, v21, 2, s87
v_lshl_add_u32 v22, v22, 2, s87
ds_write_b128 v24, v[48:51]
ds_write_b128 v25, v[52:55]
ds_write_b32 v21, v49
ds_write_b32 v22, v53
v_mul_f32 v24, v48, v49
v_mul_f32 v25, v52, v53
ds_write_b32 v21, v24 offset:{MR-RR}
ds_write_b32 v22, v25 offset:{MR-RR}""")
note("s88", 2)
for p in range(1, 4):
    for u in range(3): A(f"v_add_f32 v{32+u}, v{32+u}, v{32+4*p+u}")
for u in range(3): A(f"v_mov_b32 v{36+u}, v{32+u}")
for u in range(3): A(f"v_permlane32_swap_b32 v{32+u}, v{36+u}")
for u in range(3): A(f"v_add_f32 v{32+u}, v{32+u}, v{36+u}")
for u in range(3): A(f"ds_write_b32 v17, v{32+u} offset:{64*u}")
A("s_waitcnt lgkmcnt(0)\ns_barrier")

A("L_W2:")
stamp((3, 1), (6, 2))
AB = 8
vm = [x for n in range(N7) for x in (f"d{n}a", f"d{n}")]
def emit(Y):
    for t in Y:
        if callable(t): t()
        elif t.startswith("VM "):
            nm, ins = t[3:].split("|"); vm.append(nm); A(ins)
        elif t.startswith("WAIT "):
            nms, lg = t[5:].split("|")
            A(f"s_waitcnt vmcnt({len(vm)-1-max(vm.index(x) for x in nms.split(','))})" + (" lgkmcnt(0)" if lg else ""))
        elif t.startswith("STAMP "): stamp((int(t[6:]), 4))
        else: A(t)
A(f"v_lshlrev_b32 v84, 4, v0\nv_add_u32 v84, s76, v84")
def wr(reg, slot, blk):
    off = slot*SLOT + blk*2048
    A(f"ds_write_b128 v84, {v(reg,4)} offset:{off}\nds_write_b128 v84, {v(reg+4,4)} offset:{off+1024}")
def rd6(base, sl):
    for kk in range(6):
        E(w2read(base+8*kk, sl, kk, AB))
        if kk % 3 == 2: A("s_waitcnt lgkmcnt(0)")
NB = OPT["nb"]; NC = OPT["nc"]; NIT = len(items); NW = OPT['nraw']; NL = 12 - NW - NB - NC; assert NL >= 0 and NW <= 8
cnt = [N7]
def TH():
    cnt[0] += 1
    return OPT["thr"] if (OPT["thr"] and cnt[0] > OPT["tfrom"]) else None
it = lambda n: w2ops(items[n][0], items[n][1], items[n][2:], TH())
Z = []
for n in range(N7, 6): Z += it(n)
order2 = [12+2, 12+3, 12+4, 12+5, 12+0, 12+1]
for n in range(12):
    Z += [f"WAIT d{n}|"] + w2read(96+8*n, 2, n % 6, AB) + ["s_waitcnt lgkmcnt(0)"]
    Z += it(n+6 if n < 6 else order2[n-6])
assert NE <= min(NW, 6)
PE = OPT['pe']
rawop = lambda n: w2ops(items[18+n][0], items[18+n][1], 192+8*n, TH())
for n in range(NE, NW - max(PE, 0)): Z += rawop(n)
XREL = [f"VM x|buffer_load_dwordx4 v[12:15], v1, {X}, 0 offen"], [f"v_mov_b32 v80, {LF+40}", lambda: spin_lds(80, 81, 4)]
if PE < 0: Z += XREL[0] + XREL[1]
emit(Z)
stamp((4, 1), (1, 3), (1, 4))
def rdaddr(dst, isy_src, half, T):
    base = 0 if isy_src else SLOT
    t3 = 2*SLOT + (0 if isy_src else 8192)
    A(f"""s_and_b32 s70, s4, 2
s_lshl_b32 s70, s70, 12
s_add_u32 s70, s70, {base}
s_add_u32 s71, s70, 4096
s_cmp_ge_u32 s4, 2
s_cselect_b32 s71, {t3}, s71
v_mov_b32 v{T}, s70
v_mov_b32 v{T+1}, s71
v_and_b32 v{T+2}, 4, v0
v_cmp_ne_u32 vcc, 0, v{T+2}
v_and_b32 v{T+2}, 7, v0
v_lshrrev_b32 v{T+3}, 3, v0
v_cndmask_b32 v{T}, v{T}, v{T+1}, vcc
v_add_u32 v{T+3}, {8*half}, v{T+3}
v_lshlrev_b32 v{T+1}, 1, v{T+2}
v_xor_b32 v{T+3}, v{T+3}, v{T+1}
s_and_b32 s70, s4, 1
s_lshl_b32 s70, s70, 8
v_lshl_add_u32 v{T}, v{T+3}, 4, v{T}
v_and_b32 v{T+1}, 2, v0
v_lshl_add_u32 v{T}, v{T+1}, 8, v{T}
v_and_b32 v{T+1}, 1, v0
v_lshl_add_u32 v{T}, v{T+1}, 11, v{T}
v_add_u32 v{dst}, s70, v{T}""")
def wraddr(B_, isy):
    A(f"""v_lshrrev_b32 v{B_}, 3, v0
v_and_b32 v{B_}, 4, v{B_}
v_xor_b32 v{B_}, v{B_}, v0
v_lshlrev_b32 v{B_}, 4, v{B_}
v_xor_b32 v{B_+1}, 32, v{B_}
v_xor_b32 v{B_+2}, 0x80, v{B_}
v_xor_b32 v{B_+3}, 0xa0, v{B_}""")
    for j in range(4): A(f"v_add_u32 v{B_+j}, s76, v{B_+j}")
    t3 = 2*SLOT + (0 if isy else 8192)
    A(f"v_add_u32 v{B_+4}, {t3}, v{B_+2}\nv_add_u32 v{B_+5}, {t3}, v{B_+3}")
def wrpart(B_, isy):
    for q in range(4):
        for jq in range(4):
            if q < 3: A(f"ds_write_b128 v{B_ + 2*(q&1) + (jq>>1)}, {v(192+16*q+4*jq,4)} offset:{(0 if isy else SLOT) + q*4096 + jq*1024}")
            else: A(f"ds_write_b128 v{B_ + 4 + (jq>>1)}, {v(192+16*q+4*jq,4)} offset:{jq*1024}")
def rd4(dst, va):
    for src in range(4):
        for e in range(2): A(f"ds_read_b128 {v(dst+8*src+4*e,4)}, v{va} offset:{Q*src+1024*e}")
def sum4(d):
    for j in range(4): A(f"v_pk_add_f32 {v(d+2*j,2)}, {v(d+2*j,2)}, {v(d+8+2*j,2)}\nv_pk_add_f32 {v(d+16+2*j,2)}, {v(d+16+2*j,2)}, {v(d+24+2*j,2)}")
    for j in range(4): A(f"v_pk_add_f32 {v(d+2*j,2)}, {v(d+2*j,2)}, {v(d+16+2*j,2)}")
STG = OPT["stage"]
def sgo(va, vd): return f"s_lshl_b32 s86, s4, 2\ns_add_u32 s86, s86, {LF+48}\nv_mov_b32 v{va}, s86\nv_mov_b32 v{vd}, 1\nds_write_b32 v{va}, v{vd}"
assert STG
note("1", 4)
def hload(kd):
    va = 6 if kd < 21 else 7
    b = 16 + 8*(kd % 8)
    return [f"s_lshl2_add_u32 s86, s{77 + kd % 7}, {(kd//7)*65536}" if kd < 21 else "s_mov_b32 s86, 0",
            f"VM h{kd}a|buffer_load_dwordx4 {v(b,4)}, v{va}, {H}, s86 offen sc1",
            f"VM h{kd}|buffer_load_dwordx4 {v(b+4,4)}, v{va}, {H}, s86 offen offset:1024 sc1"]
w2late = lambda n, t=None: w2ops(items[n][0], items[n][1], items[n][2:], t)
PR = lambda c: 82 if c < 2 else 120
def ipoll(c):
    nl = 16 if c <= 1 else 24
    return [f"VM p{c}|v_mov_b32 v{PR(c)}, {TAG}\ns_mov_b32 s87, {c << 20}\ns_mov_b64 exec, {hex((1<<nl)-1)}\nbuffer_load_dword v{PR(c)}, v5, {WS}, s87 offen sc1\ns_mov_b64 exec, -1"]
res_loc = lambda kd: (2, kd-12) if kd < 16 else (0, kd-16)
YD = OPT["ydep"]; assert YD <= 7
PRE = cap(lambda: (wraddr(96, True), rdaddr(102, True, 0, 104), A("v_xor_b32 v103, 0x80, v102"), rdaddr(108, False, 0, 104),
    A(f"s_lshl_b32 s70, s4, 11\ns_add_u32 s70, s70, {GB}\nv_lshl_add_u32 v109, v0, 4, s70\nv_mov_b32 v110, {LF+36}\nv_mov_b32 v111, 1"),
    [A(f"v_lshlrev_b32 v{112+2*j}, 16, v{12+j}\nv_and_b32 v{113+2*j}, 0xffff0000, v{12+j}") for j in range(4)],
    A(f"s_mov_b32 s70, {hx(-1.4426950408889634)}\ns_mov_b32 s71, s70")))
Y = []
if PE < 0:
    Y += ipoll(0)
    for n in range(NB): Y += w2late(18+NW+n, OPT['thr2'] or None)
    if NW: Y += ['WAIT x|', lambda: [wr(192+8*n, *items[18+n][2:]) for n in range(NW//2)]]
    Y += ["WAIT p0|", f"v_cmp_ne_u32 vcc, {TAG}, v82\ns_cbranch_vccnz L_YR0\nL_YB0:", lambda: stamp((5, 1), (2, 3), (2, 4))]
    for kd in range(YD): Y += hload(kd)
    for n in range(NC): Y += w2late(18+NW+NB+n, OPT['thr2'] or None)
    if NW: Y += [lambda: [wr(192+8*n, *items[18+n][2:]) for n in range(NW//2, NW)], 's_waitcnt lgkmcnt(0)']
else:
    Y += ipoll(0)
    for n in range(NW-PE, NW): Y += rawop(n)
    Y += XREL[0] + ["WAIT p0|", f"v_cmp_ne_u32 vcc, {TAG}, v82\ns_cbranch_vccnz L_YR0\nL_YB0:", lambda: stamp((5, 1), (2, 3), (2, 4))]
    for kd in range(YD):
        hl = hload(kd)
        if OPT["thr2"]: hl = [hl[0], f"s_waitcnt vmcnt({OPT['thr2']})"] + hl[1:]
        Y += hl
    Y += XREL[1] + ["WAIT x|", lambda: [wr(192+8*n, *items[18+n][2:]) for n in range(NW//2)]]
    for n in range(NB+NC): Y += w2late(18+NW+n, OPT['thr2'] or None)
    Y += [lambda: [wr(192+8*n, *items[18+n][2:]) for n in range(NW//2, NW)], 's_waitcnt lgkmcnt(0)']
if OPT["gate"]: Y += [f"v_mov_b32 v80, {LF+32}", lambda: spin_lds(80, 81, OPT["gate"])]
Y.append(f"s_setprio {OPT['yprio']}")
for kd in range(22):
    wf = 96+8*kd if kd < 12 else 80+8*(kd & 1)
    hb = 16 + 8*(kd % 8)
    need = [f"h{kd}"]
    C1_ = OPT['c1'] if OPT['c1'] >= 0 else 7-YD
    chk = 1 if kd == C1_ else (2 if kd == OPT['c2'] else 0)
    if chk: need.append(f"p{chk}")
    if chk == 2 and NE < 6: need.append("o5")
    if 16 <= kd+1 < 22: need.append(f"d{kd+1}")
    Y.append("WAIT " + ",".join(need) + ("|L" if kd >= 12 else "|"))
    if chk:
        Y.append(f"v_cmp_ne_u32 vcc, {TAG}, v{PR(chk)}\ns_cbranch_vccnz L_YR{chk}\nL_YB{chk}:")
        if chk == 2: Y.append(sgo(120, 121))
    ms = [mfma(192+32*r+16*c, wf+4*c, hb+4*r, 0 if kd == 0 else None) for r in range(2) for c in range(2)]
    fill = []
    if STG and kd == OPT["p1"]: fill += ipoll(1)
    if STG and kd == OPT["p2"]: fill += ipoll(2)
    for k_ in range(YD, 22):
        if max(k_-YD, [0, C1_, OPT['c2'], OPT['c2']][k_//7]) == kd: fill += hload(k_)
    if kd < NL: fill += w2late(NIT-NL+kd)
    if 12 <= kd+1 < 22: fill += w2read(80+8*((kd+1) & 1), *res_loc(kd+1), AB)
    P0_ = OPT['pre0']
    if kd in (P0_, P0_+1, P0_+2): fill = fill + PRE[(kd-P0_)*37:(kd-P0_+1)*37]
    Y += interleave(ms, fill, 3 if len(fill) <= 12 else 6)
    if kd+1 == OPT["ydrop"]: Y.append(f"s_setprio {OPT['ypost']}")
    if kd == 0: Y.append("STAMP 3")
    if kd == 10: Y.append("STAMP 4")
assert OPT["p1"] < C1_ <= OPT["p2"] < OPT["c2"] <= 13 and C1_ <= 6
emit(Y)
stamp((6, 1), (3, 3), (5, 4))
def final(isy):
    if OPT["fin"] == 1:
        if isy:
            wrpart(96, True); A("v_mov_b32 v4, v102\ns_waitcnt lgkmcnt(0)")
        else:
            wrpart(80, False)
            A("s_setprio 0")
            rdaddr(10, True, 1, 88)
            A(f"""v_xor_b32 v5, 0x80, v4
v_mov_b32 v6, {LF+36}
v_mov_b32 v7, 1
s_mov_b32 s70, {hx(-1.4426950408889634)}
s_mov_b32 s71, s70
s_mov_b64 exec, 1
s_waitcnt lgkmcnt(0)
ds_add_u32 v6, v7
s_mov_b64 exec, -1""")
            spin_lds(6, 7, 4)
            rd4(16, 5); A("s_waitcnt lgkmcnt(4)"); rd4(48, 4)
            for d, w_ in ((16, 8), (48, 2)):
                A(f"s_waitcnt lgkmcnt({w_})")
                for j in range(8): A(f"v_add_f32 v{d+j}, v{d+j}, v{d+8+j}\nv_add_f32 v{d+16+j}, v{d+16+j}, v{d+24+j}")
                for j in range(8): A(f"v_add_f32 v{(d if d == 16 else 88)+j}, v{d+j}, v{d+16+j}")
                if d == 16: A("ds_write_b128 v9, v[16:19]\nds_write_b128 v9, v[20:23] offset:1024")
            A("v_mov_b32 v4, v10\ns_waitcnt lgkmcnt(0)")
        return
    if isy:
        wrpart(96, True)
        A("""v_mov_b32 v4, v108
s_mov_b64 exec, 1
s_waitcnt lgkmcnt(0)
ds_add_u32 v110, v111
s_mov_b64 exec, -1""")
        spin_lds(110, 6, 4)
        rd4(16, 103); A("s_waitcnt lgkmcnt(4)"); rd4(48, 102)
        for d, w_ in ((16, 8), (48, 2)):
            A(f"s_waitcnt lgkmcnt({w_})")
            if OPT["ypk"]:
                sum4(d)
                for j in range(4): A(f"v_pk_mul_f32 {v(d+8+2*j,2)}, {v(d+2*j,2)}, s[70:71]")
            else:
                for j in range(8): A(f"v_add_f32 v{d+j}, v{d+j}, v{d+8+j}\nv_add_f32 v{d+16+j}, v{d+16+j}, v{d+24+j}")
                for j in range(8): A(f"v_add_f32 v{d+j}, v{d+j}, v{d+16+j}")
                for j in range(8): A(f"v_mul_f32 v{d+8+j}, s70, v{d+j}")
            for j in range(8): A(f"v_exp_f32 v{d+8+j}, v{d+8+j}")
            for j in range(8): A(f"v_add_f32 v{d+8+j}, 1.0, v{d+8+j}")
            for j in range(8): A(f"v_rcp_f32 v{d+8+j}, v{d+8+j}")
            for j in range(8): A(f"v_mul_f32 v{(d if d == 16 else 88)+j}, v{d+j}, v{d+8+j}")
            if d == 16:
                A("ds_write_b128 v109, v[16:19]\nds_write_b128 v109, v[20:23] offset:1024")
    else:
        wrpart(80, False)
    A("s_waitcnt lgkmcnt(0)")
final(True)
A("s_branch L_FINAL")
if STG:
    for c in (0, 1, 2):
        A(f"L_YR{c}:"); note(str(10+c), 4); spin_flag(5, PR(c), 16 if c <= 1 else 24, c, 1); A(f"s_branch L_YB{c}")
A("L_COMPUTE:")
srd(WS, 32, 0x800000); srd(H, 32, 118*65536, WS_H); srd(OUT, 30, 2097152)
ACC = 112
for r in range(ACC, 256): A(f"v_mov_b32 v{r}, 0")
A(f"""v_lshlrev_b32 v16, 2, v0
v_add_u32 v16, {LF}, v16
v_mov_b32 v17, 0
s_mov_b64 exec, 0xffff
ds_write_b32 v16, v17
s_mov_b64 exec, -1
s_lshr_b32 s13, s4, 1
s_and_b32 s14, s4, 1
s_movk_i32 s11, 0x1ff
s_lshl_b32 s86, s13, 4
s_add_u32 s86, s86, s6
s_cmp_eq_u32 s86, 10
s_cselect_b32 s11, 0x1c0, s11
s_mul_i32 s86, s14, 0x1b6
s_cmp_eq_u32 s7, 14
s_cselect_b32 s86, s86, 0x1ff
s_and_b32 s11, s11, s86
s_cmp_eq_u32 s12, 1
s_cselect_b32 s11, 0, s11
s_mul_i32 s76, s4, {Q}
s_lshr_b32 s86, s9, 4
s_mul_i32 s87, s14, 3
s_add_u32 s86, s86, s87
s_lshl_b32 s87, s7, 1
s_add_u32 s87, s87, s14
s_lshl1_add_u32 s87, s87, 26
s_and_b32 s88, s11, 0xdb
s_cmp_ge_u32 s7, 15
s_cselect_b32 s86, s87, s86
s_cselect_b32 s11, s88, s11
s_lshl_b32 s86, s86, 6
s_lshr_b32 s87, s8, 5
s_add_u32 s86, s86, s87
s_mul_i32 s87, s13, 3
s_add_u32 s86, s86, s87
s_lshl_b32 s86, s86, 10
v_lshl_add_u32 v1, v0, 4, s86
s_mov_b32 s80, 0
s_mov_b32 s81, 65536
s_mov_b32 s82, 131072
v_and_b32 v16, 15, v0
v_lshrrev_b32 v17, 4, v0
v_bfe_u32 v18, v0, 1, 3
v_xor_b32 v18, v18, v17
s_mul_i32 s86, s13, {96*128}
v_lshl_add_u32 v16, v16, 7, s86
v_lshl_add_u32 v2, v18, 4, v16
v_xor_b32 v3, 64, v2""")
wfrag_addr(4, "s14", 16, "L_CA")
A(f"""s_mul_i32 s86, s6, 23
s_add_u32 s86, s86, s7
s_cmp_eq_u32 s12, 1
s_cselect_b32 s86, 255, s86
s_lshl_b32 s86, s86, 2
s_add_u32 s86, s86, s4
s_lshl_b32 s86, s86, 10
s_add_u32 s15, s86, {WS_FLAG}""")
stamp((2, 2))
A("s_waitcnt vmcnt(0)")
stamp((5, 2))
for j in range(8):
    A(f"v_lshlrev_b32 v{16+2*j}, 16, v{8+j}\nv_and_b32 v{17+2*j}, 0xffff0000, v{8+j}")
def red32(r, t):
    for sh_ in (8, 4, 2, 1):
        A(f"v_add_f32_dpp v{r}, v{r}, v{r} row_ror:{sh_} row_mask:0xf bank_mask:0xf")
    A(f"v_mov_b32 v{t}, v{r}\nv_permlane16_swap_b32 v{r}, v{t}\nv_add_f32 v{r}, v{r}, v{t}")
for j in range(4): A(f"v_pk_add_f32 {v(8+2*j,2)}, {v(16+2*j,2)}, {v(24+2*j,2)}")
A("v_pk_add_f32 v[8:9], v[8:9], v[12:13]\nv_pk_add_f32 v[10:11], v[10:11], v[14:15]\nv_pk_add_f32 v[8:9], v[8:9], v[10:11]\nv_add_f32 v8, v8, v9")
red32(8, 9)
A(f"v_mul_f32 v8, {hx(-1/512)}, v8")
for j in range(8): A(f"v_pk_add_f32 {v(16+2*j,2)}, {v(16+2*j,2)}, v[8:9] op_sel_hi:[1,0]")
A("v_pk_mul_f32 v[10:11], v[16:17], v[16:17]\nv_pk_mul_f32 v[12:13], v[18:19], v[18:19]")
for j in range(2, 8): A(f"v_pk_fma_f32 {v(10+2*(j&1),2)}, {v(16+2*j,2)}, {v(16+2*j,2)}, {v(10+2*(j&1),2)}")
A("v_pk_add_f32 v[10:11], v[10:11], v[12:13]\nv_add_f32 v10, v10, v11")
red32(10, 9)
A(f"""v_mul_f32 v10, {hx(1/512)}, v10
v_cvt_pk_bf16_f32 v10, v10, v10
v_and_b32 v10, 0xffff0000, v10
v_add_f32 v10, {hx(1e-5)}, v10
v_cvt_pk_bf16_f32 v10, v10, v10
v_and_b32 v10, 0xffff0000, v10
v_sqrt_f32 v10, v10
v_cvt_pk_bf16_f32 v32, v8, v8
v_cvt_pk_bf16_f32 v10, v10, v10
v_and_b32 v10, 0xffff0000, v10
v_and_b32 v32, 0xffff0000, v32
v_rcp_f32 v33, v10
v_mul_f32 v34, v10, v10
v_lshlrev_b32 v7, 4, v7
v_add_u32 v7, {WS_RS}, v7
s_waitcnt lgkmcnt(0)
s_add_u32 {TAG}, {TAG}, 0x9E3779B9
v_mov_b32 v35, {TAG}
v_mov_b32 v36, {TAG}
v_mov_b32 v37, {TAG}
v_mov_b32 v38, {TAG}
v_mov_b32 v39, {TAG}
v_lshlrev_b32 v6, 4, v0
s_mov_b32 s78, 0
s_mov_b32 s79, {SLOT}
s_mov_b32 s83, 0""")
stamp((1, 1), (3, 2))
A(f"""s_barrier
s_mov_b32 exec_lo, 1
s_mov_b32 exec_hi, 1
buffer_store_dwordx4 v[32:35], v7, {WS}, 0 offen sc1
s_mov_b64 exec, -1""")
if OPT["prew"]:
    for kind in ((0, 1, 2) if OPT["stage"] else (0, 2)):
        sk = L("PW")
        if kind == 0 and not OPT["stage"]: A(f"s_cmp_lt_u32 s7, 15\ns_cbranch_scc1 {sk}")
        A(f"s_add_u32 s86, s15, {kind << 20}\nbuffer_store_dwordx4 v[28:31], v6, {WS}, s86 offen sc1")
        A.label(sk)
stamp((2, 1), (4, 2))
A("s_cmp_ge_u32 s7, 15\ns_cbranch_scc1 L_QKV")
if OPT["dead"]: A("s_or_b32 s86, s11, s12\ns_cbranch_scc0 L_DEAD")

XB = lambda buf, a: (40 if buf == 0 else 8) + 4*a
WF = lambda buf, j: 64 + 24*buf + 4*j
acc = lambda a, j: ACC + 4*(6*a+j)
CB = 88
def reads(role, s_):
    w_ = []
    for j in range(6):
        for sec in range(2):
            par, off = woff(role, s_, j, sec)
            w_.append(f"ds_read_b64_tr_b16 {v(WF(s_,j)+2*sec,2)}, v{4+par} offset:{off}")
    o = []
    for a in range(6): o += [f"ds_read_b128 {v(XB(s_,a),4)}, v{2+s_} offset:{2048*a}"] + w_[2*a:2*a+2]
    return o
def mm(role, wb, a, j, xb=1):
    return mf16(acc(a,j), WF(wb,j), XB(xb,a)) if (role == 'G' or j < 2) else mf16(acc(a,j), XB(xb,a), WF(wb,j))
def grp(role, buf, a): return [mm(role, buf, a, j, buf) for j in range(6)]
def spread(ms, fill, num, den):
    o = []; f = list(fill); nr = 0
    for i, m in enumerate(ms):
        o.append(m)
        k = ((i+1)*num)//den - (i*num)//den
        for _ in range(k):
            if f:
                x = f.pop(0)
                if x.startswith("ds_read"):
                    nr += 1
                    if nr == 13: o.append("s_waitcnt lgkmcnt(6)")
                o.append(x)
    assert not f
    return o
def treads(role, st, js, wb):
    buf = st & 1
    xs_ = [f"ds_read_b128 {v(XB(buf,a),4)}, v{2+buf} offset:{2048*a + (SLOT if st >= 2 else 0)}" for a in range(6)]
    ws_ = []
    for i, j in enumerate(js):
        for sec in range(2):
            par, off = woff(role, buf, j, sec)
            ws_.append(f"ds_read_b64_tr_b16 {v(wb(buf)+4*i+2*sec,2)}, v{(32 if st >= 2 else 4)+par} offset:{off}")
    return ws_[:4] + xs_ + ws_[4:]
def ldsadd(off, va, vd): return f"v_mov_b32 v{va}, {LF+off}\nv_mov_b32 v{vd}, 1\ns_mov_b64 exec, 1\nds_add_u32 v{va}, v{vd}\ns_mov_b64 exec, -1"
def tphase(role, js, wb, first, last, nxt, extra, rows=range(6), start3=0):
    for st in range(4):
        buf = st & 1
        A("s_waitcnt lgkmcnt(0)")
        if first and st == 1: A("s_barrier")
        ms = []
        for a in (rows if st == 3 else range(6)):
            for i, j in enumerate(js):
                w_, x_ = wb(buf)+4*i, XB(buf, a)
                ms.append(mf16(acc(a,j), w_, x_) if (role == 'G' or j < 2) else mf16(acc(a,j), x_, w_))
        fill = (treads(role, st+1, js, wb) if st < 3 else nxt) + extra.get(st, [])
        if last and st == 3: fill = [ldsadd(40, 32, 33)] + fill
        E(interleave(ms, fill, max(1, -(-len(fill)//(len(ms)-1)))))
def mainloop(role, pre):
    lp, ex = f"L_ML{role}", f"L_MX{role}"
    allm = lambda buf: [m + ('\ns_nop 7' if OPT['slow'] and n_ % OPT['slow'] == 0 else '') for n_, m in enumerate([m for a in range(6) for m in grp(role, buf, a)])]
    def coarse():
        if OPT["shi"]:
            sk = L("SL"); A(f"s_sub_u32 s87, s83, {OPT['slo']}\ns_cmp_lt_u32 s87, {OPT['shi']-OPT['slo']}\ns_cbranch_scc0 {sk}")
            for _ in range(OPT["sn"]): A("s_nop 15")
            A.label(sk)
    r0 = reads(role, 0); E(r0[:12]); A("s_waitcnt lgkmcnt(6)"); E(r0[12:])
    A.label(lp)
    coarse()
    A("s_waitcnt lgkmcnt(0)")
    sal = f"""s_add_u32 s78, s78, 1
s_cmp_eq_u32 s78, 3
s_cselect_b32 s86, {-2*SLOT & 0xffffffff}, s79
s_cselect_b32 s78, 0, s78
s_add_u32 s83, s83, 1
s_cmp_eq_u32 s83, 6""".split("\n") + [f"v_add_u32 v{r}, s86, v{r}" for r in (2, 4, 5, 3)]
    E(spread(allm(0), reads(role, 1) + sal, OPT["rgap"]+2, OPT["rgap"]+3))
    A(f"s_waitcnt lgkmcnt(0)\ns_barrier\ns_cbranch_scc1 {ex}")
    E(spread(allm(1), reads(role, 0), OPT["rgap"], 4))
    A(f"s_branch {lp}")
    A.label(ex)
    com = ["s_waitcnt vmcnt(0)", f"v_add_u32 v32, {SLOT}, v4", f"v_add_u32 v33, {SLOT}, v5", "v_and_b32 v34, 15, v0",
           f"s_mul_i32 s86, s13, {96*16}", f"s_add_u32 s86, s86, {RS}", "v_lshl_add_u32 v34, v34, 4, s86",
           "v_lshrrev_b32 v7, 4, v0", "s_mul_i32 s79, s14, 384", f"s_add_u32 s79, s79, {CF}", "v_lshl_add_u32 v35, v7, 4, s79",
           f"s_mul_i32 s86, s13, {96*4}", f"s_add_u32 s86, s86, {RR}", "v_lshl_add_u32 v7, v7, 4, s86"]
    E(interleave(allm(1), pre + com, 2))

def flagstore(kind):
    m = (1 << (8*OPT["nrep"])) - 1
    A(f"s_add_u32 s86, s15, {kind << 20}\ns_mov_b64 exec, {hex(m) if m < (1<<32) else -1}\nbuffer_store_dwordx4 v[36:39], v6, {WS}, s86 offen sc1\ns_mov_b64 exec, -1")
def gsig():
    if OPT["gate"]: A(ldsadd(32, 2, 3))
rsrd = lambda a: f"ds_read_b128 {v(CB+4*a,4)}, v34 offset:{256*a}"
C1 = -2.0*0.7978845608028654*1.4426950408889634
cst = []
for a in range(6):
    b = CB+4*a
    cst += [f"v_mul_f32 v{b+3}, {hx(C1)}, v{b+1}", f"v_mul_f32 v{b+1}, v{b+1}, v{b+1}",
            f"v_mul_f32 v{b+1}, {hx(0.044715)}, v{b+1}", f"v_mul_f32 v{b+1}, v{b+1}, v{b+3}"]
wb2 = lambda buf: 64 + 8*buf
mainloop('G', treads('G', 0, (0, 3), wb2))
def tregs(u, a):
    return (8 + 8*(a & 1), 24 + 4*(a & 1), [acc(2*a + j//2, u) + 2*(j & 1) for j in range(4)],
            [acc(2*a + j//2, u+3) + 2*(j & 1) for j in range(4)], [CB+4*(2*a + j//2) for j in range(4)])
def stA(u, a):
    T, P, gp, up, cb = tregs(u, a)
    return ([f"v_pk_fma_f32 {v(gp[j],2)}, {v(80+2*(j&1),2)}, {v(cb[j],2)}, {v(gp[j],2)} op_sel_hi:[1,0,1]" for j in range(4)]
          + [f"v_pk_mul_f32 {v(T+2*j,2)}, {v(gp[j],2)}, {v(gp[j],2)}" for j in range(4)]
          + [f"v_pk_fma_f32 {v(T+2*j,2)}, {v(T+2*j,2)}, {v(cb[j],2)}, {v(cb[j]+2,2)} op_sel:[0,1,1] op_sel_hi:[1,1,1]" for j in range(4)]
          + [f"v_pk_mul_f32 {v(T+2*j,2)}, {v(T+2*j,2)}, {v(gp[j],2)}" for j in range(4)])
for u in range(3):
    crd = [f"ds_read_b128 v[80:83], v35 offset:{64*u}", f"ds_read_b128 v[84:87], v35 offset:{64*(u+3)}"]
    ex_ = {1: [rsrd(a) for a in range(4)], 2: [rsrd(4), rsrd(5)] + crd, 3: cst} if u == 0 else {0: crd}
    tphase('G', (u, u+3), wb2, u == 0, u == 2, treads('G', 0, (u+1, u+4), wb2) if u < 2 else [], ex_)
    if u: A("s_waitcnt vmcnt(0)"); flagstore(u-1)
    else: A("s_nop 3")
    if u == 0: stamp((1, 3))
    if u == 2: stamp((3, 1))
    E(stA(u, 0))
    for a in range(3):
        T, P, gp, up, cb = tregs(u, a)
        E(interleave([f"v_exp_f32 v{T+j}, v{T+j}" for j in range(8)],
            [f"v_pk_fma_f32 {v(up[j],2)}, {v(84+2*(j&1),2)}, {v(cb[j],2)}, {v(up[j],2)} op_sel_hi:[1,0,1]" for j in range(4)]
          + [f"v_pk_mul_f32 {v(gp[j],2)}, {v(gp[j],2)}, {v(up[j],2)}" for j in range(4)], 1))
        for j in range(4): A(f"v_pk_fma_f32 {v(T+2*j,2)}, {v(T+2*j,2)}, {v(cb[j]+2,2)}, {v(cb[j]+2,2)} op_sel_hi:[1,0,0]")
        nxt = stA(u, a+1) if a < 2 else []
        E(interleave([f"v_rcp_f32 v{T+j}, v{T+j}" for j in range(8)], nxt[:12], 2))
        for j in range(4): A(f"v_pk_mul_f32 {v(T+2*j,2)}, {v(T+2*j,2)}, {v(gp[j],2)}")
        for j in (0, 2, 1, 3): A(f"v_cvt_pk_bf16_f32 v{P+j}, v{T+2*j}, v{T+2*j+1}")
        E(nxt[12:14])
        sk = L("GS")
        A(f"s_bitcmp1_b32 s11, {3*a+u}\nv_permlane16_swap_b32 v{P}, v{P+2}\nv_permlane16_swap_b32 v{P+1}, v{P+3}\ns_cbranch_scc0 {sk}")
        A(f"buffer_store_dwordx4 {v(P,4)}, v1, {H}, s{80+u} offen offset:{1024*a} sc1")
        A.label(sk)
        E(nxt[14:])
    if u == 0: stamp((2, 3))
stamp((4, 1), (4, 3))
A("L_PUB:")
gsig()
A("L_PUB2:\ns_waitcnt vmcnt(0)"); flagstore(2)
A("s_branch L_SPART")
if OPT["dead"]:
    A("L_DEAD:\ns_barrier\ns_add_u32 s83, s83, 1\ns_cmp_lt_u32 s83, 7\ns_cbranch_scc1 L_DEAD")
    A(ldsadd(40, 32, 33)); flagstore(0); flagstore(1)
    A("s_branch L_PUB")

A("L_QKV:")
RV, MV, ONE, G = 88, 8, 76, 8
cst = f"""s_mov_b32 s70, {hx(1.4426950408889634)}
s_mov_b32 s71, {hx(1.4426950408889634)}
s_mov_b32 s72, {hx(1e-6)}
s_mov_b32 s73, {hx(1e-6)}
s_mov_b32 s74, 0xffff0000
s_mov_b32 s75, 0xffff0000
s_sub_u32 s87, s7, 15
s_lshl_b32 s87, s87, 1
s_add_u32 s87, s87, s14
s_mul_i32 s77, s87, {24*3072}
s_add_u32 s77, s77, {WS_KV}
s_lshl_b32 s78, s6, 1
s_add_u32 s78, s78, s13
s_mul_i32 s78, s78, 3072
s_add_u32 s78, s78, s77""".split("\n")
wb4 = lambda buf: 64 + 16*buf
mainloop('Q', treads('Q', 0, (2, 3, 4, 5), wb4) + cst)
rvr = lambda a: f"ds_read_b128 {v(RV+4*a,4)}, v7 offset:{64*a}"
mvr = lambda a: f"ds_read_b128 {v(MV+4*a,4)}, v7 offset:{MR-RR+64*a}"
x3 = ["v_and_b32 v75, 15, v0", "v_lshl_add_u32 v75, v75, 2, s79"] + [f"ds_read_b32 v{72+j}, v75 offset:{128+64*j}" for j in range(4)] \
   + [f"v_mov_b32 v{ONE+j}, 0x3f803f80" for j in range(4)] + [rvr(5), rvr(4)]
q0 = treads('Q', 0, (0, 1), wb2)
x3 += q0[:4] + [mvr(5), mvr(4), "s_waitcnt lgkmcnt(4)"] + q0[4:]
assert len(x3) > 23
tphase('Q', (2, 3, 4, 5), wb4, True, False, x3, {}, rows=(5, 4, 3, 2, 1, 0))
A("s_waitcnt lgkmcnt(6)")
for a in (3, 2, 1, 0): A(rvr(a)); A(mvr(a))
stamp((1, 3))
def phi2(pairs, T, dst):
    for j in range(8): A(f"v_pk_mul_f32 {v(T[j],2)}, {v(pairs[j],2)}, s[70:71]")
    for j in range(16):
        r = pairs[j//2] + (j & 1); t_ = T[j//2] + (j & 1)
        A(f"v_exp_f32 v{t_}, v{t_} clamp\nv_max_f32 v{r}, s72, v{r}")
    for j in range(8): A(f"v_pk_add_f32 {v(T[j],2)}, {v(T[j],2)}, {v(pairs[j],2)}")
    for j in range(8): A(f"v_cvt_pk_bf16_f32 v{dst[j]}, v{T[j]}, v{T[j]+1}")
prs = lambda a, j0: [acc(2*a + (j % 4)//2, j0 + j//4) + 2*(j & 1) for j in range(8)]
KVa, KVb, Za, Zb = acc(5,2), acc(5,3), acc(5,4), acc(5,5)
for a in (2, 1, 0):
    if a == 1: A("s_bitcmp1_b32 s11, 0\ns_cbranch_scc0 L_KVS\ns_waitcnt lgkmcnt(0)")
    off = lambda j: 4*(2*a + (j % 4)//2) + 2*(j & 1)
    pv = prs(a, 4); pk = prs(a, 2)
    PV = acc(2*a, 4); PK = acc(2*a, 2)
    TL = [acc(2*a+1, 4) + 2*j for j in range(4)] + [80 + 2*j for j in range(4)]
    for j in range(8): A(f"v_pk_mul_f32 {v(pv[j],2)}, {v(pv[j],2)}, {v(RV+off(j),2)}")
    for j in range(8): A(f"v_pk_fma_f32 {v(pk[j],2)}, {v(pk[j],2)}, {v(RV+off(j),2)}, s[72:73]")
    for j in range(8): A(f"v_pk_fma_f32 {v(pv[j],2)}, {v(MV+off(j),2)}, v[74:75], {v(pv[j],2)} op_sel:[0,{j//4},0] op_sel_hi:[1,{j//4},1]")
    for j in range(8): A(f"v_pk_fma_f32 {v(pk[j],2)}, {v(MV+off(j),2)}, v[72:73], {v(pk[j],2)} op_sel:[0,{j//4},0] op_sel_hi:[1,{j//4},1]")
    for j in range(8): A(f"v_cvt_pk_bf16_f32 v{PV+j}, v{pv[j]}, v{pv[j]+1}")
    phi2(pk, TL, [PK+j for j in range(8)])
    c0 = 0 if a == 2 else None
    A(mf16(KVa, PK, PV, c0)); A(mf16(KVb, PK+4, PV+4, c0)); A(mf16(Za, ONE, PK, c0)); A(mf16(Zb, ONE, PK+4, c0))
    if a: A("s_nop 3")
A("L_KVS:\ns_waitcnt lgkmcnt(0)")
G = 96
for j in (3, 7, 11): A(f"v_mov_b32 v{G+j}, {TAG}")
A("s_nop 4")
for j in range(4): A(f"v_permlane16_swap_b32 v{KVa+j}, v{KVb+j}")
for j in range(8): A(f"v_mov_b32 v{G+4*(j//3)+j%3}, v{KVa+j}")
A(f"v_cndmask_b32 v{G+10}, v{Za}, v{Zb}, s[74:75]")
for g_ in range(3): A(f"buffer_store_dwordx4 {v(G+4*g_,4)}, v6, {WS}, s78 offen offset:{1024*g_} sc1")
stamp((2, 3))
CTr = lambda p: acc(p, 2)
rsetup = cap(lambda: (A(f"""s_lshr_b32 s79, s6, 1
s_lshl_b32 s86, s79, 8
s_add_u32 s86, s86, s77
v_lshrrev_b32 v7, 4, v0
v_mul_u32_u24 v7, 3072, v7
v_and_b32 v{acc(0,5)}, 15, v0
v_lshl_add_u32 v7, v{acc(0,5)}, 4, v7
v_add_u32 v7, s86, v7"""), [A(f"v_mov_b32 v{CTr(5)+j}, " + (TAG if j % 4 == 3 else "0")) for j in range(12)],
    A("s_and_b32 s78, s6, 9\ns_add_u32 s78, s78, 2")))
tphase('Q', (0, 1), wb2, False, True, [], {0: rsetup[:11], 1: rsetup[11:] + [rsrd(a) for a in (5, 4, 3, 2)],
       2: [rsrd(1), rsrd(0), "ds_read_b128 v[80:83], v35", "ds_read_b128 v[84:87], v35 offset:64"]}, rows=(5, 4, 3, 2, 1, 0))
A("s_nop 3")
stamp((3, 1))
def rloads():
    for p in range(6):
        A(f"s_mov_b32 s86, {12288*p}")
        if p == 5: A("s_mov_b32 exec_hi, 0")
        for g_ in range(3): A(f"buffer_load_dwordx4 {v(CTr(p)+4*g_,4)}, v7, {WS}, s86 offen offset:{1024*g_} sc1")
    A("s_mov_b32 exec_hi, -1")
def rissue(t):
    if OPT["rq"] == t:
        A("s_cmp_eq_u32 s78, s4\ns_cbranch_scc0 L_NORI"); rloads(); stamp((4, 3)); A("L_NORI:")
rissue(0)
for a in (2, 1, 0):
    if a == 1: A("s_bitcmp1_b32 s11, 0\ns_cbranch_scc0 L_PUB")
    D_ = 40 + 8*a
    pq_ = prs(a, 0); cbq = lambda j: v(CB+4*(2*a + (j % 4)//2), 2)
    for j in range(8): A(f"v_pk_fma_f32 {v(pq_[j],2)}, {v(80+4*(j//4)+2*(j&1),2)}, {cbq(j)}, {v(pq_[j],2)} op_sel_hi:[1,0,1]")
    for j in range(8): A(f"v_pk_fma_f32 {v(pq_[j],2)}, {v(pq_[j],2)}, {cbq(j)}, s[72:73] op_sel:[0,1,0] op_sel_hi:[1,1,1]")
    phi2(pq_, [8+2*j for j in range(8)], [D_+j for j in range(8)])
    for hd in range(2):
        A(f"v_permlane16_swap_b32 v{D_+4*hd}, v{D_+4*hd+2}\nv_permlane16_swap_b32 v{D_+4*hd+1}, v{D_+4*hd+3}")
    A(f"buffer_store_dwordx4 {v(D_,4)}, v1, {H}, 0 offen offset:{1024*a} sc1")
    A(f"buffer_store_dwordx4 {v(D_+4,4)}, v1, {H}, s81 offen offset:{1024*a} sc1")
    rissue(3-a)
stamp((4, 1))
A("s_cmp_eq_u32 s78, s4\ns_cbranch_scc0 L_PUB")
gsig()
f_addr(9)
A(f"s_mov_b32 s88, 0\ns_waitcnt vmcnt({2*(3-OPT['rq'])})\nL_KVC:")
tagcheck(8, 64, [CTr(n//3)+4*(n%3)+3 for n in range(18)])
A(f"""v_cmp_ne_u32 vcc, 0, v8
s_add_u32 s88, s88, 1
s_cmp_gt_u32 s88, {OPT['spin']}
s_cbranch_scc1 L_KVD
s_cbranch_vccz L_KVD""")
rloads()
A("s_waitcnt vmcnt(0)\ns_branch L_KVC\nL_KVD:")
note("s88", 3)
rr = lambda p, j: CTr(p) + 4*(j//3) + j % 3
RA, RB = 12, 64
for j in range(9): A(f"v_add_f32 v{RA+j}, v{rr(0,j)}, v{rr(1,j)}")
for p in range(2, 6):
    for j in range(9): A(f"v_add_f32 v{RA+j}, v{RA+j}, v{rr(p,j)}")
for sw in (16, 32):
    for j in range(9): A(f"v_mov_b32 v{RB+j}, v{RA+j}")
    for j in range(9): A(f"v_permlane{sw}_swap_b32 v{RA+j}, v{RB+j}")
    for j in range(9): A(f"v_add_f32 v{RA+j}, v{RA+j}, v{RB+j}")
A(f"""s_lshr_b32 s86, s79, 1
s_lshl_b32 s86, s86, 3
s_add_u32 s87, s86, 2
s_add_u32 s88, s86, 4
s_add_u32 s89, s86, 6
v_mov_b32_dpp v{RA+9}, v{RA+8} row_shl:1 row_mask:0xf bank_mask:0xf""")
for j in range(4): A(f"v_cvt_pk_bf16_f32 v{RB+j}, v{RA+2*j}, v{RA+1+2*j}")
A(f"""v_cvt_pk_bf16_f32 v{RA+9}, v{RA+8}, v{RA+9}
s_bitcmp1_b32 s79, 0
s_cselect_b64 s[80:81], -1, 0
s_xor_b64 s[80:81], s[80:81], s[74:75]""")
for j in range(4): A(f"v_readlane_b32 s{70+j}, v{RA+9}, s{86+j}")
for j in range(4): A(f"v_mov_b32 v{RB+4+j}, s{70+j}")
for j in range(4): A(f"v_cndmask_b32 v{RB+8+j}, v{RB+j}, v{RB+4+j}, s[80:81]")
A(f"""s_mov_b32 exec_hi, 0
buffer_store_dwordx4 {v(RB+8,4)}, v9, {WS}, 0 offen sc1
s_mov_b32 exec_hi, -1
s_waitcnt vmcnt(1)""")
stamp((5, 3))
flagstore(2)

A("L_SPART:")
if OPT["sprio"] != OPT["prio"]: A(f"s_setprio {OPT['sprio']}")
stamp((5, 1), (3, 3))
xres_addr(1, 8); xres_load()
w2addr(4, 8, False)
A(f"""s_lshl_b32 s86, s4, 3
s_add_u32 s86, s86, 86
s_lshl_b32 s86, s86, 16
s_lshl_b32 s87, s84, 11
s_add_u32 s86, s86, s87
v_lshl_add_u32 v2, v0, 4, s86
s_mul_i32 s88, s84, 43
s_lshr_b32 s88, s88, 7
s_mul_i32 s88, s88, 23
s_lshl_b32 s87, s4, 1
s_add_u32 s88, s88, s87
s_add_u32 s88, s88, 15
s_lshl_b32 s88, s88, 12
s_add_u32 s88, s88, {WS_FLAG}
v_and_b32 v3, 7, v0
v_lshl_add_u32 v3, v3, 10, s88
s_lshl_b32 s74, s4, 13
s_add_u32 s74, s74, {WS_F}
v_lshl_add_u32 v8, v0, 4, s74
s_lshl_b32 s86, s4, 2
s_add_u32 s86, s86, {LF}
v_mov_b32 v10, s86
s_mov_b32 s72, {hx(1e-6)}
s_movk_i32 s73, 4096
s_mov_b32 s89, 0""")
if OPT["warm"]:
    assert OPT["sd"] == 8
    A("s_mov_b32 s75, 1\ns_mov_b64 exec, 0\ns_branch L_PIPE\nL_WBACK:\ns_mov_b32 s75, 0\ns_mov_b64 exec, -1")
stamp((1, 4))
if OPT['sdelay']: A(f"s_sleep {OPT['sdelay']}")
if OPT["comb"]:
    A("v_add_u32 v3, 48, v10"); spin_lds(3, 9)
else: spin_flag(3, 9, 8, 2)
note("s88", 4)
stamp((6, 1), (2, 4))
SD = OPT["sd"]
rho8()
A("s_lshl_b32 s78, s12, 2\ns_lshr_b32 s79, s12, 4")
def pqload(k):
    return [f"s_xor_b32 s86, s78, {k*65536}",
            f"buffer_load_dwordx4 {v(16+8*k,4)}, v2, {H}, s86 offen sc1",
            f"buffer_load_dwordx4 {v(20+8*k,4)}, v2, {H}, s86 offen offset:1024 sc1"]
def floads():
    for k in range(8):
        if k % 2 == 0: A(f"s_xor_b32 s86, s79, {k*1024}")
        A(f"buffer_load_dwordx4 {v(80+4*k,4)}, v8, {WS}, s86 offen offset:{1024*(k%2)} sc1")
if OPT["ffirst"]: floads()
for k in range(SD):
    if OPT["sdep"]: A(f"s_waitcnt vmcnt({OPT['sdep']-2})")
    E(pqload(k))
if OPT["ffirst"]: A(f"s_waitcnt vmcnt({2*SD})\ns_branch L_FC")
if OPT["hints"]:
    A(f"s_lshl_b32 s86, s4, 14\ns_add_u32 s86, s86, {WS_FF}\nv_lshl_add_u32 v9, v0, 10, s86")
    spin_flag(9, 11, 16)
else: A(f"s_waitcnt vmcnt({OPT['fafter']})")
A("s_branch L_FL\nL_FQ:\ns_sleep 8\nL_FL:")
floads()
A("s_waitcnt vmcnt(0)\nL_FC:\ns_add_u32 s89, s89, 1")
E(vmax(112, [80+4*k for k in range(8)]))
A(f"""v_cmp_eq_u32 vcc, -1, v112
s_cmp_gt_u32 s89, {OPT['spin']}
s_cbranch_scc1 L_FPD
s_cbranch_vccnz L_FQ
L_FPD:""")
note("s89", 4); note("s89", 1)
stamp((6, 3), (3, 4))
woloc = lambda k: (1, k) if k < 6 else (2, k-2)
def Om(k): return [mfma(128+32*(k&1)+16*r, 80+4*k, 16+8*k+4*r, 0) for r in range(2)]
def Vv(k):
    o = []
    D = [128+32*(k&1)+16*r for r in range(2)]
    nd = [((d, d+8) if k % 2 == 0 else (d+8, d)) for d in D]
    for num, den in nd: o.append(f"v_add_f32 v{den}, s72, v{den}")
    for num, den in nd: o.append(f"v_rcp_f32 v{den}, v{den}")
    for r, (num, den) in enumerate(nd):
        if OPT["spk"]:
            for j in range(4): o.append(f"v_pk_mul_f32 {v(num+2*j,2)}, {v(num+2*j,2)}, {v(den,2)} op_sel_hi:[1,0]")
        else:
            for j in range(8): o.append(f"v_mul_f32 v{num+j}, v{num+j}, v{den}")
        for j in range(4): o.append(f"v_cvt_pk_bf16_f32 v{16+8*k+4*r+j}, v{num+2*j}, v{num+2*j+1}")
    return o
def Sm(k): return [mfmaH(192+32*r+16*c, 112+8*(k&1)+4*c, 16+8*k+4*r, 0 if k <= OPT['h16'] else None, k & 1) for r in range(2) for c in range(2)]
issued = [SD]
def need(k):
    o = [f"s_waitcnt vmcnt({2*(issued[0]-1-k)})"]
    more = []
    if issued[0] < 8: more = pqload(issued[0]); issued[0] += 1
    return o, more
A('L_PIPE:')
E(w2read(112, *woloc(0), 4, False))
for k in (0, 1):
    w_, m_ = need(k); E(w_ + Om(k) + m_)
E(Vv(0))
for k in range(8):
    A("s_waitcnt lgkmcnt(0)")
    fill = (w2read(112+8*((k+1)&1), *woloc(k+1), 4, False) + Vv(k+1)) if k+1 < 8 else []
    if k == 7:
        fill = cap(lambda: (wraddr(80, False), rdaddr(4, False, 1, 88), A(f"s_lshl_b32 s86, s4, 11\ns_add_u32 s86, s86, {GB}\nv_lshl_add_u32 v9, v0, 4, s86"),
            [A(f"v_lshlrev_b32 v{112+2*j}, 16, v{12+j}\nv_and_b32 v{113+2*j}, 0xffff0000, v{12+j}") for j in range(4)]))
    NF = 16 if OPT['spk'] else 20
    if k == 7: NF = 28
    E(interleave(Sm(k), fill[:NF], NF//4))
    if k+2 < 8:
        w_, m_ = need(k+2); E(w_); E(interleave(Om(k+2), fill[NF:] + m_, 6))
    else: E(fill[NF:])
    if k == 3: stamp((4, 4))
if OPT["warm"] == 1: A("s_cmp_eq_u32 s75, 1\ns_cbranch_scc1 L_WBACK")
stamp((7, 1), (5, 4))
final(False)
stamp((6, 4))
if OPT["fin"] == 0: A("s_barrier\nds_read_b128 v[88:91], v9\nds_read_b128 v[92:95], v9 offset:1024\ns_branch L_FIN2")
else: A("s_barrier\ns_branch L_FIN2")

A("L_FINAL:")
stamp((6, 4))
A("s_barrier")
if OPT["fin"] == 1: A("ds_read_b128 v[88:91], v109\nds_read_b128 v[92:95], v109 offset:1024")
A("L_FIN2:")
stamp((7, 3), (7, 4))
rd4(48, 4)
A("s_waitcnt lgkmcnt(0)")
sum4(48)
if OPT["fin"] == 1:
    for j in range(4): A(f"v_pk_mul_f32 {v(56+2*j,2)}, {v(48+2*j,2)}, s[70:71]")
    E(interleave([f"v_exp_f32 v{56+j}, v{56+j}" for j in range(8)], [f"v_pk_mul_f32 {v(88+2*j,2)}, {v(88+2*j,2)}, {v(48+2*j,2)}" for j in range(4)], 1))
    for j in range(4): A(f"v_pk_add_f32 {v(56+2*j,2)}, {v(56+2*j,2)}, 1.0 op_sel_hi:[1,0]")
    for j in range(8): A(f"v_rcp_f32 v{48+j}, v{56+j}")
for j in range(4): A(f"v_pk_fma_f32 {v(48+2*j,2)}, {v(48+2*j,2)}, {v(88+2*j,2)}, {v(112+2*j,2)}")
for j in range(4): A(f"v_cvt_pk_bf16_f32 v{24+j}, v{48+2*j}, v{49+2*j}")
if OPT["warm"] == 2: A("s_cbranch_execz L_WBACK")
A(f"""buffer_store_dwordx4 v[24:27], v1, {OUT}, 0 offen {['', 'sc1', 'nt', 'sc0 sc1'][OPT['osc']]}
s_add_u32 s86, s2, s3
s_cmp_eq_u32 s86, 0
s_cbranch_scc0 L_NOBUMP
v_mov_b32 v2, 0
v_mov_b32 v3, {TAG}
buffer_store_dword v3, v2, {WS}, 0 offen sc1
L_NOBUMP:""")
if OPT["stamps"]:
    A("s_waitcnt vmcnt(0)")
    stamp((8, 0))
    A(f"""s_memrealtime s[68:69]
s_waitcnt lgkmcnt(0)
s_mov_b32 s101, s68""")
    if OPT["diag"]:
        A(f"""s_cmp_lg_u32 s3, {OPT['dwave']}
s_cbranch_scc1 L_END
s_sub_u32 s86, s{92+OPT['diag']}, s34
s_lshl_b32 s86, s86, 2
s_min_u32 s86, s86, 20000
L_DSPIN:
s_memrealtime s[68:69]
s_waitcnt lgkmcnt(0)
s_sub_u32 s87, s68, s101
s_sleep 2
s_cmp_lt_u32 s87, s86
s_cbranch_scc1 L_DSPIN
s_endpgm""")
    A(f"""s_lshl_b32 s86, s2, 3
s_add_u32 s86, s86, s3
s_lshl_b32 s86, s86, 6
s_add_u32 s86, s86, {WS_DBG}
v_mov_b32 v2, s86""")
    for i in range(10): A(f"v_mov_b32 v3, s{92+i}\nbuffer_store_dword v3, v2, {WS}, 0 offen offset:{4*i}")
    A(f"v_mov_b32 v3, s34\nbuffer_store_dword v3, v2, {WS}, 0 offen offset:40")
    A(f"v_mov_b32 v3, s35\nbuffer_store_dword v3, v2, {WS}, 0 offen offset:44")
A("L_END:\ns_endpgm")

lines, errs = pad(A.lines)
for e in errs: print("HAZARD:", e, file=sys.stderr)
hdr = open("cdna_kernels/%s.s.ref" % NAME).read().split("; Override launch")[0]
out = hdr + f"""; Fused single-launch kernel, emitted by my own generator script (gen/gen.py); 256 WGs x 8 waves, 1 WG per CU.
;  Phase 1: 192x192 tiles of x @ [w_gate|w_up] (GU role) or x @ [wq|wk|wv] (QKV role), K streamed through a
;    3-slot LDS ring by LDS-DMA (waves 0-1), MFMA 16x16x32 in waves 4-7. LayerNorm is applied after the GEMM:
;    r*(acc - mean*colsum(W)); row stats and column sums are computed once and shared through tagged granules.
;    GU epilogue: gelu(g)*u -> h fragments; QKV epilogue: phi(k)^T v / sum phi(k) partials, phi(q) fragments.
;  Phase 2: 64x64 output tiles: waves 0-3 y = h @ w_down (K split), waves 4-7 o = phi(q) kv / den, s = o @ wo,
;    LDS reduction, out = x + s * silu(y).
;  Hand-offs: write-through (sc1) stores, drained, then a flag line holding this launch's tag (tag = word found at
;    d_ws[0] + constant, written back at the end); readers use sc1 loads. All waits are bounded.
; @launch grid=(256,1,1) block=(512,1,1) lds={LDS}
.amdgcn_target "amdgcn-amd-amdhsa--gfx950"
.text
.globl {NAME}_kernel
.p2align 8
.type {NAME}_kernel,@function
{NAME}_kernel:
""" + render(lines) + f""".section .rodata,"a"
.p2align 6
.amdhsa_kernel {NAME}_kernel
  .amdhsa_next_free_vgpr 256
  .amdhsa_next_free_sgpr 102
  .amdhsa_accum_offset 256
  .amdhsa_group_segment_fixed_size 0
  .amdhsa_kernarg_size 80
  .amdhsa_user_sgpr_count 2
  .amdhsa_user_sgpr_kernarg_segment_ptr 1
  .amdhsa_system_sgpr_workgroup_id_x 1
.end_amdhsa_kernel
"""
open(sys.argv[1], "w").write(out)
```

```python
import sys, struct
from asmlib import *
NAME = "recurrent_scan__linear_attn_block__glu_gated_geglu__prompt"
OPT = dict(stamps=0, rot=2, prio=1, pfcode=1, spin=1<<17, thr=4, unthr=41, n7=1, ca=14, cb=22, h=5, mix=0, sub=0,
           psleep=2, ydep=5, sdep=0, w2late=0, p2map=1, stage=1, sprio=1, ydelay=-1, sdelay=0, fdelay=0, rdelay=0, xlate=0, now2=0, sd=3, apoll=0, fgate=1, rt=1, zf=1, nr=0, r0=3, lred=0, prew=0, hints=0, comb=1, fafter=0, h16=0, gate=4, ffirst=1, warm=0, nodma=0, redearly=1, xz=1, gmix=0, qmix=0, qnop=0, bpos=0, rgap=3, spk=0, diag=0, dwave=4, nrep=2, nl=4, p1=1, p2=7, osc=0, gpos=1, c2=9, yprio=2, ydrop=22, ypost=0, mord=0, adapt=1, ypk=0, nb=3, pf2=-1, drot=0, xfirst=1, nostat=0, w1pf=-9, slow=0, dead=1, qg=0, rq=1, tfrom=6, nc=0, thr2=4, nraw=6, krot=0, slo=0, shi=0, sn=4, nearly=0, e0=3, e1=6, fin=0, c1=-1, pre0=11, pe=-1, map=3, l14=1)
for a in sys.argv[2:]:
    k, v_ = a.split("="); assert k in OPT, k; OPT[k] = int(v_, 0)
def f2u(x): return struct.unpack("<I", struct.pack("<f", x))[0]
def hx(x): return "0x%08x" % f2u(x)

SLOT = 49152; XW = 24576; UPOFF = 12288; MISC = 3*SLOT; LDS = 163840
RS = MISC; RR = MISC+3072; CF = MISC+3840; MR = MISC+4608; LF = MISC+5376; GB = MISC+5632
Q = 12288
WS_RS = 0x10000; WS_CS = 0x20000; WS_FLAG = 0x300000; WS_FF = 0x60000; WS_DBG = 0x80000; WS_F = 0xC0000; WS_KV = 0x100000; WS_H = 0x800000
X="s[36:39]"; W="s[40:43]"; WS="s[44:47]"; H="s[48:51]"; WD="s[56:59]"; WO="s[60:63]"; OUT="s[64:67]"
TAG="s10"
def v(b, n=1): return f"v{b}" if n == 1 else f"v[{b}:{b+n-1}]"
def mfma(d, a, b, c=None):
    return f"v_mfma_f32_32x32x16_bf16 {v(d,16)}, {v(a,4)}, {v(b,4)}, " + ("0" if c == 0 else v(d,16))
def mfmaH(d, a, b, c, alt):
    if not OPT["h16"]: return mfma(d, a, b, c)
    return mf16(d+8*alt, a, b, c) + "\n" + mf16(d+8*alt+4, a ^ 4, b, c)
def mf16(d, a, b, c=None):
    return f"v_mfma_f32_16x16x32_bf16 {v(d,4)}, {v(a,4)}, {v(b,4)}, " + ("0" if c == 0 else v(d,4))
def bc(r): return v(r & ~1, 2), r & 1
_lab = [0]
def L(p="L"):
    _lab[0] += 1; return f"{p}_{_lab[0]}"
A = Asm()
def E(lst):
    for t in lst: A(t)
def cap(fn):
    n = len(A.lines); fn(); o = [t for _, t in A.lines[n:]]; del A.lines[n:]; return o
def stamp(*pairs):
    for i, st in pairs:
        if OPT["stamps"] == st or (OPT["stamps"] and st == 0):
            A(f"{'s_memrealtime' if (OPT['rt'] and i != 8) else 's_memtime'} s[68:69]\ns_waitcnt lgkmcnt(0)\ns_mov_b32 s{92+i}, s68")
def note(reg, st):
    if OPT["stamps"] == st: A(f"s_mov_b32 s35, {reg}")
def srd(name, lo, size, add=0):
    b = int(name[2:4])
    if add: A(f"s_add_u32 s{b}, s{lo}, {add}\ns_addc_u32 s{b+1}, s{lo+1}, 0")
    else: A(f"s_mov_b32 s{b}, s{lo}\ns_mov_b32 s{b+1}, s{lo+1}")
    A(f"s_mov_b32 s{b+2}, {size}\ns_mov_b32 s{b+3}, 0x20000")
def spin_flag(vaddr, vt, nl, kind=None, first=0):
    l1, l2 = L("POLL"), L("POLLD")
    A(f"""s_mov_b32 s88, {first}
s_mov_b64 exec, {hex((1<<nl)-1)}
{l1}:
s_and_b32 s87, s88, {OPT['nrep']-1}
s_lshl_b32 s87, s87, 7""")
    if kind: A(f"s_add_u32 s87, s87, {kind << 20}")
    A(f"""buffer_load_dword {v(vt)}, {v(vaddr)}, {WS}, s87 offen sc1
s_add_u32 s88, s88, 1
s_waitcnt vmcnt(0)
v_cmp_ne_u32 vcc, {TAG}, {v(vt)}
s_cmp_gt_u32 s88, {OPT['spin']}
s_cbranch_scc1 {l2}
s_cbranch_vccz {l2}
s_sleep {OPT['psleep']}
s_branch {l1}
{l2}:
s_mov_b64 exec, -1""")
def spin_lds(vaddr, vt, need=1):
    l1, l2 = L("LP"), L("LPD")
    A(f"""s_mov_b32 s86, 0
{l1}:
ds_read_b32 {v(vt)}, {v(vaddr)}
s_add_u32 s86, s86, 1
s_waitcnt lgkmcnt(0)
v_cmp_gt_u32 vcc, {need}, {v(vt)}
s_cmp_gt_u32 s86, {OPT['spin']*8}
s_cbranch_scc1 {l2}
s_cbranch_vccz {l2}
s_sleep 1
s_branch {l1}
{l2}:""")
def vmax(dst, regs_):
    o = []; r = list(regs_)
    if len(r) == 2: return [f"v_max_u32 v{dst}, v{r[0]}, v{r[1]}"]
    o.append(f"v_max3_u32 v{dst}, v{r[0]}, v{r[1]}, v{r[2]}"); r = r[3:]
    while r:
        if len(r) >= 2: o.append(f"v_max3_u32 v{dst}, v{dst}, v{r[0]}, v{r[1]}"); r = r[2:]
        else: o.append(f"v_max_u32 v{dst}, v{dst}, v{r[0]}"); r = r[1:]
    return o
def tagcheck(dst, tmp, regs_):
    for n, r in enumerate(regs_): A(f"v_xor_b32 v{dst if n == 0 else tmp+n}, {TAG}, v{r}")
    n = 1
    while n < len(regs_):
        if n+1 < len(regs_): A(f"v_or3_b32 v{dst}, v{dst}, v{tmp+n}, v{tmp+n+1}"); n += 2
        else: A(f"v_or_b32 v{dst}, v{dst}, v{tmp+n}"); n += 1

A(f"""s_cmp_ge_u32 s2, 256
s_cbranch_scc1 L_END
s_load_dwordx16 s[16:31], s[0:1], 0
s_load_dwordx2 s[32:33], s[0:1], 72""")
if OPT["stamps"]: A("s_memrealtime s[34:35]\ns_memtime s[68:69]")
A(f"""v_lshrrev_b32 v1, 6, v0
v_and_b32 v0, 63, v0
v_readfirstlane_b32 s3, v1
s_and_b32 s5, s2, 7
s_lshr_b32 s86, s2, 3""")
if OPT["p2map"] == 0:
    A("s_lshl_b32 s84, s5, 2\ns_lshr_b32 s87, s86, 3\ns_add_u32 s84, s84, s87\ns_and_b32 s85, s86, 7")
else:
    A("""s_lshr_b32 s84, s5, 1
s_lshl_b32 s84, s84, 3
s_lshr_b32 s87, s86, 2
s_add_u32 s84, s84, s87
s_and_b32 s85, s5, 1
s_lshl_b32 s85, s85, 2
s_and_b32 s87, s86, 3
s_add_u32 s85, s85, s87""")
A(f"""s_lshl_b32 s5, s5, 5
s_add_u32 s5, s5, s86
s_and_b32 s4, s3, 3
s_mov_b32 s12, 0
""")
if OPT["map"] == 0:
    A("""s_cmp_lt_u32 s5, 138
s_cbranch_scc0 L_BOT
s_mul_i32 s7, s5, 171
s_lshr_b32 s7, s7, 10
s_mul_i32 s86, s7, 6
s_sub_u32 s6, s5, s86
s_branch L_IDS
L_BOT:
s_cmp_ge_u32 s5, 253
s_cselect_b32 s12, 1, 0
s_cselect_b32 s86, 5, 0
s_sub_u32 s86, s5, s86
s_sub_u32 s86, s86, 138
s_mul_i32 s87, s86, 205
s_lshr_b32 s87, s87, 10
s_sub_u32 s7, 22, s87
s_mul_i32 s87, s87, 5
s_sub_u32 s6, s86, s87
s_add_u32 s6, s6, 6
""")
elif OPT["map"] == 3:
    A("""s_and_b32 s87, s2, 7
s_lshl_b32 s87, s87, 2
s_mov_b32 s88, 3703137312
s_mov_b32 s89, 14
s_lshr_b64 s[88:89], s[88:89], s87
s_bfe_u32 s87, s88, 0x40004
s_and_b32 s89, s88, 15
s_sub_u32 s88, s5, s89
s_add_u32 s87, s87, s86
s_sub_u32 s87, s87, 32
s_cmp_ge_i32 s87, s89
s_cbranch_scc1 L_LIGHT
s_cmp_lt_u32 s88, 132
s_cbranch_scc0 L_BOT
s_mul_i32 s7, s88, 171
s_lshr_b32 s7, s7, 10
s_mul_i32 s86, s7, 6
s_sub_u32 s6, s88, s86
s_branch L_FIX
L_LIGHT:
s_lshl_b32 s87, s87, 2
s_mov_b32 s88, 1139995120
s_mov_b32 s89, 11110245
s_lshr_b64 s[88:89], s[88:89], s87
s_and_b32 s6, s88, 15
s_mov_b32 s7, 14
s_cmp_eq_u32 s6, 15
s_cselect_b32 s12, 1, 0
s_cselect_b32 s6, 0, s6
s_cselect_b32 s7, 0, s7
s_branch L_IDS
L_BOT:
s_sub_u32 s86, s88, 132
s_mul_i32 s87, s86, 205
s_lshr_b32 s87, s87, 10
s_sub_u32 s7, 21, s87
s_mul_i32 s87, s87, 5
s_sub_u32 s6, s86, s87
s_add_u32 s6, s6, 6
L_FIX:
s_cmp_ge_u32 s7, 14
s_addc_u32 s7, s7, 0""")
elif OPT["map"] == 1:
    A("""s_cmp_ge_u32 s5, 253
s_cselect_b32 s12, 1, 0
s_cselect_b32 s86, 253, 0
s_sub_u32 s86, s5, s86
s_mul_i32 s7, s86, 745
s_lshr_b32 s7, s7, 13
s_mul_i32 s87, s7, 11
s_sub_u32 s6, s86, s87""")
else:
    A("""s_and_b32 s87, s2, 7
s_mul_i32 s88, s87, 30
s_add_u32 s88, s88, s86
s_sub_u32 s87, 7, s87
s_lshl1_add_u32 s87, s87, s86
s_add_u32 s87, s87, 210
s_cmp_ge_u32 s86, 30
s_cselect_b32 s86, s87, s88
s_cmp_ge_u32 s86, 253
s_cselect_b32 s12, 1, 0
s_cselect_b32 s87, 253, 0
s_sub_u32 s86, s86, s87
s_mul_i32 s7, s86, 745
s_lshr_b32 s7, s7, 13
s_mul_i32 s87, s7, 11
s_sub_u32 s6, s86, s87
s_add_u32 s87, s7, 1
s_cmp_ge_u32 s7, 14
s_cselect_b32 s7, s87, s7
s_cmp_eq_u32 s7, 23
s_cselect_b32 s7, 14, s7""")
A(f"""L_IDS:
s_mov_b32 s90, s7""")
if OPT["mix"] == 2:
    A("""s_mul_i32 s86, s7, 43
s_lshr_b32 s86, s86, 8
s_mul_i32 s87, s86, 6
s_sub_u32 s87, s7, s87
s_lshl2_add_u32 s88, s86, s87
s_lshl1_add_u32 s86, s86, s87
s_add_u32 s86, s86, 11
s_cmp_ge_u32 s87, 4
s_cselect_b32 s88, s86, s88
s_cmp_ge_u32 s7, 21
s_cselect_b32 s7, s7, s88""")
if OPT["mix"] == 1:
    A("""s_mul_i32 s86, s7, 43
s_lshr_b32 s86, s86, 7
s_sub_u32 s87, s7, s86
s_lshl_b32 s88, s86, 1
s_sub_u32 s88, s87, s88
s_add_u32 s86, s86, 15
s_cmp_eq_u32 s7, 22
s_cselect_b32 s7, s86, s87
s_cmp_eq_u32 s88, 2
s_cselect_b32 s7, s86, s7""")
A(f"""s_mul_i32 s8, s6, 192
s_min_u32 s8, s8, 1856
s_mul_i32 s9, s7, 96
s_min_u32 s9, s9, 1280
s_cmp_lt_u32 s3, 4
s_cbranch_scc1 L_LOADER""")
def kwait():
    A("s_waitcnt lgkmcnt(0)\ns_load_dword s10, s[32:33], 0")
    if OPT["stamps"]: A("s_mov_b32 s92, s68")
    srd(X, 16, 2097152)
if OPT["prio"]: A(f"s_setprio {OPT['prio']}")
if OPT["pfcode"]:
    A(f"""s_getpc_b64 s[88:89]
L_PC:
s_sub_u32 s88, s88, L_PC-{NAME}_kernel
s_subb_u32 s89, s89, 0
s_lshr_b32 s86, s2, 3
s_lshl_b32 s86, s86, 3
s_lshl_b32 s87, s4, 1
s_add_u32 s86, s86, s87
v_and_b32 v3, 1, v0
v_add_u32 v3, s86, v3
v_lshlrev_b32 v3, 7, v3
v_min_u32 v3, L_END-{NAME}_kernel, v3
global_load_dword v47, v3, s[88:89]""")
A(f"""s_lshl_b32 s86, s5, 3
s_lshl_b32 s87, s4, 1
s_add_u32 s86, s86, s87
v_lshrrev_b32 v7, 5, v0
v_add_u32 v7, s86, v7
v_and_b32 v2, 31, v0
v_lshlrev_b32 v2, 4, v2
v_lshl_add_u32 v2, v7, 10, v2""")
kwait()
if not OPT["nostat"]: A(f"""buffer_load_dwordx4 v[8:11], v2, {X}, 0 offen
buffer_load_dwordx4 v[12:15], v2, {X}, 0 offen offset:512""")
stamp((1, 2))
A("s_branch L_COMPUTE\nL_LOADER:")

def w2addr(base, T, nat):
    a_, b_, c_, d_ = T, T+1, T+2, T+3
    A(f"""v_and_b32 v{a_}, 3, v0
v_bfe_u32 v{b_}, v0, 2, 2
v_bfe_u32 v{c_}, v0, 4, 1
v_lshrrev_b32 v{d_}, 5, v0
v_lshl_add_u32 v{d_}, v{d_}, {3 if nat else 2}, v{b_}
v_lshlrev_b32 v{d_}, 7, v{d_}
v_lshrrev_b32 v{b_}, 1, v{b_}
v_lshl_add_u32 v{c_}, v{b_}, 2, v{c_}
v_and_b32 v{b_}, 1, v{a_}
v_lshl_add_u32 v{c_}, v{b_}, 1, v{c_}
v_lshl_add_u32 v{d_}, v{c_}, 4, v{d_}
v_lshrrev_b32 v{a_}, 1, v{a_}
v_lshl_add_u32 v{d_}, v{a_}, 3, v{d_}
v_add_u32 v{base}, s76, v{d_}
v_xor_b32 v{d_}, 64, v{d_}
v_add_u32 v{base+1}, s76, v{d_}
v_add_u32 v{base+2}, {2*SLOT}, v{base}
v_add_u32 v{base+3}, {2*SLOT}, v{base+1}""")
def w2read(dst, slot, blk, ab, nat=True):
    o = []
    for c in range(2):
        for sec in range(2):
            ar = ab + c + (2 if slot == 2 else 0)
            off = (SLOT if slot == 1 else 0) + blk*2048 + sec*(512 if nat else 1024)
            o.append(f"ds_read_b64_tr_b16 {v(dst+4*c+2*sec,2)}, v{ar} offset:{off}")
    return o
def xres_addr(half, T):
    A(f"""s_lshl_b32 s86, s4, 4
s_lshl_b32 s87, s84, 6
s_add_u32 s86, s86, s87
s_add_u32 s86, s86, {8*half}
s_lshl_b32 s86, s86, 10
s_lshl_b32 s87, s85, 7
s_add_u32 s86, s86, s87
v_lshrrev_b32 v{T}, 3, v0
v_lshlrev_b32 v{T}, 10, v{T}
v_and_b32 v{T+1}, 7, v0
v_lshl_add_u32 v{T}, v{T+1}, 4, v{T}
v_add_u32 v1, s86, v{T}""")
def xres_load(late=0):
    if OPT["xlate"] == late: A(f"buffer_load_dwordx4 v[12:15], v1, {X}, 0 offen")
def p2setup():
    srd(WS, 32, 0x800000); srd(H, 32, 118*65536, WS_H); srd(WD, 28, 1376*1024); srd(WO, 20, 512*1024); srd(OUT, 30, 2097152)
    A(f"""v_lshrrev_b32 v24, 3, v0
v_lshlrev_b32 v24, 10, v24
v_and_b32 v25, 7, v0
v_bfe_u32 v26, v0, 4, 1
v_lshlrev_b32 v26, 2, v26
v_xor_b32 v25, v25, v26
v_lshl_add_u32 v24, v25, 4, v24
s_lshl_b32 s86, s85, 7
v_add_u32 v4, s86, v24
s_mul_i32 s87, s4, {3*16384}
v_add_u32 v2, s87, v4
s_add_u32 s87, s4, 84
s_lshl_b32 s87, s87, 14
v_add_u32 v3, s87, v4
s_lshl_b32 s87, s4, 17
v_add_u32 v4, s87, v4
s_mul_i32 s76, s4, {Q}
s_lshl_b32 s87, s84, 11
s_mul_i32 s86, s4, {3*65536}
s_add_u32 s86, s86, s87
v_lshl_add_u32 v6, v0, 4, s86
v_bfe_u32 v24, v0, 1, 3
v_lshlrev_b32 v24, 3, v24
s_lshr_b32 s86, s4, 1
s_lshl_b32 s86, s86, 2
s_and_b32 s90, s4, 1
s_add_u32 s86, s86, s90
v_add_u32 v24, s86, v24
v_min_u32 v24, 57, v24
v_cmp_eq_u32 vcc, 56, v24
v_cndmask_b32 v24, v24, 57, vcc
v_and_b32 v25, 1, v0
v_lshl_add_u32 v24, v25, 1, v24
s_lshl_b32 s86, s4, 3
s_add_u32 s86, s86, 44
v_add_u32 v25, s86, v0
v_cmp_lt_u32 vcc, 15, v0
v_cndmask_b32 v24, v24, v25, vcc
s_mul_i32 s86, s84, 43
s_lshr_b32 s86, s86, 7
s_mul_i32 s86, s86, {23*4096}
s_add_u32 s86, s86, {WS_FLAG}
v_lshl_add_u32 v5, v24, 10, s86
s_add_u32 s86, s4, 84
s_lshl_b32 s86, s86, 16
s_add_u32 s86, s86, s87
s_cmp_lt_u32 s4, 2
s_cselect_b32 s86, s86, 0x80000000
v_lshl_add_u32 v7, v0, 4, s86""")
    w2addr(8, 24, True); xres_addr(0, 24); rho8()
    A(f"s_waitcnt lgkmcnt(0)\ns_add_u32 {TAG}, {TAG}, 0x9E3779B9")
def wfrag_addr(dst, swc, T, lab):
    A(f"""v_and_b32 v{T}, 3, v0
v_bfe_u32 v{T+1}, v0, 2, 2
v_bfe_u32 v{T+2}, v0, 4, 1
s_cmp_ge_u32 s7, 15
s_cbranch_scc1 {lab}Q
v_lshrrev_b32 v{T+3}, 4, v0
v_lshl_add_u32 v{T+3}, v{T+3}, 3, v{T+1}
v_mul_u32_u24 v{T+3}, 192, v{T+3}
v_lshl_add_u32 v{T}, v{T}, 3, v{T+3}
v_add_u32 v{T}, {XW}, v{T}
s_mul_i32 s87, {swc}, 3
v_xor_b32 v{T+3}, s87, v{T+2}
v_lshl_add_u32 v{dst}, v{T+3}, 5, v{T}
s_add_u32 s87, s87, 1
v_xor_b32 v{T+3}, s87, v{T+2}
v_lshl_add_u32 v{dst+1}, v{T+3}, 5, v{T}
s_branch {lab}D
{lab}Q:
v_lshrrev_b32 v{T+3}, 5, v0
v_mul_u32_u24 v{T+3}, 3072, v{T+3}
v_lshl_add_u32 v{T+3}, v{T+1}, 7, v{T+3}
v_mul_u32_u24 v{T+4}, {UPOFF+32}, v{T+2}
v_lshrrev_b32 v{T+1}, 1, v{T+1}
v_xor_b32 v{T+1}, {swc}, v{T+1}
v_lshl_add_u32 v{T+4}, v{T+1}, 6, v{T+4}
v_lshl_add_u32 v{T}, v{T}, 3, v{T+3}
v_add_u32 v{T}, {XW}, v{T}
v_add_u32 v{dst}, v{T}, v{T+4}
v_xor_b32 v{dst+1}, 32, v{dst}
{lab}D:""")
def woff(role, s_, j, sec):
    if role == 'G':
        jj = j % 3
        return jj & 1, s_*6144 + sec*768 + (j//3)*UPOFF + (64 if jj == 2 else 0)
    return j & 1, s_*6144 + (j//2)*1024 + sec*512
def ksoff(kd): return 12*(kd % 7) + kd//7
S2R = [('o',6+k,2,4+k) for k in range(2)] + [('d',12+k,2,k) for k in range(4)]
S0R = [('d',16+k,0,k) for k in range(6)]
items = [('d',k,2,k) for k in range(6)] + [('d',6+k,2,k) for k in range(6)] + S2R + [('o',k,1,k) for k in range(6)] + S0R
N7 = OPT["n7"]
def rho8():
    if OPT["krot"]: A("s_add_u32 s12, s84, s85\ns_and_b32 s12, s12, 3\ns_lshl_b32 s12, s12, 15")
    else: A("s_mov_b32 s12, 0")
def ktable():
    if OPT["krot"]:
        A("""s_lshl1_add_u32 s86, s85, s84
s_mul_i32 s87, s86, 37
s_lshr_b32 s87, s87, 8
s_mul_i32 s87, s87, 7
s_sub_u32 s86, s86, s87""")
    else: A("s_mov_b32 s86, 0")
    A(f"s_mul_i32 s77, s86, {12*16384}")
    for i in range(1, 7):
        A(f"s_add_u32 s{77+i}, s{76+i}, {12*16384}\ns_cmp_eq_u32 s{77+i}, {84*16384}\ns_cselect_b32 s{77+i}, 0, s{77+i}")
def w2ops(kind, k, dst, thr=None):
    nm = kind + str(k)
    if kind == 'o': va, S_, so = 4, WO, f"s_xor_b32 s86, s12, {k*16384}"
    elif k < 21: va, S_, so = 2, WD, f"s_add_u32 s86, s{77 + k % 7}, {(k//7)*16384}"
    else: va, S_, so = 3, WD, "s_mov_b32 s86, 0"
    if isinstance(dst, tuple):
        pre = f"s_add_u32 m0, s76, {dst[0]*SLOT + dst[1]*2048}\n{so}\ns_add_u32 s87, s86, 7168"
        i1 = f"buffer_load_dwordx4 v{va}, {S_}, s86 offen lds"; i2 = f"buffer_load_dwordx4 v{va}, {S_}, s87 offen offset:1024 lds"
    else:
        pre = f"{so}\ns_add_u32 s87, s86, 8192"
        i1 = f"buffer_load_dwordx4 {v(dst,4)}, v{va}, {S_}, s86 offen"; i2 = f"buffer_load_dwordx4 {v(dst+4,4)}, v{va}, {S_}, s87 offen"
    tw = f"s_waitcnt vmcnt({thr})\n" if thr is not None else ""
    return [pre, f"VM {nm}a|{tw}{i1}", f"VM {nm}|{tw}{i2}"]
NE = OPT["nearly"]
def rawblocks():
    steps = list(range(OPT["e0"], OPT["e1"])); n = len(steps)
    for i, st in enumerate(steps):
        its = range(NE*i//n, NE*(i+1)//n)
        if not len(its): continue
        sk = L("RW")
        A(f"s_cmp_eq_u32 s83, {st}\ns_cbranch_scc0 {sk}")
        for k in its:
            for t in w2ops('o', k, 192+8*k): A(t.split("|")[-1])
        A.label(sk)
def w2item(n):
    for t in w2ops(items[n][0], items[n][1], items[n][2:]): A(t.split("|")[-1])

A(f"""s_cmp_ge_u32 s3, 2
s_cbranch_scc1 L_SIDE
s_add_u32 s79, s6, s90""")
R_ = OPT["drot"] or OPT["rot"]
A(f"s_and_b32 s79, s79, {R_-1}\ns_lshl_b32 s79, s79, { {1:0, 2:2, 4:1, 8:0}[R_] }")
A(f"""v_lshrrev_b32 v24, 3, v0
v_and_b32 v25, 7, v0
v_lshrrev_b32 v26, 4, v0
v_xor_b32 v27, v25, v26
s_mul_i32 s86, s4, 96
s_add_u32 s86, s86, s8
s_lshl_b32 s86, s86, 10
v_lshl_add_u32 v16, v24, 10, s86
v_lshl_add_u32 v16, v27, 4, v16
v_xor_b32 v17, 64, v16
v_add_u32 v18, {2*7168}, v16
v_add_u32 v19, {3*7168}, v17
v_add_u32 v17, 7168, v17
s_mul_i32 s74, s4, 12288
""")
XG = ["s70", "s71", "s72"]; WL = ["s52", "s53", "s54", "s55"]; WG = ["s73", "s77", "s14", "s15"]
sh = {2: 1, 4: 2, 8: 0, 1: 0}[R_]
if OPT["sub"]:
    A(f"""s_lshr_b32 s86, s90, {sh}
s_mul_i32 s87, s86, 43
s_lshr_b32 s87, s87, 7
s_mul_i32 s87, s87, 3
s_sub_u32 s86, s86, s87
""")
else:
    A("s_mov_b32 s86, 0")
A("""s_lshl_b32 s70, s86, 12
s_add_u32 s71, s70, 4096
s_cmp_eq_u32 s71, 12288
s_cselect_b32 s71, 0, s71
s_add_u32 s72, s70, s71
s_sub_u32 s72, 12288, s72""")
XN = ["s11", "s13", "s91"]
A(f"s_lshl_b32 s86, s4, 4\ns_add_u32 s86, s86, s6\ns_cmp_eq_u32 s86, 10\ns_cselect_b32 s88, {8192 if OPT['xz'] else 0}, 0\ns_cmp_eq_u32 s12, 1\ns_cselect_b32 s88, {65536 if OPT['xz'] else 0}, s88")
for g in range(3): A(f"s_cmp_lt_u32 {XG[g]}, s88\ns_cselect_b32 {XN[g]}, 0, 2097152")
A("s_lshl_b32 s80, s79, 7\ns_mov_b32 s88, s74")
kwait()
stamp((1, 2))
def issue_head():
    A(f"""s_lshl_b32 s80, s79, 7
s_mul_i32 s81, s79, s82
s_lshl_b32 s81, s81, 2
s_add_u32 s88, s78, s74
s_add_u32 s89, s78, s75""")
ORDER = ["x0", "w0", "x1", "w1", "x2", "w2", "w3"]
def issue_part(lo, hi, order=None):
    n = 0
    for it in (order or ORDER[lo:hi]):
        g = int(it[1])
        if it[0] == 'x':
            A(f"s_add_u32 m0, s88, {XG[g]}\ns_lshl3_add_u32 s86, {XG[g]}, s80\ns_mov_b32 s38, {XN[g]}")
            for q in range(4): A(f"buffer_load_dwordx4 v{16+q}, {X}, s86 offen offset:{1024*q} lds")
            n += 4
        else:
            A(f"s_add_u32 m0, s89, {WL[g]}\ns_add_u32 s87, s81, {WG[g]}")
            for j in range(3): A(f"buffer_load_dwordx4 v{20+j}, {W}, s87 offen offset:{1024*j} lds")
            n += 3
    return n
def issue_tail():
    A(f"""s_add_u32 s79, s79, 1
s_and_b32 s79, s79, 7
s_add_u32 s78, s78, {SLOT}
s_cmp_eq_u32 s78, {3*SLOT}
s_cselect_b32 s78, 0, s78""")
HH = OPT["h"]
issue_part(0, 0, ["x0", "x1", "x2"][:3 if OPT["xfirst"] == 1 else 1])
A(f"""s_mul_i32 s75, s4, {UPOFF}
s_add_u32 s75, s75, {XW}
s_mov_b32 s43, 0x20000
s_mov_b32 s78, 0
s_cmp_ge_u32 s7, 15
s_cbranch_scc1 L_LQKV
s_mov_b32 s42, {512*2752}
s_mov_b32 s82, {16*2752}
s_movk_i32 s86, 0x1556
s_movk_i32 s87, 2752
s_lshl_b32 s88, s9, 1
s_cmp_eq_u32 s7, 14
s_cselect_b32 s89, {8 if OPT['zf'] else 0}, 0
s_cmp_eq_u32 s12, 1
s_cselect_b32 s89, {12 if OPT['zf'] else 0}, s89
v_mov_b32 v28, 0x80000000""")
for i in range(3):
    A(f"""v_add_u32 v24, {64*i}, v0
v_mul_u32_u24 v25, s86, v24
v_lshrrev_b32 v25, 16, v25
v_mul_u32_u24 v26, 12, v25
v_sub_u32 v24, v24, v26
v_lshrrev_b32 v26, 2, v25
v_and_b32 v26, 2, v26
v_xor_b32 v24, v24, v26
v_cmp_gt_u32 vcc, s89, v24
v_mul_u32_u24 v25, s87, v25
v_lshl_add_u32 v24, v24, 4, v25
v_add_u32 v24, s88, v24
v_subrev_u32 v24, {1024*i}, v24
v_cndmask_b32 v{20+i}, v24, v28, vcc""")
A(f"""s_branch L_LGO
L_LQKV:
s_mov_b32 s42, {512*3072}
s_mov_b32 s82, {16*3072}
s_sub_u32 s87, s7, 15
s_lshl_b32 s87, s87, 7
s_mul_i32 s88, s4, {8*3072}
s_add_u32 s87, s87, s88
v_mul_u32_u24 v24, 3072, v24
v_and_b32 v26, 1, v26
v_lshlrev_b32 v26, 2, v26
v_xor_b32 v25, v25, v26
s_lshl_b32 s88, s4, 1
v_xor_b32 v25, s88, v25
v_lshl_add_u32 v20, v25, 4, v24
v_add_u32 v20, s87, v20
v_mov_b32 v21, v20
v_mov_b32 v22, v20
L_LGO:""")
A(f"s_lshr_b32 s87, s6, {sh}" if OPT["sub"] else "s_mov_b32 s87, 0")
for g in range(4):
    A(f"s_add_u32 s86, s87, {g}\ns_and_b32 s86, s86, 3\ns_mul_i32 {WL[g]}, s86, 3072\ns_mul_i32 {WG[g]}, s86, s82")
A(f"""s_cmp_eq_u32 s4, 1
s_cselect_b32 s40, s26, s24
s_cselect_b32 s41, s27, s25
s_cmp_ge_u32 s7, 15
s_cselect_b32 s40, s18, s40
s_cselect_b32 s41, s19, s41""")
issue_head(); issue_part(0, 0, ["w0", "w1", "w2", "w3"] if OPT["xfirst"] == 1 else ["w0", "x1", "w1", "x2", "w2", "w3"]); issue_tail()
stamp((2, 2))
issue_head(); n_ = issue_part(0, HH)
p2setup()
A(f"s_waitcnt vmcnt({n_})")
stamp((1, 1), (3, 2))
A("s_barrier\ns_mov_b32 s83, 0\nL_LLOOP:")
rawblocks()
if OPT['nodma']: issue_tail(); issue_head()
else:
    if HH < 7: issue_part(HH, 7)
    issue_tail(); issue_head(); issue_part(0, HH)
A(f"""s_add_u32 s83, s83, 1
s_waitcnt vmcnt({n_})
s_barrier
s_cmp_lt_u32 s83, 6
s_cbranch_scc1 L_LLOOP""")
stamp((2, 1), (4, 2))
if HH < 7: issue_part(HH, 7)
A("s_mov_b32 s38, 2097152")
ktable()
for n in range(N7): w2item(n)
A(f"s_waitcnt vmcnt({2*N7})\ns_barrier")
A("s_branch L_W2")

def f_addr(dst):
    A(f"""s_sub_u32 s86, s7, 15
s_lshl_b32 s86, s86, 12
s_and_b32 s87, s6, 1
s_lshl_b32 s87, s87, 11
s_add_u32 s86, s86, s87
s_and_b32 s87, s6, 2
s_lshl_b32 s87, s87, 9
s_add_u32 s86, s86, s87
s_lshr_b32 s87, s6, 2
s_lshl_b32 s87, s87, 9
s_add_u32 s86, s86, s87
s_lshl1_add_u32 s91, s86, {WS_FF}
s_add_u32 s86, s86, {WS_F}
v_lshl_add_u32 v{dst}, v0, 4, s86""")
assert OPT["rot"] in (2, 4, 8)
A(f"""L_SIDE:
s_add_u32 s13, s6, s90
s_and_b32 s13, s13, {OPT['rot']-1}
s_lshl_b32 s13, s13, { {2:2, 4:1, 8:0}[OPT['rot']] }
s_lshr_b32 s14, s6, { {2:1, 4:2, 8:3}[OPT['rot']] }
s_add_u32 s15, s13, s14
s_cmp_ge_u32 s6, 8
s_cselect_b32 s14, 99, s14
s_cmp_eq_u32 s12, 1
s_cselect_b32 s14, 99, s14
s_and_b32 s77, s4, 1""")
wfrag_addr(62, "s77", 24, "L_SA")
A(f"""s_cmp_eq_u32 s14, 1
s_cselect_b32 s86, {SLOT}, 0
s_cmp_eq_u32 s14, 2
s_cselect_b32 s86, {2*SLOT}, s86
v_add_u32 v62, s86, v62
v_add_u32 v63, s86, v63
v_and_b32 v24, 16, v0
v_cmp_ne_u32 s[72:73], 0, v24
v_and_b32 v24, 31, v0
s_mul_i32 s86, s77, 384
s_add_u32 s86, s86, {CF}
v_lshrrev_b32 v25, 4, v24
v_mul_u32_u24 v25, 128, v25
v_lshl_add_u32 v17, v24, 2, v25
v_add_u32 v17, s86, v17
s_mul_i32 s87, s77, 96
v_add_u32 v21, s87, v0
v_add3_u32 v22, v24, s87, 64
s_lshl_b32 s86, s8, 4
s_add_u32 s86, s86, {WS_RS}
v_lshl_add_u32 v19, v21, 4, s86
v_lshl_add_u32 v20, v22, 4, s86
s_lshl_b32 s86, s7, 13
s_lshl_b32 s87, s77, 9
s_add_u32 s86, s86, s87
s_add_u32 s86, s86, {WS_CS}
s_lshl_b32 s87, s15, 10
s_add_u32 s74, s86, s87
v_lshlrev_b32 v23, 4, v24
v_lshrrev_b32 v25, 5, v0
v_lshl_add_u32 v18, v25, 12, v23
v_add_u32 v18, s86, v18""")
for r in range(52, 56): A(f"v_mov_b32 v{r}, 0x3f803f80")
def w1prefetch():
    A(f"""s_cmp_eq_u32 s77, 0
s_cselect_b32 s40, s24, s26
s_cselect_b32 s41, s25, s27
s_mov_b32 s42, {1376*1024}
s_mov_b32 s43, 0x20000
s_mul_i32 s86, s5, 43
v_min_u32 v16, 42, v0
v_add_u32 v16, s86, v16
v_lshlrev_b32 v16, 7, v16
buffer_load_dword v58, v16, {W}, 0 offen
s_mov_b32 s52, s18
s_mov_b32 s53, s19
s_mov_b32 s54, {512*3072}
s_mov_b32 s55, 0x20000
s_lshl_b32 s86, s5, 1
s_add_u32 s86, s86, s77
s_mul_i32 s86, s86, 24
v_min_u32 v16, 23, v0
v_add_u32 v16, s86, v16
v_lshlrev_b32 v16, 7, v16
buffer_load_dword v57, v16, s[52:55], 0 offen""")
kwait()
if OPT['w1pf'] == -2: w1prefetch()
p2setup()
A(f"""s_cmp_lt_u32 s7, 15
s_cbranch_scc1 L_NOCLR
s_cmp_ge_u32 s6, 8
s_cbranch_scc1 L_NOCLR""")
f_addr(24)
A(f"""v_mov_b32 v28, -1
v_mov_b32 v29, -1
v_mov_b32 v30, -1
v_mov_b32 v31, -1
s_mov_b32 exec_hi, 0
buffer_store_dwordx4 v[28:31], v24, {WS}, 0 offen sc1
s_mov_b32 exec_hi, -1""")
if OPT["prew"]: A(f"s_sub_u32 s86, {TAG}, 1\nv_mov_b32 v32, s86\nv_lshlrev_b32 v24, 4, v0\nbuffer_store_dwordx4 v[32:35], v24, {WS}, s91 offen sc1")
A(f"""L_NOCLR:
s_mov_b32 s83, 0
s_waitcnt vmcnt(0)""")
if OPT["w1pf"] == -1: w1prefetch()
A("L_SLOOP:\ns_barrier")
if OPT["w1pf"] >= 0:
    A(f"s_cmp_eq_u32 s83, {OPT['w1pf']}\ns_cbranch_scc0 L_NOPF1"); w1prefetch(); A("L_NOPF1:")
if OPT["w2late"] >= 0:
    A(f"""s_cmp_eq_u32 s83, {OPT['w2late']}
s_cbranch_scc0 L_NOPF2
s_mul_i32 s86, s5, 59
s_mul_i32 s87, s77, 30
s_add_u32 s86, s86, s87
v_min_u32 v16, 29, v0
v_add_u32 v16, s86, v16
v_lshlrev_b32 v16, 7, v16
buffer_load_dword v60, v16, {WD}, 0 offen
v_subrev_u32 v16, {1376*1024}, v16
buffer_load_dword v61, v16, {WO}, 0 offen
L_NOPF2:""")
if OPT["pf2"] >= 0:
    A(f"""s_cmp_eq_u32 s83, {OPT['pf2']}
s_cbranch_scc0 L_NOPF3
s_getpc_b64 s[88:89]
L_PC2:
s_sub_u32 s88, s88, L_PC2-{NAME}_kernel
s_subb_u32 s89, s89, 0
s_lshr_b32 s86, s2, 3
s_lshl_b32 s86, s86, 3
s_lshl_b32 s87, s77, 2
s_add_u32 s86, s86, s87
v_and_b32 v16, 3, v0
v_add_u32 v16, s86, v16
v_lshlrev_b32 v16, 7, v16
v_min_u32 v16, L_END-{NAME}_kernel, v16
global_load_dword v59, v16, s[88:89]
L_NOPF3:""")
A("s_cmp_eq_u32 s83, s14\ns_cbranch_scc0 L_LNOCS")
for t in range(2):
    A(f"s_cmp_ge_u32 s7, 15\ns_cbranch_scc1 L_CSQ{t}")
    for role in "GQ":
        if role == 'Q': A(f"s_branch L_CSM{t}\nL_CSQ{t}:")
        for j in range(6):
            for sec in range(2):
                par, off = woff(role, t, j, sec)
                A(f"ds_read_b64_tr_b16 {v(24+4*j+2*sec,2)}, v{62+par} offset:{off}")
    A(f"L_CSM{t}:\ns_waitcnt lgkmcnt(0)")
    for j in range(6): A(mf16(72+4*j, 52, 24+4*j, 0 if t == 0 else None))
A(f"v_mov_b32 v51, {TAG}")
for u in range(3): A(f"v_cndmask_b32 v{48+u}, v{72+4*u}, v{84+4*u}, s[72:73]")
A(f"""s_mov_b32 exec_hi, 0
buffer_store_dwordx4 v[48:51], v23, {WS}, s74 offen sc1
s_mov_b32 exec_hi, -1
L_LNOCS:""")
rawblocks()
A(f"""s_add_u32 s83, s83, 1
s_cmp_lt_u32 s83, 6
s_cbranch_scc1 L_SLOOP""")
def st_loads():
    for p in range(4): A(f"buffer_load_dwordx4 {v(32+4*p,4)}, v18, {WS}, 0 offen offset:{1024*p} sc1")
    A(f"buffer_load_dwordx4 v[48:51], v19, {WS}, 0 offen sc1\nbuffer_load_dwordx4 v[52:55], v20, {WS}, 0 offen sc1")
st_loads()
A("s_barrier")
stamp((2, 1), (4, 2))
ktable()
for n in range(N7): w2item(n)
A(f"s_mov_b32 s88, 0\ns_waitcnt vmcnt({2*N7})")
A("L_SPC:")
tagcheck(24, 24, [35+4*p for p in range(6)])
A(f"""v_cmp_ne_u32 vcc, 0, v24
s_add_u32 s88, s88, 1
s_cmp_gt_u32 s88, {OPT['spin']}
s_cbranch_scc1 L_SPCD
s_cbranch_vccz L_SPCD""")
st_loads()
A(f"""s_waitcnt vmcnt(0)
s_branch L_SPC
L_SPCD:
s_mov_b32 s86, {RS}
s_mov_b32 s87, {RR}
v_lshl_add_u32 v24, v21, 4, s86
v_lshl_add_u32 v25, v22, 4, s86
v_lshl_add_u32 v21, v21, 2, s87
v_lshl_add_u32 v22, v22, 2, s87
ds_write_b128 v24, v[48:51]
ds_write_b128 v25, v[52:55]
ds_write_b32 v21, v49
ds_write_b32 v22, v53
v_mul_f32 v24, v48, v49
v_mul_f32 v25, v52, v53
ds_write_b32 v21, v24 offset:{MR-RR}
ds_write_b32 v22, v25 offset:{MR-RR}""")
note("s88", 2)
for p in range(1, 4):
    for u in range(3): A(f"v_add_f32 v{32+u}, v{32+u}, v{32+4*p+u}")
for u in range(3): A(f"v_mov_b32 v{36+u}, v{32+u}")
for u in range(3): A(f"v_permlane32_swap_b32 v{32+u}, v{36+u}")
for u in range(3): A(f"v_add_f32 v{32+u}, v{32+u}, v{36+u}")
for u in range(3): A(f"ds_write_b32 v17, v{32+u} offset:{64*u}")
A("s_waitcnt lgkmcnt(0)\ns_barrier")

A("L_W2:")
stamp((3, 1), (6, 2))
AB = 8
vm = [x for n in range(N7) for x in (f"d{n}a", f"d{n}")]
def emit(Y):
    for t in Y:
        if callable(t): t()
        elif t.startswith("VM "):
            nm, ins = t[3:].split("|"); vm.append(nm); A(ins)
        elif t.startswith("WAIT "):
            nms, lg = t[5:].split("|")
            A(f"s_waitcnt vmcnt({len(vm)-1-max(vm.index(x) for x in nms.split(','))})" + (" lgkmcnt(0)" if lg else ""))
        elif t.startswith("STAMP "): stamp((int(t[6:]), 4))
        else: A(t)
A(f"v_lshlrev_b32 v84, 4, v0\nv_add_u32 v84, s76, v84")
def wr(reg, slot, blk):
    off = slot*SLOT + blk*2048
    A(f"ds_write_b128 v84, {v(reg,4)} offset:{off}\nds_write_b128 v84, {v(reg+4,4)} offset:{off+1024}")
def rd6(base, sl):
    for kk in range(6):
        E(w2read(base+8*kk, sl, kk, AB))
        if kk % 3 == 2: A("s_waitcnt lgkmcnt(0)")
NB = OPT["nb"]; NC = OPT["nc"]; NIT = len(items); NW = OPT['nraw']; NL = 12 - NW - NB - NC; assert NL >= 0 and NW <= 8
cnt = [N7]
def TH():
    cnt[0] += 1
    return OPT["thr"] if (OPT["thr"] and cnt[0] > OPT["tfrom"]) else None
it = lambda n: w2ops(items[n][0], items[n][1], items[n][2:], TH())
Z = []
for n in range(N7, 6): Z += it(n)
order2 = [12+2, 12+3, 12+4, 12+5, 12+0, 12+1]
for n in range(12):
    Z += [f"WAIT d{n}|"] + w2read(96+8*n, 2, n % 6, AB) + ["s_waitcnt lgkmcnt(0)"]
    Z += it(n+6 if n < 6 else order2[n-6])
assert NE <= min(NW, 6)
PE = OPT['pe']
rawop = lambda n: w2ops(items[18+n][0], items[18+n][1], 192+8*n, TH())
for n in range(NE, NW - max(PE, 0)): Z += rawop(n)
XREL = [f"VM x|buffer_load_dwordx4 v[12:15], v1, {X}, 0 offen"], [f"v_mov_b32 v80, {LF+40}", lambda: spin_lds(80, 81, 4)]
if PE < 0: Z += XREL[0] + XREL[1]
emit(Z)
stamp((4, 1), (1, 3), (1, 4))
def rdaddr(dst, isy_src, half, T):
    base = 0 if isy_src else SLOT
    t3 = 2*SLOT + (0 if isy_src else 8192)
    A(f"""s_and_b32 s70, s4, 2
s_lshl_b32 s70, s70, 12
s_add_u32 s70, s70, {base}
s_add_u32 s71, s70, 4096
s_cmp_ge_u32 s4, 2
s_cselect_b32 s71, {t3}, s71
v_mov_b32 v{T}, s70
v_mov_b32 v{T+1}, s71
v_and_b32 v{T+2}, 4, v0
v_cmp_ne_u32 vcc, 0, v{T+2}
v_and_b32 v{T+2}, 7, v0
v_lshrrev_b32 v{T+3}, 3, v0
v_cndmask_b32 v{T}, v{T}, v{T+1}, vcc
v_add_u32 v{T+3}, {8*half}, v{T+3}
v_lshlrev_b32 v{T+1}, 1, v{T+2}
v_xor_b32 v{T+3}, v{T+3}, v{T+1}
s_and_b32 s70, s4, 1
s_lshl_b32 s70, s70, 8
v_lshl_add_u32 v{T}, v{T+3}, 4, v{T}
v_and_b32 v{T+1}, 2, v0
v_lshl_add_u32 v{T}, v{T+1}, 8, v{T}
v_and_b32 v{T+1}, 1, v0
v_lshl_add_u32 v{T}, v{T+1}, 11, v{T}
v_add_u32 v{dst}, s70, v{T}""")
def wraddr(B_, isy):
    A(f"""v_lshrrev_b32 v{B_}, 3, v0
v_and_b32 v{B_}, 4, v{B_}
v_xor_b32 v{B_}, v{B_}, v0
v_lshlrev_b32 v{B_}, 4, v{B_}
v_xor_b32 v{B_+1}, 32, v{B_}
v_xor_b32 v{B_+2}, 0x80, v{B_}
v_xor_b32 v{B_+3}, 0xa0, v{B_}""")
    for j in range(4): A(f"v_add_u32 v{B_+j}, s76, v{B_+j}")
    t3 = 2*SLOT + (0 if isy else 8192)
    A(f"v_add_u32 v{B_+4}, {t3}, v{B_+2}\nv_add_u32 v{B_+5}, {t3}, v{B_+3}")
def wrpart(B_, isy):
    for q in range(4):
        for jq in range(4):
            if q < 3: A(f"ds_write_b128 v{B_ + 2*(q&1) + (jq>>1)}, {v(192+16*q+4*jq,4)} offset:{(0 if isy else SLOT) + q*4096 + jq*1024}")
            else: A(f"ds_write_b128 v{B_ + 4 + (jq>>1)}, {v(192+16*q+4*jq,4)} offset:{jq*1024}")
def rd4(dst, va):
    for src in range(4):
        for e in range(2): A(f"ds_read_b128 {v(dst+8*src+4*e,4)}, v{va} offset:{Q*src+1024*e}")
def sum4(d):
    for j in range(4): A(f"v_pk_add_f32 {v(d+2*j,2)}, {v(d+2*j,2)}, {v(d+8+2*j,2)}\nv_pk_add_f32 {v(d+16+2*j,2)}, {v(d+16+2*j,2)}, {v(d+24+2*j,2)}")
    for j in range(4): A(f"v_pk_add_f32 {v(d+2*j,2)}, {v(d+2*j,2)}, {v(d+16+2*j,2)}")
STG = OPT["stage"]
def sgo(va, vd): return f"s_lshl_b32 s86, s4, 2\ns_add_u32 s86, s86, {LF+48}\nv_mov_b32 v{va}, s86\nv_mov_b32 v{vd}, 1\nds_write_b32 v{va}, v{vd}"
assert STG
note("1", 4)
def hload(kd):
    va = 6 if kd < 21 else 7
    b = 16 + 8*(kd % 8)
    return [f"s_lshl2_add_u32 s86, s{77 + kd % 7}, {(kd//7)*65536}" if kd < 21 else "s_mov_b32 s86, 0",
            f"VM h{kd}a|buffer_load_dwordx4 {v(b,4)}, v{va}, {H}, s86 offen sc1",
            f"VM h{kd}|buffer_load_dwordx4 {v(b+4,4)}, v{va}, {H}, s86 offen offset:1024 sc1"]
w2late = lambda n, t=None: w2ops(items[n][0], items[n][1], items[n][2:], t)
PR = lambda c: 82 if c < 2 else 120
def ipoll(c):
    nl = (14 if OPT['l14'] else 16) if c <= 1 else 24
    return [f"VM p{c}|v_mov_b32 v{PR(c)}, {TAG}\ns_mov_b32 s87, {c << 20}\ns_mov_b64 exec, {hex((1<<nl)-1)}\nbuffer_load_dword v{PR(c)}, v5, {WS}, s87 offen sc1\ns_mov_b64 exec, -1"]
res_loc = lambda kd: (2, kd-12) if kd < 16 else (0, kd-16)
YD = OPT["ydep"]; assert YD <= 7
PRE = cap(lambda: (wraddr(96, True), rdaddr(102, True, 0, 104), A("v_xor_b32 v103, 0x80, v102"), rdaddr(108, False, 0, 104),
    A(f"s_lshl_b32 s70, s4, 11\ns_add_u32 s70, s70, {GB}\nv_lshl_add_u32 v109, v0, 4, s70\nv_mov_b32 v110, {LF+36}\nv_mov_b32 v111, 1"),
    [A(f"v_lshlrev_b32 v{112+2*j}, 16, v{12+j}\nv_and_b32 v{113+2*j}, 0xffff0000, v{12+j}") for j in range(4)],
    A(f"s_mov_b32 s70, {hx(-1.4426950408889634)}\ns_mov_b32 s71, s70")))
Y = []
if PE < 0:
    Y += ipoll(0)
    for n in range(NB): Y += w2late(18+NW+n, OPT['thr2'] or None)
    if NW: Y += ['WAIT x|', lambda: [wr(192+8*n, *items[18+n][2:]) for n in range(NW//2)]]
    Y += ["WAIT p0|", f"v_cmp_ne_u32 vcc, {TAG}, v82\ns_cbranch_vccnz L_YR0\nL_YB0:", lambda: stamp((5, 1), (2, 3), (2, 4))]
    for kd in range(YD): Y += hload(kd)
    for n in range(NC): Y += w2late(18+NW+NB+n, OPT['thr2'] or None)
    if NW: Y += [lambda: [wr(192+8*n, *items[18+n][2:]) for n in range(NW//2, NW)], 's_waitcnt lgkmcnt(0)']
else:
    Y += ipoll(0)
    for n in range(NW-PE, NW): Y += rawop(n)
    Y += XREL[0] + ["WAIT p0|", f"v_cmp_ne_u32 vcc, {TAG}, v82\ns_cbranch_vccnz L_YR0\nL_YB0:", lambda: stamp((5, 1), (2, 3), (2, 4))]
    for kd in range(YD):
        hl = hload(kd)
        if OPT["thr2"]: hl = [hl[0], f"s_waitcnt vmcnt({OPT['thr2']})"] + hl[1:]
        Y += hl
    Y += XREL[1] + ["WAIT x|", lambda: [wr(192+8*n, *items[18+n][2:]) for n in range(NW//2)]]
    for n in range(NB+NC): Y += w2late(18+NW+n, OPT['thr2'] or None)
    Y += [lambda: [wr(192+8*n, *items[18+n][2:]) for n in range(NW//2, NW)], 's_waitcnt lgkmcnt(0)']
if OPT["gate"]: Y += [f"v_mov_b32 v80, {LF+32}", lambda: spin_lds(80, 81, OPT["gate"])]
Y.append(f"s_setprio {OPT['yprio']}")
for kd in range(22):
    wf = 96+8*kd if kd < 12 else 80+8*(kd & 1)
    hb = 16 + 8*(kd % 8)
    need = [f"h{kd}"]
    C1_ = OPT['c1'] if OPT['c1'] >= 0 else 7-YD
    chk = 1 if kd == C1_ else (2 if kd == OPT['c2'] else 0)
    if chk: need.append(f"p{chk}")
    if chk == 2 and NE < 6: need.append("o5")
    if 16 <= kd+1 < 22: need.append(f"d{kd+1}")
    Y.append("WAIT " + ",".join(need) + ("|L" if kd >= 12 else "|"))
    if chk:
        Y.append(f"v_cmp_ne_u32 vcc, {TAG}, v{PR(chk)}\ns_cbranch_vccnz L_YR{chk}\nL_YB{chk}:")
        if chk == 2: Y.append(sgo(120, 121))
    ms = [mfma(192+32*r+16*c, wf+4*c, hb+4*r, 0 if kd == 0 else None) for r in range(2) for c in range(2)]
    fill = []
    if STG and kd == OPT["p1"]: fill += ipoll(1)
    if STG and kd == OPT["p2"]: fill += ipoll(2)
    for k_ in range(YD, 22):
        if max(k_-YD, [0, C1_, OPT['c2'], OPT['c2']][k_//7]) == kd: fill += hload(k_)
    if kd < NL: fill += w2late(NIT-NL+kd)
    if 12 <= kd+1 < 22: fill += w2read(80+8*((kd+1) & 1), *res_loc(kd+1), AB)
    P0_ = OPT['pre0']
    if kd in (P0_, P0_+1, P0_+2): fill = fill + PRE[(kd-P0_)*37:(kd-P0_+1)*37]
    Y += interleave(ms, fill, 3 if len(fill) <= 12 else 6)
    if kd+1 == OPT["ydrop"]: Y.append(f"s_setprio {OPT['ypost']}")
    if kd == 0: Y.append("STAMP 3")
    if kd == 10: Y.append("STAMP 4")
assert OPT["p1"] < C1_ <= OPT["p2"] < OPT["c2"] <= 13 and C1_ <= 6
emit(Y)
stamp((6, 1), (3, 3), (5, 4))
def final(isy):
    if OPT["fin"] == 1:
        if isy:
            wrpart(96, True); A("v_mov_b32 v4, v102\ns_waitcnt lgkmcnt(0)")
        else:
            wrpart(80, False)
            A("s_setprio 0")
            rdaddr(10, True, 1, 88)
            A(f"""v_xor_b32 v5, 0x80, v4
v_mov_b32 v6, {LF+36}
v_mov_b32 v7, 1
s_mov_b32 s70, {hx(-1.4426950408889634)}
s_mov_b32 s71, s70
s_mov_b64 exec, 1
s_waitcnt lgkmcnt(0)
ds_add_u32 v6, v7
s_mov_b64 exec, -1""")
            spin_lds(6, 7, 4)
            rd4(16, 5); A("s_waitcnt lgkmcnt(4)"); rd4(48, 4)
            for d, w_ in ((16, 8), (48, 2)):
                A(f"s_waitcnt lgkmcnt({w_})")
                for j in range(8): A(f"v_add_f32 v{d+j}, v{d+j}, v{d+8+j}\nv_add_f32 v{d+16+j}, v{d+16+j}, v{d+24+j}")
                for j in range(8): A(f"v_add_f32 v{(d if d == 16 else 88)+j}, v{d+j}, v{d+16+j}")
                if d == 16: A("ds_write_b128 v9, v[16:19]\nds_write_b128 v9, v[20:23] offset:1024")
            A("v_mov_b32 v4, v10\ns_waitcnt lgkmcnt(0)")
        return
    if isy:
        wrpart(96, True)
        A("""v_mov_b32 v4, v108
s_mov_b64 exec, 1
s_waitcnt lgkmcnt(0)
ds_add_u32 v110, v111
s_mov_b64 exec, -1""")
        spin_lds(110, 6, 4)
        rd4(16, 103); A("s_waitcnt lgkmcnt(4)"); rd4(48, 102)
        for d, w_ in ((16, 8), (48, 2)):
            A(f"s_waitcnt lgkmcnt({w_})")
            if OPT["ypk"]:
                sum4(d)
                for j in range(4): A(f"v_pk_mul_f32 {v(d+8+2*j,2)}, {v(d+2*j,2)}, s[70:71]")
            else:
                for j in range(8): A(f"v_add_f32 v{d+j}, v{d+j}, v{d+8+j}\nv_add_f32 v{d+16+j}, v{d+16+j}, v{d+24+j}")
                for j in range(8): A(f"v_add_f32 v{d+j}, v{d+j}, v{d+16+j}")
                for j in range(8): A(f"v_mul_f32 v{d+8+j}, s70, v{d+j}")
            for j in range(8): A(f"v_exp_f32 v{d+8+j}, v{d+8+j}")
            for j in range(8): A(f"v_add_f32 v{d+8+j}, 1.0, v{d+8+j}")
            for j in range(8): A(f"v_rcp_f32 v{d+8+j}, v{d+8+j}")
            for j in range(8): A(f"v_mul_f32 v{(d if d == 16 else 88)+j}, v{d+j}, v{d+8+j}")
            if d == 16:
                A("ds_write_b128 v109, v[16:19]\nds_write_b128 v109, v[20:23] offset:1024")
    else:
        wrpart(80, False)
    A("s_waitcnt lgkmcnt(0)")
final(True)
A("s_branch L_FINAL")
if STG:
    for c in (0, 1, 2):
        A(f"L_YR{c}:"); note(str(10+c), 4); spin_flag(5, PR(c), (14 if OPT['l14'] else 16) if c <= 1 else 24, c, 1); A(f"s_branch L_YB{c}")
A("L_COMPUTE:")
srd(WS, 32, 0x800000); srd(H, 32, 118*65536, WS_H); srd(OUT, 30, 2097152)
ACC = 112
for r in range(ACC, 256): A(f"v_mov_b32 v{r}, 0")
A(f"""v_lshlrev_b32 v16, 2, v0
v_add_u32 v16, {LF}, v16
v_mov_b32 v17, 0
s_mov_b64 exec, 0xffff
ds_write_b32 v16, v17
s_mov_b64 exec, -1
s_lshr_b32 s13, s4, 1
s_and_b32 s14, s4, 1
s_movk_i32 s11, 0x1ff
s_lshl_b32 s86, s13, 4
s_add_u32 s86, s86, s6
s_cmp_eq_u32 s86, 10
s_cselect_b32 s11, 0x1c0, s11
s_mul_i32 s86, s14, 0x1b6
s_cmp_eq_u32 s7, 14
s_cselect_b32 s86, s86, 0x1ff
s_and_b32 s11, s11, s86
s_cmp_eq_u32 s12, 1
s_cselect_b32 s11, 0, s11
s_mul_i32 s76, s4, {Q}
s_lshr_b32 s86, s9, 4
s_mul_i32 s87, s14, 3
s_add_u32 s86, s86, s87
s_lshl_b32 s87, s7, 1
s_add_u32 s87, s87, s14
s_lshl1_add_u32 s87, s87, 26
s_and_b32 s88, s11, 0xdb
s_cmp_ge_u32 s7, 15
s_cselect_b32 s86, s87, s86
s_cselect_b32 s11, s88, s11
s_lshl_b32 s86, s86, 6
s_lshr_b32 s87, s8, 5
s_add_u32 s86, s86, s87
s_mul_i32 s87, s13, 3
s_add_u32 s86, s86, s87
s_lshl_b32 s86, s86, 10
v_lshl_add_u32 v1, v0, 4, s86
s_mov_b32 s80, 0
s_mov_b32 s81, 65536
s_mov_b32 s82, 131072
v_and_b32 v16, 15, v0
v_lshrrev_b32 v17, 4, v0
v_bfe_u32 v18, v0, 1, 3
v_xor_b32 v18, v18, v17
s_mul_i32 s86, s13, {96*128}
v_lshl_add_u32 v16, v16, 7, s86
v_lshl_add_u32 v2, v18, 4, v16
v_xor_b32 v3, 64, v2""")
wfrag_addr(4, "s14", 16, "L_CA")
A(f"""s_mul_i32 s86, s6, 23
s_add_u32 s86, s86, s7
s_cmp_eq_u32 s12, 1
s_cselect_b32 s86, 255, s86
s_lshl_b32 s86, s86, 2
s_add_u32 s86, s86, s4
s_lshl_b32 s86, s86, 10
s_add_u32 s15, s86, {WS_FLAG}""")
stamp((2, 2))
A("s_waitcnt vmcnt(0)")
stamp((5, 2))
for j in range(8):
    A(f"v_lshlrev_b32 v{16+2*j}, 16, v{8+j}\nv_and_b32 v{17+2*j}, 0xffff0000, v{8+j}")
def red32(r, t):
    for sh_ in (8, 4, 2, 1):
        A(f"v_add_f32_dpp v{r}, v{r}, v{r} row_ror:{sh_} row_mask:0xf bank_mask:0xf")
    A(f"v_mov_b32 v{t}, v{r}\nv_permlane16_swap_b32 v{r}, v{t}\nv_add_f32 v{r}, v{r}, v{t}")
for j in range(4): A(f"v_pk_add_f32 {v(8+2*j,2)}, {v(16+2*j,2)}, {v(24+2*j,2)}")
A("v_pk_add_f32 v[8:9], v[8:9], v[12:13]\nv_pk_add_f32 v[10:11], v[10:11], v[14:15]\nv_pk_add_f32 v[8:9], v[8:9], v[10:11]\nv_add_f32 v8, v8, v9")
red32(8, 9)
A(f"v_mul_f32 v8, {hx(-1/512)}, v8")
for j in range(8): A(f"v_pk_add_f32 {v(16+2*j,2)}, {v(16+2*j,2)}, v[8:9] op_sel_hi:[1,0]")
A("v_pk_mul_f32 v[10:11], v[16:17], v[16:17]\nv_pk_mul_f32 v[12:13], v[18:19], v[18:19]")
for j in range(2, 8): A(f"v_pk_fma_f32 {v(10+2*(j&1),2)}, {v(16+2*j,2)}, {v(16+2*j,2)}, {v(10+2*(j&1),2)}")
A("v_pk_add_f32 v[10:11], v[10:11], v[12:13]\nv_add_f32 v10, v10, v11")
red32(10, 9)
A(f"""v_mul_f32 v10, {hx(1/512)}, v10
v_cvt_pk_bf16_f32 v10, v10, v10
v_and_b32 v10, 0xffff0000, v10
v_add_f32 v10, {hx(1e-5)}, v10
v_cvt_pk_bf16_f32 v10, v10, v10
v_and_b32 v10, 0xffff0000, v10
v_sqrt_f32 v10, v10
v_cvt_pk_bf16_f32 v32, v8, v8
v_cvt_pk_bf16_f32 v10, v10, v10
v_and_b32 v10, 0xffff0000, v10
v_and_b32 v32, 0xffff0000, v32
v_rcp_f32 v33, v10
v_mul_f32 v34, v10, v10
v_lshlrev_b32 v7, 4, v7
v_add_u32 v7, {WS_RS}, v7
s_waitcnt lgkmcnt(0)
s_add_u32 {TAG}, {TAG}, 0x9E3779B9
v_mov_b32 v35, {TAG}
v_mov_b32 v36, {TAG}
v_mov_b32 v37, {TAG}
v_mov_b32 v38, {TAG}
v_mov_b32 v39, {TAG}
v_lshlrev_b32 v6, 4, v0
s_mov_b32 s78, 0
s_mov_b32 s79, {SLOT}
s_mov_b32 s83, 0""")
stamp((1, 1), (3, 2))
A(f"""s_barrier
s_mov_b32 exec_lo, 1
s_mov_b32 exec_hi, 1
buffer_store_dwordx4 v[32:35], v7, {WS}, 0 offen sc1
s_mov_b64 exec, -1""")
if OPT["prew"]:
    for kind in ((0, 1, 2) if OPT["stage"] else (0, 2)):
        sk = L("PW")
        if kind == 0 and not OPT["stage"]: A(f"s_cmp_lt_u32 s7, 15\ns_cbranch_scc1 {sk}")
        A(f"s_add_u32 s86, s15, {kind << 20}\nbuffer_store_dwordx4 v[28:31], v6, {WS}, s86 offen sc1")
        A.label(sk)
stamp((2, 1), (4, 2))
A("s_cmp_ge_u32 s7, 15\ns_cbranch_scc1 L_QKV")
if OPT["dead"]: A("s_or_b32 s86, s11, s12\ns_cbranch_scc0 L_DEAD")

XB = lambda buf, a: (40 if buf == 0 else 8) + 4*a
WF = lambda buf, j: 64 + 24*buf + 4*j
acc = lambda a, j: ACC + 4*(6*a+j)
CB = 88
def reads(role, s_):
    w_ = []
    for j in range(6):
        for sec in range(2):
            par, off = woff(role, s_, j, sec)
            w_.append(f"ds_read_b64_tr_b16 {v(WF(s_,j)+2*sec,2)}, v{4+par} offset:{off}")
    o = []
    for a in range(6): o += [f"ds_read_b128 {v(XB(s_,a),4)}, v{2+s_} offset:{2048*a}"] + w_[2*a:2*a+2]
    return o
def mm(role, wb, a, j, xb=1):
    return mf16(acc(a,j), WF(wb,j), XB(xb,a)) if (role == 'G' or j < 2) else mf16(acc(a,j), XB(xb,a), WF(wb,j))
def grp(role, buf, a): return [mm(role, buf, a, j, buf) for j in range(6)]
def spread(ms, fill, num, den):
    o = []; f = list(fill); nr = 0
    for i, m in enumerate(ms):
        o.append(m)
        k = ((i+1)*num)//den - (i*num)//den
        for _ in range(k):
            if f:
                x = f.pop(0)
                if x.startswith("ds_read"):
                    nr += 1
                    if nr == 13: o.append("s_waitcnt lgkmcnt(6)")
                o.append(x)
    assert not f
    return o
def treads(role, st, js, wb):
    buf = st & 1
    xs_ = [f"ds_read_b128 {v(XB(buf,a),4)}, v{2+buf} offset:{2048*a + (SLOT if st >= 2 else 0)}" for a in range(6)]
    ws_ = []
    for i, j in enumerate(js):
        for sec in range(2):
            par, off = woff(role, buf, j, sec)
            ws_.append(f"ds_read_b64_tr_b16 {v(wb(buf)+4*i+2*sec,2)}, v{(32 if st >= 2 else 4)+par} offset:{off}")
    return ws_[:4] + xs_ + ws_[4:]
def ldsadd(off, va, vd): return f"v_mov_b32 v{va}, {LF+off}\nv_mov_b32 v{vd}, 1\ns_mov_b64 exec, 1\nds_add_u32 v{va}, v{vd}\ns_mov_b64 exec, -1"
def tphase(role, js, wb, first, last, nxt, extra, rows=range(6), start3=0):
    for st in range(4):
        buf = st & 1
        A("s_waitcnt lgkmcnt(0)")
        if first and st == 1: A("s_barrier")
        ms = []
        for a in (rows if st == 3 else range(6)):
            for i, j in enumerate(js):
                w_, x_ = wb(buf)+4*i, XB(buf, a)
                ms.append(mf16(acc(a,j), w_, x_) if (role == 'G' or j < 2) else mf16(acc(a,j), x_, w_))
        fill = (treads(role, st+1, js, wb) if st < 3 else nxt) + extra.get(st, [])
        if last and st == 3: fill = [ldsadd(40, 32, 33)] + fill
        E(interleave(ms, fill, max(1, -(-len(fill)//(len(ms)-1)))))
def mainloop(role, pre):
    lp, ex = f"L_ML{role}", f"L_MX{role}"
    allm = lambda buf: [m + ('\ns_nop 7' if OPT['slow'] and n_ % OPT['slow'] == 0 else '') for n_, m in enumerate([m for a in range(6) for m in grp(role, buf, a)])]
    def coarse():
        if OPT["shi"]:
            sk = L("SL"); A(f"s_sub_u32 s87, s83, {OPT['slo']}\ns_cmp_lt_u32 s87, {OPT['shi']-OPT['slo']}\ns_cbranch_scc0 {sk}")
            for _ in range(OPT["sn"]): A("s_nop 15")
            A.label(sk)
    r0 = reads(role, 0); E(r0[:12]); A("s_waitcnt lgkmcnt(6)"); E(r0[12:])
    A.label(lp)
    coarse()
    A("s_waitcnt lgkmcnt(0)")
    sal = f"""s_add_u32 s78, s78, 1
s_cmp_eq_u32 s78, 3
s_cselect_b32 s86, {-2*SLOT & 0xffffffff}, s79
s_cselect_b32 s78, 0, s78
s_add_u32 s83, s83, 1
s_cmp_eq_u32 s83, 6""".split("\n") + [f"v_add_u32 v{r}, s86, v{r}" for r in (2, 4, 5, 3)]
    E(spread(allm(0), reads(role, 1) + sal, OPT["rgap"]+2, OPT["rgap"]+3))
    A(f"s_waitcnt lgkmcnt(0)\ns_barrier\ns_cbranch_scc1 {ex}")
    E(spread(allm(1), reads(role, 0), OPT["rgap"], 4))
    A(f"s_branch {lp}")
    A.label(ex)
    com = ["s_waitcnt vmcnt(0)", f"v_add_u32 v32, {SLOT}, v4", f"v_add_u32 v33, {SLOT}, v5", "v_and_b32 v34, 15, v0",
           f"s_mul_i32 s86, s13, {96*16}", f"s_add_u32 s86, s86, {RS}", "v_lshl_add_u32 v34, v34, 4, s86",
           "v_lshrrev_b32 v7, 4, v0", "s_mul_i32 s79, s14, 384", f"s_add_u32 s79, s79, {CF}", "v_lshl_add_u32 v35, v7, 4, s79",
           f"s_mul_i32 s86, s13, {96*4}", f"s_add_u32 s86, s86, {RR}", "v_lshl_add_u32 v7, v7, 4, s86"]
    E(interleave(allm(1), pre + com, 2))

def flagstore(kind):
    m = (1 << (8*OPT["nrep"])) - 1
    A(f"s_add_u32 s86, s15, {kind << 20}\ns_mov_b64 exec, {hex(m) if m < (1<<32) else -1}\nbuffer_store_dwordx4 v[36:39], v6, {WS}, s86 offen sc1\ns_mov_b64 exec, -1")
def gsig():
    if OPT["gate"]: A(ldsadd(32, 2, 3))
rsrd = lambda a: f"ds_read_b128 {v(CB+4*a,4)}, v34 offset:{256*a}"
C1 = -2.0*0.7978845608028654*1.4426950408889634
cst = []
for a in range(6):
    b = CB+4*a
    cst += [f"v_mul_f32 v{b+3}, {hx(C1)}, v{b+1}", f"v_mul_f32 v{b+1}, v{b+1}, v{b+1}",
            f"v_mul_f32 v{b+1}, {hx(0.044715)}, v{b+1}", f"v_mul_f32 v{b+1}, v{b+1}, v{b+3}"]
wb2 = lambda buf: 64 + 8*buf
mainloop('G', treads('G', 0, (0, 3), wb2))
def tregs(u, a):
    return (8 + 8*(a & 1), 24 + 4*(a & 1), [acc(2*a + j//2, u) + 2*(j & 1) for j in range(4)],
            [acc(2*a + j//2, u+3) + 2*(j & 1) for j in range(4)], [CB+4*(2*a + j//2) for j in range(4)])
def stA(u, a):
    T, P, gp, up, cb = tregs(u, a)
    return ([f"v_pk_fma_f32 {v(gp[j],2)}, {v(80+2*(j&1),2)}, {v(cb[j],2)}, {v(gp[j],2)} op_sel_hi:[1,0,1]" for j in range(4)]
          + [f"v_pk_mul_f32 {v(T+2*j,2)}, {v(gp[j],2)}, {v(gp[j],2)}" for j in range(4)]
          + [f"v_pk_fma_f32 {v(T+2*j,2)}, {v(T+2*j,2)}, {v(cb[j],2)}, {v(cb[j]+2,2)} op_sel:[0,1,1] op_sel_hi:[1,1,1]" for j in range(4)]
          + [f"v_pk_mul_f32 {v(T+2*j,2)}, {v(T+2*j,2)}, {v(gp[j],2)}" for j in range(4)])
for u in range(3):
    crd = [f"ds_read_b128 v[80:83], v35 offset:{64*u}", f"ds_read_b128 v[84:87], v35 offset:{64*(u+3)}"]
    ex_ = {1: [rsrd(a) for a in range(4)], 2: [rsrd(4), rsrd(5)] + crd, 3: cst} if u == 0 else {0: crd}
    tphase('G', (u, u+3), wb2, u == 0, u == 2, treads('G', 0, (u+1, u+4), wb2) if u < 2 else [], ex_)
    if u: A("s_waitcnt vmcnt(0)"); flagstore(u-1)
    else: A("s_nop 3")
    if u == 0: stamp((1, 3))
    if u == 2: stamp((3, 1))
    E(stA(u, 0))
    for a in range(3):
        T, P, gp, up, cb = tregs(u, a)
        E(interleave([f"v_exp_f32 v{T+j}, v{T+j}" for j in range(8)],
            [f"v_pk_fma_f32 {v(up[j],2)}, {v(84+2*(j&1),2)}, {v(cb[j],2)}, {v(up[j],2)} op_sel_hi:[1,0,1]" for j in range(4)]
          + [f"v_pk_mul_f32 {v(gp[j],2)}, {v(gp[j],2)}, {v(up[j],2)}" for j in range(4)], 1))
        for j in range(4): A(f"v_pk_fma_f32 {v(T+2*j,2)}, {v(T+2*j,2)}, {v(cb[j]+2,2)}, {v(cb[j]+2,2)} op_sel_hi:[1,0,0]")
        nxt = stA(u, a+1) if a < 2 else []
        E(interleave([f"v_rcp_f32 v{T+j}, v{T+j}" for j in range(8)], nxt[:12], 2))
        for j in range(4): A(f"v_pk_mul_f32 {v(T+2*j,2)}, {v(T+2*j,2)}, {v(gp[j],2)}")
        for j in (0, 2, 1, 3): A(f"v_cvt_pk_bf16_f32 v{P+j}, v{T+2*j}, v{T+2*j+1}")
        E(nxt[12:14])
        sk = L("GS")
        A(f"s_bitcmp1_b32 s11, {3*a+u}\nv_permlane16_swap_b32 v{P}, v{P+2}\nv_permlane16_swap_b32 v{P+1}, v{P+3}\ns_cbranch_scc0 {sk}")
        A(f"buffer_store_dwordx4 {v(P,4)}, v1, {H}, s{80+u} offen offset:{1024*a} sc1")
        A.label(sk)
        E(nxt[14:])
    if u == 0: stamp((2, 3))
stamp((4, 1), (4, 3))
A("L_PUB:")
gsig()
A("L_PUB2:\ns_waitcnt vmcnt(0)"); flagstore(2)
A("s_branch L_SPART")
if OPT["dead"]:
    A("L_DEAD:\ns_barrier\ns_add_u32 s83, s83, 1\ns_cmp_lt_u32 s83, 7\ns_cbranch_scc1 L_DEAD")
    A(ldsadd(40, 32, 33)); flagstore(0); flagstore(1)
    A("s_branch L_PUB")

A("L_QKV:")
RV, MV, ONE, G = 88, 8, 76, 8
cst = f"""s_mov_b32 s70, {hx(1.4426950408889634)}
s_mov_b32 s71, {hx(1.4426950408889634)}
s_mov_b32 s72, {hx(1e-6)}
s_mov_b32 s73, {hx(1e-6)}
s_mov_b32 s74, 0xffff0000
s_mov_b32 s75, 0xffff0000
s_sub_u32 s87, s7, 15
s_lshl_b32 s87, s87, 1
s_add_u32 s87, s87, s14
s_mul_i32 s77, s87, {24*3072}
s_add_u32 s77, s77, {WS_KV}
s_lshl_b32 s78, s6, 1
s_add_u32 s78, s78, s13
s_mul_i32 s78, s78, 3072
s_add_u32 s78, s78, s77""".split("\n")
wb4 = lambda buf: 64 + 16*buf
mainloop('Q', treads('Q', 0, (2, 3, 4, 5), wb4) + cst)
rvr = lambda a: f"ds_read_b128 {v(RV+4*a,4)}, v7 offset:{64*a}"
mvr = lambda a: f"ds_read_b128 {v(MV+4*a,4)}, v7 offset:{MR-RR+64*a}"
x3 = ["v_and_b32 v75, 15, v0", "v_lshl_add_u32 v75, v75, 2, s79"] + [f"ds_read_b32 v{72+j}, v75 offset:{128+64*j}" for j in range(4)] \
   + [f"v_mov_b32 v{ONE+j}, 0x3f803f80" for j in range(4)] + [rvr(5), rvr(4)]
q0 = treads('Q', 0, (0, 1), wb2)
x3 += q0[:4] + [mvr(5), mvr(4), "s_waitcnt lgkmcnt(4)"] + q0[4:]
assert len(x3) > 23
tphase('Q', (2, 3, 4, 5), wb4, True, False, x3, {}, rows=(5, 4, 3, 2, 1, 0))
A("s_waitcnt lgkmcnt(6)")
for a in (3, 2, 1, 0): A(rvr(a)); A(mvr(a))
stamp((1, 3))
def phi2(pairs, T, dst):
    for j in range(8): A(f"v_pk_mul_f32 {v(T[j],2)}, {v(pairs[j],2)}, s[70:71]")
    for j in range(16):
        r = pairs[j//2] + (j & 1); t_ = T[j//2] + (j & 1)
        A(f"v_exp_f32 v{t_}, v{t_} clamp\nv_max_f32 v{r}, s72, v{r}")
    for j in range(8): A(f"v_pk_add_f32 {v(T[j],2)}, {v(T[j],2)}, {v(pairs[j],2)}")
    for j in range(8): A(f"v_cvt_pk_bf16_f32 v{dst[j]}, v{T[j]}, v{T[j]+1}")
prs = lambda a, j0: [acc(2*a + (j % 4)//2, j0 + j//4) + 2*(j & 1) for j in range(8)]
KVa, KVb, Za, Zb = acc(5,2), acc(5,3), acc(5,4), acc(5,5)
for a in (2, 1, 0):
    if a == 1: A("s_bitcmp1_b32 s11, 0\ns_cbranch_scc0 L_KVS\ns_waitcnt lgkmcnt(0)")
    off = lambda j: 4*(2*a + (j % 4)//2) + 2*(j & 1)
    pv = prs(a, 4); pk = prs(a, 2)
    PV = acc(2*a, 4); PK = acc(2*a, 2)
    TL = [acc(2*a+1, 4) + 2*j for j in range(4)] + [80 + 2*j for j in range(4)]
    for j in range(8): A(f"v_pk_mul_f32 {v(pv[j],2)}, {v(pv[j],2)}, {v(RV+off(j),2)}")
    for j in range(8): A(f"v_pk_fma_f32 {v(pk[j],2)}, {v(pk[j],2)}, {v(RV+off(j),2)}, s[72:73]")
    for j in range(8): A(f"v_pk_fma_f32 {v(pv[j],2)}, {v(MV+off(j),2)}, v[74:75], {v(pv[j],2)} op_sel:[0,{j//4},0] op_sel_hi:[1,{j//4},1]")
    for j in range(8): A(f"v_pk_fma_f32 {v(pk[j],2)}, {v(MV+off(j),2)}, v[72:73], {v(pk[j],2)} op_sel:[0,{j//4},0] op_sel_hi:[1,{j//4},1]")
    for j in range(8): A(f"v_cvt_pk_bf16_f32 v{PV+j}, v{pv[j]}, v{pv[j]+1}")
    phi2(pk, TL, [PK+j for j in range(8)])
    c0 = 0 if a == 2 else None
    A(mf16(KVa, PK, PV, c0)); A(mf16(KVb, PK+4, PV+4, c0)); A(mf16(Za, ONE, PK, c0)); A(mf16(Zb, ONE, PK+4, c0))
    if a: A("s_nop 3")
A("L_KVS:\ns_waitcnt lgkmcnt(0)")
G = 96
for j in (3, 7, 11): A(f"v_mov_b32 v{G+j}, {TAG}")
A("s_nop 4")
for j in range(4): A(f"v_permlane16_swap_b32 v{KVa+j}, v{KVb+j}")
for j in range(8): A(f"v_mov_b32 v{G+4*(j//3)+j%3}, v{KVa+j}")
A(f"v_cndmask_b32 v{G+10}, v{Za}, v{Zb}, s[74:75]")
for g_ in range(3): A(f"buffer_store_dwordx4 {v(G+4*g_,4)}, v6, {WS}, s78 offen offset:{1024*g_} sc1")
stamp((2, 3))
CTr = lambda p: acc(p, 2)
rsetup = cap(lambda: (A(f"""s_lshr_b32 s79, s6, 1
s_lshl_b32 s86, s79, 8
s_add_u32 s86, s86, s77
v_lshrrev_b32 v7, 4, v0
v_mul_u32_u24 v7, 3072, v7
v_and_b32 v{acc(0,5)}, 15, v0
v_lshl_add_u32 v7, v{acc(0,5)}, 4, v7
v_add_u32 v7, s86, v7"""), [A(f"v_mov_b32 v{CTr(5)+j}, " + (TAG if j % 4 == 3 else "0")) for j in range(12)],
    A("s_and_b32 s78, s6, 9\ns_add_u32 s78, s78, 2")))
tphase('Q', (0, 1), wb2, False, True, [], {0: rsetup[:11], 1: rsetup[11:] + [rsrd(a) for a in (5, 4, 3, 2)],
       2: [rsrd(1), rsrd(0), "ds_read_b128 v[80:83], v35", "ds_read_b128 v[84:87], v35 offset:64"]}, rows=(5, 4, 3, 2, 1, 0))
A("s_nop 3")
stamp((3, 1))
def rloads():
    for p in range(6):
        A(f"s_mov_b32 s86, {12288*p}")
        if p == 5: A("s_mov_b32 exec_hi, 0")
        for g_ in range(3): A(f"buffer_load_dwordx4 {v(CTr(p)+4*g_,4)}, v7, {WS}, s86 offen offset:{1024*g_} sc1")
    A("s_mov_b32 exec_hi, -1")
def rissue(t):
    if OPT["rq"] == t:
        A("s_cmp_eq_u32 s78, s4\ns_cbranch_scc0 L_NORI"); rloads(); stamp((4, 3)); A("L_NORI:")
rissue(0)
for a in (2, 1, 0):
    if a == 1: A("s_bitcmp1_b32 s11, 0\ns_cbranch_scc0 L_PUB")
    D_ = 40 + 8*a
    pq_ = prs(a, 0); cbq = lambda j: v(CB+4*(2*a + (j % 4)//2), 2)
    for j in range(8): A(f"v_pk_fma_f32 {v(pq_[j],2)}, {v(80+4*(j//4)+2*(j&1),2)}, {cbq(j)}, {v(pq_[j],2)} op_sel_hi:[1,0,1]")
    for j in range(8): A(f"v_pk_fma_f32 {v(pq_[j],2)}, {v(pq_[j],2)}, {cbq(j)}, s[72:73] op_sel:[0,1,0] op_sel_hi:[1,1,1]")
    phi2(pq_, [8+2*j for j in range(8)], [D_+j for j in range(8)])
    for hd in range(2):
        A(f"v_permlane16_swap_b32 v{D_+4*hd}, v{D_+4*hd+2}\nv_permlane16_swap_b32 v{D_+4*hd+1}, v{D_+4*hd+3}")
    A(f"buffer_store_dwordx4 {v(D_,4)}, v1, {H}, 0 offen offset:{1024*a} sc1")
    A(f"buffer_store_dwordx4 {v(D_+4,4)}, v1, {H}, s81 offen offset:{1024*a} sc1")
    rissue(3-a)
stamp((4, 1))
A("s_cmp_eq_u32 s78, s4\ns_cbranch_scc0 L_PUB")
gsig()
f_addr(9)
A(f"s_mov_b32 s88, 0\ns_waitcnt vmcnt({2*(3-OPT['rq'])})\nL_KVC:")
tagcheck(8, 64, [CTr(n//3)+4*(n%3)+3 for n in range(18)])
A(f"""v_cmp_ne_u32 vcc, 0, v8
s_add_u32 s88, s88, 1
s_cmp_gt_u32 s88, {OPT['spin']}
s_cbranch_scc1 L_KVD
s_cbranch_vccz L_KVD""")
rloads()
A("s_waitcnt vmcnt(0)\ns_branch L_KVC\nL_KVD:")
note("s88", 3)
rr = lambda p, j: CTr(p) + 4*(j//3) + j % 3
RA, RB = 12, 64
for j in range(9): A(f"v_add_f32 v{RA+j}, v{rr(0,j)}, v{rr(1,j)}")
for p in range(2, 6):
    for j in range(9): A(f"v_add_f32 v{RA+j}, v{RA+j}, v{rr(p,j)}")
for sw in (16, 32):
    for j in range(9): A(f"v_mov_b32 v{RB+j}, v{RA+j}")
    for j in range(9): A(f"v_permlane{sw}_swap_b32 v{RA+j}, v{RB+j}")
    for j in range(9): A(f"v_add_f32 v{RA+j}, v{RA+j}, v{RB+j}")
A(f"""s_lshr_b32 s86, s79, 1
s_lshl_b32 s86, s86, 3
s_add_u32 s87, s86, 2
s_add_u32 s88, s86, 4
s_add_u32 s89, s86, 6
v_mov_b32_dpp v{RA+9}, v{RA+8} row_shl:1 row_mask:0xf bank_mask:0xf""")
for j in range(4): A(f"v_cvt_pk_bf16_f32 v{RB+j}, v{RA+2*j}, v{RA+1+2*j}")
A(f"""v_cvt_pk_bf16_f32 v{RA+9}, v{RA+8}, v{RA+9}
s_bitcmp1_b32 s79, 0
s_cselect_b64 s[80:81], -1, 0
s_xor_b64 s[80:81], s[80:81], s[74:75]""")
for j in range(4): A(f"v_readlane_b32 s{70+j}, v{RA+9}, s{86+j}")
for j in range(4): A(f"v_mov_b32 v{RB+4+j}, s{70+j}")
for j in range(4): A(f"v_cndmask_b32 v{RB+8+j}, v{RB+j}, v{RB+4+j}, s[80:81]")
A(f"""s_mov_b32 exec_hi, 0
buffer_store_dwordx4 {v(RB+8,4)}, v9, {WS}, 0 offen sc1
s_mov_b32 exec_hi, -1
s_waitcnt vmcnt(1)""")
stamp((5, 3))
flagstore(2)

A("L_SPART:")
if OPT["sprio"] != OPT["prio"]: A(f"s_setprio {OPT['sprio']}")
stamp((5, 1), (3, 3))
xres_addr(1, 8); xres_load()
w2addr(4, 8, False)
A(f"""s_lshl_b32 s86, s4, 3
s_add_u32 s86, s86, 86
s_lshl_b32 s86, s86, 16
s_lshl_b32 s87, s84, 11
s_add_u32 s86, s86, s87
v_lshl_add_u32 v2, v0, 4, s86
s_mul_i32 s88, s84, 43
s_lshr_b32 s88, s88, 7
s_mul_i32 s88, s88, 23
s_lshl_b32 s87, s4, 1
s_add_u32 s88, s88, s87
s_add_u32 s88, s88, 15
s_lshl_b32 s88, s88, 12
s_add_u32 s88, s88, {WS_FLAG}
v_and_b32 v3, 7, v0
v_lshl_add_u32 v3, v3, 10, s88
s_lshl_b32 s74, s4, 13
s_add_u32 s74, s74, {WS_F}
v_lshl_add_u32 v8, v0, 4, s74
s_lshl_b32 s86, s4, 2
s_add_u32 s86, s86, {LF}
v_mov_b32 v10, s86
s_mov_b32 s72, {hx(1e-6)}
s_movk_i32 s73, 4096
s_mov_b32 s89, 0""")
if OPT["warm"]:
    assert OPT["sd"] == 8
    A("s_mov_b32 s75, 1\ns_mov_b64 exec, 0\ns_branch L_PIPE\nL_WBACK:\ns_mov_b32 s75, 0\ns_mov_b64 exec, -1")
stamp((1, 4))
if OPT['sdelay']: A(f"s_sleep {OPT['sdelay']}")
if OPT["comb"]:
    A("v_add_u32 v3, 48, v10"); spin_lds(3, 9)
else: spin_flag(3, 9, 8, 2)
note("s88", 4)
stamp((6, 1), (2, 4))
SD = OPT["sd"]
rho8()
A("s_lshl_b32 s78, s12, 2\ns_lshr_b32 s79, s12, 4")
def pqload(k):
    return [f"s_xor_b32 s86, s78, {k*65536}",
            f"buffer_load_dwordx4 {v(16+8*k,4)}, v2, {H}, s86 offen sc1",
            f"buffer_load_dwordx4 {v(20+8*k,4)}, v2, {H}, s86 offen offset:1024 sc1"]
def floads():
    for k in range(8):
        if k % 2 == 0: A(f"s_xor_b32 s86, s79, {k*1024}")
        A(f"buffer_load_dwordx4 {v(80+4*k,4)}, v8, {WS}, s86 offen offset:{1024*(k%2)} sc1")
if OPT["ffirst"]: floads()
for k in range(SD):
    if OPT["sdep"]: A(f"s_waitcnt vmcnt({OPT['sdep']-2})")
    E(pqload(k))
if OPT["ffirst"]: A(f"s_waitcnt vmcnt({2*SD})\ns_branch L_FC")
if OPT["hints"]:
    A(f"s_lshl_b32 s86, s4, 14\ns_add_u32 s86, s86, {WS_FF}\nv_lshl_add_u32 v9, v0, 10, s86")
    spin_flag(9, 11, 16)
else: A(f"s_waitcnt vmcnt({OPT['fafter']})")
A("s_branch L_FL\nL_FQ:\ns_sleep 8\nL_FL:")
floads()
A("s_waitcnt vmcnt(0)\nL_FC:\ns_add_u32 s89, s89, 1")
E(vmax(112, [80+4*k for k in range(8)]))
A(f"""v_cmp_eq_u32 vcc, -1, v112
s_cmp_gt_u32 s89, {OPT['spin']}
s_cbranch_scc1 L_FPD
s_cbranch_vccnz L_FQ
L_FPD:""")
note("s89", 4); note("s89", 1)
stamp((6, 3), (3, 4))
woloc = lambda k: (1, k) if k < 6 else (2, k-2)
def Om(k): return [mfma(128+32*(k&1)+16*r, 80+4*k, 16+8*k+4*r, 0) for r in range(2)]
def Vv(k):
    o = []
    D = [128+32*(k&1)+16*r for r in range(2)]
    nd = [((d, d+8) if k % 2 == 0 else (d+8, d)) for d in D]
    for num, den in nd: o.append(f"v_add_f32 v{den}, s72, v{den}")
    for num, den in nd: o.append(f"v_rcp_f32 v{den}, v{den}")
    for r, (num, den) in enumerate(nd):
        if OPT["spk"]:
            for j in range(4): o.append(f"v_pk_mul_f32 {v(num+2*j,2)}, {v(num+2*j,2)}, {v(den,2)} op_sel_hi:[1,0]")
        else:
            for j in range(8): o.append(f"v_mul_f32 v{num+j}, v{num+j}, v{den}")
        for j in range(4): o.append(f"v_cvt_pk_bf16_f32 v{16+8*k+4*r+j}, v{num+2*j}, v{num+2*j+1}")
    return o
def Sm(k): return [mfmaH(192+32*r+16*c, 112+8*(k&1)+4*c, 16+8*k+4*r, 0 if k <= OPT['h16'] else None, k & 1) for r in range(2) for c in range(2)]
issued = [SD]
def need(k):
    o = [f"s_waitcnt vmcnt({2*(issued[0]-1-k)})"]
    more = []
    if issued[0] < 8: more = pqload(issued[0]); issued[0] += 1
    return o, more
A('L_PIPE:')
E(w2read(112, *woloc(0), 4, False))
for k in (0, 1):
    w_, m_ = need(k); E(w_ + Om(k) + m_)
E(Vv(0))
for k in range(8):
    A("s_waitcnt lgkmcnt(0)")
    fill = (w2read(112+8*((k+1)&1), *woloc(k+1), 4, False) + Vv(k+1)) if k+1 < 8 else []
    if k == 7:
        fill = cap(lambda: (wraddr(80, False), rdaddr(4, False, 1, 88), A(f"s_lshl_b32 s86, s4, 11\ns_add_u32 s86, s86, {GB}\nv_lshl_add_u32 v9, v0, 4, s86"),
            [A(f"v_lshlrev_b32 v{112+2*j}, 16, v{12+j}\nv_and_b32 v{113+2*j}, 0xffff0000, v{12+j}") for j in range(4)]))
    NF = 16 if OPT['spk'] else 20
    if k == 7: NF = 28
    E(interleave(Sm(k), fill[:NF], NF//4))
    if k+2 < 8:
        w_, m_ = need(k+2); E(w_); E(interleave(Om(k+2), fill[NF:] + m_, 6))
    else: E(fill[NF:])
    if k == 3: stamp((4, 4))
if OPT["warm"] == 1: A("s_cmp_eq_u32 s75, 1\ns_cbranch_scc1 L_WBACK")
stamp((7, 1), (5, 4))
final(False)
stamp((6, 4))
if OPT["fin"] == 0: A("s_barrier\nds_read_b128 v[88:91], v9\nds_read_b128 v[92:95], v9 offset:1024\ns_branch L_FIN2")
else: A("s_barrier\ns_branch L_FIN2")

A("L_FINAL:")
stamp((6, 4))
A("s_barrier")
if OPT["fin"] == 1: A("ds_read_b128 v[88:91], v109\nds_read_b128 v[92:95], v109 offset:1024")
A("L_FIN2:")
stamp((7, 3), (7, 4))
rd4(48, 4)
A("s_waitcnt lgkmcnt(0)")
sum4(48)
if OPT["fin"] == 1:
    for j in range(4): A(f"v_pk_mul_f32 {v(56+2*j,2)}, {v(48+2*j,2)}, s[70:71]")
    E(interleave([f"v_exp_f32 v{56+j}, v{56+j}" for j in range(8)], [f"v_pk_mul_f32 {v(88+2*j,2)}, {v(88+2*j,2)}, {v(48+2*j,2)}" for j in range(4)], 1))
    for j in range(4): A(f"v_pk_add_f32 {v(56+2*j,2)}, {v(56+2*j,2)}, 1.0 op_sel_hi:[1,0]")
    for j in range(8): A(f"v_rcp_f32 v{48+j}, v{56+j}")
for j in range(4): A(f"v_pk_fma_f32 {v(48+2*j,2)}, {v(48+2*j,2)}, {v(88+2*j,2)}, {v(112+2*j,2)}")
for j in range(4): A(f"v_cvt_pk_bf16_f32 v{24+j}, v{48+2*j}, v{49+2*j}")
if OPT["warm"] == 2: A("s_cbranch_execz L_WBACK")
A(f"""buffer_store_dwordx4 v[24:27], v1, {OUT}, 0 offen {['', 'sc1', 'nt', 'sc0 sc1'][OPT['osc']]}
s_add_u32 s86, s2, s3
s_cmp_eq_u32 s86, 0
s_cbranch_scc0 L_NOBUMP
v_mov_b32 v2, 0
v_mov_b32 v3, {TAG}
buffer_store_dword v3, v2, {WS}, 0 offen sc1
L_NOBUMP:""")
if OPT["stamps"]:
    A("s_waitcnt vmcnt(0)")
    stamp((8, 0))
    A(f"""s_memrealtime s[68:69]
s_waitcnt lgkmcnt(0)
s_mov_b32 s101, s68""")
    if OPT["diag"]:
        A(f"""s_cmp_lg_u32 s3, {OPT['dwave']}
s_cbranch_scc1 L_END
s_sub_u32 s86, s{92+OPT['diag']}, s34
s_lshl_b32 s86, s86, 2
s_min_u32 s86, s86, 20000
L_DSPIN:
s_memrealtime s[68:69]
s_waitcnt lgkmcnt(0)
s_sub_u32 s87, s68, s101
s_sleep 2
s_cmp_lt_u32 s87, s86
s_cbranch_scc1 L_DSPIN
s_endpgm""")
    A(f"""s_lshl_b32 s86, s2, 3
s_add_u32 s86, s86, s3
s_lshl_b32 s86, s86, 6
s_add_u32 s86, s86, {WS_DBG}
v_mov_b32 v2, s86""")
    for i in range(10): A(f"v_mov_b32 v3, s{92+i}\nbuffer_store_dword v3, v2, {WS}, 0 offen offset:{4*i}")
    A(f"v_mov_b32 v3, s34\nbuffer_store_dword v3, v2, {WS}, 0 offen offset:40")
    A(f"v_mov_b32 v3, s35\nbuffer_store_dword v3, v2, {WS}, 0 offen offset:44")
A("L_END:\ns_endpgm")

lines, errs = pad(A.lines)
for e in errs: print("HAZARD:", e, file=sys.stderr)
hdr = open("cdna_kernels/%s.s.ref" % NAME).read().split("; Override launch")[0]
out = hdr + f"""; Fused single-launch kernel, emitted by my own generator script (gen/gen.py); 256 WGs x 8 waves, 1 WG per CU.
;  Phase 1: 192x192 tiles of x @ [w_gate|w_up] (GU role) or x @ [wq|wk|wv] (QKV role), K streamed through a
;    3-slot LDS ring by LDS-DMA (waves 0-1), MFMA 16x16x32 in waves 4-7. LayerNorm is applied after the GEMM:
;    r*(acc - mean*colsum(W)); row stats and column sums are computed once and shared through tagged granules.
;    GU epilogue: gelu(g)*u -> h fragments; QKV epilogue: phi(k)^T v / sum phi(k) partials, phi(q) fragments.
;  Phase 2: 64x64 output tiles: waves 0-3 y = h @ w_down (K split), waves 4-7 o = phi(q) kv / den, s = o @ wo,
;    LDS reduction, out = x + s * silu(y).
;  Hand-offs: write-through (sc1) stores, drained, then a flag line holding this launch's tag (tag = word found at
;    d_ws[0] + constant, written back at the end); readers use sc1 loads. All waits are bounded.
; @launch grid=(256,1,1) block=(512,1,1) lds={LDS}
.amdgcn_target "amdgcn-amd-amdhsa--gfx950"
.text
.globl {NAME}_kernel
.p2align 8
.type {NAME}_kernel,@function
{NAME}_kernel:
""" + render(lines) + f""".section .rodata,"a"
.p2align 6
.amdhsa_kernel {NAME}_kernel
  .amdhsa_next_free_vgpr 256
  .amdhsa_next_free_sgpr 102
  .amdhsa_accum_offset 256
  .amdhsa_group_segment_fixed_size 0
  .amdhsa_kernarg_size 80
  .amdhsa_user_sgpr_count 2
  .amdhsa_user_sgpr_kernarg_segment_ptr 1
  .amdhsa_system_sgpr_workgroup_id_x 1
.end_amdhsa_kernel
"""
open(sys.argv[1], "w").write(out)
```

```python
import sys, struct
from asmlib import *
NAME = "recurrent_scan__linear_attn_block__glu_gated_geglu__prompt"
OPT = dict(stamps=0, rot=2, prio=1, pfcode=1, spin=1<<17, thr=4, unthr=41, n7=1, ca=14, cb=22, h=5, mix=0, sub=0,
           psleep=2, ydep=5, sdep=0, w2late=0, p2map=1, stage=1, sprio=1, ydelay=-1, sdelay=0, fdelay=0, rdelay=0, xlate=0, now2=0, sd=3, apoll=0, fgate=1, rt=1, zf=1, nr=0, r0=3, lred=0, prew=0, hints=0, comb=1, fafter=0, h16=0, gate=4, ffirst=1, warm=0, nodma=0, redearly=1, xz=1, gmix=0, qmix=0, qnop=0, bpos=0, rgap=3, spk=0, diag=0, dwave=4, nrep=2, nl=4, p1=1, p2=7, osc=0, gpos=1, c2=9, yprio=2, ydrop=22, ypost=0, mord=0, adapt=1, ypk=0, nb=3, pf2=-1, drot=0, xfirst=1, nostat=0, w1pf=-9, slow=0, dead=1, qg=0, rq=1, tfrom=6, nc=0, thr2=4, nraw=6, krot=0, slo=0, shi=0, sn=4, nearly=0, e0=3, e1=6, fin=0, c1=-1, pre0=11, pe=-1, map=3, l14=1, pa=-9, pb=-9, pan=1, ntw=0, ntx=0)
for a in sys.argv[2:]:
    k, v_ = a.split("="); assert k in OPT, k; OPT[k] = int(v_, 0)
def f2u(x): return struct.unpack("<I", struct.pack("<f", x))[0]
def hx(x): return "0x%08x" % f2u(x)

SLOT = 49152; XW = 24576; UPOFF = 12288; MISC = 3*SLOT; LDS = 163840
RS = MISC; RR = MISC+3072; CF = MISC+3840; MR = MISC+4608; LF = MISC+5376; GB = MISC+5632
Q = 12288
WS_RS = 0x10000; WS_CS = 0x20000; WS_FLAG = 0x300000; WS_FF = 0x60000; WS_DBG = 0x80000; WS_F = 0xC0000; WS_KV = 0x100000; WS_H = 0x800000
X="s[36:39]"; W="s[40:43]"; WS="s[44:47]"; H="s[48:51]"; WD="s[56:59]"; WO="s[60:63]"; OUT="s[64:67]"
TAG="s10"
def v(b, n=1): return f"v{b}" if n == 1 else f"v[{b}:{b+n-1}]"
def mfma(d, a, b, c=None):
    return f"v_mfma_f32_32x32x16_bf16 {v(d,16)}, {v(a,4)}, {v(b,4)}, " + ("0" if c == 0 else v(d,16))
def mfmaH(d, a, b, c, alt):
    if not OPT["h16"]: return mfma(d, a, b, c)
    return mf16(d+8*alt, a, b, c) + "\n" + mf16(d+8*alt+4, a ^ 4, b, c)
def mf16(d, a, b, c=None):
    return f"v_mfma_f32_16x16x32_bf16 {v(d,4)}, {v(a,4)}, {v(b,4)}, " + ("0" if c == 0 else v(d,4))
def bc(r): return v(r & ~1, 2), r & 1
_lab = [0]
def L(p="L"):
    _lab[0] += 1; return f"{p}_{_lab[0]}"
A = Asm()
def E(lst):
    for t in lst: A(t)
def cap(fn):
    n = len(A.lines); fn(); o = [t for _, t in A.lines[n:]]; del A.lines[n:]; return o
def stamp(*pairs):
    for i, st in pairs:
        if OPT["stamps"] == st or (OPT["stamps"] and st == 0):
            A(f"{'s_memrealtime' if (OPT['rt'] and i != 8) else 's_memtime'} s[68:69]\ns_waitcnt lgkmcnt(0)\ns_mov_b32 s{92+i}, s68")
def note(reg, st):
    if OPT["stamps"] == st: A(f"s_mov_b32 s35, {reg}")
def srd(name, lo, size, add=0):
    b = int(name[2:4])
    if add: A(f"s_add_u32 s{b}, s{lo}, {add}\ns_addc_u32 s{b+1}, s{lo+1}, 0")
    else: A(f"s_mov_b32 s{b}, s{lo}\ns_mov_b32 s{b+1}, s{lo+1}")
    A(f"s_mov_b32 s{b+2}, {size}\ns_mov_b32 s{b+3}, 0x20000")
def spin_flag(vaddr, vt, nl, kind=None, first=0):
    l1, l2 = L("POLL"), L("POLLD")
    A(f"""s_mov_b32 s88, {first}
s_mov_b64 exec, {hex((1<<nl)-1)}
{l1}:
s_and_b32 s87, s88, {OPT['nrep']-1}
s_lshl_b32 s87, s87, 7""")
    if kind: A(f"s_add_u32 s87, s87, {kind << 20}")
    A(f"""buffer_load_dword {v(vt)}, {v(vaddr)}, {WS}, s87 offen sc1
s_add_u32 s88, s88, 1
s_waitcnt vmcnt(0)
v_cmp_ne_u32 vcc, {TAG}, {v(vt)}
s_cmp_gt_u32 s88, {OPT['spin']}
s_cbranch_scc1 {l2}
s_cbranch_vccz {l2}
s_sleep {OPT['psleep']}
s_branch {l1}
{l2}:
s_mov_b64 exec, -1""")
def spin_lds(vaddr, vt, need=1):
    l1, l2 = L("LP"), L("LPD")
    A(f"""s_mov_b32 s86, 0
{l1}:
ds_read_b32 {v(vt)}, {v(vaddr)}
s_add_u32 s86, s86, 1
s_waitcnt lgkmcnt(0)
v_cmp_gt_u32 vcc, {need}, {v(vt)}
s_cmp_gt_u32 s86, {OPT['spin']*8}
s_cbranch_scc1 {l2}
s_cbranch_vccz {l2}
s_sleep 1
s_branch {l1}
{l2}:""")
def vmax(dst, regs_):
    o = []; r = list(regs_)
    if len(r) == 2: return [f"v_max_u32 v{dst}, v{r[0]}, v{r[1]}"]
    o.append(f"v_max3_u32 v{dst}, v{r[0]}, v{r[1]}, v{r[2]}"); r = r[3:]
    while r:
        if len(r) >= 2: o.append(f"v_max3_u32 v{dst}, v{dst}, v{r[0]}, v{r[1]}"); r = r[2:]
        else: o.append(f"v_max_u32 v{dst}, v{dst}, v{r[0]}"); r = r[1:]
    return o
def tagcheck(dst, tmp, regs_):
    for n, r in enumerate(regs_): A(f"v_xor_b32 v{dst if n == 0 else tmp+n}, {TAG}, v{r}")
    n = 1
    while n < len(regs_):
        if n+1 < len(regs_): A(f"v_or3_b32 v{dst}, v{dst}, v{tmp+n}, v{tmp+n+1}"); n += 2
        else: A(f"v_or_b32 v{dst}, v{dst}, v{tmp+n}"); n += 1

A(f"""s_cmp_ge_u32 s2, 256
s_cbranch_scc1 L_END
s_load_dwordx16 s[16:31], s[0:1], 0
s_load_dwordx2 s[32:33], s[0:1], 72""")
if OPT["stamps"]: A("s_memrealtime s[34:35]\ns_memtime s[68:69]")
A(f"""v_lshrrev_b32 v1, 6, v0
v_and_b32 v0, 63, v0
v_readfirstlane_b32 s3, v1
s_and_b32 s5, s2, 7
s_lshr_b32 s86, s2, 3""")
if OPT["p2map"] == 0:
    A("s_lshl_b32 s84, s5, 2\ns_lshr_b32 s87, s86, 3\ns_add_u32 s84, s84, s87\ns_and_b32 s85, s86, 7")
else:
    A("""s_lshr_b32 s84, s5, 1
s_lshl_b32 s84, s84, 3
s_lshr_b32 s87, s86, 2
s_add_u32 s84, s84, s87
s_and_b32 s85, s5, 1
s_lshl_b32 s85, s85, 2
s_and_b32 s87, s86, 3
s_add_u32 s85, s85, s87""")
A(f"""s_lshl_b32 s5, s5, 5
s_add_u32 s5, s5, s86
s_and_b32 s4, s3, 3
s_mov_b32 s12, 0
""")
if OPT["map"] == 0:
    A("""s_cmp_lt_u32 s5, 138
s_cbranch_scc0 L_BOT
s_mul_i32 s7, s5, 171
s_lshr_b32 s7, s7, 10
s_mul_i32 s86, s7, 6
s_sub_u32 s6, s5, s86
s_branch L_IDS
L_BOT:
s_cmp_ge_u32 s5, 253
s_cselect_b32 s12, 1, 0
s_cselect_b32 s86, 5, 0
s_sub_u32 s86, s5, s86
s_sub_u32 s86, s86, 138
s_mul_i32 s87, s86, 205
s_lshr_b32 s87, s87, 10
s_sub_u32 s7, 22, s87
s_mul_i32 s87, s87, 5
s_sub_u32 s6, s86, s87
s_add_u32 s6, s6, 6
""")
elif OPT["map"] == 3:
    A("""s_and_b32 s87, s2, 7
s_lshl_b32 s87, s87, 2
s_mov_b32 s88, 3703137312
s_mov_b32 s89, 14
s_lshr_b64 s[88:89], s[88:89], s87
s_bfe_u32 s87, s88, 0x40004
s_and_b32 s89, s88, 15
s_sub_u32 s88, s5, s89
s_add_u32 s87, s87, s86
s_sub_u32 s87, s87, 32
s_cmp_ge_i32 s87, s89
s_cbranch_scc1 L_LIGHT
s_cmp_lt_u32 s88, 132
s_cbranch_scc0 L_BOT
s_mul_i32 s7, s88, 171
s_lshr_b32 s7, s7, 10
s_mul_i32 s86, s7, 6
s_sub_u32 s6, s88, s86
s_branch L_FIX
L_LIGHT:
s_lshl_b32 s87, s87, 2
s_mov_b32 s88, 1139995120
s_mov_b32 s89, 11110245
s_lshr_b64 s[88:89], s[88:89], s87
s_and_b32 s6, s88, 15
s_mov_b32 s7, 14
s_cmp_eq_u32 s6, 15
s_cselect_b32 s12, 1, 0
s_cselect_b32 s6, 0, s6
s_cselect_b32 s7, 0, s7
s_branch L_IDS
L_BOT:
s_sub_u32 s86, s88, 132
s_mul_i32 s87, s86, 205
s_lshr_b32 s87, s87, 10
s_sub_u32 s7, 21, s87
s_mul_i32 s87, s87, 5
s_sub_u32 s6, s86, s87
s_add_u32 s6, s6, 6
L_FIX:
s_cmp_ge_u32 s7, 14
s_addc_u32 s7, s7, 0""")
elif OPT["map"] == 1:
    A("""s_cmp_ge_u32 s5, 253
s_cselect_b32 s12, 1, 0
s_cselect_b32 s86, 253, 0
s_sub_u32 s86, s5, s86
s_mul_i32 s7, s86, 745
s_lshr_b32 s7, s7, 13
s_mul_i32 s87, s7, 11
s_sub_u32 s6, s86, s87""")
else:
    A("""s_and_b32 s87, s2, 7
s_mul_i32 s88, s87, 30
s_add_u32 s88, s88, s86
s_sub_u32 s87, 7, s87
s_lshl1_add_u32 s87, s87, s86
s_add_u32 s87, s87, 210
s_cmp_ge_u32 s86, 30
s_cselect_b32 s86, s87, s88
s_cmp_ge_u32 s86, 253
s_cselect_b32 s12, 1, 0
s_cselect_b32 s87, 253, 0
s_sub_u32 s86, s86, s87
s_mul_i32 s7, s86, 745
s_lshr_b32 s7, s7, 13
s_mul_i32 s87, s7, 11
s_sub_u32 s6, s86, s87
s_add_u32 s87, s7, 1
s_cmp_ge_u32 s7, 14
s_cselect_b32 s7, s87, s7
s_cmp_eq_u32 s7, 23
s_cselect_b32 s7, 14, s7""")
A(f"""L_IDS:
s_mov_b32 s90, s7""")
if OPT["mix"] == 2:
    A("""s_mul_i32 s86, s7, 43
s_lshr_b32 s86, s86, 8
s_mul_i32 s87, s86, 6
s_sub_u32 s87, s7, s87
s_lshl2_add_u32 s88, s86, s87
s_lshl1_add_u32 s86, s86, s87
s_add_u32 s86, s86, 11
s_cmp_ge_u32 s87, 4
s_cselect_b32 s88, s86, s88
s_cmp_ge_u32 s7, 21
s_cselect_b32 s7, s7, s88""")
if OPT["mix"] == 1:
    A("""s_mul_i32 s86, s7, 43
s_lshr_b32 s86, s86, 7
s_sub_u32 s87, s7, s86
s_lshl_b32 s88, s86, 1
s_sub_u32 s88, s87, s88
s_add_u32 s86, s86, 15
s_cmp_eq_u32 s7, 22
s_cselect_b32 s7, s86, s87
s_cmp_eq_u32 s88, 2
s_cselect_b32 s7, s86, s7""")
A(f"""s_mul_i32 s8, s6, 192
s_min_u32 s8, s8, 1856
s_mul_i32 s9, s7, 96
s_min_u32 s9, s9, 1280
s_cmp_lt_u32 s3, 4
s_cbranch_scc1 L_LOADER""")
def kwait():
    A("s_waitcnt lgkmcnt(0)\ns_load_dword s10, s[32:33], 0")
    if OPT["stamps"]: A("s_mov_b32 s92, s68")
    srd(X, 16, 2097152)
if OPT["prio"]: A(f"s_setprio {OPT['prio']}")
if OPT["pfcode"]:
    A(f"""s_getpc_b64 s[88:89]
L_PC:
s_sub_u32 s88, s88, L_PC-{NAME}_kernel
s_subb_u32 s89, s89, 0
s_lshr_b32 s86, s2, 3
s_lshl_b32 s86, s86, 3
s_lshl_b32 s87, s4, 1
s_add_u32 s86, s86, s87
v_and_b32 v3, 1, v0
v_add_u32 v3, s86, v3
v_lshlrev_b32 v3, 7, v3
v_min_u32 v3, L_END-{NAME}_kernel, v3
global_load_dword v47, v3, s[88:89]""")
A(f"""s_lshl_b32 s86, s5, 3
s_lshl_b32 s87, s4, 1
s_add_u32 s86, s86, s87
v_lshrrev_b32 v7, 5, v0
v_add_u32 v7, s86, v7
v_and_b32 v2, 31, v0
v_lshlrev_b32 v2, 4, v2
v_lshl_add_u32 v2, v7, 10, v2""")
kwait()
if not OPT["nostat"]: A(f"""buffer_load_dwordx4 v[8:11], v2, {X}, 0 offen
buffer_load_dwordx4 v[12:15], v2, {X}, 0 offen offset:512""")
stamp((1, 2))
A("s_branch L_COMPUTE\nL_LOADER:")

def w2addr(base, T, nat):
    a_, b_, c_, d_ = T, T+1, T+2, T+3
    A(f"""v_and_b32 v{a_}, 3, v0
v_bfe_u32 v{b_}, v0, 2, 2
v_bfe_u32 v{c_}, v0, 4, 1
v_lshrrev_b32 v{d_}, 5, v0
v_lshl_add_u32 v{d_}, v{d_}, {3 if nat else 2}, v{b_}
v_lshlrev_b32 v{d_}, 7, v{d_}
v_lshrrev_b32 v{b_}, 1, v{b_}
v_lshl_add_u32 v{c_}, v{b_}, 2, v{c_}
v_and_b32 v{b_}, 1, v{a_}
v_lshl_add_u32 v{c_}, v{b_}, 1, v{c_}
v_lshl_add_u32 v{d_}, v{c_}, 4, v{d_}
v_lshrrev_b32 v{a_}, 1, v{a_}
v_lshl_add_u32 v{d_}, v{a_}, 3, v{d_}
v_add_u32 v{base}, s76, v{d_}
v_xor_b32 v{d_}, 64, v{d_}
v_add_u32 v{base+1}, s76, v{d_}
v_add_u32 v{base+2}, {2*SLOT}, v{base}
v_add_u32 v{base+3}, {2*SLOT}, v{base+1}""")
def w2read(dst, slot, blk, ab, nat=True):
    o = []
    for c in range(2):
        for sec in range(2):
            ar = ab + c + (2 if slot == 2 else 0)
            off = (SLOT if slot == 1 else 0) + blk*2048 + sec*(512 if nat else 1024)
            o.append(f"ds_read_b64_tr_b16 {v(dst+4*c+2*sec,2)}, v{ar} offset:{off}")
    return o
def xres_addr(half, T):
    A(f"""s_lshl_b32 s86, s4, 4
s_lshl_b32 s87, s84, 6
s_add_u32 s86, s86, s87
s_add_u32 s86, s86, {8*half}
s_lshl_b32 s86, s86, 10
s_lshl_b32 s87, s85, 7
s_add_u32 s86, s86, s87
v_lshrrev_b32 v{T}, 3, v0
v_lshlrev_b32 v{T}, 10, v{T}
v_and_b32 v{T+1}, 7, v0
v_lshl_add_u32 v{T}, v{T+1}, 4, v{T}
v_add_u32 v1, s86, v{T}""")
def xres_load(late=0):
    if OPT["xlate"] == late: A(f"buffer_load_dwordx4 v[12:15], v1, {X}, 0 offen")
def p2setup():
    srd(WS, 32, 0x800000); srd(H, 32, 118*65536, WS_H); srd(WD, 28, 1376*1024); srd(WO, 20, 512*1024); srd(OUT, 30, 2097152)
    A(f"""v_lshrrev_b32 v24, 3, v0
v_lshlrev_b32 v24, 10, v24
v_and_b32 v25, 7, v0
v_bfe_u32 v26, v0, 4, 1
v_lshlrev_b32 v26, 2, v26
v_xor_b32 v25, v25, v26
v_lshl_add_u32 v24, v25, 4, v24
s_lshl_b32 s86, s85, 7
v_add_u32 v4, s86, v24
s_mul_i32 s87, s4, {3*16384}
v_add_u32 v2, s87, v4
s_add_u32 s87, s4, 84
s_lshl_b32 s87, s87, 14
v_add_u32 v3, s87, v4
s_lshl_b32 s87, s4, 17
v_add_u32 v4, s87, v4
s_mul_i32 s76, s4, {Q}
s_lshl_b32 s87, s84, 11
s_mul_i32 s86, s4, {3*65536}
s_add_u32 s86, s86, s87
v_lshl_add_u32 v6, v0, 4, s86
v_bfe_u32 v24, v0, 1, 3
v_lshlrev_b32 v24, 3, v24
s_lshr_b32 s86, s4, 1
s_lshl_b32 s86, s86, 2
s_and_b32 s90, s4, 1
s_add_u32 s86, s86, s90
v_add_u32 v24, s86, v24
v_min_u32 v24, 57, v24
v_cmp_eq_u32 vcc, 56, v24
v_cndmask_b32 v24, v24, 57, vcc
v_and_b32 v25, 1, v0
v_lshl_add_u32 v24, v25, 1, v24
s_lshl_b32 s86, s4, 3
s_add_u32 s86, s86, 44
v_add_u32 v25, s86, v0
v_cmp_lt_u32 vcc, 15, v0
v_cndmask_b32 v24, v24, v25, vcc
s_mul_i32 s86, s84, 43
s_lshr_b32 s86, s86, 7
s_mul_i32 s86, s86, {23*4096}
s_add_u32 s86, s86, {WS_FLAG}
v_lshl_add_u32 v5, v24, 10, s86
s_add_u32 s86, s4, 84
s_lshl_b32 s86, s86, 16
s_add_u32 s86, s86, s87
s_cmp_lt_u32 s4, 2
s_cselect_b32 s86, s86, 0x80000000
v_lshl_add_u32 v7, v0, 4, s86""")
    w2addr(8, 24, True); xres_addr(0, 24); rho8()
    A(f"s_waitcnt lgkmcnt(0)\ns_add_u32 {TAG}, {TAG}, 0x9E3779B9")
def wfrag_addr(dst, swc, T, lab):
    A(f"""v_and_b32 v{T}, 3, v0
v_bfe_u32 v{T+1}, v0, 2, 2
v_bfe_u32 v{T+2}, v0, 4, 1
s_cmp_ge_u32 s7, 15
s_cbranch_scc1 {lab}Q
v_lshrrev_b32 v{T+3}, 4, v0
v_lshl_add_u32 v{T+3}, v{T+3}, 3, v{T+1}
v_mul_u32_u24 v{T+3}, 192, v{T+3}
v_lshl_add_u32 v{T}, v{T}, 3, v{T+3}
v_add_u32 v{T}, {XW}, v{T}
s_mul_i32 s87, {swc}, 3
v_xor_b32 v{T+3}, s87, v{T+2}
v_lshl_add_u32 v{dst}, v{T+3}, 5, v{T}
s_add_u32 s87, s87, 1
v_xor_b32 v{T+3}, s87, v{T+2}
v_lshl_add_u32 v{dst+1}, v{T+3}, 5, v{T}
s_branch {lab}D
{lab}Q:
v_lshrrev_b32 v{T+3}, 5, v0
v_mul_u32_u24 v{T+3}, 3072, v{T+3}
v_lshl_add_u32 v{T+3}, v{T+1}, 7, v{T+3}
v_mul_u32_u24 v{T+4}, {UPOFF+32}, v{T+2}
v_lshrrev_b32 v{T+1}, 1, v{T+1}
v_xor_b32 v{T+1}, {swc}, v{T+1}
v_lshl_add_u32 v{T+4}, v{T+1}, 6, v{T+4}
v_lshl_add_u32 v{T}, v{T}, 3, v{T+3}
v_add_u32 v{T}, {XW}, v{T}
v_add_u32 v{dst}, v{T}, v{T+4}
v_xor_b32 v{dst+1}, 32, v{dst}
{lab}D:""")
def woff(role, s_, j, sec):
    if role == 'G':
        jj = j % 3
        return jj & 1, s_*6144 + sec*768 + (j//3)*UPOFF + (64 if jj == 2 else 0)
    return j & 1, s_*6144 + (j//2)*1024 + sec*512
def ksoff(kd): return 12*(kd % 7) + kd//7
S2R = [('o',6+k,2,4+k) for k in range(2)] + [('d',12+k,2,k) for k in range(4)]
S0R = [('d',16+k,0,k) for k in range(6)]
items = [('d',k,2,k) for k in range(6)] + [('d',6+k,2,k) for k in range(6)] + S2R + [('o',k,1,k) for k in range(6)] + S0R
N7 = OPT["n7"]
def rho8():
    if OPT["krot"]: A("s_add_u32 s12, s84, s85\ns_and_b32 s12, s12, 3\ns_lshl_b32 s12, s12, 15")
    else: A("s_mov_b32 s12, 0")
def ktable():
    if OPT["krot"]:
        A("""s_lshl1_add_u32 s86, s85, s84
s_mul_i32 s87, s86, 37
s_lshr_b32 s87, s87, 8
s_mul_i32 s87, s87, 7
s_sub_u32 s86, s86, s87""")
    else: A("s_mov_b32 s86, 0")
    A(f"s_mul_i32 s77, s86, {12*16384}")
    for i in range(1, 7):
        A(f"s_add_u32 s{77+i}, s{76+i}, {12*16384}\ns_cmp_eq_u32 s{77+i}, {84*16384}\ns_cselect_b32 s{77+i}, 0, s{77+i}")
def w2ops(kind, k, dst, thr=None):
    nm = kind + str(k)
    if kind == 'o': va, S_, so = 4, WO, f"s_xor_b32 s86, s12, {k*16384}"
    elif k < 21: va, S_, so = 2, WD, f"s_add_u32 s86, s{77 + k % 7}, {(k//7)*16384}"
    else: va, S_, so = 3, WD, "s_mov_b32 s86, 0"
    if isinstance(dst, tuple):
        pre = f"s_add_u32 m0, s76, {dst[0]*SLOT + dst[1]*2048}\n{so}\ns_add_u32 s87, s86, 7168"
        i1 = f"buffer_load_dwordx4 v{va}, {S_}, s86 offen lds"; i2 = f"buffer_load_dwordx4 v{va}, {S_}, s87 offen offset:1024 lds"
    else:
        pre = f"{so}\ns_add_u32 s87, s86, 8192"
        i1 = f"buffer_load_dwordx4 {v(dst,4)}, v{va}, {S_}, s86 offen"; i2 = f"buffer_load_dwordx4 {v(dst+4,4)}, v{va}, {S_}, s87 offen"
    tw = f"s_waitcnt vmcnt({thr})\n" if thr is not None else ""
    return [pre, f"VM {nm}a|{tw}{i1}", f"VM {nm}|{tw}{i2}"]
NE = OPT["nearly"]
def rawblocks():
    steps = list(range(OPT["e0"], OPT["e1"])); n = len(steps)
    for i, st in enumerate(steps):
        its = range(NE*i//n, NE*(i+1)//n)
        if not len(its): continue
        sk = L("RW")
        A(f"s_cmp_eq_u32 s83, {st}\ns_cbranch_scc0 {sk}")
        for k in its:
            for t in w2ops('o', k, 192+8*k): A(t.split("|")[-1])
        A.label(sk)
def w2item(n):
    for t in w2ops(items[n][0], items[n][1], items[n][2:]): A(t.split("|")[-1])

A(f"""s_cmp_ge_u32 s3, 2
s_cbranch_scc1 L_SIDE
s_add_u32 s79, s6, s90""")
R_ = OPT["drot"] or OPT["rot"]
A(f"s_and_b32 s79, s79, {R_-1}\ns_lshl_b32 s79, s79, { {1:0, 2:2, 4:1, 8:0}[R_] }")
A(f"""v_lshrrev_b32 v24, 3, v0
v_and_b32 v25, 7, v0
v_lshrrev_b32 v26, 4, v0
v_xor_b32 v27, v25, v26
s_mul_i32 s86, s4, 96
s_add_u32 s86, s86, s8
s_lshl_b32 s86, s86, 10
v_lshl_add_u32 v16, v24, 10, s86
v_lshl_add_u32 v16, v27, 4, v16
v_xor_b32 v17, 64, v16
v_add_u32 v18, {2*7168}, v16
v_add_u32 v19, {3*7168}, v17
v_add_u32 v17, 7168, v17
s_mul_i32 s74, s4, 12288
""")
XG = ["s70", "s71", "s72"]; WL = ["s52", "s53", "s54", "s55"]; WG = ["s73", "s77", "s14", "s15"]
sh = {2: 1, 4: 2, 8: 0, 1: 0}[R_]
if OPT["sub"]:
    A(f"""s_lshr_b32 s86, s90, {sh}
s_mul_i32 s87, s86, 43
s_lshr_b32 s87, s87, 7
s_mul_i32 s87, s87, 3
s_sub_u32 s86, s86, s87
""")
else:
    A("s_mov_b32 s86, 0")
A("""s_lshl_b32 s70, s86, 12
s_add_u32 s71, s70, 4096
s_cmp_eq_u32 s71, 12288
s_cselect_b32 s71, 0, s71
s_add_u32 s72, s70, s71
s_sub_u32 s72, 12288, s72""")
XN = ["s11", "s13", "s91"]
A(f"s_lshl_b32 s86, s4, 4\ns_add_u32 s86, s86, s6\ns_cmp_eq_u32 s86, 10\ns_cselect_b32 s88, {8192 if OPT['xz'] else 0}, 0\ns_cmp_eq_u32 s12, 1\ns_cselect_b32 s88, {65536 if OPT['xz'] else 0}, s88")
for g in range(3): A(f"s_cmp_lt_u32 {XG[g]}, s88\ns_cselect_b32 {XN[g]}, 0, 2097152")
A("s_lshl_b32 s80, s79, 7\ns_mov_b32 s88, s74")
kwait()
stamp((1, 2))
def issue_head():
    A(f"""s_lshl_b32 s80, s79, 7
s_mul_i32 s81, s79, s82
s_lshl_b32 s81, s81, 2
s_add_u32 s88, s78, s74
s_add_u32 s89, s78, s75""")
ORDER = ["x0", "w0", "x1", "w1", "x2", "w2", "w3"]
def issue_part(lo, hi, order=None):
    n = 0
    for it in (order or ORDER[lo:hi]):
        g = int(it[1])
        if it[0] == 'x':
            A(f"s_add_u32 m0, s88, {XG[g]}\ns_lshl3_add_u32 s86, {XG[g]}, s80\ns_mov_b32 s38, {XN[g]}")
            for q in range(4): A(f"buffer_load_dwordx4 v{16+q}, {X}, s86 offen offset:{1024*q} {'nt ' if OPT['ntx'] else ''}lds")
            n += 4
        else:
            A(f"s_add_u32 m0, s89, {WL[g]}\ns_add_u32 s87, s81, {WG[g]}")
            for j in range(3): A(f"buffer_load_dwordx4 v{20+j}, {W}, s87 offen offset:{1024*j} {'nt ' if OPT['ntw'] else ''}lds")
            n += 3
    return n
def issue_tail():
    A(f"""s_add_u32 s79, s79, 1
s_and_b32 s79, s79, 7
s_add_u32 s78, s78, {SLOT}
s_cmp_eq_u32 s78, {3*SLOT}
s_cselect_b32 s78, 0, s78""")
HH = OPT["h"]
issue_part(0, 0, ["x0", "x1", "x2"][:3 if OPT["xfirst"] == 1 else 1])
A(f"""s_mul_i32 s75, s4, {UPOFF}
s_add_u32 s75, s75, {XW}
s_mov_b32 s43, 0x20000
s_mov_b32 s78, 0
s_cmp_ge_u32 s7, 15
s_cbranch_scc1 L_LQKV
s_mov_b32 s42, {512*2752}
s_mov_b32 s82, {16*2752}
s_movk_i32 s86, 0x1556
s_movk_i32 s87, 2752
s_lshl_b32 s88, s9, 1
s_cmp_eq_u32 s7, 14
s_cselect_b32 s89, {8 if OPT['zf'] else 0}, 0
s_cmp_eq_u32 s12, 1
s_cselect_b32 s89, {12 if OPT['zf'] else 0}, s89
v_mov_b32 v28, 0x80000000""")
for i in range(3):
    A(f"""v_add_u32 v24, {64*i}, v0
v_mul_u32_u24 v25, s86, v24
v_lshrrev_b32 v25, 16, v25
v_mul_u32_u24 v26, 12, v25
v_sub_u32 v24, v24, v26
v_lshrrev_b32 v26, 2, v25
v_and_b32 v26, 2, v26
v_xor_b32 v24, v24, v26
v_cmp_gt_u32 vcc, s89, v24
v_mul_u32_u24 v25, s87, v25
v_lshl_add_u32 v24, v24, 4, v25
v_add_u32 v24, s88, v24
v_subrev_u32 v24, {1024*i}, v24
v_cndmask_b32 v{20+i}, v24, v28, vcc""")
A(f"""s_branch L_LGO
L_LQKV:
s_mov_b32 s42, {512*3072}
s_mov_b32 s82, {16*3072}
s_sub_u32 s87, s7, 15
s_lshl_b32 s87, s87, 7
s_mul_i32 s88, s4, {8*3072}
s_add_u32 s87, s87, s88
v_mul_u32_u24 v24, 3072, v24
v_and_b32 v26, 1, v26
v_lshlrev_b32 v26, 2, v26
v_xor_b32 v25, v25, v26
s_lshl_b32 s88, s4, 1
v_xor_b32 v25, s88, v25
v_lshl_add_u32 v20, v25, 4, v24
v_add_u32 v20, s87, v20
v_mov_b32 v21, v20
v_mov_b32 v22, v20
L_LGO:""")
A(f"s_lshr_b32 s87, s6, {sh}" if OPT["sub"] else "s_mov_b32 s87, 0")
for g in range(4):
    A(f"s_add_u32 s86, s87, {g}\ns_and_b32 s86, s86, 3\ns_mul_i32 {WL[g]}, s86, 3072\ns_mul_i32 {WG[g]}, s86, s82")
A(f"""s_cmp_eq_u32 s4, 1
s_cselect_b32 s40, s26, s24
s_cselect_b32 s41, s27, s25
s_cmp_ge_u32 s7, 15
s_cselect_b32 s40, s18, s40
s_cselect_b32 s41, s19, s41""")
issue_head(); issue_part(0, 0, ["w0", "w1", "w2", "w3"] if OPT["xfirst"] == 1 else ["w0", "x1", "w1", "x2", "w2", "w3"]); issue_tail()
stamp((2, 2))
issue_head(); n_ = issue_part(0, HH)
p2setup()
A(f"s_waitcnt vmcnt({n_})")
stamp((1, 1), (3, 2))
A("s_barrier\ns_mov_b32 s83, 0\nL_LLOOP:")
rawblocks()
if OPT['nodma']: issue_tail(); issue_head()
else:
    if HH < 7: issue_part(HH, 7)
    issue_tail(); issue_head(); issue_part(0, HH)
A(f"""s_add_u32 s83, s83, 1
s_waitcnt vmcnt({n_})
s_barrier
s_cmp_lt_u32 s83, 6
s_cbranch_scc1 L_LLOOP""")
stamp((2, 1), (4, 2))
if HH < 7: issue_part(HH, 7)
A("s_mov_b32 s38, 2097152")
ktable()
for n in range(N7): w2item(n)
A(f"s_waitcnt vmcnt({2*N7})\ns_barrier")
A("s_branch L_W2")

def f_addr(dst):
    A(f"""s_sub_u32 s86, s7, 15
s_lshl_b32 s86, s86, 12
s_and_b32 s87, s6, 1
s_lshl_b32 s87, s87, 11
s_add_u32 s86, s86, s87
s_and_b32 s87, s6, 2
s_lshl_b32 s87, s87, 9
s_add_u32 s86, s86, s87
s_lshr_b32 s87, s6, 2
s_lshl_b32 s87, s87, 9
s_add_u32 s86, s86, s87
s_lshl1_add_u32 s91, s86, {WS_FF}
s_add_u32 s86, s86, {WS_F}
v_lshl_add_u32 v{dst}, v0, 4, s86""")
assert OPT["rot"] in (2, 4, 8)
A(f"""L_SIDE:
s_add_u32 s13, s6, s90
s_and_b32 s13, s13, {OPT['rot']-1}
s_lshl_b32 s13, s13, { {2:2, 4:1, 8:0}[OPT['rot']] }
s_lshr_b32 s14, s6, { {2:1, 4:2, 8:3}[OPT['rot']] }
s_add_u32 s15, s13, s14
s_cmp_ge_u32 s6, 8
s_cselect_b32 s14, 99, s14
s_cmp_eq_u32 s12, 1
s_cselect_b32 s14, 99, s14
s_and_b32 s77, s4, 1""")
wfrag_addr(62, "s77", 24, "L_SA")
A(f"""s_cmp_eq_u32 s14, 1
s_cselect_b32 s86, {SLOT}, 0
s_cmp_eq_u32 s14, 2
s_cselect_b32 s86, {2*SLOT}, s86
v_add_u32 v62, s86, v62
v_add_u32 v63, s86, v63
v_and_b32 v24, 16, v0
v_cmp_ne_u32 s[72:73], 0, v24
v_and_b32 v24, 31, v0
s_mul_i32 s86, s77, 384
s_add_u32 s86, s86, {CF}
v_lshrrev_b32 v25, 4, v24
v_mul_u32_u24 v25, 128, v25
v_lshl_add_u32 v17, v24, 2, v25
v_add_u32 v17, s86, v17
s_mul_i32 s87, s77, 96
v_add_u32 v21, s87, v0
v_add3_u32 v22, v24, s87, 64
s_lshl_b32 s86, s8, 4
s_add_u32 s86, s86, {WS_RS}
v_lshl_add_u32 v19, v21, 4, s86
v_lshl_add_u32 v20, v22, 4, s86
s_lshl_b32 s86, s7, 13
s_lshl_b32 s87, s77, 9
s_add_u32 s86, s86, s87
s_add_u32 s86, s86, {WS_CS}
s_lshl_b32 s87, s15, 10
s_add_u32 s74, s86, s87
v_lshlrev_b32 v23, 4, v24
v_lshrrev_b32 v25, 5, v0
v_lshl_add_u32 v18, v25, 12, v23
v_add_u32 v18, s86, v18""")
for r in range(52, 56): A(f"v_mov_b32 v{r}, 0x3f803f80")
def w1stage(c0, n):
    A(f"""s_cmp_eq_u32 s77, 0
s_cselect_b32 s40, s24, s26
s_cselect_b32 s41, s25, s27
s_mov_b32 s42, {1376*1024}
s_mov_b32 s43, 0x20000
s_mov_b32 s52, s18
s_mov_b32 s53, s19
s_mov_b32 s54, {512*3072}
s_mov_b32 s55, 0x20000""")
    for Lc, S_, parts, dst in ((1376, W, 256, 58), (1536, "s[52:55]", 512, 57)):
        m = -(-2*n*Lc // parts)
        if parts == 256: A(f"s_mul_i32 s86, s5, {m}")
        else: A(f"s_lshl1_add_u32 s86, s5, s77\ns_mul_i32 s86, s86, {m}")
        A(f"""v_min_u32 v16, {m-1}, v0
v_add_u32 v16, s86, v16
v_min_u32 v16, {2*n*Lc-1}, v16
v_add_u32 v59, {(4-n)*Lc}, v16
v_cmp_lt_u32 vcc, {n*Lc-1}, v16
v_cndmask_b32 v16, v16, v59, vcc
v_add_u32 v16, {c0*Lc}, v16
v_lshlrev_b32 v16, 7, v16
buffer_load_dword v{dst}, v16, {S_}, 0 offen""")
def w1prefetch():
    A(f"""s_cmp_eq_u32 s77, 0
s_cselect_b32 s40, s24, s26
s_cselect_b32 s41, s25, s27
s_mov_b32 s42, {1376*1024}
s_mov_b32 s43, 0x20000
s_mul_i32 s86, s5, 43
v_min_u32 v16, 42, v0
v_add_u32 v16, s86, v16
v_lshlrev_b32 v16, 7, v16
buffer_load_dword v58, v16, {W}, 0 offen
s_mov_b32 s52, s18
s_mov_b32 s53, s19
s_mov_b32 s54, {512*3072}
s_mov_b32 s55, 0x20000
s_lshl_b32 s86, s5, 1
s_add_u32 s86, s86, s77
s_mul_i32 s86, s86, 24
v_min_u32 v16, 23, v0
v_add_u32 v16, s86, v16
v_lshlrev_b32 v16, 7, v16
buffer_load_dword v57, v16, s[52:55], 0 offen""")
kwait()
if OPT['w1pf'] == -2: w1prefetch()
if OPT['pa'] == -2: w1stage(1, OPT['pan'])
p2setup()
A(f"""s_cmp_lt_u32 s7, 15
s_cbranch_scc1 L_NOCLR
s_cmp_ge_u32 s6, 8
s_cbranch_scc1 L_NOCLR""")
f_addr(24)
A(f"""v_mov_b32 v28, -1
v_mov_b32 v29, -1
v_mov_b32 v30, -1
v_mov_b32 v31, -1
s_mov_b32 exec_hi, 0
buffer_store_dwordx4 v[28:31], v24, {WS}, 0 offen sc1
s_mov_b32 exec_hi, -1""")
if OPT["prew"]: A(f"s_sub_u32 s86, {TAG}, 1\nv_mov_b32 v32, s86\nv_lshlrev_b32 v24, 4, v0\nbuffer_store_dwordx4 v[32:35], v24, {WS}, s91 offen sc1")
A(f"""L_NOCLR:
s_mov_b32 s83, 0
s_waitcnt vmcnt(0)""")
if OPT["w1pf"] == -1: w1prefetch()
if OPT["pa"] == -1: w1stage(1, OPT["pan"])
if OPT["pb"] == -1: w1stage(1+OPT["pan"], 3-OPT["pan"])
A("L_SLOOP:\ns_barrier")
if OPT["pb"] >= 0:
    A(f"s_cmp_eq_u32 s83, {OPT['pb']}\ns_cbranch_scc0 L_NOPFB"); w1stage(1+OPT["pan"], 3-OPT["pan"]); A("L_NOPFB:")
if OPT["w1pf"] >= 0:
    A(f"s_cmp_eq_u32 s83, {OPT['w1pf']}\ns_cbranch_scc0 L_NOPF1"); w1prefetch(); A("L_NOPF1:")
if OPT["w2late"] >= 0:
    A(f"""s_cmp_eq_u32 s83, {OPT['w2late']}
s_cbranch_scc0 L_NOPF2
s_mul_i32 s86, s5, 59
s_mul_i32 s87, s77, 30
s_add_u32 s86, s86, s87
v_min_u32 v16, 29, v0
v_add_u32 v16, s86, v16
v_lshlrev_b32 v16, 7, v16
buffer_load_dword v60, v16, {WD}, 0 offen
v_subrev_u32 v16, {1376*1024}, v16
buffer_load_dword v61, v16, {WO}, 0 offen
L_NOPF2:""")
if OPT["pf2"] >= 0:
    A(f"""s_cmp_eq_u32 s83, {OPT['pf2']}
s_cbranch_scc0 L_NOPF3
s_getpc_b64 s[88:89]
L_PC2:
s_sub_u32 s88, s88, L_PC2-{NAME}_kernel
s_subb_u32 s89, s89, 0
s_lshr_b32 s86, s2, 3
s_lshl_b32 s86, s86, 3
s_lshl_b32 s87, s77, 2
s_add_u32 s86, s86, s87
v_and_b32 v16, 3, v0
v_add_u32 v16, s86, v16
v_lshlrev_b32 v16, 7, v16
v_min_u32 v16, L_END-{NAME}_kernel, v16
global_load_dword v59, v16, s[88:89]
L_NOPF3:""")
A("s_cmp_eq_u32 s83, s14\ns_cbranch_scc0 L_LNOCS")
for t in range(2):
    A(f"s_cmp_ge_u32 s7, 15\ns_cbranch_scc1 L_CSQ{t}")
    for role in "GQ":
        if role == 'Q': A(f"s_branch L_CSM{t}\nL_CSQ{t}:")
        for j in range(6):
            for sec in range(2):
                par, off = woff(role, t, j, sec)
                A(f"ds_read_b64_tr_b16 {v(24+4*j+2*sec,2)}, v{62+par} offset:{off}")
    A(f"L_CSM{t}:\ns_waitcnt lgkmcnt(0)")
    for j in range(6): A(mf16(72+4*j, 52, 24+4*j, 0 if t == 0 else None))
A(f"v_mov_b32 v51, {TAG}")
for u in range(3): A(f"v_cndmask_b32 v{48+u}, v{72+4*u}, v{84+4*u}, s[72:73]")
A(f"""s_mov_b32 exec_hi, 0
buffer_store_dwordx4 v[48:51], v23, {WS}, s74 offen sc1
s_mov_b32 exec_hi, -1
L_LNOCS:""")
rawblocks()
A(f"""s_add_u32 s83, s83, 1
s_cmp_lt_u32 s83, 6
s_cbranch_scc1 L_SLOOP""")
def st_loads():
    for p in range(4): A(f"buffer_load_dwordx4 {v(32+4*p,4)}, v18, {WS}, 0 offen offset:{1024*p} sc1")
    A(f"buffer_load_dwordx4 v[48:51], v19, {WS}, 0 offen sc1\nbuffer_load_dwordx4 v[52:55], v20, {WS}, 0 offen sc1")
st_loads()
A("s_barrier")
stamp((2, 1), (4, 2))
ktable()
for n in range(N7): w2item(n)
A(f"s_mov_b32 s88, 0\ns_waitcnt vmcnt({2*N7})")
A("L_SPC:")
tagcheck(24, 24, [35+4*p for p in range(6)])
A(f"""v_cmp_ne_u32 vcc, 0, v24
s_add_u32 s88, s88, 1
s_cmp_gt_u32 s88, {OPT['spin']}
s_cbranch_scc1 L_SPCD
s_cbranch_vccz L_SPCD""")
st_loads()
A(f"""s_waitcnt vmcnt(0)
s_branch L_SPC
L_SPCD:
s_mov_b32 s86, {RS}
s_mov_b32 s87, {RR}
v_lshl_add_u32 v24, v21, 4, s86
v_lshl_add_u32 v25, v22, 4, s86
v_lshl_add_u32 v21, v21, 2, s87
v_lshl_add_u32 v22, v22, 2, s87
ds_write_b128 v24, v[48:51]
ds_write_b128 v25, v[52:55]
ds_write_b32 v21, v49
ds_write_b32 v22, v53
v_mul_f32 v24, v48, v49
v_mul_f32 v25, v52, v53
ds_write_b32 v21, v24 offset:{MR-RR}
ds_write_b32 v22, v25 offset:{MR-RR}""")
note("s88", 2)
for p in range(1, 4):
    for u in range(3): A(f"v_add_f32 v{32+u}, v{32+u}, v{32+4*p+u}")
for u in range(3): A(f"v_mov_b32 v{36+u}, v{32+u}")
for u in range(3): A(f"v_permlane32_swap_b32 v{32+u}, v{36+u}")
for u in range(3): A(f"v_add_f32 v{32+u}, v{32+u}, v{36+u}")
for u in range(3): A(f"ds_write_b32 v17, v{32+u} offset:{64*u}")
A("s_waitcnt lgkmcnt(0)\ns_barrier")

A("L_W2:")
stamp((3, 1), (6, 2))
AB = 8
vm = [x for n in range(N7) for x in (f"d{n}a", f"d{n}")]
def emit(Y):
    for t in Y:
        if callable(t): t()
        elif t.startswith("VM "):
            nm, ins = t[3:].split("|"); vm.append(nm); A(ins)
        elif t.startswith("WAIT "):
            nms, lg = t[5:].split("|")
            A(f"s_waitcnt vmcnt({len(vm)-1-max(vm.index(x) for x in nms.split(','))})" + (" lgkmcnt(0)" if lg else ""))
        elif t.startswith("STAMP "): stamp((int(t[6:]), 4))
        else: A(t)
A(f"v_lshlrev_b32 v84, 4, v0\nv_add_u32 v84, s76, v84")
def wr(reg, slot, blk):
    off = slot*SLOT + blk*2048
    A(f"ds_write_b128 v84, {v(reg,4)} offset:{off}\nds_write_b128 v84, {v(reg+4,4)} offset:{off+1024}")
def rd6(base, sl):
    for kk in range(6):
        E(w2read(base+8*kk, sl, kk, AB))
        if kk % 3 == 2: A("s_waitcnt lgkmcnt(0)")
NB = OPT["nb"]; NC = OPT["nc"]; NIT = len(items); NW = OPT['nraw']; NL = 12 - NW - NB - NC; assert NL >= 0 and NW <= 8
cnt = [N7]
def TH():
    cnt[0] += 1
    return OPT["thr"] if (OPT["thr"] and cnt[0] > OPT["tfrom"]) else None
it = lambda n: w2ops(items[n][0], items[n][1], items[n][2:], TH())
Z = []
for n in range(N7, 6): Z += it(n)
order2 = [12+2, 12+3, 12+4, 12+5, 12+0, 12+1]
for n in range(12):
    Z += [f"WAIT d{n}|"] + w2read(96+8*n, 2, n % 6, AB) + ["s_waitcnt lgkmcnt(0)"]
    Z += it(n+6 if n < 6 else order2[n-6])
assert NE <= min(NW, 6)
PE = OPT['pe']
rawop = lambda n: w2ops(items[18+n][0], items[18+n][1], 192+8*n, TH())
for n in range(NE, NW - max(PE, 0)): Z += rawop(n)
XREL = [f"VM x|buffer_load_dwordx4 v[12:15], v1, {X}, 0 offen"], [f"v_mov_b32 v80, {LF+40}", lambda: spin_lds(80, 81, 4)]
if PE < 0: Z += XREL[0] + XREL[1]
emit(Z)
stamp((4, 1), (1, 3), (1, 4))
def rdaddr(dst, isy_src, half, T):
    base = 0 if isy_src else SLOT
    t3 = 2*SLOT + (0 if isy_src else 8192)
    A(f"""s_and_b32 s70, s4, 2
s_lshl_b32 s70, s70, 12
s_add_u32 s70, s70, {base}
s_add_u32 s71, s70, 4096
s_cmp_ge_u32 s4, 2
s_cselect_b32 s71, {t3}, s71
v_mov_b32 v{T}, s70
v_mov_b32 v{T+1}, s71
v_and_b32 v{T+2}, 4, v0
v_cmp_ne_u32 vcc, 0, v{T+2}
v_and_b32 v{T+2}, 7, v0
v_lshrrev_b32 v{T+3}, 3, v0
v_cndmask_b32 v{T}, v{T}, v{T+1}, vcc
v_add_u32 v{T+3}, {8*half}, v{T+3}
v_lshlrev_b32 v{T+1}, 1, v{T+2}
v_xor_b32 v{T+3}, v{T+3}, v{T+1}
s_and_b32 s70, s4, 1
s_lshl_b32 s70, s70, 8
v_lshl_add_u32 v{T}, v{T+3}, 4, v{T}
v_and_b32 v{T+1}, 2, v0
v_lshl_add_u32 v{T}, v{T+1}, 8, v{T}
v_and_b32 v{T+1}, 1, v0
v_lshl_add_u32 v{T}, v{T+1}, 11, v{T}
v_add_u32 v{dst}, s70, v{T}""")
def wraddr(B_, isy):
    A(f"""v_lshrrev_b32 v{B_}, 3, v0
v_and_b32 v{B_}, 4, v{B_}
v_xor_b32 v{B_}, v{B_}, v0
v_lshlrev_b32 v{B_}, 4, v{B_}
v_xor_b32 v{B_+1}, 32, v{B_}
v_xor_b32 v{B_+2}, 0x80, v{B_}
v_xor_b32 v{B_+3}, 0xa0, v{B_}""")
    for j in range(4): A(f"v_add_u32 v{B_+j}, s76, v{B_+j}")
    t3 = 2*SLOT + (0 if isy else 8192)
    A(f"v_add_u32 v{B_+4}, {t3}, v{B_+2}\nv_add_u32 v{B_+5}, {t3}, v{B_+3}")
def wrpart(B_, isy):
    for q in range(4):
        for jq in range(4):
            if q < 3: A(f"ds_write_b128 v{B_ + 2*(q&1) + (jq>>1)}, {v(192+16*q+4*jq,4)} offset:{(0 if isy else SLOT) + q*4096 + jq*1024}")
            else: A(f"ds_write_b128 v{B_ + 4 + (jq>>1)}, {v(192+16*q+4*jq,4)} offset:{jq*1024}")
def rd4(dst, va):
    for src in range(4):
        for e in range(2): A(f"ds_read_b128 {v(dst+8*src+4*e,4)}, v{va} offset:{Q*src+1024*e}")
def sum4(d):
    for j in range(4): A(f"v_pk_add_f32 {v(d+2*j,2)}, {v(d+2*j,2)}, {v(d+8+2*j,2)}\nv_pk_add_f32 {v(d+16+2*j,2)}, {v(d+16+2*j,2)}, {v(d+24+2*j,2)}")
    for j in range(4): A(f"v_pk_add_f32 {v(d+2*j,2)}, {v(d+2*j,2)}, {v(d+16+2*j,2)}")
STG = OPT["stage"]
def sgo(va, vd): return f"s_lshl_b32 s86, s4, 2\ns_add_u32 s86, s86, {LF+48}\nv_mov_b32 v{va}, s86\nv_mov_b32 v{vd}, 1\nds_write_b32 v{va}, v{vd}"
assert STG
note("1", 4)
def hload(kd):
    va = 6 if kd < 21 else 7
    b = 16 + 8*(kd % 8)
    return [f"s_lshl2_add_u32 s86, s{77 + kd % 7}, {(kd//7)*65536}" if kd < 21 else "s_mov_b32 s86, 0",
            f"VM h{kd}a|buffer_load_dwordx4 {v(b,4)}, v{va}, {H}, s86 offen sc1",
            f"VM h{kd}|buffer_load_dwordx4 {v(b+4,4)}, v{va}, {H}, s86 offen offset:1024 sc1"]
w2late = lambda n, t=None: w2ops(items[n][0], items[n][1], items[n][2:], t)
PR = lambda c: 82 if c < 2 else 120
def ipoll(c):
    nl = (14 if OPT['l14'] else 16) if c <= 1 else 24
    return [f"VM p{c}|v_mov_b32 v{PR(c)}, {TAG}\ns_mov_b32 s87, {c << 20}\ns_mov_b64 exec, {hex((1<<nl)-1)}\nbuffer_load_dword v{PR(c)}, v5, {WS}, s87 offen sc1\ns_mov_b64 exec, -1"]
res_loc = lambda kd: (2, kd-12) if kd < 16 else (0, kd-16)
YD = OPT["ydep"]; assert YD <= 7
PRE = cap(lambda: (wraddr(96, True), rdaddr(102, True, 0, 104), A("v_xor_b32 v103, 0x80, v102"), rdaddr(108, False, 0, 104),
    A(f"s_lshl_b32 s70, s4, 11\ns_add_u32 s70, s70, {GB}\nv_lshl_add_u32 v109, v0, 4, s70\nv_mov_b32 v110, {LF+36}\nv_mov_b32 v111, 1"),
    [A(f"v_lshlrev_b32 v{112+2*j}, 16, v{12+j}\nv_and_b32 v{113+2*j}, 0xffff0000, v{12+j}") for j in range(4)],
    A(f"s_mov_b32 s70, {hx(-1.4426950408889634)}\ns_mov_b32 s71, s70")))
Y = []
if PE < 0:
    Y += ipoll(0)
    for n in range(NB): Y += w2late(18+NW+n, OPT['thr2'] or None)
    if NW: Y += ['WAIT x|', lambda: [wr(192+8*n, *items[18+n][2:]) for n in range(NW//2)]]
    Y += ["WAIT p0|", f"v_cmp_ne_u32 vcc, {TAG}, v82\ns_cbranch_vccnz L_YR0\nL_YB0:", lambda: stamp((5, 1), (2, 3), (2, 4))]
    for kd in range(YD): Y += hload(kd)
    for n in range(NC): Y += w2late(18+NW+NB+n, OPT['thr2'] or None)
    if NW: Y += [lambda: [wr(192+8*n, *items[18+n][2:]) for n in range(NW//2, NW)], 's_waitcnt lgkmcnt(0)']
else:
    Y += ipoll(0)
    for n in range(NW-PE, NW): Y += rawop(n)
    Y += XREL[0] + ["WAIT p0|", f"v_cmp_ne_u32 vcc, {TAG}, v82\ns_cbranch_vccnz L_YR0\nL_YB0:", lambda: stamp((5, 1), (2, 3), (2, 4))]
    for kd in range(YD):
        hl = hload(kd)
        if OPT["thr2"]: hl = [hl[0], f"s_waitcnt vmcnt({OPT['thr2']})"] + hl[1:]
        Y += hl
    Y += XREL[1] + ["WAIT x|", lambda: [wr(192+8*n, *items[18+n][2:]) for n in range(NW//2)]]
    for n in range(NB+NC): Y += w2late(18+NW+n, OPT['thr2'] or None)
    Y += [lambda: [wr(192+8*n, *items[18+n][2:]) for n in range(NW//2, NW)], 's_waitcnt lgkmcnt(0)']
if OPT["gate"]: Y += [f"v_mov_b32 v80, {LF+32}", lambda: spin_lds(80, 81, OPT["gate"])]
Y.append(f"s_setprio {OPT['yprio']}")
for kd in range(22):
    wf = 96+8*kd if kd < 12 else 80+8*(kd & 1)
    hb = 16 + 8*(kd % 8)
    need = [f"h{kd}"]
    C1_ = OPT['c1'] if OPT['c1'] >= 0 else 7-YD
    chk = 1 if kd == C1_ else (2 if kd == OPT['c2'] else 0)
    if chk: need.append(f"p{chk}")
    if chk == 2 and NE < 6: need.append("o5")
    if 16 <= kd+1 < 22: need.append(f"d{kd+1}")
    Y.append("WAIT " + ",".join(need) + ("|L" if kd >= 12 else "|"))
    if chk:
        Y.append(f"v_cmp_ne_u32 vcc, {TAG}, v{PR(chk)}\ns_cbranch_vccnz L_YR{chk}\nL_YB{chk}:")
        if chk == 2: Y.append(sgo(120, 121))
    ms = [mfma(192+32*r+16*c, wf+4*c, hb+4*r, 0 if kd == 0 else None) for r in range(2) for c in range(2)]
    fill = []
    if STG and kd == OPT["p1"]: fill += ipoll(1)
    if STG and kd == OPT["p2"]: fill += ipoll(2)
    for k_ in range(YD, 22):
        if max(k_-YD, [0, C1_, OPT['c2'], OPT['c2']][k_//7]) == kd: fill += hload(k_)
    if kd < NL: fill += w2late(NIT-NL+kd)
    if 12 <= kd+1 < 22: fill += w2read(80+8*((kd+1) & 1), *res_loc(kd+1), AB)
    P0_ = OPT['pre0']
    if kd in (P0_, P0_+1, P0_+2): fill = fill + PRE[(kd-P0_)*37:(kd-P0_+1)*37]
    Y += interleave(ms, fill, 3 if len(fill) <= 12 else 6)
    if kd+1 == OPT["ydrop"]: Y.append(f"s_setprio {OPT['ypost']}")
    if kd == 0: Y.append("STAMP 3")
    if kd == 10: Y.append("STAMP 4")
assert OPT["p1"] < C1_ <= OPT["p2"] < OPT["c2"] <= 13 and C1_ <= 6
emit(Y)
stamp((6, 1), (3, 3), (5, 4))
def final(isy):
    if OPT["fin"] == 1:
        if isy:
            wrpart(96, True); A("v_mov_b32 v4, v102\ns_waitcnt lgkmcnt(0)")
        else:
            wrpart(80, False)
            A("s_setprio 0")
            rdaddr(10, True, 1, 88)
            A(f"""v_xor_b32 v5, 0x80, v4
v_mov_b32 v6, {LF+36}
v_mov_b32 v7, 1
s_mov_b32 s70, {hx(-1.4426950408889634)}
s_mov_b32 s71, s70
s_mov_b64 exec, 1
s_waitcnt lgkmcnt(0)
ds_add_u32 v6, v7
s_mov_b64 exec, -1""")
            spin_lds(6, 7, 4)
            rd4(16, 5); A("s_waitcnt lgkmcnt(4)"); rd4(48, 4)
            for d, w_ in ((16, 8), (48, 2)):
                A(f"s_waitcnt lgkmcnt({w_})")
                for j in range(8): A(f"v_add_f32 v{d+j}, v{d+j}, v{d+8+j}\nv_add_f32 v{d+16+j}, v{d+16+j}, v{d+24+j}")
                for j in range(8): A(f"v_add_f32 v{(d if d == 16 else 88)+j}, v{d+j}, v{d+16+j}")
                if d == 16: A("ds_write_b128 v9, v[16:19]\nds_write_b128 v9, v[20:23] offset:1024")
            A("v_mov_b32 v4, v10\ns_waitcnt lgkmcnt(0)")
        return
    if isy:
        wrpart(96, True)
        A("""v_mov_b32 v4, v108
s_mov_b64 exec, 1
s_waitcnt lgkmcnt(0)
ds_add_u32 v110, v111
s_mov_b64 exec, -1""")
        spin_lds(110, 6, 4)
        rd4(16, 103); A("s_waitcnt lgkmcnt(4)"); rd4(48, 102)
        for d, w_ in ((16, 8), (48, 2)):
            A(f"s_waitcnt lgkmcnt({w_})")
            if OPT["ypk"]:
                sum4(d)
                for j in range(4): A(f"v_pk_mul_f32 {v(d+8+2*j,2)}, {v(d+2*j,2)}, s[70:71]")
            else:
                for j in range(8): A(f"v_add_f32 v{d+j}, v{d+j}, v{d+8+j}\nv_add_f32 v{d+16+j}, v{d+16+j}, v{d+24+j}")
                for j in range(8): A(f"v_add_f32 v{d+j}, v{d+j}, v{d+16+j}")
                for j in range(8): A(f"v_mul_f32 v{d+8+j}, s70, v{d+j}")
            for j in range(8): A(f"v_exp_f32 v{d+8+j}, v{d+8+j}")
            for j in range(8): A(f"v_add_f32 v{d+8+j}, 1.0, v{d+8+j}")
            for j in range(8): A(f"v_rcp_f32 v{d+8+j}, v{d+8+j}")
            for j in range(8): A(f"v_mul_f32 v{(d if d == 16 else 88)+j}, v{d+j}, v{d+8+j}")
            if d == 16:
                A("ds_write_b128 v109, v[16:19]\nds_write_b128 v109, v[20:23] offset:1024")
    else:
        wrpart(80, False)
    A("s_waitcnt lgkmcnt(0)")
final(True)
A("s_branch L_FINAL")
if STG:
    for c in (0, 1, 2):
        A(f"L_YR{c}:"); note(str(10+c), 4); spin_flag(5, PR(c), (14 if OPT['l14'] else 16) if c <= 1 else 24, c, 1); A(f"s_branch L_YB{c}")
A("L_COMPUTE:")
srd(WS, 32, 0x800000); srd(H, 32, 118*65536, WS_H); srd(OUT, 30, 2097152)
ACC = 112
for r in range(ACC, 256): A(f"v_mov_b32 v{r}, 0")
A(f"""v_lshlrev_b32 v16, 2, v0
v_add_u32 v16, {LF}, v16
v_mov_b32 v17, 0
s_mov_b64 exec, 0xffff
ds_write_b32 v16, v17
s_mov_b64 exec, -1
s_lshr_b32 s13, s4, 1
s_and_b32 s14, s4, 1
s_movk_i32 s11, 0x1ff
s_lshl_b32 s86, s13, 4
s_add_u32 s86, s86, s6
s_cmp_eq_u32 s86, 10
s_cselect_b32 s11, 0x1c0, s11
s_mul_i32 s86, s14, 0x1b6
s_cmp_eq_u32 s7, 14
s_cselect_b32 s86, s86, 0x1ff
s_and_b32 s11, s11, s86
s_cmp_eq_u32 s12, 1
s_cselect_b32 s11, 0, s11
s_mul_i32 s76, s4, {Q}
s_lshr_b32 s86, s9, 4
s_mul_i32 s87, s14, 3
s_add_u32 s86, s86, s87
s_lshl_b32 s87, s7, 1
s_add_u32 s87, s87, s14
s_lshl1_add_u32 s87, s87, 26
s_and_b32 s88, s11, 0xdb
s_cmp_ge_u32 s7, 15
s_cselect_b32 s86, s87, s86
s_cselect_b32 s11, s88, s11
s_lshl_b32 s86, s86, 6
s_lshr_b32 s87, s8, 5
s_add_u32 s86, s86, s87
s_mul_i32 s87, s13, 3
s_add_u32 s86, s86, s87
s_lshl_b32 s86, s86, 10
v_lshl_add_u32 v1, v0, 4, s86
s_mov_b32 s80, 0
s_mov_b32 s81, 65536
s_mov_b32 s82, 131072
v_and_b32 v16, 15, v0
v_lshrrev_b32 v17, 4, v0
v_bfe_u32 v18, v0, 1, 3
v_xor_b32 v18, v18, v17
s_mul_i32 s86, s13, {96*128}
v_lshl_add_u32 v16, v16, 7, s86
v_lshl_add_u32 v2, v18, 4, v16
v_xor_b32 v3, 64, v2""")
wfrag_addr(4, "s14", 16, "L_CA")
A(f"""s_mul_i32 s86, s6, 23
s_add_u32 s86, s86, s7
s_cmp_eq_u32 s12, 1
s_cselect_b32 s86, 255, s86
s_lshl_b32 s86, s86, 2
s_add_u32 s86, s86, s4
s_lshl_b32 s86, s86, 10
s_add_u32 s15, s86, {WS_FLAG}""")
stamp((2, 2))
A("s_waitcnt vmcnt(0)")
stamp((5, 2))
for j in range(8):
    A(f"v_lshlrev_b32 v{16+2*j}, 16, v{8+j}\nv_and_b32 v{17+2*j}, 0xffff0000, v{8+j}")
def red32(r, t):
    for sh_ in (8, 4, 2, 1):
        A(f"v_add_f32_dpp v{r}, v{r}, v{r} row_ror:{sh_} row_mask:0xf bank_mask:0xf")
    A(f"v_mov_b32 v{t}, v{r}\nv_permlane16_swap_b32 v{r}, v{t}\nv_add_f32 v{r}, v{r}, v{t}")
for j in range(4): A(f"v_pk_add_f32 {v(8+2*j,2)}, {v(16+2*j,2)}, {v(24+2*j,2)}")
A("v_pk_add_f32 v[8:9], v[8:9], v[12:13]\nv_pk_add_f32 v[10:11], v[10:11], v[14:15]\nv_pk_add_f32 v[8:9], v[8:9], v[10:11]\nv_add_f32 v8, v8, v9")
red32(8, 9)
A(f"v_mul_f32 v8, {hx(-1/512)}, v8")
for j in range(8): A(f"v_pk_add_f32 {v(16+2*j,2)}, {v(16+2*j,2)}, v[8:9] op_sel_hi:[1,0]")
A("v_pk_mul_f32 v[10:11], v[16:17], v[16:17]\nv_pk_mul_f32 v[12:13], v[18:19], v[18:19]")
for j in range(2, 8): A(f"v_pk_fma_f32 {v(10+2*(j&1),2)}, {v(16+2*j,2)}, {v(16+2*j,2)}, {v(10+2*(j&1),2)}")
A("v_pk_add_f32 v[10:11], v[10:11], v[12:13]\nv_add_f32 v10, v10, v11")
red32(10, 9)
A(f"""v_mul_f32 v10, {hx(1/512)}, v10
v_cvt_pk_bf16_f32 v10, v10, v10
v_and_b32 v10, 0xffff0000, v10
v_add_f32 v10, {hx(1e-5)}, v10
v_cvt_pk_bf16_f32 v10, v10, v10
v_and_b32 v10, 0xffff0000, v10
v_sqrt_f32 v10, v10
v_cvt_pk_bf16_f32 v32, v8, v8
v_cvt_pk_bf16_f32 v10, v10, v10
v_and_b32 v10, 0xffff0000, v10
v_and_b32 v32, 0xffff0000, v32
v_rcp_f32 v33, v10
v_mul_f32 v34, v10, v10
v_lshlrev_b32 v7, 4, v7
v_add_u32 v7, {WS_RS}, v7
s_waitcnt lgkmcnt(0)
s_add_u32 {TAG}, {TAG}, 0x9E3779B9
v_mov_b32 v35, {TAG}
v_mov_b32 v36, {TAG}
v_mov_b32 v37, {TAG}
v_mov_b32 v38, {TAG}
v_mov_b32 v39, {TAG}
v_lshlrev_b32 v6, 4, v0
s_mov_b32 s78, 0
s_mov_b32 s79, {SLOT}
s_mov_b32 s83, 0""")
stamp((1, 1), (3, 2))
A(f"""s_barrier
s_mov_b32 exec_lo, 1
s_mov_b32 exec_hi, 1
buffer_store_dwordx4 v[32:35], v7, {WS}, 0 offen sc1
s_mov_b64 exec, -1""")
if OPT["prew"]:
    for kind in ((0, 1, 2) if OPT["stage"] else (0, 2)):
        sk = L("PW")
        if kind == 0 and not OPT["stage"]: A(f"s_cmp_lt_u32 s7, 15\ns_cbranch_scc1 {sk}")
        A(f"s_add_u32 s86, s15, {kind << 20}\nbuffer_store_dwordx4 v[28:31], v6, {WS}, s86 offen sc1")
        A.label(sk)
stamp((2, 1), (4, 2))
A("s_cmp_ge_u32 s7, 15\ns_cbranch_scc1 L_QKV")
if OPT["dead"]: A("s_or_b32 s86, s11, s12\ns_cbranch_scc0 L_DEAD")

XB = lambda buf, a: (40 if buf == 0 else 8) + 4*a
WF = lambda buf, j: 64 + 24*buf + 4*j
acc = lambda a, j: ACC + 4*(6*a+j)
CB = 88
def reads(role, s_):
    w_ = []
    for j in range(6):
        for sec in range(2):
            par, off = woff(role, s_, j, sec)
            w_.append(f"ds_read_b64_tr_b16 {v(WF(s_,j)+2*sec,2)}, v{4+par} offset:{off}")
    o = []
    for a in range(6): o += [f"ds_read_b128 {v(XB(s_,a),4)}, v{2+s_} offset:{2048*a}"] + w_[2*a:2*a+2]
    return o
def mm(role, wb, a, j, xb=1):
    return mf16(acc(a,j), WF(wb,j), XB(xb,a)) if (role == 'G' or j < 2) else mf16(acc(a,j), XB(xb,a), WF(wb,j))
def grp(role, buf, a): return [mm(role, buf, a, j, buf) for j in range(6)]
def spread(ms, fill, num, den):
    o = []; f = list(fill); nr = 0
    for i, m in enumerate(ms):
        o.append(m)
        k = ((i+1)*num)//den - (i*num)//den
        for _ in range(k):
            if f:
                x = f.pop(0)
                if x.startswith("ds_read"):
                    nr += 1
                    if nr == 13: o.append("s_waitcnt lgkmcnt(6)")
                o.append(x)
    assert not f
    return o
def treads(role, st, js, wb):
    buf = st & 1
    xs_ = [f"ds_read_b128 {v(XB(buf,a),4)}, v{2+buf} offset:{2048*a + (SLOT if st >= 2 else 0)}" for a in range(6)]
    ws_ = []
    for i, j in enumerate(js):
        for sec in range(2):
            par, off = woff(role, buf, j, sec)
            ws_.append(f"ds_read_b64_tr_b16 {v(wb(buf)+4*i+2*sec,2)}, v{(32 if st >= 2 else 4)+par} offset:{off}")
    return ws_[:4] + xs_ + ws_[4:]
def ldsadd(off, va, vd): return f"v_mov_b32 v{va}, {LF+off}\nv_mov_b32 v{vd}, 1\ns_mov_b64 exec, 1\nds_add_u32 v{va}, v{vd}\ns_mov_b64 exec, -1"
def tphase(role, js, wb, first, last, nxt, extra, rows=range(6), start3=0):
    for st in range(4):
        buf = st & 1
        A("s_waitcnt lgkmcnt(0)")
        if first and st == 1: A("s_barrier")
        ms = []
        for a in (rows if st == 3 else range(6)):
            for i, j in enumerate(js):
                w_, x_ = wb(buf)+4*i, XB(buf, a)
                ms.append(mf16(acc(a,j), w_, x_) if (role == 'G' or j < 2) else mf16(acc(a,j), x_, w_))
        fill = (treads(role, st+1, js, wb) if st < 3 else nxt) + extra.get(st, [])
        if last and st == 3: fill = [ldsadd(40, 32, 33)] + fill
        E(interleave(ms, fill, max(1, -(-len(fill)//(len(ms)-1)))))
def mainloop(role, pre):
    lp, ex = f"L_ML{role}", f"L_MX{role}"
    allm = lambda buf: [m + ('\ns_nop 7' if OPT['slow'] and n_ % OPT['slow'] == 0 else '') for n_, m in enumerate([m for a in range(6) for m in grp(role, buf, a)])]
    def coarse():
        if OPT["shi"]:
            sk = L("SL"); A(f"s_sub_u32 s87, s83, {OPT['slo']}\ns_cmp_lt_u32 s87, {OPT['shi']-OPT['slo']}\ns_cbranch_scc0 {sk}")
            for _ in range(OPT["sn"]): A("s_nop 15")
            A.label(sk)
    r0 = reads(role, 0); E(r0[:12]); A("s_waitcnt lgkmcnt(6)"); E(r0[12:])
    A.label(lp)
    coarse()
    A("s_waitcnt lgkmcnt(0)")
    sal = f"""s_add_u32 s78, s78, 1
s_cmp_eq_u32 s78, 3
s_cselect_b32 s86, {-2*SLOT & 0xffffffff}, s79
s_cselect_b32 s78, 0, s78
s_add_u32 s83, s83, 1
s_cmp_eq_u32 s83, 6""".split("\n") + [f"v_add_u32 v{r}, s86, v{r}" for r in (2, 4, 5, 3)]
    E(spread(allm(0), reads(role, 1) + sal, OPT["rgap"]+2, OPT["rgap"]+3))
    A(f"s_waitcnt lgkmcnt(0)\ns_barrier\ns_cbranch_scc1 {ex}")
    E(spread(allm(1), reads(role, 0), OPT["rgap"], 4))
    A(f"s_branch {lp}")
    A.label(ex)
    com = ["s_waitcnt vmcnt(0)", f"v_add_u32 v32, {SLOT}, v4", f"v_add_u32 v33, {SLOT}, v5", "v_and_b32 v34, 15, v0",
           f"s_mul_i32 s86, s13, {96*16}", f"s_add_u32 s86, s86, {RS}", "v_lshl_add_u32 v34, v34, 4, s86",
           "v_lshrrev_b32 v7, 4, v0", "s_mul_i32 s79, s14, 384", f"s_add_u32 s79, s79, {CF}", "v_lshl_add_u32 v35, v7, 4, s79",
           f"s_mul_i32 s86, s13, {96*4}", f"s_add_u32 s86, s86, {RR}", "v_lshl_add_u32 v7, v7, 4, s86"]
    E(interleave(allm(1), pre + com, 2))

def flagstore(kind):
    m = (1 << (8*OPT["nrep"])) - 1
    A(f"s_add_u32 s86, s15, {kind << 20}\ns_mov_b64 exec, {hex(m) if m < (1<<32) else -1}\nbuffer_store_dwordx4 v[36:39], v6, {WS}, s86 offen sc1\ns_mov_b64 exec, -1")
def gsig():
    if OPT["gate"]: A(ldsadd(32, 2, 3))
rsrd = lambda a: f"ds_read_b128 {v(CB+4*a,4)}, v34 offset:{256*a}"
C1 = -2.0*0.7978845608028654*1.4426950408889634
cst = []
for a in range(6):
    b = CB+4*a
    cst += [f"v_mul_f32 v{b+3}, {hx(C1)}, v{b+1}", f"v_mul_f32 v{b+1}, v{b+1}, v{b+1}",
            f"v_mul_f32 v{b+1}, {hx(0.044715)}, v{b+1}", f"v_mul_f32 v{b+1}, v{b+1}, v{b+3}"]
wb2 = lambda buf: 64 + 8*buf
mainloop('G', treads('G', 0, (0, 3), wb2))
def tregs(u, a):
    return (8 + 8*(a & 1), 24 + 4*(a & 1), [acc(2*a + j//2, u) + 2*(j & 1) for j in range(4)],
            [acc(2*a + j//2, u+3) + 2*(j & 1) for j in range(4)], [CB+4*(2*a + j//2) for j in range(4)])
def stA(u, a):
    T, P, gp, up, cb = tregs(u, a)
    return ([f"v_pk_fma_f32 {v(gp[j],2)}, {v(80+2*(j&1),2)}, {v(cb[j],2)}, {v(gp[j],2)} op_sel_hi:[1,0,1]" for j in range(4)]
          + [f"v_pk_mul_f32 {v(T+2*j,2)}, {v(gp[j],2)}, {v(gp[j],2)}" for j in range(4)]
          + [f"v_pk_fma_f32 {v(T+2*j,2)}, {v(T+2*j,2)}, {v(cb[j],2)}, {v(cb[j]+2,2)} op_sel:[0,1,1] op_sel_hi:[1,1,1]" for j in range(4)]
          + [f"v_pk_mul_f32 {v(T+2*j,2)}, {v(T+2*j,2)}, {v(gp[j],2)}" for j in range(4)])
for u in range(3):
    crd = [f"ds_read_b128 v[80:83], v35 offset:{64*u}", f"ds_read_b128 v[84:87], v35 offset:{64*(u+3)}"]
    ex_ = {1: [rsrd(a) for a in range(4)], 2: [rsrd(4), rsrd(5)] + crd, 3: cst} if u == 0 else {0: crd}
    tphase('G', (u, u+3), wb2, u == 0, u == 2, treads('G', 0, (u+1, u+4), wb2) if u < 2 else [], ex_)
    if u: A("s_waitcnt vmcnt(0)"); flagstore(u-1)
    else: A("s_nop 3")
    if u == 0: stamp((1, 3))
    if u == 2: stamp((3, 1))
    E(stA(u, 0))
    for a in range(3):
        T, P, gp, up, cb = tregs(u, a)
        E(interleave([f"v_exp_f32 v{T+j}, v{T+j}" for j in range(8)],
            [f"v_pk_fma_f32 {v(up[j],2)}, {v(84+2*(j&1),2)}, {v(cb[j],2)}, {v(up[j],2)} op_sel_hi:[1,0,1]" for j in range(4)]
          + [f"v_pk_mul_f32 {v(gp[j],2)}, {v(gp[j],2)}, {v(up[j],2)}" for j in range(4)], 1))
        for j in range(4): A(f"v_pk_fma_f32 {v(T+2*j,2)}, {v(T+2*j,2)}, {v(cb[j]+2,2)}, {v(cb[j]+2,2)} op_sel_hi:[1,0,0]")
        nxt = stA(u, a+1) if a < 2 else []
        E(interleave([f"v_rcp_f32 v{T+j}, v{T+j}" for j in range(8)], nxt[:12], 2))
        for j in range(4): A(f"v_pk_mul_f32 {v(T+2*j,2)}, {v(T+2*j,2)}, {v(gp[j],2)}")
        for j in (0, 2, 1, 3): A(f"v_cvt_pk_bf16_f32 v{P+j}, v{T+2*j}, v{T+2*j+1}")
        E(nxt[12:14])
        sk = L("GS")
        A(f"s_bitcmp1_b32 s11, {3*a+u}\nv_permlane16_swap_b32 v{P}, v{P+2}\nv_permlane16_swap_b32 v{P+1}, v{P+3}\ns_cbranch_scc0 {sk}")
        A(f"buffer_store_dwordx4 {v(P,4)}, v1, {H}, s{80+u} offen offset:{1024*a} sc1")
        A.label(sk)
        E(nxt[14:])
    if u == 0: stamp((2, 3))
stamp((4, 1), (4, 3))
A("L_PUB:")
gsig()
A("L_PUB2:\ns_waitcnt vmcnt(0)"); flagstore(2)
A("s_branch L_SPART")
if OPT["dead"]:
    A("L_DEAD:\ns_barrier\ns_add_u32 s83, s83, 1\ns_cmp_lt_u32 s83, 7\ns_cbranch_scc1 L_DEAD")
    A(ldsadd(40, 32, 33)); flagstore(0); flagstore(1)
    A("s_branch L_PUB")

A("L_QKV:")
RV, MV, ONE, G = 88, 8, 76, 8
cst = f"""s_mov_b32 s70, {hx(1.4426950408889634)}
s_mov_b32 s71, {hx(1.4426950408889634)}
s_mov_b32 s72, {hx(1e-6)}
s_mov_b32 s73, {hx(1e-6)}
s_mov_b32 s74, 0xffff0000
s_mov_b32 s75, 0xffff0000
s_sub_u32 s87, s7, 15
s_lshl_b32 s87, s87, 1
s_add_u32 s87, s87, s14
s_mul_i32 s77, s87, {24*3072}
s_add_u32 s77, s77, {WS_KV}
s_lshl_b32 s78, s6, 1
s_add_u32 s78, s78, s13
s_mul_i32 s78, s78, 3072
s_add_u32 s78, s78, s77""".split("\n")
wb4 = lambda buf: 64 + 16*buf
mainloop('Q', treads('Q', 0, (2, 3, 4, 5), wb4) + cst)
rvr = lambda a: f"ds_read_b128 {v(RV+4*a,4)}, v7 offset:{64*a}"
mvr = lambda a: f"ds_read_b128 {v(MV+4*a,4)}, v7 offset:{MR-RR+64*a}"
x3 = ["v_and_b32 v75, 15, v0", "v_lshl_add_u32 v75, v75, 2, s79"] + [f"ds_read_b32 v{72+j}, v75 offset:{128+64*j}" for j in range(4)] \
   + [f"v_mov_b32 v{ONE+j}, 0x3f803f80" for j in range(4)] + [rvr(5), rvr(4)]
q0 = treads('Q', 0, (0, 1), wb2)
x3 += q0[:4] + [mvr(5), mvr(4), "s_waitcnt lgkmcnt(4)"] + q0[4:]
assert len(x3) > 23
tphase('Q', (2, 3, 4, 5), wb4, True, False, x3, {}, rows=(5, 4, 3, 2, 1, 0))
A("s_waitcnt lgkmcnt(6)")
for a in (3, 2, 1, 0): A(rvr(a)); A(mvr(a))
stamp((1, 3))
def phi2(pairs, T, dst):
    for j in range(8): A(f"v_pk_mul_f32 {v(T[j],2)}, {v(pairs[j],2)}, s[70:71]")
    for j in range(16):
        r = pairs[j//2] + (j & 1); t_ = T[j//2] + (j & 1)
        A(f"v_exp_f32 v{t_}, v{t_} clamp\nv_max_f32 v{r}, s72, v{r}")
    for j in range(8): A(f"v_pk_add_f32 {v(T[j],2)}, {v(T[j],2)}, {v(pairs[j],2)}")
    for j in range(8): A(f"v_cvt_pk_bf16_f32 v{dst[j]}, v{T[j]}, v{T[j]+1}")
prs = lambda a, j0: [acc(2*a + (j % 4)//2, j0 + j//4) + 2*(j & 1) for j in range(8)]
KVa, KVb, Za, Zb = acc(5,2), acc(5,3), acc(5,4), acc(5,5)
for a in (2, 1, 0):
    if a == 1: A("s_bitcmp1_b32 s11, 0\ns_cbranch_scc0 L_KVS\ns_waitcnt lgkmcnt(0)")
    off = lambda j: 4*(2*a + (j % 4)//2) + 2*(j & 1)
    pv = prs(a, 4); pk = prs(a, 2)
    PV = acc(2*a, 4); PK = acc(2*a, 2)
    TL = [acc(2*a+1, 4) + 2*j for j in range(4)] + [80 + 2*j for j in range(4)]
    for j in range(8): A(f"v_pk_mul_f32 {v(pv[j],2)}, {v(pv[j],2)}, {v(RV+off(j),2)}")
    for j in range(8): A(f"v_pk_fma_f32 {v(pk[j],2)}, {v(pk[j],2)}, {v(RV+off(j),2)}, s[72:73]")
    for j in range(8): A(f"v_pk_fma_f32 {v(pv[j],2)}, {v(MV+off(j),2)}, v[74:75], {v(pv[j],2)} op_sel:[0,{j//4},0] op_sel_hi:[1,{j//4},1]")
    for j in range(8): A(f"v_pk_fma_f32 {v(pk[j],2)}, {v(MV+off(j),2)}, v[72:73], {v(pk[j],2)} op_sel:[0,{j//4},0] op_sel_hi:[1,{j//4},1]")
    for j in range(8): A(f"v_cvt_pk_bf16_f32 v{PV+j}, v{pv[j]}, v{pv[j]+1}")
    phi2(pk, TL, [PK+j for j in range(8)])
    c0 = 0 if a == 2 else None
    A(mf16(KVa, PK, PV, c0)); A(mf16(KVb, PK+4, PV+4, c0)); A(mf16(Za, ONE, PK, c0)); A(mf16(Zb, ONE, PK+4, c0))
    if a: A("s_nop 3")
A("L_KVS:\ns_waitcnt lgkmcnt(0)")
G = 96
for j in (3, 7, 11): A(f"v_mov_b32 v{G+j}, {TAG}")
A("s_nop 4")
for j in range(4): A(f"v_permlane16_swap_b32 v{KVa+j}, v{KVb+j}")
for j in range(8): A(f"v_mov_b32 v{G+4*(j//3)+j%3}, v{KVa+j}")
A(f"v_cndmask_b32 v{G+10}, v{Za}, v{Zb}, s[74:75]")
for g_ in range(3): A(f"buffer_store_dwordx4 {v(G+4*g_,4)}, v6, {WS}, s78 offen offset:{1024*g_} sc1")
stamp((2, 3))
CTr = lambda p: acc(p, 2)
rsetup = cap(lambda: (A(f"""s_lshr_b32 s79, s6, 1
s_lshl_b32 s86, s79, 8
s_add_u32 s86, s86, s77
v_lshrrev_b32 v7, 4, v0
v_mul_u32_u24 v7, 3072, v7
v_and_b32 v{acc(0,5)}, 15, v0
v_lshl_add_u32 v7, v{acc(0,5)}, 4, v7
v_add_u32 v7, s86, v7"""), [A(f"v_mov_b32 v{CTr(5)+j}, " + (TAG if j % 4 == 3 else "0")) for j in range(12)],
    A("s_and_b32 s78, s6, 9\ns_add_u32 s78, s78, 2")))
tphase('Q', (0, 1), wb2, False, True, [], {0: rsetup[:11], 1: rsetup[11:] + [rsrd(a) for a in (5, 4, 3, 2)],
       2: [rsrd(1), rsrd(0), "ds_read_b128 v[80:83], v35", "ds_read_b128 v[84:87], v35 offset:64"]}, rows=(5, 4, 3, 2, 1, 0))
A("s_nop 3")
stamp((3, 1))
def rloads():
    for p in range(6):
        A(f"s_mov_b32 s86, {12288*p}")
        if p == 5: A("s_mov_b32 exec_hi, 0")
        for g_ in range(3): A(f"buffer_load_dwordx4 {v(CTr(p)+4*g_,4)}, v7, {WS}, s86 offen offset:{1024*g_} sc1")
    A("s_mov_b32 exec_hi, -1")
def rissue(t):
    if OPT["rq"] == t:
        A("s_cmp_eq_u32 s78, s4\ns_cbranch_scc0 L_NORI"); rloads(); stamp((4, 3)); A("L_NORI:")
rissue(0)
for a in (2, 1, 0):
    if a == 1: A("s_bitcmp1_b32 s11, 0\ns_cbranch_scc0 L_PUB")
    D_ = 40 + 8*a
    pq_ = prs(a, 0); cbq = lambda j: v(CB+4*(2*a + (j % 4)//2), 2)
    for j in range(8): A(f"v_pk_fma_f32 {v(pq_[j],2)}, {v(80+4*(j//4)+2*(j&1),2)}, {cbq(j)}, {v(pq_[j],2)} op_sel_hi:[1,0,1]")
    for j in range(8): A(f"v_pk_fma_f32 {v(pq_[j],2)}, {v(pq_[j],2)}, {cbq(j)}, s[72:73] op_sel:[0,1,0] op_sel_hi:[1,1,1]")
    phi2(pq_, [8+2*j for j in range(8)], [D_+j for j in range(8)])
    for hd in range(2):
        A(f"v_permlane16_swap_b32 v{D_+4*hd}, v{D_+4*hd+2}\nv_permlane16_swap_b32 v{D_+4*hd+1}, v{D_+4*hd+3}")
    A(f"buffer_store_dwordx4 {v(D_,4)}, v1, {H}, 0 offen offset:{1024*a} sc1")
    A(f"buffer_store_dwordx4 {v(D_+4,4)}, v1, {H}, s81 offen offset:{1024*a} sc1")
    rissue(3-a)
stamp((4, 1))
A("s_cmp_eq_u32 s78, s4\ns_cbranch_scc0 L_PUB")
gsig()
f_addr(9)
A(f"s_mov_b32 s88, 0\ns_waitcnt vmcnt({2*(3-OPT['rq'])})\nL_KVC:")
tagcheck(8, 64, [CTr(n//3)+4*(n%3)+3 for n in range(18)])
A(f"""v_cmp_ne_u32 vcc, 0, v8
s_add_u32 s88, s88, 1
s_cmp_gt_u32 s88, {OPT['spin']}
s_cbranch_scc1 L_KVD
s_cbranch_vccz L_KVD""")
rloads()
A("s_waitcnt vmcnt(0)\ns_branch L_KVC\nL_KVD:")
note("s88", 3)
rr = lambda p, j: CTr(p) + 4*(j//3) + j % 3
RA, RB = 12, 64
for j in range(9): A(f"v_add_f32 v{RA+j}, v{rr(0,j)}, v{rr(1,j)}")
for p in range(2, 6):
    for j in range(9): A(f"v_add_f32 v{RA+j}, v{RA+j}, v{rr(p,j)}")
for sw in (16, 32):
    for j in range(9): A(f"v_mov_b32 v{RB+j}, v{RA+j}")
    for j in range(9): A(f"v_permlane{sw}_swap_b32 v{RA+j}, v{RB+j}")
    for j in range(9): A(f"v_add_f32 v{RA+j}, v{RA+j}, v{RB+j}")
A(f"""s_lshr_b32 s86, s79, 1
s_lshl_b32 s86, s86, 3
s_add_u32 s87, s86, 2
s_add_u32 s88, s86, 4
s_add_u32 s89, s86, 6
v_mov_b32_dpp v{RA+9}, v{RA+8} row_shl:1 row_mask:0xf bank_mask:0xf""")
for j in range(4): A(f"v_cvt_pk_bf16_f32 v{RB+j}, v{RA+2*j}, v{RA+1+2*j}")
A(f"""v_cvt_pk_bf16_f32 v{RA+9}, v{RA+8}, v{RA+9}
s_bitcmp1_b32 s79, 0
s_cselect_b64 s[80:81], -1, 0
s_xor_b64 s[80:81], s[80:81], s[74:75]""")
for j in range(4): A(f"v_readlane_b32 s{70+j}, v{RA+9}, s{86+j}")
for j in range(4): A(f"v_mov_b32 v{RB+4+j}, s{70+j}")
for j in range(4): A(f"v_cndmask_b32 v{RB+8+j}, v{RB+j}, v{RB+4+j}, s[80:81]")
A(f"""s_mov_b32 exec_hi, 0
buffer_store_dwordx4 {v(RB+8,4)}, v9, {WS}, 0 offen sc1
s_mov_b32 exec_hi, -1
s_waitcnt vmcnt(1)""")
stamp((5, 3))
flagstore(2)

A("L_SPART:")
if OPT["sprio"] != OPT["prio"]: A(f"s_setprio {OPT['sprio']}")
stamp((5, 1), (3, 3))
xres_addr(1, 8); xres_load()
w2addr(4, 8, False)
A(f"""s_lshl_b32 s86, s4, 3
s_add_u32 s86, s86, 86
s_lshl_b32 s86, s86, 16
s_lshl_b32 s87, s84, 11
s_add_u32 s86, s86, s87
v_lshl_add_u32 v2, v0, 4, s86
s_mul_i32 s88, s84, 43
s_lshr_b32 s88, s88, 7
s_mul_i32 s88, s88, 23
s_lshl_b32 s87, s4, 1
s_add_u32 s88, s88, s87
s_add_u32 s88, s88, 15
s_lshl_b32 s88, s88, 12
s_add_u32 s88, s88, {WS_FLAG}
v_and_b32 v3, 7, v0
v_lshl_add_u32 v3, v3, 10, s88
s_lshl_b32 s74, s4, 13
s_add_u32 s74, s74, {WS_F}
v_lshl_add_u32 v8, v0, 4, s74
s_lshl_b32 s86, s4, 2
s_add_u32 s86, s86, {LF}
v_mov_b32 v10, s86
s_mov_b32 s72, {hx(1e-6)}
s_movk_i32 s73, 4096
s_mov_b32 s89, 0""")
if OPT["warm"]:
    assert OPT["sd"] == 8
    A("s_mov_b32 s75, 1\ns_mov_b64 exec, 0\ns_branch L_PIPE\nL_WBACK:\ns_mov_b32 s75, 0\ns_mov_b64 exec, -1")
stamp((1, 4))
if OPT['sdelay']: A(f"s_sleep {OPT['sdelay']}")
if OPT["comb"]:
    A("v_add_u32 v3, 48, v10"); spin_lds(3, 9)
else: spin_flag(3, 9, 8, 2)
note("s88", 4)
stamp((6, 1), (2, 4))
SD = OPT["sd"]
rho8()
A("s_lshl_b32 s78, s12, 2\ns_lshr_b32 s79, s12, 4")
def pqload(k):
    return [f"s_xor_b32 s86, s78, {k*65536}",
            f"buffer_load_dwordx4 {v(16+8*k,4)}, v2, {H}, s86 offen sc1",
            f"buffer_load_dwordx4 {v(20+8*k,4)}, v2, {H}, s86 offen offset:1024 sc1"]
def floads():
    for k in range(8):
        if k % 2 == 0: A(f"s_xor_b32 s86, s79, {k*1024}")
        A(f"buffer_load_dwordx4 {v(80+4*k,4)}, v8, {WS}, s86 offen offset:{1024*(k%2)} sc1")
if OPT["ffirst"]: floads()
for k in range(SD):
    if OPT["sdep"]: A(f"s_waitcnt vmcnt({OPT['sdep']-2})")
    E(pqload(k))
if OPT["ffirst"]: A(f"s_waitcnt vmcnt({2*SD})\ns_branch L_FC")
if OPT["hints"]:
    A(f"s_lshl_b32 s86, s4, 14\ns_add_u32 s86, s86, {WS_FF}\nv_lshl_add_u32 v9, v0, 10, s86")
    spin_flag(9, 11, 16)
else: A(f"s_waitcnt vmcnt({OPT['fafter']})")
A("s_branch L_FL\nL_FQ:\ns_sleep 8\nL_FL:")
floads()
A("s_waitcnt vmcnt(0)\nL_FC:\ns_add_u32 s89, s89, 1")
E(vmax(112, [80+4*k for k in range(8)]))
A(f"""v_cmp_eq_u32 vcc, -1, v112
s_cmp_gt_u32 s89, {OPT['spin']}
s_cbranch_scc1 L_FPD
s_cbranch_vccnz L_FQ
L_FPD:""")
note("s89", 4); note("s89", 1)
stamp((6, 3), (3, 4))
woloc = lambda k: (1, k) if k < 6 else (2, k-2)
def Om(k): return [mfma(128+32*(k&1)+16*r, 80+4*k, 16+8*k+4*r, 0) for r in range(2)]
def Vv(k):
    o = []
    D = [128+32*(k&1)+16*r for r in range(2)]
    nd = [((d, d+8) if k % 2 == 0 else (d+8, d)) for d in D]
    for num, den in nd: o.append(f"v_add_f32 v{den}, s72, v{den}")
    for num, den in nd: o.append(f"v_rcp_f32 v{den}, v{den}")
    for r, (num, den) in enumerate(nd):
        if OPT["spk"]:
            for j in range(4): o.append(f"v_pk_mul_f32 {v(num+2*j,2)}, {v(num+2*j,2)}, {v(den,2)} op_sel_hi:[1,0]")
        else:
            for j in range(8): o.append(f"v_mul_f32 v{num+j}, v{num+j}, v{den}")
        for j in range(4): o.append(f"v_cvt_pk_bf16_f32 v{16+8*k+4*r+j}, v{num+2*j}, v{num+2*j+1}")
    return o
def Sm(k): return [mfmaH(192+32*r+16*c, 112+8*(k&1)+4*c, 16+8*k+4*r, 0 if k <= OPT['h16'] else None, k & 1) for r in range(2) for c in range(2)]
issued = [SD]
def need(k):
    o = [f"s_waitcnt vmcnt({2*(issued[0]-1-k)})"]
    more = []
    if issued[0] < 8: more = pqload(issued[0]); issued[0] += 1
    return o, more
A('L_PIPE:')
E(w2read(112, *woloc(0), 4, False))
for k in (0, 1):
    w_, m_ = need(k); E(w_ + Om(k) + m_)
E(Vv(0))
for k in range(8):
    A("s_waitcnt lgkmcnt(0)")
    fill = (w2read(112+8*((k+1)&1), *woloc(k+1), 4, False) + Vv(k+1)) if k+1 < 8 else []
    if k == 7:
        fill = cap(lambda: (wraddr(80, False), rdaddr(4, False, 1, 88), A(f"s_lshl_b32 s86, s4, 11\ns_add_u32 s86, s86, {GB}\nv_lshl_add_u32 v9, v0, 4, s86"),
            [A(f"v_lshlrev_b32 v{112+2*j}, 16, v{12+j}\nv_and_b32 v{113+2*j}, 0xffff0000, v{12+j}") for j in range(4)]))
    NF = 16 if OPT['spk'] else 20
    if k == 7: NF = 28
    E(interleave(Sm(k), fill[:NF], NF//4))
    if k+2 < 8:
        w_, m_ = need(k+2); E(w_); E(interleave(Om(k+2), fill[NF:] + m_, 6))
    else: E(fill[NF:])
    if k == 3: stamp((4, 4))
if OPT["warm"] == 1: A("s_cmp_eq_u32 s75, 1\ns_cbranch_scc1 L_WBACK")
stamp((7, 1), (5, 4))
final(False)
stamp((6, 4))
if OPT["fin"] == 0: A("s_barrier\nds_read_b128 v[88:91], v9\nds_read_b128 v[92:95], v9 offset:1024\ns_branch L_FIN2")
else: A("s_barrier\ns_branch L_FIN2")

A("L_FINAL:")
stamp((6, 4))
A("s_barrier")
if OPT["fin"] == 1: A("ds_read_b128 v[88:91], v109\nds_read_b128 v[92:95], v109 offset:1024")
A("L_FIN2:")
stamp((7, 3), (7, 4))
rd4(48, 4)
A("s_waitcnt lgkmcnt(0)")
sum4(48)
if OPT["fin"] == 1:
    for j in range(4): A(f"v_pk_mul_f32 {v(56+2*j,2)}, {v(48+2*j,2)}, s[70:71]")
    E(interleave([f"v_exp_f32 v{56+j}, v{56+j}" for j in range(8)], [f"v_pk_mul_f32 {v(88+2*j,2)}, {v(88+2*j,2)}, {v(48+2*j,2)}" for j in range(4)], 1))
    for j in range(4): A(f"v_pk_add_f32 {v(56+2*j,2)}, {v(56+2*j,2)}, 1.0 op_sel_hi:[1,0]")
    for j in range(8): A(f"v_rcp_f32 v{48+j}, v{56+j}")
for j in range(4): A(f"v_pk_fma_f32 {v(48+2*j,2)}, {v(48+2*j,2)}, {v(88+2*j,2)}, {v(112+2*j,2)}")
for j in range(4): A(f"v_cvt_pk_bf16_f32 v{24+j}, v{48+2*j}, v{49+2*j}")
if OPT["warm"] == 2: A("s_cbranch_execz L_WBACK")
A(f"""buffer_store_dwordx4 v[24:27], v1, {OUT}, 0 offen {['', 'sc1', 'nt', 'sc0 sc1'][OPT['osc']]}
s_add_u32 s86, s2, s3
s_cmp_eq_u32 s86, 0
s_cbranch_scc0 L_NOBUMP
v_mov_b32 v2, 0
v_mov_b32 v3, {TAG}
buffer_store_dword v3, v2, {WS}, 0 offen sc1
L_NOBUMP:""")
if OPT["stamps"]:
    A("s_waitcnt vmcnt(0)")
    stamp((8, 0))
    A(f"""s_memrealtime s[68:69]
s_waitcnt lgkmcnt(0)
s_mov_b32 s101, s68""")
    if OPT["diag"]:
        A(f"""s_cmp_lg_u32 s3, {OPT['dwave']}
s_cbranch_scc1 L_END
s_sub_u32 s86, s{92+OPT['diag']}, s34
s_lshl_b32 s86, s86, 2
s_min_u32 s86, s86, 20000
L_DSPIN:
s_memrealtime s[68:69]
s_waitcnt lgkmcnt(0)
s_sub_u32 s87, s68, s101
s_sleep 2
s_cmp_lt_u32 s87, s86
s_cbranch_scc1 L_DSPIN
s_endpgm""")
    A(f"""s_lshl_b32 s86, s2, 3
s_add_u32 s86, s86, s3
s_lshl_b32 s86, s86, 6
s_add_u32 s86, s86, {WS_DBG}
v_mov_b32 v2, s86""")
    for i in range(10): A(f"v_mov_b32 v3, s{92+i}\nbuffer_store_dword v3, v2, {WS}, 0 offen offset:{4*i}")
    A(f"v_mov_b32 v3, s34\nbuffer_store_dword v3, v2, {WS}, 0 offen offset:40")
    A(f"v_mov_b32 v3, s35\nbuffer_store_dword v3, v2, {WS}, 0 offen offset:44")
A("L_END:\ns_endpgm")

lines, errs = pad(A.lines)
for e in errs: print("HAZARD:", e, file=sys.stderr)
hdr = open("cdna_kernels/%s.s.ref" % NAME).read().split("; Override launch")[0]
out = hdr + f"""; Fused single-launch kernel, emitted by my own generator script (gen/gen.py); 256 WGs x 8 waves, 1 WG per CU.
;  Phase 1: 192x192 tiles of x @ [w_gate|w_up] (GU role) or x @ [wq|wk|wv] (QKV role), K streamed through a
;    3-slot LDS ring by LDS-DMA (waves 0-1), MFMA 16x16x32 in waves 4-7. LayerNorm is applied after the GEMM:
;    r*(acc - mean*colsum(W)); row stats and column sums are computed once and shared through tagged granules.
;    GU epilogue: gelu(g)*u -> h fragments; QKV epilogue: phi(k)^T v / sum phi(k) partials, phi(q) fragments.
;  Phase 2: 64x64 output tiles: waves 0-3 y = h @ w_down (K split), waves 4-7 o = phi(q) kv / den, s = o @ wo,
;    LDS reduction, out = x + s * silu(y).
;  Hand-offs: write-through (sc1) stores, drained, then a flag line holding this launch's tag (tag = word found at
;    d_ws[0] + constant, written back at the end); readers use sc1 loads. All waits are bounded.
; @launch grid=(256,1,1) block=(512,1,1) lds={LDS}
.amdgcn_target "amdgcn-amd-amdhsa--gfx950"
.text
.globl {NAME}_kernel
.p2align 8
.type {NAME}_kernel,@function
{NAME}_kernel:
""" + render(lines) + f""".section .rodata,"a"
.p2align 6
.amdhsa_kernel {NAME}_kernel
  .amdhsa_next_free_vgpr 256
  .amdhsa_next_free_sgpr 102
  .amdhsa_accum_offset 256
  .amdhsa_group_segment_fixed_size 0
  .amdhsa_kernarg_size 80
  .amdhsa_user_sgpr_count 2
  .amdhsa_user_sgpr_kernarg_segment_ptr 1
  .amdhsa_system_sgpr_workgroup_id_x 1
.end_amdhsa_kernel
"""
open(sys.argv[1], "w").write(out)
```
